```python
import torch

def _softmax(x, axis=-1):
    return torch.softmax(x, dim=axis)
def _gelu(x):
    return torch.nn.functional.gelu(x, approximate="tanh")
def _silu(x):
    return torch.nn.functional.silu(x)
def _sigmoid(x):
    return torch.sigmoid(x)
def _layernorm(x, axis=-1, eps=1e-5):
    m = x.mean(dim=axis, keepdim=True)
    v = x.var(dim=axis, keepdim=True, unbiased=False)
    return (x - m) / torch.sqrt(v + eps)
def _scatter_add(tgt, idx, src, axis=0):
    return tgt.clone().index_add_(axis, idx, src)
def _segment_sum(src, seg, n):
    out = torch.zeros((n,) + src.shape[1:], dtype=src.dtype)
    return out.index_add_(0, seg, src)
def _pad(x, pw):
    flat = tuple(v for pair in reversed(pw) for v in pair)
    return torch.nn.functional.pad(x, flat)

kernel_name = 'interleave_layers__sliding_block__swiglu_ffn__prompt'

def setup_inputs():

    _w = (lambda a: (lambda t: t.to(torch.bfloat16) if t.is_floating_point() else t)(torch.as_tensor(a)))
    def _A_setup():
        B, S, D = 1, 2048, 576
        return {
            "x": _w((lambda *s: torch.randn(*s, dtype=torch.bfloat16) * 0.05)(B, S, D)),
            "wqkv": _w((lambda *s: torch.randn(*s, dtype=torch.bfloat16) * 0.05)(D, 3 * D)),
            "wo": _w((lambda *s: torch.randn(*s, dtype=torch.bfloat16) * 0.05)(D, D)),
        }
    _A_in = _A_setup()

    def _B_setup():
        B, S, D, F = 1, 2048, 576, 4608
        return {
            "x": _w((lambda *s: torch.randn(*s, dtype=torch.bfloat16) * 0.05)(B, S, D)),
            "w_gate": _w((lambda *s: torch.randn(*s, dtype=torch.bfloat16) * 0.05)(D, F)),
            "w_up": _w((lambda *s: torch.randn(*s, dtype=torch.bfloat16) * 0.05)(D, F)),
            "w_down": _w((lambda *s: torch.randn(*s, dtype=torch.bfloat16) * 0.05)(F, D)),
        }
    _B_in = _B_setup()

    return {
        "A_x": _A_in["x"],
        "A_wqkv": _A_in["wqkv"],
        "A_wo": _A_in["wo"],
        "B_x": _B_in["x"],
        "B_w_gate": _B_in["w_gate"],
        "B_w_up": _B_in["w_up"],
        "B_w_down": _B_in["w_down"],
    }

def reference(A_x, A_wqkv, A_wo, B_x, B_w_gate, B_w_up, B_w_down):
    def _A_ref(x, wqkv, wo):
        B, S, D = x.shape
        H = 32; Dh = D // H; W = 256
        qkv = (lambda x, *d: x.permute(*d))((x @ wqkv).reshape(B, S, 3, H, Dh), 2, 0, 3, 1, 4)
        q, k, v = qkv[0], qkv[1], qkv[2]
        scores = torch.einsum("bhqd,bhkd->bhqk", q, k) * (Dh ** -0.5)
        idx = torch.arange(S)
        mask = (idx[:, None] - idx[None, :] >= 0) & (idx[:, None] - idx[None, :] < W)
        scores = torch.where(mask[None, None], scores, -1e9)
        p = _softmax(scores, axis=-1)
        o = torch.einsum("bhqk,bhkd->bhqd", p, v)
        return (lambda x, *d: x.permute(*d))(o, 0, 2, 1, 3).reshape(B, S, D) @ wo

    def _B_ref(x, w_gate, w_up, w_down):
        g = _silu(x @ w_gate)
        u = x @ w_up
        return (g * u) @ w_down

    x = A_x
    x = x + _A_ref(_layernorm(x, axis=-1), A_wqkv, A_wo)
    x = x + _B_ref(_layernorm(x, axis=-1), B_w_gate, B_w_up, B_w_down)
    x = x + _A_ref(_layernorm(x, axis=-1), A_wqkv, A_wo)
    x = x + _B_ref(_layernorm(x, axis=-1), B_w_gate, B_w_up, B_w_down)
    return x
```

```python
import re

TRANS = ("v_exp_f32", "v_log_f32", "v_rcp_f32", "v_rsq_f32", "v_sqrt_f32", "v_sin_f32", "v_cos_f32")

def regs_of(tok):
    tok = tok.strip()
    if tok.startswith("-"): tok = tok[1:]
    if tok.startswith("|") and tok.endswith("|"): tok = tok[1:-1]
    m = re.fullmatch(r"abs\((.*)\)", tok)
    if m: tok = m.group(1)
    m = re.fullmatch(r"([vas])(\d+)", tok)
    if m: return [tok]
    m = re.fullmatch(r"([vas])\[(\d+):(\d+)\]", tok)
    if m: return [f"{m.group(1)}{i}" for i in range(int(m.group(2)), int(m.group(3)) + 1)]
    if tok == "vcc": return ["vcc_lo", "vcc_hi"]
    if tok == "exec": return ["exec_lo", "exec_hi"]
    if tok in ("vcc_lo", "vcc_hi", "exec_lo", "exec_hi", "m0"): return [tok]
    return []

class Ins:
    __slots__ = ("text", "op", "ops", "dst", "src", "kind", "tag", "passes", "cregs", "abregs", "wide", "label", "target", "nop", "path")
    def __init__(self, text, tag=None, path=None):
        self.text = text; self.tag = tag; self.path = path
        self.label = None; self.target = None; self.nop = 0
        self.passes = 0; self.cregs = []; self.abregs = []; self.wide = False
        t = text.split(";")[0].strip()
        if t.endswith(":"):
            self.kind = "label"; self.label = t[:-1]; self.op = ""; self.ops = []; self.dst = []; self.src = []; return
        if t.startswith(".") or t == "":
            self.kind = "dir"; self.op = ""; self.ops = []; self.dst = []; self.src = []; return
        parts = t.split(None, 1)
        op = parts[0]; rest = parts[1] if len(parts) > 1 else ""
        self.op = op
        ops = [o.strip() for o in re.split(r",(?![^\[]*\])(?![^(]*\))", rest)] if rest else []
        mods = ""
        if ops:
            last = ops[-1].split(None, 1)
            if len(last) > 1 and not op.startswith("s_waitcnt"):
                ops[-1] = last[0]; mods = last[1]
        self.ops = ops
        R = [regs_of(o) for o in ops]
        flat = lambda l: [x for y in l for x in y]
        if op in ("WAITVM", "WAITLG"):
            self.kind = "pwait"; self.dst = []; self.src = []
        elif op.startswith("v_mfma"):
            self.kind = "mfma"; self.dst = R[0]; self.abregs = R[1] + R[2]; self.cregs = R[3]; self.src = self.abregs + self.cregs
            self.passes = 8 if "32x32" in op else 4
        elif op.startswith("v_"):
            self.kind = "valu"
            b = re.sub(r"_(e32|e64|dpp|sdwa)$", "", op)
            if b.startswith("v_permlane") and "swap" in b:
                self.dst = R[0] + R[1]; self.src = R[0] + R[1]
            elif b in ("v_add_co_u32", "v_sub_co_u32", "v_subrev_co_u32", "v_addc_co_u32", "v_subb_co_u32"):
                self.dst = R[0] + R[1]; self.src = flat(R[2:])
            else:
                self.dst = R[0]; self.src = flat(R[1:])
                if b in ("v_fmac_f32", "v_dot2c_f32_bf16", "v_writelane_b32") or "dpp" in op or "row_" in mods or "quad_perm" in mods:
                    self.src = self.src + R[0]
        elif op.startswith("buffer_load") or op.startswith("global_load"):
            if " lds" in " " + mods + " " or "_lds_" in op:
                self.kind = "dma"; self.dst = []; self.src = flat(R) + ["m0"]
            else:
                self.kind = "vload"; self.dst = R[0]; self.src = flat(R[1:])
        elif op.startswith("buffer_store") or op.startswith("global_store"):
            self.kind = "vstore"; self.dst = []; self.src = flat(R)
            self.wide = op.endswith("x4") or op.endswith("x3")
            self.cregs = R[0] if op.startswith("buffer") else R[1]
        elif op.startswith("buffer_atomic") or op.startswith("global_atomic"):
            self.kind = "vstore"; self.dst = []; self.src = flat(R)
            if "sc0" in mods: self.kind = "vload"; self.dst = R[0]
        elif op.startswith("buffer_wbl2") or op.startswith("buffer_inv"):
            self.kind = "vstore"; self.dst = []; self.src = []
        elif op.startswith("ds_read") or op.startswith("ds_bpermute") or op.startswith("ds_swizzle"):
            self.kind = "dsread"; self.dst = R[0]; self.src = flat(R[1:])
        elif op.startswith("ds_write"):
            self.kind = "dswrite"; self.dst = []; self.src = flat(R)
        elif op.startswith("s_load") or op in ("s_memtime", "s_memrealtime"):
            self.kind = "smem"; self.dst = R[0]; self.src = flat(R[1:])
        elif op == "s_waitcnt":
            self.kind = "wait"; self.dst = []; self.src = []
        elif op == "s_nop":
            self.kind = "nop"; self.nop = int(ops[0], 0); self.dst = []; self.src = []
        elif op in ("s_branch",) or op.startswith("s_cbranch"):
            self.kind = "branch"; self.target = ops[0]; self.dst = []; self.src = []
        elif op in ("s_barrier", "s_endpgm", "s_setprio", "s_sleep"):
            self.kind = "misc"; self.dst = []; self.src = []
        elif op.startswith("s_cmp") or op.startswith("s_bitcmp"):
            self.kind = "salu"; self.dst = []; self.src = flat(R)
        elif op.startswith("s_"):
            self.kind = "salu"; self.dst = R[0]; self.src = flat(R[1:])
            if "saveexec" in op: self.dst = self.dst + ["exec_lo", "exec_hi"]
        else:
            raise ValueError("unknown instruction: " + text)

def need_states(st, ins):
    need = 0
    def req(t, n):
        nonlocal need
        if t is not None: need = max(need, t + n + 1)
    k = ins.kind
    b = re.sub(r"_(e32|e64|dpp|sdwa)$", "", ins.op)
    if k == "mfma":
        for r in ins.src: req(st["valu_w"].get(r), 2)
        for r in ins.abregs:
            e = st["mfma_w"].get(r)
            if e: req(e[0], 8 if e[1] == 4 else 12)
        for r in ins.cregs:
            e = st["mfma_w"].get(r)
            if e and not (e[2] == tuple(ins.cregs) and e[1] == ins.passes): req(e[0], 6 if e[1] == 4 else 10)
        req(st.get("valu_exec"), 4)
    if k in ("valu", "vload", "vstore", "dma", "dsread", "dswrite"):
        for r in ins.src + ins.dst:
            e = st["mfma_w"].get(r)
            if e: req(e[0], 8 if e[1] == 4 else 12)
    if k == "valu":
        for r in ins.dst:
            e = st["mfma_c"].get(r)
            if e: req(e[0], 3 if e[1] == 4 else 7)
            req(st["store_d"].get(r), 2)
        if b not in TRANS:
            for r in ins.src: req(st["trans_w"].get(r), 1)
        if b.startswith("v_permlane") or "dpp" in ins.op or "row_" in ins.text or "quad_perm" in ins.text:
            for r in ins.src: req(st["valu_w"].get(r), 2)
        if b in ("v_readlane_b32", "v_readfirstlane_b32"):
            for r in ins.src:
                if r[0] == "v" and r[1].isdigit(): req(st["valu_w"].get(r), 1)
        for r in ins.src:
            if r[0] == "s" or r.startswith("vcc"):
                req(st["valu_sw"].get(r), 4 if b in ("v_readlane_b32", "v_writelane_b32") else 2)
    if k in ("valu", "mfma", "vstore", "vload", "dma", "dsread", "dswrite"):
        for r in ins.src + ins.dst:
            e = st["dot_w"].get(r)
            if e:
                if e[1] == b and r in ins.dst and not (r in regs_of(ins.ops[1]) + regs_of(ins.ops[2])): pass
                else: req(e[0], 3)
    if k in ("vload", "dsread"):
        for r in ins.dst: req(st["store_d"].get(r), 1)
    if k in ("vload", "vstore", "dma"):
        for r in ins.src:
            if r[0] == "s": req(st["valu_sw"].get(r), 5)
    if k == "salu":
        for r in ins.src:
            if r[0] == "s" or r.startswith("vcc"): req(st["valu_sw"].get(r), 1)
    if k == "dma": req(st.get("m0_w"), 1)
    return need

def new_state():
    return {"valu_w": {}, "mfma_w": {}, "mfma_c": {}, "trans_w": {}, "valu_sw": {}, "store_d": {}, "dot_w": {}}

def update(st, ins, t):
    k = ins.kind
    b = re.sub(r"_(e32|e64|dpp|sdwa)$", "", ins.op)
    if k == "valu":
        for r in ins.dst:
            if (r[0] in "va" and r[1].isdigit()):
                st["valu_w"][r] = t
                st["mfma_w"].pop(r, None)
                if b in TRANS: st["trans_w"][r] = t
                else: st["trans_w"].pop(r, None)
                if b.startswith("v_dot"): st["dot_w"][r] = (t, b)
                else: st["dot_w"].pop(r, None)
            else:
                st["valu_sw"][r] = t
                if r.startswith("exec"): st["valu_exec"] = t
    elif k == "mfma":
        for r in ins.dst:
            st["mfma_w"][r] = (t, ins.passes, tuple(ins.dst)); st["valu_w"].pop(r, None); st["trans_w"].pop(r, None)
        for r in ins.cregs: st["mfma_c"][r] = (t, ins.passes)
    elif k == "vstore" and ins.wide:
        for r in ins.cregs: st["store_d"][r] = t
    elif k in ("vload", "dsread"):
        for r in ins.dst:
            st["valu_w"].pop(r, None); st["mfma_w"].pop(r, None); st["trans_w"].pop(r, None)
    elif k == "salu":
        for r in ins.dst:
            st["valu_sw"].pop(r, None)
            if r == "m0": st["m0_w"] = t

class Kern:
    def __init__(self):
        self.ins = []
        self.path = None
    def __call__(self, text, tag=None):
        for line in text.strip().split("\n"):
            line = line.strip()
            if line: self.ins.append(Ins(line, tag, self.path))
    def add(self, lst):
        for x in lst:
            if isinstance(x, Ins): self.ins.append(x)
            elif isinstance(x, tuple): self(x[0], x[1])
            else: self(x)

    def resolve_waits(self):
        out = []
        for i, x in enumerate(self.ins):
            if x.kind != "pwait":
                out.append(x); continue
            tags = set(x.ops)
            cls = ("vload", "vstore", "dma") if x.op == "WAITVM" else ("dsread", "dswrite", "smem")
            n = 0; found = False
            for y in reversed(self.ins[:i]):
                if y.path is not None and y.path != x.path: continue
                if y.kind in cls:
                    if y.tag in tags: found = True; break
                    assert y.kind != "smem", "smem inside counted lgkm window"
                    n += 1
            assert found, f"wait tag {tags} not found"
            if x.op == "WAITVM":
                if n >= 63: continue
                out.append(Ins(f"s_waitcnt vmcnt({n})"))
            else:
                assert n <= 15, f"lgkm wait {n} for {tags}"
                out.append(Ins(f"s_waitcnt lgkmcnt({n})"))
        self.ins = out

    def fix_hazards(self):
        st = new_state(); t = 0; out = []; added = 0
        for x in self.ins:
            if x.kind in ("label", "dir"):
                out.append(x); continue
            n = need_states(st, x)
            if n > t:
                k = n - t
                out.append(Ins(f"s_nop {k-1}")); added += k; t += k
            update(st, x, t)
            t += x.nop + 1
            out.append(x)
        self.ins = out
        return added

    def check(self, entry, name="", taken=None, maxloop=2):
        idx = {x.label: i for i, x in enumerate(self.ins) if x.kind == "label"}
        taken = taken or set()
        st = new_state(); t = 0; i = idx[entry]; vm = []; lg = []; cnt = {}; errs = []
        pend = {}
        while i < len(self.ins):
            x = self.ins[i]
            if x.kind in ("label", "dir"): i += 1; continue
            n = need_states(st, x)
            if n > t: errs.append(f"{name}: hazard short by {n-t} at [{i}] {x.text}")
            for r in x.src + x.dst:
                if r in pend: errs.append(f"{name}: reg {r} still pending ({pend[r]}) at [{i}] {x.text}")
            if x.kind == "wait":
                m = re.search(r"vmcnt\((\d+)\)", x.text)
                if m:
                    while len(vm) > int(m.group(1)):
                        for r in vm.pop(0): pend.pop(r, None)
                m = re.search(r"lgkmcnt\((\d+)\)", x.text)
                if m:
                    nn = int(m.group(1))
                    if nn > 0 and any(e[1] for e in lg): errs.append(f"{name}: counted lgkm wait with smem outstanding [{i}]")
                    while len(lg) > nn:
                        for r in lg.pop(0)[0]: pend.pop(r, None)
            elif x.kind in ("vload", "vstore", "dma"):
                vm.append(list(x.dst))
                for r in x.dst: pend[r] = x.text
                while len(vm) > 63:
                    for r in vm.pop(0): pend.pop(r, None)
            elif x.kind in ("dsread", "dswrite", "smem"):
                lg.append((list(x.dst), x.kind == "smem"))
                for r in x.dst: pend[r] = x.text
                if len(lg) > 15 and not getattr(self, "_lgwarn", False):
                    print(f"note {name}: >15 lgkm ops outstanding at [{i}] {x.text}"); self._lgwarn = True
            update(st, x, t)
            t += x.nop + 1
            if x.op == "s_endpgm": break
            if x.kind == "branch":
                j = idx[x.target]
                if x.op == "s_branch":
                    if j <= i:
                        cnt[i] = cnt.get(i, 0) + 1
                        assert cnt[i] < 50, "runaway"
                    i = j; continue
                if j <= i:
                    cnt[i] = cnt.get(i, 0) + 1
                    if cnt[i] < maxloop: i = j; continue
                elif x.target in taken or (i in taken):
                    i = j; continue
            i += 1
        return errs

    def fwd_targets(self):
        idx = {x.label: i for i, x in enumerate(self.ins) if x.kind == "label"}
        return [x.target for i, x in enumerate(self.ins) if x.kind == "branch" and x.op != "s_branch" and idx[x.target] > i]

    def text(self):
        return "\n".join(("" if x.kind in ("label", "dir") else "  ") + x.text for x in self.ins) + "\n"

def interleave(main, fill, per_slot=2.0, start=0):
    out = []; budget = 0.0; fi = 0
    for s, item in enumerate(main):
        out.extend(item)
        budget += per_slot - (len(item) - 1)
        while fi < len(fill) and fill[fi][2] <= s + start and budget >= fill[fi][0] - 1e-9:
            out.append(fill[fi][1]); budget -= fill[fi][0]; fi += 1
        budget = min(budget, per_slot)
    return out, fill[fi:]

def descriptor(name, vgprs, agprs, sgprs=96):
    acc = (vgprs + 3) // 4 * 4
    nfv = acc + agprs if agprs else vgprs
    return f""".section .rodata,"a"
.p2align 6
.amdhsa_kernel {name}
  .amdhsa_next_free_vgpr {nfv}
  .amdhsa_next_free_sgpr {sgprs}
  .amdhsa_accum_offset {acc}
  .amdhsa_group_segment_fixed_size 0
  .amdhsa_kernarg_size 80
  .amdhsa_user_sgpr_count 2
  .amdhsa_user_sgpr_kernarg_segment_ptr 1
  .amdhsa_system_sgpr_workgroup_id_x 1
  .amdhsa_float_denorm_mode_32 3
.end_amdhsa_kernel
.text
"""
```

```python
from asmgen import *
from layout import *
from k_prep import srd, entry, xreduce

GRID = 256
REC = 3072
VR0 = 16 * REC
ONES = VR0 + 2048
LDS = ONES + 16 + 2 * REC
NEG = "0xf149f2ca"

Q = (16, 20); KF = (24, 28); VM = 32; VRF = 36
S = {("A", 0): 40, ("B", 0): 44, ("A", 1): 48, ("B", 1): 52}
E = {t: r + 16 for t, r in S.items()}
P = {"A": 72, "B": 76}
OM = {"A": 80, "B": 84}; OR = {"A": 88, "B": 92}
MO = 96; MD = 100
NM = {"A": 104, "B": 108}
CF = {"A": 112, "B": 116}; CL = {"A": 120, "B": 124}
MX = {"A": 14, "B": 15}
ORDER = [("A", 0), ("B", 0), ("A", 1), ("B", 1)]
def v4(r): return f"v[{r}:{r+3}]"

def present(kind, t):
    return not ((kind == "first" and t == ("B", 0)) or (kind == "last" and t == ("A", 1)))

def cop(kind, t, ps):
    masked = (kind == "first" and t in (("A", 0), ("B", 1))) or (kind == "last" and t in (("A", 0), ("B", 1)))
    if ps == 1:
        return v4(MO if kind == "first" else MD) if masked else "0"
    if masked: return v4((CF if kind == "first" else CL)[t[0]])
    return v4(NM[t[0]])

def smfma(k, kind, t, ps):
    if present(kind, t):
        k(f"v_mfma_f32_16x16x32_bf16 {v4(S[t])}, {v4(KF[t[1]])}, {v4(Q[t[0] == 'B'])}, {cop(kind, t, ps)}")

def prologue(k, kind, ps):
    k(f"ds_read_b128 {v4(KF[0])}, v2")
    k(f"ds_read_b128 {v4(KF[1])}, v2 offset:1024")
    k("s_waitcnt lgkmcnt(0)")
    for t in ORDER: smfma(k, kind, t, ps)
    k(f"ds_read_b128 {v4(KF[0])}, v2 offset:{REC}")
    k(f"ds_read_b128 {v4(KF[1])}, v2 offset:{REC+1024}")
    if ps == 2:
        k(f"ds_read_b128 {v4(VM)}, v2 offset:2048")
        k(f"ds_read_b128 {v4(VRF)}, v3")
        k("v_add_u32 v3, v3, v4")
    k("s_nop 4")

def iteration(k, cur, nxt, ps):
    nq = 1 if ps == 1 else 3
    for t in ORDER:
        if present(cur, t):
            s = S[t]
            if ps == 1:
                m = MX[t[0]]
                k(f"v_max3_f32 v{m}, v{m}, v{s}, v{s+1}")
                k(f"v_max3_f32 v{m}, v{m}, v{s+2}, v{s+3}")
            else:
                for i in range(4): k(f"v_exp_f32 v{E[t]+i}, v{s+i}")
        if nxt:
            if t[0] == "A": k(f"s_waitcnt lgkmcnt({nq})")
            smfma(k, nxt, t, ps)
            if t[0] == "B": k(f"ds_read_b128 {v4(KF[t[1]])}, v2 offset:{2*REC + 1024*t[1]}")
    if ps == 2:
        for q in "AB":
            for tl in range(2):
                p = P[q] + 2 * tl; e = E[(q, tl)]
                if present(cur, (q, tl)):
                    k(f"v_cvt_pk_bf16_f32 v{p}, v{e}, v{e+1}")
                    k(f"v_cvt_pk_bf16_f32 v{p+1}, v{e+2}, v{e+3}")
                else:
                    k(f"v_mov_b32 v{p}, 0"); k(f"v_mov_b32 v{p+1}, 0")
            if q == "A": k(f"s_waitcnt lgkmcnt({2 if nxt else 0})")
            else: k("s_nop 0") if False else None
            if q == "B":
                pass
        k(f"v_mfma_f32_16x16x32_bf16 {v4(OM['A'])}, {v4(VM)}, {v4(P['A'])}, {v4(OM['A'])}")
        k(f"v_mfma_f32_16x16x32_bf16 {v4(OR['A'])}, {v4(VRF)}, {v4(P['A'])}, {v4(OR['A'])}")
        k(f"v_mfma_f32_16x16x32_bf16 {v4(OM['B'])}, {v4(VM)}, {v4(P['B'])}, {v4(OM['B'])}")
        k(f"v_mfma_f32_16x16x32_bf16 {v4(OR['B'])}, {v4(VRF)}, {v4(P['B'])}, {v4(OR['B'])}")
        if nxt:
            k(f"ds_read_b128 {v4(VM)}, v2 offset:{REC+2048}")
            k(f"ds_read_b128 {v4(VRF)}, v3")
            k("v_add_u32 v3, v3, v4")
    if nxt:
        k(f"v_add_u32 v2, {REC}, v2")
        if ps == 1: k("s_nop 3")

def gen():
    k = Kern(); N = "attn"
    entry(k, "attn_kernel")
    k(f"s_cmp_ge_u32 s2, {GRID}")
    k(f"s_cbranch_scc1 {N}_end")
    k("s_load_dwordx2 s[4:5], s[0:1], 72")
    k("v_lshrrev_b32 v4, 6, v0")
    k("v_and_b32 v5, 63, v0")
    k("v_readfirstlane_b32 s18, v4")
    k("v_lshlrev_b32 v1, 4, v5")
    k("v_and_b32 v7, 15, v5")
    k("v_lshrrev_b32 v8, 4, v5")
    k("s_and_b32 s6, s2, 7")
    k("s_lshr_b32 s7, s2, 3")
    k("s_lshr_b32 s17, s7, 2")
    k("s_and_b32 s7, s7, 3")
    k("s_lshl_b32 s16, s6, 2")
    k("s_add_u32 s16, s16, s7")
    k("s_lshr_b32 s19, s16, 3")
    k("s_mul_i32 s19, s19, 9")
    k("s_and_b32 s20, s16, 7")
    k("s_add_u32 s21, s19, s20")
    k("s_lshl_b32 s21, s21, 16")
    k("s_add_u32 s22, s19, 8")
    k("s_lshl_b32 s22, s22, 16")
    k("s_and_b32 s23, s6, 1")
    k("s_lshl_b32 s23, s23, 8")
    k("s_add_u32 s23, s23, s22")
    k("v_add_u32 v9, s21, v1")
    k("v_lshl_add_u32 v10, v7, 4, s23")
    k("v_cmp_gt_u32 vcc, 32, v5")
    k("v_cndmask_b32 v9, v10, v9, vcc")
    k("v_bfe_u32 v10, v5, 1, 2")
    k("v_lshlrev_b32 v10, 8, v10")
    k("v_and_b32 v11, 1, v5")
    k("v_lshl_add_u32 v10, v11, 4, v10")
    k("v_bfe_u32 v11, v5, 3, 1")
    k("v_lshl_add_u32 v10, v11, 10, v10")
    k("s_lshl_b32 s24, s20, 5")
    k("s_add_u32 s24, s24, s22")
    k("v_add_u32 v10, s24, v10")
    k("s_lshl_b32 s24, s17, 4")
    k("s_lshl_b32 s25, s18, 1")
    k("s_add_u32 s26, s24, s25")
    k("s_lshl_b32 s27, s26, 9")
    k("s_add_u32 s24, s26, s25")
    k("s_lshl_b32 s24, s24, 9")
    k(f"s_add_u32 s28, s24, {XSZ - 16*512}")
    k(f"s_add_u32 s29, s24, {2*XSZ - 8*1024}")
    k("s_add_u32 s30, s29, s21")
    k(f"s_mul_i32 s31, s18, {2*REC}")
    k("s_waitcnt lgkmcnt(0)")
    srd(k, 8, 4, QKV, 3 * XSZ)
    k(f"buffer_load_dwordx4 {v4(Q[0])}, v9, s[8:11], s27 offen", "q")
    k(f"buffer_load_dwordx4 {v4(Q[1])}, v9, s[8:11], s27 offen offset:512", "q")
    for bl in range(2):
        for tl in range(2):
            k(f"s_add_u32 m0, s31, {bl*REC + tl*1024}")
            k(f"s_add_u32 s24, s28, {(2*bl + tl)*512}")
            k("buffer_load_dwordx4 v9, s[8:11], s24 offen lds")
    for bl in range(2):
        k(f"s_add_u32 m0, s31, {bl*REC + 2048}")
        k(f"s_add_u32 s24, s30, {bl*1024}")
        k("buffer_load_dwordx4 v1, s[8:11], s24 offen lds")
    k("s_lshl_b32 s24, s18, 8")
    k(f"s_add_u32 m0, s24, {VR0}")
    k("s_mov_b64 exec, 0xffff")
    k("buffer_load_dwordx4 v10, s[8:11], s29 offen lds")
    k("s_mov_b64 exec, -1")
    srd(k, 12, 4, OO, XSZ)
    for i in range(4): k(f"v_mov_b32 v{E[('A',0)]+i}, 0x3f803f80")
    k(f"v_mov_b32 v11, {ONES}")
    k(f"ds_write_b128 v11, {v4(E[('A',0)])}")
    k("v_lshlrev_b32 v11, 2, v8")
    k(f"v_mov_b32 v12, {NEG}")
    for i in range(4):
        k(f"v_add_u32 v13, {i}, v11")
        k("v_cmp_gt_u32 vcc, v13, v7")
        k(f"v_cndmask_b32 v{MO+i}, v12, 0, vcc" .replace("v_cndmask_b32", "v_cndmask_b32_e64"))
        k(f"v_cndmask_b32 v{MD+i}, 0, v12, vcc")
    for r in range(OM["A"], OM["A"] + 16): k(f"v_mov_b32 v{r}, 0")
    k(f"v_mov_b32 v{MX['A']}, v12")
    k(f"v_mov_b32 v{MX['B']}, v12")
    k("s_cmp_gt_u32 s17, 0")
    k("s_cselect_b32 s32, s18, 8")
    k(f"s_mul_i32 s33, s32, {REC}")
    k("v_add_u32 v6, s33, v1")
    k("s_lshl_b32 s33, s32, 7")
    k(f"s_add_u32 s33, s33, {VR0}")
    k("v_lshl_add_u32 v3, v8, 1, v7")
    k("v_lshl_add_u32 v3, v3, 4, s33")
    k(f"v_mov_b32 v11, {ONES}")
    k("v_mov_b32 v4, 128")
    k("v_cmp_gt_u32 vcc, 2, v7")
    k("v_cndmask_b32 v3, v11, v3, vcc")
    k("v_cndmask_b32 v4, 0, v4, vcc")
    k("WAITVM q")
    for i in range(4):
        k(f"s_cmp_eq_u32 s7, {i}")
        k("s_cselect_b32 s24, 48, 32")
        k("v_cmp_gt_u32 vcc, s24, v5")
        k(f"v_cndmask_b32 v{Q[0]+i}, 0, v{Q[0]+i}, vcc")
        k(f"v_cndmask_b32 v{Q[1]+i}, 0, v{Q[1]+i}, vcc")
    k("s_waitcnt vmcnt(0) lgkmcnt(0)")
    k("s_barrier")
    for ps in (1, 2):
        L = f"{N}_p{ps}"
        k("v_mov_b32 v2, v6")
        k("s_cmp_eq_u32 s17, 0")
        k(f"s_cbranch_scc1 {L}_q0")
        prologue(k, "first", ps)
        iteration(k, "first", "mid", ps)
        k("s_mov_b32 s34, 6")
        k(f"s_branch {L}_loop")
        k(f"{L}_q0:")
        k("s_cmp_eq_u32 s18, 0")
        k(f"s_cbranch_scc0 {L}_q0b")
        prologue(k, "last", ps)
        k(f"s_branch {L}_last")
        k(f"{L}_q0b:")
        prologue(k, "mid", ps)
        k("s_sub_u32 s34, s18, 1")
        k("s_cmp_eq_u32 s34, 0")
        k(f"s_cbranch_scc1 {L}_pen")
        k(f"{L}_loop:")
        iteration(k, "mid", "mid", ps)
        k("s_sub_u32 s34, s34, 1")
        k("s_cmp_lg_u32 s34, 0")
        k(f"s_cbranch_scc1 {L}_loop")
        k(f"{L}_pen:")
        iteration(k, "mid", "last", ps)
        k(f"{L}_last:")
        iteration(k, "last", None, ps)
        if ps == 1:
            k("s_waitcnt lgkmcnt(0)")
            xreduce(k, [MX["A"], MX["B"]], [12, 13], op="v_max_f32")
            for q in "AB":
                for i in range(4):
                    k(f"v_sub_f32 v{NM[q]+i}, 0, v{MX[q]}")
                    k(f"v_sub_f32 v{CF[q]+i}, v{MO+i}, v{MX[q]}")
                    k(f"v_sub_f32 v{CL[q]+i}, v{MD+i}, v{MX[q]}")
    k("v_and_b32 v11, 1, v8")
    k("v_mul_u32_u24 v11, 18432, v11")
    k("v_lshl_add_u32 v11, v7, 4, v11")
    k("v_lshrrev_b32 v12, 1, v8")
    k("v_lshl_add_u32 v12, v12, 8, v11")
    k("s_mul_i32 s24, s26, 18432")
    k("s_lshl_b32 s25, s16, 9")
    k("s_add_u32 s25, s25, s24")
    k("s_lshr_b32 s27, s16, 2")
    k("s_lshl_b32 s27, s27, 8")
    k("s_lshl_b32 s28, s7, 2")
    k("s_add_u32 s27, s27, s28")
    k("s_add_u32 s27, s27, s24")
    k("s_add_u32 s27, s27, 16384")
    for q in "AB": k(f"v_rcp_f32 v{E[(q,0)]}, v{OR[q]+2}")
    for q in "AB":
        for i in range(4): k(f"v_mul_f32 v{OM[q]+i}, v{OM[q]+i}, v{E[(q,0)]}")
        for i in range(2): k(f"v_mul_f32 v{OR[q]+i}, v{OR[q]+i}, v{E[(q,0)]}")
    p = P["A"]
    for qi, q in enumerate("AB"):
        k(f"v_cvt_pk_bf16_f32 v{p+2*qi}, v{OM[q]}, v{OM[q]+1}")
        k(f"v_cvt_pk_bf16_f32 v{p+2*qi+1}, v{OM[q]+2}, v{OM[q]+3}")
        k(f"v_cvt_pk_bf16_f32 v{p+4+qi}, v{OR[q]}, v{OR[q]+1}")
    k(f"v_permlane16_swap_b32 v{p}, v{p+2}")
    k(f"v_permlane16_swap_b32 v{p+1}, v{p+3}")
    k(f"v_permlane16_swap_b32 v{p+4}, v{p+5}")
    k(f"buffer_store_dwordx4 {v4(p)}, v12, s[12:15], s25 offen")
    k("s_mov_b32 exec_hi, 0")
    k(f"buffer_store_dword v{p+4}, v11, s[12:15], s27 offen")
    k(f"{N}_end:")
    k("s_endpgm")
    k.extra_paths = [{"attn_p1_q0", "attn_p2_q0"}, {"attn_p1_q0", "attn_p2_q0", "attn_p1_q0b", "attn_p2_q0b"},
                     {"attn_p1_q0", "attn_p2_q0", "attn_p1_q0b", "attn_p2_q0b", "attn_p1_pen", "attn_p2_pen"}]
    return k, [("attn_kernel", GRID, 512, LDS)], descriptor("attn_kernel", 128, 0), ["attn_kernel"]
```

```python
from asmgen import *
from layout import *
from k_prep import srd, entry, xreduce
from k_qkv import load_stats, finish_stats, f2u
import math, os

GRID = 256
CH = 36864
LDS_S = 4 * CH
LDS = LDS_S + 1152
XV = 16; WB = 48; ACC = 72; NMEAN = 200; CC = 204; QQ = 208; SG = 212; TT = 228; PP = 236
PER_SLOT = float(os.environ.get("FFN1_PER_SLOT", "2.2"))
def v4(r): return f"v[{r}:{r+3}]"
def xop(ks, tb):
    f = ks * 4 + tb
    return f"a[{4*f}:{4*f+3}]" if f < 64 else v4(XV + 4 * (f - 64))
def accr(c, gu, tb): return ACC + 32 * (c % 4) + 16 * gu + 4 * tb

def rd(dst, c, ks, gu):
    off = (c % 4) * CH + ks * 2048 + gu * 1024
    va = (1, 6, 7)[off // 65536]
    return (f"ds_read_b128 {v4(dst)}, v{va} offset:{off % 65536}", f"w{c}_{ks}")

def dma(c, j):
    va = 1 if c < 4 else (8 if c < 8 else 9)
    return [f"s_add_u32 m0, s38, {(c % 4) * CH + j * 4096}",
            (f"buffer_load_dwordx4 v{va}, s[12:15], m0 offen lds", f"d{c}" if c >= 3 else f"g{j}")]

def group(g):
    L = []
    for ks in (2 * g, 2 * g + 1):
        for tb in range(4):
            so = "0" if ks < 4 else f"s{32 + ks // 4}"
            L.append((f"buffer_load_dwordx4 {xop(ks, tb)}, v{2+tb}, s[8:11], {so} offen offset:{(ks % 4) * 1024}", f"g{g}"))
    for c in range(3): L += dma(c, g)
    return L

def epilogue(e, ms):
    L = []; sg = SG + 8 * (e % 2)
    A = lambda cost, ins: L.append((cost, ins, ms))
    A(1, (f"ds_read_b128 {v4(sg)}, v10 offset:{e*128}", f"s{e}"))
    A(1, (f"ds_read_b128 {v4(sg+4)}, v10 offset:{e*128+64}", f"s{e}"))
    A(1, f"WAITLG s{e}")
    for pr in range(2):
        P = PP + 4 * pr
        for tb in (2 * pr, 2 * pr + 1):
            G = accr(e, 0, tb); U = accr(e, 1, tb); T = TT + 4 * (tb % 2)
            for i in range(4): A(1, f"v_fma_f32 v{G+i}, v{NMEAN+tb}, v{sg+i}, v{G+i}")
            for i in range(4): A(1, f"v_mul_f32 v{T+i}, v{CC+tb}, v{G+i}")
            for i in range(4):
                A(2, f"v_exp_f32 v{T+i}, v{T+i}")
                A(1, f"v_fma_f32 v{U+i}, v{NMEAN+tb}, v{sg+4+i}, v{U+i}")
            for i in range(4): A(1, f"v_fma_f32 v{T+i}, v{T+i}, v{QQ+tb}, v{QQ+tb}")
            for i in range(4):
                A(2, f"v_rcp_f32 v{T+i}, v{T+i}")
                A(1, f"v_mul_f32 v{G+i}, v{G+i}, v{U+i}")
            for i in range(4): A(1, f"v_mul_f32 v{G+i}, v{G+i}, v{T+i}")
            p = P + 2 * (tb % 2)
            A(1, f"v_cvt_pk_bf16_f32 v{p}, v{G}, v{G+1}")
            A(1, f"v_cvt_pk_bf16_f32 v{p+1}, v{G+2}, v{G+3}")
        L.append(("swap", pr, P))
    out = []; held = None; cnt = 0
    def rel(h):
        _, pr, P = h
        out.append((1, f"v_permlane16_swap_b32 v{P}, v{P+2}", ms))
        out.append((1, f"v_permlane16_swap_b32 v{P+1}, v{P+3}", ms))
        out.append((1, f"buffer_store_dwordx4 {v4(P)}, v{11+pr}, s[24:27], s45 offen", ms))
        if pr == 1: out.append((1, "s_add_u32 s45, s45, 512", ms))
    for x in L:
        if x[0] == "swap":
            held = x; cnt = 2; continue
        out.append(x)
        if held:
            cnt -= 1
            if cnt == 0: rel(held); held = None
    if held: rel(held)
    return out

def gen():
    k = Kern(); N = "ffn1"
    entry(k, "ffn1_kernel")
    k(f"s_cmp_ge_u32 s2, {GRID}")
    k(f"s_cbranch_scc1 {N}_end")
    k("s_load_dwordx2 s[4:5], s[0:1], 72")
    k("v_lshrrev_b32 v13, 6, v0")
    k("v_and_b32 v14, 63, v0")
    k("v_readfirstlane_b32 s18, v13")
    k("v_lshlrev_b32 v1, 4, v14")
    k("s_and_b32 s6, s2, 7")
    k("s_lshr_b32 s7, s2, 3")
    k("s_and_b32 s16, s6, 1")
    k("s_lshl_b32 s16, s16, 2")
    k("s_lshr_b32 s17, s7, 3")
    k("s_add_u32 s16, s16, s17")
    k("s_lshr_b32 s17, s6, 1")
    k("s_lshl_b32 s17, s17, 3")
    k("s_and_b32 s7, s7, 7")
    k("s_add_u32 s17, s17, s7")
    k("s_lshl_b32 s19, s16, 4")
    k("s_lshl_b32 s6, s18, 2")
    k("s_add_u32 s19, s19, s6")
    for i in range(1, 5): k(f"s_mov_b32 s{32+i}, {4096*i}")
    k("s_lshl_b32 s38, s18, 10")
    k("s_mul_i32 s6, s19, 18432")
    k("v_add_u32 v2, s6, v1")
    for tb in range(1, 4): k(f"v_add_u32 v{2+tb}, 18432, v{1+tb}")
    k("v_and_b32 v13, 15, v14")
    k("v_lshrrev_b32 v15, 4, v14")
    k("v_lshlrev_b32 v9, 7, v13")
    k("v_lshl_add_u32 v9, v15, 5, v9")
    k("s_lshl_b32 s6, s19, 11")
    k("v_add_u32 v9, s6, v9")
    k("v_min_u32 v10, 17, v14")
    k("v_lshlrev_b32 v10, 4, v10")
    k("s_mul_i32 s6, s18, 288")
    k("v_add_u32 v10, s6, v10")
    k("s_mul_i32 s42, s17, 1152")
    k("s_add_u32 s43, s42, 36864")
    k("s_add_u32 s44, s42, 73728")
    k("s_waitcnt lgkmcnt(0)")
    srd(k, 8, 4, X1, XSZ)
    srd(k, 20, 4, ST1, STSZ)
    srd(k, 28, 4, SGU, SGU_SZ)
    k(f"s_mul_i32 s6, s17, {9*CH}")
    k(f"s_add_u32 s6, s6, {WGU}")
    k("s_add_u32 s12, s4, s6"); k("s_addc_u32 s13, s5, 0"); k("s_and_b32 s13, s13, 0xffff"); k(f"s_mov_b32 s14, {9*CH}"); k("s_mov_b32 s15, 0x20000")
    R0 = ACC
    load_stats(k, 20, 9, 4, R0, "st", soff="s33")
    for i, s in enumerate((42, 43, 44)):
        k(f"buffer_load_dwordx4 {v4(R0+32+4*i)}, v10, s[28:31], s{s} offen", "st")
    for g in range(4): k.add(group(g))
    srd(k, 24, 4, HH, H_SZ)
    k("v_add_u32 v6, 65536, v1")
    k("v_add_u32 v7, 131072, v1")
    k(f"v_add_u32 v8, {4*CH}, v1")
    k(f"v_add_u32 v9, {8*CH}, v1")
    k("v_and_b32 v11, 1, v15")
    k("v_mul_u32_u24 v11, 147456, v11")
    k("v_lshrrev_b32 v12, 1, v15")
    k("v_lshl_add_u32 v11, v12, 8, v11")
    k("v_lshl_add_u32 v11, v13, 4, v11")
    k("s_mul_i32 s6, s19, 147456")
    k("v_add_u32 v11, s6, v11")
    k(f"v_add_u32 v12, {2*147456}, v11")
    k("s_mul_i32 s45, s17, 4608")
    k("WAITVM st")
    k.add(group(4))
    finish_stats(k, 4, R0, None)
    for q in range(4):
        k(f"v_add_f32 v{R0+32+q}, v{R0+32+q}, v{R0+36+q}")
        k(f"v_add_f32 v{R0+32+q}, v{R0+32+q}, v{R0+40+q}")
    k(f"v_add_u32 v10, {LDS_S}, v10")
    k(f"ds_write_b128 v10, {v4(R0+32)}")
    for tb in range(4):
        k(f"v_rsq_f32 v{CC+tb}, v{R0+8*tb+1}")
        k(f"v_sub_f32 v{NMEAN+tb}, 0, v{R0+8*tb}")
        k(f"v_mov_b32 v{QQ+tb}, v{R0+8*tb+1}")
        k(f"v_mul_f32 v{CC+tb}, {f2u(-math.log2(math.e))}, v{CC+tb}")
    k("v_lshlrev_b32 v10, 4, v15")
    k(f"v_add_u32 v10, {LDS_S}, v10")
    k("WAITVM g0")
    k("s_waitcnt lgkmcnt(0)")
    k("s_barrier")
    PB = (ACC + 96, WB)
    for c in range(3):
        for gu in range(2): k.add([rd(PB[0] + 8 * c + 4 * gu, c, 0, gu)])
    for ks in range(18):
        g = ks // 2; ext = []
        if ks % 2 == 1:
            k(f"WAITVM g{g+1}" if g < 8 else "WAITVM d3")
            k("s_barrier")
            if g + 5 <= 8: ext = group(g + 5)
            elif g in (4, 5, 6):
                for j in range(3): ext += dma(3, 3 * (g - 4) + j)
        items = []
        for c in range(3):
            for gu in range(2):
                for tb in range(4):
                    a = accr(c, gu, tb); w = PB[ks % 2] + 8 * c + 4 * gu
                    it = []
                    if gu == 0 and tb == 0: it.append(f"WAITLG w{c}_{ks}")
                    it.append(f"v_mfma_f32_16x16x32_bf16 {v4(a)}, {v4(w)}, {xop(ks, tb)}, {'0' if ks == 0 else v4(a)}")
                    if tb == 0 and ks < 17: it.append(rd(PB[(ks + 1) % 2] + 8 * c + 4 * gu, c, ks + 1, gu))
                    if ks == 17 and c >= 1 and tb == 0: it.append(rd(WB + 8 * (c - 1) + 4 * gu, 3, c - 1, gu))
                    if tb in (1, 2, 3) and ext:
                        x = ext.pop(0); it.append(x)
                        if isinstance(x, str) and x.startswith("s_add_u32 m0"): pass
                    items.append(it)
        assert not ext
        for it in items: k.add(it)
    main = []; fill = []
    for e in range(3): fill += epilogue(e, 0)
    for c in range(3, 9):
        base = len(main)
        D = {3: [(4, 0), (5, 9)], 4: [(6, 0)], 5: [(7, 0)], 6: [(8, 0)]}.get(c, [])
        for ks in range(18):
            for gu in range(2):
                for tb in range(4):
                    a = accr(c, gu, tb); w = WB + 8 * (ks % 3) + 4 * gu
                    pre = []
                    if gu == 0 and tb == 0:
                        if c == 3 and ks == 0: pre.append("s_barrier")
                        if ks == 16 and c < 8: pre += [f"WAITVM d{c+1}", "s_barrier"]
                        pre.append(f"WAITLG w{c}_{ks}")
                    it = [f"v_mfma_f32_16x16x32_bf16 {v4(a)}, {v4(w)}, {xop(ks, tb)}, {'0' if ks == 0 else v4(a)}"]
                    if tb == 1:
                        c2, k2 = (c, ks + 2) if ks < 16 else (c + 1, ks - 16)
                        if c2 < 9: it.append(rd(WB + 8 * (k2 % 3) + 4 * gu, c2, k2, gu))
                    if tb == 3:
                        for dc, k0 in D:
                            if 0 <= ks - k0 < 9: it.append(dma(dc, ks - k0)[gu])
                    if pre:
                        if main: main[-1] = main[-1] + pre
                        else: k.add(pre)
                    main.append(it)
        fill += epilogue(c, len(main) + 2)
    sched, left = interleave(main, fill, PER_SLOT)
    pos = {}
    for i, x in enumerate(sched):
        t = x[0] if isinstance(x, tuple) else x
        pos.setdefault(t, i)
    for e in range(5):
        first = pos[f"v_mfma_f32_16x16x32_bf16 {v4(accr(e+4,0,0))}, {v4(WB)}, {xop(0,0)}, 0"] if e + 4 != 7 and e + 4 != 8 else None
    k.add(sched)
    print("ffn1 leftover filler cost:", sum(x[0] for x in left))
    k.add([x[1] for x in left])
    k(f"{N}_end:")
    k("s_endpgm")
    check_deadlines(k)
    return k, [("ffn1_kernel", GRID, 256, LDS)], descriptor("ffn1_kernel", 244, 256), ["ffn1_kernel"]

def check_deadlines(k):
    state = {}
    for x in k.ins:
        if x.kind == "mfma":
            r = x.dst[0]
            if x.ops[3] == "0":
                assert state.get(r, "done") == "done", f"acc {r} restarted before its epilogue finished"
            state[r] = "acc"
            for q in x.dst: state[q] = "acc"
        elif x.kind == "valu":
            if x.op == "v_cvt_pk_bf16_f32":
                for q in x.src:
                    g = int(q[1:]); base = g - (g - ACC) % 4
                    if g == base + 2 or g == base + 3:
                        for i in range(4): state[f"v{base+i}"] = "done"; state[f"v{base+16+i}"] = "done"
```

```python
from asmgen import *
from layout import *
from k_prep import srd, entry, xreduce

GRID = 256
LDS = 60 * 1024
ACC = 32
def acc(tb, b): return ACC + 4 * (tb * 6 + b)
def v4(r): return f"v[{r}:{r+3}]"
def a4(r): return f"a[{r}:{r+3}]"
F = 128
T = 148
RES = 208

def loads(s):
    b0 = 68 * s; L = []
    for b in range(4): L.append((b, f"buffer_load_dwordx4 {a4(b0+4*b)}, v1, s[12:15], s34 offen offset:{b*1024}"))
    for tb in range(4): L.append((4, f"buffer_load_dwordx4 {a4(b0+16+4*tb)}, v{4+tb}, s[8:11], s35 offen"))
    for b in range(4): L.append((5 + b, f"buffer_load_dwordx4 {a4(b0+32+4*b)}, v2, s[12:15], s34 offen offset:{b*1024}"))
    L.append((9, f"buffer_load_dwordx4 {a4(b0+48)}, v3, s[12:15], s34 offen"))
    for tb in range(4): L.append((9, f"buffer_load_dwordx4 {a4(b0+52+4*tb)}, v{4+tb}, s[8:11], s35 offen offset:1024"))
    return L

def adv(k):
    k("s_add_u32 s34, s34, 9216")
    k("s_add_u32 s35, s35, 2048")

def compute(k, s, refill, w2=None):
    b0 = 68 * s
    L = loads(s) if refill else []
    for g in range(10):
        if g == 4 and w2 is not None: k(f"s_waitcnt vmcnt({w2})")
        pend = [x[1] for x in L if x[0] == g - 1]
        for tb in range(4):
            if g < 4:    w, h, a = b0 + 4 * g, b0 + 16 + 4 * tb, acc(tb, g)
            elif g == 4: w, h, a = b0 + 48, b0 + 16 + 4 * tb, acc(tb, 4)
            elif g < 9:  w, h, a = b0 + 32 + 4 * (g - 5), b0 + 52 + 4 * tb, acc(tb, g - 5)
            else:        w, h, a = b0 + 48, b0 + 52 + 4 * tb, acc(tb, 5)
            k(f"v_mfma_f32_16x16x32_bf16 {v4(a)}, {a4(w)}, {a4(h)}, {v4(a)}")
            if pend: k(pend.pop(0))
    if refill:
        for x in L:
            if x[0] == 9: k(x[1])
        adv(k)

def gen():
    k = Kern(); N = "gk"
    variants = [("wo1_kernel", OO, 72, WO, 9, XF0, X1, ST1), ("wo2_kernel", OO, 72, WO, 9, X2, X1, ST1),
                ("down1_kernel", HH, 576, WD, 72, X1, X2, ST2), ("down2_kernel", HH, 576, WD, 72, X1, None, ST2)]
    for name, act, ko, w, npair, res, out, st in variants:
        entry(k, name)
        k("s_load_dwordx2 s[4:5], s[0:1], 72")
        if out is None: k("s_load_dwordx2 s[6:7], s[0:1], 56")
        k(f"s_mov_b32 s40, {act}")
        k(f"s_mov_b32 s41, {ko*256}")
        k(f"s_mov_b32 s42, {w}")
        k(f"s_mov_b32 s43, {npair}")
        k(f"s_mov_b32 s44, {res}")
        k(f"s_mov_b32 s45, {st}")
        k(f"s_mov_b32 s46, {256 if out is not None else 16}")
        k(f"s_mov_b32 s47, {16 if out is not None else 1152}")
        k("s_waitcnt lgkmcnt(0)")
        if out is not None:
            k(f"s_add_u32 s6, s4, {out}")
            k("s_addc_u32 s7, s5, 0")
        if name != variants[-1][0]: k(f"s_branch {N}_main")
    k(f"{N}_main:")
    k(f"s_cmp_ge_u32 s2, {GRID}")
    k(f"s_cbranch_scc1 {N}_end")
    k("v_lshrrev_b32 v8, 6, v0")
    k("v_and_b32 v9, 63, v0")
    k("v_readfirstlane_b32 s18, v8")
    k("v_lshlrev_b32 v1, 4, v9")
    k("s_and_b32 s20, s2, 7")
    k("s_lshr_b32 s21, s2, 3")
    k("s_lshr_b32 s16, s20, 1")
    k("s_lshl_b32 s16, s16, 3")
    k("s_lshr_b32 s22, s21, 2")
    k("s_add_u32 s16, s16, s22")
    k("s_and_b32 s17, s20, 1")
    k("s_lshl_b32 s17, s17, 2")
    k("s_and_b32 s22, s21, 3")
    k("s_add_u32 s17, s17, s22")
    k("s_lshl_b32 s20, s41, 2")
    k("s_mul_i32 s21, s20, s16")
    k("s_add_u32 s21, s21, s40")
    k("s_add_u32 s8, s4, s21"); k("s_addc_u32 s9, s5, 0"); k("s_and_b32 s9, s9, 0xffff"); k("s_mov_b32 s10, s20"); k("s_mov_b32 s11, 0x20000")
    k("s_mul_i32 s20, s43, 9216")
    k("s_mul_i32 s21, s20, s17")
    k("s_add_u32 s21, s21, s42")
    k("s_add_u32 s12, s4, s21"); k("s_addc_u32 s13, s5, 0"); k("s_and_b32 s13, s13, 0xffff"); k("s_mov_b32 s14, s20"); k("s_mov_b32 s15, 0x20000")
    k("s_add_u32 s24, s4, s44"); k("s_addc_u32 s25, s5, 0"); k("s_and_b32 s25, s25, 0xffff"); k(f"s_mov_b32 s26, {XSZ}"); k("s_mov_b32 s27, 0x20000")
    k("v_add_u32 v2, 4096, v1")
    k("v_add_u32 v3, 8192, v1")
    k("v_mov_b32 v4, v1")
    k("v_add_u32 v5, s41, v4")
    k("v_add_u32 v6, s41, v5")
    k("v_add_u32 v7, s41, v6")
    k("s_mul_i32 s20, s18, 18")
    k("s_lshl_b32 s21, s18, 1")
    k("s_add_u32 s21, s21, 1")
    k("s_cmp_eq_u32 s18, 0")
    k("s_cselect_b32 s21, 0, s21")
    k("s_cselect_b32 s23, 3, 2")
    k("s_cmp_eq_u32 s43, 9")
    k("s_cselect_b32 s20, s21, s20")
    k("s_cselect_b32 s23, s23, 18")
    k("s_mul_i32 s34, s20, 9216")
    k("s_lshl_b32 s35, s20, 11")
    k("v_and_b32 v10, 15, v9")
    k("v_lshrrev_b32 v11, 4, v9")
    k("v_and_b32 v12, 1, v11")
    k("v_lshrrev_b32 v13, 1, v11")
    k("v_mul_u32_u24 v14, 18432, v12")
    k("v_mul_u32_u24 v15, 18432, v13")
    k("v_lshl_add_u32 v16, v13, 8, v14")
    k("v_lshl_add_u32 v16, v10, 4, v16")
    k("v_lshl_add_u32 v17, v10, 4, v15")
    k("s_and_b32 s28, s18, 1")
    k("s_lshr_b32 s29, s18, 1")
    k("s_lshl_b32 s30, s16, 1")
    k("s_add_u32 s30, s30, s28")
    k("s_mul_i32 s31, s30, 36864")
    k("s_mul_i32 s32, s17, 9")
    k("s_lshl_b32 s33, s29, 2")
    k("s_add_u32 s33, s33, s32")
    k("s_lshl_b32 s20, s33, 8")
    k("s_add_u32 s20, s20, s31")
    k("s_lshl_b32 s21, s32, 8")
    k("s_add_u32 s21, s21, s31")
    k(f"buffer_load_dwordx4 {v4(RES)}, v16, s[24:27], s20 offen")
    k(f"buffer_load_dwordx4 {v4(RES+4)}, v16, s[24:27], s20 offen offset:512")
    k(f"buffer_load_dwordx4 {v4(RES+8)}, v17, s[24:27], s21 offen offset:2048")
    k("s_cmp_eq_u32 s23, 2")
    k(f"s_cbranch_scc1 {N}_skip0")
    for _, t in loads(0): k(t)
    adv(k)
    k(f"{N}_skip0:")
    for s in (1, 2):
        for _, t in loads(s): k(t)
        adv(k)
    for r in range(ACC, ACC + 96): k(f"v_mov_b32 v{r}, 0")
    k("s_mov_b32 s36, s6"); k("s_and_b32 s37, s7, 0xffff"); k(f"s_mov_b32 s38, {XSZ}"); k("s_mov_b32 s39, 0x20000")
    k("s_add_u32 s24, s4, s45"); k("s_addc_u32 s25, s5, 0"); k("s_and_b32 s25, s25, 0xffff"); k(f"s_mov_b32 s26, {STSZ}")
    k("v_mul_lo_u32 v18, v10, s47")
    k("v_mul_lo_u32 v19, v13, s46")
    k("v_add3_u32 v16, v14, v18, v19")
    k("v_add_u32 v17, v15, v18")
    k("s_mul_i32 s48, s33, s46")
    k("s_add_u32 s48, s48, s31")
    k("s_lshl_b32 s20, s46, 1")
    k("s_add_u32 s49, s48, s20")
    k("s_add_u32 s20, s32, 8")
    k("s_mul_i32 s50, s20, s46")
    k("s_add_u32 s50, s50, s31")
    k("v_lshlrev_b32 v18, 7, v10")
    k("v_lshl_add_u32 v18, v12, 11, v18")
    k("s_lshl_b32 s51, s30, 12")
    k("s_lshl_b32 s20, s17, 4")
    k("s_lshl_b32 s21, s29, 3")
    k("s_add_u32 s51, s51, s20")
    k("s_add_u32 s51, s51, s21")
    k("s_mul_i32 s20, s18, 15360")
    k("v_add_u32 v19, s20, v1")
    k("s_cmp_eq_u32 s23, 2")
    k(f"s_cbranch_scc1 {N}_fin1")
    k("s_cmp_eq_u32 s23, 3")
    k(f"s_cbranch_scc1 {N}_fin0")
    k("s_mov_b32 s22, 5")
    k(".p2align 3")
    k(f"{N}_loop:")
    for s in range(3):
        k("s_waitcnt vmcnt(34)")
        compute(k, s, True)
    k("s_sub_u32 s22, s22, 1")
    k("s_cmp_lg_u32 s22, 0")
    k(f"s_cbranch_scc1 {N}_loop")
    k(f"{N}_fin0:")
    k("s_waitcnt vmcnt(43)")
    compute(k, 0, False, 34)
    k(f"{N}_fin1:")
    k("s_waitcnt vmcnt(26)")
    compute(k, 1, False, 17)
    k("s_waitcnt vmcnt(9)")
    compute(k, 2, False, 0)
    for p in range(2):
        for i in range(4):
            k(f"v_permlane32_swap_b32 v{acc(2*p,4)+i}, v{acc(2*p+1,4)+i}")
            k(f"v_permlane32_swap_b32 v{acc(2*p,5)+i}, v{acc(2*p+1,5)+i}")
    for p in range(2):
        for i in range(4): k(f"v_add_f32 v{acc(2*p,4)+i}, v{acc(2*p,4)+i}, v{acc(2*p+1,5)+i}")
    def tiles(ow):
        p, half = ow & 1, ow >> 1
        t = [acc(2*p, 2*half), acc(2*p+1, 2*half), acc(2*p, 2*half+1), acc(2*p+1, 2*half+1)]
        if half: t.append(acc(2*p, 4))
        return t
    for w in range(4):
        if w < 3:
            k(f"s_cmp_lg_u32 s18, {w}")
            k(f"s_cbranch_scc1 {N}_x{w+1}")
        for ow in range(4):
            if ow == w: continue
            ss = (w - ow - 1) % 4
            for ti, r in enumerate(tiles(ow)):
                k(f"ds_write_b128 v1, {v4(r)} offset:{((ow*3+ss)*5+ti)*1024}")
        for ti, r in enumerate(tiles(w)):
            for i in range(4): k(f"v_mov_b32 v{F+4*ti+i}, v{r+i}")
        if w < 3:
            k(f"s_branch {N}_xdone")
            k(f"{N}_x{w+1}:")
    k(f"{N}_xdone:")
    k("s_waitcnt lgkmcnt(0)")
    k("s_barrier")
    for ti in range(5):
        for ss in range(3):
            k(f"ds_read_b128 {v4(T+4*(ti*3+ss))}, v19 offset:{(ss*5+ti)*1024}", f"r{ti}")
    k("v_mov_b32 v20, 0")
    k("v_mov_b32 v21, 0")
    k("v_mov_b32 v22, 0xffff0000")
    k("v_mov_b32 v23, 0x3f803f80")
    def summ(ti):
        k(f"WAITLG r{ti}")
        for i in range(4):
            k(f"v_add_f32 v{F+4*ti+i}, v{F+4*ti+i}, v{T+12*ti+i}")
            k(f"v_add_f32 v{T+12*ti+4+i}, v{T+12*ti+4+i}, v{T+12*ti+8+i}")
        for i in range(4): k(f"v_add_f32 v{F+4*ti+i}, v{F+4*ti+i}, v{T+12*ti+4+i}")
    def finish(x, y, res, pk, va, so, masked):
        for i in range(4): k(f"v_permlane16_swap_b32 v{x+i}, v{y+i}")
        for q in range(4):
            k(f"v_lshlrev_b32 v24, 16, v{res+q}")
            k(f"v_and_b32 v25, v22, v{res+q}")
            r = (x, x + 2, y, y + 2)[q]
            k(f"v_add_f32 v{r}, v{r}, v24")
            k(f"v_add_f32 v{r+1}, v{r+1}, v25")
            k(f"v_cvt_pk_bf16_f32 v{pk+q}, v{r}, v{r+1}")
        k(f"buffer_store_dwordx4 {v4(pk)}, v{va}, s[36:39], s{so} offen")
        src = pk
        if masked:
            src = x
            for q in range(4): k(f"v_cndmask_b32 v{x+q}, 0, v{pk+q}, vcc")
        for q in range(4):
            k(f"v_dot2c_f32_bf16 v20, v{src+q}, v23")
            k(f"v_dot2c_f32_bf16 v21, v{src+q}, v{src+q}")
    for bb in range(2):
        summ(2 * bb); summ(2 * bb + 1)
        finish(F + 8 * bb, F + 8 * bb + 4, RES + 4 * bb, ACC + 4 * bb, 16, 48 + bb, False)
    k("s_cmp_eq_u32 s29, 0")
    k(f"s_cbranch_scc1 {N}_nocombo")
    summ(4)
    for i in range(4): k(f"v_mov_b32 v{ACC+16+i}, v{F+16+i}")
    k("v_cmp_eq_u32 vcc, v12, v13")
    finish(F + 16, ACC + 16, RES + 8, ACC + 8, 17, 50, True)
    k(f"{N}_nocombo:")
    k("s_nop 1")
    k("v_mov_b32 v24, v20")
    k("v_mov_b32 v25, v21")
    k("v_permlane32_swap_b32 v20, v24")
    k("v_permlane32_swap_b32 v21, v25")
    k("v_add_f32 v20, v20, v24")
    k("v_add_f32 v21, v21, v25")
    k("buffer_store_dwordx2 v[20:21], v18, s[24:27], s51 offen")
    k(f"{N}_end:")
    k("s_endpgm")
    k.extra_paths = [{f"{N}_skip0", f"{N}_fin1"}, {f"{N}_x1", f"{N}_x2"}, {f"{N}_x1", f"{N}_x2", f"{N}_x3"},
                     {f"{N}_skip0", f"{N}_fin1", f"{N}_x1", f"{N}_nocombo"}]
    k.skip_paths = [{f"{N}_skip0"}, {f"{N}_fin1"}]
    names = [v[0] for v in variants]
    return k, [(n, GRID, 256, LDS) for n in names], "".join(descriptor(n, 220, 204) for n in names), names
```

```python
from asmgen import *
from layout import *

def srd(k, d, p, off, size):
    if off:
        k(f"s_add_u32 s{d}, s{p}, {off}")
        k(f"s_addc_u32 s{d+1}, s{p+1}, 0")
        k(f"s_and_b32 s{d+1}, s{d+1}, 0xffff")
    else:
        k(f"s_mov_b32 s{d}, s{p}")
        k(f"s_and_b32 s{d+1}, s{p+1}, 0xffff")
    k(f"s_mov_b32 s{d+2}, {size}")
    k(f"s_mov_b32 s{d+3}, 0x20000")

def entry(k, name):
    k(f".globl {name}")
    k(".p2align 8")
    k(f".type {name},@function")
    k(f"{name}:")

def xreduce(k, regs, tmp, op="v_add_f32"):
    for sw in ("v_permlane16_swap_b32", "v_permlane32_swap_b32"):
        for r, t in zip(regs, tmp): k(f"v_mov_b32 v{t}, v{r}")
        for r, t in zip(regs, tmp): k(f"{sw} v{r}, v{t}")
        for r, t in zip(regs, tmp): k(f"{op} v{r}, v{r}, v{t}")

N_X, N_QKV, N_WO, N_GU, N_WD = 32, 36, 9, 216, 72
PREP_GRID = N_X + N_QKV + N_WO + N_GU + N_WD
PREP_LDS = 64 * 1184

for _t in range(192): assert (_t * 171) >> 10 == _t // 6

def gen_prep():
    k = Kern(); N = "prep"
    entry(k, "prep_kernel")
    k(f"s_cmp_ge_u32 s2, {PREP_GRID}")
    k(f"s_cbranch_scc1 {N}_end")
    k("s_load_dwordx4 s[4:7], s[0:1], 0")
    k("s_load_dwordx2 s[8:9], s[0:1], 16")
    k("s_load_dwordx4 s[12:15], s[0:1], 32")
    k("s_load_dwordx2 s[10:11], s[0:1], 48")
    k("s_load_dwordx2 s[16:17], s[0:1], 72")
    k("v_lshrrev_b32 v1, 6, v0")
    k("v_and_b32 v2, 63, v0")
    k("v_readfirstlane_b32 s18, v1")
    k("v_lshlrev_b32 v3, 4, v2")
    k("v_mov_b32 v4, 0x3f803f80")
    k("v_lshrrev_b32 v5, 5, v2")
    k("v_lshlrev_b32 v5, 4, v5")
    k("v_bfe_u32 v6, v2, 4, 1")
    k("v_lshl_add_u32 v5, v6, 2, v5")
    k("v_bfe_u32 v6, v2, 2, 2")
    k("v_add_u32 v5, v5, v6")
    k("v_and_b32 v6, 3, v2")
    k("s_waitcnt lgkmcnt(0)")
    srd(k, 24, 16, 0, WS_END)
    k(f"s_cmp_lt_u32 s2, {N_X}")
    k(f"s_cbranch_scc1 {N}_x")
    k(f"s_cmp_lt_u32 s2, {N_X+N_QKV}")
    k(f"s_cbranch_scc1 {N}_qkv")
    k(f"s_cmp_lt_u32 s2, {N_X+N_QKV+N_WO}")
    k(f"s_cbranch_scc1 {N}_wo")
    k(f"s_cmp_lt_u32 s2, {N_X+N_QKV+N_WO+N_GU}")
    k(f"s_cbranch_scc1 {N}_gu")

    def perm(dst, src, tmp):
        k(f"v_and_b32 v{dst}, 0xfffffff3, v{src}")
        k(f"v_bfe_u32 v{tmp}, v{src}, 2, 1")
        k(f"v_lshl_add_u32 v{dst}, v{tmp}, 3, v{dst}")
        k(f"v_bfe_u32 v{tmp}, v{src}, 3, 1")
        k(f"v_lshl_add_u32 v{dst}, v{tmp}, 2, v{dst}")

    def frags(items, stride, tagp):
        for i, (vb, imm, so, dimm, cs) in enumerate(items):
            r = 32 + 4 * (i % 18)
            k(f"ds_read_b64_tr_b16 v[{r}:{r+1}], v{vb} offset:{imm}", f"{tagp}{i}")
            k(f"ds_read_b64_tr_b16 v[{r+2}:{r+3}], v{vb} offset:{imm + 8*stride}", f"{tagp}{i}")
            if i >= 3:
                j = i - 3
                fin(items[j], j, tagp)
        for j in range(max(0, len(items) - 3), len(items)): fin(items[j], j, tagp)
    def fin(item, j, tagp):
        vb, imm, so, dimm, cs = item
        r = 32 + 4 * (j % 18)
        k(f"WAITLG {tagp}{j}")
        k(f"buffer_store_dwordx4 v[{r}:{r+3}], v3, s[24:27], s{so} offen offset:{dimm}")
        if cs is not None:
            for q in range(4): k(f"v_dot2c_f32_bf16 v{cs}, v{r+q}, v4")

    k(f"s_sub_u32 s20, s2, {N_X+N_QKV+N_WO+N_GU}")
    srd(k, 28, 10, 0, WD_SZ)
    k("v_lshrrev_b32 v7, 3, v0")
    k("s_lshl_b32 s21, s20, 6")
    k("v_add_u32 v8, s21, v7")
    k("v_add_u32 v9, 32, v8")
    k(f"s_mul_i32 s22, s20, 9216")
    k(f"s_add_u32 s22, s22, {WD}")
    k(f"s_mov_b32 s23, {72*9216}")
    k(f"s_branch {N}_dn_common")
    k(f"{N}_wo:")
    k(f"s_sub_u32 s20, s2, {N_X+N_QKV}")
    srd(k, 28, 8, 0, WO_SZ)
    k("v_lshrrev_b32 v7, 3, v0")
    k("s_lshl_b32 s21, s20, 6")
    k(f"s_mul_i32 s22, s20, 9216")
    k(f"s_add_u32 s22, s22, {WO}")
    k(f"s_mov_b32 s23, {9*9216}")
    for jj, dst in ((0, 8), (1, 9)):
        k(f"v_add_u32 v10, s21, v7")
        if jj: k("v_add_u32 v10, 32, v10")
        k("v_lshrrev_b32 v11, 4, v10")
        k("v_mul_u32_u24 v12, 18, v11")
        k("v_and_b32 v13, 15, v10")
        k("v_add_u32 v12, v12, v13")
        k("v_and_b32 v13, 1, v11")
        k("v_lshl_add_u32 v12, v13, 1, v12")
        k("v_subrev_u32 v11, 512, v10")
        k("v_lshrrev_b32 v11, 1, v11")
        k("v_and_b32 v11, 31, v11")
        k("v_mul_u32_u24 v13, 18, v11")
        k("v_and_b32 v14, 1, v10")
        k("v_add_u32 v13, v13, v14")
        k("v_and_b32 v14, 1, v11")
        k("v_xor_b32 v14, 1, v14")
        k("v_lshl_add_u32 v13, v14, 4, v13")
        k("v_cmp_gt_u32 vcc, 512, v10")
        k(f"v_cndmask_b32 v{dst}, v13, v12, vcc")
    k(f"{N}_dn_common:")
    k("v_and_b32 v10, 7, v0")
    k("v_lshlrev_b32 v10, 4, v10")
    k("v_mul_u32_u24 v8, 1152, v8")
    k("v_mul_u32_u24 v9, 1152, v9")
    k("v_add_u32 v8, v8, v10")
    k("v_add_u32 v9, v9, v10")
    for jj in range(2):
        for jc in range(9):
            r = 32 + 4 * (jj * 9 + jc)
            k(f"buffer_load_dwordx4 v[{r}:{r+3}], v{8+jj}, s[28:31], 0 offen offset:{jc*128}", f"dl{jj*9+jc}")
    perm(11, 7, 12)
    k("v_mul_u32_u24 v11, 1184, v11")
    k("v_add_u32 v11, v11, v10")
    for jj in range(2):
        for jc in range(9):
            r = 32 + 4 * (jj * 9 + jc)
            k(f"WAITVM dl{jj*9+jc}")
            k(f"ds_write_b128 v11, v[{r}:{r+3}] offset:{jj*32*1184 + jc*128}")
    k("v_mul_u32_u24 v12, 1184, v5")
    k("s_mul_i32 s21, s18, 288")
    k("v_add_u32 v12, s21, v12")
    k("v_and_b32 v14, 1, v6")
    k("v_lshl_add_u32 v13, v14, 3, v12")
    k("v_lshrrev_b32 v14, 1, v6")
    k(f"v_mul_u32_u24 v14, {32*1184}, v14")
    k("v_add_u32 v13, v13, v14")
    k("v_lshl_add_u32 v12, v6, 3, v12")
    k("s_lshl_b32 s21, s18, 1")
    k("s_mul_i32 s21, s21, s23")
    k("s_add_u32 s32, s22, s21")
    k("s_add_u32 s33, s32, 4096")
    k("s_add_u32 s34, s32, 8192")
    k("s_add_u32 s35, s32, s23")
    k("s_add_u32 s36, s35, 4096")
    k("s_add_u32 s37, s35, 8192")
    k("s_waitcnt lgkmcnt(0)")
    k("s_barrier")
    items = []
    for nn in range(2):
        for ks in range(2):
            for b in range(4):
                items.append((12, 144*nn + 32*b + ks*32*1184, 32 + 3*nn + ks, b*1024, None))
        items.append((13, 144*nn + 128, 32 + 3*nn + 2, 0, None))
    frags(items, 1184, "df")
    k("s_endpgm")

    k(f"{N}_gu:")
    k(f"s_sub_u32 s20, s2, {N_X+N_QKV+N_WO}")
    k("s_cmp_ge_u32 s20, 108")
    k("s_cselect_b32 s21, 1, 0")
    k("s_cselect_b32 s4, s14, s12")
    k("s_cselect_b32 s5, s15, s13")
    k("s_mul_i32 s22, s21, 108")
    k("s_sub_u32 s20, s20, s22")
    k("s_mul_i32 s22, s20, 43691")
    k("s_lshr_b32 s22, s22, 17")
    k("s_mul_i32 s23, s22, 3")
    k("s_sub_u32 s23, s20, s23")
    srd(k, 28, 4, 0, 576 * 4608 * 2)
    k("v_lshrrev_b32 v7, 4, v0")
    k("v_and_b32 v10, 15, v0")
    k("v_lshlrev_b32 v10, 4, v10")
    k("v_mul_u32_u24 v8, 9216, v7")
    k("v_add_u32 v8, v8, v10")
    k(f"s_mul_i32 s32, s23, {192*9216}")
    k("s_lshl_b32 s33, s22, 8")
    k("s_add_u32 s32, s32, s33")
    for j in range(12):
        r = 32 + 4 * j
        k(f"buffer_load_dwordx4 v[{r}:{r+3}], v8, s[28:31], s32 offen", f"gl{j}")
        if j < 11: k(f"s_add_u32 s32, s32, {16*9216}")
    perm(11, 7, 12)
    k("v_mul_u32_u24 v11, 288, v11")
    k("v_add_u32 v11, v11, v10")
    for j in range(12):
        r = 32 + 4 * j
        k(f"WAITVM gl{j}")
        k(f"ds_write_b128 v11, v[{r}:{r+3}] offset:{j*16*288}")
    k("v_mul_u32_u24 v12, 288, v5")
    k("s_lshl_b32 s33, s18, 6")
    k("v_add_u32 v12, s33, v12")
    k("v_lshl_add_u32 v12, v6, 3, v12")
    k("s_lshl_b32 s32, s22, 3")
    k("s_lshl_b32 s33, s18, 1")
    k("s_add_u32 s38, s32, s33")
    k("s_mul_i32 s32, s38, 18")
    k("s_mul_i32 s33, s23, 6")
    k("s_add_u32 s32, s32, s33")
    k("s_lshl_b32 s32, s32, 11")
    k("s_lshl_b32 s33, s21, 10")
    k("s_add_u32 s32, s32, s33")
    k(f"s_add_u32 s32, s32, {WGU}")
    k("s_add_u32 s33, s32, 4096")
    k("s_add_u32 s34, s32, 8192")
    k(f"s_add_u32 s35, s32, {18*2048}")
    k("s_add_u32 s36, s35, 4096")
    k("s_add_u32 s37, s35, 8192")
    k("v_mov_b32 v16, 0")
    k("v_mov_b32 v17, 0")
    k("s_waitcnt lgkmcnt(0)")
    k("s_barrier")
    items = []
    for bb in range(2):
        for ks in range(6):
            items.append((12, 32*bb + ks*32*288, 32 + 3*bb + ks//2, (ks % 2)*2048, 16 + bb))
    frags(items, 288, "gf")
    xreduce(k, [16, 17], [18, 19])
    k("s_mul_i32 s32, s23, 36864")
    k("s_lshl_b32 s33, s38, 7")
    k("s_add_u32 s32, s32, s33")
    k("s_lshl_b32 s33, s21, 6")
    k("s_add_u32 s32, s32, s33")
    k(f"s_add_u32 s32, s32, {SGU}")
    k("v_and_b32 v18, 15, v2")
    k("v_lshlrev_b32 v18, 2, v18")
    k("buffer_store_dword v16, v18, s[24:27], s32 offen")
    k("buffer_store_dword v17, v18, s[24:27], s32 offen offset:128")
    k("s_endpgm")

    k(f"{N}_qkv:")
    k(f"s_sub_u32 s20, s2, {N_X}")
    k("s_mul_i32 s22, s20, 43691")
    k("s_lshr_b32 s22, s22, 17")
    k("s_mul_i32 s23, s22, 3")
    k("s_sub_u32 s23, s20, s23")
    srd(k, 28, 6, 0, WQKV_SZ)
    k("s_cmp_eq_u32 s18, 3")
    k(f"s_cbranch_scc1 {N}_qkv_noload")
    k("v_mul_u32_u24 v7, 171, v0")
    k("v_lshrrev_b32 v7, 10, v7")
    k("v_mul_u32_u24 v10, 6, v7")
    k("v_sub_u32 v10, v0, v10")
    k("v_lshlrev_b32 v10, 4, v10")
    k("v_mul_u32_u24 v8, 3456, v7")
    k("v_add_u32 v8, v8, v10")
    k(f"s_mul_i32 s32, s23, {192*3456}")
    k("s_mul_i32 s33, s22, 288")
    k("s_add_u32 s32, s32, s33")
    for jj in range(6):
        for jc in range(3):
            r = 32 + 4 * (jj * 3 + jc)
            k(f"buffer_load_dwordx4 v[{r}:{r+3}], v8, s[28:31], s32 offen offset:{jc*96}", f"ql{jj*3+jc}")
        if jj < 5: k(f"s_add_u32 s32, s32, {32*3456}")
    perm(11, 7, 12)
    k("v_mul_u32_u24 v11, 288, v11")
    k("v_add_u32 v11, v11, v10")
    for jj in range(6):
        for jc in range(3):
            r = 32 + 4 * (jj * 3 + jc)
            k(f"WAITVM ql{jj*3+jc}")
            k(f"ds_write_b128 v11, v[{r}:{r+3}] offset:{jj*32*288 + jc*96}")
    k(f"{N}_qkv_noload:")
    k("v_mul_u32_u24 v13, 288, v5")
    k("s_mul_i32 s33, s18, 72")
    k("v_add_u32 v12, s33, v13")
    k("v_lshl_add_u32 v12, v6, 3, v12")
    k("v_mul_u32_u24 v14, 72, v6")
    k("v_add_u32 v13, v13, v14")
    k("s_mul_i32 s32, s22, 18")
    k("s_mul_i32 s33, s23, 6")
    k("s_add_u32 s32, s32, s33")
    k("s_mul_i32 s32, s32, 9216")
    k(f"s_add_u32 s39, s32, {WQKV}")
    k("s_lshl_b32 s33, s18, 11")
    k("s_add_u32 s32, s39, s33")
    for ks in range(1, 6):
        k(f"s_add_u32 s{32+ks}, s32, {ks*9216}")
    k("s_add_u32 s40, s39, 8192")
    for ks in range(1, 6):
        k(f"s_add_u32 s{40+ks}, s40, {ks*9216}")
    k("v_mov_b32 v16, 0")
    k("v_mov_b32 v17, 0")
    k("v_mov_b32 v20, 0")
    k("s_waitcnt lgkmcnt(0)")
    k("s_barrier")
    items = []
    for bb in range(2):
        for ks in range(6):
            items.append((12, 40*bb + ks*32*288, 32 + ks, bb*1024, 16 + bb))
    frags(items, 288, "qf")
    xreduce(k, [16, 17], [18, 19])
    k("s_mul_i32 s46, s23, 6912")
    k("s_mul_i32 s47, s22, 576")
    k("s_add_u32 s46, s46, s47")
    k(f"s_add_u32 s46, s46, {SQKV}")
    k("s_lshl_b32 s47, s18, 7")
    k("s_add_u32 s47, s47, s46")
    k("v_and_b32 v18, 15, v2")
    k("v_lshlrev_b32 v18, 2, v18")
    k("buffer_store_dword v16, v18, s[24:27], s47 offen")
    k("buffer_store_dword v17, v18, s[24:27], s47 offen offset:64")
    k("s_cmp_lg_u32 s18, 3")
    k(f"s_cbranch_scc1 {N}_end")
    k("s_waitcnt vmcnt(0)")
    items = [(13, 32 + ks*32*288, 40 + ks, 0, 20) for ks in range(6)]
    frags(items, 288, "rf")
    xreduce(k, [20], [19])
    k("buffer_store_dword v20, v18, s[24:27], s46 offen offset:512")
    k("s_endpgm")

    k(f"{N}_x:")
    srd(k, 28, 4, 0, XSZ)
    k("s_lshl_b32 s20, s2, 2")
    k("s_add_u32 s20, s20, s18")
    k("v_and_b32 v7, 15, v2")
    k("v_lshrrev_b32 v8, 4, v2")
    k("v_mul_u32_u24 v9, 1152, v7")
    k("v_lshl_add_u32 v9, v8, 4, v9")
    k("s_mul_i32 s21, s20, 18432")
    for j in range(18):
        r = 32 + 4 * j
        k(f"buffer_load_dwordx4 v[{r}:{r+3}], v9, s[28:31], s21 offen offset:{j*64}", f"xl{j}")
    k(f"s_add_u32 s32, s21, {XF0}")
    for i in range(1, 5): k(f"s_add_u32 s{32+i}, s32, {4096*i}")
    k("v_mov_b32 v16, 0")
    k("v_mov_b32 v17, 0")
    for j in range(18):
        r = 32 + 4 * j
        k(f"WAITVM xl{j}")
        k(f"buffer_store_dwordx4 v[{r}:{r+3}], v3, s[24:27], s{32 + j//4} offen offset:{(j%4)*1024}")
        for q in range(4):
            k(f"v_dot2c_f32_bf16 v16, v{r+q}, v4")
            k(f"v_dot2c_f32_bf16 v17, v{r+q}, v{r+q}")
    xreduce(k, [16, 17], [18, 19])
    k("v_cmp_eq_u32 vcc, 0, v8")
    k("v_cndmask_b32 v16, 0, v16, vcc")
    k("v_cndmask_b32 v17, 0, v17, vcc")
    for r in (18, 19, 20, 21, 22, 23): k(f"v_mov_b32 v{r}, 0")
    k("v_lshlrev_b32 v10, 7, v7")
    k("v_lshl_add_u32 v10, v8, 5, v10")
    k("s_lshl_b32 s21, s20, 11")
    k(f"s_add_u32 s21, s21, {ST0}")
    k("buffer_store_dwordx4 v[16:19], v10, s[24:27], s21 offen")
    k("buffer_store_dwordx4 v[20:23], v10, s[24:27], s21 offen offset:16")
    k(f"{N}_end:")
    k("s_endpgm")
    launches = [("prep_kernel", PREP_GRID, 256, PREP_LDS)]
    desc = descriptor("prep_kernel", 104, 0)
    return k, launches, desc, ["prep_kernel"]
```

```python
from asmgen import *
from layout import *
from k_prep import srd, entry, xreduce
import math

GRID = 192
LDS_ST = 147456
LDS_S = LDS_ST + 1024
LDS = LDS_S + 576
QSCALE = 18 ** -0.5 * math.log2(math.e)

def f2u(x):
    import struct
    return "0x%08x" % struct.unpack("<I", struct.pack("<f", x))[0]

def load_stats(k, srd_s, vaddr, ntb, r0, tag, soff="0"):
    for j in range(ntb):
        for h in range(2):
            r = r0 + 8 * j + 4 * h
            imm = j * 2048 + h * 16
            if imm < 4096:
                k(f"buffer_load_dwordx4 v[{r}:{r+3}], v{vaddr}, s[{srd_s}:{srd_s+3}], 0 offen offset:{imm}", tag)
            else:
                k(f"buffer_load_dwordx4 v[{r}:{r+3}], v{vaddr}, s[{srd_s}:{srd_s+3}], {soff} offen offset:{imm-4096}", tag)

def finish_stats(k, ntb, r0, tmp):
    for j in range(ntb):
        r = r0 + 8 * j
        k(f"v_add_f32 v{r}, v{r}, v{r+2}")
        k(f"v_add_f32 v{r+1}, v{r+1}, v{r+3}")
        k(f"v_add_f32 v{r+4}, v{r+4}, v{r+6}")
        k(f"v_add_f32 v{r+5}, v{r+5}, v{r+7}")
        k(f"v_add_f32 v{r}, v{r}, v{r+4}")
        k(f"v_add_f32 v{r+1}, v{r+1}, v{r+5}")
    regs = [r0 + 8 * j + q for j in range(ntb) for q in range(2)]
    xreduce(k, regs, [r + 2 for r in regs])
    for j in range(ntb):
        r = r0 + 8 * j
        k(f"v_mul_f32 v{r}, {f2u(1/576)}, v{r}")
        k(f"v_mul_f32 v{r+1}, {f2u(1/576)}, v{r+1}")
        k(f"v_fma_f32 v{r+1}, -v{r}, v{r}, v{r+1}")
        k(f"v_max_f32 v{r+1}, 0, v{r+1}")
        k(f"v_add_f32 v{r+1}, {f2u(1e-5)}, v{r+1}")

def gen():
    k = Kern(); N = "qkv"
    for name, xo, so in (("qkv1_kernel", XF0, ST0), ("qkv2_kernel", X2, ST2)):
        entry(k, name)
        k(f"s_mov_b32 s40, {xo}")
        k(f"s_mov_b32 s41, {so}")
        if name == "qkv1_kernel": k(f"s_branch {N}_main")
    k(f"{N}_main:")
    k(f"s_cmp_ge_u32 s2, {GRID}")
    k(f"s_cbranch_scc1 {N}_end")
    k("s_load_dwordx2 s[4:5], s[0:1], 72")
    k("v_lshrrev_b32 v4, 6, v0")
    k("v_and_b32 v5, 63, v0")
    k("v_readfirstlane_b32 s18, v4")
    k("v_lshlrev_b32 v1, 4, v5")
    k("s_and_b32 s6, s2, 7")
    k("s_lshr_b32 s7, s2, 3")
    k("s_mul_i32 s16, s7, 43")
    k("s_lshr_b32 s16, s16, 8")
    for i in range(24): assert (i * 43) >> 8 == i // 6
    k("s_mul_i32 s17, s16, 6")
    k("s_sub_u32 s17, s7, s17")
    k("s_lshr_b32 s7, s6, 1")
    k("s_lshl_b32 s7, s7, 2")
    k("s_add_u32 s16, s16, s7")
    k("s_and_b32 s6, s6, 1")
    k("s_mul_i32 s6, s6, 6")
    k("s_add_u32 s17, s17, s6")
    k("s_lshl_b32 s19, s16, 3")
    k("s_lshl_b32 s6, s18, 1")
    k("s_add_u32 s19, s19, s6")
    for i in range(1, 5): k(f"s_mov_b32 s{32+i}, {4096*i}")
    k("s_lshl_b32 s38, s18, 12")
    k("s_lshl_b32 s39, s18, 9")
    k("s_add_u32 s39, s39, 16384")
    k("s_mul_i32 s6, s19, 18432")
    k("v_add_u32 v2, s6, v1")
    k("v_add_u32 v3, 18432, v2")
    k(f"v_add_u32 v6, {8*18432}, v1")
    k("v_and_b32 v7, 15, v5")
    k("v_lshrrev_b32 v8, 4, v5")
    k("v_lshlrev_b32 v9, 7, v7")
    k("v_lshl_add_u32 v9, v8, 5, v9")
    k("s_lshl_b32 s6, s19, 11")
    k("v_add_u32 v9, s6, v9")
    k("v_min_u32 v10, 35, v5")
    k("v_lshlrev_b32 v10, 4, v10")
    k("s_mul_i32 s42, s17, 576")
    k("s_add_u32 s43, s42, 6912")
    k("s_add_u32 s44, s42, 13824")
    k("s_waitcnt lgkmcnt(0)")
    k("s_add_u32 s8, s4, s40"); k("s_addc_u32 s9, s5, 0"); k("s_and_b32 s9, s9, 0xffff"); k(f"s_mov_b32 s10, {XSZ}"); k("s_mov_b32 s11, 0x20000")
    k("s_add_u32 s20, s4, s41"); k("s_addc_u32 s21, s5, 0"); k("s_and_b32 s21, s21, 0xffff"); k(f"s_mov_b32 s22, {STSZ}"); k("s_mov_b32 s23, 0x20000")
    srd(k, 28, 4, SQKV, SQKV_SZ)
    k("s_mul_i32 s6, s17, 165888")
    k(f"s_add_u32 s6, s6, {WQKV}")
    k("s_add_u32 s12, s4, s6"); k("s_addc_u32 s13, s5, 0"); k("s_and_b32 s13, s13, 0xffff"); k("s_mov_b32 s14, 165888"); k("s_mov_b32 s15, 0x20000")
    load_stats(k, 20, 9, 2, 32, "st")
    for i, s in enumerate((42, 43, 44)):
        k(f"buffer_load_dwordx4 v[{48+4*i}:{51+4*i}], v10, s[28:31], s{s} offen", "st")
    def xfrag(ks, j): return 4 * (ks * 2 + j)
    def group(g):
        for ks in (2 * g, 2 * g + 1):
            for j in range(2):
                r = xfrag(ks, j)
                so = "0" if ks < 4 else f"s{32 + ks // 4}"
                k(f"buffer_load_dwordx4 a[{r}:{r+3}], v{2+j}, s[8:11], {so} offen offset:{(ks % 4) * 1024}", f"g{g}")
        slot = g % 8; va = 1 if g < 8 else 6
        k(f"s_add_u32 m0, s38, {slot * 18432}")
        for j in range(4):
            k(f"buffer_load_dwordx4 v{va}, s[12:15], m0 offen offset:{j*1024} lds", f"g{g}")
        k(f"s_add_u32 m0, s39, {slot * 18432}")
        k("s_mov_b32 exec_hi, 0")
        k(f"buffer_load_dwordx4 v{va}, s[12:15], m0 offen lds", f"g{g}")
        k("s_mov_b32 exec_hi, -1")
    for g in range(6): group(g)
    srd(k, 24, 4, QKV, 3 * XSZ)
    k("WAITVM st")
    finish_stats(k, 2, 32, None)
    for q in range(4):
        k(f"v_add_f32 v{48+q}, v{48+q}, v{52+q}")
        k(f"v_add_f32 v{48+q}, v{48+q}, v{56+q}")
    k(f"v_add_u32 v10, {LDS_S}, v10")
    k("ds_write_b128 v10, v[48:51]")
    k("v_rsq_f32 v13, v33")
    k("v_rsq_f32 v15, v41")
    k("v_sub_f32 v12, 0, v32")
    k("v_sub_f32 v14, 0, v40")
    k("s_cmp_lt_u32 s17, 4")
    k(f"s_cselect_b32 s6, {f2u(QSCALE)}, 1.0")
    k("v_mul_f32 v13, s6, v13")
    k("v_mul_f32 v15, s6, v15")
    k("s_lshl_b32 s6, s18, 8")
    k(f"s_add_u32 s6, s6, {LDS_ST}")
    k("v_lshl_add_u32 v11, v7, 3, s6")
    k("ds_write_b64 v11, v[12:13]")
    k("ds_write_b64 v11, v[14:15] offset:128")
    k("s_mul_i32 s45, s17, 589824")
    k("s_cmp_ge_u32 s17, 8")
    k(f"s_cbranch_scc1 {N}_v")
    W = (32, 68); ACC = 104
    for path in ("qk", "v"):
        k.path = path
        if path == "v": k(f"{N}_v:")
        def rd(ks, b):
            r = W[ks % 2] + 4 * b
            off = ((ks // 2) % 8) * 18432 + (ks % 2) * 9216 + b * 1024
            va = 1 if off < 65536 else (16 if off < 131072 else 17)
            k(f"ds_read_b128 v[{r}:{r+3}], v{va} offset:{off % 65536}", f"w{ks}_{b}")
        k("v_add_u32 v16, 65536, v1")
        k("v_add_u32 v17, 131072, v1")
        k("WAITVM g0")
        k("s_waitcnt lgkmcnt(0)")
        k("s_barrier")
        for b in range(9): rd(0, b)
        for ks in range(18):
            g = ks // 2
            if ks % 2 == 1 and g < 8:
                k(f"WAITVM g{g+1}")
                k("s_barrier")
                if g + 6 <= 8: group(g + 6)
            for b in range(9):
                k(f"WAITLG w{ks}_{b}")
                w = W[ks % 2] + 4 * b
                for j in range(2):
                    a = ACC + 4 * (j * 9 + b); x = xfrag(ks, j)
                    c = "0" if ks == 0 else f"v[{a}:{a+3}]"
                    if path == "qk": k(f"v_mfma_f32_16x16x32_bf16 v[{a}:{a+3}], v[{w}:{w+3}], a[{x}:{x+3}], {c}")
                    else:            k(f"v_mfma_f32_16x16x32_bf16 v[{a}:{a+3}], a[{x}:{x+3}], v[{w}:{w+3}], {c}")
                if ks < 17: rd(ks + 1, b)
        if path == "qk":
            k(f"v_lshlrev_b32 v10, 4, v8")
            k(f"v_add_u32 v10, {LDS_S}, v10")
            for b in range(9): k(f"ds_read_b128 v[{32+4*b}:{35+4*b}], v10 offset:{b*64}", f"s{b}")
            k("v_and_b32 v18, 1, v8")
            k("v_lshlrev_b32 v18, 9, v18")
            k("v_lshrrev_b32 v19, 1, v8")
            k("v_lshl_add_u32 v18, v19, 8, v18")
            k("v_lshl_add_u32 v18, v7, 4, v18")
            k("s_lshl_b32 s6, s19, 9")
            k("v_add_u32 v18, s6, v18")
            for b in range(9):
                k(f"WAITLG s{b}")
                P = 68 + 4 * (b % 4)
                for j in range(2):
                    a = ACC + 4 * (j * 9 + b)
                    for i in range(4): k(f"v_fma_f32 v{a+i}, v{12+2*j}, v{32+4*b+i}, v{a+i}")
                    for i in range(4): k(f"v_mul_f32 v{a+i}, v{a+i}, v{13+2*j}")
                    k(f"v_cvt_pk_bf16_f32 v{P+2*j}, v{a}, v{a+1}")
                    k(f"v_cvt_pk_bf16_f32 v{P+2*j+1}, v{a+2}, v{a+3}")
                k(f"v_permlane16_swap_b32 v{P}, v{P+2}")
                k(f"v_permlane16_swap_b32 v{P+1}, v{P+3}")
                k(f"buffer_store_dwordx4 v[{P}:{P+3}], v18, s[24:27], s45 offen")
                if b < 8: k("s_add_u32 s45, s45, 65536")
        else:
            k(f"v_lshlrev_b32 v10, 2, v7")
            k(f"v_add_u32 v10, {LDS_S}, v10")
            k("s_lshl_b32 s6, s18, 8")
            k(f"s_add_u32 s6, s6, {LDS_ST}")
            k("v_lshl_add_u32 v11, v8, 5, s6")
            for j in range(2):
                for h in range(2):
                    k(f"ds_read_b128 v[{48+8*j+4*h}:{51+8*j+4*h}], v11 offset:{j*128+h*16}", "vs")
            for b in range(9): k(f"ds_read_b32 v{32+b}, v10 offset:{b*64}", f"s{b}")
            k("s_lshl_b32 s6, s19, 9")
            k("v_add_u32 v18, s6, v1")
            for b in range(9):
                k(f"WAITLG s{b}")
                P = 68 + 4 * (b % 4)
                for j in range(2):
                    a = ACC + 4 * (j * 9 + b)
                    for i in range(4): k(f"v_fma_f32 v{a+i}, v{48+8*j+2*i}, v{32+b}, v{a+i}")
                    for i in range(4): k(f"v_mul_f32 v{a+i}, v{a+i}, v{49+8*j+2*i}")
                    k(f"v_cvt_pk_bf16_f32 v{P+2*j}, v{a}, v{a+1}")
                    k(f"v_cvt_pk_bf16_f32 v{P+2*j+1}, v{a+2}, v{a+3}")
                k(f"buffer_store_dwordx4 v[{P}:{P+3}], v18, s[24:27], s45 offen")
                if b < 8: k("s_add_u32 s45, s45, 65536")
        if path == "qk": k("s_endpgm")
    k.path = None
    k(f"{N}_end:")
    k("s_endpgm")
    names = ["qkv1_kernel", "qkv2_kernel"]
    launches = [(n, GRID, 256, LDS) for n in names]
    desc = "".join(descriptor(n, 176, 144) for n in names)
    return k, launches, desc, names
```

```python
XSZ = 2048 * 576 * 2
XF0 = 0
X1 = XSZ
X2 = 2 * XSZ
QKV = 3 * XSZ
OO = 6 * XSZ
STSZ = 2048 * 64
ST0 = 7 * XSZ
ST1 = ST0 + STSZ
ST2 = ST1 + STSZ
WQKV = ST2 + STSZ; WQKV_SZ = 576 * 1728 * 2
WO = WQKV + WQKV_SZ; WO_SZ = 576 * 576 * 2
WGU = WO + WO_SZ; WGU_SZ = 576 * 9216 * 2
WD = WGU + WGU_SZ; WD_SZ = 4608 * 576 * 2
SQKV = WD + WD_SZ; SQKV_SZ = 3 * 1728 * 4
SGU = SQKV + 20736 + 3840; SGU_SZ = 3 * 9216 * 4
HH = SGU + SGU_SZ; H_SZ = 2048 * 4608 * 2
WS_END = HH + H_SZ
for _v in (XF0, X1, X2, QKV, OO, ST0, ST1, ST2, WQKV, WO, WGU, WD, SQKV, SGU, HH): assert _v % 1024 == 0, _v
FLG = WS_END; FLG_SET = 256 * 128; FLG_SZ = 6 * FLG_SET
WS_END = FLG + FLG_SZ
```

```python
import sys
from asmgen import *
from layout import *
import k_prep

def finalize(k, entries, verbose=True):
    k.resolve_waits()
    added = k.fix_hazards()
    errs = []
    for e in entries:
        fw = list(dict.fromkeys(k.fwd_targets()))
        runs = [set()] + [{t} for t in fw if not t.endswith("_end")]
        extra = getattr(k, "extra_paths", [])
        for tk in getattr(k, 'only_paths', None) or (runs + extra):
            if tk in getattr(k, 'skip_paths', []): continue
            errs += k.check(e, e + str(sorted(tk)), taken=tk)
    errs = list(dict.fromkeys(errs))
    for x in errs[:40]: print("ERR", x)
    if verbose: print(entries, "instrs:", sum(1 for x in k.ins if x.kind not in ("label", "dir")), "nops added:", added, "errors:", len(errs))
    assert not errs

HEADER = open("interleave_layers__sliding_block__swiglu_ffn__prompt.s.ref").read().split("; Override launch")[0]

def build(parts, order, path):
    info = {}
    for k, launches, desc, entries in parts:
        finalize(k, entries)
        for l in launches: info[l[0]] = l
    out = HEADER
    for n in order:
        _, g, b, lds = info[n]
        out += f"; @launch kernel={n} grid=({g},1,1) block=({b},1,1) lds={lds}\n"
    out += '.amdgcn_target "amdgcn-amd-amdhsa--gfx950"\n.text\n'
    for k, launches, desc, entries in parts: out += k.text()
    for k, launches, desc, entries in parts: out += desc
    open(path, "w").write(out)

if __name__ == "__main__":
    parts = [k_prep.gen_prep()]
    order = ["prep_kernel"]
    try:
        import k_qkv; parts.append(k_qkv.gen());
        import k_attn; parts.append(k_attn.gen())
        import k_gemmk; parts.append(k_gemmk.gen())
        import k_ffn1; parts.append(k_ffn1.gen())
    except ModuleNotFoundError as e:
        print("missing", e)
    names = [l[0] for p in parts for l in p[1]]
    full = ["prep_kernel", "qkv1_kernel", "attn_kernel", "wo1_kernel", "ffn1_kernel", "down1_kernel",
            "qkv2_kernel", "attn_kernel", "wo2_kernel", "ffn1_kernel", "down2_kernel"]
    order = []
    for n in full:
        if n not in names: break
        order.append(n)
    build(parts, order, sys.argv[1] if len(sys.argv) > 1 else "main.s")
```

```python
import re

TRANS = ("v_exp_f32", "v_log_f32", "v_rcp_f32", "v_rsq_f32", "v_sqrt_f32", "v_sin_f32", "v_cos_f32")

def regs_of(tok):
    tok = tok.strip()
    if tok.startswith("-"): tok = tok[1:]
    if tok.startswith("|") and tok.endswith("|"): tok = tok[1:-1]
    m = re.fullmatch(r"abs\((.*)\)", tok)
    if m: tok = m.group(1)
    m = re.fullmatch(r"([vas])(\d+)", tok)
    if m: return [tok]
    m = re.fullmatch(r"([vas])\[(\d+):(\d+)\]", tok)
    if m: return [f"{m.group(1)}{i}" for i in range(int(m.group(2)), int(m.group(3)) + 1)]
    if tok == "vcc": return ["vcc_lo", "vcc_hi"]
    if tok == "exec": return ["exec_lo", "exec_hi"]
    if tok in ("vcc_lo", "vcc_hi", "exec_lo", "exec_hi", "m0"): return [tok]
    return []

class Ins:
    __slots__ = ("text", "op", "ops", "dst", "src", "kind", "tag", "passes", "cregs", "abregs", "wide", "label", "target", "nop", "path")
    def __init__(self, text, tag=None, path=None):
        self.text = text; self.tag = tag; self.path = path
        self.label = None; self.target = None; self.nop = 0
        self.passes = 0; self.cregs = []; self.abregs = []; self.wide = False
        t = text.split(";")[0].strip()
        if t.endswith(":"):
            self.kind = "label"; self.label = t[:-1]; self.op = ""; self.ops = []; self.dst = []; self.src = []; return
        if t.startswith(".") or t == "":
            self.kind = "dir"; self.op = ""; self.ops = []; self.dst = []; self.src = []; return
        parts = t.split(None, 1)
        op = parts[0]; rest = parts[1] if len(parts) > 1 else ""
        self.op = op
        ops = [o.strip() for o in re.split(r",(?![^\[]*\])(?![^(]*\))", rest)] if rest else []
        mods = ""
        if ops:
            last = ops[-1].split(None, 1)
            if len(last) > 1 and not op.startswith("s_waitcnt"):
                ops[-1] = last[0]; mods = last[1]
        self.ops = ops
        R = [regs_of(o) for o in ops]
        flat = lambda l: [x for y in l for x in y]
        if op in ("WAITVM", "WAITLG"):
            self.kind = "pwait"; self.dst = []; self.src = []
        elif op.startswith("v_mfma"):
            self.kind = "mfma"; self.dst = R[0]; self.abregs = R[1] + R[2]; self.cregs = R[3]; self.src = self.abregs + self.cregs
            self.passes = 8 if "32x32" in op else 4
        elif op.startswith("v_"):
            self.kind = "valu"
            b = re.sub(r"_(e32|e64|dpp|sdwa)$", "", op)
            if b.startswith("v_permlane") and "swap" in b:
                self.dst = R[0] + R[1]; self.src = R[0] + R[1]
            elif b in ("v_add_co_u32", "v_sub_co_u32", "v_subrev_co_u32", "v_addc_co_u32", "v_subb_co_u32"):
                self.dst = R[0] + R[1]; self.src = flat(R[2:])
            else:
                self.dst = R[0]; self.src = flat(R[1:])
                if b in ("v_fmac_f32", "v_dot2c_f32_bf16", "v_writelane_b32") or "dpp" in op or "row_" in mods or "quad_perm" in mods:
                    self.src = self.src + R[0]
        elif op.startswith("buffer_load") or op.startswith("global_load"):
            if " lds" in " " + mods + " " or "_lds_" in op:
                self.kind = "dma"; self.dst = []; self.src = flat(R) + ["m0"]
            else:
                self.kind = "vload"; self.dst = R[0]; self.src = flat(R[1:])
        elif op.startswith("buffer_store") or op.startswith("global_store"):
            self.kind = "vstore"; self.dst = []; self.src = flat(R)
            self.wide = op.endswith("x4") or op.endswith("x3")
            self.cregs = R[0] if op.startswith("buffer") else R[1]
        elif op.startswith("buffer_atomic") or op.startswith("global_atomic"):
            self.kind = "vstore"; self.dst = []; self.src = flat(R)
            if "sc0" in mods: self.kind = "vload"; self.dst = R[0]
        elif op.startswith("buffer_wbl2") or op.startswith("buffer_inv"):
            self.kind = "vstore"; self.dst = []; self.src = []
        elif op.startswith("ds_read") or op.startswith("ds_bpermute") or op.startswith("ds_swizzle"):
            self.kind = "dsread"; self.dst = R[0]; self.src = flat(R[1:])
        elif op.startswith("ds_write"):
            self.kind = "dswrite"; self.dst = []; self.src = flat(R)
        elif op.startswith("s_load") or op in ("s_memtime", "s_memrealtime"):
            self.kind = "smem"; self.dst = R[0]; self.src = flat(R[1:])
        elif op == "s_waitcnt":
            self.kind = "wait"; self.dst = []; self.src = []
        elif op == "s_nop":
            self.kind = "nop"; self.nop = int(ops[0], 0); self.dst = []; self.src = []
        elif op in ("s_branch",) or op.startswith("s_cbranch"):
            self.kind = "branch"; self.target = ops[0]; self.dst = []; self.src = []
        elif op in ("s_barrier", "s_endpgm", "s_setprio", "s_sleep"):
            self.kind = "misc"; self.dst = []; self.src = []
        elif op.startswith("s_cmp") or op.startswith("s_bitcmp"):
            self.kind = "salu"; self.dst = []; self.src = flat(R)
        elif op.startswith("s_"):
            self.kind = "salu"; self.dst = R[0]; self.src = flat(R[1:])
            if "saveexec" in op: self.dst = self.dst + ["exec_lo", "exec_hi"]
        else:
            raise ValueError("unknown instruction: " + text)

def need_states(st, ins):
    need = 0
    def req(t, n):
        nonlocal need
        if t is not None: need = max(need, t + n + 1)
    k = ins.kind
    b = re.sub(r"_(e32|e64|dpp|sdwa)$", "", ins.op)
    if k == "mfma":
        for r in ins.src: req(st["valu_w"].get(r), 2)
        for r in ins.abregs:
            e = st["mfma_w"].get(r)
            if e: req(e[0], 8 if e[1] == 4 else 12)
        for r in ins.cregs:
            e = st["mfma_w"].get(r)
            if e and not (e[2] == tuple(ins.cregs) and e[1] == ins.passes): req(e[0], 6 if e[1] == 4 else 10)
        req(st.get("valu_exec"), 4)
    if k in ("valu", "vload", "vstore", "dma", "dsread", "dswrite"):
        for r in ins.src + ins.dst:
            e = st["mfma_w"].get(r)
            if e: req(e[0], 8 if e[1] == 4 else 12)
    if k == "valu":
        for r in ins.dst:
            e = st["mfma_c"].get(r)
            if e: req(e[0], 3 if e[1] == 4 else 7)
            req(st["store_d"].get(r), 2)
        if b not in TRANS:
            for r in ins.src: req(st["trans_w"].get(r), 1)
        if b.startswith("v_permlane") or "dpp" in ins.op or "row_" in ins.text or "quad_perm" in ins.text:
            for r in ins.src: req(st["valu_w"].get(r), 2)
        if b in ("v_readlane_b32", "v_readfirstlane_b32"):
            for r in ins.src:
                if r[0] == "v" and r[1].isdigit(): req(st["valu_w"].get(r), 1)
        for r in ins.src:
            if r[0] == "s" or r.startswith("vcc"):
                req(st["valu_sw"].get(r), 4 if b in ("v_readlane_b32", "v_writelane_b32") else 2)
    if k in ("valu", "mfma", "vstore", "vload", "dma", "dsread", "dswrite"):
        for r in ins.src + ins.dst:
            e = st["dot_w"].get(r)
            if e:
                if e[1] == b and r in ins.dst and not (r in regs_of(ins.ops[1]) + regs_of(ins.ops[2])): pass
                else: req(e[0], 3)
    if k in ("vload", "dsread"):
        for r in ins.dst: req(st["store_d"].get(r), 1)
    if k in ("vload", "vstore", "dma"):
        for r in ins.src:
            if r[0] == "s": req(st["valu_sw"].get(r), 5)
    if k == "salu":
        for r in ins.src:
            if r[0] == "s" or r.startswith("vcc"): req(st["valu_sw"].get(r), 1)
    if k == "dma": req(st.get("m0_w"), 1)
    return need

def new_state():
    return {"valu_w": {}, "mfma_w": {}, "mfma_c": {}, "trans_w": {}, "valu_sw": {}, "store_d": {}, "dot_w": {}}

def update(st, ins, t):
    k = ins.kind
    b = re.sub(r"_(e32|e64|dpp|sdwa)$", "", ins.op)
    if k == "valu":
        for r in ins.dst:
            if (r[0] in "va" and r[1].isdigit()):
                st["valu_w"][r] = t
                st["mfma_w"].pop(r, None)
                if b in TRANS: st["trans_w"][r] = t
                else: st["trans_w"].pop(r, None)
                if b.startswith("v_dot"): st["dot_w"][r] = (t, b)
                else: st["dot_w"].pop(r, None)
            else:
                st["valu_sw"][r] = t
                if r.startswith("exec"): st["valu_exec"] = t
    elif k == "mfma":
        for r in ins.dst:
            st["mfma_w"][r] = (t, ins.passes, tuple(ins.dst)); st["valu_w"].pop(r, None); st["trans_w"].pop(r, None)
        for r in ins.cregs: st["mfma_c"][r] = (t, ins.passes)
    elif k == "vstore" and ins.wide:
        for r in ins.cregs: st["store_d"][r] = t
    elif k in ("vload", "dsread"):
        for r in ins.dst:
            st["valu_w"].pop(r, None); st["mfma_w"].pop(r, None); st["trans_w"].pop(r, None)
    elif k == "salu":
        for r in ins.dst:
            st["valu_sw"].pop(r, None)
            if r == "m0": st["m0_w"] = t

class Kern:
    def __init__(self):
        self.ins = []
        self.path = None
    def __call__(self, text, tag=None):
        for line in text.strip().split("\n"):
            line = line.strip()
            if line: self.ins.append(Ins(line, tag, self.path))
    def add(self, lst):
        for x in lst:
            if isinstance(x, Ins): x.path = self.path; self.ins.append(x)
            elif isinstance(x, tuple): self(x[0], x[1])
            else: self(x)

    def stamp(self, n):
        import os
        if os.environ.get("STAMPS", "") != getattr(self, "name", None): return []
        L = [f"s_memtime s[{64+2*n}:{65+2*n}]"]
        if n == 0: L.append("s_memrealtime s[92:93]")
        L.append("s_waitcnt lgkmcnt(0)")
        return L
    def stamp_out(self, wsptr=4, nwaves=4):
        import os
        if os.environ.get("STAMPS", "") != getattr(self, "name", None): return
        k = self
        k("s_waitcnt vmcnt(0) lgkmcnt(0)")
        k("s_memtime s[90:91]")
        k("s_memrealtime s[94:95]")
        k("s_waitcnt lgkmcnt(0)")
        k("s_mov_b64 exec, 1")
        for n in range(14): k(f"v_mov_b32 v{16+n}, s{64+2*n}")
        k("v_mov_b32 v30, s92"); k("v_mov_b32 v31, s94")
        k(f"s_add_u32 s60, s{wsptr}, {128<<20}"); k(f"s_addc_u32 s61, s{wsptr+1}, 0"); k("s_and_b32 s61, s61, 0xffff")
        k("s_mov_b32 s62, 0x100000"); k("s_mov_b32 s63, 0x20000")
        k("s_lshl_b32 s59, s2, 3"); k("s_add_u32 s59, s59, s18"); k("s_lshl_b32 s59, s59, 6")
        k("v_mov_b32 v15, 0")
        for q in range(4): k(f"buffer_store_dwordx4 v[{16+4*q}:{19+4*q}], v15, s[60:63], s59 offen offset:{16*q}")

    def resolve_waits(self):
        out = []
        for i, x in enumerate(self.ins):
            if x.kind != "pwait":
                out.append(x); continue
            tags = set(x.ops)
            cls = ("vload", "vstore", "dma") if x.op == "WAITVM" else ("dsread", "dswrite", "smem")
            n = 0; found = False
            for y in reversed(self.ins[:i]):
                if y.path is not None and y.path != x.path: continue
                if y.kind == "wait" and (("vmcnt(0)" in y.text) if x.op == "WAITVM" else ("lgkmcnt(0)" in y.text)):
                    found = True; n = None; break
                if y.kind in cls:
                    if y.tag in tags: found = True; break
                    assert y.kind != "smem", "smem inside counted lgkm window"
                    n += 1
            assert found, f"wait tag {tags} not found"
            if n is None: continue
            if x.op == "WAITVM":
                if n >= 63: continue
                out.append(Ins(f"s_waitcnt vmcnt({n})"))
            else:
                n = min(n, 15)
                out.append(Ins(f"s_waitcnt lgkmcnt({n})"))
        self.ins = out

    def fix_hazards(self):
        st = new_state(); t = 0; out = []; added = 0
        for x in self.ins:
            if x.kind in ("label", "dir"):
                out.append(x); continue
            n = need_states(st, x)
            if n > t:
                k = n - t
                out.append(Ins(f"s_nop {k-1}")); added += k; t += k
            update(st, x, t)
            t += x.nop + 1
            out.append(x)
        self.ins = out
        return added

    def check(self, entry, name="", taken=None, maxloop=2):
        idx = {x.label: i for i, x in enumerate(self.ins) if x.kind == "label"}
        taken = taken or set()
        st = new_state(); t = 0; i = idx[entry]; vm = []; lg = []; cnt = {}; errs = []
        pend = {}
        while i < len(self.ins):
            x = self.ins[i]
            if x.kind in ("label", "dir"): i += 1; continue
            n = need_states(st, x)
            if n > t: errs.append(f"{name}: hazard short by {n-t} at [{i}] {x.text}")
            for r in x.src + x.dst:
                if r in pend: errs.append(f"{name}: reg {r} still pending ({pend[r]}) at [{i}] {x.text}")
            if x.kind == "wait":
                m = re.search(r"vmcnt\((\d+)\)", x.text)
                if m:
                    while len(vm) > int(m.group(1)):
                        for r in vm.pop(0): pend.pop(r, None)
                m = re.search(r"lgkmcnt\((\d+)\)", x.text)
                if m:
                    nn = int(m.group(1))
                    if nn > 0 and any(e[1] for e in lg): errs.append(f"{name}: counted lgkm wait with smem outstanding [{i}]")
                    while len(lg) > nn:
                        for r in lg.pop(0)[0]: pend.pop(r, None)
            elif x.kind in ("vload", "vstore", "dma"):
                vm.append(list(x.dst))
                for r in x.dst: pend[r] = x.text
                while len(vm) > 63:
                    for r in vm.pop(0): pend.pop(r, None)
            elif x.kind in ("dsread", "dswrite", "smem"):
                lg.append((list(x.dst), x.kind == "smem"))
                for r in x.dst: pend[r] = x.text
                if len(lg) > 15 and not getattr(self, "_lgwarn", False):
                    print(f"note {name}: >15 lgkm ops outstanding at [{i}] {x.text}"); self._lgwarn = True
            update(st, x, t)
            t += x.nop + 1
            if x.op == "s_endpgm": break
            if x.kind == "branch":
                j = idx[x.target]
                if x.op == "s_branch":
                    if j <= i:
                        cnt[i] = cnt.get(i, 0) + 1
                        if cnt[i] > 1: break
                    i = j; continue
                if j <= i:
                    cnt[i] = cnt.get(i, 0) + 1
                    if cnt[i] < maxloop: i = j; continue
                elif x.target in taken or (i in taken):
                    i = j; continue
            i += 1
        return errs

    def fwd_targets(self):
        idx = {x.label: i for i, x in enumerate(self.ins) if x.kind == "label"}
        return [x.target for i, x in enumerate(self.ins) if x.kind == "branch" and x.op != "s_branch" and idx.get(x.target, -1) > i]

    def text(self):
        return "\n".join(("" if x.kind in ("label", "dir") else "  ") + x.text for x in self.ins) + "\n"

def interleave(main, fill, per_slot=2.0, start=0):
    out = []; budget = 0.0; fi = 0
    for s, item in enumerate(main):
        out.extend(item)
        budget += per_slot - (len(item) - 1)
        while fi < len(fill) and fill[fi][2] <= s + start and budget >= fill[fi][0] - 1e-9:
            out.append(fill[fi][1]); budget -= fill[fi][0]; fi += 1
        budget = min(budget, per_slot)
    return out, fill[fi:]

def descriptor(name, vgprs, agprs, sgprs=96):
    acc = (vgprs + 3) // 4 * 4
    nfv = acc + agprs if agprs else vgprs
    return f""".section .rodata,"a"
.p2align 6
.amdhsa_kernel {name}
  .amdhsa_next_free_vgpr {nfv}
  .amdhsa_next_free_sgpr {sgprs}
  .amdhsa_accum_offset {acc}
  .amdhsa_group_segment_fixed_size 0
  .amdhsa_kernarg_size 80
  .amdhsa_user_sgpr_count 2
  .amdhsa_user_sgpr_kernarg_segment_ptr 1
  .amdhsa_system_sgpr_workgroup_id_x 1
  .amdhsa_float_denorm_mode_32 3
.end_amdhsa_kernel
.text
"""

def unit_cost(x):
    if x.kind in ("salu", "wait", "pwait", "misc", "nop", "smem", "branch"): return 0
    if x.kind == "valu":
        b = re.sub(r"_(e32|e64)$", "", x.op)
        return 2 if (b in TRANS or b.startswith("v_permlane")) else 1
    if x.kind in ("dsread", "dswrite"): return 1
    if x.kind in ("dma", "vload"): return 2
    if x.kind == "vstore": return 0
    return 0

class Bundle:
    def __init__(self, items): self.items = [as_ins(x) for x in items]

def as_ins(x):
    if isinstance(x, Ins): return x
    if isinstance(x, tuple): return Ins(x[0], x[1])
    return Ins(x)

def depends(a, b):
    if a.kind in ("pwait", "wait") or b.kind in ("pwait", "wait"): return True
    if a.kind in ("vstore", "vload", "dma") and b.kind in ("vstore", "vload", "dma"): return True
    if a.kind in ("dsread", "dswrite") and b.kind in ("dsread", "dswrite"): return True
    sa, da, sb, db = set(a.src), set(a.dst), set(b.src), set(b.dst)
    return bool(da & sb or da & db or sa & db)

def pack(k, mfmas, fixed, flow, units=2, window=24, st=None, t0=0):
    st = st or new_state(); t = t0
    flow = [(as_ins(a), g) for a, g in flow]
    over = 0
    def emit(x):
        nonlocal t
        n = need_states(st, x)
        if n > t: t = n
        update(st, x, t); t += x.nop + 1
        x.path = k.path
        k.ins.append(x)
    for i, m in enumerate(mfmas):
        emit(as_ins(m))
        bnd = [x for x in fixed.get(i, []) if isinstance(x, Bundle)]
        fx = [as_ins(x) for x in fixed.get(i, []) if not isinstance(x, Bundle)]
        sc = [x for x in fx if unit_cost(x) == 0 and x.kind != "vstore"]
        ve = [x for x in fx if x not in sc]
        left = units - sum(unit_cost(x) for x in ve) - max(0, len(sc) - 1) - (units if bnd else 0)
        nsc = len(sc)
        chosen = []
        j = 0
        while j < min(len(flow), window):
            x, g = flow[j]
            if g > i: break
            c = unit_cost(x); isc = (c == 0 and x.kind != "vstore")
            ok = all(not depends(flow[q][0], x) for q in range(j))
            if ok and isc:
                ok = nsc == 0 and not chosen_dep(chosen, x)
            if ok and not isc:
                ok = c <= left
                if ok and x.kind in ("dsread",) and any(y.kind == "valu" for y in chosen + ve): ok = False
            if ok:
                tt = t + nsc + len(ve) + len(chosen)
                stc = st
                if need_states(stc, x) > tt: ok = False
                for y in chosen:
                    if depends(y, x) and (set(y.dst) & set(x.src)):
                        by = re.sub(r"_(e32|e64)$", "", y.op)
                        if by in TRANS or x.op.startswith("v_permlane") or y.kind == "dsread": ok = False
            if ok:
                chosen.append(x); flow.pop(j)
                if isc: nsc += 1
                else: left -= c
                continue
            j += 1
        csc = [x for x in chosen if unit_cost(x) == 0 and x.kind != "vstore"]
        cve = [x for x in chosen if x not in csc]
        for x in sc + csc: emit(x)
        ds = [x for x in ve + cve if x.kind == "dsread"]
        rest = [x for x in ve + cve if x.kind != "dsread"]
        if len(rest) == 2 and rest[1].op.startswith("v_cvt_pk") and not depends(rest[0], rest[1]): rest = [rest[1], rest[0]]
        for x in ds + rest: emit(x)
        for b_ in bnd:
            for x in b_.items: emit(x)
        if left < 0: over += -left
    return [x for x, g in flow], over

def chosen_dep(chosen, x):
    return any(depends(y, x) for y in chosen)
```

```python
from asmgen import *
from layout import *
from k_prep import srd, entry, xreduce

GRID = 256
REC = 3072
VR0 = 16 * REC
ONES = VR0 + 2048
LDS = ONES + 16 + 2 * REC
NEG = "0xf149f2ca"

Q = (16, 20); KF = (24, 28); VM = 32; VRF = 36
S = {("A", 0): 40, ("B", 0): 44, ("A", 1): 48, ("B", 1): 52}
E = {t: r + 16 for t, r in S.items()}
P = {"A": 72, "B": 76}
OM = {"A": 80, "B": 84}; OR = {"A": 88, "B": 92}
MO = 96; MD = 100
NM = {"A": 104, "B": 108}
CF = {"A": 112, "B": 116}; CL = {"A": 120, "B": 124}
MX = {"A": 14, "B": 15}
ORDER = [("A", 0), ("B", 0), ("A", 1), ("B", 1)]
def v4(r): return f"v[{r}:{r+3}]"

def present(kind, t):
    return not ((kind == "first" and t == ("B", 0)) or (kind == "last" and t == ("A", 1)))

def cop(kind, t, ps):
    masked = (kind == "first" and t in (("A", 0), ("B", 1))) or (kind == "last" and t in (("A", 0), ("B", 1)))
    if ps == 1:
        return v4(MO if kind == "first" else MD) if masked else "0"
    if masked: return v4((CF if kind == "first" else CL)[t[0]])
    return v4(NM[t[0]])

def smfma(k, kind, t, ps):
    if present(kind, t):
        k(f"v_mfma_f32_16x16x32_bf16 {v4(S[t])}, {v4(KF[t[1]])}, {v4(Q[t[0] == 'B'])}, {cop(kind, t, ps)}")

def prologue(k, kind, ps):
    k(f"ds_read_b128 {v4(KF[0])}, v2")
    k(f"ds_read_b128 {v4(KF[1])}, v2 offset:1024")
    k("s_waitcnt lgkmcnt(0)")
    for t in ORDER: smfma(k, kind, t, ps)
    k(f"ds_read_b128 {v4(KF[0])}, v2 offset:{REC}")
    k(f"ds_read_b128 {v4(KF[1])}, v2 offset:{REC+1024}")
    if ps == 2:
        k(f"ds_read_b128 {v4(VM)}, v2 offset:2048")
        k(f"ds_read_b128 {v4(VRF)}, v3")
        k("v_add_u32 v3, v3, v4")
    k("s_nop 4")

def iteration(k, cur, nxt, ps):
    nq = 1 if ps == 1 else 3
    for t in ORDER:
        if present(cur, t):
            s = S[t]
            if ps == 1:
                m = MX[t[0]]
                k(f"v_max3_f32 v{m}, v{m}, v{s}, v{s+1}")
                k(f"v_max3_f32 v{m}, v{m}, v{s+2}, v{s+3}")
            else:
                for i in range(4): k(f"v_exp_f32 v{E[t]+i}, v{s+i}")
        if nxt:
            if t[0] == "A": k(f"s_waitcnt lgkmcnt({nq})")
            smfma(k, nxt, t, ps)
            if t[0] == "B": k(f"ds_read_b128 {v4(KF[t[1]])}, v2 offset:{2*REC + 1024*t[1]}")
    if ps == 2:
        for q in "AB":
            for tl in range(2):
                p = P[q] + 2 * tl; e = E[(q, tl)]
                if present(cur, (q, tl)):
                    k(f"v_cvt_pk_bf16_f32 v{p}, v{e}, v{e+1}")
                    k(f"v_cvt_pk_bf16_f32 v{p+1}, v{e+2}, v{e+3}")
                else:
                    k(f"v_mov_b32 v{p}, 0"); k(f"v_mov_b32 v{p+1}, 0")
            if q == "A": k(f"s_waitcnt lgkmcnt({2 if nxt else 0})")
            else: k("s_nop 0") if False else None
            if q == "B":
                pass
        k(f"v_mfma_f32_16x16x32_bf16 {v4(OM['A'])}, {v4(VM)}, {v4(P['A'])}, {v4(OM['A'])}")
        k(f"v_mfma_f32_16x16x32_bf16 {v4(OR['A'])}, {v4(VRF)}, {v4(P['A'])}, {v4(OR['A'])}")
        k(f"v_mfma_f32_16x16x32_bf16 {v4(OM['B'])}, {v4(VM)}, {v4(P['B'])}, {v4(OM['B'])}")
        k(f"v_mfma_f32_16x16x32_bf16 {v4(OR['B'])}, {v4(VRF)}, {v4(P['B'])}, {v4(OR['B'])}")
        if nxt:
            k(f"ds_read_b128 {v4(VM)}, v2 offset:{REC+2048}")
            k(f"ds_read_b128 {v4(VRF)}, v3")
            k("v_add_u32 v3, v3, v4")
    if nxt:
        k(f"v_add_u32 v2, {REC}, v2")
        if ps == 1: k("s_nop 3")

def gen():
    k = Kern(); N = "attn"; k.name = N
    entry(k, "attn_kernel")
    k(f"s_cmp_ge_u32 s2, {GRID}")
    k(f"s_cbranch_scc1 {N}_end")
    k.add(k.stamp(0))
    k("s_load_dwordx2 s[4:5], s[0:1], 72")
    k("v_lshrrev_b32 v4, 6, v0")
    k("v_and_b32 v5, 63, v0")
    k("v_readfirstlane_b32 s18, v4")
    k("v_lshlrev_b32 v1, 4, v5")
    k("v_and_b32 v7, 15, v5")
    k("v_lshrrev_b32 v8, 4, v5")
    k("s_and_b32 s6, s2, 7")
    k("s_lshr_b32 s7, s2, 3")
    k("s_lshr_b32 s17, s7, 2")
    k("s_and_b32 s7, s7, 3")
    k("s_lshl_b32 s16, s6, 2")
    k("s_add_u32 s16, s16, s7")
    k("s_lshr_b32 s19, s16, 3")
    k("s_mul_i32 s19, s19, 9")
    k("s_and_b32 s20, s16, 7")
    k("s_add_u32 s21, s19, s20")
    k("s_lshl_b32 s21, s21, 16")
    k("s_add_u32 s22, s19, 8")
    k("s_lshl_b32 s22, s22, 16")
    k("s_and_b32 s23, s6, 1")
    k("s_lshl_b32 s23, s23, 8")
    k("s_add_u32 s23, s23, s22")
    k("v_add_u32 v9, s21, v1")
    k("v_lshl_add_u32 v10, v7, 4, s23")
    k("v_cmp_gt_u32 vcc, 32, v5")
    k("v_cndmask_b32 v9, v10, v9, vcc")
    k("v_bfe_u32 v10, v5, 1, 2")
    k("v_lshlrev_b32 v10, 8, v10")
    k("v_and_b32 v11, 1, v5")
    k("v_lshl_add_u32 v10, v11, 4, v10")
    k("v_bfe_u32 v11, v5, 3, 1")
    k("v_lshl_add_u32 v10, v11, 10, v10")
    k("s_lshl_b32 s24, s20, 5")
    k("s_add_u32 s24, s24, s22")
    k("v_add_u32 v10, s24, v10")
    k("s_lshl_b32 s24, s17, 4")
    k("s_lshl_b32 s25, s18, 1")
    k("s_add_u32 s26, s24, s25")
    k("s_lshl_b32 s27, s26, 9")
    k("s_add_u32 s24, s26, s25")
    k("s_lshl_b32 s24, s24, 9")
    k(f"s_add_u32 s28, s24, {XSZ - 16*512}")
    k(f"s_add_u32 s29, s24, {2*XSZ - 8*1024}")
    k("s_add_u32 s30, s29, s21")
    k(f"s_mul_i32 s31, s18, {2*REC}")
    k("s_waitcnt lgkmcnt(0)")
    srd(k, 8, 4, QKV, 3 * XSZ)
    k(f"buffer_load_dwordx4 {v4(Q[0])}, v9, s[8:11], s27 offen", "q")
    k(f"buffer_load_dwordx4 {v4(Q[1])}, v9, s[8:11], s27 offen offset:512", "q")
    for bl in range(2):
        for tl in range(2):
            k(f"s_add_u32 m0, s31, {bl*REC + tl*1024}")
            k(f"s_add_u32 s24, s28, {(2*bl + tl)*512}")
            k("buffer_load_dwordx4 v9, s[8:11], s24 offen lds")
    for bl in range(2):
        k(f"s_add_u32 m0, s31, {bl*REC + 2048}")
        k(f"s_add_u32 s24, s30, {bl*1024}")
        k("buffer_load_dwordx4 v1, s[8:11], s24 offen lds")
    k("s_lshl_b32 s24, s18, 8")
    k(f"s_add_u32 m0, s24, {VR0}")
    k("s_mov_b64 exec, 0xffff")
    k("buffer_load_dwordx4 v10, s[8:11], s29 offen lds")
    k("s_mov_b64 exec, -1")
    srd(k, 12, 4, OO, XSZ)
    for i in range(4): k(f"v_mov_b32 v{E[('A',0)]+i}, 0x3f803f80")
    k(f"v_mov_b32 v11, {ONES}")
    k(f"ds_write_b128 v11, {v4(E[('A',0)])}")
    k("v_lshlrev_b32 v11, 2, v8")
    k(f"v_mov_b32 v12, {NEG}")
    for i in range(4):
        k(f"v_add_u32 v13, {i}, v11")
        k("v_cmp_gt_u32 vcc, v13, v7")
        k(f"v_cndmask_b32 v{MO+i}, v12, 0, vcc" .replace("v_cndmask_b32", "v_cndmask_b32_e64"))
        k(f"v_cndmask_b32 v{MD+i}, 0, v12, vcc")
    for r in range(OM["A"], OM["A"] + 16): k(f"v_mov_b32 v{r}, 0")
    k(f"v_mov_b32 v{MX['A']}, v12")
    k(f"v_mov_b32 v{MX['B']}, v12")
    k("s_cmp_gt_u32 s17, 0")
    k("s_cselect_b32 s32, s18, 8")
    k(f"s_mul_i32 s33, s32, {REC}")
    k("v_add_u32 v6, s33, v1")
    k("s_lshl_b32 s33, s32, 7")
    k(f"s_add_u32 s33, s33, {VR0}")
    k("v_lshl_add_u32 v3, v8, 1, v7")
    k("v_lshl_add_u32 v3, v3, 4, s33")
    k(f"v_mov_b32 v11, {ONES}")
    k("v_mov_b32 v4, 128")
    k("v_cmp_gt_u32 vcc, 2, v7")
    k("v_cndmask_b32 v3, v11, v3, vcc")
    k("v_cndmask_b32 v4, 0, v4, vcc")
    k.add(k.stamp(1))
    k("WAITVM q")
    k.add(k.stamp(2))
    for i in range(4):
        k(f"s_cmp_eq_u32 s7, {i}")
        k("s_cselect_b32 s24, 48, 32")
        k("v_cmp_gt_u32 vcc, s24, v5")
        k(f"v_cndmask_b32 v{Q[0]+i}, 0, v{Q[0]+i}, vcc")
        k(f"v_cndmask_b32 v{Q[1]+i}, 0, v{Q[1]+i}, vcc")
    k("s_waitcnt vmcnt(0) lgkmcnt(0)")
    k("s_barrier")
    for ps in (1, 2):
        k.add(k.stamp(2 + ps))
        L = f"{N}_p{ps}"
        k("v_mov_b32 v2, v6")
        k("s_cmp_eq_u32 s17, 0")
        k(f"s_cbranch_scc1 {L}_q0")
        prologue(k, "first", ps)
        iteration(k, "first", "mid", ps)
        k("s_mov_b32 s34, 6")
        k(f"s_branch {L}_loop")
        k(f"{L}_q0:")
        k("s_cmp_eq_u32 s18, 0")
        k(f"s_cbranch_scc0 {L}_q0b")
        prologue(k, "last", ps)
        k(f"s_branch {L}_last")
        k(f"{L}_q0b:")
        prologue(k, "mid", ps)
        k("s_sub_u32 s34, s18, 1")
        k("s_cmp_eq_u32 s34, 0")
        k(f"s_cbranch_scc1 {L}_pen")
        k(f"{L}_loop:")
        iteration(k, "mid", "mid", ps)
        k("s_sub_u32 s34, s34, 1")
        k("s_cmp_lg_u32 s34, 0")
        k(f"s_cbranch_scc1 {L}_loop")
        k(f"{L}_pen:")
        iteration(k, "mid", "last", ps)
        k(f"{L}_last:")
        iteration(k, "last", None, ps)
        if ps == 1:
            k("s_waitcnt lgkmcnt(0)")
            xreduce(k, [MX["A"], MX["B"]], [12, 13], op="v_max_f32")
            for q in "AB":
                for i in range(4):
                    k(f"v_sub_f32 v{NM[q]+i}, 0, v{MX[q]}")
                    k(f"v_sub_f32 v{CF[q]+i}, v{MO+i}, v{MX[q]}")
                    k(f"v_sub_f32 v{CL[q]+i}, v{MD+i}, v{MX[q]}")
    k.add(k.stamp(5))
    k("v_and_b32 v11, 1, v8")
    k("v_mul_u32_u24 v11, 18432, v11")
    k("v_lshl_add_u32 v11, v7, 4, v11")
    k("v_lshrrev_b32 v12, 1, v8")
    k("v_lshl_add_u32 v12, v12, 8, v11")
    k("s_mul_i32 s24, s26, 18432")
    k("s_lshl_b32 s25, s16, 9")
    k("s_add_u32 s25, s25, s24")
    k("s_lshr_b32 s27, s16, 2")
    k("s_lshl_b32 s27, s27, 8")
    k("s_lshl_b32 s28, s7, 2")
    k("s_add_u32 s27, s27, s28")
    k("s_add_u32 s27, s27, s24")
    k("s_add_u32 s27, s27, 16384")
    for q in "AB": k(f"v_rcp_f32 v{E[(q,0)]}, v{OR[q]+2}")
    for q in "AB":
        for i in range(4): k(f"v_mul_f32 v{OM[q]+i}, v{OM[q]+i}, v{E[(q,0)]}")
        for i in range(2): k(f"v_mul_f32 v{OR[q]+i}, v{OR[q]+i}, v{E[(q,0)]}")
    p = P["A"]
    for qi, q in enumerate("AB"):
        k(f"v_cvt_pk_bf16_f32 v{p+2*qi}, v{OM[q]}, v{OM[q]+1}")
        k(f"v_cvt_pk_bf16_f32 v{p+2*qi+1}, v{OM[q]+2}, v{OM[q]+3}")
        k(f"v_cvt_pk_bf16_f32 v{p+4+qi}, v{OR[q]}, v{OR[q]+1}")
    k(f"v_permlane16_swap_b32 v{p}, v{p+2}")
    k(f"v_permlane16_swap_b32 v{p+1}, v{p+3}")
    k(f"v_permlane16_swap_b32 v{p+4}, v{p+5}")
    k(f"buffer_store_dwordx4 {v4(p)}, v12, s[12:15], s25 offen")
    k("s_mov_b32 exec_hi, 0")
    k(f"buffer_store_dword v{p+4}, v11, s[12:15], s27 offen")
    k.stamp_out()
    k(f"{N}_end:")
    k("s_endpgm")
    k.extra_paths = [{"attn_p1_q0", "attn_p2_q0"}, {"attn_p1_q0", "attn_p2_q0", "attn_p1_q0b", "attn_p2_q0b"},
                     {"attn_p1_q0", "attn_p2_q0", "attn_p1_q0b", "attn_p2_q0b", "attn_p1_pen", "attn_p2_pen"}]
    return k, [("attn_kernel", GRID, 512, LDS)], descriptor("attn_kernel", 128, 0), ["attn_kernel"]
```

```python
from asmgen import *
from layout import *
from k_prep import srd, entry, xreduce
from k_qkv import load_stats, finish_stats, f2u
import math, os

GRID = 256
CH = 36864
LDS_S = 4 * CH
LDS = LDS_S + 1152
XV = 16; WB = 48; ACC = 72; NMEAN = 200; CC = 204; QQ = 208; SG = 212; TT = 228; PP = 236
PER_SLOT = float(os.environ.get("FFN1_PER_SLOT", "2.2"))
P1_START = float(os.environ.get("P1_START", "1.0")); P1_RATE = float(os.environ.get("P1_RATE", "1.0"))
P1_DIST = int(os.environ.get("P1_DIST", "3"))
UNITS = int(os.environ.get("UNITS", "2"))
FINE = os.environ.get("FINE")
NOEPI = os.environ.get("NOEPI"); NODMA = os.environ.get("NODMA"); NOSTORE = os.environ.get("NOSTORE")
STORE_MOD = ''
def v4(r): return f"v[{r}:{r+3}]"
def xop(ks, tb):
    f = ks * 4 + tb
    return f"a[{4*f}:{4*f+3}]" if f < 64 else v4(XV + 4 * (f - 64))
def accr(c, gu, tb): return ACC + 32 * (c % 4) + 16 * gu + 4 * tb

def rd(dst, c, ks, gu):
    off = (c % 4) * CH + ks * 2048 + gu * 1024
    va = (1, 6, 7)[off // 65536]
    return (f"ds_read_b128 {v4(dst)}, v{va} offset:{off % 65536}", f"w{c}_{ks}")

def dma(c, j):
    return [f"s_add_u32 m0, s38, {c * CH + j * 4096}",
            (f"buffer_load_dwordx4 v1, s[12:15], m0 offen lds", f"g{j}")]

def dma_chunk(c):
    va = 1 if c < 4 else (8 if c < 8 else 9); L = []
    for j in range(9):
        if j % 4 == 0: L.append(f"s_add_u32 m0, s39, {(c % 4) * CH + j * 1024}")
        L.append((f"buffer_load_dwordx4 v{va}, s[12:15], m0 offen offset:{(j % 4) * 1024} lds", f"d{c}"))
    return L

def group(g):
    L = []
    for ks in (2 * g, 2 * g + 1):
        for tb in range(4):
            so = "0" if ks < 4 else f"s{32 + ks // 4}"
            L.append((f"buffer_load_dwordx4 {xop(ks, tb)}, v{2+tb}, s[8:11], {so} offen offset:{(ks % 4) * 1024}", f"g{g}"))
    for c in range(3): L += dma(c, g)
    return L

def epilogue(e):
    L = []; sg = SG + 8 * (e % 2)
    A = L.append
    for pr in range(2):
        P = PP + 4 * pr
        for tb in (2 * pr, 2 * pr + 1):
            G = accr(e, 0, tb); U = accr(e, 1, tb); T = TT + 4 * (tb % 2)
            for i in range(4): A(f"v_fmac_f32 v{G+i}, v{NMEAN+tb}, v{sg+i}")
            for i in range(4): A(f"v_mul_f32 v{T+i}, v{CC+tb}, v{G+i}")
            for i in range(4): A(f"v_exp_f32 v{T+i}, v{T+i}")
            for i in range(4): A(f"v_fmac_f32 v{U+i}, v{NMEAN+tb}, v{sg+4+i}")
            for i in range(4): A(f"v_fma_f32 v{T+i}, v{T+i}, v{QQ+tb}, v{QQ+tb}")
            for i in range(4): A(f"v_rcp_f32 v{T+i}, v{T+i}")
            for i in range(4): A(f"v_mul_f32 v{G+i}, v{G+i}, v{U+i}")
            for i in range(4): A(f"v_mul_f32 v{G+i}, v{G+i}, v{T+i}")
            p = P + 2 * (tb % 2)
            A(f"v_cvt_pk_bf16_f32 v{p}, v{G}, v{G+1}")
            A(f"v_cvt_pk_bf16_f32 v{p+1}, v{G+2}, v{G+3}")
            if pr == 0 and tb == 0 and e < 8:
                sn = SG + 8 * ((e + 1) % 2)
                A((f"ds_read_b128 {v4(sn)}, v10 offset:{(e+1)*128}", f"s{e+1}"))
                A((f"ds_read_b128 {v4(sn+4)}, v10 offset:{(e+1)*128+64}", f"s{e+1}"))
        A(f"v_permlane16_swap_b32 v{P}, v{P+2}")
        A(f"v_permlane16_swap_b32 v{P+1}, v{P+3}")
        A((f"buffer_store_dwordx4 {v4(P)}, v{11+pr}, s[24:27], s45 offen {STORE_MOD}", f"hs{e}"))
    if e < 8: A("s_add_u32 s45, s45, 4096")
    return L

def gen():
    k = Kern(); N = "ffn1"; k.name = N
    entry(k, "ffn1_kernel")
    k(f"s_cmp_ge_u32 s2, {GRID}")
    k(f"s_cbranch_scc1 {N}_end")
    k.add(k.stamp(0))
    k("s_load_dwordx2 s[4:5], s[0:1], 72")
    k("v_lshrrev_b32 v13, 6, v0")
    k("v_and_b32 v14, 63, v0")
    k("v_readfirstlane_b32 s18, v13")
    k("v_lshlrev_b32 v1, 4, v14")
    k("s_and_b32 s6, s2, 7")
    k("s_lshr_b32 s7, s2, 3")
    k("s_and_b32 s16, s6, 1")
    k("s_lshl_b32 s16, s16, 2")
    k("s_lshr_b32 s17, s7, 3")
    k("s_add_u32 s16, s16, s17")
    k("s_lshr_b32 s17, s6, 1")
    k("s_lshl_b32 s17, s17, 3")
    k("s_and_b32 s7, s7, 7")
    k("s_add_u32 s17, s17, s7")
    k("s_lshl_b32 s19, s16, 4")
    k("s_lshl_b32 s6, s18, 2")
    k("s_add_u32 s19, s19, s6")
    for i in range(1, 5): k(f"s_mov_b32 s{32+i}, {4096*i}")
    k("s_lshl_b32 s38, s18, 10")
    k("s_mul_i32 s39, s18, 9216")
    k("s_mul_i32 s6, s19, 18432")
    k("v_add_u32 v2, s6, v1")
    for tb in range(1, 4): k(f"v_add_u32 v{2+tb}, 18432, v{1+tb}")
    k("v_and_b32 v13, 15, v14")
    k("v_lshrrev_b32 v15, 4, v14")
    k("s_lshl_b32 s6, s19, 10")
    k("v_add_u32 v9, s6, v1")
    k("v_min_u32 v10, 35, v14")
    k("v_lshlrev_b32 v10, 3, v10")
    k("s_mul_i32 s6, s18, 288")
    k("v_add_u32 v10, s6, v10")
    k("s_mul_i32 s42, s17, 1152")
    k("s_add_u32 s43, s42, 36864")
    k("s_add_u32 s44, s42, 73728")
    k("s_waitcnt lgkmcnt(0)")
    srd(k, 8, 4, X1, XSZ)
    srd(k, 20, 4, ST1, STSZ)
    srd(k, 28, 4, SGU, SGU_SZ)
    k(f"s_mul_i32 s6, s17, {9*CH}")
    k(f"s_add_u32 s6, s6, {WGU}")
    k("s_add_u32 s12, s4, s6"); k("s_addc_u32 s13, s5, 0"); k("s_and_b32 s13, s13, 0xffff"); k(f"s_mov_b32 s14, {9*CH}"); k("s_mov_b32 s15, 0x20000")
    if os.environ.get("PROBE"):
        k.add(k.stamp(7))
        k.add(group(0)); k.add(k.stamp(8)); k("s_waitcnt vmcnt(10)"); k.add(k.stamp(9)); k("s_waitcnt vmcnt(3)"); k.add(k.stamp(10)); k("s_waitcnt vmcnt(0)"); k.add(k.stamp(11))
        k.stamp_out(); k("s_endpgm")
    for g in range(2): k.add(group(g))
    srd(k, 24, 4, HH, H_SZ)
    k("v_add_u32 v6, 65536, v1")
    k("v_add_u32 v7, 131072, v1")
    k(f"v_add_u32 v8, {4*CH}, v1")
    k("v_and_b32 v11, 1, v15")
    k("v_mul_u32_u24 v11, 147456, v11")
    k("v_lshrrev_b32 v12, 1, v15")
    k("v_lshl_add_u32 v11, v12, 8, v11")
    k("v_lshl_add_u32 v11, v13, 4, v11")
    k("s_mul_i32 s6, s19, 147456")
    k("v_add_u32 v11, s6, v11")
    k(f"v_add_u32 v12, {2*147456}, v11")
    k("s_mul_i32 s45, s17, 4608")
    k.add(k.stamp(1))
    k("WAITVM g0")
    k("s_barrier")
    k.add(k.stamp(3))
    R0 = TT; CS = ACC + 120
    ks_ = Kern(); load_stats(ks_, 20, 9, 4, R0, "st")
    for i, sr in enumerate((42, 43, 44)):
        ks_(f"buffer_load_dwordx2 v[{CS+2*i}:{CS+2*i+1}], v10, s[28:31], s{sr} offen", "st")
    st_loads = list(ks_.ins)
    kf = Kern()
    kf("WAITVM st")
    for q in range(2):
        kf(f"v_add_f32 v{CS+q}, v{CS+q}, v{CS+2+q}")
        kf(f"v_add_f32 v{CS+q}, v{CS+q}, v{CS+4+q}")
    kf(f"v_add_u32 v10, {LDS_S}, v10")
    kf(f"ds_write_b64 v10, v[{CS}:{CS+1}]", "sw")
    finish_stats(kf, 4, R0)
    for tb in range(4):
        kf(f"v_rsq_f32 v{CC+tb}, v{R0+4*tb+1}")
        kf(f"v_sub_f32 v{NMEAN+tb}, 0, v{R0+4*tb}")
        kf(f"v_mov_b32 v{QQ+tb}, v{R0+4*tb+1}")
        kf(f"v_mul_f32 v{CC+tb}, {f2u(-math.log2(math.e))}, v{CC+tb}")
    kf("v_lshlrev_b32 v10, 4, v15")
    kf(f"v_add_u32 v10, {LDS_S}, v10")
    kf(f"v_add_u32 v9, {8*CH}, v1")
    st_fin = list(kf.ins)
    mf = []; fixed = {}; flow = []
    def fx(i, x): fixed.setdefault(i, []).extend(x if isinstance(x, list) else [x])
    def spread(items, g0, g1, dense=False):
        vm = [x for x in items if not (isinstance(x, str) and x.startswith("s_add_u32 m0"))]
        step = (g1 - g0) / len(vm); n = 0; pend = None; last = -1
        for x in items:
            if isinstance(x, str) and x.startswith("s_add_u32 m0"): pend = x; continue
            g = int(g0 + (n + 0.5) * step); n += 1
            g = max(g, last + 1)
            while g % 4 in ((0,) if dense else (0, 1)) or any(unit_cost(as_ins(y)) for y in fixed.get(g, [])) or (pend and any(as_ins(y).kind == "dma" for y in fixed.get(g - 1, []))): g += 1
            last = g
            if pend: fx(g - 1, pend); pend = None
            fx(g, x)
    PB = (ACC + 96, WB)
    for c in range(3):
        for gu in range(2): k.add([rd(PB[0] + 8 * c + 4 * gu, c, 0, gu)])
    k("WAITLG w0_0")
    for ks in range(18):
        g = ks // 2; i0 = len(mf)
        if ks % 2 == 1:
            fx(i0 - 3, f"WAITVM g{g+1}" if g < 8 else "WAITVM d3")
            if g == 8: fx(i0 - 4, "WAITLG sw")
            fx(i0 - 2, ["s_barrier"] + (k.stamp(4 + g // 3) if g in (2, 5, 8) and not FINE else []) + (k.stamp(4 + g) if FINE else []))
            ext = group(g + P1_DIST) if g + P1_DIST <= 8 else []
            if g == 6:
                spread(st_loads + dma_chunk(3), i0, i0 + 68)
                flow += [(x, i0 + 36) for x in st_fin]
            if ext: spread(ext, i0, i0 + 44)
        if ks == 0: spread(group(2), 0, 20, dense=True)
        for c in range(3):
            for gu in range(2):
                for tb in range(4):
                    a = accr(c, gu, tb); w = PB[ks % 2] + 8 * c + 4 * gu
                    i = len(mf)
                    if gu == 0 and tb == 0 and i > 0: fx(i - 1, f"WAITLG w{c}_{ks}")
                    mf.append(f"v_mfma_f32_16x16x32_bf16 {v4(a)}, {v4(w)}, {xop(ks, tb)}, {'0' if ks == 0 else v4(a)}")
                    if tb == 0 and ks < 17: fx(i, rd(PB[(ks + 1) % 2] + 8 * c + 4 * gu, c, ks + 1, gu))
                    if ks == 17 and c >= 1 and tb == 0: fx(i, rd(WB + 8 * (c - 1) + 4 * gu, 3, c - 1, gu))
                    if ks == 17 and c == 0 and tb == 1:
                        flow.append(((f"ds_read_b128 {v4(SG + 4*gu)}, v10 offset:{64*gu}", "s0"), i))
    flow.append(("WAITLG s0", len(mf) + 1))
    for e in range(3): flow += [(x, len(mf) + 1) for x in epilogue(e)]
    for c in range(3, 9):
        i0 = len(mf)
        if c == 3: fx(i0 - 2, "s_barrier")
        for ks in range(18):
            for gu in range(2):
                for tb in range(4):
                    a = accr(c, gu, tb); w = WB + 8 * (ks % 3) + 4 * gu
                    i = len(mf)
                    if gu == 0 and tb == 0:
                        fx(i - 1, f"WAITLG w{c}_{ks}")
                        if ks == 16 and c < 8:
                            fx(i - 3, f"WAITVM d{c+1}"); fx(i - 2, ["s_barrier"] + ([] if FINE else k.stamp(4 + c)))
                    mf.append(f"v_mfma_f32_16x16x32_bf16 {v4(a)}, {v4(w)}, {xop(ks, tb)}, {'0' if ks == 0 else v4(a)}")
                    if tb == 0:
                        c2, k2 = (c, ks + 2) if ks < 16 else (c + 1, ks - 16)
                        if c2 < 9: fx(i, rd(WB + 8 * (k2 % 3) + 4 * gu, c2, k2, gu))
        for dc, k0, k1 in {3: [(4, 0, 64), (5, 72, 140)], 4: [(6, 0, 120)], 5: [(7, 0, 120)], 6: [(8, 0, 120)]}.get(c, []):
            spread(dma_chunk(dc), i0 + k0, i0 + k1)
        flow += [(x, len(mf) + 2) for x in epilogue(c)]
    if NOEPI: flow = flow[:len(st_fin)]
    left, over = pack(k, mf, fixed, flow, units=UNITS)
    print("ffn1 leftover instrs:", len(left), "overfull units:", over)
    if not FINE: k.add(k.stamp(12))
    k.add(left)
    k.stamp_out()
    k(f"{N}_end:")
    k("s_endpgm")
    if not NOEPI: check_deadlines(k)
    iw = [i for i, x in enumerate(k.ins) if x.tag == "sw"][0]; ir = [i for i, x in enumerate(k.ins) if x.tag == "s0"][0]
    assert any(x.op == "s_barrier" for x in k.ins[iw + 3:ir]), "s-table write/read not separated by a barrier"
    return k, [("ffn1_kernel", GRID, 256, LDS)], descriptor("ffn1_kernel", 244, 256), ["ffn1_kernel"]

def check_deadlines(k):
    state = {}
    for x in k.ins:
        if x.kind == "mfma":
            r = x.dst[0]
            if x.ops[3] == "0":
                assert state.get(r, "done") == "done", f"acc {r} restarted before its epilogue finished"
            state[r] = "acc"
            for q in x.dst: state[q] = "acc"
        elif x.kind == "valu":
            if x.op == "v_cvt_pk_bf16_f32":
                for q in x.src:
                    g = int(q[1:]); base = g - (g - ACC) % 4
                    if g == base + 2 or g == base + 3:
                        for i in range(4): state[f"v{base+i}"] = "done"; state[f"v{base+16+i}"] = "done"
```

```python
from asmgen import *
from layout import *
from k_prep import srd, entry, xreduce

GRID = 256
LDS = 56 * 1024
ACC = 32
def acc(tb, b): return ACC + 4 * (tb * 6 + b)
def v4(r): return f"v[{r}:{r+3}]"
def a4(r): return f"a[{r}:{r+3}]"
F = 128
T = 144
RES = 208

def loads(s, half=None):
    b0 = 68 * s; L = []
    if half != 1:
        for b in range(4): L.append((b, f"buffer_load_dwordx4 {a4(b0+4*b)}, v1, s[12:15], s34 offen offset:{b*1024}"))
        for tb in range(4): L.append((4, f"buffer_load_dwordx4 {a4(b0+16+4*tb)}, v{4+tb}, s[8:11], s35 offen"))
    if half != 0:
        for b in range(4): L.append((5 + b, f"buffer_load_dwordx4 {a4(b0+32+4*b)}, v2, s[12:15], s34 offen offset:{b*1024}"))
    L.append((9, f"buffer_load_dwordx4 {a4(b0+48)}, v3, s[12:15], s34 offen"))
    if half != 0:
        for tb in range(4): L.append((9, f"buffer_load_dwordx4 {a4(b0+52+4*tb)}, v{4+tb}, s[8:11], s35 offen offset:1024"))
    return L

def adv(k):
    k("s_add_u32 s34, s34, 9216")
    k("s_add_u32 s35, s35, 2048")

def compute(k, s, refill, w2=None, groups=range(10)):
    b0 = 68 * s
    L = loads(s) if refill else []
    for g in groups:
        if g == 4 and w2 is not None: k(f"s_waitcnt vmcnt({w2})")
        pend = [x[1] for x in L if x[0] == g - 1]
        for tb in range(4):
            if g < 4:    w, h, a = b0 + 4 * g, b0 + 16 + 4 * tb, acc(tb, g)
            elif g == 4: w, h, a = b0 + 48, b0 + 16 + 4 * tb, acc(tb, 4)
            elif g < 9:  w, h, a = b0 + 32 + 4 * (g - 5), b0 + 52 + 4 * tb, acc(tb, g - 5)
            else:        w, h, a = b0 + 48, b0 + 52 + 4 * tb, acc(tb, 5)
            k(f"v_mfma_f32_16x16x32_bf16 {v4(a)}, {a4(w)}, {a4(h)}, {v4(a)}")
            if pend: k(pend.pop(0))
    if refill:
        for x in L:
            if x[0] == 9: k(x[1])
        adv(k)

def gen():
    k = Kern(); N = "gk"; k.name = N
    variants = [("wo1_kernel", OO, 72, WO, 9, XF0, X1, ST1), ("wo2_kernel", OO, 72, WO, 9, X2, X1, ST1),
                ("down1_kernel", HH, 576, WD, 72, X1, X2, ST2), ("down2_kernel", HH, 576, WD, 72, X1, None, ST2)]
    for name, act, ko, w, npair, res, out, st in variants:
        entry(k, name)
        k("s_load_dwordx2 s[4:5], s[0:1], 72")
        if out is None: k("s_load_dwordx2 s[6:7], s[0:1], 56")
        k(f"s_mov_b32 s40, {act}")
        k(f"s_mov_b32 s41, {ko*256}")
        k(f"s_mov_b32 s42, {w}")
        k(f"s_mov_b32 s43, {npair}")
        k(f"s_mov_b32 s44, {res}")
        k(f"s_mov_b32 s45, {st}")
        k(f"s_mov_b32 s46, {256 if out is not None else 16}")
        k(f"s_mov_b32 s47, {16 if out is not None else 1152}")
        k(f"s_mov_b32 s52, {out if out is not None else -1}")
        if name != variants[-1][0]: k(f"s_branch {N}_main")
    k(f"{N}_main:")
    k(f"s_cmp_ge_u32 s2, {GRID}")
    k(f"s_cbranch_scc1 {N}_end")
    k.add(k.stamp(0))
    k("v_lshrrev_b32 v8, 6, v0")
    k("v_and_b32 v9, 63, v0")
    k("v_readfirstlane_b32 s18, v8")
    k("v_lshlrev_b32 v1, 4, v9")
    k("s_and_b32 s20, s2, 7")
    k("s_lshr_b32 s21, s2, 3")
    k("s_lshr_b32 s16, s20, 1")
    k("s_lshl_b32 s16, s16, 3")
    k("s_lshr_b32 s22, s21, 2")
    k("s_add_u32 s16, s16, s22")
    k("s_and_b32 s17, s20, 1")
    k("s_lshl_b32 s17, s17, 2")
    k("s_and_b32 s22, s21, 3")
    k("s_add_u32 s17, s17, s22")
    k("v_add_u32 v2, 4096, v1")
    k("v_add_u32 v3, 8192, v1")
    k("v_mov_b32 v4, v1")
    k("v_add_u32 v5, s41, v4")
    k("v_add_u32 v6, s41, v5")
    k("v_add_u32 v7, s41, v6")
    k("s_lshl_b32 s10, s41, 2")
    k("s_mul_i32 s21, s10, s16")
    k("s_add_u32 s21, s21, s40")
    k("s_mul_i32 s14, s43, 9216")
    k("s_mul_i32 s22, s14, s17")
    k("s_add_u32 s22, s22, s42")
    k("s_mov_b32 s11, 0x20000")
    k("s_mov_b32 s15, 0x20000")
    k("s_cmp_eq_u32 s43, 9")
    k("s_cselect_b32 s23, 2, 18")
    k("s_mul_i32 s20, s18, s23")
    k("s_waitcnt lgkmcnt(0)")
    k("s_add_u32 s8, s4, s21"); k("s_addc_u32 s9, s5, 0"); k("s_and_b32 s9, s9, 0xffff")
    k("s_add_u32 s12, s4, s22"); k("s_addc_u32 s13, s5, 0"); k("s_and_b32 s13, s13, 0xffff")
    k("s_cmp_eq_u32 s23, 2")
    k("s_cselect_b32 s53, s18, 2")
    k(f"s_mov_b32 s34, {8*9216}")
    k(f"s_mov_b32 s35, {8*2048}")
    k("s_cmp_eq_u32 s53, 0")
    k(f"s_cbranch_scc0 {N}_l1")
    for _, t in loads(2, 0): k(t)
    k(f"{N}_l1:")
    k("s_cmp_eq_u32 s53, 1")
    k(f"s_cbranch_scc0 {N}_l2")
    for _, t in loads(2, 1): k(t)
    k(f"{N}_l2:")
    k("s_mul_i32 s34, s20, 9216")
    k("s_lshl_b32 s35, s20, 11")
    for _, t in loads(0): k(t)
    adv(k)
    k("s_add_u32 s24, s4, s44"); k("s_addc_u32 s25, s5, 0"); k("s_and_b32 s25, s25, 0xffff"); k(f"s_mov_b32 s26, {XSZ}"); k("s_mov_b32 s27, 0x20000")
    k("v_and_b32 v10, 15, v9")
    k("v_bfe_u32 v12, v9, 4, 1")
    k("v_lshrrev_b32 v13, 5, v9")
    k("v_lshl_add_u32 v12, v12, 1, v13")
    k("v_lshlrev_b32 v17, 4, v10")
    k("v_lshl_add_u32 v16, v12, 8, v17")
    k("s_lshl_b32 s30, s16, 2")
    k("s_add_u32 s30, s30, s18")
    k("s_mul_i32 s31, s30, 18432")
    k("s_mul_i32 s32, s17, 9")
    k("s_lshl_b32 s20, s32, 8")
    k("s_add_u32 s20, s20, s31")
    k(f"buffer_load_dwordx4 {v4(RES)}, v16, s[24:27], s20 offen")
    k(f"buffer_load_dwordx4 {v4(RES+4)}, v16, s[24:27], s20 offen offset:1024")
    k(f"buffer_load_dwordx4 {v4(RES+8)}, v17, s[24:27], s20 offen offset:2048")
    for r in range(ACC, ACC + 96): k(f"v_mov_b32 v{r}, 0")
    for _, t in loads(1): k(t)
    adv(k)
    k("s_cmp_eq_u32 s52, -1")
    k(f"s_cbranch_scc1 {N}_o1")
    k("s_add_u32 s6, s4, s52")
    k("s_addc_u32 s7, s5, 0")
    k(f"{N}_o1:")
    k("s_mov_b32 s36, s6"); k("s_and_b32 s37, s7, 0xffff"); k(f"s_mov_b32 s38, {XSZ}"); k("s_mov_b32 s39, 0x20000")
    k("s_add_u32 s24, s4, s45"); k("s_addc_u32 s25, s5, 0"); k("s_and_b32 s25, s25, 0xffff"); k(f"s_mov_b32 s26, {STSZ}")
    k("v_lshlrev_b32 v18, 4, v10")
    k("v_mul_lo_u32 v17, v10, s47")
    k("v_mul_lo_u32 v16, v12, s46")
    k("v_add_u32 v16, v16, v17")
    k("s_mul_i32 s48, s32, s46")
    k("s_add_u32 s48, s48, s31")
    k("s_lshl_b32 s20, s46, 2")
    k("s_add_u32 s49, s48, s20")
    k("s_add_u32 s50, s49, s20")
    k("s_lshl_b32 s51, s30, 10")
    k("s_lshr_b32 s20, s17, 1")
    k("s_lshl_b32 s20, s20, 8")
    k("s_add_u32 s51, s51, s20")
    k("s_and_b32 s20, s17, 1")
    k("s_lshl_b32 s20, s20, 3")
    k("s_add_u32 s51, s51, s20")
    k("s_mul_i32 s20, s18, 12288")
    k("v_add_u32 v19, s20, v1")
    k("s_and_b32 s20, s18, 1")
    k("s_lshl_b32 s20, s20, 9")
    k("v_xor_b32 v14, s20, v1")
    k("s_lshr_b32 s20, s18, 1")
    k("s_lshl_b32 s20, s20, 12")
    k("v_add_u32 v14, s20, v14")
    k.add(k.stamp(1))
    k("s_cmp_eq_u32 s23, 2")
    k(f"s_cbranch_scc0 {N}_down")
    k("s_waitcnt vmcnt(37)")
    k("s_cmp_eq_u32 s53, 0")
    k(f"s_cbranch_scc0 {N}_c1")
    compute(k, 2, False, groups=range(5))
    k(f"{N}_c1:")
    k("s_cmp_eq_u32 s53, 1")
    k(f"s_cbranch_scc0 {N}_fin")
    compute(k, 2, False, groups=range(5, 10))
    k(f"s_branch {N}_fin")
    k(f"{N}_down:")
    k("s_mov_b32 s22, 8")
    k(".p2align 3")
    k(f"{N}_loop:")
    for s in range(2):
        k("s_waitcnt vmcnt(17)")
        compute(k, s, True)
    k("s_sub_u32 s22, s22, 1")
    k("s_cmp_lg_u32 s22, 0")
    k(f"s_cbranch_scc1 {N}_loop")
    k(f"{N}_fin:")
    k.add(k.stamp(2))
    k("s_waitcnt vmcnt(26)")
    compute(k, 0, False, 17)
    k("s_waitcnt vmcnt(9)")
    compute(k, 1, False, 0)
    k.add(k.stamp(3))
    for w in range(4):
        if w < 3:
            k(f"s_cmp_lg_u32 s18, {w}")
            k(f"s_cbranch_scc1 {N}_x{w+1}")
        for ow in range(4):
            if ow == w: continue
            ss = (w - ow - 1) % 4
            for b in range(4): k(f"ds_write_b128 v1, {v4(acc(ow, b))} offset:{((ow*3+ss)*4+b)*1024}")
        for b in range(4):
            for i in range(4): k(f"v_mov_b32 v{F+4*b+i}, v{acc(w, b)+i}")
        if w < 3:
            k(f"s_branch {N}_xdone")
            k(f"{N}_x{w+1}:")
    k(f"{N}_xdone:")
    for p in range(2):
        for i in range(4):
            k(f"v_permlane32_swap_b32 v{acc(2*p,4)+i}, v{acc(2*p+1,4)+i}")
            k(f"v_permlane32_swap_b32 v{acc(2*p,5)+i}, v{acc(2*p+1,5)+i}")
    for p in range(2):
        for i in range(4): k(f"v_add_f32 v{acc(2*p,4)+i}, v{acc(2*p,4)+i}, v{acc(2*p+1,5)+i}")
    k("s_lshl_b32 s20, s18, 10")
    k("v_add_u32 v15, s20, v1")
    for p in range(2): k(f"ds_write_b128 v15, {v4(acc(2*p,4))} offset:{49152 + p*4096}")
    k("v_mov_b32 v20, 0")
    k("v_mov_b32 v21, 0")
    k("v_mov_b32 v22, 0xffff0000")
    k("v_mov_b32 v23, 0x3f803f80")
    k("s_waitcnt lgkmcnt(0)")
    k("s_barrier")
    k.add(k.stamp(4))
    for b in range(4):
        for ss in range(3): k(f"ds_read_b128 {v4(T+4*(b*3+ss))}, v19 offset:{(ss*4+b)*1024}", f"r{b}")
    Z = ACC + 32
    for ss in range(3): k(f"ds_read_b128 {v4(Z+4*ss)}, v14 offset:{49152 + ss*1024}", f"z{ss}")
    def summ(b):
        k(f"WAITLG r{b}")
        if b == 0: k(f"ds_read_b128 {v4(Z+12)}, v14 offset:{49152 + 3*1024}", "z3")
        for i in range(4):
            k(f"v_add_f32 v{F+4*b+i}, v{F+4*b+i}, v{T+12*b+i}")
            k(f"v_add_f32 v{T+12*b+4+i}, v{T+12*b+4+i}, v{T+12*b+8+i}")
        for i in range(4): k(f"v_add_f32 v{F+4*b+i}, v{F+4*b+i}, v{T+12*b+4+i}")
    def finish(x, y, res, pk, va, so):
        for q in range(4):
            k(f"v_lshlrev_b32 v24, 16, v{res+q}")
            k(f"v_and_b32 v25, v22, v{res+q}")
            r = (x, x + 2, y, y + 2)[q]
            k(f"v_add_f32 v{r}, v{r}, v24")
            k(f"v_add_f32 v{r+1}, v{r+1}, v25")
            k(f"v_cvt_pk_bf16_f32 v{pk+q}, v{r}, v{r+1}")
        k(f"buffer_store_dwordx4 {v4(pk)}, v{va}, s[36:39], s{so} offen")
        for q in range(4):
            k(f"v_dot2c_f32_bf16 v20, v{pk+q}, v23")
            k(f"v_dot2c_f32_bf16 v21, v{pk+q}, v{pk+q}")
    for pr in range(2):
        summ(2 * pr); summ(2 * pr + 1)
        for i in range(4): k(f"v_permlane16_swap_b32 v{F+8*pr+i}, v{F+8*pr+4+i}")
        finish(F + 8 * pr, F + 8 * pr + 4, RES + 4 * pr, ACC + 4 * pr, 16, 48 + pr)
    k("WAITLG z3")
    for i in range(4):
        k(f"v_add_f32 v{Z+i}, v{Z+i}, v{Z+4+i}")
        k(f"v_add_f32 v{Z+8+i}, v{Z+8+i}, v{Z+12+i}")
    for i in range(4): k(f"v_add_f32 v{Z+i}, v{Z+i}, v{Z+8+i}")
    for i in range(4): k(f"v_mov_b32 v{Z+4+i}, v{Z+i}")
    for i in range(4): k(f"v_permlane16_swap_b32 v{Z+i}, v{Z+4+i}")
    k("s_mov_b64 exec, 0xffff")
    finish(Z, Z + 4, RES + 8, ACC + 8, 17, 50)
    k("s_mov_b64 exec, -1")
    xreduce(k, [20, 21], [24, 25])
    k("s_mov_b64 exec, 0xffff")
    k("buffer_store_dwordx2 v[20:21], v18, s[24:27], s51 offen")
    k.add(k.stamp(5))
    k.stamp_out()
    k(f"{N}_end:")
    k("s_endpgm")
    L = lambda *a: {f"{N}_{x}" for x in a}
    k.only_paths = [L("l2", "c1", ), L("l1", "c1"), L("l1", "l2", "c1", "fin"), L("l1", "l2", "down"), L("l1", "l2", "down", "o1", "x1"),
                    L("l1", "l2", "down", "x1", "x2"), L("l1", "l2", "down", "x1", "x2", "x3"), L("l2", "fin")]
    names = [v[0] for v in variants]
    return k, [(n, GRID, 256, LDS) for n in names], "".join(descriptor(n, 220, 204) for n in names), names
```

```python
from asmgen import *
from layout import *

def srd(k, d, p, off, size):
    if off:
        k(f"s_add_u32 s{d}, s{p}, {off}")
        k(f"s_addc_u32 s{d+1}, s{p+1}, 0")
        k(f"s_and_b32 s{d+1}, s{d+1}, 0xffff")
    else:
        k(f"s_mov_b32 s{d}, s{p}")
        k(f"s_and_b32 s{d+1}, s{p+1}, 0xffff")
    k(f"s_mov_b32 s{d+2}, {size}")
    k(f"s_mov_b32 s{d+3}, 0x20000")

def entry(k, name):
    k(f".globl {name}")
    k(".p2align 8")
    k(f".type {name},@function")
    k(f"{name}:")

def xreduce(k, regs, tmp, op="v_add_f32"):
    for sw in ("v_permlane16_swap_b32", "v_permlane32_swap_b32"):
        for r, t in zip(regs, tmp): k(f"v_mov_b32 v{t}, v{r}")
        for r, t in zip(regs, tmp): k(f"{sw} v{r}, v{t}")
        for r, t in zip(regs, tmp): k(f"{op} v{r}, v{r}, v{t}")

N_X, N_QKV, N_WO, N_GU, N_WD = 32, 36, 9, 216, 72
PREP_GRID = N_X + N_QKV + N_WO + N_GU + N_WD
PREP_LDS = 64 * 1184

for _t in range(192): assert (_t * 171) >> 10 == _t // 6

def gen_prep():
    k = Kern(); N = "prep"
    entry(k, "prep_kernel")
    k(f"s_cmp_ge_u32 s2, {PREP_GRID}")
    k(f"s_cbranch_scc1 {N}_end")
    k("s_load_dwordx4 s[4:7], s[0:1], 0")
    k("s_load_dwordx2 s[8:9], s[0:1], 16")
    k("s_load_dwordx4 s[12:15], s[0:1], 32")
    k("s_load_dwordx2 s[10:11], s[0:1], 48")
    k("s_load_dwordx2 s[16:17], s[0:1], 72")
    k("v_lshrrev_b32 v1, 6, v0")
    k("v_and_b32 v2, 63, v0")
    k("v_readfirstlane_b32 s18, v1")
    k("v_lshlrev_b32 v3, 4, v2")
    k("v_mov_b32 v4, 0x3f803f80")
    k("v_lshrrev_b32 v5, 5, v2")
    k("v_lshlrev_b32 v5, 4, v5")
    k("v_bfe_u32 v6, v2, 4, 1")
    k("v_lshl_add_u32 v5, v6, 2, v5")
    k("v_bfe_u32 v6, v2, 2, 2")
    k("v_add_u32 v5, v5, v6")
    k("v_and_b32 v6, 3, v2")
    k("s_waitcnt lgkmcnt(0)")
    srd(k, 24, 16, 0, WS_END)
    k(f"s_cmp_lt_u32 s2, {N_X}")
    k(f"s_cbranch_scc1 {N}_x")
    k(f"s_cmp_lt_u32 s2, {N_X+N_QKV}")
    k(f"s_cbranch_scc1 {N}_qkv")
    k(f"s_cmp_lt_u32 s2, {N_X+N_QKV+N_WO}")
    k(f"s_cbranch_scc1 {N}_wo")
    k(f"s_cmp_lt_u32 s2, {N_X+N_QKV+N_WO+N_GU}")
    k(f"s_cbranch_scc1 {N}_gu")

    def perm(dst, src, tmp):
        k(f"v_and_b32 v{dst}, 0xfffffff3, v{src}")
        k(f"v_bfe_u32 v{tmp}, v{src}, 2, 1")
        k(f"v_lshl_add_u32 v{dst}, v{tmp}, 3, v{dst}")
        k(f"v_bfe_u32 v{tmp}, v{src}, 3, 1")
        k(f"v_lshl_add_u32 v{dst}, v{tmp}, 2, v{dst}")

    def frags(items, stride, tagp):
        for i, (vb, imm, so, dimm, cs) in enumerate(items):
            r = 32 + 4 * (i % 18)
            k(f"ds_read_b64_tr_b16 v[{r}:{r+1}], v{vb} offset:{imm}", f"{tagp}{i}")
            k(f"ds_read_b64_tr_b16 v[{r+2}:{r+3}], v{vb} offset:{imm + 8*stride}", f"{tagp}{i}")
            if i >= 3:
                j = i - 3
                fin(items[j], j, tagp)
        for j in range(max(0, len(items) - 3), len(items)): fin(items[j], j, tagp)
    def fin(item, j, tagp):
        vb, imm, so, dimm, cs = item
        r = 32 + 4 * (j % 18)
        k(f"WAITLG {tagp}{j}")
        k(f"buffer_store_dwordx4 v[{r}:{r+3}], v3, s[24:27], s{so} offen offset:{dimm}")
        if cs is not None:
            for q in range(4): k(f"v_dot2c_f32_bf16 v{cs}, v{r+q}, v4")

    k(f"s_sub_u32 s20, s2, {N_X+N_QKV+N_WO+N_GU}")
    srd(k, 28, 10, 0, WD_SZ)
    k("v_lshrrev_b32 v7, 3, v0")
    k("s_lshl_b32 s21, s20, 6")
    k("v_add_u32 v8, s21, v7")
    k("v_add_u32 v9, 32, v8")
    k(f"s_mul_i32 s22, s20, 9216")
    k(f"s_add_u32 s22, s22, {WD}")
    k(f"s_mov_b32 s23, {72*9216}")
    k(f"s_branch {N}_dn_common")
    k(f"{N}_wo:")
    k(f"s_sub_u32 s20, s2, {N_X+N_QKV}")
    srd(k, 28, 8, 0, WO_SZ)
    k("v_lshrrev_b32 v7, 3, v0")
    k("s_lshl_b32 s21, s20, 6")
    k(f"s_mul_i32 s22, s20, 9216")
    k(f"s_add_u32 s22, s22, {WO}")
    k(f"s_mov_b32 s23, {9*9216}")
    for jj, dst in ((0, 8), (1, 9)):
        k(f"v_add_u32 v10, s21, v7")
        if jj: k("v_add_u32 v10, 32, v10")
        k("v_lshrrev_b32 v11, 4, v10")
        k("v_mul_u32_u24 v12, 18, v11")
        k("v_and_b32 v13, 15, v10")
        k("v_add_u32 v12, v12, v13")
        k("v_and_b32 v13, 1, v11")
        k("v_lshl_add_u32 v12, v13, 1, v12")
        k("v_subrev_u32 v11, 512, v10")
        k("v_lshrrev_b32 v11, 1, v11")
        k("v_and_b32 v11, 31, v11")
        k("v_mul_u32_u24 v13, 18, v11")
        k("v_and_b32 v14, 1, v10")
        k("v_add_u32 v13, v13, v14")
        k("v_and_b32 v14, 1, v11")
        k("v_xor_b32 v14, 1, v14")
        k("v_lshl_add_u32 v13, v14, 4, v13")
        k("v_cmp_gt_u32 vcc, 512, v10")
        k(f"v_cndmask_b32 v{dst}, v13, v12, vcc")
    k(f"{N}_dn_common:")
    k("v_and_b32 v10, 7, v0")
    k("v_lshlrev_b32 v10, 4, v10")
    k("v_mul_u32_u24 v8, 1152, v8")
    k("v_mul_u32_u24 v9, 1152, v9")
    k("v_add_u32 v8, v8, v10")
    k("v_add_u32 v9, v9, v10")
    for jj in range(2):
        for jc in range(9):
            r = 32 + 4 * (jj * 9 + jc)
            k(f"buffer_load_dwordx4 v[{r}:{r+3}], v{8+jj}, s[28:31], 0 offen offset:{jc*128}", f"dl{jj*9+jc}")
    perm(11, 7, 12)
    k("v_mul_u32_u24 v11, 1184, v11")
    k("v_add_u32 v11, v11, v10")
    for jj in range(2):
        for jc in range(9):
            r = 32 + 4 * (jj * 9 + jc)
            k(f"WAITVM dl{jj*9+jc}")
            k(f"ds_write_b128 v11, v[{r}:{r+3}] offset:{jj*32*1184 + jc*128}")
    k("v_mul_u32_u24 v12, 1184, v5")
    k("s_mul_i32 s21, s18, 288")
    k("v_add_u32 v12, s21, v12")
    k("v_and_b32 v14, 1, v6")
    k("v_lshl_add_u32 v13, v14, 3, v12")
    k("v_lshrrev_b32 v14, 1, v6")
    k(f"v_mul_u32_u24 v14, {32*1184}, v14")
    k("v_add_u32 v13, v13, v14")
    k("v_lshl_add_u32 v12, v6, 3, v12")
    k("s_lshl_b32 s21, s18, 1")
    k("s_mul_i32 s21, s21, s23")
    k("s_add_u32 s32, s22, s21")
    k("s_add_u32 s33, s32, 4096")
    k("s_add_u32 s34, s32, 8192")
    k("s_add_u32 s35, s32, s23")
    k("s_add_u32 s36, s35, 4096")
    k("s_add_u32 s37, s35, 8192")
    k("s_waitcnt lgkmcnt(0)")
    k("s_barrier")
    items = []
    for nn in range(2):
        for ks in range(2):
            for b in range(4):
                items.append((12, 144*nn + 32*b + ks*32*1184, 32 + 3*nn + ks, b*1024, None))
        items.append((13, 144*nn + 128, 32 + 3*nn + 2, 0, None))
    frags(items, 1184, "df")
    k("s_endpgm")

    k(f"{N}_gu:")
    k(f"s_sub_u32 s20, s2, {N_X+N_QKV+N_WO}")
    k("s_cmp_ge_u32 s20, 108")
    k("s_cselect_b32 s21, 1, 0")
    k("s_cselect_b32 s4, s14, s12")
    k("s_cselect_b32 s5, s15, s13")
    k("s_mul_i32 s22, s21, 108")
    k("s_sub_u32 s20, s20, s22")
    k("s_mul_i32 s22, s20, 43691")
    k("s_lshr_b32 s22, s22, 17")
    k("s_mul_i32 s23, s22, 3")
    k("s_sub_u32 s23, s20, s23")
    srd(k, 28, 4, 0, 576 * 4608 * 2)
    k("v_lshrrev_b32 v7, 4, v0")
    k("v_and_b32 v10, 15, v0")
    k("v_lshlrev_b32 v10, 4, v10")
    k("v_mul_u32_u24 v8, 9216, v7")
    k("v_add_u32 v8, v8, v10")
    k(f"s_mul_i32 s32, s23, {192*9216}")
    k("s_lshl_b32 s33, s22, 8")
    k("s_add_u32 s32, s32, s33")
    for j in range(12):
        r = 32 + 4 * j
        k(f"buffer_load_dwordx4 v[{r}:{r+3}], v8, s[28:31], s32 offen", f"gl{j}")
        if j < 11: k(f"s_add_u32 s32, s32, {16*9216}")
    perm(11, 7, 12)
    k("v_mul_u32_u24 v11, 288, v11")
    k("v_add_u32 v11, v11, v10")
    for j in range(12):
        r = 32 + 4 * j
        k(f"WAITVM gl{j}")
        k(f"ds_write_b128 v11, v[{r}:{r+3}] offset:{j*16*288}")
    k("v_mul_u32_u24 v12, 288, v5")
    k("s_lshl_b32 s33, s18, 6")
    k("v_add_u32 v12, s33, v12")
    k("v_lshl_add_u32 v12, v6, 3, v12")
    k("s_lshl_b32 s32, s22, 3")
    k("s_lshl_b32 s33, s18, 1")
    k("s_add_u32 s38, s32, s33")
    k("s_mul_i32 s32, s38, 18")
    k("s_mul_i32 s33, s23, 6")
    k("s_add_u32 s32, s32, s33")
    k("s_lshl_b32 s32, s32, 11")
    k("s_lshl_b32 s33, s21, 10")
    k("s_add_u32 s32, s32, s33")
    k(f"s_add_u32 s32, s32, {WGU}")
    k("s_add_u32 s33, s32, 4096")
    k("s_add_u32 s34, s32, 8192")
    k(f"s_add_u32 s35, s32, {18*2048}")
    k("s_add_u32 s36, s35, 4096")
    k("s_add_u32 s37, s35, 8192")
    k("v_mov_b32 v16, 0")
    k("v_mov_b32 v17, 0")
    k("s_waitcnt lgkmcnt(0)")
    k("s_barrier")
    items = []
    for bb in range(2):
        for ks in range(6):
            items.append((12, 32*bb + ks*32*288, 32 + 3*bb + ks//2, (ks % 2)*2048, 16 + bb))
    frags(items, 288, "gf")
    xreduce(k, [16, 17], [18, 19])
    k("s_mul_i32 s32, s23, 36864")
    k("s_lshl_b32 s33, s38, 7")
    k("s_add_u32 s32, s32, s33")
    k("s_lshl_b32 s33, s21, 6")
    k("s_add_u32 s32, s32, s33")
    k(f"s_add_u32 s32, s32, {SGU}")
    k("v_and_b32 v18, 15, v2")
    k("v_lshlrev_b32 v18, 2, v18")
    k("buffer_store_dword v16, v18, s[24:27], s32 offen")
    k("buffer_store_dword v17, v18, s[24:27], s32 offen offset:128")
    k("s_endpgm")

    k(f"{N}_qkv:")
    k(f"s_sub_u32 s20, s2, {N_X}")
    k("s_mul_i32 s22, s20, 43691")
    k("s_lshr_b32 s22, s22, 17")
    k("s_mul_i32 s23, s22, 3")
    k("s_sub_u32 s23, s20, s23")
    srd(k, 28, 6, 0, WQKV_SZ)
    k("s_cmp_eq_u32 s18, 3")
    k(f"s_cbranch_scc1 {N}_qkv_noload")
    k("v_mul_u32_u24 v7, 171, v0")
    k("v_lshrrev_b32 v7, 10, v7")
    k("v_mul_u32_u24 v10, 6, v7")
    k("v_sub_u32 v10, v0, v10")
    k("v_lshlrev_b32 v10, 4, v10")
    k("v_mul_u32_u24 v8, 3456, v7")
    k("v_add_u32 v8, v8, v10")
    k(f"s_mul_i32 s32, s23, {192*3456}")
    k("s_mul_i32 s33, s22, 288")
    k("s_add_u32 s32, s32, s33")
    for jj in range(6):
        for jc in range(3):
            r = 32 + 4 * (jj * 3 + jc)
            k(f"buffer_load_dwordx4 v[{r}:{r+3}], v8, s[28:31], s32 offen offset:{jc*96}", f"ql{jj*3+jc}")
        if jj < 5: k(f"s_add_u32 s32, s32, {32*3456}")
    perm(11, 7, 12)
    k("v_mul_u32_u24 v11, 288, v11")
    k("v_add_u32 v11, v11, v10")
    for jj in range(6):
        for jc in range(3):
            r = 32 + 4 * (jj * 3 + jc)
            k(f"WAITVM ql{jj*3+jc}")
            k(f"ds_write_b128 v11, v[{r}:{r+3}] offset:{jj*32*288 + jc*96}")
    k(f"{N}_qkv_noload:")
    k("v_mul_u32_u24 v13, 288, v5")
    k("s_mul_i32 s33, s18, 72")
    k("v_add_u32 v12, s33, v13")
    k("v_lshl_add_u32 v12, v6, 3, v12")
    k("v_mul_u32_u24 v14, 72, v6")
    k("v_add_u32 v13, v13, v14")
    k("s_mul_i32 s32, s22, 18")
    k("s_mul_i32 s33, s23, 6")
    k("s_add_u32 s32, s32, s33")
    k("s_mul_i32 s32, s32, 9216")
    k(f"s_add_u32 s39, s32, {WQKV}")
    k("s_lshl_b32 s33, s18, 11")
    k("s_add_u32 s32, s39, s33")
    for ks in range(1, 6):
        k(f"s_add_u32 s{32+ks}, s32, {ks*9216}")
    k("s_add_u32 s40, s39, 8192")
    for ks in range(1, 6):
        k(f"s_add_u32 s{40+ks}, s40, {ks*9216}")
    k("v_mov_b32 v16, 0")
    k("v_mov_b32 v17, 0")
    k("v_mov_b32 v20, 0")
    k("s_waitcnt lgkmcnt(0)")
    k("s_barrier")
    items = []
    for bb in range(2):
        for ks in range(6):
            items.append((12, 40*bb + ks*32*288, 32 + ks, bb*1024, 16 + bb))
    frags(items, 288, "qf")
    xreduce(k, [16, 17], [18, 19])
    k("s_mul_i32 s46, s23, 6912")
    k("s_mul_i32 s47, s22, 576")
    k("s_add_u32 s46, s46, s47")
    k(f"s_add_u32 s46, s46, {SQKV}")
    k("s_lshl_b32 s47, s18, 7")
    k("s_add_u32 s47, s47, s46")
    k("v_and_b32 v18, 15, v2")
    k("v_lshlrev_b32 v18, 2, v18")
    k("buffer_store_dword v16, v18, s[24:27], s47 offen")
    k("buffer_store_dword v17, v18, s[24:27], s47 offen offset:64")
    k("s_cmp_lg_u32 s18, 3")
    k(f"s_cbranch_scc1 {N}_end")
    k("s_waitcnt vmcnt(0)")
    items = [(13, 32 + ks*32*288, 40 + ks, 0, 20) for ks in range(6)]
    frags(items, 288, "rf")
    xreduce(k, [20], [19])
    k("buffer_store_dword v20, v18, s[24:27], s46 offen offset:512")
    k("s_endpgm")

    k(f"{N}_x:")
    srd(k, 28, 4, 0, XSZ)
    k("s_lshl_b32 s20, s2, 2")
    k("s_add_u32 s20, s20, s18")
    k("v_and_b32 v7, 15, v2")
    k("v_lshrrev_b32 v8, 4, v2")
    k("v_mul_u32_u24 v9, 1152, v7")
    k("v_lshl_add_u32 v9, v8, 4, v9")
    k("s_mul_i32 s21, s20, 18432")
    for j in range(18):
        r = 32 + 4 * j
        k(f"buffer_load_dwordx4 v[{r}:{r+3}], v9, s[28:31], s21 offen offset:{j*64}", f"xl{j}")
    k(f"s_add_u32 s32, s21, {XF0}")
    for i in range(1, 5): k(f"s_add_u32 s{32+i}, s32, {4096*i}")
    k("v_mov_b32 v16, 0")
    k("v_mov_b32 v17, 0")
    for j in range(18):
        r = 32 + 4 * j
        k(f"WAITVM xl{j}")
        k(f"buffer_store_dwordx4 v[{r}:{r+3}], v3, s[24:27], s{32 + j//4} offen offset:{(j%4)*1024}")
        for q in range(4):
            k(f"v_dot2c_f32_bf16 v16, v{r+q}, v4")
            k(f"v_dot2c_f32_bf16 v17, v{r+q}, v{r+q}")
    xreduce(k, [16, 17], [18, 19])
    k("v_cmp_eq_u32 vcc, 0, v8")
    k("v_cndmask_b32 v16, 0, v16, vcc")
    k("v_cndmask_b32 v17, 0, v17, vcc")
    for r in (18, 19): k(f"v_mov_b32 v{r}, 0")
    k("s_lshl_b32 s21, s20, 10")
    k(f"s_add_u32 s21, s21, {ST0}")
    k("buffer_store_dwordx4 v[16:19], v3, s[24:27], s21 offen")
    k(f"{N}_end:")
    k("s_endpgm")
    launches = [("prep_kernel", PREP_GRID, 256, PREP_LDS)]
    desc = descriptor("prep_kernel", 104, 0)
    return k, launches, desc, ["prep_kernel"]
```

```python
from asmgen import *
from layout import *
from k_prep import srd, entry, xreduce
import math

GRID = 192
LDS_ST = 147456
LDS_S = LDS_ST + 1024
LDS = LDS_S + 576
QSCALE = 18 ** -0.5 * math.log2(math.e)

def f2u(x):
    import struct
    return "0x%08x" % struct.unpack("<I", struct.pack("<f", x))[0]

def load_stats(k, srd_s, vaddr, ntb, r0, tag):
    for j in range(ntb):
        k(f"buffer_load_dwordx4 v[{r0+4*j}:{r0+4*j+3}], v{vaddr}, s[{srd_s}:{srd_s+3}], 0 offen offset:{j*1024}", tag)

def finish_stats(k, ntb, r0):
    for j in range(ntb):
        r = r0 + 4 * j
        k(f"v_add_f32 v{r}, v{r}, v{r+2}")
        k(f"v_add_f32 v{r+1}, v{r+1}, v{r+3}")
    regs = [r0 + 4 * j + q for j in range(ntb) for q in range(2)]
    xreduce(k, regs, [r + 2 for r in regs])
    for j in range(ntb):
        r = r0 + 4 * j
        k(f"v_mul_f32 v{r}, {f2u(1/576)}, v{r}")
        k(f"v_mul_f32 v{r+1}, {f2u(1/576)}, v{r+1}")
        k(f"v_fma_f32 v{r+1}, -v{r}, v{r}, v{r+1}")
        k(f"v_max_f32 v{r+1}, 0, v{r+1}")
        k(f"v_add_f32 v{r+1}, {f2u(1e-5)}, v{r+1}")

def gen():
    k = Kern(); N = "qkv"; k.name = N
    for name, xo, so in (("qkv1_kernel", XF0, ST0), ("qkv2_kernel", X2, ST2)):
        entry(k, name)
        k("s_load_dwordx2 s[4:5], s[0:1], 72")
        k(f"s_mov_b32 s40, {xo}")
        k(f"s_mov_b32 s41, {so}")
        if name == "qkv1_kernel": k(f"s_branch {N}_main")
    k(f"{N}_main:")
    k(f"s_cmp_ge_u32 s2, {GRID}")
    k(f"s_cbranch_scc1 {N}_end")
    k.add(k.stamp(0))
    k("v_lshrrev_b32 v4, 6, v0")
    k("v_and_b32 v5, 63, v0")
    k("v_readfirstlane_b32 s18, v4")
    k("v_lshlrev_b32 v1, 4, v5")
    k("s_and_b32 s6, s2, 7")
    k("s_lshr_b32 s7, s2, 3")
    k("s_mul_i32 s16, s7, 43")
    k("s_lshr_b32 s16, s16, 8")
    for i in range(24): assert (i * 43) >> 8 == i // 6
    k("s_mul_i32 s17, s16, 6")
    k("s_sub_u32 s17, s7, s17")
    k("s_lshr_b32 s7, s6, 1")
    k("s_lshl_b32 s7, s7, 2")
    k("s_add_u32 s16, s16, s7")
    k("s_and_b32 s6, s6, 1")
    k("s_mul_i32 s6, s6, 6")
    k("s_add_u32 s17, s17, s6")
    k("s_lshl_b32 s19, s16, 3")
    k("s_lshl_b32 s6, s18, 1")
    k("s_add_u32 s19, s19, s6")
    k("s_lshl_b32 s38, s18, 12")
    k("s_lshl_b32 s39, s18, 9")
    k("s_add_u32 s39, s39, 16384")
    k("s_mul_i32 s6, s19, 18432")
    k("v_add_u32 v2, s6, v1")
    k("v_add_u32 v3, 18432, v2")
    k("s_mul_i32 s6, s17, 165888")
    k(f"s_add_u32 s6, s6, {WQKV}")
    k(f"s_mov_b32 s10, {XSZ}"); k("s_mov_b32 s11, 0x20000"); k("s_mov_b32 s14, 165888"); k("s_mov_b32 s15, 0x20000")
    k("s_waitcnt lgkmcnt(0)")
    k("s_add_u32 s8, s4, s40"); k("s_addc_u32 s9, s5, 0"); k("s_and_b32 s9, s9, 0xffff")
    k("s_add_u32 s12, s4, s6"); k("s_addc_u32 s13, s5, 0"); k("s_and_b32 s13, s13, 0xffff")
    def xfrag(ks, j): return 4 * (ks * 2 + j)
    def group(g):
        L = []
        slot = g % 8; va = 1 if g < 8 else 6
        for j in range(4):
            L.append(([f"s_add_u32 m0, s38, {slot * 18432}", "s_nop 0"] if j == 0 else []) + [(f"buffer_load_dwordx4 v{va}, s[12:15], m0 offen offset:{j*1024} lds", f"g{g}")])
        L.append([f"s_add_u32 m0, s39, {slot * 18432}", "s_mov_b32 exec_hi, 0", (f"buffer_load_dwordx4 v{va}, s[12:15], m0 offen lds", f"g{g}"), "s_mov_b32 exec_hi, -1"])
        for ks in (2 * g, 2 * g + 1):
            for j in range(2):
                r = xfrag(ks, j)
                so = "0" if ks < 4 else f"s{32 + ks // 4}"
                L.append([(f"buffer_load_dwordx4 a[{r}:{r+3}], v{2+j}, s[8:11], {so} offen offset:{(ks % 4) * 1024}", f"g{g}")])
        return L
    for g in range(2):
        for bnd in group(g): k.add(bnd)
    for i in range(1, 5): k(f"s_mov_b32 s{32+i}, {4096*i}")
    k(f"v_add_u32 v6, {8*18432}, v1")
    k("v_and_b32 v7, 15, v5")
    k("v_lshrrev_b32 v8, 4, v5")
    k("s_lshl_b32 s6, s19, 10")
    k("v_add_u32 v9, s6, v1")
    k("v_min_u32 v10, 35, v5")
    k("v_lshlrev_b32 v10, 4, v10")
    k("s_mul_i32 s42, s17, 576")
    k("s_add_u32 s43, s42, 6912")
    k("s_add_u32 s44, s42, 13824")
    k("s_add_u32 s20, s4, s41"); k("s_addc_u32 s21, s5, 0"); k("s_and_b32 s21, s21, 0xffff"); k(f"s_mov_b32 s22, {STSZ}"); k("s_mov_b32 s23, 0x20000")
    srd(k, 28, 4, SQKV, SQKV_SZ)
    srd(k, 24, 4, QKV, 3 * XSZ)
    k("v_add_u32 v16, 65536, v1")
    k("v_add_u32 v17, 131072, v1")
    k("s_cmp_lt_u32 s17, 4")
    k(f"s_cselect_b32 s46, {f2u(QSCALE)}, 1.0")
    k("s_lshl_b32 s47, s18, 8")
    k(f"s_add_u32 s47, s47, {LDS_ST}")
    k("s_mul_i32 s45, s17, 589824")
    k("s_lshl_b32 s48, s19, 9")
    R0 = 176; CS = 184
    W = (32, 68); ACC = 104
    k("s_cmp_ge_u32 s17, 8")
    k(f"s_cbranch_scc1 {N}_v")
    for path in ("qk", "v"):
        k.path = path
        if path == "v": k(f"{N}_v:")
        kl = Kern(); load_stats(kl, 20, 9, 2, R0, "st")
        for i, sr in enumerate((42, 43, 44)):
            kl(f"buffer_load_dwordx4 v[{CS+4*i}:{CS+4*i+3}], v10, s[28:31], s{sr} offen", "st")
        kf = Kern()
        kf("WAITVM st")
        for q in range(4):
            kf(f"v_add_f32 v{CS+q}, v{CS+q}, v{CS+4+q}")
            kf(f"v_add_f32 v{CS+q}, v{CS+q}, v{CS+8+q}")
        kf(f"v_add_u32 v10, {LDS_S}, v10")
        kf(f"ds_write_b128 v10, v[{CS}:{CS+3}]")
        finish_stats(kf, 2, R0)
        kf(f"v_rsq_f32 v13, v{R0+1}")
        kf(f"v_rsq_f32 v15, v{R0+5}")
        kf(f"v_sub_f32 v12, 0, v{R0}")
        kf(f"v_sub_f32 v14, 0, v{R0+4}")
        if path == "qk":
            kf("v_mul_f32 v13, s46, v13")
            kf("v_mul_f32 v15, s46, v15")
            kf(f"v_lshlrev_b32 v10, 4, v8")
            kf("v_and_b32 v18, 1, v8")
            kf("v_lshlrev_b32 v18, 9, v18")
            kf("v_lshrrev_b32 v19, 1, v8")
            kf("v_lshl_add_u32 v18, v19, 8, v18")
            kf("v_lshl_add_u32 v18, v7, 4, v18")
            kf("v_add_u32 v18, s48, v18")
        else:
            kf("v_lshl_add_u32 v11, v7, 3, s47")
            kf("ds_write_b64 v11, v[12:13]")
            kf("ds_write_b64 v11, v[14:15] offset:128")
            kf("v_lshl_add_u32 v11, v8, 5, s47")
            for j in range(2):
                for h in range(2):
                    kf(f"ds_read_b128 v[{R0+8*j+4*h}:{R0+8*j+4*h+3}], v11 offset:{j*128+h*16}", "vs")
            kf(f"v_lshlrev_b32 v10, 2, v7")
            kf("v_add_u32 v18, s48, v1")
        kf(f"v_add_u32 v10, {LDS_S}, v10")
        def rd(ks, b):
            r = W[ks % 2] + 4 * b
            off = ((ks // 2) % 8) * 18432 + (ks % 2) * 9216 + b * 1024
            va = 1 if off < 65536 else (16 if off < 131072 else 17)
            return (f"ds_read_b128 v[{r}:{r+3}], v{va} offset:{off % 65536}", f"w{ks}_{b}")
        k.add(k.stamp(1))
        k("WAITVM g0")
        k("s_barrier")
        k.add(k.stamp(3))
        for b in range(9): k.add([rd(0, b)])
        k("WAITLG w0_2")
        mf = []; fixed = {}; flow = []
        def fx(i, x): fixed.setdefault(i, []).extend(x if isinstance(x, list) else [x])
        def spread(bundles, g0, g1):
            step = (g1 - g0) / len(bundles); last = -1
            for n, bnd in enumerate(bundles):
                g = max(int(g0 + (n + 0.5) * step) | 1, last + 2); last = g
                fixed.setdefault(g, []).append(Bundle(bnd))
        SV = 196; PR = 232
        def mfma(ks, b, j):
            w = W[ks % 2] + 4 * b; a = ACC + 4 * (j * 9 + b); x = xfrag(ks, j)
            c = "0" if ks == 0 else f"v[{a}:{a+3}]"
            if path == "qk": return f"v_mfma_f32_16x16x32_bf16 v[{a}:{a+3}], v[{w}:{w+3}], a[{x}:{x+3}], {c}"
            return f"v_mfma_f32_16x16x32_bf16 v[{a}:{a+3}], a[{x}:{x+3}], v[{w}:{w+3}], {c}"
        def epi(b):
            L = []; P = PR + 4 * (b % 2)
            for j in range(2):
                a = ACC + 4 * (j * 9 + b)
                if path == "qk":
                    for i in range(4): L.append(f"v_fma_f32 v{a+i}, v{12+2*j}, v{SV+4*b+i}, v{a+i}")
                    for i in range(4): L.append(f"v_mul_f32 v{a+i}, v{a+i}, v{13+2*j}")
                else:
                    for i in range(4): L.append(f"v_fma_f32 v{a+i}, v{R0+8*j+2*i}, v{SV+b}, v{a+i}")
                    for i in range(4): L.append(f"v_mul_f32 v{a+i}, v{a+i}, v{R0+8*j+2*i+1}")
                L.append(f"v_cvt_pk_bf16_f32 v{P+2*j}, v{a}, v{a+1}")
                L.append(f"v_cvt_pk_bf16_f32 v{P+2*j+1}, v{a+2}, v{a+3}")
            if path == "qk":
                L.append(f"v_permlane16_swap_b32 v{P}, v{P+2}")
                L.append(f"v_permlane16_swap_b32 v{P+1}, v{P+3}")
            L.append(f"buffer_store_dwordx4 v[{P}:{P+3}], v18, s[24:27], s45 offen")
            if b < 8: L.append("s_add_u32 s45, s45, 65536")
            return L
        for b in range(9):
            if path == "qk": kf(f"ds_read_b128 v[{SV+4*b}:{SV+4*b+3}], v10 offset:{b*64}", "sv")
            else: kf(f"ds_read_b32 v{SV+b}, v10 offset:{b*64}", "sv")
        for ks in range(16):
            g = ks // 2; i0 = len(mf)
            if ks == 0: spread(group(2), 0, 16)
            if ks % 2 == 1:
                fx(i0 - 4, f"WAITVM g{g+1}")
                fx(i0 - 2, ["s_barrier"] + k.stamp(4 + g))
                ext = group(g + 3) if g + 3 <= 8 else []
                if g == 1: ext = ext + [[x] for x in kl.ins]
                if ext: spread(ext, i0, i0 + 32)
                if g == 3: flow = [(x, i0) for x in kf.ins]
            for b in range(9):
                i = len(mf)
                if b % 3 == 0 and i > 0: fx(i - 1, f"WAITLG w{ks}_{b+2}")
                mf += [mfma(ks, b, 0), mfma(ks, b, 1)]
                fx(i, rd(ks + 1, b))
                if ks == 15 and b >= 7: fx(i + 1, rd(17, b - 7))
        for b in range(9):
            i = len(mf)
            fx(i - 1, f"WAITLG w17_{b}, w16_8")
            mf += [mfma(16, b, 0), mfma(16, b, 1), mfma(17, b, 0), mfma(17, b, 1)]
            if b + 2 < 9: fx(i, rd(17, b + 2))
            flow += [(x, i + 5) for x in epi(b)]
        left, over = pack(k, mf, fixed, flow)
        k.add(k.stamp(12))
        k.add(left)
        k.stamp_out()
        if path == "qk": k("s_endpgm")
    k.path = None
    k(f"{N}_end:")
    k("s_endpgm")
    names = ["qkv1_kernel", "qkv2_kernel"]
    launches = [(n, GRID, 256, LDS) for n in names]
    desc = "".join(descriptor(n, 240, 144) for n in names)
    return k, launches, desc, names
```

```python
from asmgen import *
from layout import *
from k_prep import srd, entry, xreduce, jump_to_pack, FFN0, PREP_LDS
import os
NPACK = 0 if os.environ.get('NOSPLIT') else 160

GRID = 256
REC = 3072
VR0 = 16 * REC
ONES = VR0 + 2048
LDS = ONES + 16 + 2 * REC
NEG = "0xf149f2ca"

Q = (16, 20); KF = (24, 28); VM = 32; VRF = 36
S = {("A", 0): 40, ("B", 0): 44, ("A", 1): 48, ("B", 1): 52}
E = {t: r + 16 for t, r in S.items()}
P = {"A": 72, "B": 76}
OM = {"A": 80, "B": 84}; OR = {"A": 88, "B": 92}
MO = 96; MD = 100
NM = {"A": 104, "B": 108}
CF = {"A": 112, "B": 116}; CL = {"A": 120, "B": 124}
MX = {"A": 14, "B": 15}
ORDER = [("A", 0), ("B", 0), ("A", 1), ("B", 1)]
def v4(r): return f"v[{r}:{r+3}]"

def present(kind, t):
    return not ((kind == "first" and t == ("B", 0)) or (kind == "last" and t == ("A", 1)))

def cop(kind, t, ps):
    masked = (kind == "first" and t in (("A", 0), ("B", 1))) or (kind == "last" and t in (("A", 0), ("B", 1)))
    if ps == 1:
        return v4(MO if kind == "first" else MD) if masked else "0"
    if masked: return v4((CF if kind == "first" else CL)[t[0]])
    return v4(NM[t[0]])

def smfma(k, kind, t, ps):
    if present(kind, t):
        k(f"v_mfma_f32_16x16x32_bf16 {v4(S[t])}, {v4(KF[t[1]])}, {v4(Q[t[0] == 'B'])}, {cop(kind, t, ps)}")

def prologue(k, kind, ps):
    k(f"ds_read_b128 {v4(KF[0])}, v2")
    k(f"ds_read_b128 {v4(KF[1])}, v2 offset:1024")
    k("s_waitcnt lgkmcnt(0)")
    for t in ORDER: smfma(k, kind, t, ps)
    k(f"ds_read_b128 {v4(KF[0])}, v2 offset:{REC}")
    k(f"ds_read_b128 {v4(KF[1])}, v2 offset:{REC+1024}")
    if ps == 2:
        k(f"ds_read_b128 {v4(VM)}, v2 offset:2048")
        k(f"ds_read_b128 {v4(VRF)}, v3")
        k("v_add_u32 v3, v3, v4")
    k("s_nop 4")

def iteration(k, cur, nxt, ps):
    nq = 1 if ps == 1 else 3
    for t in ORDER:
        if present(cur, t):
            s = S[t]
            if ps == 1:
                m = MX[t[0]]
                k(f"v_max3_f32 v{m}, v{m}, v{s}, v{s+1}")
                k(f"v_max3_f32 v{m}, v{m}, v{s+2}, v{s+3}")
            else:
                for i in range(4): k(f"v_exp_f32 v{E[t]+i}, v{s+i}")
        if nxt:
            if t[0] == "A": k(f"s_waitcnt lgkmcnt({nq})")
            smfma(k, nxt, t, ps)
            if t[0] == "B": k(f"ds_read_b128 {v4(KF[t[1]])}, v2 offset:{2*REC + 1024*t[1]}")
    if ps == 2:
        for q in "AB":
            for tl in range(2):
                p = P[q] + 2 * tl; e = E[(q, tl)]
                if present(cur, (q, tl)):
                    k(f"v_cvt_pk_bf16_f32 v{p}, v{e}, v{e+1}")
                    k(f"v_cvt_pk_bf16_f32 v{p+1}, v{e+2}, v{e+3}")
                else:
                    k(f"v_mov_b32 v{p}, 0"); k(f"v_mov_b32 v{p+1}, 0")
            if q == "A": k(f"s_waitcnt lgkmcnt({2 if nxt else 0})")
            else: k("s_nop 0") if False else None
            if q == "B":
                pass
        k(f"v_mfma_f32_16x16x32_bf16 {v4(OM['A'])}, {v4(VM)}, {v4(P['A'])}, {v4(OM['A'])}")
        k(f"v_mfma_f32_16x16x32_bf16 {v4(OR['A'])}, {v4(VRF)}, {v4(P['A'])}, {v4(OR['A'])}")
        k(f"v_mfma_f32_16x16x32_bf16 {v4(OM['B'])}, {v4(VM)}, {v4(P['B'])}, {v4(OM['B'])}")
        k(f"v_mfma_f32_16x16x32_bf16 {v4(OR['B'])}, {v4(VRF)}, {v4(P['B'])}, {v4(OR['B'])}")
        if nxt:
            k(f"ds_read_b128 {v4(VM)}, v2 offset:{REC+2048}")
            k(f"ds_read_b128 {v4(VRF)}, v3")
            k("v_add_u32 v3, v3, v4")
    if nxt:
        k(f"v_add_u32 v2, {REC}, v2")
        if ps == 1: k("s_nop 3")

def gen():
    k = Kern(); N = "attn"; k.name = N
    entry(k, "attn1_kernel")
    if NPACK:
        k(f"s_cmp_lt_u32 s2, {GRID}")
        k(f"s_cbranch_scc1 {N}_main")
        k(f"s_cmp_ge_u32 s2, {GRID + NPACK}")
        k(f"s_cbranch_scc1 {N}_end")
        k("v_readfirstlane_b32 s3, v0")
        k("s_nop 3")
        k("s_cmp_ge_u32 s3, 256")
        k(f"s_cbranch_scc1 {N}_end")
        jump_to_pack(k, [f"s_add_u32 s56, s2, {FFN0 + 128 - GRID}"], 1, 0)
    else:
        k(f"s_branch {N}_main")
    entry(k, "attn2_kernel")
    k(f"{N}_main:")
    k(f"s_cmp_ge_u32 s2, {GRID}")
    k(f"s_cbranch_scc1 {N}_end")
    k.add(k.stamp(0))
    k("s_load_dwordx2 s[4:5], s[0:1], 72")
    k("v_lshrrev_b32 v4, 6, v0")
    k("v_and_b32 v5, 63, v0")
    k("v_readfirstlane_b32 s18, v4")
    k("v_lshlrev_b32 v1, 4, v5")
    k("v_and_b32 v7, 15, v5")
    k("v_lshrrev_b32 v8, 4, v5")
    k("s_and_b32 s6, s2, 7")
    k("s_lshr_b32 s7, s2, 3")
    k("s_lshr_b32 s17, s7, 2")
    k("s_and_b32 s7, s7, 3")
    k("s_lshl_b32 s16, s6, 2")
    k("s_add_u32 s16, s16, s7")
    k("s_lshr_b32 s19, s16, 3")
    k("s_mul_i32 s19, s19, 9")
    k("s_and_b32 s20, s16, 7")
    k("s_add_u32 s21, s19, s20")
    k("s_lshl_b32 s21, s21, 16")
    k("s_add_u32 s22, s19, 8")
    k("s_lshl_b32 s22, s22, 16")
    k("s_and_b32 s23, s6, 1")
    k("s_lshl_b32 s23, s23, 8")
    k("s_add_u32 s23, s23, s22")
    k("v_add_u32 v9, s21, v1")
    k("v_lshl_add_u32 v10, v7, 4, s23")
    k("v_cmp_gt_u32 vcc, 32, v5")
    k("v_cndmask_b32 v9, v10, v9, vcc")
    k("v_bfe_u32 v10, v5, 1, 2")
    k("v_lshlrev_b32 v10, 8, v10")
    k("v_and_b32 v11, 1, v5")
    k("v_lshl_add_u32 v10, v11, 4, v10")
    k("v_bfe_u32 v11, v5, 3, 1")
    k("v_lshl_add_u32 v10, v11, 10, v10")
    k("s_lshl_b32 s24, s20, 5")
    k("s_add_u32 s24, s24, s22")
    k("v_add_u32 v10, s24, v10")
    k("s_lshl_b32 s24, s17, 4")
    k("s_lshl_b32 s25, s18, 1")
    k("s_add_u32 s26, s24, s25")
    k("s_lshl_b32 s27, s26, 9")
    k("s_add_u32 s24, s26, s25")
    k("s_lshl_b32 s24, s24, 9")
    k(f"s_add_u32 s28, s24, {XSZ - 16*512}")
    k(f"s_add_u32 s29, s24, {2*XSZ - 8*1024}")
    k("s_add_u32 s30, s29, s21")
    k(f"s_mul_i32 s31, s18, {2*REC}")
    k("s_waitcnt lgkmcnt(0)")
    srd(k, 8, 4, QKV, 3 * XSZ)
    k(f"buffer_load_dwordx4 {v4(Q[0])}, v9, s[8:11], s27 offen", "q")
    k(f"buffer_load_dwordx4 {v4(Q[1])}, v9, s[8:11], s27 offen offset:512", "q")
    for bl in range(2):
        for tl in range(2):
            k(f"s_add_u32 m0, s31, {bl*REC + tl*1024}")
            k(f"s_add_u32 s24, s28, {(2*bl + tl)*512}")
            k("buffer_load_dwordx4 v9, s[8:11], s24 offen lds")
    for bl in range(2):
        k(f"s_add_u32 m0, s31, {bl*REC + 2048}")
        k(f"s_add_u32 s24, s30, {bl*1024}")
        k("buffer_load_dwordx4 v1, s[8:11], s24 offen lds")
    k("s_lshl_b32 s24, s18, 8")
    k(f"s_add_u32 m0, s24, {VR0}")
    k("s_mov_b64 exec, 0xffff")
    k("buffer_load_dwordx4 v10, s[8:11], s29 offen lds")
    k("s_mov_b64 exec, -1")
    srd(k, 12, 4, OO, XSZ)
    for i in range(4): k(f"v_mov_b32 v{E[('A',0)]+i}, 0x3f803f80")
    k(f"v_mov_b32 v11, {ONES}")
    k(f"ds_write_b128 v11, {v4(E[('A',0)])}")
    k("v_lshlrev_b32 v11, 2, v8")
    k(f"v_mov_b32 v12, {NEG}")
    for i in range(4):
        k(f"v_add_u32 v13, {i}, v11")
        k("v_cmp_gt_u32 vcc, v13, v7")
        k(f"v_cndmask_b32 v{MO+i}, v12, 0, vcc" .replace("v_cndmask_b32", "v_cndmask_b32_e64"))
        k(f"v_cndmask_b32 v{MD+i}, 0, v12, vcc")
    for r in range(OM["A"], OM["A"] + 16): k(f"v_mov_b32 v{r}, 0")
    k(f"v_mov_b32 v{MX['A']}, v12")
    k(f"v_mov_b32 v{MX['B']}, v12")
    k("s_cmp_gt_u32 s17, 0")
    k("s_cselect_b32 s32, s18, 8")
    k(f"s_mul_i32 s33, s32, {REC}")
    k("v_add_u32 v6, s33, v1")
    k("s_lshl_b32 s33, s32, 7")
    k(f"s_add_u32 s33, s33, {VR0}")
    k("v_lshl_add_u32 v3, v8, 1, v7")
    k("v_lshl_add_u32 v3, v3, 4, s33")
    k(f"v_mov_b32 v11, {ONES}")
    k("v_mov_b32 v4, 128")
    k("v_cmp_gt_u32 vcc, 2, v7")
    k("v_cndmask_b32 v3, v11, v3, vcc")
    k("v_cndmask_b32 v4, 0, v4, vcc")
    k.add(k.stamp(1))
    k("WAITVM q")
    k.add(k.stamp(2))
    for i in range(4):
        k(f"s_cmp_eq_u32 s7, {i}")
        k("s_cselect_b32 s24, 48, 32")
        k("v_cmp_gt_u32 vcc, s24, v5")
        k(f"v_cndmask_b32 v{Q[0]+i}, 0, v{Q[0]+i}, vcc")
        k(f"v_cndmask_b32 v{Q[1]+i}, 0, v{Q[1]+i}, vcc")
    k("s_waitcnt vmcnt(0) lgkmcnt(0)")
    k("s_barrier")
    for ps in (1, 2):
        k.add(k.stamp(2 + ps))
        L = f"{N}_p{ps}"
        k("v_mov_b32 v2, v6")
        k("s_cmp_eq_u32 s17, 0")
        k(f"s_cbranch_scc1 {L}_q0")
        prologue(k, "first", ps)
        iteration(k, "first", "mid", ps)
        k("s_mov_b32 s34, 6")
        k(f"s_branch {L}_loop")
        k(f"{L}_q0:")
        k("s_cmp_eq_u32 s18, 0")
        k(f"s_cbranch_scc0 {L}_q0b")
        prologue(k, "last", ps)
        k(f"s_branch {L}_last")
        k(f"{L}_q0b:")
        prologue(k, "mid", ps)
        k("s_sub_u32 s34, s18, 1")
        k("s_cmp_eq_u32 s34, 0")
        k(f"s_cbranch_scc1 {L}_pen")
        k(f"{L}_loop:")
        iteration(k, "mid", "mid", ps)
        k("s_sub_u32 s34, s34, 1")
        k("s_cmp_lg_u32 s34, 0")
        k(f"s_cbranch_scc1 {L}_loop")
        k(f"{L}_pen:")
        iteration(k, "mid", "last", ps)
        k(f"{L}_last:")
        iteration(k, "last", None, ps)
        if ps == 1:
            k("s_waitcnt lgkmcnt(0)")
            xreduce(k, [MX["A"], MX["B"]], [12, 13], op="v_max_f32")
            for q in "AB":
                for i in range(4):
                    k(f"v_sub_f32 v{NM[q]+i}, 0, v{MX[q]}")
                    k(f"v_sub_f32 v{CF[q]+i}, v{MO+i}, v{MX[q]}")
                    k(f"v_sub_f32 v{CL[q]+i}, v{MD+i}, v{MX[q]}")
    k.add(k.stamp(5))
    k("v_and_b32 v11, 1, v8")
    k("v_mul_u32_u24 v11, 18432, v11")
    k("v_lshl_add_u32 v11, v7, 4, v11")
    k("v_lshrrev_b32 v12, 1, v8")
    k("v_lshl_add_u32 v12, v12, 8, v11")
    k("s_mul_i32 s24, s26, 18432")
    k("s_lshl_b32 s25, s16, 9")
    k("s_add_u32 s25, s25, s24")
    k("s_lshr_b32 s27, s16, 2")
    k("s_lshl_b32 s27, s27, 8")
    k("s_lshl_b32 s28, s7, 2")
    k("s_add_u32 s27, s27, s28")
    k("s_add_u32 s27, s27, s24")
    k("s_add_u32 s27, s27, 16384")
    for q in "AB": k(f"v_rcp_f32 v{E[(q,0)]}, v{OR[q]+2}")
    for q in "AB":
        for i in range(4): k(f"v_mul_f32 v{OM[q]+i}, v{OM[q]+i}, v{E[(q,0)]}")
        for i in range(2): k(f"v_mul_f32 v{OR[q]+i}, v{OR[q]+i}, v{E[(q,0)]}")
    p = P["A"]
    for qi, q in enumerate("AB"):
        k(f"v_cvt_pk_bf16_f32 v{p+2*qi}, v{OM[q]}, v{OM[q]+1}")
        k(f"v_cvt_pk_bf16_f32 v{p+2*qi+1}, v{OM[q]+2}, v{OM[q]+3}")
        k(f"v_cvt_pk_bf16_f32 v{p+4+qi}, v{OR[q]}, v{OR[q]+1}")
    k(f"v_permlane16_swap_b32 v{p}, v{p+2}")
    k(f"v_permlane16_swap_b32 v{p+1}, v{p+3}")
    k(f"v_permlane16_swap_b32 v{p+4}, v{p+5}")
    k(f"buffer_store_dwordx4 {v4(p)}, v12, s[12:15], s25 offen")
    k("s_mov_b32 exec_hi, 0")
    k(f"buffer_store_dword v{p+4}, v11, s[12:15], s27 offen")
    k.stamp_out()
    k(f"{N}_end:")
    k("s_endpgm")
    k.extra_paths = [{"attn_p1_q0", "attn_p2_q0"}, {"attn_p1_q0", "attn_p2_q0", "attn_p1_q0b", "attn_p2_q0b"},
                     {"attn_p1_q0", "attn_p2_q0", "attn_p1_q0b", "attn_p2_q0b", "attn_p1_pen", "attn_p2_pen"}]
    k.only_paths = [p | {"attn_main"} for p in k.extra_paths + [set()]]
    return (k, [("attn1_kernel", GRID + NPACK, 512, max(LDS, PREP_LDS) if NPACK else LDS), ("attn2_kernel", GRID, 512, LDS)],
            descriptor("attn1_kernel", 128, 0) + descriptor("attn2_kernel", 128, 0), ["attn1_kernel", "attn2_kernel"])
```

```python
from asmgen import *
from layout import *
from k_prep import srd, entry, xreduce

import os
NTH = os.environ.get("NTH", ""); NTW = os.environ.get("NTW", "")
GRID = 256
LDS = 56 * 1024
ACC = 32
def acc(tb, b): return ACC + 4 * (tb * 6 + b)
def v4(r): return f"v[{r}:{r+3}]"
def a4(r): return f"a[{r}:{r+3}]"
F = 128
T = 144
RES = 208

def loads(s, half=None):
    b0 = 68 * s; L = []
    if half != 1:
        for b in range(4): L.append((b, f"buffer_load_dwordx4 {a4(b0+4*b)}, v1, s[12:15], s34 offen offset:{b*1024} {NTW}"))
        for tb in range(4): L.append((4, f"buffer_load_dwordx4 {a4(b0+16+4*tb)}, v{4+tb}, s[8:11], s35 offen {NTH}"))
    if half != 0:
        for b in range(4): L.append((5 + b, f"buffer_load_dwordx4 {a4(b0+32+4*b)}, v2, s[12:15], s34 offen offset:{b*1024} {NTW}"))
    L.append((9, f"buffer_load_dwordx4 {a4(b0+48)}, v3, s[12:15], s34 offen {NTW}"))
    if half != 0:
        for tb in range(4): L.append((9, f"buffer_load_dwordx4 {a4(b0+52+4*tb)}, v{4+tb}, s[8:11], s35 offen offset:1024 {NTH}"))
    return L

def adv(k):
    k("s_add_u32 s34, s34, 9216")
    k("s_add_u32 s35, s35, 2048")

def compute(k, s, refill, w2=None, groups=range(10)):
    b0 = 68 * s
    L = loads(s) if refill else []
    for g in groups:
        if g == 4 and w2 is not None: k(f"s_waitcnt vmcnt({w2})")
        pend = [x[1] for x in L if x[0] == g - 1]
        for tb in range(4):
            if g < 4:    w, h, a = b0 + 4 * g, b0 + 16 + 4 * tb, acc(tb, g)
            elif g == 4: w, h, a = b0 + 48, b0 + 16 + 4 * tb, acc(tb, 4)
            elif g < 9:  w, h, a = b0 + 32 + 4 * (g - 5), b0 + 52 + 4 * tb, acc(tb, g - 5)
            else:        w, h, a = b0 + 48, b0 + 52 + 4 * tb, acc(tb, 5)
            k(f"v_mfma_f32_16x16x32_bf16 {v4(a)}, {a4(w)}, {a4(h)}, {v4(a)}")
            if pend: k(pend.pop(0))
    if refill:
        for x in L:
            if x[0] == 9: k(x[1])
        adv(k)

def gen():
    k = Kern(); N = "gk"; k.name = N
    variants = [("wo1_kernel", OO, 72, WO, 9, XF0, X1, ST1), ("wo2_kernel", OO, 72, WO, 9, X2, X1, ST1),
                ("down1_kernel", HH, 576, WD, 72, X1, X2, ST2), ("down2_kernel", HH, 576, WD, 72, X1, None, ST2)]
    for name, act, ko, w, npair, res, out, st in variants:
        entry(k, name)
        k("s_load_dwordx2 s[4:5], s[0:1], 72")
        if out is None: k("s_load_dwordx2 s[6:7], s[0:1], 56")
        k(f"s_mov_b32 s40, {act}")
        k(f"s_mov_b32 s41, {ko*256}")
        k(f"s_mov_b32 s42, {w}")
        k(f"s_mov_b32 s43, {npair}")
        k(f"s_mov_b32 s44, {res}")
        k(f"s_mov_b32 s45, {st}")
        k(f"s_mov_b32 s46, {256 if out is not None else 16}")
        k(f"s_mov_b32 s47, {16 if out is not None else 1152}")
        k(f"s_mov_b32 s52, {out if out is not None else -1}")
        if name != variants[-1][0]: k(f"s_branch {N}_main")
    k(f"{N}_main:")
    k(f"s_cmp_ge_u32 s2, {GRID}")
    k(f"s_cbranch_scc1 {N}_end")
    k.add(k.stamp(0))
    k("v_lshrrev_b32 v8, 6, v0")
    k("v_and_b32 v9, 63, v0")
    k("v_readfirstlane_b32 s18, v8")
    k("v_lshlrev_b32 v1, 4, v9")
    k("s_and_b32 s20, s2, 7")
    k("s_lshr_b32 s21, s2, 3")
    k("s_lshr_b32 s16, s20, 1")
    k("s_lshl_b32 s16, s16, 3")
    k("s_lshr_b32 s22, s21, 2")
    k("s_add_u32 s16, s16, s22")
    k("s_and_b32 s17, s20, 1")
    k("s_lshl_b32 s17, s17, 2")
    k("s_and_b32 s22, s21, 3")
    k("s_add_u32 s17, s17, s22")
    k("v_add_u32 v2, 4096, v1")
    k("v_add_u32 v3, 8192, v1")
    k("v_mov_b32 v4, v1")
    k("v_add_u32 v5, s41, v4")
    k("v_add_u32 v6, s41, v5")
    k("v_add_u32 v7, s41, v6")
    k("s_lshl_b32 s10, s41, 2")
    k("s_mul_i32 s21, s10, s16")
    k("s_add_u32 s21, s21, s40")
    k("s_mul_i32 s14, s43, 9216")
    k("s_mul_i32 s22, s14, s17")
    k("s_add_u32 s22, s22, s42")
    k("s_mov_b32 s11, 0x20000")
    k("s_mov_b32 s15, 0x20000")
    k("s_cmp_eq_u32 s43, 9")
    k("s_cselect_b32 s23, 2, 18")
    k("s_mul_i32 s20, s18, s23")
    k("s_waitcnt lgkmcnt(0)")
    k("s_add_u32 s8, s4, s21"); k("s_addc_u32 s9, s5, 0"); k("s_and_b32 s9, s9, 0xffff")
    k("s_add_u32 s12, s4, s22"); k("s_addc_u32 s13, s5, 0"); k("s_and_b32 s13, s13, 0xffff")
    k("s_cmp_eq_u32 s23, 2")
    k("s_cselect_b32 s53, s18, 2")
    k(f"s_mov_b32 s34, {8*9216}")
    k(f"s_mov_b32 s35, {8*2048}")
    k("s_cmp_eq_u32 s53, 0")
    k(f"s_cbranch_scc0 {N}_l1")
    for _, t in loads(2, 0): k(t)
    k(f"{N}_l1:")
    k("s_cmp_eq_u32 s53, 1")
    k(f"s_cbranch_scc0 {N}_l2")
    for _, t in loads(2, 1): k(t)
    k(f"{N}_l2:")
    k("s_mul_i32 s34, s20, 9216")
    k("s_lshl_b32 s35, s20, 11")
    for _, t in loads(0): k(t)
    adv(k)
    k("s_add_u32 s24, s4, s44"); k("s_addc_u32 s25, s5, 0"); k("s_and_b32 s25, s25, 0xffff"); k(f"s_mov_b32 s26, {XSZ}"); k("s_mov_b32 s27, 0x20000")
    k("v_and_b32 v10, 15, v9")
    k("v_bfe_u32 v12, v9, 4, 1")
    k("v_lshrrev_b32 v13, 5, v9")
    k("v_lshl_add_u32 v12, v12, 1, v13")
    k("v_lshlrev_b32 v17, 4, v10")
    k("v_lshl_add_u32 v16, v12, 8, v17")
    k("s_lshl_b32 s30, s16, 2")
    k("s_add_u32 s30, s30, s18")
    k("s_mul_i32 s31, s30, 18432")
    k("s_mul_i32 s32, s17, 9")
    k("s_lshl_b32 s20, s32, 8")
    k("s_add_u32 s20, s20, s31")
    k(f"buffer_load_dwordx4 {v4(RES)}, v16, s[24:27], s20 offen")
    k(f"buffer_load_dwordx4 {v4(RES+4)}, v16, s[24:27], s20 offen offset:1024")
    k(f"buffer_load_dwordx4 {v4(RES+8)}, v17, s[24:27], s20 offen offset:2048")
    for r in range(ACC, ACC + 96): k(f"v_mov_b32 v{r}, 0")
    for _, t in loads(1): k(t)
    adv(k)
    k("s_cmp_eq_u32 s52, -1")
    k(f"s_cbranch_scc1 {N}_o1")
    k("s_add_u32 s6, s4, s52")
    k("s_addc_u32 s7, s5, 0")
    k(f"{N}_o1:")
    k("s_mov_b32 s36, s6"); k("s_and_b32 s37, s7, 0xffff"); k(f"s_mov_b32 s38, {XSZ}"); k("s_mov_b32 s39, 0x20000")
    k("s_add_u32 s24, s4, s45"); k("s_addc_u32 s25, s5, 0"); k("s_and_b32 s25, s25, 0xffff"); k(f"s_mov_b32 s26, {STSZ}")
    k("v_lshlrev_b32 v18, 4, v10")
    k("v_mul_lo_u32 v17, v10, s47")
    k("v_mul_lo_u32 v16, v12, s46")
    k("v_add_u32 v16, v16, v17")
    k("s_mul_i32 s48, s32, s46")
    k("s_add_u32 s48, s48, s31")
    k("s_lshl_b32 s20, s46, 2")
    k("s_add_u32 s49, s48, s20")
    k("s_add_u32 s50, s49, s20")
    k("s_lshl_b32 s51, s30, 10")
    k("s_lshr_b32 s20, s17, 1")
    k("s_lshl_b32 s20, s20, 8")
    k("s_add_u32 s51, s51, s20")
    k("s_and_b32 s20, s17, 1")
    k("s_lshl_b32 s20, s20, 3")
    k("s_add_u32 s51, s51, s20")
    k("s_mul_i32 s20, s18, 12288")
    k("v_add_u32 v19, s20, v1")
    k("s_and_b32 s20, s18, 1")
    k("s_lshl_b32 s20, s20, 9")
    k("v_xor_b32 v14, s20, v1")
    k("s_lshr_b32 s20, s18, 1")
    k("s_lshl_b32 s20, s20, 12")
    k("v_add_u32 v14, s20, v14")
    k.add(k.stamp(1))
    k("s_cmp_eq_u32 s23, 2")
    k(f"s_cbranch_scc0 {N}_down")
    k("s_waitcnt vmcnt(37)")
    k("s_cmp_eq_u32 s53, 0")
    k(f"s_cbranch_scc0 {N}_c1")
    compute(k, 2, False, groups=range(5))
    k(f"{N}_c1:")
    k("s_cmp_eq_u32 s53, 1")
    k(f"s_cbranch_scc0 {N}_fin")
    compute(k, 2, False, groups=range(5, 10))
    k(f"s_branch {N}_fin")
    k(f"{N}_down:")
    k("s_mov_b32 s22, 8")
    k(".p2align 3")
    k(f"{N}_loop:")
    for s in range(2):
        k("s_waitcnt vmcnt(17)")
        compute(k, s, True)
    k("s_sub_u32 s22, s22, 1")
    k("s_cmp_lg_u32 s22, 0")
    k(f"s_cbranch_scc1 {N}_loop")
    k(f"{N}_fin:")
    k.add(k.stamp(2))
    k("s_waitcnt vmcnt(26)")
    compute(k, 0, False, 17)
    k("s_waitcnt vmcnt(9)")
    compute(k, 1, False, 0)
    k.add(k.stamp(3))
    for w in range(4):
        if w < 3:
            k(f"s_cmp_lg_u32 s18, {w}")
            k(f"s_cbranch_scc1 {N}_x{w+1}")
        for ow in range(4):
            if ow == w: continue
            ss = (w - ow - 1) % 4
            for b in range(4): k(f"ds_write_b128 v1, {v4(acc(ow, b))} offset:{((ow*3+ss)*4+b)*1024}")
        for b in range(4):
            for i in range(4): k(f"v_mov_b32 v{F+4*b+i}, v{acc(w, b)+i}")
        if w < 3:
            k(f"s_branch {N}_xdone")
            k(f"{N}_x{w+1}:")
    k(f"{N}_xdone:")
    for p in range(2):
        for i in range(4):
            k(f"v_permlane32_swap_b32 v{acc(2*p,4)+i}, v{acc(2*p+1,4)+i}")
            k(f"v_permlane32_swap_b32 v{acc(2*p,5)+i}, v{acc(2*p+1,5)+i}")
    for p in range(2):
        for i in range(4): k(f"v_add_f32 v{acc(2*p,4)+i}, v{acc(2*p,4)+i}, v{acc(2*p+1,5)+i}")
    k("s_lshl_b32 s20, s18, 10")
    k("v_add_u32 v15, s20, v1")
    for p in range(2): k(f"ds_write_b128 v15, {v4(acc(2*p,4))} offset:{49152 + p*4096}")
    k("v_mov_b32 v20, 0")
    k("v_mov_b32 v21, 0")
    k("v_mov_b32 v22, 0xffff0000")
    k("v_mov_b32 v23, 0x3f803f80")
    k("s_waitcnt lgkmcnt(0)")
    k("s_barrier")
    k.add(k.stamp(4))
    for b in range(4):
        for ss in range(3): k(f"ds_read_b128 {v4(T+4*(b*3+ss))}, v19 offset:{(ss*4+b)*1024}", f"r{b}")
    Z = ACC + 32
    for ss in range(3): k(f"ds_read_b128 {v4(Z+4*ss)}, v14 offset:{49152 + ss*1024}", f"z{ss}")
    def summ(b):
        k(f"WAITLG r{b}")
        if b == 0: k(f"ds_read_b128 {v4(Z+12)}, v14 offset:{49152 + 3*1024}", "z3")
        for i in range(4):
            k(f"v_add_f32 v{F+4*b+i}, v{F+4*b+i}, v{T+12*b+i}")
            k(f"v_add_f32 v{T+12*b+4+i}, v{T+12*b+4+i}, v{T+12*b+8+i}")
        for i in range(4): k(f"v_add_f32 v{F+4*b+i}, v{F+4*b+i}, v{T+12*b+4+i}")
    def finish(x, y, res, pk, va, so):
        for q in range(4):
            k(f"v_lshlrev_b32 v24, 16, v{res+q}")
            k(f"v_and_b32 v25, v22, v{res+q}")
            r = (x, x + 2, y, y + 2)[q]
            k(f"v_add_f32 v{r}, v{r}, v24")
            k(f"v_add_f32 v{r+1}, v{r+1}, v25")
            k(f"v_cvt_pk_bf16_f32 v{pk+q}, v{r}, v{r+1}")
        k(f"buffer_store_dwordx4 {v4(pk)}, v{va}, s[36:39], s{so} offen")
        for q in range(4):
            k(f"v_dot2c_f32_bf16 v20, v{pk+q}, v23")
            k(f"v_dot2c_f32_bf16 v21, v{pk+q}, v{pk+q}")
    for pr in range(2):
        summ(2 * pr); summ(2 * pr + 1)
        for i in range(4): k(f"v_permlane16_swap_b32 v{F+8*pr+i}, v{F+8*pr+4+i}")
        finish(F + 8 * pr, F + 8 * pr + 4, RES + 4 * pr, ACC + 4 * pr, 16, 48 + pr)
    k("WAITLG z3")
    for i in range(4):
        k(f"v_add_f32 v{Z+i}, v{Z+i}, v{Z+4+i}")
        k(f"v_add_f32 v{Z+8+i}, v{Z+8+i}, v{Z+12+i}")
    for i in range(4): k(f"v_add_f32 v{Z+i}, v{Z+i}, v{Z+8+i}")
    for i in range(4): k(f"v_mov_b32 v{Z+4+i}, v{Z+i}")
    for i in range(4): k(f"v_permlane16_swap_b32 v{Z+i}, v{Z+4+i}")
    k("s_mov_b64 exec, 0xffff")
    finish(Z, Z + 4, RES + 8, ACC + 8, 17, 50)
    k("s_mov_b64 exec, -1")
    xreduce(k, [20, 21], [24, 25])
    k("s_mov_b64 exec, 0xffff")
    k("buffer_store_dwordx2 v[20:21], v18, s[24:27], s51 offen")
    k.add(k.stamp(5))
    k.stamp_out()
    k(f"{N}_end:")
    k("s_endpgm")
    L = lambda *a: {f"{N}_{x}" for x in a}
    k.only_paths = [L("l2", "c1", ), L("l1", "c1"), L("l1", "l2", "c1", "fin"), L("l1", "l2", "down"), L("l1", "l2", "down", "o1", "x1"),
                    L("l1", "l2", "down", "x1", "x2"), L("l1", "l2", "down", "x1", "x2", "x3"), L("l2", "fin")]
    names = [v[0] for v in variants]
    return k, [(n, GRID, 256, LDS) for n in names], "".join(descriptor(n, 220, 204) for n in names), names
```

```python
from asmgen import *
from layout import *
from k_prep import srd, entry
import os
def gen():
    k = Kern(); N = "pf"
    FR = float(os.environ.get("PFFRAC", "1.0"))
    entry(k, "pf_kernel")
    k("s_cmp_ge_u32 s2, 256"); k(f"s_cbranch_scc1 {N}_end")
    k("s_load_dwordx2 s[4:5], s[0:1], 72")
    k("v_lshlrev_b32 v1, 4, v0")
    k("s_and_b32 s6, s2, 1"); k(f"s_mul_i32 s6, s6, {WD_SZ//2}")
    k("s_lshr_b32 s7, s2, 3"); k(f"s_mul_i32 s7, s7, {WD_SZ//64}"); k("s_add_u32 s6, s6, s7")
    k("s_waitcnt lgkmcnt(0)")
    srd(k, 8, 4, WD, WD_SZ)
    for i in range(int(WD_SZ // 64 // 4096 * FR + 0.99)):
        k(f"buffer_load_dwordx4 v[{4+4*i}:{7+4*i}], v1, s[8:11], s6 offen"); k("s_add_u32 s6, s6, 4096")
    k("s_waitcnt vmcnt(0)")
    k(f"{N}_end:"); k("s_endpgm")
    return k, [("pf_kernel", 256, 256, 0)], descriptor("pf_kernel", 128, 0), ["pf_kernel"]
```

```python
from asmgen import *
from layout import *

def srd(k, d, p, off, size):
    if off:
        k(f"s_add_u32 s{d}, s{p}, {off}")
        k(f"s_addc_u32 s{d+1}, s{p+1}, 0")
        k(f"s_and_b32 s{d+1}, s{d+1}, 0xffff")
    else:
        k(f"s_mov_b32 s{d}, s{p}")
        k(f"s_and_b32 s{d+1}, s{p+1}, 0xffff")
    k(f"s_mov_b32 s{d+2}, {size}")
    k(f"s_mov_b32 s{d+3}, 0x20000")

def entry(k, name):
    k(f".globl {name}")
    k(".p2align 8")
    k(f".type {name},@function")
    k(f"{name}:")

def xreduce(k, regs, tmp, op="v_add_f32"):
    for sw in ("v_permlane16_swap_b32", "v_permlane32_swap_b32"):
        for r, t in zip(regs, tmp): k(f"v_mov_b32 v{t}, v{r}")
        for r, t in zip(regs, tmp): k(f"{sw} v{r}, v{t}")
        for r, t in zip(regs, tmp): k(f"{op} v{r}, v{r}, v{t}")

N_X, N_QKV, N_WO, N_GU, N_WD = 64, 36, 9, 216, 72
PREP_GRID = N_X + N_QKV + N_WO + N_GU + N_WD
PREP_LDS = 64 * 1184

for _t in range(192): assert (_t * 171) >> 10 == _t // 6

FFN0 = N_X + N_QKV + N_WO
PREP0_GRID = FFN0

def jump_to_pack(k, unit_expr_lines, repeats, stride):
    for l in unit_expr_lines: k(l)
    k(f"s_mov_b32 s57, {repeats}")
    k(f"s_mov_b32 s58, {stride}")
    k("s_branch prep_unit")

def gen_prep():
    import os
    SPLIT = not os.environ.get("NOSPLIT")
    grid = PREP0_GRID if SPLIT else PREP_GRID
    k = Kern(); N = "prep"; k.name = N
    entry(k, "prep_kernel")
    k(f"s_cmp_ge_u32 s2, {grid}")
    k(f"s_cbranch_scc1 {N}_end")
    k("s_mov_b32 s56, s2")
    k("s_mov_b32 s57, 1")
    k("s_mov_b32 s58, 0")
    k("prep_unit:")
    k.add(k.stamp(0))
    k("s_load_dwordx4 s[4:7], s[0:1], 0")
    k("s_load_dwordx2 s[8:9], s[0:1], 16")
    k("s_load_dwordx4 s[12:15], s[0:1], 32")
    k("s_load_dwordx2 s[10:11], s[0:1], 48")
    k("s_load_dwordx2 s[16:17], s[0:1], 72")
    k("v_lshrrev_b32 v1, 6, v0")
    k("v_and_b32 v2, 63, v0")
    k("v_readfirstlane_b32 s18, v1")
    k("v_lshlrev_b32 v3, 4, v2")
    k("v_mov_b32 v4, 0x3f803f80")
    k("v_lshrrev_b32 v5, 5, v2")
    k("v_lshlrev_b32 v5, 4, v5")
    k("v_bfe_u32 v6, v2, 4, 1")
    k("v_lshl_add_u32 v5, v6, 2, v5")
    k("v_bfe_u32 v6, v2, 2, 2")
    k("v_add_u32 v5, v5, v6")
    k("v_and_b32 v6, 3, v2")
    k("s_waitcnt lgkmcnt(0)")
    srd(k, 24, 16, 0, WS_END)
    k(f"s_cmp_lt_u32 s56, {N_X}")
    k(f"s_cbranch_scc1 {N}_x")
    k(f"s_cmp_lt_u32 s56, {N_X+N_QKV}")
    k(f"s_cbranch_scc1 {N}_qkv")
    k(f"s_cmp_lt_u32 s56, {N_X+N_QKV+N_WO}")
    k(f"s_cbranch_scc1 {N}_wo")
    k(f"s_cmp_lt_u32 s56, {N_X+N_QKV+N_WO+N_GU}")
    k(f"s_cbranch_scc1 {N}_gu")

    def perm(dst, src, tmp):
        k(f"v_and_b32 v{dst}, 0xfffffff3, v{src}")
        k(f"v_bfe_u32 v{tmp}, v{src}, 2, 1")
        k(f"v_lshl_add_u32 v{dst}, v{tmp}, 3, v{dst}")
        k(f"v_bfe_u32 v{tmp}, v{src}, 3, 1")
        k(f"v_lshl_add_u32 v{dst}, v{tmp}, 2, v{dst}")

    def frags(items, stride, tagp):
        for i, (vb, imm, so, dimm, cs) in enumerate(items):
            r = 32 + 4 * (i % 18)
            k(f"ds_read_b64_tr_b16 v[{r}:{r+1}], v{vb} offset:{imm}", f"{tagp}{i}")
            k(f"ds_read_b64_tr_b16 v[{r+2}:{r+3}], v{vb} offset:{imm + 8*stride}", f"{tagp}{i}")
            if i >= 3:
                j = i - 3
                fin(items[j], j, tagp)
        for j in range(max(0, len(items) - 3), len(items)): fin(items[j], j, tagp)
    def fin(item, j, tagp):
        vb, imm, so, dimm, cs = item
        r = 32 + 4 * (j % 18)
        k(f"WAITLG {tagp}{j}")
        k(f"buffer_store_dwordx4 v[{r}:{r+3}], v3, s[24:27], s{so} offen offset:{dimm}")
        if cs is not None:
            for q in range(4): k(f"v_dot2c_f32_bf16 v{cs}, v{r+q}, v4")

    k(f"s_sub_u32 s20, s56, {N_X+N_QKV+N_WO+N_GU}")
    srd(k, 28, 10, 0, WD_SZ)
    k("v_lshrrev_b32 v7, 3, v0")
    k("s_lshl_b32 s21, s20, 6")
    k("v_add_u32 v8, s21, v7")
    k("v_add_u32 v9, 32, v8")
    k(f"s_mul_i32 s22, s20, 9216")
    k(f"s_add_u32 s22, s22, {WD}")
    k(f"s_mov_b32 s23, {72*9216}")
    k(f"s_branch {N}_dn_common")
    k(f"{N}_wo:")
    k(f"s_sub_u32 s20, s56, {N_X+N_QKV}")
    srd(k, 28, 8, 0, WO_SZ)
    k("v_lshrrev_b32 v7, 3, v0")
    k("s_lshl_b32 s21, s20, 6")
    k(f"s_mul_i32 s22, s20, 9216")
    k(f"s_add_u32 s22, s22, {WO}")
    k(f"s_mov_b32 s23, {9*9216}")
    for jj, dst in ((0, 8), (1, 9)):
        k(f"v_add_u32 v10, s21, v7")
        if jj: k("v_add_u32 v10, 32, v10")
        k("v_lshrrev_b32 v11, 4, v10")
        k("v_mul_u32_u24 v12, 18, v11")
        k("v_and_b32 v13, 15, v10")
        k("v_add_u32 v12, v12, v13")
        k("v_and_b32 v13, 1, v11")
        k("v_lshl_add_u32 v12, v13, 1, v12")
        k("v_subrev_u32 v11, 512, v10")
        k("v_lshrrev_b32 v11, 1, v11")
        k("v_and_b32 v11, 31, v11")
        k("v_mul_u32_u24 v13, 18, v11")
        k("v_and_b32 v14, 1, v10")
        k("v_add_u32 v13, v13, v14")
        k("v_and_b32 v14, 1, v11")
        k("v_xor_b32 v14, 1, v14")
        k("v_lshl_add_u32 v13, v14, 4, v13")
        k("v_cmp_gt_u32 vcc, 512, v10")
        k(f"v_cndmask_b32 v{dst}, v13, v12, vcc")
    k(f"{N}_dn_common:")
    k("v_and_b32 v10, 7, v0")
    k("v_lshlrev_b32 v10, 4, v10")
    k("v_mul_u32_u24 v8, 1152, v8")
    k("v_mul_u32_u24 v9, 1152, v9")
    k("v_add_u32 v8, v8, v10")
    k("v_add_u32 v9, v9, v10")
    for jj in range(2):
        for jc in range(9):
            r = 32 + 4 * (jj * 9 + jc)
            k(f"buffer_load_dwordx4 v[{r}:{r+3}], v{8+jj}, s[28:31], 0 offen offset:{jc*128}", f"dl{jj*9+jc}")
    perm(11, 7, 12)
    k("v_mul_u32_u24 v11, 1184, v11")
    k("v_add_u32 v11, v11, v10")
    for jj in range(2):
        for jc in range(9):
            r = 32 + 4 * (jj * 9 + jc)
            k(f"WAITVM dl{jj*9+jc}")
            k(f"ds_write_b128 v11, v[{r}:{r+3}] offset:{jj*32*1184 + jc*128}")
    k("v_mul_u32_u24 v12, 1184, v5")
    k("s_mul_i32 s21, s18, 288")
    k("v_add_u32 v12, s21, v12")
    k("v_and_b32 v14, 1, v6")
    k("v_lshl_add_u32 v13, v14, 3, v12")
    k("v_lshrrev_b32 v14, 1, v6")
    k(f"v_mul_u32_u24 v14, {32*1184}, v14")
    k("v_add_u32 v13, v13, v14")
    k("v_lshl_add_u32 v12, v6, 3, v12")
    k("s_lshl_b32 s21, s18, 1")
    k("s_mul_i32 s21, s21, s23")
    k("s_add_u32 s32, s22, s21")
    k("s_add_u32 s33, s32, 4096")
    k("s_add_u32 s34, s32, 8192")
    k("s_add_u32 s35, s32, s23")
    k("s_add_u32 s36, s35, 4096")
    k("s_add_u32 s37, s35, 8192")
    k("s_waitcnt lgkmcnt(0)")
    k("s_barrier")
    items = []
    for nn in range(2):
        for ks in range(2):
            for b in range(4):
                items.append((12, 144*nn + 32*b + ks*32*1184, 32 + 3*nn + ks, b*1024, None))
        items.append((13, 144*nn + 128, 32 + 3*nn + 2, 0, None))
    frags(items, 1184, "df")
    k("s_endpgm")

    k(f"{N}_gu:")
    k(f"s_sub_u32 s20, s56, {N_X+N_QKV+N_WO}")
    k("s_cmp_ge_u32 s20, 108")
    k("s_cselect_b32 s21, 1, 0")
    k("s_cselect_b32 s4, s14, s12")
    k("s_cselect_b32 s5, s15, s13")
    k("s_mul_i32 s22, s21, 108")
    k("s_sub_u32 s20, s20, s22")
    k("s_mul_i32 s22, s20, 43691")
    k("s_lshr_b32 s22, s22, 17")
    k("s_mul_i32 s23, s22, 3")
    k("s_sub_u32 s23, s20, s23")
    srd(k, 28, 4, 0, 576 * 4608 * 2)
    k("v_lshrrev_b32 v7, 4, v0")
    k("v_and_b32 v10, 15, v0")
    k("v_lshlrev_b32 v10, 4, v10")
    k("v_mul_u32_u24 v8, 9216, v7")
    k("v_add_u32 v8, v8, v10")
    k(f"s_mul_i32 s32, s23, {192*9216}")
    k("s_lshl_b32 s33, s22, 8")
    k("s_add_u32 s32, s32, s33")
    for j in range(12):
        r = 32 + 4 * j
        k(f"buffer_load_dwordx4 v[{r}:{r+3}], v8, s[28:31], s32 offen", f"gl{j}")
        if j < 11: k(f"s_add_u32 s32, s32, {16*9216}")
    perm(11, 7, 12)
    k("v_mul_u32_u24 v11, 288, v11")
    k("v_add_u32 v11, v11, v10")
    for j in range(12):
        r = 32 + 4 * j
        k(f"WAITVM gl{j}")
        k(f"ds_write_b128 v11, v[{r}:{r+3}] offset:{j*16*288}")
    k("v_mul_u32_u24 v12, 288, v5")
    k("s_lshl_b32 s33, s18, 6")
    k("v_add_u32 v12, s33, v12")
    k("v_lshl_add_u32 v12, v6, 3, v12")
    k("s_lshl_b32 s32, s22, 3")
    k("s_lshl_b32 s33, s18, 1")
    k("s_add_u32 s38, s32, s33")
    k("s_mul_i32 s32, s38, 18")
    k("s_mul_i32 s33, s23, 6")
    k("s_add_u32 s32, s32, s33")
    k("s_lshl_b32 s32, s32, 11")
    k("s_lshl_b32 s33, s21, 10")
    k("s_add_u32 s32, s32, s33")
    k(f"s_add_u32 s32, s32, {WGU}")
    k("s_add_u32 s33, s32, 4096")
    k("s_add_u32 s34, s32, 8192")
    k(f"s_add_u32 s35, s32, {18*2048}")
    k("s_add_u32 s36, s35, 4096")
    k("s_add_u32 s37, s35, 8192")
    k("v_mov_b32 v16, 0")
    k("v_mov_b32 v17, 0")
    k("s_waitcnt lgkmcnt(0)")
    k("s_barrier")
    items = []
    for bb in range(2):
        for ks in range(6):
            items.append((12, 32*bb + ks*32*288, 32 + 3*bb + ks//2, (ks % 2)*2048, 16 + bb))
    frags(items, 288, "gf")
    xreduce(k, [16, 17], [18, 19])
    k("s_mul_i32 s32, s23, 36864")
    k("s_lshl_b32 s33, s38, 7")
    k("s_add_u32 s32, s32, s33")
    k("s_lshl_b32 s33, s21, 6")
    k("s_add_u32 s32, s32, s33")
    k(f"s_add_u32 s32, s32, {SGU}")
    k("v_and_b32 v18, 15, v2")
    k("v_lshlrev_b32 v18, 2, v18")
    k("buffer_store_dword v16, v18, s[24:27], s32 offen")
    k("buffer_store_dword v17, v18, s[24:27], s32 offen offset:128")
    k("s_sub_u32 s57, s57, 1")
    k("s_cmp_eq_u32 s57, 0")
    k(f"s_cbranch_scc1 {N}_end")
    k("s_add_u32 s56, s56, s58")
    k("s_barrier")
    k("s_branch prep_unit")

    k(f"{N}_qkv:")
    k(f"s_sub_u32 s20, s56, {N_X}")
    k("s_mul_i32 s22, s20, 43691")
    k("s_lshr_b32 s22, s22, 17")
    k("s_mul_i32 s23, s22, 3")
    k("s_sub_u32 s23, s20, s23")
    srd(k, 28, 6, 0, WQKV_SZ)
    k("s_cmp_eq_u32 s18, 3")
    k(f"s_cbranch_scc1 {N}_qkv_noload")
    k("v_mul_u32_u24 v7, 171, v0")
    k("v_lshrrev_b32 v7, 10, v7")
    k("v_mul_u32_u24 v10, 6, v7")
    k("v_sub_u32 v10, v0, v10")
    k("v_lshlrev_b32 v10, 4, v10")
    k("v_mul_u32_u24 v8, 3456, v7")
    k("v_add_u32 v8, v8, v10")
    k(f"s_mul_i32 s32, s23, {192*3456}")
    k("s_mul_i32 s33, s22, 288")
    k("s_add_u32 s32, s32, s33")
    for jj in range(6):
        for jc in range(3):
            r = 32 + 4 * (jj * 3 + jc)
            k(f"buffer_load_dwordx4 v[{r}:{r+3}], v8, s[28:31], s32 offen offset:{jc*96}", f"ql{jj*3+jc}")
        if jj < 5: k(f"s_add_u32 s32, s32, {32*3456}")
    perm(11, 7, 12)
    k("v_mul_u32_u24 v11, 288, v11")
    k("v_add_u32 v11, v11, v10")
    for jj in range(6):
        for jc in range(3):
            r = 32 + 4 * (jj * 3 + jc)
            k(f"WAITVM ql{jj*3+jc}")
            k(f"ds_write_b128 v11, v[{r}:{r+3}] offset:{jj*32*288 + jc*96}")
    k(f"{N}_qkv_noload:")
    k("v_mul_u32_u24 v13, 288, v5")
    k("s_mul_i32 s33, s18, 72")
    k("v_add_u32 v12, s33, v13")
    k("v_lshl_add_u32 v12, v6, 3, v12")
    k("v_mul_u32_u24 v14, 72, v6")
    k("v_add_u32 v13, v13, v14")
    k("s_mul_i32 s32, s22, 18")
    k("s_mul_i32 s33, s23, 6")
    k("s_add_u32 s32, s32, s33")
    k("s_mul_i32 s32, s32, 9216")
    k(f"s_add_u32 s39, s32, {WQKV}")
    k("s_lshl_b32 s33, s18, 11")
    k("s_add_u32 s32, s39, s33")
    for ks in range(1, 6):
        k(f"s_add_u32 s{32+ks}, s32, {ks*9216}")
    k("s_add_u32 s40, s39, 8192")
    for ks in range(1, 6):
        k(f"s_add_u32 s{40+ks}, s40, {ks*9216}")
    k("v_mov_b32 v16, 0")
    k("v_mov_b32 v17, 0")
    k("v_mov_b32 v20, 0")
    k("s_waitcnt lgkmcnt(0)")
    k("s_barrier")
    items = []
    for bb in range(2):
        for ks in range(6):
            items.append((12, 40*bb + ks*32*288, 32 + ks, bb*1024, 16 + bb))
    frags(items, 288, "qf")
    xreduce(k, [16, 17], [18, 19])
    k("s_mul_i32 s46, s23, 6912")
    k("s_mul_i32 s47, s22, 576")
    k("s_add_u32 s46, s46, s47")
    k(f"s_add_u32 s46, s46, {SQKV}")
    k("s_lshl_b32 s47, s18, 7")
    k("s_add_u32 s47, s47, s46")
    k("v_and_b32 v18, 15, v2")
    k("v_lshlrev_b32 v18, 2, v18")
    k("buffer_store_dword v16, v18, s[24:27], s47 offen")
    k("buffer_store_dword v17, v18, s[24:27], s47 offen offset:64")
    k("s_cmp_lg_u32 s18, 3")
    k(f"s_cbranch_scc1 {N}_end")
    k("s_waitcnt vmcnt(0)")
    items = [(13, 32 + ks*32*288, 40 + ks, 0, 20) for ks in range(6)]
    frags(items, 288, "rf")
    xreduce(k, [20], [19])
    k("buffer_store_dword v20, v18, s[24:27], s46 offen offset:512")
    k("s_endpgm")

    k(f"{N}_x:")
    srd(k, 28, 4, 0, XSZ)
    k("s_lshl_b32 s20, s56, 1")
    k("s_lshr_b32 s21, s18, 1")
    k("s_add_u32 s20, s20, s21")
    k("s_and_b32 s22, s18, 1")
    k("v_lshrrev_b32 v7, 2, v2")
    k("v_and_b32 v8, 3, v2")
    k("v_mul_u32_u24 v9, 1152, v7")
    k("v_lshl_add_u32 v9, v8, 4, v9")
    k("s_mul_i32 s21, s20, 18432")
    k("s_mul_i32 s23, s22, 576")
    k("s_add_u32 s23, s23, s21")
    for j in range(9):
        r = 32 + 4 * j
        k(f"buffer_load_dwordx4 v[{r}:{r+3}], v9, s[28:31], s23 offen offset:{j*64}", f"xl{j}")
    k("s_mul_i32 s23, s18, 9792")
    k("v_mul_u32_u24 v10, 272, v8")
    k("v_lshl_add_u32 v10, v7, 4, v10")
    k("v_add_u32 v10, s23, v10")
    k("v_and_b32 v7, 15, v2")
    k("v_lshrrev_b32 v8, 4, v2")
    k("v_mul_u32_u24 v11, 272, v8")
    k("v_lshl_add_u32 v11, v7, 4, v11")
    k("v_add_u32 v11, s23, v11")
    k("s_mul_i32 s23, s22, 9216")
    k("s_add_u32 s32, s21, s23")
    if XF0: k(f"s_add_u32 s32, s32, {XF0}")
    for i in range(1, 3): k(f"s_add_u32 s{32+i}, s32, {4096*i}")
    k("v_mov_b32 v16, 0")
    k("v_mov_b32 v17, 0")
    for j in range(9):
        r = 32 + 4 * j
        k(f"WAITVM xl{j}")
        k(f"ds_write_b128 v10, v[{r}:{r+3}] offset:{j*1088}")
        k(f"ds_read_b128 v[{r+36}:{r+39}], v11 offset:{j*1088}", f"xr{j}")
    for j in range(9):
        r = 68 + 4 * j
        k(f"WAITLG xr{j}")
        k(f"buffer_store_dwordx4 v[{r}:{r+3}], v3, s[24:27], s{32 + j//4} offen offset:{(j%4)*1024}")
        for q in range(4):
            k(f"v_dot2c_f32_bf16 v16, v{r+q}, v4")
            k(f"v_dot2c_f32_bf16 v17, v{r+q}, v{r+q}")
    xreduce(k, [16, 17], [18, 19])
    k("v_cmp_eq_u32 vcc, 0, v8")
    k("v_cndmask_b32 v16, 0, v16, vcc")
    k("v_cndmask_b32 v17, 0, v17, vcc")
    k("s_lshl_b32 s21, s20, 10")
    k("s_lshl_b32 s22, s22, 3")
    k("s_add_u32 s21, s21, s22")
    k(f"s_add_u32 s21, s21, {ST0}")
    k("buffer_store_dwordx2 v[16:17], v3, s[24:27], s21 offen")
    k.stamp_out(16)
    k(f"{N}_end:")
    k("s_endpgm")
    launches = [("prep_kernel", grid, 256, PREP_LDS)]
    desc = descriptor("prep_kernel", 104, 0)
    return k, launches, desc, ["prep_kernel"]
```

```python
from asmgen import *
from layout import *
from k_prep import srd, entry, xreduce, jump_to_pack, FFN0
import os
NPACK = 0 if os.environ.get('NOSPLIT') else 64
import math

GRID = 192
LDS_ST = 147456
LDS_S = LDS_ST + 1024
LDS = LDS_S + 576
QSCALE = 18 ** -0.5 * math.log2(math.e)

def f2u(x):
    import struct
    return "0x%08x" % struct.unpack("<I", struct.pack("<f", x))[0]

def load_stats(k, srd_s, vaddr, ntb, r0, tag, mod=""):
    for j in range(ntb):
        k(f"buffer_load_dwordx4 v[{r0+4*j}:{r0+4*j+3}], v{vaddr}, s[{srd_s}:{srd_s+3}], 0 offen offset:{j*1024} {mod}", tag)

def finish_stats(k, ntb, r0):
    for j in range(ntb):
        r = r0 + 4 * j
        k(f"v_add_f32 v{r}, v{r}, v{r+2}")
        k(f"v_add_f32 v{r+1}, v{r+1}, v{r+3}")
    regs = [r0 + 4 * j + q for j in range(ntb) for q in range(2)]
    xreduce(k, regs, [r + 2 for r in regs])
    for j in range(ntb):
        r = r0 + 4 * j
        k(f"v_mul_f32 v{r}, {f2u(1/576)}, v{r}")
        k(f"v_mul_f32 v{r+1}, {f2u(1/576)}, v{r+1}")
        k(f"v_fma_f32 v{r+1}, -v{r}, v{r}, v{r+1}")
        k(f"v_max_f32 v{r+1}, 0, v{r+1}")
        k(f"v_add_f32 v{r+1}, {f2u(1e-5)}, v{r+1}")

def gen():
    k = Kern(); N = "qkv"; k.name = N
    for name, xo, so in (("qkv1_kernel", XF0, ST0), ("qkv2_kernel", X2, ST2)):
        entry(k, name)
        if name == "qkv1_kernel" and NPACK:
            k(f"s_cmp_lt_u32 s2, {GRID}")
            k(f"s_cbranch_scc1 {N}_e1")
            k(f"s_cmp_ge_u32 s2, {GRID + NPACK}")
            k(f"s_cbranch_scc1 {N}_end")
            jump_to_pack(k, [f"s_add_u32 s56, s2, {FFN0 - GRID}"], 2, NPACK)
            k(f"{N}_e1:")
        k("s_load_dwordx2 s[4:5], s[0:1], 72")
        k(f"s_mov_b32 s40, {xo}")
        k(f"s_mov_b32 s41, {so}")
        if name == "qkv1_kernel": k(f"s_branch {N}_main")
    k(f"{N}_main:")
    k(f"s_cmp_ge_u32 s2, {GRID}")
    k(f"s_cbranch_scc1 {N}_end")
    k.add(k.stamp(0))
    k("v_lshrrev_b32 v4, 6, v0")
    k("v_and_b32 v5, 63, v0")
    k("v_readfirstlane_b32 s18, v4")
    k("v_lshlrev_b32 v1, 4, v5")
    k("s_and_b32 s6, s2, 7")
    k("s_lshr_b32 s7, s2, 3")
    k("s_mul_i32 s16, s7, 43")
    k("s_lshr_b32 s16, s16, 8")
    for i in range(24): assert (i * 43) >> 8 == i // 6
    k("s_mul_i32 s17, s16, 6")
    k("s_sub_u32 s17, s7, s17")
    k("s_lshr_b32 s7, s6, 1")
    k("s_lshl_b32 s7, s7, 2")
    k("s_add_u32 s16, s16, s7")
    k("s_and_b32 s6, s6, 1")
    k("s_mul_i32 s6, s6, 6")
    k("s_add_u32 s17, s17, s6")
    k("s_lshl_b32 s19, s16, 3")
    k("s_lshl_b32 s6, s18, 1")
    k("s_add_u32 s19, s19, s6")
    k("s_lshl_b32 s38, s18, 12")
    k("s_lshl_b32 s39, s18, 9")
    k("s_add_u32 s39, s39, 16384")
    k("s_mul_i32 s6, s19, 18432")
    k("v_add_u32 v2, s6, v1")
    k("v_add_u32 v3, 18432, v2")
    k("s_mul_i32 s6, s17, 165888")
    k(f"s_add_u32 s6, s6, {WQKV}")
    k(f"s_mov_b32 s10, {XSZ}"); k("s_mov_b32 s11, 0x20000"); k("s_mov_b32 s14, 165888"); k("s_mov_b32 s15, 0x20000")
    k("s_waitcnt lgkmcnt(0)")
    k("s_add_u32 s8, s4, s40"); k("s_addc_u32 s9, s5, 0"); k("s_and_b32 s9, s9, 0xffff")
    k("s_add_u32 s12, s4, s6"); k("s_addc_u32 s13, s5, 0"); k("s_and_b32 s13, s13, 0xffff")
    def xfrag(ks, j): return 4 * (ks * 2 + j)
    def group(g):
        L = []
        slot = g % 8; va = 1 if g < 8 else 6
        for j in range(4):
            L.append(([f"s_add_u32 m0, s38, {slot * 18432}", "s_nop 0"] if j == 0 else []) + [(f"buffer_load_dwordx4 v{va}, s[12:15], m0 offen offset:{j*1024} lds", f"g{g}")])
        L.append([f"s_add_u32 m0, s39, {slot * 18432}", "s_mov_b32 exec_hi, 0", (f"buffer_load_dwordx4 v{va}, s[12:15], m0 offen lds", f"g{g}"), "s_mov_b32 exec_hi, -1"])
        for ks in (2 * g, 2 * g + 1):
            for j in range(2):
                r = xfrag(ks, j)
                so = "0" if ks < 4 else f"s{32 + ks // 4}"
                L.append([(f"buffer_load_dwordx4 a[{r}:{r+3}], v{2+j}, s[8:11], {so} offen offset:{(ks % 4) * 1024}", f"g{g}")])
        return L
    for g in range(2):
        for bnd in group(g): k.add(bnd)
    for i in range(1, 5): k(f"s_mov_b32 s{32+i}, {4096*i}")
    k(f"v_add_u32 v6, {8*18432}, v1")
    k("v_and_b32 v7, 15, v5")
    k("v_lshrrev_b32 v8, 4, v5")
    k("s_lshl_b32 s6, s19, 10")
    k("v_add_u32 v9, s6, v1")
    k("v_min_u32 v10, 35, v5")
    k("v_lshlrev_b32 v10, 4, v10")
    k("s_mul_i32 s42, s17, 576")
    k("s_add_u32 s43, s42, 6912")
    k("s_add_u32 s44, s42, 13824")
    k("s_add_u32 s20, s4, s41"); k("s_addc_u32 s21, s5, 0"); k("s_and_b32 s21, s21, 0xffff"); k(f"s_mov_b32 s22, {STSZ}"); k("s_mov_b32 s23, 0x20000")
    srd(k, 28, 4, SQKV, SQKV_SZ)
    srd(k, 24, 4, QKV, 3 * XSZ)
    k("v_add_u32 v16, 65536, v1")
    k("v_add_u32 v17, 131072, v1")
    k("s_cmp_lt_u32 s17, 4")
    k(f"s_cselect_b32 s46, {f2u(QSCALE)}, 1.0")
    k("s_lshl_b32 s47, s18, 8")
    k(f"s_add_u32 s47, s47, {LDS_ST}")
    k("s_mul_i32 s45, s17, 589824")
    k("s_lshl_b32 s48, s19, 9")
    R0 = 176; CS = 184
    W = (32, 68); ACC = 104
    k("s_cmp_ge_u32 s17, 8")
    k(f"s_cbranch_scc1 {N}_v")
    for path in ("qk", "v"):
        k.path = path
        if path == "v": k(f"{N}_v:")
        kl = Kern(); load_stats(kl, 20, 9, 2, R0, "st")
        for i, sr in enumerate((42, 43, 44)):
            kl(f"buffer_load_dwordx4 v[{CS+4*i}:{CS+4*i+3}], v10, s[28:31], s{sr} offen", "st")
        kf = Kern()
        kf("WAITVM st")
        for q in range(4):
            kf(f"v_add_f32 v{CS+q}, v{CS+q}, v{CS+4+q}")
            kf(f"v_add_f32 v{CS+q}, v{CS+q}, v{CS+8+q}")
        kf(f"v_add_u32 v10, {LDS_S}, v10")
        kf(f"ds_write_b128 v10, v[{CS}:{CS+3}]")
        finish_stats(kf, 2, R0)
        kf(f"v_rsq_f32 v13, v{R0+1}")
        kf(f"v_rsq_f32 v15, v{R0+5}")
        kf(f"v_sub_f32 v12, 0, v{R0}")
        kf(f"v_sub_f32 v14, 0, v{R0+4}")
        if path == "qk":
            kf("v_mul_f32 v13, s46, v13")
            kf("v_mul_f32 v15, s46, v15")
            kf(f"v_lshlrev_b32 v10, 4, v8")
            kf("v_and_b32 v18, 1, v8")
            kf("v_lshlrev_b32 v18, 9, v18")
            kf("v_lshrrev_b32 v19, 1, v8")
            kf("v_lshl_add_u32 v18, v19, 8, v18")
            kf("v_lshl_add_u32 v18, v7, 4, v18")
            kf("v_add_u32 v18, s48, v18")
        else:
            kf("v_lshl_add_u32 v11, v7, 3, s47")
            kf("ds_write_b64 v11, v[12:13]")
            kf("ds_write_b64 v11, v[14:15] offset:128")
            kf("v_lshl_add_u32 v11, v8, 5, s47")
            for j in range(2):
                for h in range(2):
                    kf(f"ds_read_b128 v[{R0+8*j+4*h}:{R0+8*j+4*h+3}], v11 offset:{j*128+h*16}", "vs")
            kf(f"v_lshlrev_b32 v10, 2, v7")
            kf("v_add_u32 v18, s48, v1")
        kf(f"v_add_u32 v10, {LDS_S}, v10")
        def rd(ks, b):
            r = W[ks % 2] + 4 * b
            off = ((ks // 2) % 8) * 18432 + (ks % 2) * 9216 + b * 1024
            va = 1 if off < 65536 else (16 if off < 131072 else 17)
            return (f"ds_read_b128 v[{r}:{r+3}], v{va} offset:{off % 65536}", f"w{ks}_{b}")
        k.add(k.stamp(1))
        k("WAITVM g0")
        k("s_barrier")
        k.add(k.stamp(3))
        for b in range(9): k.add([rd(0, b)])
        k("WAITLG w0_2")
        mf = []; fixed = {}; flow = []
        def fx(i, x): fixed.setdefault(i, []).extend(x if isinstance(x, list) else [x])
        def spread(bundles, g0, g1):
            step = (g1 - g0) / len(bundles); last = -1
            for n, bnd in enumerate(bundles):
                g = max(int(g0 + (n + 0.5) * step) | 1, last + 2); last = g
                fixed.setdefault(g, []).append(Bundle(bnd))
        SV = 196; PR = 232
        def mfma(ks, b, j):
            w = W[ks % 2] + 4 * b; a = ACC + 4 * (j * 9 + b); x = xfrag(ks, j)
            c = "0" if ks == 0 else f"v[{a}:{a+3}]"
            if path == "qk": return f"v_mfma_f32_16x16x32_bf16 v[{a}:{a+3}], v[{w}:{w+3}], a[{x}:{x+3}], {c}"
            return f"v_mfma_f32_16x16x32_bf16 v[{a}:{a+3}], a[{x}:{x+3}], v[{w}:{w+3}], {c}"
        def epi(b):
            L = []; P = PR + 4 * (b % 2)
            for j in range(2):
                a = ACC + 4 * (j * 9 + b)
                if path == "qk":
                    for i in range(4): L.append(f"v_fma_f32 v{a+i}, v{12+2*j}, v{SV+4*b+i}, v{a+i}")
                    for i in range(4): L.append(f"v_mul_f32 v{a+i}, v{a+i}, v{13+2*j}")
                else:
                    for i in range(4): L.append(f"v_fma_f32 v{a+i}, v{R0+8*j+2*i}, v{SV+b}, v{a+i}")
                    for i in range(4): L.append(f"v_mul_f32 v{a+i}, v{a+i}, v{R0+8*j+2*i+1}")
                L.append(f"v_cvt_pk_bf16_f32 v{P+2*j}, v{a}, v{a+1}")
                L.append(f"v_cvt_pk_bf16_f32 v{P+2*j+1}, v{a+2}, v{a+3}")
            if path == "qk":
                L.append(f"v_permlane16_swap_b32 v{P}, v{P+2}")
                L.append(f"v_permlane16_swap_b32 v{P+1}, v{P+3}")
            L.append(f"buffer_store_dwordx4 v[{P}:{P+3}], v18, s[24:27], s45 offen")
            if b < 8: L.append("s_add_u32 s45, s45, 65536")
            return L
        for b in range(9):
            if path == "qk": kf(f"ds_read_b128 v[{SV+4*b}:{SV+4*b+3}], v10 offset:{b*64}", "sv")
            else: kf(f"ds_read_b32 v{SV+b}, v10 offset:{b*64}", "sv")
        for ks in range(16):
            g = ks // 2; i0 = len(mf)
            if ks == 0: spread(group(2), 0, 16)
            if ks % 2 == 1:
                fx(i0 - 4, f"WAITVM g{g+1}")
                fx(i0 - 2, ["s_barrier"] + k.stamp(4 + g))
                ext = group(g + 3) if g + 3 <= 8 else []
                if g == 1: ext = ext + [[x] for x in kl.ins]
                if ext: spread(ext, i0, i0 + 32)
                if g == 3: flow = [(x, i0) for x in kf.ins]
            for b in range(9):
                i = len(mf)
                if b % 3 == 0 and i > 0: fx(i - 1, f"WAITLG w{ks}_{b+2}")
                mf += [mfma(ks, b, 0), mfma(ks, b, 1)]
                fx(i, rd(ks + 1, b))
                if ks == 15 and b >= 7: fx(i + 1, rd(17, b - 7))
        for b in range(9):
            i = len(mf)
            fx(i - 1, f"WAITLG w17_{b}, w16_8")
            mf += [mfma(16, b, 0), mfma(16, b, 1), mfma(17, b, 0), mfma(17, b, 1)]
            if b + 2 < 9: fx(i, rd(17, b + 2))
            flow += [(x, i + 5) for x in epi(b)]
        left, over = pack(k, mf, fixed, flow)
        k.add(k.stamp(12))
        k.add(left)
        k.stamp_out()
        if path == "qk": k("s_endpgm")
    k.path = None
    k(f"{N}_end:")
    k("s_endpgm")
    names = ["qkv1_kernel", "qkv2_kernel"]
    launches = [(n, GRID + (NPACK if n == 'qkv1_kernel' else 0), 256, LDS) for n in names]
    k.only_paths = [{'qkv_e1'}, {'qkv_e1', 'qkv_v'}]
    desc = "".join(descriptor(n, 240, 144) for n in names)
    return k, launches, desc, names
```

```python
import sys
from asmgen import *
from layout import *
import k_prep

def finalize(k, entries, verbose=True):
    k.resolve_waits()
    added = k.fix_hazards()
    errs = []
    for e in entries:
        fw = list(dict.fromkeys(k.fwd_targets()))
        runs = [set()] + [{t} for t in fw if not t.endswith("_end")]
        extra = getattr(k, "extra_paths", [])
        for tk in getattr(k, 'only_paths', None) or (runs + extra):
            if tk in getattr(k, 'skip_paths', []): continue
            errs += k.check(e, e + str(sorted(tk)), taken=tk)
    errs = list(dict.fromkeys(errs))
    for x in errs[:40]: print("ERR", x)
    if verbose: print(entries, "instrs:", sum(1 for x in k.ins if x.kind not in ("label", "dir")), "nops added:", added, "errors:", len(errs))
    assert not errs

HEADER = open("interleave_layers__sliding_block__swiglu_ffn__prompt.s.ref").read().split("; Override launch")[0]

def build(parts, order, path):
    info = {}
    for k, launches, desc, entries in parts:
        finalize(k, entries)
        for l in launches: info[l[0]] = l
    out = HEADER
    for n in order:
        _, g, b, lds = info[n]
        out += f"; @launch kernel={n} grid=({g},1,1) block=({b},1,1) lds={lds}\n"
    out += '.amdgcn_target "amdgcn-amd-amdhsa--gfx950"\n.text\n'
    for k, launches, desc, entries in parts: out += k.text()
    for k, launches, desc, entries in parts: out += desc
    open(path, "w").write(out)

if __name__ == "__main__":
    parts = [k_prep.gen_prep()]
    order = ["prep_kernel"]
    try:
        import k_qkv; parts.append(k_qkv.gen());
        import k_attn; parts.append(k_attn.gen())
        import k_gemmk; parts.append(k_gemmk.gen())
        import k_ffn1; parts.append(k_ffn1.gen())
    except ModuleNotFoundError as e:
        print("missing", e)
    import os
    if os.environ.get("PF"):
        import k_pf; parts.append(k_pf.gen())
    names = [l[0] for p in parts for l in p[1]]
    full = ["prep_kernel", "qkv1_kernel", "attn1_kernel", "wo1_kernel", "ffn1_kernel", "down1_kernel",
            "qkv2_kernel", "attn2_kernel", "wo2_kernel", "ffn1_kernel", "down2_kernel"]
    if os.environ.get("PF"): full.insert(5, "pf_kernel")
    order = []
    for n in full:
        if n not in names: break
        order.append(n)
    build(parts, order, sys.argv[1] if len(sys.argv) > 1 else "main.s")
```

```python
from asmgen import *
from layout import *

def srd(k, d, p, off, size):
    if off:
        k(f"s_add_u32 s{d}, s{p}, {off}")
        k(f"s_addc_u32 s{d+1}, s{p+1}, 0")
        k(f"s_and_b32 s{d+1}, s{d+1}, 0xffff")
    else:
        k(f"s_mov_b32 s{d}, s{p}")
        k(f"s_and_b32 s{d+1}, s{p+1}, 0xffff")
    k(f"s_mov_b32 s{d+2}, {size}")
    k(f"s_mov_b32 s{d+3}, 0x20000")

def entry(k, name):
    k(f".globl {name}")
    k(".p2align 8")
    k(f".type {name},@function")
    k(f"{name}:")

def xreduce(k, regs, tmp, op="v_add_f32"):
    for sw in ("v_permlane16_swap_b32", "v_permlane32_swap_b32"):
        for r, t in zip(regs, tmp): k(f"v_mov_b32 v{t}, v{r}")
        for r, t in zip(regs, tmp): k(f"{sw} v{r}, v{t}")
        for r, t in zip(regs, tmp): k(f"{op} v{r}, v{r}, v{t}")

import os
NT = os.environ.get("PNT", "")
N_X, N_QKV, N_WO, N_GU, N_WD = 64, 36, 9, 216, 72
PREP_GRID = N_X + N_QKV + N_WO + N_GU + N_WD
PREP_LDS = 64 * 1184

for _t in range(192): assert (_t * 171) >> 10 == _t // 6

FFN0 = N_X + N_QKV + N_WO
PREP0_GRID = FFN0

def jump_to_pack(k, unit_expr_lines, repeats, stride):
    for l in unit_expr_lines: k(l)
    k(f"s_mov_b32 s57, {repeats}")
    k(f"s_mov_b32 s58, {stride}")
    k("s_branch prep_unit")

def gen_prep():
    import os
    SPLIT = not os.environ.get("NOSPLIT")
    grid = PREP0_GRID if SPLIT else PREP_GRID
    k = Kern(); N = "prep"; k.name = N
    entry(k, "prep_kernel")
    k(f"s_cmp_ge_u32 s2, {grid}")
    k(f"s_cbranch_scc1 {N}_end")
    k("s_mov_b32 s56, s2")
    k("s_mov_b32 s57, 1")
    k("s_mov_b32 s58, 0")
    k("prep_unit:")
    k.add(k.stamp(0))
    k("s_load_dwordx4 s[4:7], s[0:1], 0")
    k("s_load_dwordx2 s[8:9], s[0:1], 16")
    k("s_load_dwordx4 s[12:15], s[0:1], 32")
    k("s_load_dwordx2 s[10:11], s[0:1], 48")
    k("s_load_dwordx2 s[16:17], s[0:1], 72")
    k("v_lshrrev_b32 v1, 6, v0")
    k("v_and_b32 v2, 63, v0")
    k("v_readfirstlane_b32 s18, v1")
    k("v_lshlrev_b32 v3, 4, v2")
    k("v_mov_b32 v4, 0x3f803f80")
    k("v_lshrrev_b32 v5, 5, v2")
    k("v_lshlrev_b32 v5, 4, v5")
    k("v_bfe_u32 v6, v2, 4, 1")
    k("v_lshl_add_u32 v5, v6, 2, v5")
    k("v_bfe_u32 v6, v2, 2, 2")
    k("v_add_u32 v5, v5, v6")
    k("v_and_b32 v6, 3, v2")
    k("s_waitcnt lgkmcnt(0)")
    srd(k, 24, 16, 0, WS_END)
    k(f"s_cmp_lt_u32 s56, {N_X}")
    k(f"s_cbranch_scc1 {N}_x")
    k(f"s_cmp_lt_u32 s56, {N_X+N_QKV}")
    k(f"s_cbranch_scc1 {N}_qkv")
    k(f"s_cmp_lt_u32 s56, {N_X+N_QKV+N_WO}")
    k(f"s_cbranch_scc1 {N}_wo")
    k(f"s_cmp_lt_u32 s56, {N_X+N_QKV+N_WO+N_GU}")
    k(f"s_cbranch_scc1 {N}_gu")

    def perm(dst, src, tmp):
        k(f"v_and_b32 v{dst}, 0xfffffff3, v{src}")
        k(f"v_bfe_u32 v{tmp}, v{src}, 2, 1")
        k(f"v_lshl_add_u32 v{dst}, v{tmp}, 3, v{dst}")
        k(f"v_bfe_u32 v{tmp}, v{src}, 3, 1")
        k(f"v_lshl_add_u32 v{dst}, v{tmp}, 2, v{dst}")

    def frags(items, stride, tagp):
        for i, (vb, imm, so, dimm, cs) in enumerate(items):
            r = 32 + 4 * (i % 18)
            k(f"ds_read_b64_tr_b16 v[{r}:{r+1}], v{vb} offset:{imm}", f"{tagp}{i}")
            k(f"ds_read_b64_tr_b16 v[{r+2}:{r+3}], v{vb} offset:{imm + 8*stride}", f"{tagp}{i}")
            if i >= 3:
                j = i - 3
                fin(items[j], j, tagp)
        for j in range(max(0, len(items) - 3), len(items)): fin(items[j], j, tagp)
    def fin(item, j, tagp):
        vb, imm, so, dimm, cs = item
        r = 32 + 4 * (j % 18)
        k(f"WAITLG {tagp}{j}")
        k(f"buffer_store_dwordx4 v[{r}:{r+3}], v3, s[24:27], s{so} offen offset:{dimm}")
        if cs is not None:
            for q in range(4): k(f"v_dot2c_f32_bf16 v{cs}, v{r+q}, v4")

    k(f"s_sub_u32 s20, s56, {N_X+N_QKV+N_WO+N_GU}")
    srd(k, 28, 10, 0, WD_SZ)
    k("v_lshrrev_b32 v7, 3, v0")
    k("s_lshl_b32 s21, s20, 6")
    k("v_add_u32 v8, s21, v7")
    k("v_add_u32 v9, 32, v8")
    k(f"s_mul_i32 s22, s20, 9216")
    k(f"s_add_u32 s22, s22, {WD}")
    k(f"s_mov_b32 s23, {72*9216}")
    k(f"s_branch {N}_dn_common")
    k(f"{N}_wo:")
    k(f"s_sub_u32 s20, s56, {N_X+N_QKV}")
    srd(k, 28, 8, 0, WO_SZ)
    k("v_lshrrev_b32 v7, 3, v0")
    k("s_lshl_b32 s21, s20, 6")
    k(f"s_mul_i32 s22, s20, 9216")
    k(f"s_add_u32 s22, s22, {WO}")
    k(f"s_mov_b32 s23, {9*9216}")
    for jj, dst in ((0, 8), (1, 9)):
        k(f"v_add_u32 v10, s21, v7")
        if jj: k("v_add_u32 v10, 32, v10")
        k("v_lshrrev_b32 v11, 4, v10")
        k("v_mul_u32_u24 v12, 18, v11")
        k("v_and_b32 v13, 15, v10")
        k("v_add_u32 v12, v12, v13")
        k("v_and_b32 v13, 1, v11")
        k("v_lshl_add_u32 v12, v13, 1, v12")
        k("v_subrev_u32 v11, 512, v10")
        k("v_lshrrev_b32 v11, 1, v11")
        k("v_and_b32 v11, 31, v11")
        k("v_mul_u32_u24 v13, 18, v11")
        k("v_and_b32 v14, 1, v10")
        k("v_add_u32 v13, v13, v14")
        k("v_and_b32 v14, 1, v11")
        k("v_xor_b32 v14, 1, v14")
        k("v_lshl_add_u32 v13, v14, 4, v13")
        k("v_cmp_gt_u32 vcc, 512, v10")
        k(f"v_cndmask_b32 v{dst}, v13, v12, vcc")
    k(f"{N}_dn_common:")
    k("v_and_b32 v10, 7, v0")
    k("v_lshlrev_b32 v10, 4, v10")
    k("v_mul_u32_u24 v8, 1152, v8")
    k("v_mul_u32_u24 v9, 1152, v9")
    k("v_add_u32 v8, v8, v10")
    k("v_add_u32 v9, v9, v10")
    for jj in range(2):
        for jc in range(9):
            r = 32 + 4 * (jj * 9 + jc)
            k(f"buffer_load_dwordx4 v[{r}:{r+3}], v{8+jj}, s[28:31], 0 offen offset:{jc*128} {NT}", f"dl{jj*9+jc}")
    perm(11, 7, 12)
    k("v_mul_u32_u24 v11, 1184, v11")
    k("v_add_u32 v11, v11, v10")
    for jj in range(2):
        for jc in range(9):
            r = 32 + 4 * (jj * 9 + jc)
            k(f"WAITVM dl{jj*9+jc}")
            k(f"ds_write_b128 v11, v[{r}:{r+3}] offset:{jj*32*1184 + jc*128}")
    k("v_mul_u32_u24 v12, 1184, v5")
    k("s_mul_i32 s21, s18, 288")
    k("v_add_u32 v12, s21, v12")
    k("v_and_b32 v14, 1, v6")
    k("v_lshl_add_u32 v13, v14, 3, v12")
    k("v_lshrrev_b32 v14, 1, v6")
    k(f"v_mul_u32_u24 v14, {32*1184}, v14")
    k("v_add_u32 v13, v13, v14")
    k("v_lshl_add_u32 v12, v6, 3, v12")
    k("s_lshl_b32 s21, s18, 1")
    k("s_mul_i32 s21, s21, s23")
    k("s_add_u32 s32, s22, s21")
    k("s_add_u32 s33, s32, 4096")
    k("s_add_u32 s34, s32, 8192")
    k("s_add_u32 s35, s32, s23")
    k("s_add_u32 s36, s35, 4096")
    k("s_add_u32 s37, s35, 8192")
    k("s_waitcnt lgkmcnt(0)")
    k("s_barrier")
    items = []
    for nn in range(2):
        for ks in range(2):
            for b in range(4):
                items.append((12, 144*nn + 32*b + ks*32*1184, 32 + 3*nn + ks, b*1024, None))
        items.append((13, 144*nn + 128, 32 + 3*nn + 2, 0, None))
    frags(items, 1184, "df")
    k("s_endpgm")

    k(f"{N}_gu:")
    k(f"s_sub_u32 s20, s56, {N_X+N_QKV+N_WO}")
    k("s_cmp_ge_u32 s20, 108")
    k("s_cselect_b32 s21, 1, 0")
    k("s_cselect_b32 s4, s14, s12")
    k("s_cselect_b32 s5, s15, s13")
    k("s_mul_i32 s22, s21, 108")
    k("s_sub_u32 s20, s20, s22")
    k("s_mul_i32 s22, s20, 43691")
    k("s_lshr_b32 s22, s22, 17")
    k("s_mul_i32 s23, s22, 3")
    k("s_sub_u32 s23, s20, s23")
    srd(k, 28, 4, 0, 576 * 4608 * 2)
    k("v_lshrrev_b32 v7, 4, v0")
    k("v_and_b32 v10, 15, v0")
    k("v_lshlrev_b32 v10, 4, v10")
    k("v_mul_u32_u24 v8, 9216, v7")
    k("v_add_u32 v8, v8, v10")
    k(f"s_mul_i32 s32, s23, {192*9216}")
    k("s_lshl_b32 s33, s22, 8")
    k("s_add_u32 s32, s32, s33")
    for j in range(12):
        r = 32 + 4 * j
        k(f"buffer_load_dwordx4 v[{r}:{r+3}], v8, s[28:31], s32 offen {NT}", f"gl{j}")
        if j < 11: k(f"s_add_u32 s32, s32, {16*9216}")
    perm(11, 7, 12)
    k("v_mul_u32_u24 v11, 288, v11")
    k("v_add_u32 v11, v11, v10")
    for j in range(12):
        r = 32 + 4 * j
        k(f"WAITVM gl{j}")
        k(f"ds_write_b128 v11, v[{r}:{r+3}] offset:{j*16*288}")
    k("v_mul_u32_u24 v12, 288, v5")
    k("s_lshl_b32 s33, s18, 6")
    k("v_add_u32 v12, s33, v12")
    k("v_lshl_add_u32 v12, v6, 3, v12")
    k("s_lshl_b32 s32, s22, 3")
    k("s_lshl_b32 s33, s18, 1")
    k("s_add_u32 s38, s32, s33")
    k("s_mul_i32 s32, s38, 18")
    k("s_mul_i32 s33, s23, 6")
    k("s_add_u32 s32, s32, s33")
    k("s_lshl_b32 s32, s32, 11")
    k("s_lshl_b32 s33, s21, 10")
    k("s_add_u32 s32, s32, s33")
    k(f"s_add_u32 s32, s32, {WGU}")
    k("s_add_u32 s33, s32, 4096")
    k("s_add_u32 s34, s32, 8192")
    k(f"s_add_u32 s35, s32, {18*2048}")
    k("s_add_u32 s36, s35, 4096")
    k("s_add_u32 s37, s35, 8192")
    k("v_mov_b32 v16, 0")
    k("v_mov_b32 v17, 0")
    k("s_waitcnt lgkmcnt(0)")
    k("s_barrier")
    items = []
    for bb in range(2):
        for ks in range(6):
            items.append((12, 32*bb + ks*32*288, 32 + 3*bb + ks//2, (ks % 2)*2048, 16 + bb))
    frags(items, 288, "gf")
    xreduce(k, [16, 17], [18, 19])
    k("s_mul_i32 s32, s23, 36864")
    k("s_lshl_b32 s33, s38, 7")
    k("s_add_u32 s32, s32, s33")
    k("s_lshl_b32 s33, s21, 6")
    k("s_add_u32 s32, s32, s33")
    k(f"s_add_u32 s32, s32, {SGU}")
    k("v_and_b32 v18, 15, v2")
    k("v_lshlrev_b32 v18, 2, v18")
    k("buffer_store_dword v16, v18, s[24:27], s32 offen")
    k("buffer_store_dword v17, v18, s[24:27], s32 offen offset:128")
    k("s_sub_u32 s57, s57, 1")
    k("s_cmp_eq_u32 s57, 0")
    k(f"s_cbranch_scc1 {N}_end")
    k("s_add_u32 s56, s56, s58")
    k("s_barrier")
    k("s_branch prep_unit")

    k(f"{N}_qkv:")
    k(f"s_sub_u32 s20, s56, {N_X}")
    k("s_mul_i32 s22, s20, 43691")
    k("s_lshr_b32 s22, s22, 17")
    k("s_mul_i32 s23, s22, 3")
    k("s_sub_u32 s23, s20, s23")
    srd(k, 28, 6, 0, WQKV_SZ)
    k("s_cmp_eq_u32 s18, 3")
    k(f"s_cbranch_scc1 {N}_qkv_noload")
    k("v_mul_u32_u24 v7, 171, v0")
    k("v_lshrrev_b32 v7, 10, v7")
    k("v_mul_u32_u24 v10, 6, v7")
    k("v_sub_u32 v10, v0, v10")
    k("v_lshlrev_b32 v10, 4, v10")
    k("v_mul_u32_u24 v8, 3456, v7")
    k("v_add_u32 v8, v8, v10")
    k(f"s_mul_i32 s32, s23, {192*3456}")
    k("s_mul_i32 s33, s22, 288")
    k("s_add_u32 s32, s32, s33")
    for jj in range(6):
        for jc in range(3):
            r = 32 + 4 * (jj * 3 + jc)
            k(f"buffer_load_dwordx4 v[{r}:{r+3}], v8, s[28:31], s32 offen offset:{jc*96}", f"ql{jj*3+jc}")
        if jj < 5: k(f"s_add_u32 s32, s32, {32*3456}")
    perm(11, 7, 12)
    k("v_mul_u32_u24 v11, 288, v11")
    k("v_add_u32 v11, v11, v10")
    for jj in range(6):
        for jc in range(3):
            r = 32 + 4 * (jj * 3 + jc)
            k(f"WAITVM ql{jj*3+jc}")
            k(f"ds_write_b128 v11, v[{r}:{r+3}] offset:{jj*32*288 + jc*96}")
    k(f"{N}_qkv_noload:")
    k("v_mul_u32_u24 v13, 288, v5")
    k("s_mul_i32 s33, s18, 72")
    k("v_add_u32 v12, s33, v13")
    k("v_lshl_add_u32 v12, v6, 3, v12")
    k("v_mul_u32_u24 v14, 72, v6")
    k("v_add_u32 v13, v13, v14")
    k("s_mul_i32 s32, s22, 18")
    k("s_mul_i32 s33, s23, 6")
    k("s_add_u32 s32, s32, s33")
    k("s_mul_i32 s32, s32, 9216")
    k(f"s_add_u32 s39, s32, {WQKV}")
    k("s_lshl_b32 s33, s18, 11")
    k("s_add_u32 s32, s39, s33")
    for ks in range(1, 6):
        k(f"s_add_u32 s{32+ks}, s32, {ks*9216}")
    k("s_add_u32 s40, s39, 8192")
    for ks in range(1, 6):
        k(f"s_add_u32 s{40+ks}, s40, {ks*9216}")
    k("v_mov_b32 v16, 0")
    k("v_mov_b32 v17, 0")
    k("v_mov_b32 v20, 0")
    k("s_waitcnt lgkmcnt(0)")
    k("s_barrier")
    items = []
    for bb in range(2):
        for ks in range(6):
            items.append((12, 40*bb + ks*32*288, 32 + ks, bb*1024, 16 + bb))
    frags(items, 288, "qf")
    xreduce(k, [16, 17], [18, 19])
    k("s_mul_i32 s46, s23, 6912")
    k("s_mul_i32 s47, s22, 576")
    k("s_add_u32 s46, s46, s47")
    k(f"s_add_u32 s46, s46, {SQKV}")
    k("s_lshl_b32 s47, s18, 7")
    k("s_add_u32 s47, s47, s46")
    k("v_and_b32 v18, 15, v2")
    k("v_lshlrev_b32 v18, 2, v18")
    k("buffer_store_dword v16, v18, s[24:27], s47 offen")
    k("buffer_store_dword v17, v18, s[24:27], s47 offen offset:64")
    k("s_cmp_lg_u32 s18, 3")
    k(f"s_cbranch_scc1 {N}_end")
    k("s_waitcnt vmcnt(0)")
    items = [(13, 32 + ks*32*288, 40 + ks, 0, 20) for ks in range(6)]
    frags(items, 288, "rf")
    xreduce(k, [20], [19])
    k("buffer_store_dword v20, v18, s[24:27], s46 offen offset:512")
    k("s_endpgm")

    k(f"{N}_x:")
    srd(k, 28, 4, 0, XSZ)
    k("s_lshl_b32 s20, s56, 1")
    k("s_lshr_b32 s21, s18, 1")
    k("s_add_u32 s20, s20, s21")
    k("s_and_b32 s22, s18, 1")
    k("v_lshrrev_b32 v7, 2, v2")
    k("v_and_b32 v8, 3, v2")
    k("v_mul_u32_u24 v9, 1152, v7")
    k("v_lshl_add_u32 v9, v8, 4, v9")
    k("s_mul_i32 s21, s20, 18432")
    k("s_mul_i32 s23, s22, 576")
    k("s_add_u32 s23, s23, s21")
    for j in range(9):
        r = 32 + 4 * j
        k(f"buffer_load_dwordx4 v[{r}:{r+3}], v9, s[28:31], s23 offen offset:{j*64}", f"xl{j}")
    k("s_mul_i32 s23, s18, 9792")
    k("v_mul_u32_u24 v10, 272, v8")
    k("v_lshl_add_u32 v10, v7, 4, v10")
    k("v_add_u32 v10, s23, v10")
    k("v_and_b32 v7, 15, v2")
    k("v_lshrrev_b32 v8, 4, v2")
    k("v_mul_u32_u24 v11, 272, v8")
    k("v_lshl_add_u32 v11, v7, 4, v11")
    k("v_add_u32 v11, s23, v11")
    k("s_mul_i32 s23, s22, 9216")
    k("s_add_u32 s32, s21, s23")
    if XF0: k(f"s_add_u32 s32, s32, {XF0}")
    for i in range(1, 3): k(f"s_add_u32 s{32+i}, s32, {4096*i}")
    k("v_mov_b32 v16, 0")
    k("v_mov_b32 v17, 0")
    for j in range(9):
        r = 32 + 4 * j
        k(f"WAITVM xl{j}")
        k(f"ds_write_b128 v10, v[{r}:{r+3}] offset:{j*1088}")
        k(f"ds_read_b128 v[{r+36}:{r+39}], v11 offset:{j*1088}", f"xr{j}")
    for j in range(9):
        r = 68 + 4 * j
        k(f"WAITLG xr{j}")
        k(f"buffer_store_dwordx4 v[{r}:{r+3}], v3, s[24:27], s{32 + j//4} offen offset:{(j%4)*1024}")
        for q in range(4):
            k(f"v_dot2c_f32_bf16 v16, v{r+q}, v4")
            k(f"v_dot2c_f32_bf16 v17, v{r+q}, v{r+q}")
    xreduce(k, [16, 17], [18, 19])
    k("v_cmp_eq_u32 vcc, 0, v8")
    k("v_cndmask_b32 v16, 0, v16, vcc")
    k("v_cndmask_b32 v17, 0, v17, vcc")
    k("s_lshl_b32 s21, s20, 10")
    k("s_lshl_b32 s22, s22, 3")
    k("s_add_u32 s21, s21, s22")
    k(f"s_add_u32 s21, s21, {ST0}")
    k("buffer_store_dwordx2 v[16:17], v3, s[24:27], s21 offen")
    k.stamp_out(16)
    k(f"{N}_end:")
    k("s_endpgm")
    launches = [("prep_kernel", grid, 256, PREP_LDS)]
    desc = descriptor("prep_kernel", 104, 0)
    return k, launches, desc, ["prep_kernel"]
```

```python
import re

TRANS = ("v_exp_f32", "v_log_f32", "v_rcp_f32", "v_rsq_f32", "v_sqrt_f32", "v_sin_f32", "v_cos_f32")

def regs_of(tok):
    tok = tok.strip()
    if tok.startswith("-"): tok = tok[1:]
    if tok.startswith("|") and tok.endswith("|"): tok = tok[1:-1]
    m = re.fullmatch(r"abs\((.*)\)", tok)
    if m: tok = m.group(1)
    m = re.fullmatch(r"([vas])(\d+)", tok)
    if m: return [tok]
    m = re.fullmatch(r"([vas])\[(\d+):(\d+)\]", tok)
    if m: return [f"{m.group(1)}{i}" for i in range(int(m.group(2)), int(m.group(3)) + 1)]
    if tok == "vcc": return ["vcc_lo", "vcc_hi"]
    if tok == "exec": return ["exec_lo", "exec_hi"]
    if tok in ("vcc_lo", "vcc_hi", "exec_lo", "exec_hi", "m0"): return [tok]
    return []

class Ins:
    __slots__ = ("text", "op", "ops", "dst", "src", "kind", "tag", "passes", "cregs", "abregs", "wide", "label", "target", "nop", "path")
    def __init__(self, text, tag=None, path=None):
        self.text = text; self.tag = tag; self.path = path
        self.label = None; self.target = None; self.nop = 0
        self.passes = 0; self.cregs = []; self.abregs = []; self.wide = False
        t = text.split(";")[0].strip()
        if t.endswith(":"):
            self.kind = "label"; self.label = t[:-1]; self.op = ""; self.ops = []; self.dst = []; self.src = []; return
        if t.startswith(".") or t == "":
            self.kind = "dir"; self.op = ""; self.ops = []; self.dst = []; self.src = []; return
        parts = t.split(None, 1)
        op = parts[0]; rest = parts[1] if len(parts) > 1 else ""
        self.op = op
        ops = [o.strip() for o in re.split(r",(?![^\[]*\])(?![^(]*\))", rest)] if rest else []
        mods = ""
        if ops:
            last = ops[-1].split(None, 1)
            if len(last) > 1 and not op.startswith("s_waitcnt"):
                ops[-1] = last[0]; mods = last[1]
        self.ops = ops
        R = [regs_of(o) for o in ops]
        flat = lambda l: [x for y in l for x in y]
        if op in ("WAITVM", "WAITLG"):
            self.kind = "pwait"; self.dst = []; self.src = []
        elif op.startswith("v_mfma"):
            self.kind = "mfma"; self.dst = R[0]; self.abregs = R[1] + R[2]; self.cregs = R[3]; self.src = self.abregs + self.cregs
            self.passes = 8 if "32x32" in op else 4
        elif op.startswith("v_"):
            self.kind = "valu"
            b = re.sub(r"_(e32|e64|dpp|sdwa)$", "", op)
            if b.startswith("v_permlane") and "swap" in b:
                self.dst = R[0] + R[1]; self.src = R[0] + R[1]
            elif b in ("v_add_co_u32", "v_sub_co_u32", "v_subrev_co_u32", "v_addc_co_u32", "v_subb_co_u32"):
                self.dst = R[0] + R[1]; self.src = flat(R[2:])
            else:
                self.dst = R[0]; self.src = flat(R[1:])
                if b in ("v_fmac_f32", "v_dot2c_f32_bf16", "v_writelane_b32") or "dpp" in op or "row_" in mods or "quad_perm" in mods:
                    self.src = self.src + R[0]
        elif op.startswith("buffer_load") or op.startswith("global_load"):
            if " lds" in " " + mods + " " or "_lds_" in op:
                self.kind = "dma"; self.dst = []; self.src = flat(R) + ["m0"]
            else:
                self.kind = "vload"; self.dst = R[0]; self.src = flat(R[1:])
        elif op.startswith("buffer_store") or op.startswith("global_store"):
            self.kind = "vstore"; self.dst = []; self.src = flat(R)
            self.wide = op.endswith("x4") or op.endswith("x3")
            self.cregs = R[0] if op.startswith("buffer") else R[1]
        elif op.startswith("buffer_atomic") or op.startswith("global_atomic"):
            self.kind = "vstore"; self.dst = []; self.src = flat(R)
            if "sc0" in mods: self.kind = "vload"; self.dst = R[0]
        elif op.startswith("buffer_wbl2") or op.startswith("buffer_inv"):
            self.kind = "vstore"; self.dst = []; self.src = []
        elif op.startswith("ds_read") or op.startswith("ds_bpermute") or op.startswith("ds_swizzle"):
            self.kind = "dsread"; self.dst = R[0]; self.src = flat(R[1:])
        elif op.startswith("ds_write"):
            self.kind = "dswrite"; self.dst = []; self.src = flat(R)
        elif op.startswith("s_load") or op in ("s_memtime", "s_memrealtime"):
            self.kind = "smem"; self.dst = R[0]; self.src = flat(R[1:])
        elif op == "s_waitcnt":
            self.kind = "wait"; self.dst = []; self.src = []
        elif op == "s_nop":
            self.kind = "nop"; self.nop = int(ops[0], 0); self.dst = []; self.src = []
        elif op in ("s_branch",) or op.startswith("s_cbranch"):
            self.kind = "branch"; self.target = ops[0]; self.dst = []; self.src = []
        elif op in ("s_barrier", "s_endpgm", "s_setprio", "s_sleep"):
            self.kind = "misc"; self.dst = []; self.src = []
        elif op.startswith("s_cmp") or op.startswith("s_bitcmp"):
            self.kind = "salu"; self.dst = []; self.src = flat(R)
        elif op.startswith("s_"):
            self.kind = "salu"; self.dst = R[0]; self.src = flat(R[1:])
            if "saveexec" in op: self.dst = self.dst + ["exec_lo", "exec_hi"]
        else:
            raise ValueError("unknown instruction: " + text)

def need_states(st, ins):
    need = 0
    def req(t, n):
        nonlocal need
        if t is not None: need = max(need, t + n + 1)
    k = ins.kind
    b = re.sub(r"_(e32|e64|dpp|sdwa)$", "", ins.op)
    if k == "mfma":
        for r in ins.src: req(st["valu_w"].get(r), 2)
        for r in ins.abregs:
            e = st["mfma_w"].get(r)
            if e: req(e[0], 8 if e[1] == 4 else 12)
        for r in ins.cregs:
            e = st["mfma_w"].get(r)
            if e and not (e[2] == tuple(ins.cregs) and e[1] == ins.passes): req(e[0], 6 if e[1] == 4 else 10)
        req(st.get("valu_exec"), 4)
    if k in ("valu", "vload", "vstore", "dma", "dsread", "dswrite"):
        for r in ins.src + ins.dst:
            e = st["mfma_w"].get(r)
            if e: req(e[0], 8 if e[1] == 4 else 12)
    if k == "valu":
        for r in ins.dst:
            e = st["mfma_c"].get(r)
            if e: req(e[0], 3 if e[1] == 4 else 7)
            req(st["store_d"].get(r), 2)
        if b not in TRANS:
            for r in ins.src: req(st["trans_w"].get(r), 1)
        if b.startswith("v_permlane") or "dpp" in ins.op or "row_" in ins.text or "quad_perm" in ins.text:
            for r in ins.src: req(st["valu_w"].get(r), 2)
        if b in ("v_readlane_b32", "v_readfirstlane_b32"):
            for r in ins.src:
                if r[0] == "v" and r[1].isdigit(): req(st["valu_w"].get(r), 1)
        for r in ins.src:
            if r[0] == "s" or r.startswith("vcc"):
                req(st["valu_sw"].get(r), 4 if b in ("v_readlane_b32", "v_writelane_b32") else 2)
    if k in ("valu", "mfma", "vstore", "vload", "dma", "dsread", "dswrite"):
        for r in ins.src + ins.dst:
            e = st["dot_w"].get(r)
            if e:
                if e[1] == b and r in ins.dst and not (r in regs_of(ins.ops[1]) + regs_of(ins.ops[2])): pass
                else: req(e[0], 3)
    if k in ("vload", "dsread"):
        for r in ins.dst: req(st["store_d"].get(r), 1)
    if k in ("vload", "vstore", "dma"):
        for r in ins.src:
            if r[0] == "s": req(st["valu_sw"].get(r), 5)
    if k == "salu":
        for r in ins.src:
            if r[0] == "s" or r.startswith("vcc"): req(st["valu_sw"].get(r), 1)
    if k == "dma": req(st.get("m0_w"), 1)
    return need

def new_state():
    return {"valu_w": {}, "mfma_w": {}, "mfma_c": {}, "trans_w": {}, "valu_sw": {}, "store_d": {}, "dot_w": {}}

def update(st, ins, t):
    k = ins.kind
    b = re.sub(r"_(e32|e64|dpp|sdwa)$", "", ins.op)
    if k == "valu":
        for r in ins.dst:
            if (r[0] in "va" and r[1].isdigit()):
                st["valu_w"][r] = t
                st["mfma_w"].pop(r, None)
                if b in TRANS: st["trans_w"][r] = t
                else: st["trans_w"].pop(r, None)
                if b.startswith("v_dot"): st["dot_w"][r] = (t, b)
                else: st["dot_w"].pop(r, None)
            else:
                st["valu_sw"][r] = t
                if r.startswith("exec"): st["valu_exec"] = t
    elif k == "mfma":
        for r in ins.dst:
            st["mfma_w"][r] = (t, ins.passes, tuple(ins.dst)); st["valu_w"].pop(r, None); st["trans_w"].pop(r, None)
        for r in ins.cregs: st["mfma_c"][r] = (t, ins.passes)
    elif k == "vstore" and ins.wide:
        for r in ins.cregs: st["store_d"][r] = t
    elif k in ("vload", "dsread"):
        for r in ins.dst:
            st["valu_w"].pop(r, None); st["mfma_w"].pop(r, None); st["trans_w"].pop(r, None)
    elif k == "salu":
        for r in ins.dst:
            st["valu_sw"].pop(r, None)
            if r == "m0": st["m0_w"] = t

class Kern:
    def __init__(self):
        self.ins = []
        self.path = None
    def __call__(self, text, tag=None):
        for line in text.strip().split("\n"):
            line = line.strip()
            if line: self.ins.append(Ins(line, tag, self.path))
    def add(self, lst):
        for x in lst:
            if isinstance(x, Ins): x.path = self.path; self.ins.append(x)
            elif isinstance(x, tuple): self(x[0], x[1])
            else: self(x)

    def stamp(self, n):
        import os
        if os.environ.get("STAMPS", "") != getattr(self, "name", None): return []
        L = [f"s_memtime s[{64+2*n}:{65+2*n}]"]
        if n == 0: L.append("s_memrealtime s[92:93]")
        L.append("s_waitcnt lgkmcnt(0)")
        return L
    def stamp_out(self, wsptr=4, nwaves=4):
        import os
        if os.environ.get("STAMPS", "") != getattr(self, "name", None): return
        k = self
        k("s_waitcnt vmcnt(0) lgkmcnt(0)")
        k("s_memtime s[90:91]")
        k("s_memrealtime s[94:95]")
        k("s_waitcnt lgkmcnt(0)")
        k("s_mov_b64 exec, 1")
        for n in range(14): k(f"v_mov_b32 v{16+n}, s{64+2*n}")
        k("v_mov_b32 v30, s92"); k("v_mov_b32 v31, s94")
        k(f"s_add_u32 s60, s{wsptr}, {128<<20}"); k(f"s_addc_u32 s61, s{wsptr+1}, 0"); k("s_and_b32 s61, s61, 0xffff")
        k("s_mov_b32 s62, 0x100000"); k("s_mov_b32 s63, 0x20000")
        k("s_lshl_b32 s59, s2, 3"); k("s_add_u32 s59, s59, s18"); k("s_lshl_b32 s59, s59, 6")
        k("v_mov_b32 v15, 0")
        for q in range(4): k(f"buffer_store_dwordx4 v[{16+4*q}:{19+4*q}], v15, s[60:63], s59 offen offset:{16*q}")

    def resolve_waits(self):
        out = []
        for i, x in enumerate(self.ins):
            if x.kind != "pwait":
                out.append(x); continue
            tags = set(x.ops)
            cls = ("vload", "vstore", "dma") if x.op == "WAITVM" else ("dsread", "dswrite", "smem")
            n = 0; found = False
            for y in reversed(self.ins[:i]):
                if y.path is not None and y.path != x.path: continue
                if y.kind == "wait" and (("vmcnt(0)" in y.text) if x.op == "WAITVM" else ("lgkmcnt(0)" in y.text)):
                    found = True; n = None; break
                if y.kind in cls:
                    if y.tag in tags: found = True; break
                    assert y.kind != "smem", "smem inside counted lgkm window"
                    n += 1
            assert found, f"wait tag {tags} not found"
            if n is None: continue
            if x.op == "WAITVM":
                if n >= 63: continue
                out.append(Ins(f"s_waitcnt vmcnt({n})"))
            else:
                n = min(n, 15)
                out.append(Ins(f"s_waitcnt lgkmcnt({n})"))
        self.ins = out

    def fix_hazards(self):
        st = new_state(); t = 0; out = []; added = 0
        for x in self.ins:
            if x.kind in ("label", "dir"):
                out.append(x); continue
            n = need_states(st, x)
            if n > t:
                k = n - t
                out.append(Ins(f"s_nop {k-1}")); added += k; t += k
            update(st, x, t)
            t += x.nop + 1
            out.append(x)
        self.ins = out
        return added

    def check(self, entry, name="", taken=None, maxloop=2, sim=None):
        idx = {x.label: i for i, x in enumerate(self.ins) if x.kind == "label"}
        taken = taken or set()
        st = new_state(); t = 0; i = idx[entry]; vm = []; lg = []; cnt = {}; errs = []
        pend = {}
        sv = {"s2": sim[0]} if sim else None; scc = None; steps = 0
        def val(tok):
            if re.fullmatch(r"s\d+|m0", tok): return sv.get(tok)
            try: return int(tok, 0) & 0xffffffff
            except ValueError: return None
        while i < len(self.ins):
            x = self.ins[i]
            steps += 1; assert steps < 400000
            if sim and x.kind in ("salu", "valu", "smem"):
                o = x.ops
                if x.op == "v_readfirstlane_b32": sv[o[0]] = sim[1] if o[0] == "s18" else None
                elif x.kind == "salu" and x.op.startswith("s_cmp_") and x.op.endswith("_u32"):
                    a, b = val(o[0]), val(o[1])
                    scc = None if a is None or b is None else {"eq": a == b, "lg": a != b, "ge": a >= b, "lt": a < b, "gt": a > b, "le": a <= b}[x.op.split("_")[2]]
                elif x.op == "s_mov_b32": sv[o[0]] = val(o[1])
                elif x.op == "s_cselect_b32": sv[o[0]] = None if scc is None else val(o[1] if scc else o[2])
                elif x.op in ("s_add_u32", "s_sub_u32", "s_mul_i32", "s_and_b32", "s_lshl_b32", "s_lshr_b32"):
                    a, b = val(o[1]), val(o[2])
                    r = None if a is None or b is None else {"s_add_u32": lambda: a + b, "s_sub_u32": lambda: a - b, "s_mul_i32": lambda: a * b,
                        "s_and_b32": lambda: a & b, "s_lshl_b32": lambda: a << (b & 31), "s_lshr_b32": lambda: a >> (b & 31)}[x.op]() & 0xffffffff
                    sv[o[0]] = r
                    if x.op != "s_mul_i32": scc = None
                else:
                    for r in x.dst: sv[r] = None
                    if x.kind == "salu" and x.op not in ("s_mov_b64",): scc = None
            if x.kind in ("label", "dir"): i += 1; continue
            n = need_states(st, x)
            if n > t: errs.append(f"{name}: hazard short by {n-t} at [{i}] {x.text}")
            for r in x.src + x.dst:
                if r in pend: errs.append(f"{name}: reg {r} still pending ({pend[r]}) at [{i}] {x.text}")
            if x.kind == "wait":
                m = re.search(r"vmcnt\((\d+)\)", x.text)
                if m:
                    while len(vm) > int(m.group(1)):
                        for r in vm.pop(0): pend.pop(r, None)
                m = re.search(r"lgkmcnt\((\d+)\)", x.text)
                if m:
                    nn = int(m.group(1))
                    if nn > 0 and any(e[1] for e in lg): errs.append(f"{name}: counted lgkm wait with smem outstanding [{i}]")
                    while len(lg) > nn:
                        for r in lg.pop(0)[0]: pend.pop(r, None)
            elif x.kind in ("vload", "vstore", "dma"):
                vm.append(list(x.dst))
                for r in x.dst: pend[r] = x.text
                while len(vm) > 63:
                    for r in vm.pop(0): pend.pop(r, None)
            elif x.kind in ("dsread", "dswrite", "smem"):
                lg.append((list(x.dst), x.kind == "smem"))
                for r in x.dst: pend[r] = x.text
                if len(lg) > 15 and not getattr(self, "_lgwarn", False):
                    print(f"note {name}: >15 lgkm ops outstanding at [{i}] {x.text}"); self._lgwarn = True
            update(st, x, t)
            t += x.nop + 1
            if x.op == "s_endpgm": break
            if x.kind == "branch":
                j = idx[x.target]
                if x.op == "s_branch":
                    if j <= i:
                        cnt[i] = cnt.get(i, 0) + 1
                        if cnt[i] > 1 and not sim: break
                    i = j; continue
                if sim and scc is not None and x.op in ("s_cbranch_scc0", "s_cbranch_scc1"):
                    if scc == (x.op == "s_cbranch_scc1"): i = j
                    else: i += 1
                    continue
                if j <= i:
                    cnt[i] = cnt.get(i, 0) + 1
                    if cnt[i] < maxloop: i = j; continue
                elif x.target in taken or (i in taken):
                    i = j; continue
            i += 1
        return errs

    def fwd_targets(self):
        idx = {x.label: i for i, x in enumerate(self.ins) if x.kind == "label"}
        return [x.target for i, x in enumerate(self.ins) if x.kind == "branch" and x.op != "s_branch" and idx.get(x.target, -1) > i]

    def text(self):
        return "\n".join(("" if x.kind in ("label", "dir") else "  ") + x.text for x in self.ins) + "\n"

def interleave(main, fill, per_slot=2.0, start=0):
    out = []; budget = 0.0; fi = 0
    for s, item in enumerate(main):
        out.extend(item)
        budget += per_slot - (len(item) - 1)
        while fi < len(fill) and fill[fi][2] <= s + start and budget >= fill[fi][0] - 1e-9:
            out.append(fill[fi][1]); budget -= fill[fi][0]; fi += 1
        budget = min(budget, per_slot)
    return out, fill[fi:]

def descriptor(name, vgprs, agprs, sgprs=96):
    acc = (vgprs + 3) // 4 * 4
    nfv = acc + agprs if agprs else vgprs
    return f""".section .rodata,"a"
.p2align 6
.amdhsa_kernel {name}
  .amdhsa_next_free_vgpr {nfv}
  .amdhsa_next_free_sgpr {sgprs}
  .amdhsa_accum_offset {acc}
  .amdhsa_group_segment_fixed_size 0
  .amdhsa_kernarg_size 80
  .amdhsa_user_sgpr_count 2
  .amdhsa_user_sgpr_kernarg_segment_ptr 1
  .amdhsa_system_sgpr_workgroup_id_x 1
  .amdhsa_float_denorm_mode_32 3
.end_amdhsa_kernel
.text
"""

def unit_cost(x):
    if x.kind in ("salu", "wait", "pwait", "misc", "nop", "smem", "branch"): return 0
    if x.kind == "valu":
        b = re.sub(r"_(e32|e64)$", "", x.op)
        return 2 if (b in TRANS or b.startswith("v_permlane")) else 1
    if x.kind in ("dsread", "dswrite"): return 1
    if x.kind in ("dma", "vload"): return 2
    if x.kind == "vstore": return 0
    return 0

class Bundle:
    def __init__(self, items): self.items = [as_ins(x) for x in items]

def as_ins(x):
    if isinstance(x, Ins): return x
    if isinstance(x, tuple): return Ins(x[0], x[1])
    return Ins(x)

def depends(a, b):
    if a.kind in ("pwait", "wait") or b.kind in ("pwait", "wait"): return True
    if a.kind in ("vstore", "vload", "dma") and b.kind in ("vstore", "vload", "dma"): return True
    if a.kind in ("dsread", "dswrite") and b.kind in ("dsread", "dswrite"): return True
    sa, da, sb, db = set(a.src), set(a.dst), set(b.src), set(b.dst)
    return bool(da & sb or da & db or sa & db)

def pack(k, mfmas, fixed, flow, units=2, window=24, st=None, t0=0):
    st = st or new_state(); t = t0
    flow = [(as_ins(a), g) for a, g in flow]
    over = 0
    def emit(x):
        nonlocal t
        n = need_states(st, x)
        if n > t: t = n
        update(st, x, t); t += x.nop + 1
        x.path = k.path
        k.ins.append(x)
    for i, m in enumerate(mfmas):
        emit(as_ins(m))
        bnd = [x for x in fixed.get(i, []) if isinstance(x, Bundle)]
        fx = [as_ins(x) for x in fixed.get(i, []) if not isinstance(x, Bundle)]
        sc = [x for x in fx if unit_cost(x) == 0 and x.kind != "vstore"]
        ve = [x for x in fx if x not in sc]
        left = units - sum(unit_cost(x) for x in ve) - max(0, len(sc) - 1) - (units if bnd else 0)
        nsc = len(sc)
        chosen = []
        j = 0
        while j < min(len(flow), window):
            x, g = flow[j]
            if g > i: break
            c = unit_cost(x); isc = (c == 0 and x.kind != "vstore")
            ok = all(not depends(flow[q][0], x) for q in range(j))
            if ok and isc:
                ok = nsc == 0 and not chosen_dep(chosen, x)
            if ok and not isc:
                ok = c <= left
                if ok and x.kind in ("dsread",) and any(y.kind == "valu" for y in chosen + ve): ok = False
            if ok:
                tt = t + nsc + len(ve) + len(chosen)
                stc = st
                if need_states(stc, x) > tt: ok = False
                for y in chosen:
                    if depends(y, x) and (set(y.dst) & set(x.src)):
                        by = re.sub(r"_(e32|e64)$", "", y.op)
                        if by in TRANS or x.op.startswith("v_permlane") or y.kind == "dsread": ok = False
            if ok:
                chosen.append(x); flow.pop(j)
                if isc: nsc += 1
                else: left -= c
                continue
            j += 1
        csc = [x for x in chosen if unit_cost(x) == 0 and x.kind != "vstore"]
        cve = [x for x in chosen if x not in csc]
        for x in sc + csc: emit(x)
        ds = [x for x in ve + cve if x.kind == "dsread"]
        rest = [x for x in ve + cve if x.kind != "dsread"]
        if len(rest) == 2 and rest[1].op.startswith("v_cvt_pk") and not depends(rest[0], rest[1]): rest = [rest[1], rest[0]]
        for x in ds + rest: emit(x)
        for b_ in bnd:
            for x in b_.items: emit(x)
        if left < 0: over += -left
    return [x for x, g in flow], over

def chosen_dep(chosen, x):
    return any(depends(y, x) for y in chosen)
```

```python
from asmgen import *
from layout import *
from k_prep import srd, entry, xreduce

import os
NTH = os.environ.get("NTH", ""); NTW = os.environ.get("NTW", "")
GRID = 256
LDS = 56 * 1024
ACC = 32
def acc(tb, b): return ACC + 4 * (tb * 6 + b)
def v4(r): return f"v[{r}:{r+3}]"
def a4(r): return f"a[{r}:{r+3}]"
F = 128
T = 144
RES = 208

def loads(s, half=None):
    b0 = 68 * s; L = []
    if half != 1:
        for b in range(4): L.append((b, f"buffer_load_dwordx4 {a4(b0+4*b)}, v1, s[12:15], s34 offen offset:{b*1024} {NTW}"))
        for tb in range(4): L.append((4, f"buffer_load_dwordx4 {a4(b0+16+4*tb)}, v{4+tb}, s[8:11], s35 offen {NTH}"))
    if half != 0:
        for b in range(4): L.append((5 + b, f"buffer_load_dwordx4 {a4(b0+32+4*b)}, v2, s[12:15], s34 offen offset:{b*1024} {NTW}"))
    L.append((9, f"buffer_load_dwordx4 {a4(b0+48)}, v3, s[12:15], s34 offen {NTW}"))
    if half != 0:
        for tb in range(4): L.append((9, f"buffer_load_dwordx4 {a4(b0+52+4*tb)}, v{4+tb}, s[8:11], s35 offen offset:1024 {NTH}"))
    return L

def adv(k):
    k("s_add_u32 s34, s34, 9216")
    k("s_add_u32 s35, s35, 2048")

def compute(k, s, refill, w2=None, groups=range(10)):
    b0 = 68 * s
    L = loads(s) if refill else []
    for g in groups:
        if g == 4 and w2 is not None: k(f"s_waitcnt vmcnt({w2})")
        pend = [x[1] for x in L if x[0] == g - 1]
        for tb in range(4):
            if g < 4:    w, h, a = b0 + 4 * g, b0 + 16 + 4 * tb, acc(tb, g)
            elif g == 4: w, h, a = b0 + 48, b0 + 16 + 4 * tb, acc(tb, 4)
            elif g < 9:  w, h, a = b0 + 32 + 4 * (g - 5), b0 + 52 + 4 * tb, acc(tb, g - 5)
            else:        w, h, a = b0 + 48, b0 + 52 + 4 * tb, acc(tb, 5)
            k(f"v_mfma_f32_16x16x32_bf16 {v4(a)}, {a4(w)}, {a4(h)}, {v4(a)}")
            if pend: k(pend.pop(0))
    if refill:
        for x in L:
            if x[0] == 9: k(x[1])
        adv(k)

def reduce_store(k, N, mod):
    for w in range(4):
        if w < 3:
            k(f"s_cmp_lg_u32 s18, {w}")
            k(f"s_cbranch_scc1 {N}_x{w+1}")
        for ow in range(4):
            if ow == w: continue
            ss = (w - ow - 1) % 4
            for b in range(4): k(f"ds_write_b128 v1, {v4(acc(ow, b))} offset:{((ow*3+ss)*4+b)*1024}")
        for b in range(4):
            for i in range(4): k(f"v_mov_b32 v{F+4*b+i}, v{acc(w, b)+i}")
        if w < 3:
            k(f"s_branch {N}_xdone")
            k(f"{N}_x{w+1}:")
    k(f"{N}_xdone:")
    for p in range(2):
        for i in range(4):
            k(f"v_permlane32_swap_b32 v{acc(2*p,4)+i}, v{acc(2*p+1,4)+i}")
            k(f"v_permlane32_swap_b32 v{acc(2*p,5)+i}, v{acc(2*p+1,5)+i}")
    for p in range(2):
        for i in range(4): k(f"v_add_f32 v{acc(2*p,4)+i}, v{acc(2*p,4)+i}, v{acc(2*p+1,5)+i}")
    k("s_lshl_b32 s20, s18, 10")
    k("v_add_u32 v15, s20, v1")
    for p in range(2): k(f"ds_write_b128 v15, {v4(acc(2*p,4))} offset:{49152 + p*4096}")
    k("v_mov_b32 v20, 0")
    k("v_mov_b32 v21, 0")
    k("v_mov_b32 v22, 0xffff0000")
    k("v_mov_b32 v23, 0x3f803f80")
    k("s_waitcnt lgkmcnt(0)")
    k("s_barrier")
    if k.name == 'gk': k.add(k.stamp(4))
    for b in range(4):
        for ss in range(3): k(f"ds_read_b128 {v4(T+4*(b*3+ss))}, v19 offset:{(ss*4+b)*1024}", f"r{b}")
    Z = ACC + 32
    for ss in range(3): k(f"ds_read_b128 {v4(Z+4*ss)}, v14 offset:{49152 + ss*1024}", f"z{ss}")
    def summ(b):
        k(f"WAITLG r{b}")
        if b == 0: k(f"ds_read_b128 {v4(Z+12)}, v14 offset:{49152 + 3*1024}", "z3")
        for i in range(4):
            k(f"v_add_f32 v{F+4*b+i}, v{F+4*b+i}, v{T+12*b+i}")
            k(f"v_add_f32 v{T+12*b+4+i}, v{T+12*b+4+i}, v{T+12*b+8+i}")
        for i in range(4): k(f"v_add_f32 v{F+4*b+i}, v{F+4*b+i}, v{T+12*b+4+i}")
    def finish(x, y, res, pk, va, so):
        for q in range(4):
            k(f"v_lshlrev_b32 v24, 16, v{res+q}")
            k(f"v_and_b32 v25, v22, v{res+q}")
            r = (x, x + 2, y, y + 2)[q]
            k(f"v_add_f32 v{r}, v{r}, v24")
            k(f"v_add_f32 v{r+1}, v{r+1}, v25")
            k(f"v_cvt_pk_bf16_f32 v{pk+q}, v{r}, v{r+1}")
        k(f"buffer_store_dwordx4 {v4(pk)}, v{va}, s[36:39], s{so} offen {mod}")
        for q in range(4):
            k(f"v_dot2c_f32_bf16 v20, v{pk+q}, v23")
            k(f"v_dot2c_f32_bf16 v21, v{pk+q}, v{pk+q}")
    for pr in range(2):
        summ(2 * pr); summ(2 * pr + 1)
        for i in range(4): k(f"v_permlane16_swap_b32 v{F+8*pr+i}, v{F+8*pr+4+i}")
        finish(F + 8 * pr, F + 8 * pr + 4, RES + 4 * pr, ACC + 4 * pr, 16, 48 + pr)
    k("WAITLG z3")
    for i in range(4):
        k(f"v_add_f32 v{Z+i}, v{Z+i}, v{Z+4+i}")
        k(f"v_add_f32 v{Z+8+i}, v{Z+8+i}, v{Z+12+i}")
    for i in range(4): k(f"v_add_f32 v{Z+i}, v{Z+i}, v{Z+8+i}")
    for i in range(4): k(f"v_mov_b32 v{Z+4+i}, v{Z+i}")
    for i in range(4): k(f"v_permlane16_swap_b32 v{Z+i}, v{Z+4+i}")
    k("s_mov_b64 exec, 0xffff")
    finish(Z, Z + 4, RES + 8, ACC + 8, 17, 50)
    k("s_mov_b64 exec, -1")
    xreduce(k, [20, 21], [24, 25])
    k("s_mov_b64 exec, 0xffff")
    k(f"buffer_store_dwordx2 v[20:21], v18, s[24:27], s51 offen {mod}")
    k("s_mov_b64 exec, -1")

def gen():
    k = Kern(); N = "gk"; k.name = N
    variants = [("wo1_kernel", OO, 72, WO, 9, XF0, X1, ST1), ("wo2_kernel", OO, 72, WO, 9, X2, X1, ST1),
                ("down1_kernel", HH, 576, WD, 72, X1, X2, ST2), ("down2_kernel", HH, 576, WD, 72, X1, None, ST2)]
    for name, act, ko, w, npair, res, out, st in variants:
        entry(k, name)
        k("s_load_dwordx2 s[4:5], s[0:1], 72")
        if out is None: k("s_load_dwordx2 s[6:7], s[0:1], 56")
        k(f"s_mov_b32 s40, {act}")
        k(f"s_mov_b32 s41, {ko*256}")
        k(f"s_mov_b32 s42, {w}")
        k(f"s_mov_b32 s43, {npair}")
        k(f"s_mov_b32 s44, {res}")
        k(f"s_mov_b32 s45, {st}")
        k(f"s_mov_b32 s46, {256 if out is not None else 16}")
        k(f"s_mov_b32 s47, {16 if out is not None else 1152}")
        k(f"s_mov_b32 s52, {out if out is not None else -1}")
        if name != variants[-1][0]: k(f"s_branch {N}_main")
    k(f"{N}_main:")
    k(f"s_cmp_ge_u32 s2, {GRID}")
    k(f"s_cbranch_scc1 {N}_end")
    k.add(k.stamp(0))
    k("v_lshrrev_b32 v8, 6, v0")
    k("v_and_b32 v9, 63, v0")
    k("v_readfirstlane_b32 s18, v8")
    k("v_lshlrev_b32 v1, 4, v9")
    k("s_and_b32 s20, s2, 7")
    k("s_lshr_b32 s21, s2, 3")
    k("s_lshr_b32 s16, s20, 1")
    k("s_lshl_b32 s16, s16, 3")
    k("s_lshr_b32 s22, s21, 2")
    k("s_add_u32 s16, s16, s22")
    k("s_and_b32 s17, s20, 1")
    k("s_lshl_b32 s17, s17, 2")
    k("s_and_b32 s22, s21, 3")
    k("s_add_u32 s17, s17, s22")
    k("v_add_u32 v2, 4096, v1")
    k("v_add_u32 v3, 8192, v1")
    k("v_mov_b32 v4, v1")
    k("v_add_u32 v5, s41, v4")
    k("v_add_u32 v6, s41, v5")
    k("v_add_u32 v7, s41, v6")
    k("s_lshl_b32 s10, s41, 2")
    k("s_mul_i32 s21, s10, s16")
    k("s_add_u32 s21, s21, s40")
    k("s_mul_i32 s14, s43, 9216")
    k("s_mul_i32 s22, s14, s17")
    k("s_add_u32 s22, s22, s42")
    k("s_mov_b32 s11, 0x20000")
    k("s_mov_b32 s15, 0x20000")
    k("s_cmp_eq_u32 s43, 9")
    k("s_cselect_b32 s23, 2, 18")
    k("s_mul_i32 s20, s18, s23")
    k("s_waitcnt lgkmcnt(0)")
    k("s_add_u32 s8, s4, s21"); k("s_addc_u32 s9, s5, 0"); k("s_and_b32 s9, s9, 0xffff")
    k("s_add_u32 s12, s4, s22"); k("s_addc_u32 s13, s5, 0"); k("s_and_b32 s13, s13, 0xffff")
    k("s_cmp_eq_u32 s23, 2")
    k("s_cselect_b32 s53, s18, 2")
    k(f"s_mov_b32 s34, {8*9216}")
    k(f"s_mov_b32 s35, {8*2048}")
    k("s_cmp_eq_u32 s53, 0")
    k(f"s_cbranch_scc0 {N}_l1")
    for _, t in loads(2, 0): k(t)
    k(f"{N}_l1:")
    k("s_cmp_eq_u32 s53, 1")
    k(f"s_cbranch_scc0 {N}_l2")
    for _, t in loads(2, 1): k(t)
    k(f"{N}_l2:")
    k("s_mul_i32 s34, s20, 9216")
    k("s_lshl_b32 s35, s20, 11")
    for _, t in loads(0): k(t)
    adv(k)
    k("s_add_u32 s24, s4, s44"); k("s_addc_u32 s25, s5, 0"); k("s_and_b32 s25, s25, 0xffff"); k(f"s_mov_b32 s26, {XSZ}"); k("s_mov_b32 s27, 0x20000")
    k("v_and_b32 v10, 15, v9")
    k("v_bfe_u32 v12, v9, 4, 1")
    k("v_lshrrev_b32 v13, 5, v9")
    k("v_lshl_add_u32 v12, v12, 1, v13")
    k("v_lshlrev_b32 v17, 4, v10")
    k("v_lshl_add_u32 v16, v12, 8, v17")
    k("s_lshl_b32 s30, s16, 2")
    k("s_add_u32 s30, s30, s18")
    k("s_mul_i32 s31, s30, 18432")
    k("s_mul_i32 s32, s17, 9")
    k("s_lshl_b32 s20, s32, 8")
    k("s_add_u32 s20, s20, s31")
    k(f"buffer_load_dwordx4 {v4(RES)}, v16, s[24:27], s20 offen")
    k(f"buffer_load_dwordx4 {v4(RES+4)}, v16, s[24:27], s20 offen offset:1024")
    k(f"buffer_load_dwordx4 {v4(RES+8)}, v17, s[24:27], s20 offen offset:2048")
    for r in range(ACC, ACC + 96): k(f"v_mov_b32 v{r}, 0")
    for _, t in loads(1): k(t)
    adv(k)
    k("s_cmp_eq_u32 s52, -1")
    k(f"s_cbranch_scc1 {N}_o1")
    k("s_add_u32 s6, s4, s52")
    k("s_addc_u32 s7, s5, 0")
    k(f"{N}_o1:")
    k("s_mov_b32 s36, s6"); k("s_and_b32 s37, s7, 0xffff"); k(f"s_mov_b32 s38, {XSZ}"); k("s_mov_b32 s39, 0x20000")
    k("s_add_u32 s24, s4, s45"); k("s_addc_u32 s25, s5, 0"); k("s_and_b32 s25, s25, 0xffff"); k(f"s_mov_b32 s26, {STSZ}")
    k("v_lshlrev_b32 v18, 4, v10")
    k("v_mul_lo_u32 v17, v10, s47")
    k("v_mul_lo_u32 v16, v12, s46")
    k("v_add_u32 v16, v16, v17")
    k("s_mul_i32 s48, s32, s46")
    k("s_add_u32 s48, s48, s31")
    k("s_lshl_b32 s20, s46, 2")
    k("s_add_u32 s49, s48, s20")
    k("s_add_u32 s50, s49, s20")
    k("s_lshl_b32 s51, s30, 10")
    k("s_lshr_b32 s20, s17, 1")
    k("s_lshl_b32 s20, s20, 8")
    k("s_add_u32 s51, s51, s20")
    k("s_and_b32 s20, s17, 1")
    k("s_lshl_b32 s20, s20, 3")
    k("s_add_u32 s51, s51, s20")
    k("s_mul_i32 s20, s18, 12288")
    k("v_add_u32 v19, s20, v1")
    k("s_and_b32 s20, s18, 1")
    k("s_lshl_b32 s20, s20, 9")
    k("v_xor_b32 v14, s20, v1")
    k("s_lshr_b32 s20, s18, 1")
    k("s_lshl_b32 s20, s20, 12")
    k("v_add_u32 v14, s20, v14")
    k.add(k.stamp(1))
    k("s_cmp_eq_u32 s23, 2")
    k(f"s_cbranch_scc0 {N}_down")
    k("s_waitcnt vmcnt(37)")
    k("s_cmp_eq_u32 s53, 0")
    k(f"s_cbranch_scc0 {N}_c1")
    compute(k, 2, False, groups=range(5))
    k(f"{N}_c1:")
    k("s_cmp_eq_u32 s53, 1")
    k(f"s_cbranch_scc0 {N}_fin")
    compute(k, 2, False, groups=range(5, 10))
    k(f"s_branch {N}_fin")
    k(f"{N}_down:")
    k("s_mov_b32 s22, 8")
    k(".p2align 3")
    k(f"{N}_loop:")
    for s in range(2):
        k("s_waitcnt vmcnt(17)")
        compute(k, s, True)
    k("s_sub_u32 s22, s22, 1")
    k("s_cmp_lg_u32 s22, 0")
    k(f"s_cbranch_scc1 {N}_loop")
    k(f"{N}_fin:")
    k.add(k.stamp(2))
    k("s_waitcnt vmcnt(26)")
    compute(k, 0, False, 17)
    k("s_waitcnt vmcnt(9)")
    compute(k, 1, False, 0)
    k.add(k.stamp(3))
    reduce_store(k, N, '')
    k.add(k.stamp(5))
    k.stamp_out()
    k(f"{N}_end:")
    k("s_endpgm")
    L = lambda *a: {f"{N}_{x}" for x in a}
    k.only_paths = [L("l2", "c1", ), L("l1", "c1"), L("l1", "l2", "c1", "fin"), L("l1", "l2", "down"), L("l1", "l2", "down", "o1", "x1"),
                    L("l1", "l2", "down", "x1", "x2"), L("l1", "l2", "down", "x1", "x2", "x3"), L("l2", "fin")]
    names = [v[0] for v in variants]
    return k, [(n, GRID, 256, LDS) for n in names], "".join(descriptor(n, 220, 204) for n in names), names
```

```python
from asmgen import *
from layout import *
from k_prep import srd, entry, xreduce
from k_qkv import load_stats, finish_stats, f2u, QSCALE
import k_gemmk as G
import k_ffn1 as F1
import math, os

GRID = 256
SC = "sc1"
LDS = 17 * 9216 + 1024 + 576
SPIN = 400000
def v4(r): return f"v[{r}:{r+3}]"
def a4(r): return f"a[{r}:{r+3}]"

def signal(k, so, nvm, lab):
    k(f"s_waitcnt vmcnt({nvm})")
    k("s_barrier")
    k("s_cmp_lg_u32 s18, 0")
    k(f"s_cbranch_scc1 {lab}_sg")
    k("s_mov_b64 exec, 1")
    k(f"buffer_store_dword v253, v252, s[96:99], s{so} offen {SC}")
    k("s_mov_b64 exec, -1")
    k(f"{lab}_sg:")

def wait_flags(k, so, n, lab):
    k("s_cmp_lg_u32 s18, 0")
    k(f"s_cbranch_scc1 {lab}_wd")
    k(f"v_min_u32 v255, {n-1}, v254")
    k("v_lshlrev_b32 v255, 7, v255")
    k(f"s_mov_b32 s3, {SPIN}")
    k(f"{lab}_wl:")
    k(f"buffer_load_dword v251, v255, s[96:99], s{so} offen {SC}")
    k("s_sub_u32 s3, s3, 1")
    k("s_cmp_eq_u32 s3, 0")
    k("s_waitcnt vmcnt(0)")
    k(f"s_cbranch_scc1 {lab}_wd")
    k("v_cmp_ne_u32 vcc, 1, v251")
    k("s_nop 1")
    k("s_cmp_lg_u64 vcc, 0")
    k(f"s_cbranch_scc1 {lab}_wl")
    k(f"{lab}_wd:")
    k("s_waitcnt vmcnt(0)")
    k("s_barrier")

def gk_loads(s, part, half=None):
    L = [t for _, t in G.loads(s, half)]
    if part == "w": L = [t for t in L if "s[12:15]" in t]
    if part == "h": L = [t for t in L if "s[8:11]" in t]
    return L

def emit_gk(k):
    N = "gk"; acc = G.acc; ACC = G.ACC; F = G.F; T = G.T; RES = G.RES
    G.NTH = SC
    k(f"{N}_main:")
    k("s_cmp_eq_u32 s55, 0")
    k(f"s_mov_b32 s40, {HH}"); k(f"s_cselect_b32 s40, {OO}, s40")
    k(f"s_mov_b32 s41, {576*256}"); k(f"s_cselect_b32 s41, {72*256}, s41")
    k(f"s_mov_b32 s42, {WD}"); k(f"s_cselect_b32 s42, {WO}, s42")
    k(f"s_mov_b32 s14, {72*9216}"); k(f"s_cselect_b32 s14, {9*9216}, s14")
    k("s_cselect_b32 s23, 2, 18")
    k("s_cselect_b32 s53, s18, 2")
    k("s_and_b32 s20, s2, 7")
    k("s_lshr_b32 s21, s2, 3")
    k("s_lshr_b32 s16, s20, 1")
    k("s_lshl_b32 s16, s16, 3")
    k("s_lshr_b32 s22, s21, 2")
    k("s_add_u32 s16, s16, s22")
    k("s_and_b32 s17, s20, 1")
    k("s_lshl_b32 s17, s17, 2")
    k("s_and_b32 s22, s21, 3")
    k("s_add_u32 s17, s17, s22")
    k("v_add_u32 v2, 4096, v1")
    k("v_add_u32 v3, 8192, v1")
    k("v_mov_b32 v4, v1")
    k("v_add_u32 v5, s41, v4")
    k("v_add_u32 v6, s41, v5")
    k("v_add_u32 v7, s41, v6")
    k("s_lshl_b32 s10, s41, 2")
    k("s_mul_i32 s21, s10, s16")
    k("s_add_u32 s21, s21, s40")
    k("s_mul_i32 s22, s14, s17")
    k("s_add_u32 s22, s22, s42")
    k("s_mov_b32 s11, 0x20000")
    k("s_mov_b32 s15, 0x20000")
    k("s_mul_i32 s20, s18, s23")
    k("s_waitcnt lgkmcnt(0)")
    k("s_add_u32 s8, s4, s21"); k("s_addc_u32 s9, s5, 0"); k("s_and_b32 s9, s9, 0xffff")
    k("s_add_u32 s12, s4, s22"); k("s_addc_u32 s13, s5, 0"); k("s_and_b32 s13, s13, 0xffff")
    def setup2():
        k("s_cmp_eq_u32 s54, 0")
        k(f"s_mov_b32 s44, {X2}"); k(f"s_cselect_b32 s44, {XF0}, s44")
        k("s_cmp_eq_u32 s55, 0")
        k(f"s_cselect_b32 s44, s44, {X1}")
        k(f"s_mov_b32 s45, {ST2}"); k(f"s_cselect_b32 s45, {ST1}, s45")
        k(f"s_mov_b32 s52, {X2}"); k(f"s_cselect_b32 s52, {X1}, s52")
        k("s_add_u32 s24, s4, s44"); k("s_addc_u32 s25, s5, 0"); k("s_and_b32 s25, s25, 0xffff"); k(f"s_mov_b32 s26, {XSZ}"); k("s_mov_b32 s27, 0x20000")
        k("v_and_b32 v10, 15, v254")
        k("v_bfe_u32 v12, v254, 4, 1")
        k("v_lshrrev_b32 v13, 5, v254")
        k("v_lshl_add_u32 v12, v12, 1, v13")
        k("v_lshlrev_b32 v17, 4, v10")
        k("v_lshl_add_u32 v16, v12, 8, v17")
        k("s_lshl_b32 s30, s16, 2")
        k("s_add_u32 s30, s30, s18")
        k("s_mul_i32 s31, s30, 18432")
        k("s_mul_i32 s32, s17, 9")
        k("s_lshl_b32 s33, s32, 8")
        k("s_add_u32 s33, s33, s31")
    def resid():
        k(f"buffer_load_dwordx4 {v4(RES)}, v16, s[24:27], s33 offen {SC}")
        k(f"buffer_load_dwordx4 {v4(RES+4)}, v16, s[24:27], s33 offen offset:1024 {SC}")
        k(f"buffer_load_dwordx4 {v4(RES+8)}, v17, s[24:27], s33 offen offset:2048 {SC}")
    def zero():
        for r in range(ACC, ACC + 96): k(f"v_mov_b32 v{r}, 0")
    k("s_cmp_eq_u32 s55, 0")
    k(f"s_cbranch_scc0 {N}_dpro")
    srd(k, 96, 4, FLG, FLG_SZ)
    k(f"s_mov_b32 s34, {8*9216}")
    k(f"s_mov_b32 s35, {8*2048}")
    k("s_cmp_eq_u32 s53, 0")
    k(f"s_cbranch_scc0 {N}_l1")
    for t in gk_loads(2, "all", 0): k(t)
    k(f"{N}_l1:")
    k("s_cmp_eq_u32 s53, 1")
    k(f"s_cbranch_scc0 {N}_l2")
    for t in gk_loads(2, "all", 1): k(t)
    k(f"{N}_l2:")
    k("s_mul_i32 s34, s20, 9216")
    k("s_lshl_b32 s35, s20, 11")
    for t in gk_loads(0, "all"): k(t)
    G.adv(k)
    setup2(); resid(); zero()
    for t in gk_loads(1, "all"): k(t)
    k(f"s_branch {N}_pro2")
    k(f"{N}_dpro:")
    k("s_mul_i32 s34, s20, 9216")
    k("s_lshl_b32 s35, s20, 11")
    for t in gk_loads(0, "w"): k(t)
    signal(k, 58, 9, "f1")
    k.add(k.stamp(7))
    k("s_add_u32 s34, s34, 9216")
    for t in gk_loads(1, "w"): k(t)
    setup2(); zero()
    k("s_lshr_b32 s58, s16, 2")
    k("s_lshl_b32 s58, s58, 12")
    k(f"s_mul_i32 s3, s54, {3*FLG_SET}")
    k("s_add_u32 s58, s58, s3")
    k(f"s_add_u32 s58, s58, {FLG_SET}")
    wait_flags(k, 58, 32, "dn")
    k.add(k.stamp(8))
    for t in gk_loads(0, "h"): k(t)
    resid()
    k("s_add_u32 s35, s35, 2048")
    for t in gk_loads(1, "h"): k(t)
    k(f"{N}_pro2:")
    G.adv(k)
    k("s_and_b32 s3, s54, s55")
    k("s_cmp_eq_u32 s3, 1")
    k("s_cselect_b32 s46, 16, 256")
    k("s_cselect_b32 s47, 1152, 16")
    k("s_cselect_b32 s36, s56, s4")
    k("s_cselect_b32 s37, s57, s5")
    k("s_cselect_b32 s52, 0, s52")
    k("s_add_u32 s36, s36, s52"); k("s_addc_u32 s37, s37, 0"); k("s_and_b32 s37, s37, 0xffff"); k(f"s_mov_b32 s38, {XSZ}"); k("s_mov_b32 s39, 0x20000")
    k("s_add_u32 s24, s4, s45"); k("s_addc_u32 s25, s5, 0"); k("s_and_b32 s25, s25, 0xffff"); k(f"s_mov_b32 s26, {STSZ}")
    k("v_lshlrev_b32 v18, 4, v10")
    k("v_mul_lo_u32 v17, v10, s47")
    k("v_mul_lo_u32 v16, v12, s46")
    k("v_add_u32 v16, v16, v17")
    k("s_mul_i32 s48, s32, s46")
    k("s_add_u32 s48, s48, s31")
    k("s_lshl_b32 s20, s46, 2")
    k("s_add_u32 s49, s48, s20")
    k("s_add_u32 s50, s49, s20")
    k("s_lshl_b32 s51, s30, 10")
    k("s_lshr_b32 s20, s17, 1")
    k("s_lshl_b32 s20, s20, 8")
    k("s_add_u32 s51, s51, s20")
    k("s_and_b32 s20, s17, 1")
    k("s_lshl_b32 s20, s20, 3")
    k("s_add_u32 s51, s51, s20")
    k("s_mul_i32 s20, s18, 12288")
    k("v_add_u32 v19, s20, v1")
    k("s_and_b32 s20, s18, 1")
    k("s_lshl_b32 s20, s20, 9")
    k("v_xor_b32 v14, s20, v1")
    k("s_lshr_b32 s20, s18, 1")
    k("s_lshl_b32 s20, s20, 12")
    k("v_add_u32 v14, s20, v14")
    k("s_lshl_b32 s58, s16, 3")
    k("s_add_u32 s58, s58, s17")
    k("s_lshl_b32 s58, s58, 7")
    k("s_mul_i32 s3, s54, 3")
    k("s_lshl_b32 s20, s55, 1")
    k("s_add_u32 s3, s3, s20")
    k(f"s_mul_i32 s3, s3, {FLG_SET}")
    k("s_add_u32 s58, s58, s3")
    k("s_cmp_eq_u32 s55, 0")
    k(f"s_cbranch_scc0 {N}_down")
    k("s_waitcnt vmcnt(37)")
    k("s_cmp_eq_u32 s53, 0")
    k(f"s_cbranch_scc0 {N}_c1")
    G.compute(k, 2, False, groups=range(5))
    k(f"{N}_c1:")
    k("s_cmp_eq_u32 s53, 1")
    k(f"s_cbranch_scc0 {N}_fin")
    G.compute(k, 2, False, groups=range(5, 10))
    k(f"s_branch {N}_fin")
    k(f"{N}_down:")
    k("s_mov_b32 s22, 8")
    k("s_waitcnt vmcnt(8)")
    k(".p2align 3")
    k(f"{N}_loop:")
    for s in range(2):
        k("s_waitcnt vmcnt(17)")
        G.compute(k, s, True)
    k("s_sub_u32 s22, s22, 1")
    k("s_cmp_lg_u32 s22, 0")
    k(f"s_cbranch_scc1 {N}_loop")
    k.add(k.stamp(9))
    k(f"{N}_fin:")
    k("s_waitcnt vmcnt(26)")
    G.compute(k, 0, False, 17)
    k("s_waitcnt vmcnt(9)")
    G.compute(k, 1, False, 0)
    G.reduce_store(k, N, SC)
    k("s_cmp_eq_u32 s55, 0")
    k("s_cbranch_scc1 f1_main")
    k.add(k.stamp(10))
    k("s_cmp_eq_u32 s54, 0")
    k("s_cbranch_scc1 q2_main")

def emit_ffn1(k):
    CH = F1.CH; LDS_S = F1.LDS_S; XV, WB, ACC, NMEAN, CC, QQ, SG, TT, PP = F1.XV, F1.WB, F1.ACC, F1.NMEAN, F1.CC, F1.QQ, F1.SG, F1.TT, F1.PP
    xop, accr, rd = F1.xop, F1.accr, F1.rd
    F1.STORE_MOD = SC
    k("f1_main:")
    k.add(k.stamp(2))
    k("s_and_b32 s6, s2, 7")
    k("s_lshr_b32 s7, s2, 3")
    k("s_and_b32 s16, s6, 1")
    k("s_lshl_b32 s16, s16, 2")
    k("s_lshr_b32 s17, s7, 3")
    k("s_add_u32 s16, s16, s17")
    k("s_lshr_b32 s17, s6, 1")
    k("s_lshl_b32 s17, s17, 3")
    k("s_and_b32 s7, s7, 7")
    k("s_add_u32 s17, s17, s7")
    k("s_mul_i32 s39, s18, 9216")
    k(f"s_mul_i32 s6, s17, {9*CH}")
    k(f"s_add_u32 s6, s6, {WGU}")
    k("s_add_u32 s12, s4, s6"); k("s_addc_u32 s13, s5, 0"); k("s_and_b32 s13, s13, 0xffff"); k(f"s_mov_b32 s14, {9*CH}")
    signal(k, 58, 0, "wo")
    k.add(k.stamp(3))
    for c in range(3): k.add(F1.dma_chunk(c))
    k("s_lshl_b32 s19, s16, 4")
    k("s_lshl_b32 s6, s18, 2")
    k("s_add_u32 s19, s19, s6")
    for i in range(1, 5): k(f"s_mov_b32 s{32+i}, {4096*i}")
    k("s_mul_i32 s6, s19, 18432")
    k("v_add_u32 v2, s6, v1")
    for tb in range(1, 4): k(f"v_add_u32 v{2+tb}, 18432, v{1+tb}")
    k("v_and_b32 v13, 15, v254")
    k("v_lshrrev_b32 v15, 4, v254")
    k("s_lshl_b32 s6, s19, 10")
    k("v_add_u32 v9, s6, v1")
    k("v_min_u32 v10, 35, v254")
    k("v_lshlrev_b32 v10, 3, v10")
    k("s_mul_i32 s6, s18, 288")
    k("v_add_u32 v10, s6, v10")
    k("s_mul_i32 s42, s17, 1152")
    k("s_add_u32 s43, s42, 36864")
    k("s_add_u32 s44, s42, 73728")
    srd(k, 8, 4, X1, XSZ)
    srd(k, 20, 4, ST1, STSZ)
    srd(k, 28, 4, SGU, SGU_SZ)
    srd(k, 24, 4, HH, H_SZ)
    k("v_add_u32 v6, 65536, v1")
    k("v_add_u32 v7, 131072, v1")
    k(f"v_add_u32 v8, {4*CH}, v1")
    k("v_and_b32 v11, 1, v15")
    k("v_mul_u32_u24 v11, 147456, v11")
    k("v_lshrrev_b32 v12, 1, v15")
    k("v_lshl_add_u32 v11, v12, 8, v11")
    k("v_lshl_add_u32 v11, v13, 4, v11")
    k("s_mul_i32 s6, s19, 147456")
    k("v_add_u32 v11, s6, v11")
    k(f"v_add_u32 v12, {2*147456}, v11")
    k("s_mul_i32 s45, s17, 4608")
    k("s_lshl_b32 s46, s16, 12")
    k(f"s_mul_i32 s3, s54, {3*FLG_SET}")
    k("s_add_u32 s46, s46, s3")
    k("s_lshl_b32 s58, s17, 7")
    k("s_add_u32 s58, s58, s46")
    k(f"s_add_u32 s58, s58, {FLG_SET}")
    wait_flags(k, 46, 32, "f1")
    k.add(k.stamp(4))
    def xl(ks):
        so = "0" if ks < 4 else f"s{32 + ks // 4}"
        return [(f"buffer_load_dwordx4 {xop(ks, tb)}, v{2+tb}, s[8:11], {so} offen offset:{(ks % 4) * 1024} {SC}", f"x{ks}") for tb in range(4)]
    D = int(os.environ.get("XDIST", "3"))
    for ks in range(D): k.add(xl(ks))
    R0 = TT; CS = ACC + 120
    ks_ = Kern(); load_stats(ks_, 20, 9, 4, R0, "st", SC)
    for i, sr in enumerate((42, 43, 44)):
        ks_(f"buffer_load_dwordx2 v[{CS+2*i}:{CS+2*i+1}], v10, s[28:31], s{sr} offen", "st")
    st_loads = list(ks_.ins)
    kf = Kern()
    kf("WAITVM st")
    for q in range(2):
        kf(f"v_add_f32 v{CS+q}, v{CS+q}, v{CS+2+q}")
        kf(f"v_add_f32 v{CS+q}, v{CS+q}, v{CS+4+q}")
    kf(f"v_add_u32 v10, {LDS_S}, v10")
    kf(f"ds_write_b64 v10, v[{CS}:{CS+1}]", "sw")
    finish_stats(kf, 4, R0)
    for tb in range(4):
        kf(f"v_rsq_f32 v{CC+tb}, v{R0+4*tb+1}")
        kf(f"v_sub_f32 v{NMEAN+tb}, 0, v{R0+4*tb}")
        kf(f"v_mov_b32 v{QQ+tb}, v{R0+4*tb+1}")
        kf(f"v_mul_f32 v{CC+tb}, {f2u(-math.log2(math.e))}, v{CC+tb}")
    kf("v_lshlrev_b32 v10, 4, v15")
    kf(f"v_add_u32 v10, {LDS_S}, v10")
    kf(f"v_add_u32 v9, {8*CH}, v1")
    st_fin = list(kf.ins)
    mf = []; fixed = {}; flow = []
    def fx(i, x): fixed.setdefault(i, []).extend(x if isinstance(x, list) else [x])
    def spread(items, g0, g1):
        vm = [x for x in items if not (isinstance(x, str) and x.startswith("s_add_u32 m0"))]
        step = (g1 - g0) / len(vm); n = 0; pend = None; last = -1
        for x in items:
            if isinstance(x, str) and x.startswith("s_add_u32 m0"): pend = x; continue
            g = max(int(g0 + (n + 0.5) * step), last + 1); n += 1
            while g % 4 in (0, 1) or any(unit_cost(as_ins(y)) for y in fixed.get(g, [])) or (pend and any(as_ins(y).kind == "dma" for y in fixed.get(g - 1, []))): g += 1
            last = g
            if pend: fx(g - 1, pend); pend = None
            fx(g, x)
    PB = (ACC + 96, WB)
    for c in range(3):
        for gu in range(2): k.add([rd(PB[0] + 8 * c + 4 * gu, c, 0, gu)])
    k("WAITLG w0_0")
    k("WAITVM x0")
    d3 = F1.dma_chunk(3); d3s = [d3[0:5], d3[5:10], d3[10:12]]
    for ks in range(18):
        i0 = len(mf)
        if ks > 0: fx(i0 - 2, f"WAITVM x{ks}")
        ext = xl(ks + D) if ks + D < 18 else []
        if ks == 2: ext = ext + st_loads[:4]
        if ks == 3: ext = ext + st_loads[4:]
        if ks == 7: flow += [(x, i0) for x in st_fin]
        if ks in (10, 11, 12): ext = ext + d3s[ks - 10]
        if ext: spread(ext, i0, i0 + 20)
        if ks == 17:
            fx(i0 - 5, "WAITVM d3"); fx(i0 - 4, "WAITLG sw"); fx(i0 - 3, ["s_barrier"] + k.stamp(5))
        for c in range(3):
            for gu in range(2):
                for tb in range(4):
                    a = accr(c, gu, tb); w = PB[ks % 2] + 8 * c + 4 * gu
                    i = len(mf)
                    if gu == 0 and tb == 0 and i > 0: fx(i - 1, f"WAITLG w{c}_{ks}")
                    mf.append(f"v_mfma_f32_16x16x32_bf16 {v4(a)}, {v4(w)}, {xop(ks, tb)}, {'0' if ks == 0 else v4(a)}")
                    if tb == 0 and ks < 17: fx(i, rd(PB[(ks + 1) % 2] + 8 * c + 4 * gu, c, ks + 1, gu))
                    if ks == 17 and c >= 1 and tb == 0: fx(i, rd(WB + 8 * (c - 1) + 4 * gu, 3, c - 1, gu))
                    if ks == 17 and c == 0 and tb == 1:
                        flow.append(((f"ds_read_b128 {v4(SG + 4*gu)}, v10 offset:{64*gu}", "s0"), i))
    flow.append(("WAITLG s0", len(mf) + 1))
    for e in range(3): flow += [(x, len(mf) + 1) for x in F1.epilogue(e)]
    for c in range(3, 9):
        i0 = len(mf)
        if c == 3: fx(i0 - 2, "s_barrier")
        for ks in range(18):
            for gu in range(2):
                for tb in range(4):
                    a = accr(c, gu, tb); w = WB + 8 * (ks % 3) + 4 * gu
                    i = len(mf)
                    if gu == 0 and tb == 0:
                        fx(i - 1, f"WAITLG w{c}_{ks}")
                        if ks == 16 and c < 8:
                            fx(i - 3, f"WAITVM d{c+1}"); fx(i - 2, "s_barrier")
                    mf.append(f"v_mfma_f32_16x16x32_bf16 {v4(a)}, {v4(w)}, {xop(ks, tb)}, {'0' if ks == 0 else v4(a)}")
                    if tb == 0:
                        c2, k2 = (c, ks + 2) if ks < 16 else (c + 1, ks - 16)
                        if c2 < 9: fx(i, rd(WB + 8 * (k2 % 3) + 4 * gu, c2, k2, gu))
        for dc, k0, k1 in {3: [(4, 0, 64), (5, 72, 140)], 4: [(6, 0, 120)], 5: [(7, 0, 120)], 6: [(8, 0, 120)]}.get(c, []):
            spread(F1.dma_chunk(dc), i0 + k0, i0 + k1)
        flow += [(x, len(mf) + 2) for x in F1.epilogue(c)]
    n0 = len(k.ins)
    left, over = pack(k, mf, fixed, flow)
    print("mega ffn1 leftover instrs:", len(left), "overfull units:", over)
    k.add(k.stamp(6))
    k.add(left)
    sub = Kern(); sub.ins = k.ins[n0:]; F1.check_deadlines(sub)
    iw = [i for i, x in enumerate(sub.ins) if x.tag == "sw"][0]; ir = [i for i, x in enumerate(sub.ins) if x.tag == "s0"][0]
    assert any(x.op == "s_barrier" for x in sub.ins[iw + 3:ir])
    k("s_mov_b32 s55, 1")
    k("s_branch gk_main")

def emit_qkv(k):
    N = "q2"; LDS_ST = 17 * 9216; LDS_S = LDS_ST + 1024
    k(f"{N}_main:")
    k("s_and_b32 s6, s2, 7")
    k("s_lshr_b32 s7, s2, 3")
    k("s_mul_i32 s16, s7, 43")
    k("s_lshr_b32 s16, s16, 8")
    k("s_mul_i32 s17, s16, 6")
    k("s_sub_u32 s17, s7, s17")
    k("s_lshr_b32 s7, s6, 1")
    k("s_lshl_b32 s7, s7, 2")
    k("s_add_u32 s16, s16, s7")
    k("s_and_b32 s6, s6, 1")
    k("s_mul_i32 s6, s6, 6")
    k("s_add_u32 s17, s17, s6")
    k("s_mul_i32 s6, s17, 165888")
    k(f"s_add_u32 s6, s6, {WQKV}")
    k("s_add_u32 s12, s4, s6"); k("s_addc_u32 s13, s5, 0"); k("s_and_b32 s13, s13, 0xffff"); k("s_mov_b32 s14, 165888")
    signal(k, 58, 0, "dn")
    k.add(k.stamp(11))
    k("s_cmp_ge_u32 s2, 192")
    k("s_cbranch_scc1 mega_end")
    k("s_lshl_b32 s38, s18, 10")
    for i in range(38):
        k(f"s_add_u32 m0, s38, {i*4096}")
        k("buffer_load_dwordx4 v1, s[12:15], m0 offen lds")
    k(f"s_mov_b32 m0, {152*1024}")
    k("s_cmp_lg_u32 s18, 0")
    k(f"s_cbranch_scc1 {N}_w1")
    k("buffer_load_dwordx4 v1, s[12:15], m0 offen lds")
    k(f"{N}_w1:")
    k("s_lshl_b32 s19, s16, 3")
    k("s_lshl_b32 s6, s18, 1")
    k("s_add_u32 s19, s19, s6")
    k("s_mul_i32 s6, s19, 18432")
    k("v_add_u32 v2, s6, v1")
    k("v_add_u32 v3, 18432, v2")
    for i in range(1, 5): k(f"s_mov_b32 s{32+i}, {4096*i}")
    k(f"v_add_u32 v6, {17*9216}, v1")
    k("v_and_b32 v7, 15, v254")
    k("v_lshrrev_b32 v8, 4, v254")
    k("s_lshl_b32 s6, s19, 10")
    k("v_add_u32 v9, s6, v1")
    k("v_min_u32 v10, 35, v254")
    k("v_lshlrev_b32 v10, 4, v10")
    k("s_mul_i32 s42, s17, 576")
    k("s_add_u32 s43, s42, 6912")
    k("s_add_u32 s44, s42, 13824")
    srd(k, 8, 4, X2, XSZ)
    srd(k, 20, 4, ST2, STSZ)
    srd(k, 28, 4, SQKV, SQKV_SZ)
    srd(k, 24, 4, QKV, 3 * XSZ)
    k("v_add_u32 v16, 65536, v1")
    k("v_add_u32 v17, 131072, v1")
    k("s_cmp_lt_u32 s17, 4")
    k(f"s_cselect_b32 s46, {f2u(QSCALE)}, 1.0")
    k("s_lshl_b32 s47, s18, 8")
    k(f"s_add_u32 s47, s47, {LDS_ST}")
    k("s_mul_i32 s45, s17, 589824")
    k("s_lshl_b32 s48, s19, 9")
    k("s_lshl_b32 s49, s16, 11")
    k(f"s_add_u32 s49, s49, {2*FLG_SET}")
    R0 = 176; CS = 184; W = (32, 68); ACC = 104; SV = 196; PR = 232; WL = 144
    for b in range(9):
        so = "0" if b < 4 else f"s{32 + b // 4}"
        k(f"buffer_load_dwordx4 {a4(WL+4*b)}, v6, s[12:15], {so} offen offset:{(b % 4) * 1024}")
    for i, sr in enumerate((42, 43, 44)):
        k(f"buffer_load_dwordx4 v[{CS+4*i}:{CS+4*i+3}], v10, s[28:31], s{sr} offen")
    wait_flags(k, 49, 16, N)
    k.add(k.stamp(12))
    def xfrag(ks, j): return 4 * (ks * 2 + j)
    def xl(ks):
        so = "0" if ks < 4 else f"s{32 + ks // 4}"
        return [(f"buffer_load_dwordx4 {a4(xfrag(ks, j))}, v{2+j}, s[8:11], {so} offen offset:{(ks % 4) * 1024} {SC}", f"qx{ks}") for j in range(2)]
    D = 5
    for ks in range(D): k.add(xl(ks))
    load_stats(k, 20, 9, 2, R0, "qst", SC)
    k("s_cmp_ge_u32 s17, 8")
    k(f"s_cbranch_scc1 {N}_v")
    for path in ("qk", "v"):
        k.path = path
        if path == "v": k(f"{N}_v:")
        kf = Kern()
        for q in range(4):
            kf(f"v_add_f32 v{CS+q}, v{CS+q}, v{CS+4+q}")
            kf(f"v_add_f32 v{CS+q}, v{CS+q}, v{CS+8+q}")
        kf(f"v_add_u32 v10, {LDS_S}, v10")
        kf(f"ds_write_b128 v10, v[{CS}:{CS+3}]")
        kf("WAITVM qst")
        finish_stats(kf, 2, R0)
        kf(f"v_rsq_f32 v13, v{R0+1}")
        kf(f"v_rsq_f32 v15, v{R0+5}")
        kf(f"v_sub_f32 v12, 0, v{R0}")
        kf(f"v_sub_f32 v14, 0, v{R0+4}")
        if path == "qk":
            kf("v_mul_f32 v13, s46, v13")
            kf("v_mul_f32 v15, s46, v15")
            kf(f"v_lshlrev_b32 v10, 4, v8")
            kf("v_and_b32 v18, 1, v8")
            kf("v_lshlrev_b32 v18, 9, v18")
            kf("v_lshrrev_b32 v19, 1, v8")
            kf("v_lshl_add_u32 v18, v19, 8, v18")
            kf("v_lshl_add_u32 v18, v7, 4, v18")
            kf("v_add_u32 v18, s48, v18")
        else:
            kf("v_lshl_add_u32 v11, v7, 3, s47")
            kf("ds_write_b64 v11, v[12:13]")
            kf("ds_write_b64 v11, v[14:15] offset:128")
            kf("v_lshl_add_u32 v11, v8, 5, s47")
            for j in range(2):
                for h in range(2):
                    kf(f"ds_read_b128 v[{R0+8*j+4*h}:{R0+8*j+4*h+3}], v11 offset:{j*128+h*16}", "qvs")
            kf(f"v_lshlrev_b32 v10, 2, v7")
            kf("v_add_u32 v18, s48, v1")
        kf(f"v_add_u32 v10, {LDS_S}, v10")
        def rd(ks, b):
            r = W[ks % 2] + 4 * b
            off = ks * 9216 + b * 1024
            va = 1 if off < 65536 else (16 if off < 131072 else 17)
            return (f"ds_read_b128 v[{r}:{r+3}], v{va} offset:{off % 65536}", f"qw{ks}_{b}")
        def mfma(ks, b, j):
            w = v4(W[ks % 2] + 4 * b) if ks < 17 else a4(WL + 4 * b)
            a = ACC + 4 * (j * 9 + b); x = xfrag(ks, j)
            c = "0" if ks == 0 else v4(a)
            if path == "qk": return f"v_mfma_f32_16x16x32_bf16 {v4(a)}, {w}, {a4(x)}, {c}"
            return f"v_mfma_f32_16x16x32_bf16 {v4(a)}, {a4(x)}, {w}, {c}"
        def epi(b):
            L = []; P = PR + 4 * (b % 2)
            for j in range(2):
                a = ACC + 4 * (j * 9 + b)
                if path == "qk":
                    for i in range(4): L.append(f"v_fma_f32 v{a+i}, v{12+2*j}, v{SV+4*b+i}, v{a+i}")
                    for i in range(4): L.append(f"v_mul_f32 v{a+i}, v{a+i}, v{13+2*j}")
                else:
                    for i in range(4): L.append(f"v_fma_f32 v{a+i}, v{R0+8*j+2*i}, v{SV+b}, v{a+i}")
                    for i in range(4): L.append(f"v_mul_f32 v{a+i}, v{a+i}, v{R0+8*j+2*i+1}")
                L.append(f"v_cvt_pk_bf16_f32 v{P+2*j}, v{a}, v{a+1}")
                L.append(f"v_cvt_pk_bf16_f32 v{P+2*j+1}, v{a+2}, v{a+3}")
            if path == "qk":
                L.append(f"v_permlane16_swap_b32 v{P}, v{P+2}")
                L.append(f"v_permlane16_swap_b32 v{P+1}, v{P+3}")
            L.append(f"buffer_store_dwordx4 v[{P}:{P+3}], v18, s[24:27], s45 offen")
            if b < 8: L.append("s_add_u32 s45, s45, 65536")
            return L
        for b in range(9): k.add([rd(0, b)])
        k("WAITLG qw0_2")
        k("WAITVM qx0")
        mf = []; fixed = {}
        def fx(i, x): fixed.setdefault(i, []).extend(x if isinstance(x, list) else [x])
        flow = [(x, 4 * 18) for x in kf.ins]
        for b in range(9):
            ins = (f"ds_read_b128 v[{SV+4*b}:{SV+4*b+3}], v10 offset:{b*64}", "sv") if path == "qk" else (f"ds_read_b32 v{SV+b}, v10 offset:{b*64}", "sv")
            flow.append((ins, 9 * 18 + 8 * b))
        for ks in range(16):
            i0 = len(mf)
            if ks > 0: fx(i0 - 2, f"WAITVM qx{ks}")
            if ks + D < 18:
                for n, x in enumerate(xl(ks + D)): fx(i0 + 3 + 8 * n, x)
            for b in range(9):
                i = len(mf)
                if b % 3 == 0 and i > 0: fx(i - 1, f"WAITLG qw{ks}_{b+2}")
                mf += [mfma(ks, b, 0), mfma(ks, b, 1)]
                fx(i, rd(ks + 1, b))
        fx(len(mf) - 2, "WAITVM qx17")
        for b in range(9):
            i = len(mf)
            if b % 3 == 0: fx(i - 1, f"WAITLG qw16_{b+2}")
            mf += [mfma(16, b, 0), mfma(16, b, 1), mfma(17, b, 0), mfma(17, b, 1)]
            flow += [(x, i + 5) for x in epi(b)]
        left, over = pack(k, mf, fixed, flow)
        k.add(left)
        if path == "qk": k("s_branch mega_end")
    k.path = None

def gen():
    k = Kern(); k.name = "mega"
    names = ["m1_kernel", "m2_kernel"]
    for layer, name in enumerate(names):
        entry(k, name)
        k("s_load_dwordx2 s[4:5], s[0:1], 72")
        k("s_load_dwordx2 s[56:57], s[0:1], 56")
        k(f"s_mov_b32 s54, {layer}")
        if layer == 0: k("s_branch mega_main")
    k("mega_main:")
    k(f"s_cmp_ge_u32 s2, {GRID}")
    k("s_cbranch_scc1 mega_exit")
    k.add(k.stamp(0))
    k("v_lshrrev_b32 v8, 6, v0")
    k("v_and_b32 v254, 63, v0")
    k("v_readfirstlane_b32 s18, v8")
    k("v_lshlrev_b32 v1, 4, v254")
    k("v_mov_b32 v252, 0")
    k("v_mov_b32 v253, 1")
    k("s_mov_b32 s55, 0")
    emit_gk(k)
    k("s_branch mega_end")
    emit_ffn1(k)
    emit_qkv(k)
    k("mega_end:")
    k.stamp_out()
    k("mega_exit:")
    k("s_endpgm")
    k.script = True
    return k, [(n, GRID, 256, LDS) for n in names], "".join(descriptor(n, 256, 256, 102) for n in names), names
```

```python
from asmgen import *
from layout import *

def srd(k, d, p, off, size):
    if off:
        k(f"s_add_u32 s{d}, s{p}, {off}")
        k(f"s_addc_u32 s{d+1}, s{p+1}, 0")
        k(f"s_and_b32 s{d+1}, s{d+1}, 0xffff")
    else:
        k(f"s_mov_b32 s{d}, s{p}")
        k(f"s_and_b32 s{d+1}, s{p+1}, 0xffff")
    k(f"s_mov_b32 s{d+2}, {size}")
    k(f"s_mov_b32 s{d+3}, 0x20000")

def entry(k, name):
    k(f".globl {name}")
    k(".p2align 8")
    k(f".type {name},@function")
    k(f"{name}:")

def xreduce(k, regs, tmp, op="v_add_f32"):
    for sw in ("v_permlane16_swap_b32", "v_permlane32_swap_b32"):
        for r, t in zip(regs, tmp): k(f"v_mov_b32 v{t}, v{r}")
        for r, t in zip(regs, tmp): k(f"{sw} v{r}, v{t}")
        for r, t in zip(regs, tmp): k(f"{op} v{r}, v{r}, v{t}")

import os
NT = os.environ.get("PNT", "nt")
N_X, N_QKV, N_WO, N_GU, N_WD = 64, 36, 9, 216, 72
PREP_GRID = N_X + N_QKV + N_WO + N_GU + N_WD
PREP_LDS = 64 * 1184

for _t in range(192): assert (_t * 171) >> 10 == _t // 6

FFN0 = N_X + N_QKV + N_WO
PREP0_GRID = FFN0

def jump_to_pack(k, unit_expr_lines, repeats, stride):
    for l in unit_expr_lines: k(l)
    k(f"s_mov_b32 s57, {repeats}")
    k(f"s_mov_b32 s58, {stride}")
    k("s_branch prep_unit")

def gen_prep():
    import os
    SPLIT = not os.environ.get("NOSPLIT")
    grid = PREP0_GRID if SPLIT else PREP_GRID
    k = Kern(); N = "prep"; k.name = N
    entry(k, "prep_kernel")
    k(f"s_cmp_ge_u32 s2, {grid}")
    k(f"s_cbranch_scc1 {N}_end")
    k(f"s_cmp_ge_u32 s2, {FLG_SZ // 4096}")
    k(f"s_cbranch_scc1 {N}_noz")
    k("s_load_dwordx2 s[16:17], s[0:1], 72")
    for r in range(4, 8): k(f"v_mov_b32 v{r}, 0")
    k("v_lshlrev_b32 v3, 4, v0")
    k("s_lshl_b32 s3, s2, 12")
    k("s_waitcnt lgkmcnt(0)")
    srd(k, 24, 16, FLG, FLG_SZ)
    k("buffer_store_dwordx4 v[4:7], v3, s[24:27], s3 offen")
    k(f"{N}_noz:")
    k("s_mov_b32 s56, s2")
    k("s_mov_b32 s57, 1")
    k("s_mov_b32 s58, 0")
    k("prep_unit:")
    k.add(k.stamp(0))
    k("s_load_dwordx4 s[4:7], s[0:1], 0")
    k("s_load_dwordx2 s[8:9], s[0:1], 16")
    k("s_load_dwordx4 s[12:15], s[0:1], 32")
    k("s_load_dwordx2 s[10:11], s[0:1], 48")
    k("s_load_dwordx2 s[16:17], s[0:1], 72")
    k("v_lshrrev_b32 v1, 6, v0")
    k("v_and_b32 v2, 63, v0")
    k("v_readfirstlane_b32 s18, v1")
    k("v_lshlrev_b32 v3, 4, v2")
    k("v_mov_b32 v4, 0x3f803f80")
    k("v_lshrrev_b32 v5, 5, v2")
    k("v_lshlrev_b32 v5, 4, v5")
    k("v_bfe_u32 v6, v2, 4, 1")
    k("v_lshl_add_u32 v5, v6, 2, v5")
    k("v_bfe_u32 v6, v2, 2, 2")
    k("v_add_u32 v5, v5, v6")
    k("v_and_b32 v6, 3, v2")
    k("s_waitcnt lgkmcnt(0)")
    k.add(k.stamp(1))
    srd(k, 24, 16, 0, WS_END)
    k(f"s_cmp_lt_u32 s56, {N_X}")
    k(f"s_cbranch_scc1 {N}_x")
    k(f"s_cmp_lt_u32 s56, {N_X+N_QKV}")
    k(f"s_cbranch_scc1 {N}_qkv")
    k(f"s_cmp_lt_u32 s56, {N_X+N_QKV+N_WO}")
    k(f"s_cbranch_scc1 {N}_wo")
    k(f"s_cmp_lt_u32 s56, {N_X+N_QKV+N_WO+N_GU}")
    k(f"s_cbranch_scc1 {N}_gu")

    def perm(dst, src, tmp):
        k(f"v_and_b32 v{dst}, 0xfffffff3, v{src}")
        k(f"v_bfe_u32 v{tmp}, v{src}, 2, 1")
        k(f"v_lshl_add_u32 v{dst}, v{tmp}, 3, v{dst}")
        k(f"v_bfe_u32 v{tmp}, v{src}, 3, 1")
        k(f"v_lshl_add_u32 v{dst}, v{tmp}, 2, v{dst}")

    def frags(items, stride, tagp):
        for i, (vb, imm, so, dimm, cs) in enumerate(items):
            r = 32 + 4 * (i % 18)
            k(f"ds_read_b64_tr_b16 v[{r}:{r+1}], v{vb} offset:{imm}", f"{tagp}{i}")
            k(f"ds_read_b64_tr_b16 v[{r+2}:{r+3}], v{vb} offset:{imm + 8*stride}", f"{tagp}{i}")
            if i >= 3:
                j = i - 3
                fin(items[j], j, tagp)
        for j in range(max(0, len(items) - 3), len(items)): fin(items[j], j, tagp)
    def fin(item, j, tagp):
        vb, imm, so, dimm, cs = item
        r = 32 + 4 * (j % 18)
        k(f"WAITLG {tagp}{j}")
        k(f"buffer_store_dwordx4 v[{r}:{r+3}], v3, s[24:27], s{so} offen offset:{dimm}")
        if cs is not None:
            for q in range(4): k(f"v_dot2c_f32_bf16 v{cs}, v{r+q}, v4")

    k(f"s_sub_u32 s20, s56, {N_X+N_QKV+N_WO+N_GU}")
    srd(k, 28, 10, 0, WD_SZ)
    k("v_lshrrev_b32 v7, 3, v0")
    k("s_lshl_b32 s21, s20, 6")
    k("v_add_u32 v8, s21, v7")
    k("v_add_u32 v9, 32, v8")
    k(f"s_mul_i32 s22, s20, 9216")
    k(f"s_add_u32 s22, s22, {WD}")
    k(f"s_mov_b32 s23, {72*9216}")
    k(f"s_branch {N}_dn_common")
    k(f"{N}_wo:")
    k(f"s_sub_u32 s20, s56, {N_X+N_QKV}")
    srd(k, 28, 8, 0, WO_SZ)
    k("v_lshrrev_b32 v7, 3, v0")
    k("s_lshl_b32 s21, s20, 6")
    k(f"s_mul_i32 s22, s20, 9216")
    k(f"s_add_u32 s22, s22, {WO}")
    k(f"s_mov_b32 s23, {9*9216}")
    for jj, dst in ((0, 8), (1, 9)):
        k(f"v_add_u32 v10, s21, v7")
        if jj: k("v_add_u32 v10, 32, v10")
        k("v_lshrrev_b32 v11, 4, v10")
        k("v_mul_u32_u24 v12, 18, v11")
        k("v_and_b32 v13, 15, v10")
        k("v_add_u32 v12, v12, v13")
        k("v_and_b32 v13, 1, v11")
        k("v_lshl_add_u32 v12, v13, 1, v12")
        k("v_subrev_u32 v11, 512, v10")
        k("v_lshrrev_b32 v11, 1, v11")
        k("v_and_b32 v11, 31, v11")
        k("v_mul_u32_u24 v13, 18, v11")
        k("v_and_b32 v14, 1, v10")
        k("v_add_u32 v13, v13, v14")
        k("v_and_b32 v14, 1, v11")
        k("v_xor_b32 v14, 1, v14")
        k("v_lshl_add_u32 v13, v14, 4, v13")
        k("v_cmp_gt_u32 vcc, 512, v10")
        k(f"v_cndmask_b32 v{dst}, v13, v12, vcc")
    k(f"{N}_dn_common:")
    k("v_and_b32 v10, 7, v0")
    k("v_lshlrev_b32 v10, 4, v10")
    k("v_mul_u32_u24 v8, 1152, v8")
    k("v_mul_u32_u24 v9, 1152, v9")
    k("v_add_u32 v8, v8, v10")
    k("v_add_u32 v9, v9, v10")
    for jj in range(2):
        for jc in range(9):
            r = 32 + 4 * (jj * 9 + jc)
            k(f"buffer_load_dwordx4 v[{r}:{r+3}], v{8+jj}, s[28:31], 0 offen offset:{jc*128} {NT}", f"dl{jj*9+jc}")
    perm(11, 7, 12)
    k("v_mul_u32_u24 v11, 1184, v11")
    k("v_add_u32 v11, v11, v10")
    for jj in range(2):
        for jc in range(9):
            r = 32 + 4 * (jj * 9 + jc)
            k(f"WAITVM dl{jj*9+jc}")
            k(f"ds_write_b128 v11, v[{r}:{r+3}] offset:{jj*32*1184 + jc*128}")
    k("v_mul_u32_u24 v12, 1184, v5")
    k("s_mul_i32 s21, s18, 288")
    k("v_add_u32 v12, s21, v12")
    k("v_and_b32 v14, 1, v6")
    k("v_lshl_add_u32 v13, v14, 3, v12")
    k("v_lshrrev_b32 v14, 1, v6")
    k(f"v_mul_u32_u24 v14, {32*1184}, v14")
    k("v_add_u32 v13, v13, v14")
    k("v_lshl_add_u32 v12, v6, 3, v12")
    k("s_lshl_b32 s21, s18, 1")
    k("s_mul_i32 s21, s21, s23")
    k("s_add_u32 s32, s22, s21")
    k("s_add_u32 s33, s32, 4096")
    k("s_add_u32 s34, s32, 8192")
    k("s_add_u32 s35, s32, s23")
    k("s_add_u32 s36, s35, 4096")
    k("s_add_u32 s37, s35, 8192")
    k("s_waitcnt lgkmcnt(0)")
    k("s_barrier")
    items = []
    for nn in range(2):
        for ks in range(2):
            for b in range(4):
                items.append((12, 144*nn + 32*b + ks*32*1184, 32 + 3*nn + ks, b*1024, None))
        items.append((13, 144*nn + 128, 32 + 3*nn + 2, 0, None))
    k.add(k.stamp(2))
    frags(items, 1184, "df")
    k.stamp_out(16)
    k("s_endpgm")

    k(f"{N}_gu:")
    k(f"s_sub_u32 s20, s56, {N_X+N_QKV+N_WO}")
    k("s_cmp_ge_u32 s20, 108")
    k("s_cselect_b32 s21, 1, 0")
    k("s_cselect_b32 s4, s14, s12")
    k("s_cselect_b32 s5, s15, s13")
    k("s_mul_i32 s22, s21, 108")
    k("s_sub_u32 s20, s20, s22")
    k("s_mul_i32 s22, s20, 43691")
    k("s_lshr_b32 s22, s22, 17")
    k("s_mul_i32 s23, s22, 3")
    k("s_sub_u32 s23, s20, s23")
    srd(k, 28, 4, 0, 576 * 4608 * 2)
    k("v_lshrrev_b32 v7, 4, v0")
    k("v_and_b32 v10, 15, v0")
    k("v_lshlrev_b32 v10, 4, v10")
    k("v_mul_u32_u24 v8, 9216, v7")
    k("v_add_u32 v8, v8, v10")
    k(f"s_mul_i32 s32, s23, {192*9216}")
    k("s_lshl_b32 s33, s22, 8")
    k("s_add_u32 s32, s32, s33")
    for j in range(12):
        r = 32 + 4 * j
        k(f"buffer_load_dwordx4 v[{r}:{r+3}], v8, s[28:31], s32 offen {NT}", f"gl{j}")
        if j < 11: k(f"s_add_u32 s32, s32, {16*9216}")
    perm(11, 7, 12)
    k("v_mul_u32_u24 v11, 288, v11")
    k("v_add_u32 v11, v11, v10")
    for j in range(12):
        r = 32 + 4 * j
        k(f"WAITVM gl{j}")
        k(f"ds_write_b128 v11, v[{r}:{r+3}] offset:{j*16*288}")
    k("v_mul_u32_u24 v12, 288, v5")
    k("s_lshl_b32 s33, s18, 6")
    k("v_add_u32 v12, s33, v12")
    k("v_lshl_add_u32 v12, v6, 3, v12")
    k("s_lshl_b32 s32, s22, 3")
    k("s_lshl_b32 s33, s18, 1")
    k("s_add_u32 s38, s32, s33")
    k("s_mul_i32 s32, s38, 18")
    k("s_mul_i32 s33, s23, 6")
    k("s_add_u32 s32, s32, s33")
    k("s_lshl_b32 s32, s32, 11")
    k("s_lshl_b32 s33, s21, 10")
    k("s_add_u32 s32, s32, s33")
    k(f"s_add_u32 s32, s32, {WGU}")
    k("s_add_u32 s33, s32, 4096")
    k("s_add_u32 s34, s32, 8192")
    k(f"s_add_u32 s35, s32, {18*2048}")
    k("s_add_u32 s36, s35, 4096")
    k("s_add_u32 s37, s35, 8192")
    k("v_mov_b32 v16, 0")
    k("v_mov_b32 v17, 0")
    k("s_waitcnt lgkmcnt(0)")
    k("s_barrier")
    items = []
    for bb in range(2):
        for ks in range(6):
            items.append((12, 32*bb + ks*32*288, 32 + 3*bb + ks//2, (ks % 2)*2048, 16 + bb))
    k.add(k.stamp(2))
    frags(items, 288, "gf")
    xreduce(k, [16, 17], [18, 19])
    k("s_mul_i32 s32, s23, 36864")
    k("s_lshl_b32 s33, s38, 7")
    k("s_add_u32 s32, s32, s33")
    k("s_lshl_b32 s33, s21, 6")
    k("s_add_u32 s32, s32, s33")
    k(f"s_add_u32 s32, s32, {SGU}")
    k("v_and_b32 v18, 15, v2")
    k("v_lshlrev_b32 v18, 2, v18")
    k("buffer_store_dword v16, v18, s[24:27], s32 offen")
    k("buffer_store_dword v17, v18, s[24:27], s32 offen offset:128")
    k.stamp_out(16)
    k("s_mov_b64 exec, -1")
    k("s_sub_u32 s57, s57, 1")
    k("s_cmp_eq_u32 s57, 0")
    k(f"s_cbranch_scc1 {N}_end")
    k("s_add_u32 s56, s56, s58")
    k("s_barrier")
    k("s_branch prep_unit")

    k(f"{N}_qkv:")
    k(f"s_sub_u32 s20, s56, {N_X}")
    k("s_mul_i32 s22, s20, 43691")
    k("s_lshr_b32 s22, s22, 17")
    k("s_mul_i32 s23, s22, 3")
    k("s_sub_u32 s23, s20, s23")
    srd(k, 28, 6, 0, WQKV_SZ)
    k("s_cmp_eq_u32 s18, 3")
    k(f"s_cbranch_scc1 {N}_qkv_noload")
    k("v_mul_u32_u24 v7, 171, v0")
    k("v_lshrrev_b32 v7, 10, v7")
    k("v_mul_u32_u24 v10, 6, v7")
    k("v_sub_u32 v10, v0, v10")
    k("v_lshlrev_b32 v10, 4, v10")
    k("v_mul_u32_u24 v8, 3456, v7")
    k("v_add_u32 v8, v8, v10")
    k(f"s_mul_i32 s32, s23, {192*3456}")
    k("s_mul_i32 s33, s22, 288")
    k("s_add_u32 s32, s32, s33")
    for jj in range(6):
        for jc in range(3):
            r = 32 + 4 * (jj * 3 + jc)
            k(f"buffer_load_dwordx4 v[{r}:{r+3}], v8, s[28:31], s32 offen offset:{jc*96}", f"ql{jj*3+jc}")
        if jj < 5: k(f"s_add_u32 s32, s32, {32*3456}")
    perm(11, 7, 12)
    k("v_mul_u32_u24 v11, 288, v11")
    k("v_add_u32 v11, v11, v10")
    for jj in range(6):
        for jc in range(3):
            r = 32 + 4 * (jj * 3 + jc)
            k(f"WAITVM ql{jj*3+jc}")
            k(f"ds_write_b128 v11, v[{r}:{r+3}] offset:{jj*32*288 + jc*96}")
    k(f"{N}_qkv_noload:")
    k("v_mul_u32_u24 v13, 288, v5")
    k("s_mul_i32 s33, s18, 72")
    k("v_add_u32 v12, s33, v13")
    k("v_lshl_add_u32 v12, v6, 3, v12")
    k("v_mul_u32_u24 v14, 72, v6")
    k("v_add_u32 v13, v13, v14")
    k("s_mul_i32 s32, s22, 18")
    k("s_mul_i32 s33, s23, 6")
    k("s_add_u32 s32, s32, s33")
    k("s_mul_i32 s32, s32, 9216")
    k(f"s_add_u32 s39, s32, {WQKV}")
    k("s_lshl_b32 s33, s18, 11")
    k("s_add_u32 s32, s39, s33")
    for ks in range(1, 6):
        k(f"s_add_u32 s{32+ks}, s32, {ks*9216}")
    k("s_add_u32 s40, s39, 8192")
    for ks in range(1, 6):
        k(f"s_add_u32 s{40+ks}, s40, {ks*9216}")
    k("v_mov_b32 v16, 0")
    k("v_mov_b32 v17, 0")
    k("v_mov_b32 v20, 0")
    k("s_waitcnt lgkmcnt(0)")
    k("s_barrier")
    items = []
    for bb in range(2):
        for ks in range(6):
            items.append((12, 40*bb + ks*32*288, 32 + ks, bb*1024, 16 + bb))
    k.add(k.stamp(2))
    frags(items, 288, "qf")
    xreduce(k, [16, 17], [18, 19])
    k("s_mul_i32 s46, s23, 6912")
    k("s_mul_i32 s47, s22, 576")
    k("s_add_u32 s46, s46, s47")
    k(f"s_add_u32 s46, s46, {SQKV}")
    k("s_lshl_b32 s47, s18, 7")
    k("s_add_u32 s47, s47, s46")
    k("v_and_b32 v18, 15, v2")
    k("v_lshlrev_b32 v18, 2, v18")
    k("buffer_store_dword v16, v18, s[24:27], s47 offen")
    k("buffer_store_dword v17, v18, s[24:27], s47 offen offset:64")
    k.stamp_out(16)
    k("s_mov_b64 exec, -1")
    k("s_cmp_lg_u32 s18, 3")
    k(f"s_cbranch_scc1 {N}_end")
    k("s_waitcnt vmcnt(0)")
    items = [(13, 32 + ks*32*288, 40 + ks, 0, 20) for ks in range(6)]
    frags(items, 288, "rf")
    xreduce(k, [20], [19])
    k("buffer_store_dword v20, v18, s[24:27], s46 offen offset:512")
    k("s_endpgm")

    k(f"{N}_x:")
    srd(k, 28, 4, 0, XSZ)
    k("s_lshl_b32 s20, s56, 1")
    k("s_lshr_b32 s21, s18, 1")
    k("s_add_u32 s20, s20, s21")
    k("s_and_b32 s22, s18, 1")
    k("v_lshrrev_b32 v7, 2, v2")
    k("v_and_b32 v8, 3, v2")
    k("v_mul_u32_u24 v9, 1152, v7")
    k("v_lshl_add_u32 v9, v8, 4, v9")
    k("s_mul_i32 s21, s20, 18432")
    k("s_mul_i32 s23, s22, 576")
    k("s_add_u32 s23, s23, s21")
    for j in range(9):
        r = 32 + 4 * j
        k(f"buffer_load_dwordx4 v[{r}:{r+3}], v9, s[28:31], s23 offen offset:{j*64}", f"xl{j}")
    k("s_mul_i32 s23, s18, 9792")
    k("v_mul_u32_u24 v10, 272, v8")
    k("v_lshl_add_u32 v10, v7, 4, v10")
    k("v_add_u32 v10, s23, v10")
    k("v_and_b32 v7, 15, v2")
    k("v_lshrrev_b32 v8, 4, v2")
    k("v_mul_u32_u24 v11, 272, v8")
    k("v_lshl_add_u32 v11, v7, 4, v11")
    k("v_add_u32 v11, s23, v11")
    k("s_mul_i32 s23, s22, 9216")
    k("s_add_u32 s32, s21, s23")
    if XF0: k(f"s_add_u32 s32, s32, {XF0}")
    for i in range(1, 3): k(f"s_add_u32 s{32+i}, s32, {4096*i}")
    k("v_mov_b32 v16, 0")
    k("v_mov_b32 v17, 0")
    for j in range(9):
        r = 32 + 4 * j
        k(f"WAITVM xl{j}")
        k(f"ds_write_b128 v10, v[{r}:{r+3}] offset:{j*1088}")
        k(f"ds_read_b128 v[{r+36}:{r+39}], v11 offset:{j*1088}", f"xr{j}")
    for j in range(9):
        r = 68 + 4 * j
        k(f"WAITLG xr{j}")
        k(f"buffer_store_dwordx4 v[{r}:{r+3}], v3, s[24:27], s{32 + j//4} offen offset:{(j%4)*1024}")
        for q in range(4):
            k(f"v_dot2c_f32_bf16 v16, v{r+q}, v4")
            k(f"v_dot2c_f32_bf16 v17, v{r+q}, v{r+q}")
    xreduce(k, [16, 17], [18, 19])
    k("v_cmp_eq_u32 vcc, 0, v8")
    k("v_cndmask_b32 v16, 0, v16, vcc")
    k("v_cndmask_b32 v17, 0, v17, vcc")
    k("s_lshl_b32 s21, s20, 10")
    k("s_lshl_b32 s22, s22, 3")
    k("s_add_u32 s21, s21, s22")
    k(f"s_add_u32 s21, s21, {ST0}")
    k("buffer_store_dwordx2 v[16:17], v3, s[24:27], s21 offen")
    k.stamp_out(16)
    k(f"{N}_end:")
    k("s_endpgm")
    launches = [("prep_kernel", grid, 256, PREP_LDS)]
    desc = descriptor("prep_kernel", 104, 0)
    return k, launches, desc, ["prep_kernel"]
```

```python
import sys
from asmgen import *
from layout import *
import k_prep

def finalize(k, entries, verbose=True):
    k.resolve_waits()
    added = k.fix_hazards()
    errs = []
    for e in entries:
        if getattr(k, "script", False):
            for wg in (0, 1, 77, 200, 255):
                for w in range(getattr(k, "nwaves", 4)): errs += k.check(e, f"{e}[wg{wg},w{w}]", sim=(wg, w))
            continue
        fw = list(dict.fromkeys(k.fwd_targets()))
        runs = [set()] + [{t} for t in fw if not t.endswith("_end")]
        extra = getattr(k, "extra_paths", [])
        for tk in getattr(k, 'only_paths', None) or (runs + extra):
            if tk in getattr(k, 'skip_paths', []): continue
            errs += k.check(e, e + str(sorted(tk)), taken=tk)
    errs = list(dict.fromkeys(errs))
    for x in errs[:40]: print("ERR", x)
    if verbose: print(entries, "instrs:", sum(1 for x in k.ins if x.kind not in ("label", "dir")), "nops added:", added, "errors:", len(errs))
    assert not errs

HEADER = open("interleave_layers__sliding_block__swiglu_ffn__prompt.s.ref").read().split("; Override launch")[0]

def build(parts, order, path):
    info = {}
    for k, launches, desc, entries in parts:
        finalize(k, entries)
        for l in launches: info[l[0]] = l
    out = HEADER
    for n in order:
        _, g, b, lds = info[n]
        out += f"; @launch kernel={n} grid=({g},1,1) block=({b},1,1) lds={lds}\n"
    out += '.amdgcn_target "amdgcn-amd-amdhsa--gfx950"\n.text\n'
    for k, launches, desc, entries in parts: out += k.text()
    for k, launches, desc, entries in parts: out += desc
    open(path, "w").write(out)

if __name__ == "__main__":
    import os
    import k_qkv, k_attn, k_gemmk, k_ffn1
    parts = [k_prep.gen_prep(), k_qkv.gen(), k_attn.gen()]
    if os.environ.get("NOMEGA"):
        parts += [k_gemmk.gen(), k_ffn1.gen()]
        order = ["prep_kernel", "qkv1_kernel", "attn1_kernel", "wo1_kernel", "ffn1_kernel", "down1_kernel",
                 "qkv2_kernel", "attn2_kernel", "wo2_kernel", "ffn1_kernel", "down2_kernel"]
    else:
        import k_mega
        parts.append(k_mega.gen())
        order = ["prep_kernel", "qkv1_kernel", "attn1_kernel", "m1_kernel", "attn2_kernel", "m2_kernel"]
    build(parts, order, sys.argv[1] if len(sys.argv) > 1 else "main.s")
```

```python
from asmgen import *
from layout import *
from k_prep import srd, entry, xreduce, jump_to_pack, FFN0, PREP_LDS, code_prefetch
import os
NPACK = 0 if os.environ.get('NOSPLIT') else 160

GRID = 256
REC = 3072
VR0 = 16 * REC
ONES = VR0 + 2048
LDS = ONES + 16 + 2 * REC
NEG = "0xf149f2ca"

Q = (16, 20); KF = (24, 28); VM = 32; VRF = 36
S = {("A", 0): 40, ("B", 0): 44, ("A", 1): 48, ("B", 1): 52}
E = {t: r + 16 for t, r in S.items()}
P = {"A": 72, "B": 76}
OM = {"A": 80, "B": 84}; OR = {"A": 88, "B": 92}
MO = 96; MD = 100
NM = {"A": 104, "B": 108}
CF = {"A": 112, "B": 116}; CL = {"A": 120, "B": 124}
MX = {"A": 14, "B": 15}
ORDER = [("A", 0), ("B", 0), ("A", 1), ("B", 1)]
def v4(r): return f"v[{r}:{r+3}]"

def present(kind, t):
    return not ((kind == "first" and t == ("B", 0)) or (kind == "last" and t == ("A", 1)))

def cop(kind, t, ps):
    masked = (kind == "first" and t in (("A", 0), ("B", 1))) or (kind == "last" and t in (("A", 0), ("B", 1)))
    if ps == 1:
        return v4(MO if kind == "first" else MD) if masked else "0"
    if masked: return v4((CF if kind == "first" else CL)[t[0]])
    return v4(NM[t[0]])

def smfma(k, kind, t, ps):
    if present(kind, t):
        k(f"v_mfma_f32_16x16x32_bf16 {v4(S[t])}, {v4(KF[t[1]])}, {v4(Q[t[0] == 'B'])}, {cop(kind, t, ps)}")

def prologue(k, kind, ps):
    k(f"ds_read_b128 {v4(KF[0])}, v2")
    k(f"ds_read_b128 {v4(KF[1])}, v2 offset:1024")
    k("s_waitcnt lgkmcnt(0)")
    for t in ORDER: smfma(k, kind, t, ps)
    k(f"ds_read_b128 {v4(KF[0])}, v2 offset:{REC}")
    k(f"ds_read_b128 {v4(KF[1])}, v2 offset:{REC+1024}")
    if ps == 2:
        k(f"ds_read_b128 {v4(VM)}, v2 offset:2048")
        k(f"ds_read_b128 {v4(VRF)}, v3")
        k("v_add_u32 v3, v3, v4")
    k("s_nop 4")

def iteration(k, cur, nxt, ps):
    nq = 1 if ps == 1 else 3
    for t in ORDER:
        if present(cur, t):
            s = S[t]
            if ps == 1:
                m = MX[t[0]]
                k(f"v_max3_f32 v{m}, v{m}, v{s}, v{s+1}")
                k(f"v_max3_f32 v{m}, v{m}, v{s+2}, v{s+3}")
            else:
                for i in range(4): k(f"v_exp_f32 v{E[t]+i}, v{s+i}")
        if nxt:
            if t[0] == "A": k(f"s_waitcnt lgkmcnt({nq})")
            smfma(k, nxt, t, ps)
            if t[0] == "B": k(f"ds_read_b128 {v4(KF[t[1]])}, v2 offset:{2*REC + 1024*t[1]}")
    if ps == 2:
        for q in "AB":
            for tl in range(2):
                p = P[q] + 2 * tl; e = E[(q, tl)]
                if present(cur, (q, tl)):
                    k(f"v_cvt_pk_bf16_f32 v{p}, v{e}, v{e+1}")
                    k(f"v_cvt_pk_bf16_f32 v{p+1}, v{e+2}, v{e+3}")
                else:
                    k(f"v_mov_b32 v{p}, 0"); k(f"v_mov_b32 v{p+1}, 0")
            if q == "A": k(f"s_waitcnt lgkmcnt({2 if nxt else 0})")
            else: k("s_nop 0") if False else None
            if q == "B":
                pass
        k(f"v_mfma_f32_16x16x32_bf16 {v4(OM['A'])}, {v4(VM)}, {v4(P['A'])}, {v4(OM['A'])}")
        k(f"v_mfma_f32_16x16x32_bf16 {v4(OR['A'])}, {v4(VRF)}, {v4(P['A'])}, {v4(OR['A'])}")
        k(f"v_mfma_f32_16x16x32_bf16 {v4(OM['B'])}, {v4(VM)}, {v4(P['B'])}, {v4(OM['B'])}")
        k(f"v_mfma_f32_16x16x32_bf16 {v4(OR['B'])}, {v4(VRF)}, {v4(P['B'])}, {v4(OR['B'])}")
        if nxt:
            k(f"ds_read_b128 {v4(VM)}, v2 offset:{REC+2048}")
            k(f"ds_read_b128 {v4(VRF)}, v3")
            k("v_add_u32 v3, v3, v4")
    if nxt:
        k(f"v_add_u32 v2, {REC}, v2")
        if ps == 1: k("s_nop 3")

def gen():
    k = Kern(); N = "attn"; k.name = N
    entry(k, "attn1_kernel")
    if NPACK:
        k(f"s_cmp_lt_u32 s2, {GRID}")
        k(f"s_cbranch_scc1 {N}_main")
        k(f"s_cmp_ge_u32 s2, {GRID + NPACK}")
        k(f"s_cbranch_scc1 {N}_end")
        k("v_readfirstlane_b32 s3, v0")
        k("s_nop 3")
        k("s_cmp_ge_u32 s3, 256")
        k(f"s_cbranch_scc1 {N}_end")
        jump_to_pack(k, [f"s_add_u32 s56, s2, {FFN0 + 128 - GRID}"], 1, 0)
    else:
        k(f"s_branch {N}_main")
    entry(k, "attn2_kernel")
    k(f"{N}_main:")
    k(f"s_cmp_ge_u32 s2, {GRID}")
    k(f"s_cbranch_scc1 {N}_end")
    k.add(k.stamp(0))
    k("s_load_dwordx2 s[4:5], s[0:1], 72")
    k("v_lshrrev_b32 v4, 6, v0")
    k("v_and_b32 v5, 63, v0")
    k("v_readfirstlane_b32 s18, v4")
    k("v_lshlrev_b32 v1, 4, v5")
    k("v_and_b32 v7, 15, v5")
    k("v_lshrrev_b32 v8, 4, v5")
    k("s_and_b32 s6, s2, 7")
    k("s_lshr_b32 s7, s2, 3")
    k("s_lshr_b32 s17, s7, 2")
    k("s_and_b32 s7, s7, 3")
    k("s_lshl_b32 s16, s6, 2")
    k("s_add_u32 s16, s16, s7")
    k("s_lshr_b32 s19, s16, 3")
    k("s_mul_i32 s19, s19, 9")
    k("s_and_b32 s20, s16, 7")
    k("s_add_u32 s21, s19, s20")
    k("s_lshl_b32 s21, s21, 16")
    k("s_add_u32 s22, s19, 8")
    k("s_lshl_b32 s22, s22, 16")
    k("s_and_b32 s23, s6, 1")
    k("s_lshl_b32 s23, s23, 8")
    k("s_add_u32 s23, s23, s22")
    k("v_add_u32 v9, s21, v1")
    k("v_lshl_add_u32 v10, v7, 4, s23")
    k("v_cmp_gt_u32 vcc, 32, v5")
    k("v_cndmask_b32 v9, v10, v9, vcc")
    k("v_bfe_u32 v10, v5, 1, 2")
    k("v_lshlrev_b32 v10, 8, v10")
    k("v_and_b32 v11, 1, v5")
    k("v_lshl_add_u32 v10, v11, 4, v10")
    k("v_bfe_u32 v11, v5, 3, 1")
    k("v_lshl_add_u32 v10, v11, 10, v10")
    k("s_lshl_b32 s24, s20, 5")
    k("s_add_u32 s24, s24, s22")
    k("v_add_u32 v10, s24, v10")
    k("s_lshl_b32 s24, s17, 4")
    k("s_lshl_b32 s25, s18, 1")
    k("s_add_u32 s26, s24, s25")
    k("s_lshl_b32 s27, s26, 9")
    k("s_add_u32 s24, s26, s25")
    k("s_lshl_b32 s24, s24, 9")
    k(f"s_add_u32 s28, s24, {XSZ - 16*512}")
    k(f"s_add_u32 s29, s24, {2*XSZ - 8*1024}")
    k("s_add_u32 s30, s29, s21")
    k(f"s_mul_i32 s31, s18, {2*REC}")
    k("s_waitcnt lgkmcnt(0)")
    srd(k, 8, 4, QKV, 3 * XSZ)
    k(f"buffer_load_dwordx4 {v4(Q[0])}, v9, s[8:11], s27 offen", "q")
    k(f"buffer_load_dwordx4 {v4(Q[1])}, v9, s[8:11], s27 offen offset:512", "q")
    for bl in range(2):
        for tl in range(2):
            k(f"s_add_u32 m0, s31, {bl*REC + tl*1024}")
            k(f"s_add_u32 s24, s28, {(2*bl + tl)*512}")
            k("buffer_load_dwordx4 v9, s[8:11], s24 offen lds")
    for bl in range(2):
        k(f"s_add_u32 m0, s31, {bl*REC + 2048}")
        k(f"s_add_u32 s24, s30, {bl*1024}")
        k("buffer_load_dwordx4 v1, s[8:11], s24 offen lds")
    k("s_lshl_b32 s24, s18, 8")
    k(f"s_add_u32 m0, s24, {VR0}")
    k("s_mov_b64 exec, 0xffff")
    k("buffer_load_dwordx4 v10, s[8:11], s29 offen lds")
    k("s_mov_b64 exec, -1")
    srd(k, 12, 4, OO, XSZ)
    for i in range(4): k(f"v_mov_b32 v{E[('A',0)]+i}, 0x3f803f80")
    k(f"v_mov_b32 v11, {ONES}")
    k(f"ds_write_b128 v11, {v4(E[('A',0)])}")
    k("v_lshlrev_b32 v11, 2, v8")
    k(f"v_mov_b32 v12, {NEG}")
    for i in range(4):
        k(f"v_add_u32 v13, {i}, v11")
        k("v_cmp_gt_u32 vcc, v13, v7")
        k(f"v_cndmask_b32 v{MO+i}, v12, 0, vcc" .replace("v_cndmask_b32", "v_cndmask_b32_e64"))
        k(f"v_cndmask_b32 v{MD+i}, 0, v12, vcc")
    for r in range(OM["A"], OM["A"] + 16): k(f"v_mov_b32 v{r}, 0")
    k(f"v_mov_b32 v{MX['A']}, v12")
    k(f"v_mov_b32 v{MX['B']}, v12")
    k("s_cmp_gt_u32 s17, 0")
    k("s_cselect_b32 s32, s18, 8")
    k(f"s_mul_i32 s33, s32, {REC}")
    k("v_add_u32 v6, s33, v1")
    k("s_lshl_b32 s33, s32, 7")
    k(f"s_add_u32 s33, s33, {VR0}")
    k("v_lshl_add_u32 v3, v8, 1, v7")
    k("v_lshl_add_u32 v3, v3, 4, s33")
    k(f"v_mov_b32 v11, {ONES}")
    k("v_mov_b32 v4, 128")
    k("v_cmp_gt_u32 vcc, 2, v7")
    k("v_cndmask_b32 v3, v11, v3, vcc")
    k("v_cndmask_b32 v4, 0, v4, vcc")
    k.add(k.stamp(1))
    k("WAITVM q")
    k.add(k.stamp(2))
    for i in range(4):
        k(f"s_cmp_eq_u32 s7, {i}")
        k("s_cselect_b32 s24, 48, 32")
        k("v_cmp_gt_u32 vcc, s24, v5")
        k(f"v_cndmask_b32 v{Q[0]+i}, 0, v{Q[0]+i}, vcc")
        k(f"v_cndmask_b32 v{Q[1]+i}, 0, v{Q[1]+i}, vcc")
    k("s_waitcnt vmcnt(0) lgkmcnt(0)")
    k("s_barrier")
    k("s_cmp_lg_u32 s18, 7")
    k(f"s_cbranch_scc1 {N}_nopf")
    k("s_lshr_b32 s24, s2, 3")
    code_prefetch(k, "code_mega", "code_end", 32, 24, 5, 10, 36)
    k(f"{N}_nopf:")
    for ps in (1, 2):
        k.add(k.stamp(2 + ps))
        L = f"{N}_p{ps}"
        k("v_mov_b32 v2, v6")
        k("s_cmp_eq_u32 s17, 0")
        k(f"s_cbranch_scc1 {L}_q0")
        prologue(k, "first", ps)
        iteration(k, "first", "mid", ps)
        k("s_mov_b32 s34, 6")
        k(f"s_branch {L}_loop")
        k(f"{L}_q0:")
        k("s_cmp_eq_u32 s18, 0")
        k(f"s_cbranch_scc0 {L}_q0b")
        prologue(k, "last", ps)
        k(f"s_branch {L}_last")
        k(f"{L}_q0b:")
        prologue(k, "mid", ps)
        k("s_sub_u32 s34, s18, 1")
        k("s_cmp_eq_u32 s34, 0")
        k(f"s_cbranch_scc1 {L}_pen")
        k(f"{L}_loop:")
        iteration(k, "mid", "mid", ps)
        k("s_sub_u32 s34, s34, 1")
        k("s_cmp_lg_u32 s34, 0")
        k(f"s_cbranch_scc1 {L}_loop")
        k(f"{L}_pen:")
        iteration(k, "mid", "last", ps)
        k(f"{L}_last:")
        iteration(k, "last", None, ps)
        if ps == 1:
            k("s_waitcnt lgkmcnt(0)")
            xreduce(k, [MX["A"], MX["B"]], [12, 13], op="v_max_f32")
            for q in "AB":
                for i in range(4):
                    k(f"v_sub_f32 v{NM[q]+i}, 0, v{MX[q]}")
                    k(f"v_sub_f32 v{CF[q]+i}, v{MO+i}, v{MX[q]}")
                    k(f"v_sub_f32 v{CL[q]+i}, v{MD+i}, v{MX[q]}")
    k.add(k.stamp(5))
    k("v_and_b32 v11, 1, v8")
    k("v_mul_u32_u24 v11, 18432, v11")
    k("v_lshl_add_u32 v11, v7, 4, v11")
    k("v_lshrrev_b32 v12, 1, v8")
    k("v_lshl_add_u32 v12, v12, 8, v11")
    k("s_mul_i32 s24, s26, 18432")
    k("s_lshl_b32 s25, s16, 9")
    k("s_add_u32 s25, s25, s24")
    k("s_lshr_b32 s27, s16, 2")
    k("s_lshl_b32 s27, s27, 8")
    k("s_lshl_b32 s28, s7, 2")
    k("s_add_u32 s27, s27, s28")
    k("s_add_u32 s27, s27, s24")
    k("s_add_u32 s27, s27, 16384")
    for q in "AB": k(f"v_rcp_f32 v{E[(q,0)]}, v{OR[q]+2}")
    for q in "AB":
        for i in range(4): k(f"v_mul_f32 v{OM[q]+i}, v{OM[q]+i}, v{E[(q,0)]}")
        for i in range(2): k(f"v_mul_f32 v{OR[q]+i}, v{OR[q]+i}, v{E[(q,0)]}")
    p = P["A"]
    for qi, q in enumerate("AB"):
        k(f"v_cvt_pk_bf16_f32 v{p+2*qi}, v{OM[q]}, v{OM[q]+1}")
        k(f"v_cvt_pk_bf16_f32 v{p+2*qi+1}, v{OM[q]+2}, v{OM[q]+3}")
        k(f"v_cvt_pk_bf16_f32 v{p+4+qi}, v{OR[q]}, v{OR[q]+1}")
    k(f"v_permlane16_swap_b32 v{p}, v{p+2}")
    k(f"v_permlane16_swap_b32 v{p+1}, v{p+3}")
    k(f"v_permlane16_swap_b32 v{p+4}, v{p+5}")
    k(f"buffer_store_dwordx4 {v4(p)}, v12, s[12:15], s25 offen")
    k("s_mov_b32 exec_hi, 0")
    k(f"buffer_store_dword v{p+4}, v11, s[12:15], s27 offen")
    k.stamp_out()
    k(f"{N}_end:")
    k("s_endpgm")
    k.extra_paths = [{"attn_p1_q0", "attn_p2_q0"}, {"attn_p1_q0", "attn_p2_q0", "attn_p1_q0b", "attn_p2_q0b"},
                     {"attn_p1_q0", "attn_p2_q0", "attn_p1_q0b", "attn_p2_q0b", "attn_p1_pen", "attn_p2_pen"}]
    k.only_paths = [p | {"attn_main", "attn_nopf"} for p in k.extra_paths + [set()]]
    return (k, [("attn1_kernel", GRID + NPACK, 512, max(LDS, PREP_LDS) if NPACK else LDS), ("attn2_kernel", GRID, 512, LDS)],
            descriptor("attn1_kernel", 128, 0) + descriptor("attn2_kernel", 128, 0), ["attn1_kernel", "attn2_kernel"])
```

```python
from asmgen import *
from layout import *

def srd(k, d, p, off, size):
    if off:
        k(f"s_add_u32 s{d}, s{p}, {off}")
        k(f"s_addc_u32 s{d+1}, s{p+1}, 0")
        k(f"s_and_b32 s{d+1}, s{d+1}, 0xffff")
    else:
        k(f"s_mov_b32 s{d}, s{p}")
        k(f"s_and_b32 s{d+1}, s{p+1}, 0xffff")
    k(f"s_mov_b32 s{d+2}, {size}")
    k(f"s_mov_b32 s{d+3}, 0x20000")

def entry(k, name):
    k(f".globl {name}")
    k(".p2align 8")
    k(f".type {name},@function")
    k(f"{name}:")

_pfn = [0]
def code_prefetch(k, lo, hi, nslices, slice_sreg, lane_v, tmp_v, tmp_s):
    import os
    if os.environ.get("NOCPF"): return
    _pfn[0] += 1; L = f"cpf{_pfn[0]}"
    k(f"s_getpc_b64 s[{tmp_s}:{tmp_s+1}]")
    k(f"{L}:")
    k(f"s_add_u32 s{tmp_s}, s{tmp_s}, {lo}-{L}")
    k(f"s_addc_u32 s{tmp_s+1}, s{tmp_s+1}, ({lo}-{L})>>63")
    k(f"v_mul_u32_u24 v{tmp_v}, {nslices}, v{lane_v}")
    k(f"v_add_u32 v{tmp_v}, s{slice_sreg}, v{tmp_v}")
    k(f"v_lshlrev_b32 v{tmp_v}, 7, v{tmp_v}")
    k(f"v_min_u32 v{tmp_v}, {hi}-{lo}-4, v{tmp_v}")
    k(f"global_load_dword v{tmp_v}, v{tmp_v}, s[{tmp_s}:{tmp_s+1}]")

def xreduce(k, regs, tmp, op="v_add_f32"):
    for sw in ("v_permlane16_swap_b32", "v_permlane32_swap_b32"):
        for r, t in zip(regs, tmp): k(f"v_mov_b32 v{t}, v{r}")
        for r, t in zip(regs, tmp): k(f"{sw} v{r}, v{t}")
        for r, t in zip(regs, tmp): k(f"{op} v{r}, v{r}, v{t}")

import os
NT = os.environ.get("PNT", "nt")
N_X, N_QKV, N_WO, N_GU, N_WD = 64, 36, 9, 216, 72
PREP_GRID = N_X + N_QKV + N_WO + N_GU + N_WD
PREP_LDS = 64 * 1184

for _t in range(192): assert (_t * 171) >> 10 == _t // 6

FFN0 = N_X + N_QKV + N_WO
PREP0_GRID = FFN0

def jump_to_pack(k, unit_expr_lines, repeats, stride):
    for l in unit_expr_lines: k(l)
    k(f"s_mov_b32 s57, {repeats}")
    k(f"s_mov_b32 s58, {stride}")
    k("s_branch prep_unit")

def gen_prep():
    import os
    SPLIT = not os.environ.get("NOSPLIT")
    grid = PREP0_GRID if SPLIT else PREP_GRID
    k = Kern(); N = "prep"; k.name = N
    entry(k, "prep_kernel")
    k(f"s_cmp_ge_u32 s2, {grid}")
    k(f"s_cbranch_scc1 {N}_end")
    assert FLG_SZ // 4096 <= grid
    k(f"s_cmp_ge_u32 s2, {FLG_SZ // 4096}")
    k(f"s_cbranch_scc1 {N}_noz")
    k("s_load_dwordx2 s[16:17], s[0:1], 72")
    for r in range(4, 8): k(f"v_mov_b32 v{r}, 0")
    k("v_lshlrev_b32 v3, 4, v0")
    k("s_lshl_b32 s3, s2, 12")
    k("s_waitcnt lgkmcnt(0)")
    srd(k, 24, 16, FLG, FLG_SZ)
    k("buffer_store_dwordx4 v[4:7], v3, s[24:27], s3 offen")
    k(f"{N}_noz:")
    k("s_mov_b32 s56, s2")
    k("s_mov_b32 s57, 1")
    k("s_mov_b32 s58, 0")
    k("prep_unit:")
    k.add(k.stamp(0))
    k("s_load_dwordx4 s[4:7], s[0:1], 0")
    k("s_load_dwordx2 s[8:9], s[0:1], 16")
    k("s_load_dwordx4 s[12:15], s[0:1], 32")
    k("s_load_dwordx2 s[10:11], s[0:1], 48")
    k("s_load_dwordx2 s[16:17], s[0:1], 72")
    k("v_lshrrev_b32 v1, 6, v0")
    k("v_and_b32 v2, 63, v0")
    k("v_readfirstlane_b32 s18, v1")
    k("v_lshlrev_b32 v3, 4, v2")
    k("v_mov_b32 v4, 0x3f803f80")
    k("v_lshrrev_b32 v5, 5, v2")
    k("v_lshlrev_b32 v5, 4, v5")
    k("v_bfe_u32 v6, v2, 4, 1")
    k("v_lshl_add_u32 v5, v6, 2, v5")
    k("v_bfe_u32 v6, v2, 2, 2")
    k("v_add_u32 v5, v5, v6")
    k("v_and_b32 v6, 3, v2")
    k("s_waitcnt lgkmcnt(0)")
    k.add(k.stamp(1))
    srd(k, 24, 16, 0, WS_END)
    k(f"s_cmp_lt_u32 s56, {N_X}")
    k(f"s_cbranch_scc1 {N}_x")
    k(f"s_cmp_lt_u32 s56, {N_X+N_QKV}")
    k(f"s_cbranch_scc1 {N}_qkv")
    k(f"s_cmp_lt_u32 s56, {N_X+N_QKV+N_WO}")
    k(f"s_cbranch_scc1 {N}_wo")
    k(f"s_cmp_lt_u32 s56, {N_X+N_QKV+N_WO+N_GU}")
    k(f"s_cbranch_scc1 {N}_gu")

    def perm(dst, src, tmp):
        k(f"v_and_b32 v{dst}, 0xfffffff3, v{src}")
        k(f"v_bfe_u32 v{tmp}, v{src}, 2, 1")
        k(f"v_lshl_add_u32 v{dst}, v{tmp}, 3, v{dst}")
        k(f"v_bfe_u32 v{tmp}, v{src}, 3, 1")
        k(f"v_lshl_add_u32 v{dst}, v{tmp}, 2, v{dst}")

    def frags(items, stride, tagp):
        for i, (vb, imm, so, dimm, cs) in enumerate(items):
            r = 32 + 4 * (i % 18)
            k(f"ds_read_b64_tr_b16 v[{r}:{r+1}], v{vb} offset:{imm}", f"{tagp}{i}")
            k(f"ds_read_b64_tr_b16 v[{r+2}:{r+3}], v{vb} offset:{imm + 8*stride}", f"{tagp}{i}")
            if i >= 3:
                j = i - 3
                fin(items[j], j, tagp)
        for j in range(max(0, len(items) - 3), len(items)): fin(items[j], j, tagp)
    def fin(item, j, tagp):
        vb, imm, so, dimm, cs = item
        r = 32 + 4 * (j % 18)
        k(f"WAITLG {tagp}{j}")
        k(f"buffer_store_dwordx4 v[{r}:{r+3}], v3, s[24:27], s{so} offen offset:{dimm}")
        if cs is not None:
            for q in range(4): k(f"v_dot2c_f32_bf16 v{cs}, v{r+q}, v4")

    k(f"s_sub_u32 s20, s56, {N_X+N_QKV+N_WO+N_GU}")
    srd(k, 28, 10, 0, WD_SZ)
    k("v_lshrrev_b32 v7, 3, v0")
    k("s_lshl_b32 s21, s20, 6")
    k("v_add_u32 v8, s21, v7")
    k("v_add_u32 v9, 32, v8")
    k(f"s_mul_i32 s22, s20, 9216")
    k(f"s_add_u32 s22, s22, {WD}")
    k(f"s_mov_b32 s23, {72*9216}")
    k(f"s_branch {N}_dn_common")
    k(f"{N}_wo:")
    k(f"s_sub_u32 s20, s56, {N_X+N_QKV}")
    srd(k, 28, 8, 0, WO_SZ)
    k("v_lshrrev_b32 v7, 3, v0")
    k("s_lshl_b32 s21, s20, 6")
    k(f"s_mul_i32 s22, s20, 9216")
    k(f"s_add_u32 s22, s22, {WO}")
    k(f"s_mov_b32 s23, {9*9216}")
    for jj, dst in ((0, 8), (1, 9)):
        k(f"v_add_u32 v10, s21, v7")
        if jj: k("v_add_u32 v10, 32, v10")
        k("v_lshrrev_b32 v11, 4, v10")
        k("v_mul_u32_u24 v12, 18, v11")
        k("v_and_b32 v13, 15, v10")
        k("v_add_u32 v12, v12, v13")
        k("v_and_b32 v13, 1, v11")
        k("v_lshl_add_u32 v12, v13, 1, v12")
        k("v_subrev_u32 v11, 512, v10")
        k("v_lshrrev_b32 v11, 1, v11")
        k("v_and_b32 v11, 31, v11")
        k("v_mul_u32_u24 v13, 18, v11")
        k("v_and_b32 v14, 1, v10")
        k("v_add_u32 v13, v13, v14")
        k("v_and_b32 v14, 1, v11")
        k("v_xor_b32 v14, 1, v14")
        k("v_lshl_add_u32 v13, v14, 4, v13")
        k("v_cmp_gt_u32 vcc, 512, v10")
        k(f"v_cndmask_b32 v{dst}, v13, v12, vcc")
    k(f"{N}_dn_common:")
    k("v_and_b32 v10, 7, v0")
    k("v_lshlrev_b32 v10, 4, v10")
    k("v_mul_u32_u24 v8, 1152, v8")
    k("v_mul_u32_u24 v9, 1152, v9")
    k("v_add_u32 v8, v8, v10")
    k("v_add_u32 v9, v9, v10")
    for jj in range(2):
        for jc in range(9):
            r = 32 + 4 * (jj * 9 + jc)
            k(f"buffer_load_dwordx4 v[{r}:{r+3}], v{8+jj}, s[28:31], 0 offen offset:{jc*128} {NT}", f"dl{jj*9+jc}")
    perm(11, 7, 12)
    k("v_mul_u32_u24 v11, 1184, v11")
    k("v_add_u32 v11, v11, v10")
    for jj in range(2):
        for jc in range(9):
            r = 32 + 4 * (jj * 9 + jc)
            k(f"WAITVM dl{jj*9+jc}")
            k(f"ds_write_b128 v11, v[{r}:{r+3}] offset:{jj*32*1184 + jc*128}")
    k("v_mul_u32_u24 v12, 1184, v5")
    k("s_mul_i32 s21, s18, 288")
    k("v_add_u32 v12, s21, v12")
    k("v_and_b32 v14, 1, v6")
    k("v_lshl_add_u32 v13, v14, 3, v12")
    k("v_lshrrev_b32 v14, 1, v6")
    k(f"v_mul_u32_u24 v14, {32*1184}, v14")
    k("v_add_u32 v13, v13, v14")
    k("v_lshl_add_u32 v12, v6, 3, v12")
    k("s_lshl_b32 s21, s18, 1")
    k("s_mul_i32 s21, s21, s23")
    k("s_add_u32 s32, s22, s21")
    k("s_add_u32 s33, s32, 4096")
    k("s_add_u32 s34, s32, 8192")
    k("s_add_u32 s35, s32, s23")
    k("s_add_u32 s36, s35, 4096")
    k("s_add_u32 s37, s35, 8192")
    k("s_waitcnt lgkmcnt(0)")
    k("s_barrier")
    items = []
    for nn in range(2):
        for ks in range(2):
            for b in range(4):
                items.append((12, 144*nn + 32*b + ks*32*1184, 32 + 3*nn + ks, b*1024, None))
        items.append((13, 144*nn + 128, 32 + 3*nn + 2, 0, None))
    k.add(k.stamp(2))
    frags(items, 1184, "df")
    k.stamp_out(16)
    k("s_endpgm")

    k(f"{N}_gu:")
    k(f"s_sub_u32 s20, s56, {N_X+N_QKV+N_WO}")
    k("s_cmp_ge_u32 s20, 108")
    k("s_cselect_b32 s21, 1, 0")
    k("s_cselect_b32 s4, s14, s12")
    k("s_cselect_b32 s5, s15, s13")
    k("s_mul_i32 s22, s21, 108")
    k("s_sub_u32 s20, s20, s22")
    k("s_mul_i32 s22, s20, 43691")
    k("s_lshr_b32 s22, s22, 17")
    k("s_mul_i32 s23, s22, 3")
    k("s_sub_u32 s23, s20, s23")
    srd(k, 28, 4, 0, 576 * 4608 * 2)
    k("v_lshrrev_b32 v7, 4, v0")
    k("v_and_b32 v10, 15, v0")
    k("v_lshlrev_b32 v10, 4, v10")
    k("v_mul_u32_u24 v8, 9216, v7")
    k("v_add_u32 v8, v8, v10")
    k(f"s_mul_i32 s32, s23, {192*9216}")
    k("s_lshl_b32 s33, s22, 8")
    k("s_add_u32 s32, s32, s33")
    for j in range(12):
        r = 32 + 4 * j
        k(f"buffer_load_dwordx4 v[{r}:{r+3}], v8, s[28:31], s32 offen {NT}", f"gl{j}")
        if j < 11: k(f"s_add_u32 s32, s32, {16*9216}")
    perm(11, 7, 12)
    k("v_mul_u32_u24 v11, 288, v11")
    k("v_add_u32 v11, v11, v10")
    for j in range(12):
        r = 32 + 4 * j
        k(f"WAITVM gl{j}")
        k(f"ds_write_b128 v11, v[{r}:{r+3}] offset:{j*16*288}")
    k("v_mul_u32_u24 v12, 288, v5")
    k("s_lshl_b32 s33, s18, 6")
    k("v_add_u32 v12, s33, v12")
    k("v_lshl_add_u32 v12, v6, 3, v12")
    k("s_lshl_b32 s32, s22, 3")
    k("s_lshl_b32 s33, s18, 1")
    k("s_add_u32 s38, s32, s33")
    k("s_mul_i32 s32, s38, 18")
    k("s_mul_i32 s33, s23, 6")
    k("s_add_u32 s32, s32, s33")
    k("s_lshl_b32 s32, s32, 11")
    k("s_lshl_b32 s33, s21, 10")
    k("s_add_u32 s32, s32, s33")
    k(f"s_add_u32 s32, s32, {WGU}")
    k("s_add_u32 s33, s32, 4096")
    k("s_add_u32 s34, s32, 8192")
    k(f"s_add_u32 s35, s32, {18*2048}")
    k("s_add_u32 s36, s35, 4096")
    k("s_add_u32 s37, s35, 8192")
    k("v_mov_b32 v16, 0")
    k("v_mov_b32 v17, 0")
    k("s_waitcnt lgkmcnt(0)")
    k("s_barrier")
    items = []
    for bb in range(2):
        for ks in range(6):
            items.append((12, 32*bb + ks*32*288, 32 + 3*bb + ks//2, (ks % 2)*2048, 16 + bb))
    k.add(k.stamp(2))
    frags(items, 288, "gf")
    xreduce(k, [16, 17], [18, 19])
    k("s_mul_i32 s32, s23, 36864")
    k("s_lshl_b32 s33, s38, 7")
    k("s_add_u32 s32, s32, s33")
    k("s_lshl_b32 s33, s21, 6")
    k("s_add_u32 s32, s32, s33")
    k(f"s_add_u32 s32, s32, {SGU}")
    k("v_and_b32 v18, 15, v2")
    k("v_lshlrev_b32 v18, 2, v18")
    k("buffer_store_dword v16, v18, s[24:27], s32 offen")
    k("buffer_store_dword v17, v18, s[24:27], s32 offen offset:128")
    k.stamp_out(16)
    k("s_mov_b64 exec, -1")
    k("s_sub_u32 s57, s57, 1")
    k("s_cmp_eq_u32 s57, 0")
    k(f"s_cbranch_scc1 {N}_end")
    k("s_add_u32 s56, s56, s58")
    k("s_barrier")
    k("s_branch prep_unit")

    k(f"{N}_qkv:")
    k(f"s_sub_u32 s20, s56, {N_X}")
    k("s_mul_i32 s22, s20, 43691")
    k("s_lshr_b32 s22, s22, 17")
    k("s_mul_i32 s23, s22, 3")
    k("s_sub_u32 s23, s20, s23")
    srd(k, 28, 6, 0, WQKV_SZ)
    k("s_cmp_eq_u32 s18, 3")
    k(f"s_cbranch_scc1 {N}_qkv_noload")
    k("v_mul_u32_u24 v7, 171, v0")
    k("v_lshrrev_b32 v7, 10, v7")
    k("v_mul_u32_u24 v10, 6, v7")
    k("v_sub_u32 v10, v0, v10")
    k("v_lshlrev_b32 v10, 4, v10")
    k("v_mul_u32_u24 v8, 3456, v7")
    k("v_add_u32 v8, v8, v10")
    k(f"s_mul_i32 s32, s23, {192*3456}")
    k("s_mul_i32 s33, s22, 288")
    k("s_add_u32 s32, s32, s33")
    for jj in range(6):
        for jc in range(3):
            r = 32 + 4 * (jj * 3 + jc)
            k(f"buffer_load_dwordx4 v[{r}:{r+3}], v8, s[28:31], s32 offen offset:{jc*96}", f"ql{jj*3+jc}")
        if jj < 5: k(f"s_add_u32 s32, s32, {32*3456}")
    perm(11, 7, 12)
    k("v_mul_u32_u24 v11, 288, v11")
    k("v_add_u32 v11, v11, v10")
    for jj in range(6):
        for jc in range(3):
            r = 32 + 4 * (jj * 3 + jc)
            k(f"WAITVM ql{jj*3+jc}")
            k(f"ds_write_b128 v11, v[{r}:{r+3}] offset:{jj*32*288 + jc*96}")
    k(f"{N}_qkv_noload:")
    k("v_mul_u32_u24 v13, 288, v5")
    k("s_mul_i32 s33, s18, 72")
    k("v_add_u32 v12, s33, v13")
    k("v_lshl_add_u32 v12, v6, 3, v12")
    k("v_mul_u32_u24 v14, 72, v6")
    k("v_add_u32 v13, v13, v14")
    k("s_mul_i32 s32, s22, 18")
    k("s_mul_i32 s33, s23, 6")
    k("s_add_u32 s32, s32, s33")
    k("s_mul_i32 s32, s32, 9216")
    k(f"s_add_u32 s39, s32, {WQKV}")
    k("s_lshl_b32 s33, s18, 11")
    k("s_add_u32 s32, s39, s33")
    for ks in range(1, 6):
        k(f"s_add_u32 s{32+ks}, s32, {ks*9216}")
    k("s_add_u32 s40, s39, 8192")
    for ks in range(1, 6):
        k(f"s_add_u32 s{40+ks}, s40, {ks*9216}")
    k("v_mov_b32 v16, 0")
    k("v_mov_b32 v17, 0")
    k("v_mov_b32 v20, 0")
    k("s_waitcnt lgkmcnt(0)")
    k("s_barrier")
    items = []
    for bb in range(2):
        for ks in range(6):
            items.append((12, 40*bb + ks*32*288, 32 + ks, bb*1024, 16 + bb))
    k.add(k.stamp(2))
    frags(items, 288, "qf")
    xreduce(k, [16, 17], [18, 19])
    k("s_mul_i32 s46, s23, 6912")
    k("s_mul_i32 s47, s22, 576")
    k("s_add_u32 s46, s46, s47")
    k(f"s_add_u32 s46, s46, {SQKV}")
    k("s_lshl_b32 s47, s18, 7")
    k("s_add_u32 s47, s47, s46")
    k("v_and_b32 v18, 15, v2")
    k("v_lshlrev_b32 v18, 2, v18")
    k("buffer_store_dword v16, v18, s[24:27], s47 offen")
    k("buffer_store_dword v17, v18, s[24:27], s47 offen offset:64")
    k.stamp_out(16)
    k("s_mov_b64 exec, -1")
    k("s_cmp_lg_u32 s18, 3")
    k(f"s_cbranch_scc1 {N}_end")
    k("s_waitcnt vmcnt(0)")
    items = [(13, 32 + ks*32*288, 40 + ks, 0, 20) for ks in range(6)]
    frags(items, 288, "rf")
    xreduce(k, [20], [19])
    k("buffer_store_dword v20, v18, s[24:27], s46 offen offset:512")
    k("s_endpgm")

    k(f"{N}_x:")
    k("s_lshr_b32 s20, s56, 3")
    k("s_lshl_b32 s20, s20, 2")
    k("s_add_u32 s20, s20, s18")
    code_prefetch(k, "code_mega", "code_end", 32, 20, 2, 30, 22)
    srd(k, 28, 4, 0, XSZ)
    k("s_lshl_b32 s20, s56, 1")
    k("s_lshr_b32 s21, s18, 1")
    k("s_add_u32 s20, s20, s21")
    k("s_and_b32 s22, s18, 1")
    k("v_lshrrev_b32 v7, 2, v2")
    k("v_and_b32 v8, 3, v2")
    k("v_mul_u32_u24 v9, 1152, v7")
    k("v_lshl_add_u32 v9, v8, 4, v9")
    k("s_mul_i32 s21, s20, 18432")
    k("s_mul_i32 s23, s22, 576")
    k("s_add_u32 s23, s23, s21")
    for j in range(9):
        r = 32 + 4 * j
        k(f"buffer_load_dwordx4 v[{r}:{r+3}], v9, s[28:31], s23 offen offset:{j*64}", f"xl{j}")
    k("s_mul_i32 s23, s18, 9792")
    k("v_mul_u32_u24 v10, 272, v8")
    k("v_lshl_add_u32 v10, v7, 4, v10")
    k("v_add_u32 v10, s23, v10")
    k("v_and_b32 v7, 15, v2")
    k("v_lshrrev_b32 v8, 4, v2")
    k("v_mul_u32_u24 v11, 272, v8")
    k("v_lshl_add_u32 v11, v7, 4, v11")
    k("v_add_u32 v11, s23, v11")
    k("s_mul_i32 s23, s22, 9216")
    k("s_add_u32 s32, s21, s23")
    if XF0: k(f"s_add_u32 s32, s32, {XF0}")
    for i in range(1, 3): k(f"s_add_u32 s{32+i}, s32, {4096*i}")
    k("v_mov_b32 v16, 0")
    k("v_mov_b32 v17, 0")
    for j in range(9):
        r = 32 + 4 * j
        k(f"WAITVM xl{j}")
        k(f"ds_write_b128 v10, v[{r}:{r+3}] offset:{j*1088}")
        k(f"ds_read_b128 v[{r+36}:{r+39}], v11 offset:{j*1088}", f"xr{j}")
    for j in range(9):
        r = 68 + 4 * j
        k(f"WAITLG xr{j}")
        k(f"buffer_store_dwordx4 v[{r}:{r+3}], v3, s[24:27], s{32 + j//4} offen offset:{(j%4)*1024}")
        for q in range(4):
            k(f"v_dot2c_f32_bf16 v16, v{r+q}, v4")
            k(f"v_dot2c_f32_bf16 v17, v{r+q}, v{r+q}")
    xreduce(k, [16, 17], [18, 19])
    k("v_cmp_eq_u32 vcc, 0, v8")
    k("v_cndmask_b32 v16, 0, v16, vcc")
    k("v_cndmask_b32 v17, 0, v17, vcc")
    k("s_lshl_b32 s21, s20, 10")
    k("s_lshl_b32 s22, s22, 3")
    k("s_add_u32 s21, s21, s22")
    k(f"s_add_u32 s21, s21, {ST0}")
    k("buffer_store_dwordx2 v[16:17], v3, s[24:27], s21 offen")
    k.stamp_out(16)
    k(f"{N}_end:")
    k("s_endpgm")
    launches = [("prep_kernel", grid, 256, PREP_LDS)]
    desc = descriptor("prep_kernel", 104, 0)
    return k, launches, desc, ["prep_kernel"]
```

```python
import sys
from asmgen import *
from layout import *
import k_prep

def finalize(k, entries, verbose=True):
    k.resolve_waits()
    added = k.fix_hazards()
    errs = []
    for e in entries:
        if getattr(k, "script", False):
            for wg in (0, 1, 77, 200, 255):
                for w in range(getattr(k, "nwaves", 4)): errs += k.check(e, f"{e}[wg{wg},w{w}]", sim=(wg, w))
            continue
        fw = list(dict.fromkeys(k.fwd_targets()))
        runs = [set()] + [{t} for t in fw if not t.endswith("_end")]
        extra = getattr(k, "extra_paths", [])
        for tk in getattr(k, 'only_paths', None) or (runs + extra):
            if tk in getattr(k, 'skip_paths', []): continue
            errs += k.check(e, e + str(sorted(tk)), taken=tk)
    errs = list(dict.fromkeys(errs))
    for x in errs[:40]: print("ERR", x)
    if verbose: print(entries, "instrs:", sum(1 for x in k.ins if x.kind not in ("label", "dir")), "nops added:", added, "errors:", len(errs))
    assert not errs

HEADER = open("interleave_layers__sliding_block__swiglu_ffn__prompt.s.ref").read().split("; Override launch")[0]

def build(parts, order, path):
    info = {}
    for k, launches, desc, entries in parts:
        finalize(k, entries)
        for l in launches: info[l[0]] = l
    out = HEADER
    for n in order:
        _, g, b, lds = info[n]
        out += f"; @launch kernel={n} grid=({g},1,1) block=({b},1,1) lds={lds}\n"
    out += '.amdgcn_target "amdgcn-amd-amdhsa--gfx950"\n.text\n'
    for i, (k, launches, desc, entries) in enumerate(parts):
        if i == 3: out += "code_mega:\n"
        out += k.text()
    out += "code_end:\n  s_endpgm\n"
    for k, launches, desc, entries in parts: out += desc
    open(path, "w").write(out)

if __name__ == "__main__":
    import os
    import k_qkv, k_attn, k_gemmk, k_ffn1
    parts = [k_prep.gen_prep(), k_qkv.gen(), k_attn.gen()]
    if os.environ.get("NOMEGA"):
        parts += [k_gemmk.gen(), k_ffn1.gen()]
        order = ["prep_kernel", "qkv1_kernel", "attn1_kernel", "wo1_kernel", "ffn1_kernel", "down1_kernel",
                 "qkv2_kernel", "attn2_kernel", "wo2_kernel", "ffn1_kernel", "down2_kernel"]
    else:
        import k_mega
        parts.append(k_mega.gen())
        order = ["prep_kernel", "qkv1_kernel", "attn1_kernel", "m1_kernel", "attn2_kernel", "m2_kernel"]
    build(parts, order, sys.argv[1] if len(sys.argv) > 1 else "main.s")
```

```python
from asmgen import *
from layout import *
from k_prep import srd, entry, xreduce
from k_qkv import load_stats, finish_stats, f2u, QSCALE
import k_gemmk as G
import k_ffn1 as F1
import m_attn as AT
import math, os

GRID = 256
SC = "sc1"
LDS = 17 * 9216 + 1024 + 576
SPIN = 400000
def v4(r): return f"v[{r}:{r+3}]"
def a4(r): return f"a[{r}:{r+3}]"

def signal(k, so, nvm, lab):
    k(f"s_waitcnt vmcnt({nvm})")
    k("s_barrier")
    k("s_cmp_lg_u32 s18, 0")
    k(f"s_cbranch_scc1 {lab}_sg")
    k("s_mov_b64 exec, 1")
    k(f"buffer_store_dword v253, v252, s[96:99], s{so} offen {SC}")
    k("s_mov_b64 exec, -1")
    k(f"{lab}_sg:")

def wait_flags(k, so, n, lab, skip_if=None):
    k("s_cmp_lg_u32 s18, 0")
    k(f"s_cbranch_scc1 {lab}_wd")
    if skip_if:
        k(f"s_cmp_eq_u32 {skip_if}, 0")
        k(f"s_cbranch_scc1 {lab}_wd")
    if n:
        k(f"v_min_u32 v255, {n-1}, v254")
        k("v_lshlrev_b32 v255, 7, v255")
    k(f"s_mov_b32 s3, {SPIN}")
    k(f"{lab}_wl:")
    k(f"buffer_load_dword v251, v255, s[96:99], s{so} offen {SC}")
    k("s_sub_u32 s3, s3, 1")
    k("s_cmp_eq_u32 s3, 0")
    k("s_waitcnt vmcnt(0)")
    k(f"s_cbranch_scc1 {lab}_wd")
    k("v_cmp_ne_u32 vcc, 1, v251")
    k("s_nop 1")
    k("s_cmp_lg_u64 vcc, 0")
    k(f"s_cbranch_scc1 {lab}_wl")
    k(f"{lab}_wd:")
    k("s_waitcnt vmcnt(0)")
    k("s_barrier")

def gk_loads(s, part, half=None):
    L = [t for _, t in G.loads(s, half)]
    if part == "w": L = [t for t in L if "s[12:15]" in t]
    if part == "h": L = [t for t in L if "s[8:11]" in t]
    return L

def emit_gk(k):
    N = "gk"; acc = G.acc; ACC = G.ACC; F = G.F; T = G.T; RES = G.RES
    G.NTH = SC
    k(f"{N}_main:")
    k("s_cmp_eq_u32 s55, 0")
    k(f"s_mov_b32 s40, {HH}"); k(f"s_cselect_b32 s40, {OO}, s40")
    k(f"s_mov_b32 s41, {576*256}"); k(f"s_cselect_b32 s41, {72*256}, s41")
    k(f"s_mov_b32 s42, {WD}"); k(f"s_cselect_b32 s42, {WO}, s42")
    k(f"s_mov_b32 s14, {72*9216}"); k(f"s_cselect_b32 s14, {9*9216}, s14")
    k("s_cselect_b32 s23, 2, 18")
    k("s_cselect_b32 s53, s18, 2")
    k("s_and_b32 s20, s2, 7")
    k("s_lshr_b32 s21, s2, 3")
    k("s_lshr_b32 s16, s20, 1")
    k("s_lshl_b32 s16, s16, 3")
    k("s_lshr_b32 s22, s21, 2")
    k("s_add_u32 s16, s16, s22")
    k("s_and_b32 s17, s20, 1")
    k("s_lshl_b32 s17, s17, 2")
    k("s_and_b32 s22, s21, 3")
    k("s_add_u32 s17, s17, s22")
    k("v_add_u32 v2, 4096, v1")
    k("v_add_u32 v3, 8192, v1")
    k("v_mov_b32 v4, v1")
    k("v_add_u32 v5, s41, v4")
    k("v_add_u32 v6, s41, v5")
    k("v_add_u32 v7, s41, v6")
    k("s_lshl_b32 s10, s41, 2")
    k("s_mul_i32 s21, s10, s16")
    k("s_add_u32 s21, s21, s40")
    k("s_mul_i32 s22, s14, s17")
    k("s_add_u32 s22, s22, s42")
    k("s_mov_b32 s11, 0x20000")
    k("s_mov_b32 s15, 0x20000")
    k("s_mul_i32 s20, s18, s23")
    k("s_add_u32 s8, s100, s21"); k("s_addc_u32 s9, s101, 0"); k("s_and_b32 s9, s9, 0xffff")
    k("s_add_u32 s12, s4, s22"); k("s_addc_u32 s13, s5, 0"); k("s_and_b32 s13, s13, 0xffff")
    def setup2():
        k("s_cmp_eq_u32 s55, 0")
        k(f"s_cselect_b32 s44, {XIN}, {X1}")
        k(f"s_mov_b32 s45, {ST2}"); k(f"s_cselect_b32 s45, {ST1}, s45")
        k(f"s_mov_b32 s52, {X2}"); k(f"s_cselect_b32 s52, {X1}, s52")
        k("s_add_u32 s24, s100, s44"); k("s_addc_u32 s25, s101, 0"); k("s_and_b32 s25, s25, 0xffff"); k(f"s_mov_b32 s26, {XSZ}"); k("s_mov_b32 s27, 0x20000")
        k("v_and_b32 v10, 15, v254")
        k("v_bfe_u32 v12, v254, 4, 1")
        k("v_lshrrev_b32 v13, 5, v254")
        k("v_lshl_add_u32 v12, v12, 1, v13")
        k("v_lshlrev_b32 v17, 4, v10")
        k("v_lshl_add_u32 v16, v12, 8, v17")
        k("s_lshl_b32 s30, s16, 2")
        k("s_add_u32 s30, s30, s18")
        k("s_mul_i32 s31, s30, 18432")
        k("s_mul_i32 s32, s17, 9")
        k("s_lshl_b32 s33, s32, 8")
        k("s_add_u32 s33, s33, s31")
    def resid():
        k(f"buffer_load_dwordx4 {v4(RES)}, v16, s[24:27], s33 offen {SC}")
        k(f"buffer_load_dwordx4 {v4(RES+4)}, v16, s[24:27], s33 offen offset:1024 {SC}")
        k(f"buffer_load_dwordx4 {v4(RES+8)}, v17, s[24:27], s33 offen offset:2048 {SC}")
    def zero():
        for r in range(ACC, ACC + 96): k(f"v_mov_b32 v{r}, 0")
    k("s_mul_i32 s28, s20, 9216")
    k("s_lshl_b32 s29, s20, 11")
    k("s_mov_b32 s34, s28")
    for t in gk_loads(0, "w"): k(t)
    signal(k, 58, 9, "gk")
    k.add(k.stamp(7)) if False else None
    k("s_add_u32 s34, s34, 9216")
    for t in gk_loads(1, "w"): k(t)
    k(f"s_mov_b32 s34, {8*9216}")
    for hf in range(2):
        k(f"s_cmp_eq_u32 s53, {hf}")
        k(f"s_cbranch_scc0 {N}_lw{hf}")
        for t in gk_loads(2, "w", hf): k(t)
        k(f"{N}_lw{hf}:")
    setup2(); zero()
    k("s_lshr_b32 s58, s16, 2")
    k("s_lshl_b32 s58, s58, 12")
    k("s_lshl_b32 s3, s55, 1")
    k("s_add_u32 s3, s3, 1")
    k(f"s_mul_i32 s3, s3, {FLG_SET}")
    k("s_add_u32 s58, s58, s3")
    k("s_add_u32 s58, s58, s59")
    wait_flags(k, 58, 32, "gk")
    k("s_cmp_eq_u32 s55, 0")
    k(f"s_cbranch_scc0 {N}_st8")
    k.add(k.stamp(7))
    k(f"s_branch {N}_st7")
    k(f"{N}_st8:")
    k.add(k.stamp(11))
    k(f"{N}_st7:")
    k(f"s_mov_b32 s35, {8*2048}")
    for hf in range(2):
        k(f"s_cmp_eq_u32 s53, {hf}")
        k(f"s_cbranch_scc0 {N}_lh{hf}")
        for t in gk_loads(2, "h", hf): k(t)
        k(f"{N}_lh{hf}:")
    k("s_mov_b32 s35, s29")
    for t in gk_loads(0, "h"): k(t)
    resid()
    k("s_add_u32 s35, s35, 2048")
    for t in gk_loads(1, "h"): k(t)
    k("s_add_u32 s34, s28, 9216")
    k(f"{N}_pro2:")
    G.adv(k)
    k("s_and_b32 s3, s54, s55")
    k("s_cmp_eq_u32 s3, 1")
    k("s_cselect_b32 s46, 16, 256")
    k("s_cselect_b32 s47, 1152, 16")
    k("s_cselect_b32 s36, s56, s100")
    k("s_cselect_b32 s37, s57, s101")
    k("s_cselect_b32 s52, 0, s52")
    k(f"s_cselect_b32 s26, 0, {STSZ}")
    k("s_add_u32 s36, s36, s52"); k("s_addc_u32 s37, s37, 0"); k("s_and_b32 s37, s37, 0xffff"); k(f"s_mov_b32 s38, {XSZ}"); k("s_mov_b32 s39, 0x20000")
    k("s_add_u32 s24, s100, s45"); k("s_addc_u32 s25, s101, 0"); k("s_and_b32 s25, s25, 0xffff")
    k("v_lshlrev_b32 v18, 4, v10")
    k("v_mul_lo_u32 v17, v10, s47")
    k("v_mul_lo_u32 v16, v12, s46")
    k("v_add_u32 v16, v16, v17")
    k("s_mul_i32 s48, s32, s46")
    k("s_add_u32 s48, s48, s31")
    k("s_lshl_b32 s20, s46, 2")
    k("s_add_u32 s49, s48, s20")
    k("s_add_u32 s50, s49, s20")
    k("s_lshl_b32 s51, s30, 10")
    k("s_lshr_b32 s20, s17, 1")
    k("s_lshl_b32 s20, s20, 8")
    k("s_add_u32 s51, s51, s20")
    k("s_and_b32 s20, s17, 1")
    k("s_lshl_b32 s20, s20, 3")
    k("s_add_u32 s51, s51, s20")
    k("s_mul_i32 s20, s18, 12288")
    k("v_add_u32 v19, s20, v1")
    k("s_and_b32 s20, s18, 1")
    k("s_lshl_b32 s20, s20, 9")
    k("v_xor_b32 v14, s20, v1")
    k("s_lshr_b32 s20, s18, 1")
    k("s_lshl_b32 s20, s20, 12")
    k("v_add_u32 v14, s20, v14")
    k("s_lshl_b32 s58, s16, 3")
    k("s_add_u32 s58, s58, s17")
    k("s_lshl_b32 s58, s58, 7")
    k("s_lshl_b32 s3, s55, 1")
    k("s_add_u32 s3, s3, 2")
    k(f"s_mul_i32 s3, s3, {FLG_SET}")
    k("s_add_u32 s58, s58, s3")
    k("s_add_u32 s58, s58, s59")
    k("s_cmp_eq_u32 s55, 0")
    k(f"s_cbranch_scc0 {N}_down")
    k("s_waitcnt vmcnt(19)")
    k("s_cmp_eq_u32 s53, 0")
    k(f"s_cbranch_scc0 {N}_c1")
    G.compute(k, 2, False, groups=range(5))
    k(f"{N}_c1:")
    k("s_cmp_eq_u32 s53, 1")
    k(f"s_cbranch_scc0 {N}_c2")
    G.compute(k, 2, False, groups=range(5, 10))
    k(f"{N}_c2:")
    k("s_waitcnt vmcnt(11)")
    G.compute(k, 0, False)
    k("s_waitcnt vmcnt(4)")
    k(f"s_branch {N}_fin1")
    k(f"{N}_down:")
    k("s_mov_b32 s22, 8")
    k("s_waitcnt vmcnt(8)")
    k(".p2align 3")
    k(f"{N}_loop:")
    for s in range(2):
        k("s_waitcnt vmcnt(17)")
        G.compute(k, s, True)
    k("s_sub_u32 s22, s22, 1")
    k("s_cmp_lg_u32 s22, 0")
    k(f"s_cbranch_scc1 {N}_loop")
    k.add(k.stamp(12))
    k("s_waitcnt vmcnt(26)")
    G.compute(k, 0, False, 17)
    k("s_waitcnt vmcnt(9)")
    k(f"{N}_fin1:")
    G.compute(k, 1, False, 0)
    G.reduce_store(k, N, SC)
    k("s_cmp_eq_u32 s55, 0")
    k("s_cbranch_scc1 f1_main")
    k("s_cmp_eq_u32 s54, 0")
    k("s_cbranch_scc0 mega_end")
    if os.environ.get("STOP") == "l1": k("s_branch mega_end")
    k("s_mov_b32 s54, 1")
    k(f"s_add_u32 s100, s100, {LSTRIDE}")
    k("s_addc_u32 s101, s101, 0")
    k(f"s_mov_b32 s59, {5*FLG_SET}")
    k("s_branch q2_main")

def emit_ffn1(k):
    CH = F1.CH; LDS_S = F1.LDS_S; XV, WB, ACC, NMEAN, CC, QQ, SG, TT, PP = F1.XV, F1.WB, F1.ACC, F1.NMEAN, F1.CC, F1.QQ, F1.SG, F1.TT, F1.PP
    xop, accr, rd = F1.xop, F1.accr, F1.rd
    F1.STORE_MOD = SC
    k("f1_main:")
    k("s_and_b32 s6, s2, 7")
    k("s_lshr_b32 s7, s2, 3")
    k("s_and_b32 s16, s6, 1")
    k("s_lshl_b32 s16, s16, 2")
    k("s_lshr_b32 s17, s7, 3")
    k("s_add_u32 s16, s16, s17")
    k("s_lshr_b32 s17, s6, 1")
    k("s_lshl_b32 s17, s17, 3")
    k("s_and_b32 s7, s7, 7")
    k("s_add_u32 s17, s17, s7")
    k("s_mul_i32 s39, s18, 9216")
    k(f"s_mul_i32 s6, s17, {9*CH}")
    k(f"s_add_u32 s6, s6, {WGU}")
    k("s_add_u32 s12, s4, s6"); k("s_addc_u32 s13, s5, 0"); k("s_and_b32 s13, s13, 0xffff"); k(f"s_mov_b32 s14, {9*CH}")
    signal(k, 58, 0, "wo")
    k.add(k.stamp(8))
    for c in range(3): k.add(F1.dma_chunk(c))
    k("s_lshl_b32 s19, s16, 4")
    k("s_lshl_b32 s6, s18, 2")
    k("s_add_u32 s19, s19, s6")
    for i in range(1, 5): k(f"s_mov_b32 s{32+i}, {4096*i}")
    k("s_mul_i32 s6, s19, 18432")
    k("v_add_u32 v2, s6, v1")
    for tb in range(1, 4): k(f"v_add_u32 v{2+tb}, 18432, v{1+tb}")
    k("v_and_b32 v13, 15, v254")
    k("v_lshrrev_b32 v15, 4, v254")
    k("s_lshl_b32 s6, s19, 10")
    k("v_add_u32 v9, s6, v1")
    k("v_min_u32 v10, 35, v254")
    k("v_lshlrev_b32 v10, 3, v10")
    k("s_mul_i32 s6, s18, 288")
    k("v_add_u32 v10, s6, v10")
    k("s_mul_i32 s42, s17, 1152")
    k("s_add_u32 s43, s42, 36864")
    k("s_add_u32 s44, s42, 73728")
    srd(k, 8, 100, X1, XSZ)
    srd(k, 20, 100, ST1, STSZ)
    srd(k, 28, 4, SGU, SGU_SZ)
    srd(k, 24, 100, HH, H_SZ)
    k("v_add_u32 v6, 65536, v1")
    k("v_add_u32 v7, 131072, v1")
    k(f"v_add_u32 v8, {4*CH}, v1")
    k("v_and_b32 v11, 1, v15")
    k("v_mul_u32_u24 v11, 147456, v11")
    k("v_lshrrev_b32 v12, 1, v15")
    k("v_lshl_add_u32 v11, v12, 8, v11")
    k("v_lshl_add_u32 v11, v13, 4, v11")
    k("s_mul_i32 s6, s19, 147456")
    k("v_add_u32 v11, s6, v11")
    k(f"v_add_u32 v12, {2*147456}, v11")
    k("s_mul_i32 s45, s17, 4608")
    k("s_lshl_b32 s46, s16, 12")
    k("s_add_u32 s46, s46, s59")
    k(f"s_add_u32 s46, s46, {2*FLG_SET}")
    k("s_lshl_b32 s58, s17, 7")
    k("s_add_u32 s58, s58, s46")
    k(f"s_add_u32 s58, s58, {FLG_SET}")
    wait_flags(k, 46, 32, "f1")
    k.add(k.stamp(9))
    def xl(ks):
        so = "0" if ks < 4 else f"s{32 + ks // 4}"
        return [(f"buffer_load_dwordx4 {xop(ks, tb)}, v{2+tb}, s[8:11], {so} offen offset:{(ks % 4) * 1024} {SC}", f"x{ks}") for tb in range(4)]
    D = int(os.environ.get("XDIST", "3"))
    for ks in range(D): k.add(xl(ks))
    R0 = TT; CS = ACC + 120
    ks_ = Kern(); load_stats(ks_, 20, 9, 4, R0, "st", SC)
    for i, sr in enumerate((42, 43, 44)):
        ks_(f"buffer_load_dwordx2 v[{CS+2*i}:{CS+2*i+1}], v10, s[28:31], s{sr} offen", "st")
    st_loads = list(ks_.ins)
    kf = Kern()
    kf("WAITVM st")
    for q in range(2):
        kf(f"v_add_f32 v{CS+q}, v{CS+q}, v{CS+2+q}")
        kf(f"v_add_f32 v{CS+q}, v{CS+q}, v{CS+4+q}")
    kf(f"v_add_u32 v10, {LDS_S}, v10")
    kf(f"ds_write_b64 v10, v[{CS}:{CS+1}]", "sw")
    finish_stats(kf, 4, R0)
    for tb in range(4):
        kf(f"v_rsq_f32 v{CC+tb}, v{R0+4*tb+1}")
        kf(f"v_sub_f32 v{NMEAN+tb}, 0, v{R0+4*tb}")
        kf(f"v_mov_b32 v{QQ+tb}, v{R0+4*tb+1}")
        kf(f"v_mul_f32 v{CC+tb}, {f2u(-math.log2(math.e))}, v{CC+tb}")
    kf("v_lshlrev_b32 v10, 4, v15")
    kf(f"v_add_u32 v10, {LDS_S}, v10")
    kf(f"v_add_u32 v9, {8*CH}, v1")
    st_fin = list(kf.ins)
    mf = []; fixed = {}; flow = []
    def fx(i, x): fixed.setdefault(i, []).extend(x if isinstance(x, list) else [x])
    def spread(items, g0, g1):
        vm = [x for x in items if not (isinstance(x, str) and x.startswith("s_add_u32 m0"))]
        step = (g1 - g0) / len(vm); n = 0; pend = None; last = -1
        for x in items:
            if isinstance(x, str) and x.startswith("s_add_u32 m0"): pend = x; continue
            g = max(int(g0 + (n + 0.5) * step), last + 1); n += 1
            while g % 4 in (0, 1) or any(unit_cost(as_ins(y)) for y in fixed.get(g, [])) or (pend and any(as_ins(y).kind == "dma" for y in fixed.get(g - 1, []))): g += 1
            last = g
            if pend: fx(g - 1, pend); pend = None
            fx(g, x)
    PB = (ACC + 96, WB)
    for c in range(3):
        for gu in range(2): k.add([rd(PB[0] + 8 * c + 4 * gu, c, 0, gu)])
    k("WAITLG w0_0")
    k("WAITVM x0")
    d3 = F1.dma_chunk(3); d3s = [d3[0:5], d3[5:10], d3[10:12]]
    for ks in range(18):
        i0 = len(mf)
        if ks > 0: fx(i0 - 2, f"WAITVM x{ks}")
        ext = xl(ks + D) if ks + D < 18 else []
        if ks == 2: ext = ext + st_loads[:4]
        if ks == 3: ext = ext + st_loads[4:]
        if ks == 7: flow += [(x, i0) for x in st_fin]
        if ks in (10, 11, 12): ext = ext + d3s[ks - 10]
        if ext: spread(ext, i0, i0 + 20)
        if ks == 17:
            fx(i0 - 5, "WAITVM d3"); fx(i0 - 4, "WAITLG sw"); fx(i0 - 3, "s_barrier")
        for c in range(3):
            for gu in range(2):
                for tb in range(4):
                    a = accr(c, gu, tb); w = PB[ks % 2] + 8 * c + 4 * gu
                    i = len(mf)
                    if gu == 0 and tb == 0 and i > 0: fx(i - 1, f"WAITLG w{c}_{ks}")
                    mf.append(f"v_mfma_f32_16x16x32_bf16 {v4(a)}, {v4(w)}, {xop(ks, tb)}, {'0' if ks == 0 else v4(a)}")
                    if tb == 0 and ks < 17: fx(i, rd(PB[(ks + 1) % 2] + 8 * c + 4 * gu, c, ks + 1, gu))
                    if ks == 17 and c >= 1 and tb == 0: fx(i, rd(WB + 8 * (c - 1) + 4 * gu, 3, c - 1, gu))
                    if ks == 17 and c == 0 and tb == 1:
                        flow.append(((f"ds_read_b128 {v4(SG + 4*gu)}, v10 offset:{64*gu}", "s0"), i))
    flow.append(("WAITLG s0", len(mf) + 1))
    for e in range(3): flow += [(x, len(mf) + 1) for x in F1.epilogue(e)]
    for c in range(3, 9):
        i0 = len(mf)
        if c == 3: fx(i0 - 2, "s_barrier")
        for ks in range(18):
            for gu in range(2):
                for tb in range(4):
                    a = accr(c, gu, tb); w = WB + 8 * (ks % 3) + 4 * gu
                    i = len(mf)
                    if gu == 0 and tb == 0:
                        fx(i - 1, f"WAITLG w{c}_{ks}")
                        if ks == 16 and c < 8:
                            fx(i - 3, f"WAITVM d{c+1}"); fx(i - 2, "s_barrier")
                    mf.append(f"v_mfma_f32_16x16x32_bf16 {v4(a)}, {v4(w)}, {xop(ks, tb)}, {'0' if ks == 0 else v4(a)}")
                    if tb == 0:
                        c2, k2 = (c, ks + 2) if ks < 16 else (c + 1, ks - 16)
                        if c2 < 9: fx(i, rd(WB + 8 * (k2 % 3) + 4 * gu, c2, k2, gu))
        for dc, k0, k1 in {3: [(4, 0, 64), (5, 72, 140)], 4: [(6, 0, 120)], 5: [(7, 0, 120)], 6: [(8, 0, 120)]}.get(c, []):
            spread(F1.dma_chunk(dc), i0 + k0, i0 + k1)
        flow += [(x, len(mf) + 2) for x in F1.epilogue(c)]
    n0 = len(k.ins)
    left, over = pack(k, mf, fixed, flow)
    print("mega ffn1 leftover instrs:", len(left), "overfull units:", over)
    k.add(k.stamp(10))
    k.add(left)
    sub = Kern(); sub.ins = k.ins[n0:]; F1.check_deadlines(sub)
    iw = [i for i, x in enumerate(sub.ins) if x.tag == "sw"][0]; ir = [i for i, x in enumerate(sub.ins) if x.tag == "s0"][0]
    assert any(x.op == "s_barrier" for x in sub.ins[iw + 3:ir])
    k("s_mov_b32 s55, 1")
    k("s_branch gk_main")

def emit_qkv(k):
    N = "q2"; LDS_ST = 17 * 9216; LDS_S = LDS_ST + 1024
    k(f"{N}_main:")
    k("s_and_b32 s6, s2, 7")
    k("s_lshr_b32 s7, s2, 3")
    k("s_mul_i32 s16, s7, 43")
    k("s_lshr_b32 s16, s16, 8")
    k("s_mul_i32 s17, s16, 6")
    k("s_sub_u32 s17, s7, s17")
    k("s_lshr_b32 s7, s6, 1")
    k("s_lshl_b32 s7, s7, 2")
    k("s_add_u32 s16, s16, s7")
    k("s_and_b32 s6, s6, 1")
    k("s_mul_i32 s6, s6, 6")
    k("s_add_u32 s17, s17, s6")
    k("s_mul_i32 s6, s17, 165888")
    k(f"s_add_u32 s6, s6, {WQKV}")
    k("s_add_u32 s12, s4, s6"); k("s_addc_u32 s13, s5, 0"); k("s_and_b32 s13, s13, 0xffff"); k("s_mov_b32 s14, 165888"); k("s_mov_b32 s15, 0x20000")
    k("s_cmp_eq_u32 s54, 0")
    k(f"s_cbranch_scc1 {N}_nosig")
    signal(k, 58, 0, "dn")
    k.add(k.stamp(0))
    k(f"{N}_nosig:")
    k("s_cmp_ge_u32 s2, 192")
    k("s_cbranch_scc1 at_main")
    k("s_lshl_b32 s38, s18, 10")
    for i in range(38):
        k(f"s_add_u32 m0, s38, {i*4096}")
        k("buffer_load_dwordx4 v1, s[12:15], m0 offen lds")
    k(f"s_mov_b32 m0, {152*1024}")
    k("s_cmp_lg_u32 s18, 0")
    k(f"s_cbranch_scc1 {N}_w1")
    k("buffer_load_dwordx4 v1, s[12:15], m0 offen lds")
    k(f"{N}_w1:")
    k("s_lshl_b32 s19, s16, 3")
    k("s_lshl_b32 s6, s18, 1")
    k("s_add_u32 s19, s19, s6")
    k("s_mul_i32 s6, s19, 18432")
    k("v_add_u32 v2, s6, v1")
    k("v_add_u32 v3, 18432, v2")
    for i in range(1, 5): k(f"s_mov_b32 s{32+i}, {4096*i}")
    k(f"v_add_u32 v6, {17*9216}, v1")
    k("v_and_b32 v7, 15, v254")
    k("v_lshrrev_b32 v8, 4, v254")
    k("s_lshl_b32 s6, s19, 10")
    k("v_add_u32 v9, s6, v1")
    k("v_min_u32 v10, 35, v254")
    k("v_lshlrev_b32 v10, 4, v10")
    k("s_mul_i32 s42, s17, 576")
    k("s_add_u32 s43, s42, 6912")
    k("s_add_u32 s44, s42, 13824")
    srd(k, 8, 100, XIN, XSZ)
    srd(k, 20, 100, STIN, STSZ)
    srd(k, 28, 4, SQKV, SQKV_SZ)
    srd(k, 24, 100, QKV, 3 * XSZ)
    k("v_add_u32 v16, 65536, v1")
    k("v_add_u32 v17, 131072, v1")
    k("s_cmp_lt_u32 s17, 4")
    k(f"s_cselect_b32 s46, {f2u(QSCALE)}, 1.0")
    k("s_lshl_b32 s47, s18, 8")
    k(f"s_add_u32 s47, s47, {LDS_ST}")
    k("s_mul_i32 s45, s17, 589824")
    k("s_lshl_b32 s48, s19, 9")
    k("s_lshl_b32 s49, s16, 11")
    k(f"s_add_u32 s49, s49, {4*FLG_SET}")
    k("s_lshl_b32 s58, s17, 4")
    k("s_add_u32 s58, s58, s16")
    k("s_lshl_b32 s58, s58, 7")
    k("s_add_u32 s58, s58, s59")
    R0 = 176; CS = 184; W = (32, 68); ACC = 104; SV = 196; PR = 232; WL = 144
    for b in range(9):
        so = "0" if b < 4 else f"s{32 + b // 4}"
        k(f"buffer_load_dwordx4 {a4(WL+4*b)}, v6, s[12:15], {so} offen offset:{(b % 4) * 1024}")
    for i, sr in enumerate((42, 43, 44)):
        k(f"buffer_load_dwordx4 v[{CS+4*i}:{CS+4*i+3}], v10, s[28:31], s{sr} offen")
    wait_flags(k, 49, 16, N, skip_if="s54")
    k.add(k.stamp(1))
    def xfrag(ks, j): return 4 * (ks * 2 + j)
    def xl(ks):
        so = "0" if ks < 4 else f"s{32 + ks // 4}"
        return [(f"buffer_load_dwordx4 {a4(xfrag(ks, j))}, v{2+j}, s[8:11], {so} offen offset:{(ks % 4) * 1024} {SC}", f"qx{ks}") for j in range(2)]
    D = 5
    for ks in range(D): k.add(xl(ks))
    load_stats(k, 20, 9, 2, R0, "qst", SC)
    k("s_cmp_ge_u32 s17, 8")
    k(f"s_cbranch_scc1 {N}_v")
    for path in ("qk", "v"):
        k.path = path
        if path == "v": k(f"{N}_v:")
        kf = Kern()
        for q in range(4):
            kf(f"v_add_f32 v{CS+q}, v{CS+q}, v{CS+4+q}")
            kf(f"v_add_f32 v{CS+q}, v{CS+q}, v{CS+8+q}")
        kf(f"v_add_u32 v10, {LDS_S}, v10")
        kf(f"ds_write_b128 v10, v[{CS}:{CS+3}]")
        kf("WAITVM qst")
        finish_stats(kf, 2, R0)
        kf(f"v_rsq_f32 v13, v{R0+1}")
        kf(f"v_rsq_f32 v15, v{R0+5}")
        kf(f"v_sub_f32 v12, 0, v{R0}")
        kf(f"v_sub_f32 v14, 0, v{R0+4}")
        if path == "qk":
            kf("v_mul_f32 v13, s46, v13")
            kf("v_mul_f32 v15, s46, v15")
            kf(f"v_lshlrev_b32 v10, 4, v8")
            kf("v_and_b32 v18, 1, v8")
            kf("v_lshlrev_b32 v18, 9, v18")
            kf("v_lshrrev_b32 v19, 1, v8")
            kf("v_lshl_add_u32 v18, v19, 8, v18")
            kf("v_lshl_add_u32 v18, v7, 4, v18")
            kf("v_add_u32 v18, s48, v18")
        else:
            kf("v_lshl_add_u32 v11, v7, 3, s47")
            kf("ds_write_b64 v11, v[12:13]")
            kf("ds_write_b64 v11, v[14:15] offset:128")
            kf("v_lshl_add_u32 v11, v8, 5, s47")
            for j in range(2):
                for h in range(2):
                    kf(f"ds_read_b128 v[{R0+8*j+4*h}:{R0+8*j+4*h+3}], v11 offset:{j*128+h*16}", "qvs")
            kf(f"v_lshlrev_b32 v10, 2, v7")
            kf("v_add_u32 v18, s48, v1")
        kf(f"v_add_u32 v10, {LDS_S}, v10")
        def rd(ks, b):
            r = W[ks % 2] + 4 * b
            off = ks * 9216 + b * 1024
            va = 1 if off < 65536 else (16 if off < 131072 else 17)
            return (f"ds_read_b128 v[{r}:{r+3}], v{va} offset:{off % 65536}", f"qw{ks}_{b}")
        def mfma(ks, b, j):
            w = v4(W[ks % 2] + 4 * b) if ks < 17 else a4(WL + 4 * b)
            a = ACC + 4 * (j * 9 + b); x = xfrag(ks, j)
            c = "0" if ks == 0 else v4(a)
            if path == "qk": return f"v_mfma_f32_16x16x32_bf16 {v4(a)}, {w}, {a4(x)}, {c}"
            return f"v_mfma_f32_16x16x32_bf16 {v4(a)}, {a4(x)}, {w}, {c}"
        def epi(b):
            L = []; P = PR + 4 * (b % 2)
            for j in range(2):
                a = ACC + 4 * (j * 9 + b)
                if path == "qk":
                    for i in range(4): L.append(f"v_fma_f32 v{a+i}, v{12+2*j}, v{SV+4*b+i}, v{a+i}")
                    for i in range(4): L.append(f"v_mul_f32 v{a+i}, v{a+i}, v{13+2*j}")
                else:
                    for i in range(4): L.append(f"v_fma_f32 v{a+i}, v{R0+8*j+2*i}, v{SV+b}, v{a+i}")
                    for i in range(4): L.append(f"v_mul_f32 v{a+i}, v{a+i}, v{R0+8*j+2*i+1}")
                L.append(f"v_cvt_pk_bf16_f32 v{P+2*j}, v{a}, v{a+1}")
                L.append(f"v_cvt_pk_bf16_f32 v{P+2*j+1}, v{a+2}, v{a+3}")
            if path == "qk":
                L.append(f"v_permlane16_swap_b32 v{P}, v{P+2}")
                L.append(f"v_permlane16_swap_b32 v{P+1}, v{P+3}")
            L.append(f"buffer_store_dwordx4 v[{P}:{P+3}], v18, s[24:27], s45 offen {SC}")
            if b < 8: L.append("s_add_u32 s45, s45, 65536")
            return L
        for b in range(9): k.add([rd(0, b)])
        k("WAITLG qw0_2")
        k("WAITVM qx0")
        mf = []; fixed = {}
        def fx(i, x): fixed.setdefault(i, []).extend(x if isinstance(x, list) else [x])
        flow = [(x, 4 * 18) for x in kf.ins]
        for b in range(9):
            ins = (f"ds_read_b128 v[{SV+4*b}:{SV+4*b+3}], v10 offset:{b*64}", "sv") if path == "qk" else (f"ds_read_b32 v{SV+b}, v10 offset:{b*64}", "sv")
            flow.append((ins, 9 * 18 + 8 * b))
        for ks in range(16):
            i0 = len(mf)
            if ks > 0: fx(i0 - 2, f"WAITVM qx{ks}")
            if ks + D < 18:
                for n, x in enumerate(xl(ks + D)): fx(i0 + 3 + 8 * n, x)
            for b in range(9):
                i = len(mf)
                if b % 3 == 0 and i > 0: fx(i - 1, f"WAITLG qw{ks}_{b+2}")
                mf += [mfma(ks, b, 0), mfma(ks, b, 1)]
                fx(i, rd(ks + 1, b))
        fx(len(mf) - 2, "WAITVM qx17")
        for b in range(9):
            i = len(mf)
            if b % 3 == 0: fx(i - 1, f"WAITLG qw16_{b+2}")
            mf += [mfma(16, b, 0), mfma(16, b, 1), mfma(17, b, 0), mfma(17, b, 1)]
            flow += [(x, i + 5) for x in epi(b)]
        left, over = pack(k, mf, fixed, flow)
        k.add(left)
        if path == "qk": k("s_branch at_main")
    k.path = None

def gen():
    k = Kern(); k.name = "mega"
    names = ["mega_kernel"]
    entry(k, names[0])
    k("s_load_dwordx2 s[4:5], s[0:1], 72")
    k("s_load_dwordx2 s[56:57], s[0:1], 56")
    k(f"s_cmp_ge_u32 s2, {GRID}")
    k("s_cbranch_scc1 mega_exit")
    k.add(k.stamp(0))
    k("v_lshrrev_b32 v8, 6, v0")
    k("v_and_b32 v254, 63, v0")
    k("v_readfirstlane_b32 s18, v8")
    k("v_lshlrev_b32 v1, 4, v254")
    k("v_mov_b32 v252, 0")
    k("v_mov_b32 v253, 1")
    k("s_mov_b32 s54, 0")
    k("s_mov_b32 s59, 0")
    k("s_waitcnt lgkmcnt(0)")
    k("s_mov_b64 s[100:101], s[4:5]")
    srd(k, 96, 4, FLG, FLG_SZ)
    emit_qkv(k)
    AT.emit(k, signal, wait_flags, SC)
    if os.environ.get("STOP") == "attn": k("s_branch mega_end")
    k("s_mov_b32 s55, 0")
    emit_gk(k)
    emit_ffn1(k)
    k("mega_end:")
    k.stamp_out()
    k("mega_exit:")
    k("s_endpgm")
    k.script = True
    return k, [(n, GRID, 256, LDS) for n in names], "".join(descriptor(n, 256, 256, 102) for n in names), names
```

```python
XSZ = 2048 * 576 * 2
STSZ = 2048 * 64
H_SZ = 2048 * 4608 * 2
XIN = 0
X1 = XSZ
QKV = 2 * XSZ
OO = 5 * XSZ
STIN = 6 * XSZ
ST1 = STIN + STSZ
HH = ST1 + STSZ
LSTRIDE = HH + H_SZ
XF0 = XIN; ST0 = STIN
X2 = LSTRIDE + XIN; ST2 = LSTRIDE + STIN
WQKV = 2 * LSTRIDE; WQKV_SZ = 576 * 1728 * 2
WO = WQKV + WQKV_SZ; WO_SZ = 576 * 576 * 2
WGU = WO + WO_SZ; WGU_SZ = 576 * 9216 * 2
WD = WGU + WGU_SZ; WD_SZ = 4608 * 576 * 2
SQKV = WD + WD_SZ; SQKV_SZ = 1728 * 4
SGU = SQKV + 20736 + 3840; SGU_NP = 3; SGU_SZ = 6 * 9216 * 4
FLG = SGU + SGU_SZ; FLG_SET = 256 * 128; FLG_SZ = 11 * FLG_SET
EPOCH = FLG + FLG_SZ + 4096
WS_END = EPOCH + 4096
for _v in (X1, QKV, OO, STIN, ST1, HH, LSTRIDE, WQKV, WO, WGU, WD, SQKV, SGU, FLG): assert _v % 1024 == 0, _v
assert WS_END < 120 << 20
```

```python
from asmgen import *
from layout import *
from k_prep import srd, xreduce

REC = 3072
VR0 = 16 * REC
ONES = VR0 + 2048
LDS_END = ONES + 16
NEG = "0xf149f2ca"
def v4(r): return f"v[{r}:{r+3}]"
def qi(p, q): return 2 * p + (q == "B")
def Q(p, q): return 16 + 4 * qi(p, q)
KF = (32, 36); VM = 40; VRF = 44
ORDER = [(p, q, tl) for tl in range(2) for p in range(2) for q in "AB"]
def S(t): return 48 + 4 * ORDER.index(t)
def E(t): return 80 + 4 * ORDER.index(t)
def P(p, q): return 112 + 4 * qi(p, q)
def OM(p, q): return 128 + 4 * qi(p, q)
def OR(p, q): return 144 + 4 * qi(p, q)
MO = 160; MD = 164
def NM(p, q): return 168 + 4 * qi(p, q)
def CF(p, q): return 184 + 4 * qi(p, q)
def CL(p, q): return 200 + 4 * qi(p, q)
def MX(p, q): return 216 + qi(p, q)

def present(kinds, t):
    kind = kinds[t[0]]
    return kind is not None and not ((kind == "first" and t[1:] == ("B", 0)) or (kind == "last" and t[1:] == ("A", 1)))

def smfma(k, kinds, t, ps):
    if not present(kinds, t): return
    p, q, tl = t; kind = kinds[p]
    masked = kind in ("first", "last") and (q, tl) in (("A", 0), ("B", 1))
    if ps == 1: c = v4(MO if kind == "first" else MD) if masked else "0"
    else: c = v4((CF if kind == "first" else CL)(p, q)) if masked else v4(NM(p, q))
    k(f"v_mfma_f32_16x16x32_bf16 {v4(S(t))}, {v4(KF[tl])}, {v4(Q(p, q))}, {c}")

def pv(k, n, prev):
    p, q = n >> 2, "AB"[(n >> 1) & 1]
    if prev[p] is None: return
    o, v = (OM(p, q), VM) if n % 2 == 0 else (OR(p, q), VRF)
    k(f"v_mfma_f32_16x16x32_bf16 {v4(o)}, {v4(v)}, {v4(P(p, q))}, {v4(o)}")

def prologue(k, kinds, ps):
    k(f"ds_read_b128 {v4(KF[0])}, v2")
    k(f"ds_read_b128 {v4(KF[1])}, v2 offset:1024")
    k("s_waitcnt lgkmcnt(0)")
    for t in ORDER: smfma(k, kinds, t, ps)
    k(f"ds_read_b128 {v4(KF[0])}, v2 offset:{REC}")
    k(f"ds_read_b128 {v4(KF[1])}, v2 offset:{REC+1024}")
    if ps == 2:
        k(f"ds_read_b128 {v4(VM)}, v2 offset:2048")
        k(f"ds_read_b128 {v4(VRF)}, v3")
    k("s_nop 5")

def iteration(k, prev, cur, nxt, ps):
    for n, t in enumerate(ORDER):
        on = present(cur, t); s = S(t); e = E(t)
        if ps == 1:
            if on:
                m = MX(*t[:2])
                k(f"v_max3_f32 v{m}, v{m}, v{s}, v{s+1}")
                k(f"v_max3_f32 v{m}, v{m}, v{s+2}, v{s+3}")
            if nxt and n in (0, 4): k("s_waitcnt lgkmcnt(1)")
        else:
            if on:
                for i in range(2): k(f"v_exp_f32 v{e+i}, v{s+i}")
            if n == 1: k("s_waitcnt lgkmcnt(0)")
            if n >= 1: pv(k, n - 1, prev)
            if on:
                for i in range(2, 4): k(f"v_exp_f32 v{e+i}, v{s+i}")
            if nxt and n == 0: k("s_waitcnt lgkmcnt(3)")
        if nxt:
            smfma(k, nxt, t, ps)
            if n in (3, 7): k(f"ds_read_b128 {v4(KF[t[2]])}, v2 offset:{2*REC + 1024*t[2]}")
    if ps == 2:
        for p in range(2):
            cnt = 0
            for q in "AB":
                for tl in range(2):
                    r = P(p, q) + 2 * tl; e = E((p, q, tl))
                    if cur[p] is None: pass
                    elif present(cur, (p, q, tl)):
                        k(f"v_cvt_pk_bf16_f32 v{r}, v{e}, v{e+1}")
                        k(f"v_cvt_pk_bf16_f32 v{r+1}, v{e+2}, v{e+3}")
                    else:
                        k(f"v_mov_b32 v{r}, 0"); k(f"v_mov_b32 v{r+1}, 0")
                    cnt += 1
                    if p == 0 and cnt == 1:
                        pv(k, 7, prev)
                        k(f"ds_read_b128 {v4(VM)}, v2 offset:2048")
                        k(f"ds_read_b128 {v4(VRF)}, v3")
        k("v_add_u32 v3, v3, v4")
    if nxt: k(f"v_add_u32 v2, {REC}, v2")

def emit(k, signal, wait_flags, SC, after_stage=None):
    N = "at"
    k(f"{N}_main:")
    k("v_and_b32 v7, 15, v254")
    k("v_lshrrev_b32 v8, 4, v254")
    k("s_and_b32 s6, s2, 7")
    k("s_lshr_b32 s7, s2, 3")
    k("s_lshr_b32 s17, s7, 2")
    k("s_and_b32 s7, s7, 3")
    k("s_lshl_b32 s16, s6, 2")
    k("s_add_u32 s16, s16, s7")
    k("s_lshr_b32 s33, s16, 3")
    k("s_mul_i32 s19, s33, 9")
    k("s_and_b32 s20, s16, 7")
    k("s_add_u32 s21, s19, s20")
    k("s_lshl_b32 s21, s21, 16")
    k("s_add_u32 s22, s19, 8")
    k("s_lshl_b32 s22, s22, 16")
    k("s_and_b32 s23, s6, 1")
    k("s_lshl_b32 s23, s23, 8")
    k("s_add_u32 s23, s23, s22")
    k("s_cmp_ge_u32 s2, 192")
    k(f"s_cbranch_scc1 {N}_nosig")
    signal(k, 58, 0, "qk")
    k(f"{N}_nosig:")
    k.add(k.stamp(2))
    k("v_min_u32 v255, 11, v254")
    k("v_lshrrev_b32 v9, 2, v255")
    k("v_lshl_add_u32 v9, v9, 2, s33")
    k("v_and_b32 v255, 3, v255")
    k("s_lshl_b32 s24, s17, 1")
    k("s_sub_u32 s24, s24, 2")
    k("v_add_u32 v255, s24, v255")
    k("v_max_i32 v255, 0, v255")
    k("v_lshl_add_u32 v255, v9, 4, v255")
    k("v_lshlrev_b32 v255, 7, v255")
    k("v_add_u32 v9, s21, v1")
    k("v_lshl_add_u32 v10, v7, 4, s23")
    k("v_cmp_gt_u32 vcc, 32, v254")
    k("v_cndmask_b32 v9, v10, v9, vcc")
    k("v_bfe_u32 v10, v254, 1, 2")
    k("v_lshlrev_b32 v10, 8, v10")
    k("v_and_b32 v11, 1, v254")
    k("v_lshl_add_u32 v10, v11, 4, v10")
    k("v_bfe_u32 v11, v254, 3, 2")
    k("v_lshl_add_u32 v10, v11, 10, v10")
    k("s_lshl_b32 s24, s20, 5")
    k("s_add_u32 s24, s24, s22")
    k("v_add_u32 v10, s24, v10")
    k("s_lshl_b32 s24, s17, 4")
    k("s_lshl_b32 s25, s18, 2")
    k("s_add_u32 s26, s24, s25")
    k("s_lshl_b32 s27, s26, 9")
    k("s_add_u32 s24, s26, s25")
    k("s_lshl_b32 s24, s24, 9")
    k(f"s_add_u32 s28, s24, {XSZ - 16*512}")
    k(f"s_add_u32 s29, s24, {2*XSZ - 8*1024}")
    k("s_add_u32 s30, s29, s21")
    k(f"s_mul_i32 s31, s18, {4*REC}")
    srd(k, 8, 100, QKV, 3 * XSZ)
    srd(k, 12, 100, OO, XSZ)
    for i in range(4): k(f"v_mov_b32 v{80+i}, 0x3f803f80")
    k(f"v_mov_b32 v11, {ONES}")
    k(f"ds_write_b128 v11, {v4(80)}")
    k("v_lshlrev_b32 v11, 2, v8")
    k(f"v_mov_b32 v12, {NEG}")
    for i in range(4):
        k(f"v_add_u32 v13, {i}, v11")
        k("v_cmp_gt_u32 vcc, v13, v7")
        k(f"v_cndmask_b32_e64 v{MO+i}, v12, 0, vcc")
        k(f"v_cndmask_b32 v{MD+i}, 0, v12, vcc")
    for r in range(112, 160): k(f"v_mov_b32 v{r}, 0")
    for r in range(216, 220): k(f"v_mov_b32 v{r}, v12")
    k("s_lshl_b32 s32, s18, 1")
    k("s_cmp_gt_u32 s17, 0")
    k("s_cselect_b32 s32, s32, 8")
    k(f"s_mul_i32 s33, s32, {REC}")
    k("v_add_u32 v6, s33, v1")
    k("s_lshl_b32 s33, s32, 7")
    k(f"s_add_u32 s33, s33, {VR0}")
    k("v_lshl_add_u32 v3, v8, 1, v7")
    k("v_lshl_add_u32 v3, v3, 4, s33")
    k(f"v_mov_b32 v11, {ONES}")
    k("v_mov_b32 v4, 128")
    k("v_cmp_gt_u32 vcc, 2, v7")
    k("v_cndmask_b32 v3, v11, v3, vcc")
    k("v_cndmask_b32 v4, 0, v4, vcc")
    k("s_lshl_b32 s58, s17, 5")
    k("s_add_u32 s58, s58, s16")
    k("s_lshl_b32 s58, s58, 7")
    k("s_add_u32 s58, s58, s59")
    k(f"s_add_u32 s58, s58, {FLG_SET}")
    wait_flags(k, 59, None, N)
    k.add(k.stamp(3))
    for bl in range(4):
        for tl in range(2):
            k(f"s_add_u32 m0, s31, {bl*REC + tl*1024}")
            k(f"s_add_u32 s24, s28, {(2*bl + tl)*512}")
            k(f"buffer_load_dwordx4 v9, s[8:11], s24 offen {SC} lds", "ak")
    for j in range(4):
        k(f"buffer_load_dwordx4 {v4(16+4*j)}, v9, s[8:11], s27 offen offset:{512*j} {SC}", "aq")
    for bl in range(4):
        k(f"s_add_u32 m0, s31, {bl*REC + 2048}")
        k(f"s_add_u32 s24, s30, {bl*1024}")
        k(f"buffer_load_dwordx4 v1, s[8:11], s24 offen {SC} lds", "av")
    k("s_lshl_b32 s24, s18, 9")
    k(f"s_add_u32 m0, s24, {VR0}")
    k("s_mov_b32 exec_hi, 0")
    k(f"buffer_load_dwordx4 v10, s[8:11], s29 offen {SC} lds", "av")
    k("s_mov_b32 exec_hi, -1")
    k("WAITVM aq")
    k("s_waitcnt lgkmcnt(0)")
    k("s_barrier")
    for i in range(4):
        k(f"s_cmp_eq_u32 s7, {i}")
        k("s_cselect_b32 s24, 48, 32")
        k("v_cmp_gt_u32 vcc, s24, v254")
        for j in range(4): k(f"v_cndmask_b32 v{16+4*j+i}, 0, v{16+4*j+i}, vcc")
    M = ("mid", "mid")
    for ps in (1, 2):
        L = f"{N}_p{ps}"
        k.add(k.stamp(3 + ps))
        k("v_mov_b32 v2, v6")
        k("s_cmp_eq_u32 s17, 0")
        k(f"s_cbranch_scc1 {L}_q0")
        prologue(k, ("first", None), ps)
        iteration(k, (None, None), ("first", None), ("mid", "first"), ps)
        iteration(k, ("first", None), ("mid", "first"), M, ps)
        k("s_mov_b32 s34, 5")
        k(f"s_branch {L}_loop")
        k(f"{L}_q0:")
        k("s_cmp_eq_u32 s18, 0")
        k(f"s_cbranch_scc0 {L}_q0b")
        prologue(k, ("last", "mid"), ps)
        k(f"s_branch {L}_8")
        k(f"{L}_q0b:")
        prologue(k, M, ps)
        k("s_lshl_b32 s34, s18, 1")
        k("s_sub_u32 s34, s34, 1")
        k(f"{L}_loop:")
        iteration(k, M, M, M, ps)
        k("s_sub_u32 s34, s34, 1")
        k("s_cmp_lg_u32 s34, 0")
        k(f"s_cbranch_scc1 {L}_loop")
        iteration(k, M, M, ("last", "mid"), ps)
        k(f"{L}_8:")
        iteration(k, M, ("last", "mid"), (None, "last"), ps)
        iteration(k, ("last", "mid"), (None, "last"), None, ps)
        if ps == 1:
            k("s_waitcnt vmcnt(0) lgkmcnt(0)")
            k("s_barrier")
            if after_stage: after_stage(k)
            xreduce(k, [216, 217, 218, 219], [220, 221, 222, 223], op="v_max_f32")
            for p in range(2):
                for q in "AB":
                    for i in range(4):
                        k(f"v_sub_f32 v{NM(p,q)+i}, 0, v{MX(p,q)}")
                        k(f"v_sub_f32 v{CF(p,q)+i}, v{MO+i}, v{MX(p,q)}")
                        k(f"v_sub_f32 v{CL(p,q)+i}, v{MD+i}, v{MX(p,q)}")
    k("s_waitcnt lgkmcnt(0)")
    for n in range(4, 8): pv(k, n, (None, "last"))
    k.add(k.stamp(6))
    k("v_and_b32 v11, 1, v8")
    k("v_mul_u32_u24 v11, 18432, v11")
    k("v_lshl_add_u32 v11, v7, 4, v11")
    k("v_lshrrev_b32 v12, 1, v8")
    k("v_lshl_add_u32 v12, v12, 8, v11")
    k("s_mul_i32 s24, s26, 18432")
    k("s_lshl_b32 s25, s16, 9")
    k("s_add_u32 s25, s25, s24")
    k("s_lshr_b32 s27, s16, 2")
    k("s_lshl_b32 s27, s27, 8")
    k("s_lshl_b32 s28, s7, 2")
    k("s_add_u32 s27, s27, s28")
    k("s_add_u32 s27, s27, s24")
    k("s_add_u32 s27, s27, 16384")
    for p in range(2):
        for q in "AB": k(f"v_rcp_f32 v{80+qi(p,q)}, v{OR(p,q)+2}")
        for q in "AB":
            for i in range(4): k(f"v_mul_f32 v{OM(p,q)+i}, v{OM(p,q)+i}, v{80+qi(p,q)}")
            for i in range(2): k(f"v_mul_f32 v{OR(p,q)+i}, v{OR(p,q)+i}, v{80+qi(p,q)}")
        r = 88 + 8 * p
        for j, q in enumerate("AB"):
            k(f"v_cvt_pk_bf16_f32 v{r+2*j}, v{OM(p,q)}, v{OM(p,q)+1}")
            k(f"v_cvt_pk_bf16_f32 v{r+2*j+1}, v{OM(p,q)+2}, v{OM(p,q)+3}")
            k(f"v_cvt_pk_bf16_f32 v{r+4+j}, v{OR(p,q)}, v{OR(p,q)+1}")
        k(f"v_permlane16_swap_b32 v{r}, v{r+2}")
        k(f"v_permlane16_swap_b32 v{r+1}, v{r+3}")
        k(f"v_permlane16_swap_b32 v{r+4}, v{r+5}")
        k(f"buffer_store_dwordx4 {v4(r)}, v12, s[12:15], s25 offen {SC}")
        k("s_mov_b32 exec_hi, 0")
        k(f"buffer_store_dword v{r+4}, v11, s[12:15], s27 offen {SC}")
        k("s_mov_b32 exec_hi, -1")
        if p == 0:
            k("s_add_u32 s25, s25, 36864")
            k("s_add_u32 s27, s27, 36864")
```

```python
import sys
from asmgen import *
from layout import *
import k_prep

def finalize(k, entries, verbose=True):
    k.resolve_waits()
    added = k.fix_hazards()
    errs = []
    for e in entries:
        if getattr(k, "script", False):
            for wg in (0, 1, 77, 200, 255):
                for w in range(getattr(k, "nwaves", 4)): errs += k.check(e, f"{e}[wg{wg},w{w}]", sim=(wg, w))
            continue
        fw = list(dict.fromkeys(k.fwd_targets()))
        runs = [set()] + [{t} for t in fw if not t.endswith("_end")]
        extra = getattr(k, "extra_paths", [])
        for tk in getattr(k, 'only_paths', None) or (runs + extra):
            if tk in getattr(k, 'skip_paths', []): continue
            errs += k.check(e, e + str(sorted(tk)), taken=tk)
    errs = list(dict.fromkeys(errs))
    for x in errs[:40]: print("ERR", x)
    if verbose: print(entries, "instrs:", sum(1 for x in k.ins if x.kind not in ("label", "dir")), "nops added:", added, "errors:", len(errs))
    assert not errs

HEADER = open("interleave_layers__sliding_block__swiglu_ffn__prompt.s.ref").read().split("; Override launch")[0]

def build(parts, order, path):
    info = {}
    for k, launches, desc, entries in parts:
        finalize(k, entries)
        for l in launches: info[l[0]] = l
    out = HEADER
    for n in order:
        _, g, b, lds = info[n]
        out += f"; @launch kernel={n} grid=({g},1,1) block=({b},1,1) lds={lds}\n"
    out += '.amdgcn_target "amdgcn-amd-amdhsa--gfx950"\n.text\n'
    for i, (k, launches, desc, entries) in enumerate(parts):
        if i == 1: out += "code_mega:\n"
        out += k.text()
    out += "code_end:\n  s_endpgm\n"
    for k, launches, desc, entries in parts: out += desc
    open(path, "w").write(out)

if __name__ == "__main__":
    import os
    os.environ["NOSPLIT"] = "1"
    import k_mega
    parts = [k_prep.gen_prep(), k_mega.gen()]
    order = ["prep_kernel", "mega_kernel"]
    build(parts, order, sys.argv[1] if len(sys.argv) > 1 else "main.s")
```

```python
import re

TRANS = ("v_exp_f32", "v_log_f32", "v_rcp_f32", "v_rsq_f32", "v_sqrt_f32", "v_sin_f32", "v_cos_f32")

def regs_of(tok):
    tok = tok.strip()
    if tok.startswith("-"): tok = tok[1:]
    if tok.startswith("|") and tok.endswith("|"): tok = tok[1:-1]
    m = re.fullmatch(r"abs\((.*)\)", tok)
    if m: tok = m.group(1)
    m = re.fullmatch(r"([vas])(\d+)", tok)
    if m: return [tok]
    m = re.fullmatch(r"([vas])\[(\d+):(\d+)\]", tok)
    if m: return [f"{m.group(1)}{i}" for i in range(int(m.group(2)), int(m.group(3)) + 1)]
    if tok == "vcc": return ["vcc_lo", "vcc_hi"]
    if tok == "exec": return ["exec_lo", "exec_hi"]
    if tok in ("vcc_lo", "vcc_hi", "exec_lo", "exec_hi", "m0"): return [tok]
    return []

class Ins:
    __slots__ = ("text", "op", "ops", "dst", "src", "kind", "tag", "passes", "cregs", "abregs", "wide", "label", "target", "nop", "path")
    def __init__(self, text, tag=None, path=None):
        self.text = text; self.tag = tag; self.path = path
        self.label = None; self.target = None; self.nop = 0
        self.passes = 0; self.cregs = []; self.abregs = []; self.wide = False
        t = text.split(";")[0].strip()
        if t.endswith(":"):
            self.kind = "label"; self.label = t[:-1]; self.op = ""; self.ops = []; self.dst = []; self.src = []; return
        if t.startswith(".") or t == "":
            self.kind = "dir"; self.op = ""; self.ops = []; self.dst = []; self.src = []; return
        parts = t.split(None, 1)
        op = parts[0]; rest = parts[1] if len(parts) > 1 else ""
        self.op = op
        ops = [o.strip() for o in re.split(r",(?![^\[]*\])(?![^(]*\))", rest)] if rest else []
        mods = ""
        if ops:
            last = ops[-1].split(None, 1)
            if len(last) > 1 and not op.startswith("s_waitcnt"):
                ops[-1] = last[0]; mods = last[1]
        self.ops = ops
        R = [regs_of(o) for o in ops]
        flat = lambda l: [x for y in l for x in y]
        if op in ("WAITVM", "WAITLG"):
            self.kind = "pwait"; self.dst = []; self.src = []
        elif op.startswith("v_mfma"):
            self.kind = "mfma"; self.dst = R[0]; self.abregs = R[1] + R[2]; self.cregs = R[3]; self.src = self.abregs + self.cregs
            self.passes = 8 if "32x32" in op else 4
        elif op.startswith("v_"):
            self.kind = "valu"
            b = re.sub(r"_(e32|e64|dpp|sdwa)$", "", op)
            if b.startswith("v_permlane") and "swap" in b:
                self.dst = R[0] + R[1]; self.src = R[0] + R[1]
            elif b in ("v_add_co_u32", "v_sub_co_u32", "v_subrev_co_u32", "v_addc_co_u32", "v_subb_co_u32"):
                self.dst = R[0] + R[1]; self.src = flat(R[2:])
            else:
                self.dst = R[0]; self.src = flat(R[1:])
                if b in ("v_fmac_f32", "v_dot2c_f32_bf16", "v_writelane_b32") or "dpp" in op or "row_" in mods or "quad_perm" in mods:
                    self.src = self.src + R[0]
        elif op.startswith("buffer_load") or op.startswith("global_load"):
            if " lds" in " " + mods + " " or "_lds_" in op:
                self.kind = "dma"; self.dst = []; self.src = flat(R) + ["m0"]
            else:
                self.kind = "vload"; self.dst = R[0]; self.src = flat(R[1:])
        elif op.startswith("buffer_store") or op.startswith("global_store"):
            self.kind = "vstore"; self.dst = []; self.src = flat(R)
            self.wide = op.endswith("x4") or op.endswith("x3")
            self.cregs = R[0] if op.startswith("buffer") else R[1]
        elif op.startswith("buffer_atomic") or op.startswith("global_atomic"):
            self.kind = "vstore"; self.dst = []; self.src = flat(R)
            if "sc0" in mods: self.kind = "vload"; self.dst = R[0]
        elif op.startswith("buffer_wbl2") or op.startswith("buffer_inv"):
            self.kind = "vstore"; self.dst = []; self.src = []
        elif op.startswith("ds_read") or op.startswith("ds_bpermute") or op.startswith("ds_swizzle"):
            self.kind = "dsread"; self.dst = R[0]; self.src = flat(R[1:])
        elif op.startswith("ds_write"):
            self.kind = "dswrite"; self.dst = []; self.src = flat(R)
        elif op.startswith("s_load") or op in ("s_memtime", "s_memrealtime"):
            self.kind = "smem"; self.dst = R[0]; self.src = flat(R[1:])
        elif op == "s_waitcnt":
            self.kind = "wait"; self.dst = []; self.src = []
        elif op == "s_nop":
            self.kind = "nop"; self.nop = int(ops[0], 0); self.dst = []; self.src = []
        elif op in ("s_branch",) or op.startswith("s_cbranch"):
            self.kind = "branch"; self.target = ops[0]; self.dst = []; self.src = []
        elif op in ("s_barrier", "s_endpgm", "s_setprio", "s_sleep"):
            self.kind = "misc"; self.dst = []; self.src = []
        elif op.startswith("s_cmp") or op.startswith("s_bitcmp"):
            self.kind = "salu"; self.dst = []; self.src = flat(R)
        elif op.startswith("s_"):
            self.kind = "salu"; self.dst = R[0]; self.src = flat(R[1:])
            if "saveexec" in op: self.dst = self.dst + ["exec_lo", "exec_hi"]
        else:
            raise ValueError("unknown instruction: " + text)

def need_states(st, ins):
    need = 0
    def req(t, n):
        nonlocal need
        if t is not None: need = max(need, t + n + 1)
    k = ins.kind
    b = re.sub(r"_(e32|e64|dpp|sdwa)$", "", ins.op)
    if k == "mfma":
        for r in ins.src: req(st["valu_w"].get(r), 2)
        for r in ins.abregs:
            e = st["mfma_w"].get(r)
            if e: req(e[0], 8 if e[1] == 4 else 12)
        for r in ins.cregs:
            e = st["mfma_w"].get(r)
            if e and not (e[2] == tuple(ins.cregs) and e[1] == ins.passes): req(e[0], 6 if e[1] == 4 else 10)
        req(st.get("valu_exec"), 4)
    if k in ("valu", "vload", "vstore", "dma", "dsread", "dswrite"):
        for r in ins.src + ins.dst:
            e = st["mfma_w"].get(r)
            if e: req(e[0], 8 if e[1] == 4 else 12)
    if k == "valu":
        for r in ins.dst:
            e = st["mfma_c"].get(r)
            if e: req(e[0], 3 if e[1] == 4 else 7)
            req(st["store_d"].get(r), 2)
        if b not in TRANS:
            for r in ins.src: req(st["trans_w"].get(r), 1)
        if b.startswith("v_permlane") or "dpp" in ins.op or "row_" in ins.text or "quad_perm" in ins.text:
            for r in ins.src: req(st["valu_w"].get(r), 2)
        if b in ("v_readlane_b32", "v_readfirstlane_b32"):
            for r in ins.src:
                if r[0] == "v" and r[1].isdigit(): req(st["valu_w"].get(r), 1)
        for r in ins.src:
            if r[0] == "s" or r.startswith("vcc"):
                req(st["valu_sw"].get(r), 4 if b in ("v_readlane_b32", "v_writelane_b32") else 2)
    if k in ("valu", "mfma", "vstore", "vload", "dma", "dsread", "dswrite"):
        for r in ins.src + ins.dst:
            e = st["dot_w"].get(r)
            if e:
                if e[1] == b and r in ins.dst and not (r in regs_of(ins.ops[1]) + regs_of(ins.ops[2])): pass
                else: req(e[0], 3)
    if k in ("vload", "dsread"):
        for r in ins.dst: req(st["store_d"].get(r), 1)
    if k in ("vload", "vstore", "dma"):
        for r in ins.src:
            if r[0] == "s": req(st["valu_sw"].get(r), 5)
    if k == "salu":
        for r in ins.src:
            if r[0] == "s" or r.startswith("vcc"): req(st["valu_sw"].get(r), 1)
    if k == "dma": req(st.get("m0_w"), 1)
    return need

def new_state():
    return {"valu_w": {}, "mfma_w": {}, "mfma_c": {}, "trans_w": {}, "valu_sw": {}, "store_d": {}, "dot_w": {}}

def update(st, ins, t):
    k = ins.kind
    b = re.sub(r"_(e32|e64|dpp|sdwa)$", "", ins.op)
    if k == "valu":
        for r in ins.dst:
            if (r[0] in "va" and r[1].isdigit()):
                st["valu_w"][r] = t
                st["mfma_w"].pop(r, None)
                if b in TRANS: st["trans_w"][r] = t
                else: st["trans_w"].pop(r, None)
                if b.startswith("v_dot"): st["dot_w"][r] = (t, b)
                else: st["dot_w"].pop(r, None)
            else:
                st["valu_sw"][r] = t
                if r.startswith("exec"): st["valu_exec"] = t
    elif k == "mfma":
        for r in ins.dst:
            st["mfma_w"][r] = (t, ins.passes, tuple(ins.dst)); st["valu_w"].pop(r, None); st["trans_w"].pop(r, None)
        for r in ins.cregs: st["mfma_c"][r] = (t, ins.passes)
    elif k == "vstore" and ins.wide:
        for r in ins.cregs: st["store_d"][r] = t
    elif k in ("vload", "dsread"):
        for r in ins.dst:
            st["valu_w"].pop(r, None); st["mfma_w"].pop(r, None); st["trans_w"].pop(r, None)
    elif k == "salu":
        for r in ins.dst:
            st["valu_sw"].pop(r, None)
            if r == "m0": st["m0_w"] = t

class Kern:
    def __init__(self):
        self.ins = []
        self.path = None
    def __call__(self, text, tag=None):
        for line in text.strip().split("\n"):
            line = line.strip()
            if line: self.ins.append(Ins(line, tag, self.path))
    def add(self, lst):
        for x in lst:
            if isinstance(x, Ins): x.path = self.path; self.ins.append(x)
            elif isinstance(x, tuple): self(x[0], x[1])
            else: self(x)

    def stamp(self, n):
        import os
        if os.environ.get("STAMPS", "") != getattr(self, "name", None): return []
        L = [f"{'s_memrealtime' if os.environ.get('RT') else 's_memtime'} s[{64+2*n}:{65+2*n}]"]
        L.append("s_waitcnt lgkmcnt(0)")
        return L
    def stamp_out(self, wsptr=4, nwaves=4):
        import os
        if os.environ.get("STAMPS", "") != getattr(self, "name", None): return
        k = self
        k("s_waitcnt vmcnt(0) lgkmcnt(0)")
        k("s_memrealtime s[90:91]" if os.environ.get('RT') else "s_memtime s[90:91]")
        k("s_waitcnt lgkmcnt(0)")
        k("s_mov_b64 exec, 1")
        for n in range(14): k(f"v_mov_b32 v{16+n}, s{64+2*n}")
        k("v_mov_b32 v30, 0"); k("v_mov_b32 v31, 0")
        k(f"s_add_u32 s60, s{wsptr}, {128<<20}"); k(f"s_addc_u32 s61, s{wsptr+1}, 0"); k("s_and_b32 s61, s61, 0xffff")
        k("s_mov_b32 s62, 0x100000"); k("s_mov_b32 s63, 0x20000")
        k("s_lshl_b32 s59, s2, 3"); k("s_add_u32 s59, s59, s18"); k("s_lshl_b32 s59, s59, 6")
        k("v_mov_b32 v15, 0")
        for q in range(4): k(f"buffer_store_dwordx4 v[{16+4*q}:{19+4*q}], v15, s[60:63], s59 offen offset:{16*q}")

    def resolve_waits(self):
        out = []
        for i, x in enumerate(self.ins):
            if x.kind != "pwait":
                out.append(x); continue
            tags = set(x.ops)
            cls = ("vload", "vstore", "dma") if x.op == "WAITVM" else ("dsread", "dswrite", "smem")
            n = 0; found = False
            for y in reversed(self.ins[:i]):
                if y.path is not None and y.path != x.path: continue
                if y.kind == "wait" and (("vmcnt(0)" in y.text) if x.op == "WAITVM" else ("lgkmcnt(0)" in y.text)):
                    found = True; n = None; break
                if y.kind in cls:
                    if y.tag in tags: found = True; break
                    assert y.kind != "smem", "smem inside counted lgkm window"
                    n += 1
            assert found, f"wait tag {tags} not found"
            if n is None: continue
            if x.op == "WAITVM":
                if n >= 63: continue
                out.append(Ins(f"s_waitcnt vmcnt({n})"))
            else:
                n = min(n, 15)
                out.append(Ins(f"s_waitcnt lgkmcnt({n})"))
        self.ins = out

    def fix_hazards(self):
        st = new_state(); t = 0; out = []; added = 0
        for x in self.ins:
            if x.kind in ("label", "dir"):
                out.append(x); continue
            n = need_states(st, x)
            if n > t:
                k = n - t
                out.append(Ins(f"s_nop {k-1}")); added += k; t += k
            update(st, x, t)
            t += x.nop + 1
            out.append(x)
        self.ins = out
        return added

    def check(self, entry, name="", taken=None, maxloop=2, sim=None):
        idx = {x.label: i for i, x in enumerate(self.ins) if x.kind == "label"}
        taken = taken or set()
        st = new_state(); t = 0; i = idx[entry]; vm = []; lg = []; cnt = {}; errs = []
        pend = {}
        sv = {"s2": sim[0]} if sim else None; scc = None; steps = 0
        def val(tok):
            if re.fullmatch(r"s\d+|m0", tok): return sv.get(tok)
            try: return int(tok, 0) & 0xffffffff
            except ValueError: return None
        while i < len(self.ins):
            x = self.ins[i]
            steps += 1; assert steps < 400000
            if sim and x.kind in ("salu", "valu", "smem"):
                o = x.ops
                if x.op == "v_readfirstlane_b32": sv[o[0]] = sim[1] if o[0] == "s18" else None
                elif x.kind == "salu" and x.op.startswith("s_cmp_") and x.op.endswith("_u32"):
                    a, b = val(o[0]), val(o[1])
                    scc = None if a is None or b is None else {"eq": a == b, "lg": a != b, "ge": a >= b, "lt": a < b, "gt": a > b, "le": a <= b}[x.op.split("_")[2]]
                elif x.op == "s_mov_b32": sv[o[0]] = val(o[1])
                elif x.op == "s_cselect_b32": sv[o[0]] = None if scc is None else val(o[1] if scc else o[2])
                elif x.op in ("s_add_u32", "s_sub_u32", "s_mul_i32", "s_and_b32", "s_lshl_b32", "s_lshr_b32"):
                    a, b = val(o[1]), val(o[2])
                    r = None if a is None or b is None else {"s_add_u32": lambda: a + b, "s_sub_u32": lambda: a - b, "s_mul_i32": lambda: a * b,
                        "s_and_b32": lambda: a & b, "s_lshl_b32": lambda: a << (b & 31), "s_lshr_b32": lambda: a >> (b & 31)}[x.op]() & 0xffffffff
                    sv[o[0]] = r
                    if x.op != "s_mul_i32": scc = None
                else:
                    for r in x.dst: sv[r] = None
                    if x.kind == "salu" and x.op not in ("s_mov_b64",): scc = None
            if x.kind in ("label", "dir"): i += 1; continue
            n = need_states(st, x)
            if n > t: errs.append(f"{name}: hazard short by {n-t} at [{i}] {x.text}")
            for r in x.src + x.dst:
                if r in pend: errs.append(f"{name}: reg {r} still pending ({pend[r]}) at [{i}] {x.text}")
            if x.kind == "wait":
                m = re.search(r"vmcnt\((\d+)\)", x.text)
                if m:
                    while len(vm) > int(m.group(1)):
                        for r in vm.pop(0): pend.pop(r, None)
                m = re.search(r"lgkmcnt\((\d+)\)", x.text)
                if m:
                    nn = int(m.group(1))
                    if nn > 0 and any(e[1] for e in lg): errs.append(f"{name}: counted lgkm wait with smem outstanding [{i}]")
                    while len(lg) > nn:
                        for r in lg.pop(0)[0]: pend.pop(r, None)
            elif x.kind in ("vload", "vstore", "dma"):
                vm.append(list(x.dst))
                for r in x.dst: pend[r] = x.text
                while len(vm) > 63:
                    for r in vm.pop(0): pend.pop(r, None)
            elif x.kind in ("dsread", "dswrite", "smem"):
                lg.append((list(x.dst), x.kind == "smem"))
                for r in x.dst: pend[r] = x.text
                if len(lg) > 15 and not getattr(self, "_lgwarn", False):
                    print(f"note {name}: >15 lgkm ops outstanding at [{i}] {x.text}"); self._lgwarn = True
            update(st, x, t)
            t += x.nop + 1
            if x.op == "s_endpgm": break
            if x.kind == "branch":
                j = idx[x.target]
                if x.op == "s_branch":
                    if j <= i:
                        cnt[i] = cnt.get(i, 0) + 1
                        if cnt[i] > 1 and not sim: break
                        if sim and x.target.endswith("_wl") and cnt[i] % 2 == 0: i += 1; continue
                    i = j; continue
                if sim and x.target.endswith("_wl"):
                    cnt[i] = cnt.get(i, 0) + 1
                    i = j if cnt[i] % 2 else i + 1
                    continue
                if sim and scc is None and x.target.endswith("_wd"):
                    cnt["wd"] = cnt.get("wd", 0) + 1
                    if (cnt["wd"] + sim[0]) % 5 == 0: i = j; continue
                if sim and scc is not None and x.op in ("s_cbranch_scc0", "s_cbranch_scc1"):
                    if scc == (x.op == "s_cbranch_scc1"): i = j
                    else: i += 1
                    continue
                if j <= i:
                    cnt[i] = cnt.get(i, 0) + 1
                    if cnt[i] < maxloop: i = j; continue
                elif x.target in taken or (i in taken):
                    i = j; continue
            i += 1
        return errs

    def fwd_targets(self):
        idx = {x.label: i for i, x in enumerate(self.ins) if x.kind == "label"}
        return [x.target for i, x in enumerate(self.ins) if x.kind == "branch" and x.op != "s_branch" and idx.get(x.target, -1) > i]

    def text(self):
        return "\n".join(("" if x.kind in ("label", "dir") else "  ") + x.text for x in self.ins) + "\n"

def interleave(main, fill, per_slot=2.0, start=0):
    out = []; budget = 0.0; fi = 0
    for s, item in enumerate(main):
        out.extend(item)
        budget += per_slot - (len(item) - 1)
        while fi < len(fill) and fill[fi][2] <= s + start and budget >= fill[fi][0] - 1e-9:
            out.append(fill[fi][1]); budget -= fill[fi][0]; fi += 1
        budget = min(budget, per_slot)
    return out, fill[fi:]

def descriptor(name, vgprs, agprs, sgprs=96):
    acc = (vgprs + 3) // 4 * 4
    nfv = acc + agprs if agprs else vgprs
    return f""".section .rodata,"a"
.p2align 6
.amdhsa_kernel {name}
  .amdhsa_next_free_vgpr {nfv}
  .amdhsa_next_free_sgpr {sgprs}
  .amdhsa_accum_offset {acc}
  .amdhsa_group_segment_fixed_size 0
  .amdhsa_kernarg_size 80
  .amdhsa_user_sgpr_count 2
  .amdhsa_user_sgpr_kernarg_segment_ptr 1
  .amdhsa_system_sgpr_workgroup_id_x 1
  .amdhsa_float_denorm_mode_32 3
.end_amdhsa_kernel
.text
"""

def unit_cost(x):
    if x.kind in ("salu", "wait", "pwait", "misc", "nop", "smem", "branch"): return 0
    if x.kind == "valu":
        b = re.sub(r"_(e32|e64)$", "", x.op)
        return 2 if (b in TRANS or b.startswith("v_permlane")) else 1
    if x.kind in ("dsread", "dswrite"): return 1
    if x.kind in ("dma", "vload"): return 2
    if x.kind == "vstore": return 0
    return 0

class Bundle:
    def __init__(self, items): self.items = [as_ins(x) for x in items]

def as_ins(x):
    if isinstance(x, Ins): return x
    if isinstance(x, tuple): return Ins(x[0], x[1])
    return Ins(x)

def depends(a, b):
    if a.kind in ("pwait", "wait") or b.kind in ("pwait", "wait"): return True
    if a.kind in ("vstore", "vload", "dma") and b.kind in ("vstore", "vload", "dma"): return True
    if a.kind in ("dsread", "dswrite") and b.kind in ("dsread", "dswrite"): return True
    sa, da, sb, db = set(a.src), set(a.dst), set(b.src), set(b.dst)
    return bool(da & sb or da & db or sa & db)

def pack(k, mfmas, fixed, flow, units=2, window=24, st=None, t0=0):
    st = st or new_state(); t = t0
    flow = [(as_ins(a), g) for a, g in flow]
    over = 0
    def emit(x):
        nonlocal t
        n = need_states(st, x)
        if n > t: t = n
        if x.kind not in ("label", "dir"): update(st, x, t); t += x.nop + 1
        x.path = k.path
        k.ins.append(x)
    for i, m in enumerate(mfmas):
        emit(as_ins(m))
        bnd = [x for x in fixed.get(i, []) if isinstance(x, Bundle)]
        fx = [as_ins(x) for x in fixed.get(i, []) if not isinstance(x, Bundle)]
        sc = [x for x in fx if unit_cost(x) == 0 and x.kind != "vstore"]
        ve = [x for x in fx if x not in sc]
        left = units - sum(unit_cost(x) for x in ve) - max(0, len(sc) - 1) - (units if bnd else 0)
        nsc = len(sc)
        chosen = []
        j = 0
        while j < min(len(flow), window):
            x, g = flow[j]
            if g > i: break
            c = unit_cost(x); isc = (c == 0 and x.kind != "vstore")
            ok = all(not depends(flow[q][0], x) for q in range(j))
            if ok and isc:
                ok = nsc == 0 and not chosen_dep(chosen, x)
            if ok and not isc:
                ok = c <= left
                if ok and x.kind in ("dsread",) and any(y.kind == "valu" for y in chosen + ve): ok = False
            if ok:
                tt = t + nsc + len(ve) + len(chosen)
                stc = st
                if need_states(stc, x) > tt: ok = False
                for y in chosen:
                    if depends(y, x) and (set(y.dst) & set(x.src)):
                        by = re.sub(r"_(e32|e64)$", "", y.op)
                        if by in TRANS or x.op.startswith("v_permlane") or y.kind == "dsread": ok = False
            if ok:
                chosen.append(x); flow.pop(j)
                if isc: nsc += 1
                else: left -= c
                continue
            j += 1
        csc = [x for x in chosen if unit_cost(x) == 0 and x.kind != "vstore"]
        cve = [x for x in chosen if x not in csc]
        for x in sc + csc: emit(x)
        ds = [x for x in ve + cve if x.kind == "dsread"]
        rest = [x for x in ve + cve if x.kind != "dsread"]
        if len(rest) == 2 and rest[1].op.startswith("v_cvt_pk") and not depends(rest[0], rest[1]): rest = [rest[1], rest[0]]
        for x in ds + rest: emit(x)
        for b_ in bnd:
            for x in b_.items: emit(x)
        if left < 0: over += -left
    return [x for x, g in flow], over

def chosen_dep(chosen, x):
    return any(depends(y, x) for y in chosen)
```

```python
from asmgen import *
from layout import *
from k_prep import srd, entry, xreduce
from k_qkv import load_stats, finish_stats, f2u, QSCALE
import k_gemmk as G
import k_ffn1 as F1
import m_attn as AT
import m_pack as PK
import m_qkv0 as Q0
from k_prep import code_prefetch
import math, os

GRID = 256
INPACK = True
KNAME = 'interleave_layers__sliding_block__swiglu_ffn__prompt_kernel'
SC = "sc1"
LDS = 39 * 4096 + 1024 + 576
SPIN = 150000
SLEEP = int(os.environ.get('SLEEP', '0'))
def v4(r): return f"v[{r}:{r+3}]"
def a4(r): return f"a[{r}:{r+3}]"

def signal(k, so, nvm, lab):
    k(f"s_waitcnt vmcnt({nvm})")
    k("s_barrier")
    k("s_cmp_lg_u32 s18, 0")
    k(f"s_cbranch_scc1 {lab}_sg")
    k("s_mov_b64 exec, 1")
    k(f"buffer_store_dword v253, v252, s[96:99], s{so} offen {SC}")
    k("s_mov_b64 exec, -1")
    k(f"{lab}_sg:")

def wait_flags(k, so, n, lab, skip_if=None, keep=0):
    k("s_cmp_lg_u32 s18, 0")
    k(f"s_cbranch_scc1 {lab}_wn")
    if skip_if:
        k(f"s_cmp_eq_u32 {skip_if}, 0")
        k(f"s_cbranch_scc1 {lab}_wn")
    if n:
        k(f"v_min_u32 v255, {n-1}, v254")
        k("v_lshlrev_b32 v255, 7, v255")
    k(f"s_mov_b32 s3, {SPIN}")
    ld = lambda r: k(f"buffer_load_dword v{r}, v255, s[96:99], s{so} offen {SC}")
    ld(249); k("s_sleep 2"); ld(250); k("s_sleep 2")
    k(f"{lab}_wl:")
    for r, nx in ((249, 251), (250, 249), (251, 250)):
        ld(nx)
        k("s_waitcnt vmcnt(2)")
        k(f"v_cmp_ne_u32 vcc, v253, v{r}")
        k("s_nop 1")
        k("s_cmp_eq_u64 vcc, 0")
        k(f"s_cbranch_scc1 {lab}_wd")
    k("s_sub_u32 s3, s3, 1")
    k("s_cmp_lg_u32 s3, 0")
    k(f"s_cbranch_scc1 {lab}_wl")
    k(f"{lab}_wn:")
    k(f"s_waitcnt vmcnt({keep})")
    k(f"{lab}_wd:")
    k("s_barrier")

def gk_loads(s, part, half=None):
    L = [t for _, t in G.loads(s, half)]
    if part == "w": L = [t for t in L if "s[12:15]" in t]
    if part == "h": L = [t for t in L if "s[8:11]" in t]
    return L

def gk_tail(k):
    acc = G.acc; ACC = G.ACC; T = G.T; RES = G.RES; b0 = 68; ZA = 49152
    k("v_mov_b32 v20, 0")
    k("v_mov_b32 v21, 0")
    k("v_mov_b32 v22, 0xffff0000")
    k("v_mov_b32 v23, 0x3f803f80")
    FT = os.environ.get("FT")
    if FT: k.add(k.stamp(1))
    k("s_waitcnt vmcnt(0)")
    if FT: k.add(k.stamp(2))
    mf = []; flow = []
    for ks in range(2):
        for tb in range(4): mf.append(f"v_mfma_f32_16x16x32_bf16 {v4(acc(tb, 4+ks))}, {a4(b0+48)}, {a4(b0+(16, 52)[ks]+4*tb)}, {v4(acc(tb, 4+ks))}")
    for p in range(2):
        for i in range(4):
            flow.append((f"v_permlane32_swap_b32 v{acc(2*p,4)+i}, v{acc(2*p+1,4)+i}", 8))
            flow.append((f"v_permlane32_swap_b32 v{acc(2*p,5)+i}, v{acc(2*p+1,5)+i}", 8))
            flow.append((f"v_add_f32 v{acc(2*p,4)+i}, v{acc(2*p,4)+i}, v{acc(2*p+1,5)+i}", 8))
        flow.append((f"ds_write_b128 v{14+p}, {v4(acc(2*p,4))} offset:{ZA}", 8))
    fixed = {}
    for b in range(4):
        for ks in range(2):
            for tb in (1, 2, 3, 0):
                mf.append(f"v_mfma_f32_16x16x32_bf16 {v4(acc(tb, b))}, {a4(b0+32*ks+4*b)}, {a4(b0+(16, 52)[ks]+4*tb)}, {v4(acc(tb, b))}")
        for j in range(1, 4):
            fixed.setdefault(len(mf) + j, []).append(f"ds_write_b128 v{25+j}, {v4(acc(j, b))} offset:{b*1024}")
    late = [x for g in sorted(fixed) if g >= len(mf) for x in fixed[g]]
    left, over = pack(k, mf, fixed, flow)
    k.add(left); k.add(late)
    k("s_waitcnt lgkmcnt(0)")
    if FT: k.add(k.stamp(3))
    k("s_barrier")
    if FT: k.add(k.stamp(4))
    Z = acc(1, 0)
    for b in range(4):
        for ss in range(3): k(f"ds_read_b128 {v4(T+4*(b*3+ss))}, v19 offset:{(ss*4+b)*1024}", f"r{b}")
        if b == 1:
            for h in range(2): k(f"ds_read_b128 {v4(Z+4*h)}, v29 offset:{ZA + h*1024}", "z")
    def v2(r): return f"v[{r}:{r+1}]"
    def summ(b):
        F = acc(0, b)
        k(f"WAITLG r{b}")
        for i in (0, 2):
            k(f"v_pk_add_f32 {v2(F+i)}, {v2(F+i)}, {v2(T+12*b+i)}")
            k(f"v_pk_add_f32 {v2(T+12*b+4+i)}, {v2(T+12*b+4+i)}, {v2(T+12*b+8+i)}")
        for i in (0, 2): k(f"v_pk_add_f32 {v2(F+i)}, {v2(F+i)}, {v2(T+12*b+4+i)}")
    def finish(x, y, res, pk, va, so, u):
        for q in range(4):
            k(f"v_lshlrev_b32 v{u+2*q}, 16, v{res+q}")
            k(f"v_and_b32 v{u+2*q+1}, v22, v{res+q}")
        for q in range(4):
            r = (x, x + 2, y, y + 2)[q]
            k(f"v_pk_add_f32 {v2(r)}, {v2(r)}, {v2(u+2*q)}")
        for q in range(4):
            r = (x, x + 2, y, y + 2)[q]
            k(f"v_cvt_pk_bf16_f32 v{pk+q}, v{r}, v{r+1}")
        k(f"buffer_store_dwordx4 {v4(pk)}, v{va}, s[36:39], s{so} offen {SC}")
    PK = acc(2, 0); U = acc(3, 0)
    for pr in range(2):
        summ(2 * pr); summ(2 * pr + 1)
        x, y = acc(0, 2 * pr), acc(0, 2 * pr + 1)
        for i in range(4): k(f"v_permlane16_swap_b32 v{x+i}, v{y+i}")
        finish(x, y, RES + 4 * pr, PK + 4 * pr, 16, 48 + pr, U)
    if FT: k.add(k.stamp(5))
    for i in (0, 2): k(f"v_pk_add_f32 {v2(Z+i)}, {v2(Z+i)}, {v2(Z+4+i)}")
    for i in range(4): k(f"v_mov_b32 v{Z+4+i}, v{Z+i}")
    for i in range(4): k(f"v_permlane32_swap_b32 v{Z+i}, v{Z+4+i}")
    for i in (0, 2): k(f"v_pk_add_f32 {v2(Z+i)}, {v2(Z+i)}, {v2(Z+4+i)}")
    for i in range(4): k(f"v_mov_b32 v{Z+4+i}, v{Z+i}")
    for i in range(4): k(f"v_permlane16_swap_b32 v{Z+i}, v{Z+4+i}")
    k("s_mov_b64 exec, 0xffff")
    finish(Z, Z + 4, RES + 8, PK + 8, 17, 50, U)
    for q in range(8, 12):
        k(f"v_dot2c_f32_bf16 v20, v{PK+q}, v23")
        k(f"v_dot2c_f32_bf16 v21, v{PK+q}, v{PK+q}")
    k("s_mov_b64 exec, -1")
    for q in range(8):
        k(f"v_dot2c_f32_bf16 v20, v{PK+q}, v23")
        k(f"v_dot2c_f32_bf16 v21, v{PK+q}, v{PK+q}")
    xreduce(k, [20, 21], [24, 25])
    k("s_mov_b64 exec, 0xffff")
    k(f"buffer_store_dwordx2 v[20:21], v18, s[24:27], s51 offen {SC}")
    k("s_mov_b64 exec, -1")
    if FT: k.add(k.stamp(6))

def emit_gk(k):
    N = "gk"; acc = G.acc; ACC = G.ACC; F = G.F; T = G.T; RES = G.RES
    G.NTH = SC
    k(f"{N}_main:")
    k("s_cmp_eq_u32 s55, 0")
    k(f"s_mov_b32 s40, {HH}"); k(f"s_cselect_b32 s40, {OO}, s40")
    k(f"s_mov_b32 s41, {576*256}"); k(f"s_cselect_b32 s41, {72*256}, s41")
    k(f"s_mov_b32 s42, {WD}"); k(f"s_cselect_b32 s42, {WO}, s42")
    k(f"s_mov_b32 s14, {72*9216}"); k(f"s_cselect_b32 s14, {9*9216}, s14")
    k("s_cselect_b32 s23, 2, 18")
    k("s_cselect_b32 s53, s18, 2")
    k("s_and_b32 s20, s2, 7")
    k("s_lshr_b32 s21, s2, 3")
    k("s_lshr_b32 s16, s20, 1")
    k("s_lshl_b32 s16, s16, 3")
    k("s_lshr_b32 s22, s21, 2")
    k("s_add_u32 s16, s16, s22")
    k("s_and_b32 s17, s20, 1")
    k("s_lshl_b32 s17, s17, 2")
    k("s_and_b32 s22, s21, 3")
    k("s_add_u32 s17, s17, s22")
    k("v_add_u32 v2, 4096, v1")
    k("v_add_u32 v3, 8192, v1")
    for j in range(4):
        k(f"s_add_u32 s22, s18, {j}")
        k("s_and_b32 s22, s22, 3")
        k("s_mul_i32 s22, s22, s41")
        k(f"v_add_u32 v{4+j}, s22, v1")
    k("s_lshl_b32 s10, s41, 2")
    k("s_mul_i32 s21, s10, s16")
    k("s_add_u32 s21, s21, s40")
    k("s_mul_i32 s22, s14, s17")
    k("s_add_u32 s22, s22, s42")
    k("s_mov_b32 s11, 0x20000")
    k("s_mov_b32 s15, 0x20000")
    k("s_mul_i32 s20, s18, s23")
    k("s_add_u32 s8, s100, s21"); k("s_addc_u32 s9, s101, 0"); k("s_and_b32 s9, s9, 0xffff")
    k("s_add_u32 s12, s4, s22"); k("s_addc_u32 s13, s5, 0"); k("s_and_b32 s13, s13, 0xffff")
    def setup2():
        k("s_cmp_eq_u32 s55, 0")
        k(f"s_cselect_b32 s44, {XIN}, {X1}")
        k(f"s_mov_b32 s45, {ST2}"); k(f"s_cselect_b32 s45, {ST1}, s45")
        k(f"s_mov_b32 s52, {X2}"); k(f"s_cselect_b32 s52, {X1}, s52")
        k("s_add_u32 s24, s100, s44"); k("s_addc_u32 s25, s101, 0")
        k("s_or_b32 s3, s54, s55")
        k("s_cmp_eq_u32 s3, 0")
        k("s_cselect_b32 s24, s94, s24"); k("s_cselect_b32 s25, s95, s25")
        k("s_cselect_b32 s46, 16, 256")
        k("s_cselect_b32 s47, 1152, 16")
        k("s_and_b32 s25, s25, 0xffff"); k(f"s_mov_b32 s26, {XSZ}"); k("s_mov_b32 s27, 0x20000")
        k("v_and_b32 v10, 15, v254")
        k("v_bfe_u32 v12, v254, 4, 1")
        k("v_lshrrev_b32 v13, 5, v254")
        k("v_lshl_add_u32 v12, v12, 1, v13")
        k("v_mul_lo_u32 v17, v10, s47")
        k("v_mul_lo_u32 v16, v12, s46")
        k("v_add_u32 v16, v16, v17")
        k("s_lshl_b32 s30, s16, 2")
        k("s_add_u32 s30, s30, s18")
        k("s_mul_i32 s31, s30, 18432")
        k("s_mul_i32 s32, s17, 9")
        k("s_mul_i32 s33, s32, s46")
        k("s_add_u32 s33, s33, s31")
        k("s_lshl_b32 s3, s46, 2")
        k("s_add_u32 s48, s33, s3")
        k("s_add_u32 s49, s48, s3")
    def resid():
        k(f"buffer_load_dwordx4 {v4(RES)}, v16, s[24:27], s33 offen {SC}")
        k(f"buffer_load_dwordx4 {v4(RES+4)}, v16, s[24:27], s48 offen {SC}")
        k(f"buffer_load_dwordx4 {v4(RES+8)}, v17, s[24:27], s49 offen {SC}")
    def zero():
        for r in range(ACC, ACC + 96): k(f"v_mov_b32 v{r}, 0")
    k("s_mul_i32 s28, s20, 9216")
    k("s_lshl_b32 s29, s20, 11")
    k("s_mov_b32 s34, s28")
    for t in gk_loads(0, "w"): k(t)
    FH = os.environ.get("FH")
    def cst(n, kind):
        if not FH: return
        k(f"s_cmp_eq_u32 s55, {kind}")
        k(f"s_cbranch_scc0 fh{n}")
        k.add(k.stamp(n))
        k(f"fh{n}:")
    cst(1, 0); cst(8, 1)
    signal(k, 58, 9, "gk")
    cst(2, 0); cst(9, 1)
    k("s_or_b32 s3, s54, s55")
    k("s_cmp_lg_u32 s3, 0")
    k(f"s_cbranch_scc1 {N}_nopk")
    k(f"s_cmp_ge_u32 s50, {PK.J_END}")
    k(f"s_cbranch_scc1 {N}_nopk")
    PK.finish(k, "pa")
    k(f"{N}_nopk:")
    k.add(k.stamp(7)) if False else None
    k("s_add_u32 s34, s34, 9216")
    for t in gk_loads(1, "w"): k(t)
    k(f"s_mov_b32 s34, {8*9216}")
    for hf in range(2):
        k(f"s_cmp_eq_u32 s53, {hf}")
        k(f"s_cbranch_scc0 {N}_lw{hf}")
        for t in gk_loads(2, "w", hf): k(t)
        k(f"{N}_lw{hf}:")
    setup2()
    k("s_or_b32 s3, s54, s55")
    k("s_cmp_lg_u32 s3, 0")
    k(f"s_cbranch_scc1 {N}_r0")
    resid()
    k(f"{N}_r0:")
    zero()
    k("s_lshr_b32 s58, s16, 2")
    k("s_lshl_b32 s58, s58, 12")
    k("s_lshl_b32 s3, s55, 1")
    k("s_add_u32 s3, s3, 1")
    k(f"s_mul_i32 s3, s3, {FLG_SET}")
    k("s_add_u32 s58, s58, s3")
    k("s_add_u32 s58, s58, s59")
    cst(3, 0); cst(4, 1)
    wait_flags(k, 58, 32, "gk")
    if INPACK:
        k("s_or_b32 s3, s54, s55")
        k("s_or_b32 s3, s3, s18")
        k("s_cmp_lg_u32 s3, 0")
        k(f"s_cbranch_scc1 {N}_nopk2")
        k("s_lshl_b32 s58, s2, 7")
        k(f"s_add_u32 s58, s58, {10*FLG_SET}")
        k("s_mov_b64 exec, 1")
        k(f"buffer_store_dword v253, v252, s[96:99], s58 offen {SC}")
        k("s_mov_b64 exec, -1")
        k(f"{N}_nopk2:")
    k("s_cmp_eq_u32 s55, 0")
    k(f"s_cbranch_scc0 {N}_st8")
    k.add(k.stamp(7))
    k(f"s_branch {N}_st7")
    k(f"{N}_st8:")
    k.add(k.stamp(11))
    k(f"{N}_st7:")
    k("s_or_b32 s3, s54, s55")
    k("s_cmp_eq_u32 s3, 0")
    k(f"s_cbranch_scc1 {N}_r1")
    resid()
    k(f"{N}_r1:")
    k(f"s_mov_b32 s35, {8*2048}")
    for hf in range(2):
        k(f"s_cmp_eq_u32 s53, {hf}")
        k(f"s_cbranch_scc0 {N}_lh{hf}")
        for t in gk_loads(2, "h", hf): k(t)
        k(f"{N}_lh{hf}:")
    k("s_mov_b32 s35, s29")
    for t in gk_loads(0, "h"): k(t)
    k("s_add_u32 s35, s35, 2048")
    for t in gk_loads(1, "h"): k(t)
    k("s_add_u32 s34, s28, 9216")
    k(f"{N}_pro2:")
    G.adv(k)
    k("s_and_b32 s3, s54, s55")
    k("s_cmp_eq_u32 s3, 1")
    k("s_cselect_b32 s46, 16, 256")
    k("s_cselect_b32 s47, 1152, 16")
    k("s_cselect_b32 s36, s56, s100")
    k("s_cselect_b32 s37, s57, s101")
    k("s_cselect_b32 s52, 0, s52")
    k(f"s_cselect_b32 s26, 0, {STSZ}")
    k("s_add_u32 s36, s36, s52"); k("s_addc_u32 s37, s37, 0"); k("s_and_b32 s37, s37, 0xffff"); k(f"s_mov_b32 s38, {XSZ}"); k("s_mov_b32 s39, 0x20000")
    k("s_add_u32 s24, s100, s45"); k("s_addc_u32 s25, s101, 0"); k("s_and_b32 s25, s25, 0xffff")
    k("v_lshlrev_b32 v18, 4, v10")
    k("v_mul_lo_u32 v17, v10, s47")
    k("v_mul_lo_u32 v16, v12, s46")
    k("v_add_u32 v16, v16, v17")
    k("s_mul_i32 s48, s32, s46")
    k("s_add_u32 s48, s48, s31")
    k("s_lshl_b32 s20, s46, 2")
    k("s_add_u32 s49, s48, s20")
    k("s_add_u32 s50, s49, s20")
    k("s_lshl_b32 s51, s30, 10")
    k("s_lshr_b32 s20, s17, 1")
    k("s_lshl_b32 s20, s20, 8")
    k("s_add_u32 s51, s51, s20")
    k("s_and_b32 s20, s17, 1")
    k("s_lshl_b32 s20, s20, 3")
    k("s_add_u32 s51, s51, s20")
    k("s_mul_i32 s20, s18, 12288")
    k("v_add_u32 v19, s20, v1")
    for j in range(1, 4):
        k(f"s_add_u32 s20, s18, {j}")
        k("s_and_b32 s20, s20, 3")
        k("s_mul_i32 s20, s20, 12288")
        k(f"s_add_u32 s20, s20, {(j-1)*4096}")
        k(f"v_add_u32 v{25+j}, s20, v1")
    k("v_lshrrev_b32 v13, 5, v254")
    k("v_and_b32 v29, 31, v254")
    k("v_lshlrev_b32 v29, 4, v29")
    k("s_lshl_b32 s20, s18, 9")
    k("v_add_u32 v29, s20, v29")
    for p in range(2):
        k(f"s_add_u32 s20, s18, {2*p}")
        k("v_add_u32 v30, s20, v13")
        k("v_and_b32 v30, 3, v30")
        k(f"v_lshl_add_u32 v{14+p}, v30, 11, v29")
    k("s_lshl_b32 s20, s18, 11")
    k("v_add_u32 v29, s20, v1")
    k("s_lshl_b32 s58, s16, 3")
    k("s_add_u32 s58, s58, s17")
    k("s_lshl_b32 s58, s58, 7")
    k("s_lshl_b32 s3, s55, 1")
    k("s_add_u32 s3, s3, 2")
    k(f"s_mul_i32 s3, s3, {FLG_SET}")
    k("s_add_u32 s58, s58, s3")
    k("s_add_u32 s58, s58, s59")
    k("s_cmp_eq_u32 s55, 0")
    k(f"s_cbranch_scc0 {N}_down")
    k("s_waitcnt vmcnt(16)")
    k("s_cmp_eq_u32 s53, 0")
    k(f"s_cbranch_scc0 {N}_c1")
    G.compute(k, 2, False, groups=range(5))
    k(f"{N}_c1:")
    k("s_cmp_eq_u32 s53, 1")
    k(f"s_cbranch_scc0 {N}_c2")
    G.compute(k, 2, False, groups=range(5, 10))
    k(f"{N}_c2:")
    k("s_waitcnt vmcnt(8)")
    G.compute(k, 0, False)
    k(f"s_branch {N}_fin1")
    k(f"{N}_down:")
    k("s_mov_b32 s22, 8")
    k("s_waitcnt vmcnt(8)")
    k(".p2align 3")
    k(f"{N}_loop:")
    for s in range(2):
        k("s_waitcnt vmcnt(17)")
        G.compute(k, s, True)
    k("s_sub_u32 s22, s22, 1")
    k("s_cmp_lg_u32 s22, 0")
    k(f"s_cbranch_scc1 {N}_loop")
    k.add(k.stamp(12))
    k("s_waitcnt vmcnt(26)")
    G.compute(k, 0, False, 17)
    k(f"{N}_fin1:")
    gk_tail(k)
    k("s_cmp_eq_u32 s55, 0")
    k("s_cbranch_scc1 f1_main")
    k("s_cmp_eq_u32 s54, 0")
    k("s_cbranch_scc0 mega_fin")
    if os.environ.get("STOP") == "l1": k("s_branch mega_fin")
    k("s_mov_b32 s54, 1")
    k(f"s_add_u32 s100, s100, {LSTRIDE}")
    k("s_addc_u32 s101, s101, 0")
    k(f"s_mov_b32 s59, {5*FLG_SET}")
    k("s_branch q2_main")

def emit_ffn1(k):
    CH = F1.CH; LDS_S = F1.LDS_S; XV, WB, ACC, NMEAN, CC, QQ, SG, TT, PP = F1.XV, F1.WB, F1.ACC, F1.NMEAN, F1.CC, F1.QQ, F1.SG, F1.TT, F1.PP
    xop, accr, rd = F1.xop, F1.accr, F1.rd
    F1.STORE_MOD = SC
    k("f1_main:")
    k("s_and_b32 s6, s2, 7")
    k("s_lshr_b32 s7, s2, 3")
    k("s_and_b32 s16, s6, 1")
    k("s_lshl_b32 s16, s16, 2")
    k("s_lshr_b32 s17, s7, 3")
    k("s_add_u32 s16, s16, s17")
    k("s_lshr_b32 s17, s6, 1")
    k("s_lshl_b32 s17, s17, 3")
    k("s_and_b32 s7, s7, 7")
    k("s_add_u32 s17, s17, s7")
    k("s_mul_i32 s39, s18, 9216")
    k(f"s_mul_i32 s6, s17, {9*CH}")
    k(f"s_add_u32 s6, s6, {WGU}")
    k("s_add_u32 s12, s4, s6"); k("s_addc_u32 s13, s5, 0"); k("s_and_b32 s13, s13, 0xffff"); k(f"s_mov_b32 s14, {9*CH}")
    if INPACK:
        k("s_or_b32 s3, s54, s18")
        k("s_cmp_lg_u32 s3, 0")
        k("s_cbranch_scc1 f1_pkok")
        k("v_lshlrev_b32 v255, 7, v254")
        k(f"s_mov_b32 s3, {SPIN}")
        for j in range(4): k(f"s_mov_b32 s{40+j}, {10*FLG_SET + j*8192}")
        k("f1_pk_wl:")
        for j in range(4): k(f"buffer_load_dword v{244+j}, v255, s[96:99], s{40+j} offen {SC}")
        k("s_waitcnt vmcnt(0)")
        for j in range(4): k(f"v_xor_b32 v{244+j}, v{244+j}, v253")
        k("v_or3_b32 v244, v244, v245, v246")
        k("v_or_b32 v244, v244, v247")
        k("v_cmp_ne_u32 vcc, 0, v244")
        k("s_nop 1")
        k("s_cmp_eq_u64 vcc, 0")
        k("s_cbranch_scc1 f1_pkok")
        k("s_sub_u32 s3, s3, 1")
        k("s_cmp_lg_u32 s3, 0")
        k("s_cbranch_scc1 f1_pk_wl")
        k("f1_pkok:")
    signal(k, 58, 0, "wo")
    k.add(k.stamp(8))
    PRE = int(os.environ.get("F1PRE", "5"))
    k("s_lshl_b32 s38, s18, 10")
    def wgrp(g): return [x if isinstance(x, str) else (x[0], "wl") for c in range(3) for x in F1.dma(c, g)]
    for g in range(PRE): k.add(wgrp(g))
    k("s_lshl_b32 s19, s16, 4")
    k("s_lshl_b32 s6, s18, 2")
    k("s_add_u32 s19, s19, s6")
    for i in range(1, 5): k(f"s_mov_b32 s{32+i}, {4096*i}")
    k("s_mul_i32 s6, s19, 18432")
    k("v_add_u32 v2, s6, v1")
    for tb in range(1, 4): k(f"v_add_u32 v{2+tb}, 18432, v{1+tb}")
    k("v_and_b32 v13, 15, v254")
    k("v_lshrrev_b32 v15, 4, v254")
    k("s_lshl_b32 s6, s19, 10")
    k("v_add_u32 v9, s6, v1")
    k("v_min_u32 v10, 35, v254")
    k("v_lshlrev_b32 v10, 3, v10")
    k("s_mul_i32 s6, s18, 288")
    k("v_add_u32 v10, s6, v10")
    k("s_mul_i32 s42, s17, 1152")
    k("s_add_u32 s43, s42, 36864")
    k("s_add_u32 s44, s42, 73728")
    srd(k, 8, 100, X1, XSZ)
    srd(k, 20, 100, ST1, STSZ)
    srd(k, 28, 4, SGU, SGU_SZ)
    srd(k, 24, 100, HH, H_SZ)
    k("v_add_u32 v6, 65536, v1")
    k("v_add_u32 v7, 131072, v1")
    k(f"v_add_u32 v8, {4*CH}, v1")
    k("v_and_b32 v11, 1, v15")
    k("v_mul_u32_u24 v11, 147456, v11")
    k("v_lshrrev_b32 v12, 1, v15")
    k("v_lshl_add_u32 v11, v12, 8, v11")
    k("v_lshl_add_u32 v11, v13, 4, v11")
    k("s_mul_i32 s6, s19, 147456")
    k("v_add_u32 v11, s6, v11")
    k(f"v_add_u32 v12, {2*147456}, v11")
    k("s_mul_i32 s45, s17, 4608")
    k("s_lshl_b32 s46, s16, 12")
    k("s_add_u32 s46, s46, s59")
    k(f"s_add_u32 s46, s46, {2*FLG_SET}")
    k("s_lshl_b32 s58, s17, 7")
    k("s_add_u32 s58, s58, s46")
    k(f"s_add_u32 s58, s58, {FLG_SET}")
    wait_flags(k, 46, 32, "f1")
    k.add(k.stamp(9))
    def xl(ks):
        so = "0" if ks < 4 else f"s{32 + ks // 4}"
        return [(f"buffer_load_dwordx4 {xop(ks, tb)}, v{2+tb}, s[8:11], {so} offen offset:{(ks % 4) * 1024} {SC}", f"x{ks}") for tb in range(4)]
    D = int(os.environ.get("XDIST", "3"))
    for ks in range(D): k.add(xl(ks))
    R0 = TT; CS = ACC + 120
    ks_ = Kern(); load_stats(ks_, 20, 9, 4, R0, "st", SC)
    for i, sr in enumerate((42, 43, 44)):
        ks_(f"buffer_load_dwordx2 v[{CS+2*i}:{CS+2*i+1}], v10, s[28:31], s{sr} offen", "st")
    st_loads = list(ks_.ins)
    kf = Kern()
    kf("WAITVM st")
    for q in range(2):
        kf(f"v_add_f32 v{CS+q}, v{CS+q}, v{CS+2+q}")
        kf(f"v_add_f32 v{CS+q}, v{CS+q}, v{CS+4+q}")
    kf(f"v_add_u32 v10, {LDS_S}, v10")
    kf(f"ds_write_b64 v10, v[{CS}:{CS+1}]", "sw")
    finish_stats(kf, 4, R0)
    for tb in range(4):
        kf(f"v_rsq_f32 v{CC+tb}, v{R0+4*tb+1}")
        kf(f"v_sub_f32 v{NMEAN+tb}, 0, v{R0+4*tb}")
        kf(f"v_mov_b32 v{QQ+tb}, v{R0+4*tb+1}")
        kf(f"v_mul_f32 v{CC+tb}, {f2u(-math.log2(math.e))}, v{CC+tb}")
    kf("v_lshlrev_b32 v10, 4, v15")
    kf(f"v_add_u32 v10, {LDS_S}, v10")
    kf(f"v_add_u32 v9, {8*CH}, v1")
    st_fin = list(kf.ins)
    mf = []; fixed = {}; flow = []
    def fx(i, x): fixed.setdefault(i, []).extend(x if isinstance(x, list) else [x])
    def spread(items, g0, g1):
        vm = [x for x in items if not (isinstance(x, str) and x.startswith("s_add_u32 m0"))]
        step = (g1 - g0) / len(vm); n = 0; pend = None; last = -1
        for x in items:
            if isinstance(x, str) and x.startswith("s_add_u32 m0"): pend = x; continue
            g = max(int(g0 + (n + 0.5) * step), last + 1); n += 1
            while g % 4 in (0, 1) or any(unit_cost(as_ins(y)) for y in fixed.get(g, [])) or (pend and any(as_ins(y).kind == "dma" for y in fixed.get(g - 1, []))): g += 1
            last = g
            if pend: fx(g - 1, pend); pend = None
            fx(g, x)
    PB = (ACC + 96, WB)
    for c in range(3):
        for gu in range(2): k.add([rd(PB[0] + 8 * c + 4 * gu, c, 0, gu)])
    k("WAITLG w0_0")
    k("WAITVM x0")
    d3 = F1.dma_chunk(3); d3s = [d3[0:5], d3[5:10], d3[10:12]]
    for ks in range(18):
        i0 = len(mf)
        if ks > 0: fx(i0 - 2, f"WAITVM x{ks}")
        ext = xl(ks + D) if ks + D < 18 else []
        if ks == 6: ext = ext + st_loads[:4]
        if ks == 7: ext = ext + st_loads[4:]
        if ks == 10: flow += [(x, i0) for x in st_fin]
        if ks in (10, 11, 12): ext = ext + d3s[ks - 10]
        if PRE + ks < 9: ext = wgrp(PRE + ks) + ext
        if ext: spread(ext, i0, i0 + 20)
        if ks == 2 * PRE - 1 and PRE < 9:
            fx(i0 - 5, "WAITVM wl"); fx(i0 - 4, "s_barrier")
        if ks == 17:
            fx(i0 - 5, "WAITVM d3"); fx(i0 - 4, "WAITLG sw"); fx(i0 - 3, "s_barrier")
        for c in range(3):
            for gu in range(2):
                for tb in range(4):
                    a = accr(c, gu, tb); w = PB[ks % 2] + 8 * c + 4 * gu
                    i = len(mf)
                    if gu == 0 and tb == 0 and i > 0: fx(i - 1, f"WAITLG w{c}_{ks}")
                    mf.append(f"v_mfma_f32_16x16x32_bf16 {v4(a)}, {v4(w)}, {xop(ks, tb)}, {'0' if ks == 0 else v4(a)}")
                    if tb == 0 and ks < 17: fx(i, rd(PB[(ks + 1) % 2] + 8 * c + 4 * gu, c, ks + 1, gu))
                    if ks == 17 and c >= 1 and tb == 0: fx(i, rd(WB + 8 * (c - 1) + 4 * gu, 3, c - 1, gu))
                    if ks == 17 and c == 0 and tb == 1:
                        flow.append(((f"ds_read_b128 {v4(SG + 4*gu)}, v10 offset:{64*gu}", "s0"), i))
    flow.append(("WAITLG s0", len(mf) + 1))
    for e in range(3): flow += [(x, len(mf) + 1) for x in F1.epilogue(e)]
    for c in range(3, 9):
        i0 = len(mf)
        if c == 3: fx(i0 - 2, "s_barrier")
        for ks in range(18):
            for gu in range(2):
                for tb in range(4):
                    a = accr(c, gu, tb); w = WB + 8 * (ks % 3) + 4 * gu
                    i = len(mf)
                    if gu == 0 and tb == 0:
                        fx(i - 1, f"WAITLG w{c}_{ks}")
                        if ks == 16 and c < 8:
                            fx(i - 3, f"WAITVM d{c+1}"); fx(i - 2, "s_barrier")
                    mf.append(f"v_mfma_f32_16x16x32_bf16 {v4(a)}, {v4(w)}, {xop(ks, tb)}, {'0' if ks == 0 else v4(a)}")
                    if tb == 0:
                        c2, k2 = (c, ks + 2) if ks < 16 else (c + 1, ks - 16)
                        if c2 < 9: fx(i, rd(WB + 8 * (k2 % 3) + 4 * gu, c2, k2, gu))
        for dc, k0, k1 in {3: [(4, 0, 64), (5, 72, 140)], 4: [(6, 0, 120)], 5: [(7, 0, 120)], 6: [(8, 0, 120)]}.get(c, []):
            spread(F1.dma_chunk(dc), i0 + k0, i0 + k1)
        flow += [(x, len(mf) + 2) for x in F1.epilogue(c)]
    n0 = len(k.ins)
    left, over = pack(k, mf, fixed, flow)
    print("mega ffn1 leftover instrs:", len(left), "overfull units:", over)
    k.add(k.stamp(10))
    k.add(left)
    sub = Kern(); sub.ins = k.ins[n0:]; F1.check_deadlines(sub)
    iw = [i for i, x in enumerate(sub.ins) if x.tag == "sw"][0]; ir = [i for i, x in enumerate(sub.ins) if x.tag == "s0"][0]
    assert any(x.op == "s_barrier" for x in sub.ins[iw + 3:ir])
    k("s_mov_b32 s55, 1")
    k("s_branch gk_main")

def emit_qkv(k):
    N = "q2"; LDS_ST = 39 * 4096; LDS_S = LDS_ST + 1024
    k(f"{N}_main:")
    k("s_and_b32 s6, s2, 7")
    k("s_lshr_b32 s7, s2, 3")
    k("s_mul_i32 s16, s7, 43")
    k("s_lshr_b32 s16, s16, 8")
    k("s_mul_i32 s17, s16, 6")
    k("s_sub_u32 s17, s7, s17")
    k("s_lshr_b32 s7, s6, 1")
    k("s_lshl_b32 s7, s7, 2")
    k("s_add_u32 s16, s16, s7")
    k("s_and_b32 s6, s6, 1")
    k("s_mul_i32 s6, s6, 6")
    k("s_add_u32 s17, s17, s6")
    k("s_cmp_eq_u32 s54, 0")
    k(f"s_cbranch_scc0 {N}_l1")
    k("s_cmp_lt_u32 s2, 192")
    k("s_cbranch_scc1 q0_tile")
    k("s_sub_u32 s6, s2, 192")
    k("s_lshr_b32 s6, s6, 3")
    k("s_lshl_b32 s6, s6, 2")
    k("s_add_u32 s6, s6, s18")
    code_prefetch(k, "code_mega", "code_end", 32, 6, 254, 246, 20)
    PK.idle_jobs(k)
    k("s_branch at_main")
    Q0.emit(k)
    k(f"{N}_l1:")
    k("s_mul_i32 s6, s17, 165888")
    k(f"s_add_u32 s6, s6, {WQKV}")
    k("s_add_u32 s12, s4, s6"); k("s_addc_u32 s13, s5, 0"); k("s_and_b32 s13, s13, 0xffff"); k("s_mov_b32 s14, 165888"); k("s_mov_b32 s15, 0x20000")
    signal(k, 58, 0, "dn")
    if not os.environ.get("DBGOUT"): k.add(k.stamp(0))
    k("s_cmp_ge_u32 s2, 192")
    k("s_cbranch_scc1 at_main")
    QPRE = int(os.environ.get("QPRE", "27")); GLKS = int(os.environ.get("GLKS", "14"))
    k("s_lshl_b32 s38, s18, 10")
    def wpiece(i): return [f"s_add_u32 m0, s38, {i*4096}", "s_nop 0", ("buffer_load_dwordx4 v1, s[12:15], m0 offen lds", "qwl")]
    for i in range(QPRE): k.add(wpiece(i))
    k("s_lshl_b32 s19, s16, 3")
    k("s_lshl_b32 s6, s18, 1")
    k("s_add_u32 s19, s19, s6")
    k("s_mul_i32 s6, s19, 18432")
    k("v_add_u32 v2, s6, v1")
    k("v_add_u32 v3, 18432, v2")
    for i in range(1, 5): k(f"s_mov_b32 s{32+i}, {4096*i}")
    k(f"v_add_u32 v6, {17*9216}, v1")
    k("v_and_b32 v7, 15, v254")
    k("v_lshrrev_b32 v8, 4, v254")
    k("s_lshl_b32 s6, s19, 10")
    k("v_add_u32 v9, s6, v1")
    k("v_min_u32 v10, 35, v254")
    k("v_lshlrev_b32 v10, 4, v10")
    k("s_mul_i32 s42, s17, 576")
    srd(k, 8, 100, XIN, XSZ)
    srd(k, 20, 100, STIN, STSZ)
    srd(k, 28, 4, SQKV, SQKV_SZ)
    srd(k, 24, 100, QKV, 3 * XSZ)
    k("v_add_u32 v16, 65536, v1")
    k("v_add_u32 v17, 131072, v1")
    k("s_cmp_lt_u32 s17, 4")
    k(f"s_cselect_b32 s46, {f2u(QSCALE)}, 1.0")
    k("s_lshl_b32 s47, s18, 8")
    k(f"s_add_u32 s47, s47, {LDS_ST}")
    k("s_mul_i32 s45, s17, 589824")
    k("s_lshl_b32 s48, s19, 9")
    k("s_lshl_b32 s49, s16, 11")
    k(f"s_add_u32 s49, s49, {4*FLG_SET}")
    k("s_lshl_b32 s58, s17, 4")
    k("s_add_u32 s58, s58, s16")
    k("s_lshl_b32 s58, s58, 7")
    k("s_add_u32 s58, s58, s59")
    R0 = 176; CS = 184; W = (32, 68); ACC = 104; SV = 196; PR = 232; WL = 144
    def wlast(b):
        so = "0" if b < 4 else f"s{32 + b // 4}"
        return (f"buffer_load_dwordx4 {a4(WL+4*b)}, v6, s[12:15], {so} offen offset:{(b % 4) * 1024}", "qwlast")
    k(f"buffer_load_dwordx4 v[{CS}:{CS+3}], v10, s[28:31], s42 offen")
    wait_flags(k, 49, 16, N)
    k.add(k.stamp(1))
    def xfrag(ks, j): return 4 * (ks * 2 + j)
    def xl(ks):
        so = "0" if ks < 4 else f"s{32 + ks // 4}"
        return [(f"buffer_load_dwordx4 {a4(xfrag(ks, j))}, v{2+j}, s[8:11], {so} offen offset:{(ks % 4) * 1024} {SC}", f"qx{ks}") for j in range(2)]
    D = 5
    for ks in range(D): k.add(xl(ks))
    load_stats(k, 20, 9, 2, R0, "qst", SC)
    k("s_cmp_ge_u32 s17, 8")
    k(f"s_cbranch_scc1 {N}_v")
    for path in ("qk", "v"):
        k.path = path
        if path == "v": k(f"{N}_v:")
        kf = Kern()
        kf(f"v_add_u32 v10, {LDS_S}, v10")
        kf(f"ds_write_b128 v10, v[{CS}:{CS+3}]")
        kf("WAITVM qst")
        finish_stats(kf, 2, R0)
        kf(f"v_rsq_f32 v13, v{R0+1}")
        kf(f"v_rsq_f32 v15, v{R0+5}")
        kf(f"v_sub_f32 v12, 0, v{R0}")
        kf(f"v_sub_f32 v14, 0, v{R0+4}")
        if path == "qk":
            kf("v_mul_f32 v13, s46, v13")
            kf("v_mul_f32 v15, s46, v15")
            kf(f"v_lshlrev_b32 v10, 4, v8")
            kf("v_and_b32 v18, 1, v8")
            kf("v_lshlrev_b32 v18, 9, v18")
            kf("v_lshrrev_b32 v19, 1, v8")
            kf("v_lshl_add_u32 v18, v19, 8, v18")
            kf("v_lshl_add_u32 v18, v7, 4, v18")
            kf("v_add_u32 v18, s48, v18")
        else:
            kf("v_lshl_add_u32 v11, v7, 3, s47")
            kf("ds_write_b64 v11, v[12:13]")
            kf("ds_write_b64 v11, v[14:15] offset:128")
            kf("v_lshl_add_u32 v11, v8, 5, s47")
            for j in range(2):
                for h in range(2):
                    kf(f"ds_read_b128 v[{R0+8*j+4*h}:{R0+8*j+4*h+3}], v11 offset:{j*128+h*16}", "qvs")
            kf(f"v_lshlrev_b32 v10, 2, v7")
            kf("v_add_u32 v18, s48, v1")
        kf(f"v_add_u32 v10, {LDS_S}, v10")
        def rd(ks, b):
            r = W[ks % 2] + 4 * b
            off = ks * 9216 + b * 1024
            va = 1 if off < 65536 else (16 if off < 131072 else 17)
            return (f"ds_read_b128 v[{r}:{r+3}], v{va} offset:{off % 65536}", f"qw{ks}_{b}")
        def mfma(ks, b, j):
            w = v4(W[ks % 2] + 4 * b) if ks < 17 else a4(WL + 4 * b)
            a = ACC + 4 * (j * 9 + b); x = xfrag(ks, j)
            c = "0" if ks == 0 else v4(a)
            if path == "qk": return f"v_mfma_f32_16x16x32_bf16 {v4(a)}, {w}, {a4(x)}, {c}"
            return f"v_mfma_f32_16x16x32_bf16 {v4(a)}, {a4(x)}, {w}, {c}"
        def epi(b):
            L = []; P = PR + 4 * (b % 2)
            for j in range(2):
                a = ACC + 4 * (j * 9 + b)
                if path == "qk":
                    for i in range(4): L.append(f"v_fma_f32 v{a+i}, v{12+2*j}, v{SV+4*b+i}, v{a+i}")
                    for i in range(4): L.append(f"v_mul_f32 v{a+i}, v{a+i}, v{13+2*j}")
                else:
                    for i in range(4): L.append(f"v_fma_f32 v{a+i}, v{R0+8*j+2*i}, v{SV+b}, v{a+i}")
                    for i in range(4): L.append(f"v_mul_f32 v{a+i}, v{a+i}, v{R0+8*j+2*i+1}")
                L.append(f"v_cvt_pk_bf16_f32 v{P+2*j}, v{a}, v{a+1}")
                L.append(f"v_cvt_pk_bf16_f32 v{P+2*j+1}, v{a+2}, v{a+3}")
            if path == "qk":
                L.append(f"v_permlane16_swap_b32 v{P}, v{P+2}")
                L.append(f"v_permlane16_swap_b32 v{P+1}, v{P+3}")
            L.append(f"buffer_store_dwordx4 v[{P}:{P+3}], v18, s[24:27], s45 offen {SC}")
            if b < 8: L.append("s_add_u32 s45, s45, 65536")
            return L
        for b in range(9): k.add([rd(0, b)])
        k("WAITLG qw0_2")
        k("WAITVM qx0")
        mf = []; fixed = {}
        def fx(i, x): fixed.setdefault(i, []).extend(x if isinstance(x, list) else [x])
        flow = [(x, 4 * 18) for x in kf.ins]
        for b in range(9):
            ins = (f"ds_read_b128 v[{SV+4*b}:{SV+4*b+3}], v10 offset:{b*64}", "sv") if path == "qk" else (f"ds_read_b32 v{SV+b}, v10 offset:{b*64}", "sv")
            flow.append((ins, 9 * 18 + 8 * b))
        for ks in range(16):
            i0 = len(mf)
            if ks > 0: fx(i0 - 2, f"WAITVM qx{ks}")
            ext = [[x] for x in xl(ks + D)] if ks + D < 18 else []
            rest = list(range(QPRE, 39)); per = -(-len(rest) // 5)
            if ks < 5: ext += [wpiece(i) for i in rest[ks * per:(ks + 1) * per]]
            if 7 <= ks < 10: ext += [[wlast(b)] for b in range(3 * (ks - 7), 3 * (ks - 6))]
            for n, x in enumerate(ext): fixed.setdefault(i0 + 1 + 2 * (n * 8 // len(ext)), []).append(Bundle(x))
            if ks == QPRE * 4 // 9 - 1:
                fx(i0 - 4, "WAITVM qwl"); fx(i0 - 3, "s_barrier")
            for b in range(9):
                i = len(mf)
                if b % 3 == 0 and i > 0: fx(i - 1, f"WAITLG qw{ks}_{b+2}")
                mf += [mfma(ks, b, 0), mfma(ks, b, 1)]
                fx(i, rd(ks + 1, b))
        fx(len(mf) - 2, "WAITVM qx17, qwlast")
        for b in range(9):
            i = len(mf)
            if b % 3 == 0: fx(i - 1, f"WAITLG qw16_{b+2}")
            mf += [mfma(16, b, 0), mfma(16, b, 1), mfma(17, b, 0), mfma(17, b, 1)]
            flow += [(x, i + 5) for x in epi(b)]
        left, over = pack(k, mf, fixed, flow)
        k.add(left)
        if path == "qk": k("s_branch at_main")
    k.path = None

def gen():
    k = Kern(); k.name = "mega"
    entry(k, KNAME)
    k("s_load_dwordx2 s[4:5], s[0:1], 72")
    k("s_load_dwordx4 s[8:11], s[0:1], 0")
    k("s_load_dwordx2 s[56:57], s[0:1], 56")
    k(f"s_cmp_ge_u32 s2, {GRID}")
    k("s_cbranch_scc1 mega_exit")
    k.add(k.stamp(0))
    k("v_lshrrev_b32 v8, 6, v0")
    k("v_and_b32 v254, 63, v0")
    k("v_readfirstlane_b32 s18, v8")
    k("v_lshlrev_b32 v1, 4, v254")
    k("v_mov_b32 v252, 0")
    k("s_mov_b32 s54, 0")
    k("s_mov_b32 s59, 0")
    k("s_waitcnt lgkmcnt(0)")
    k(f"s_add_u32 s6, s4, {EPOCH}")
    k("s_addc_u32 s7, s5, 0")
    k("s_load_dword s93, s[6:7], 0")
    k("s_mov_b64 s[100:101], s[4:5]")
    k("s_mov_b64 s[94:95], s[8:9]")
    k("s_mov_b64 s[12:13], s[10:11]")
    srd(k, 96, 4, FLG, EPOCH + 4 - FLG)
    emit_qkv(k)
    def after_stage(k, part):
        if part == 0:
            k("WAITVM aq")
            return
        if part == "tag":
            k("s_waitcnt lgkmcnt(0)")
            k("s_mul_i32 s3, s93, 0x9E3779B1")
            k("s_add_u32 s3, s3, 0x7F4A7C15")
            k("v_mov_b32 v253, s3")
            return
        if part == "setup":
            k(f"s_add_u32 s50, s2, {PK.J_ATT}")
            k("s_waitcnt lgkmcnt(0)")
            PK.setup(k, "pa")
            return
        if part == 1: k("s_waitcnt vmcnt(0)")
        if part == 1: return
        k("s_cmp_lg_u32 s54, 0")
        k(f"s_cbranch_scc1 at_nopk{part}")
        k(f"s_cmp_ge_u32 s50, {PK.J_END}")
        k(f"s_cbranch_scc1 at_nopk{part}")
        PK.loads(k, "pa", part - 2)
        k(f"at_nopk{part}:")
    if os.environ.get("STOP") == "q0":
        k("at_main:"); k("s_branch mega_end"); AT.PFX = "xx"
    AT.emit(k, signal, wait_flags, SC, after_stage)
    k("s_mov_b32 s55, 0")
    emit_gk(k)
    emit_ffn1(k)
    k("mega_fin:")
    k("s_or_b32 s3, s2, s18")
    k("s_cmp_lg_u32 s3, 0")
    k("s_cbranch_scc1 mega_end")
    k("s_add_u32 s3, s93, 1")
    k("v_mov_b32 v251, s3")
    k(f"s_mov_b32 s3, {EPOCH - FLG}")
    k("s_mov_b64 exec, 1")
    k(f"buffer_store_dword v251, v252, s[96:99], s3 offen {SC}")
    k("mega_end:")
    k.stamp_out()
    k("mega_exit:")
    k("s_endpgm")
    k.script = True
    return k, [(KNAME, GRID, 256, LDS)], descriptor(KNAME, 256, 256, 102), [KNAME]
```

```python
from asmgen import *
from layout import *

def srd(k, d, p, off, size):
    if off:
        k(f"s_add_u32 s{d}, s{p}, {off}")
        k(f"s_addc_u32 s{d+1}, s{p+1}, 0")
        k(f"s_and_b32 s{d+1}, s{d+1}, 0xffff")
    else:
        k(f"s_mov_b32 s{d}, s{p}")
        k(f"s_and_b32 s{d+1}, s{p+1}, 0xffff")
    k(f"s_mov_b32 s{d+2}, {size}")
    k(f"s_mov_b32 s{d+3}, 0x20000")

def entry(k, name):
    k(f".globl {name}")
    k(".p2align 8")
    k(f".type {name},@function")
    k(f"{name}:")

_pfn = [0]
def code_prefetch(k, lo, hi, nslices, slice_sreg, lane_v, tmp_v, tmp_s):
    import os
    if os.environ.get("NOCPF"): return
    _pfn[0] += 1; L = f"cpf{_pfn[0]}"
    k(f"s_getpc_b64 s[{tmp_s}:{tmp_s+1}]")
    k(f"{L}:")
    k(f"s_sub_u32 s{tmp_s}, s{tmp_s}, {L}-{lo}")
    k(f"s_subb_u32 s{tmp_s+1}, s{tmp_s+1}, 0")
    k(f"v_mul_u32_u24 v{tmp_v}, {nslices}, v{lane_v}")
    k(f"v_add_u32 v{tmp_v}, s{slice_sreg}, v{tmp_v}")
    k(f"v_lshlrev_b32 v{tmp_v}, 7, v{tmp_v}")
    k(f"v_min_u32 v{tmp_v}, {hi}-{lo}-4, v{tmp_v}")
    k(f"global_load_dword v{tmp_v}, v{tmp_v}, s[{tmp_s}:{tmp_s+1}]")

def xreduce(k, regs, tmp, op="v_add_f32"):
    for sw in ("v_permlane16_swap_b32", "v_permlane32_swap_b32"):
        for r, t in zip(regs, tmp): k(f"v_mov_b32 v{t}, v{r}")
        for r, t in zip(regs, tmp): k(f"{sw} v{r}, v{t}")
        for r, t in zip(regs, tmp): k(f"{op} v{r}, v{r}, v{t}")

import os
NT = os.environ.get("PNT", "nt")
N_X, N_QKV, N_WO, N_GU, N_WD = 64, 36, 9, 216, 72
PREP_GRID = N_X + N_QKV + N_WO + N_GU + N_WD
PREP_LDS = 64 * 1184

for _t in range(192): assert (_t * 171) >> 10 == _t // 6

FFN0 = N_X + N_QKV + N_WO
PREP0_GRID = FFN0

def jump_to_pack(k, unit_expr_lines, repeats, stride):
    for l in unit_expr_lines: k(l)
    k(f"s_mov_b32 s57, {repeats}")
    k(f"s_mov_b32 s58, {stride}")
    k("s_branch prep_unit")

def gen_prep():
    import os
    SPLIT = not os.environ.get("NOSPLIT")
    NT_WG = 128 if SPLIT and not os.environ.get("NOTOUCH") else 0
    grid = PREP0_GRID + 8 + NT_WG if SPLIT else PREP_GRID
    k = Kern(); N = "prep"; k.name = N
    entry(k, "prep_kernel")
    k(f"s_cmp_ge_u32 s2, {grid}")
    k(f"s_cbranch_scc1 {N}_end")
    assert FLG_SZ // 4096 <= grid
    k(f"s_cmp_ge_u32 s2, {FLG_SZ // 4096}")
    k(f"s_cbranch_scc1 {N}_noz")
    k("s_load_dwordx2 s[16:17], s[0:1], 72")
    for r in range(4, 8): k(f"v_mov_b32 v{r}, 0")
    k("v_lshlrev_b32 v3, 4, v0")
    k("s_lshl_b32 s3, s2, 12")
    k("s_waitcnt lgkmcnt(0)")
    srd(k, 24, 16, FLG, FLG_SZ)
    k("buffer_store_dwordx4 v[4:7], v3, s[24:27], s3 offen")
    k(f"{N}_noz:")
    if NT_WG:
        k(f"s_cmp_lt_u32 s2, {PREP0_GRID + 8}")
        k(f"s_cbranch_scc1 {N}_not")
        k("s_load_dwordx4 s[12:15], s[0:1], 32")
        k(f"s_sub_u32 s3, s2, {PREP0_GRID + 8}")
        k("v_lshlrev_b32 v3, 7, v0")
        k("s_and_b32 s4, s3, 63")
        k("s_mul_i32 s4, s4, 82944")
        k("s_cmp_lt_u32 s3, 64")
        k("s_waitcnt lgkmcnt(0)")
        k("s_cselect_b32 s12, s12, s14")
        k("s_cselect_b32 s13, s13, s15")
        k("s_add_u32 s12, s12, s4")
        k("s_addc_u32 s13, s13, 0")
        k("s_and_b32 s13, s13, 0xffff")
        k("s_mov_b32 s14, 82944")
        k("s_mov_b32 s15, 0x20000")
        for j in range(3):
            k(f"s_mov_b32 s3, {j*32768}")
            k(f"buffer_load_dword v{4+j}, v3, s[12:15], s3 offen")
        k("s_endpgm")
        k(f"{N}_not:")
    k("s_mov_b32 s56, s2")
    if SPLIT:
        k(f"s_cmp_ge_u32 s2, {FFN0}")
        k(f"s_cselect_b32 s57, {N_GU + 64}, 0")
        k("s_add_u32 s56, s56, s57")
    k("s_mov_b32 s57, 1")
    k("s_mov_b32 s58, 0")
    k("prep_unit:")
    k.add(k.stamp(0))
    k("s_load_dwordx4 s[4:7], s[0:1], 0")
    k("s_load_dwordx2 s[8:9], s[0:1], 16")
    k("s_load_dwordx4 s[12:15], s[0:1], 32")
    k("s_load_dwordx2 s[10:11], s[0:1], 48")
    k("s_load_dwordx2 s[16:17], s[0:1], 72")
    k("v_lshrrev_b32 v1, 6, v0")
    k("v_and_b32 v2, 63, v0")
    k("v_readfirstlane_b32 s18, v1")
    k("v_lshlrev_b32 v3, 4, v2")
    k("v_mov_b32 v4, 0x3f803f80")
    k("v_lshrrev_b32 v5, 5, v2")
    k("v_lshlrev_b32 v5, 4, v5")
    k("v_bfe_u32 v6, v2, 4, 1")
    k("v_lshl_add_u32 v5, v6, 2, v5")
    k("v_bfe_u32 v6, v2, 2, 2")
    k("v_add_u32 v5, v5, v6")
    k("v_and_b32 v6, 3, v2")
    k("s_waitcnt lgkmcnt(0)")
    k.add(k.stamp(1))
    srd(k, 24, 16, 0, WS_END)
    k(f"s_cmp_lt_u32 s56, {N_X}")
    k(f"s_cbranch_scc1 {N}_x")
    k(f"s_cmp_lt_u32 s56, {N_X+N_QKV}")
    k(f"s_cbranch_scc1 {N}_qkv")
    k(f"s_cmp_lt_u32 s56, {N_X+N_QKV+N_WO}")
    k(f"s_cbranch_scc1 {N}_wo")
    k(f"s_cmp_lt_u32 s56, {N_X+N_QKV+N_WO+N_GU}")
    k(f"s_cbranch_scc1 {N}_gu")

    def perm(dst, src, tmp):
        k(f"v_and_b32 v{dst}, 0xfffffff3, v{src}")
        k(f"v_bfe_u32 v{tmp}, v{src}, 2, 1")
        k(f"v_lshl_add_u32 v{dst}, v{tmp}, 3, v{dst}")
        k(f"v_bfe_u32 v{tmp}, v{src}, 3, 1")
        k(f"v_lshl_add_u32 v{dst}, v{tmp}, 2, v{dst}")

    def frags(items, stride, tagp):
        for i, (vb, imm, so, dimm, cs) in enumerate(items):
            r = 32 + 4 * (i % 18)
            k(f"ds_read_b64_tr_b16 v[{r}:{r+1}], v{vb} offset:{imm}", f"{tagp}{i}")
            k(f"ds_read_b64_tr_b16 v[{r+2}:{r+3}], v{vb} offset:{imm + 8*stride}", f"{tagp}{i}")
            if i >= 3:
                j = i - 3
                fin(items[j], j, tagp)
        for j in range(max(0, len(items) - 3), len(items)): fin(items[j], j, tagp)
    def fin(item, j, tagp):
        vb, imm, so, dimm, cs = item
        r = 32 + 4 * (j % 18)
        k(f"WAITLG {tagp}{j}")
        k(f"buffer_store_dwordx4 v[{r}:{r+3}], v3, s[24:27], s{so} offen offset:{dimm}")
        if cs is not None:
            for q in range(4): k(f"v_dot2c_f32_bf16 v{cs}, v{r+q}, v4")

    k(f"s_sub_u32 s20, s56, {N_X+N_QKV+N_WO+N_GU}")
    srd(k, 28, 10, 0, WD_SZ)
    k("v_lshrrev_b32 v7, 3, v0")
    k("s_lshl_b32 s21, s20, 6")
    k("v_add_u32 v8, s21, v7")
    k("v_add_u32 v9, 32, v8")
    k(f"s_mul_i32 s22, s20, 9216")
    k(f"s_add_u32 s22, s22, {WD}")
    k(f"s_mov_b32 s23, {72*9216}")
    k(f"s_branch {N}_dn_common")
    k(f"{N}_wo:")
    k(f"s_sub_u32 s20, s56, {N_X+N_QKV}")
    srd(k, 28, 8, 0, WO_SZ)
    k("v_lshrrev_b32 v7, 3, v0")
    k("s_lshl_b32 s21, s20, 6")
    k(f"s_mul_i32 s22, s20, 9216")
    k(f"s_add_u32 s22, s22, {WO}")
    k(f"s_mov_b32 s23, {9*9216}")
    for jj, dst in ((0, 8), (1, 9)):
        k(f"v_add_u32 v10, s21, v7")
        if jj: k("v_add_u32 v10, 32, v10")
        k("v_lshrrev_b32 v11, 4, v10")
        k("v_mul_u32_u24 v12, 18, v11")
        k("v_and_b32 v13, 15, v10")
        k("v_add_u32 v12, v12, v13")
        k("v_and_b32 v13, 1, v11")
        k("v_lshl_add_u32 v12, v13, 1, v12")
        k("v_subrev_u32 v11, 512, v10")
        k("v_lshrrev_b32 v11, 1, v11")
        k("v_and_b32 v11, 31, v11")
        k("v_mul_u32_u24 v13, 18, v11")
        k("v_and_b32 v14, 1, v10")
        k("v_add_u32 v13, v13, v14")
        k("v_and_b32 v14, 1, v11")
        k("v_xor_b32 v14, 1, v14")
        k("v_lshl_add_u32 v13, v14, 4, v13")
        k("v_cmp_gt_u32 vcc, 512, v10")
        k(f"v_cndmask_b32 v{dst}, v13, v12, vcc")
    k(f"{N}_dn_common:")
    k("v_and_b32 v10, 7, v0")
    k("v_lshlrev_b32 v10, 4, v10")
    k("v_mul_u32_u24 v8, 1152, v8")
    k("v_mul_u32_u24 v9, 1152, v9")
    k("v_add_u32 v8, v8, v10")
    k("v_add_u32 v9, v9, v10")
    for jj in range(2):
        for jc in range(9):
            r = 32 + 4 * (jj * 9 + jc)
            k(f"buffer_load_dwordx4 v[{r}:{r+3}], v{8+jj}, s[28:31], 0 offen offset:{jc*128} {NT}", f"dl{jj*9+jc}")
    perm(11, 7, 12)
    k("v_mul_u32_u24 v11, 1184, v11")
    k("v_add_u32 v11, v11, v10")
    for jj in range(2):
        for jc in range(9):
            r = 32 + 4 * (jj * 9 + jc)
            k(f"WAITVM dl{jj*9+jc}")
            k(f"ds_write_b128 v11, v[{r}:{r+3}] offset:{jj*32*1184 + jc*128}")
    k("v_mul_u32_u24 v12, 1184, v5")
    k("s_mul_i32 s21, s18, 288")
    k("v_add_u32 v12, s21, v12")
    k("v_and_b32 v14, 1, v6")
    k("v_lshl_add_u32 v13, v14, 3, v12")
    k("v_lshrrev_b32 v14, 1, v6")
    k(f"v_mul_u32_u24 v14, {32*1184}, v14")
    k("v_add_u32 v13, v13, v14")
    k("v_lshl_add_u32 v12, v6, 3, v12")
    k("s_lshl_b32 s21, s18, 1")
    k("s_mul_i32 s21, s21, s23")
    k("s_add_u32 s32, s22, s21")
    k("s_add_u32 s33, s32, 4096")
    k("s_add_u32 s34, s32, 8192")
    k("s_add_u32 s35, s32, s23")
    k("s_add_u32 s36, s35, 4096")
    k("s_add_u32 s37, s35, 8192")
    k("s_waitcnt lgkmcnt(0)")
    k("s_barrier")
    items = []
    for nn in range(2):
        for ks in range(2):
            for b in range(4):
                items.append((12, 144*nn + 32*b + ks*32*1184, 32 + 3*nn + ks, b*1024, None))
        items.append((13, 144*nn + 128, 32 + 3*nn + 2, 0, None))
    k.add(k.stamp(2))
    frags(items, 1184, "df")
    k.stamp_out(16)
    k("s_endpgm")

    k(f"{N}_gu:")
    k(f"s_sub_u32 s20, s56, {N_X+N_QKV+N_WO}")
    k("s_cmp_ge_u32 s20, 108")
    k("s_cselect_b32 s21, 1, 0")
    k("s_cselect_b32 s4, s14, s12")
    k("s_cselect_b32 s5, s15, s13")
    k("s_mul_i32 s22, s21, 108")
    k("s_sub_u32 s20, s20, s22")
    k("s_mul_i32 s22, s20, 43691")
    k("s_lshr_b32 s22, s22, 17")
    k("s_mul_i32 s23, s22, 3")
    k("s_sub_u32 s23, s20, s23")
    srd(k, 28, 4, 0, 576 * 4608 * 2)
    k("v_lshrrev_b32 v7, 4, v0")
    k("v_and_b32 v10, 15, v0")
    k("v_lshlrev_b32 v10, 4, v10")
    k("v_mul_u32_u24 v8, 9216, v7")
    k("v_add_u32 v8, v8, v10")
    k(f"s_mul_i32 s32, s23, {192*9216}")
    k("s_lshl_b32 s33, s22, 8")
    k("s_add_u32 s32, s32, s33")
    for j in range(12):
        r = 32 + 4 * j
        k(f"buffer_load_dwordx4 v[{r}:{r+3}], v8, s[28:31], s32 offen {NT}", f"gl{j}")
        if j < 11: k(f"s_add_u32 s32, s32, {16*9216}")
    perm(11, 7, 12)
    k("v_mul_u32_u24 v11, 288, v11")
    k("v_add_u32 v11, v11, v10")
    for j in range(12):
        r = 32 + 4 * j
        k(f"WAITVM gl{j}")
        k(f"ds_write_b128 v11, v[{r}:{r+3}] offset:{j*16*288}")
    k("v_mul_u32_u24 v12, 288, v5")
    k("s_lshl_b32 s33, s18, 6")
    k("v_add_u32 v12, s33, v12")
    k("v_lshl_add_u32 v12, v6, 3, v12")
    k("s_lshl_b32 s32, s22, 3")
    k("s_lshl_b32 s33, s18, 1")
    k("s_add_u32 s38, s32, s33")
    k("s_mul_i32 s32, s38, 18")
    k("s_mul_i32 s33, s23, 6")
    k("s_add_u32 s32, s32, s33")
    k("s_lshl_b32 s32, s32, 11")
    k("s_lshl_b32 s33, s21, 10")
    k("s_add_u32 s32, s32, s33")
    k(f"s_add_u32 s32, s32, {WGU}")
    k("s_add_u32 s33, s32, 4096")
    k("s_add_u32 s34, s32, 8192")
    k(f"s_add_u32 s35, s32, {18*2048}")
    k("s_add_u32 s36, s35, 4096")
    k("s_add_u32 s37, s35, 8192")
    k("v_mov_b32 v16, 0")
    k("v_mov_b32 v17, 0")
    k("s_waitcnt lgkmcnt(0)")
    k("s_barrier")
    items = []
    for bb in range(2):
        for ks in range(6):
            items.append((12, 32*bb + ks*32*288, 32 + 3*bb + ks//2, (ks % 2)*2048, 16 + bb))
    k.add(k.stamp(2))
    frags(items, 288, "gf")
    xreduce(k, [16, 17], [18, 19])
    k("s_mul_i32 s32, s23, 36864")
    k("s_lshl_b32 s33, s38, 7")
    k("s_add_u32 s32, s32, s33")
    k("s_lshl_b32 s33, s21, 6")
    k("s_add_u32 s32, s32, s33")
    k(f"s_add_u32 s32, s32, {SGU}")
    k("v_and_b32 v18, 15, v2")
    k("v_lshlrev_b32 v18, 2, v18")
    k("buffer_store_dword v16, v18, s[24:27], s32 offen")
    k("buffer_store_dword v17, v18, s[24:27], s32 offen offset:128")
    k.stamp_out(16)
    k("s_mov_b64 exec, -1")
    k("s_sub_u32 s57, s57, 1")
    k("s_cmp_eq_u32 s57, 0")
    k(f"s_cbranch_scc1 {N}_end")
    k("s_add_u32 s56, s56, s58")
    k("s_barrier")
    k("s_branch prep_unit")

    k(f"{N}_qkv:")
    k(f"s_sub_u32 s20, s56, {N_X}")
    k("s_mul_i32 s22, s20, 43691")
    k("s_lshr_b32 s22, s22, 17")
    k("s_mul_i32 s23, s22, 3")
    k("s_sub_u32 s23, s20, s23")
    srd(k, 28, 6, 0, WQKV_SZ)
    k("s_cmp_eq_u32 s18, 3")
    k(f"s_cbranch_scc1 {N}_qkv_noload")
    k("v_mul_u32_u24 v7, 171, v0")
    k("v_lshrrev_b32 v7, 10, v7")
    k("v_mul_u32_u24 v10, 6, v7")
    k("v_sub_u32 v10, v0, v10")
    k("v_lshlrev_b32 v10, 4, v10")
    k("v_mul_u32_u24 v8, 3456, v7")
    k("v_add_u32 v8, v8, v10")
    k(f"s_mul_i32 s32, s23, {192*3456}")
    k("s_mul_i32 s33, s22, 288")
    k("s_add_u32 s32, s32, s33")
    for jj in range(6):
        for jc in range(3):
            r = 32 + 4 * (jj * 3 + jc)
            k(f"buffer_load_dwordx4 v[{r}:{r+3}], v8, s[28:31], s32 offen offset:{jc*96}", f"ql{jj*3+jc}")
        if jj < 5: k(f"s_add_u32 s32, s32, {32*3456}")
    perm(11, 7, 12)
    k("v_mul_u32_u24 v11, 288, v11")
    k("v_add_u32 v11, v11, v10")
    for jj in range(6):
        for jc in range(3):
            r = 32 + 4 * (jj * 3 + jc)
            k(f"WAITVM ql{jj*3+jc}")
            k(f"ds_write_b128 v11, v[{r}:{r+3}] offset:{jj*32*288 + jc*96}")
    k(f"{N}_qkv_noload:")
    k("v_mul_u32_u24 v13, 288, v5")
    k("s_mul_i32 s33, s18, 72")
    k("v_add_u32 v12, s33, v13")
    k("v_lshl_add_u32 v12, v6, 3, v12")
    k("v_mul_u32_u24 v14, 72, v6")
    k("v_add_u32 v13, v13, v14")
    k("s_mul_i32 s32, s22, 18")
    k("s_mul_i32 s33, s23, 6")
    k("s_add_u32 s32, s32, s33")
    k("s_mul_i32 s32, s32, 9216")
    k(f"s_add_u32 s39, s32, {WQKV}")
    k("s_lshl_b32 s33, s18, 11")
    k("s_add_u32 s32, s39, s33")
    for ks in range(1, 6):
        k(f"s_add_u32 s{32+ks}, s32, {ks*9216}")
    k("s_add_u32 s40, s39, 8192")
    for ks in range(1, 6):
        k(f"s_add_u32 s{40+ks}, s40, {ks*9216}")
    k("v_mov_b32 v16, 0")
    k("v_mov_b32 v17, 0")
    k("v_mov_b32 v20, 0")
    k("s_waitcnt lgkmcnt(0)")
    k("s_barrier")
    items = []
    for bb in range(2):
        for ks in range(6):
            items.append((12, 40*bb + ks*32*288, 32 + ks, bb*1024, 16 + bb))
    k.add(k.stamp(2))
    frags(items, 288, "qf")
    xreduce(k, [16, 17], [18, 19])
    k("s_mul_i32 s46, s23, 6912")
    k("s_mul_i32 s47, s22, 576")
    k("s_add_u32 s46, s46, s47")
    k(f"s_add_u32 s46, s46, {SQKV}")
    k("s_lshl_b32 s47, s18, 7")
    k("s_add_u32 s47, s47, s46")
    k("v_and_b32 v18, 15, v2")
    k("v_lshlrev_b32 v18, 2, v18")
    k("buffer_store_dword v16, v18, s[24:27], s47 offen")
    k("buffer_store_dword v17, v18, s[24:27], s47 offen offset:64")
    k.stamp_out(16)
    k("s_mov_b64 exec, -1")
    k("s_cmp_lg_u32 s18, 3")
    k(f"s_cbranch_scc1 {N}_end")
    k("s_waitcnt vmcnt(0)")
    items = [(13, 32 + ks*32*288, 40 + ks, 0, 20) for ks in range(6)]
    frags(items, 288, "rf")
    xreduce(k, [20], [19])
    k("buffer_store_dword v20, v18, s[24:27], s46 offen offset:512")
    k("s_endpgm")

    k(f"{N}_x:")
    k("s_lshr_b32 s20, s56, 3")
    k("s_lshl_b32 s20, s20, 2")
    k("s_add_u32 s20, s20, s18")
    code_prefetch(k, "code_mega", "code_end", 32, 20, 2, 30, 22)
    srd(k, 28, 4, 0, XSZ)
    k("s_lshl_b32 s20, s56, 1")
    k("s_lshr_b32 s21, s18, 1")
    k("s_add_u32 s20, s20, s21")
    k("s_and_b32 s22, s18, 1")
    k("v_lshrrev_b32 v7, 2, v2")
    k("v_and_b32 v8, 3, v2")
    k("v_mul_u32_u24 v9, 1152, v7")
    k("v_lshl_add_u32 v9, v8, 4, v9")
    k("s_mul_i32 s21, s20, 18432")
    k("s_mul_i32 s23, s22, 576")
    k("s_add_u32 s23, s23, s21")
    for j in range(9):
        r = 32 + 4 * j
        k(f"buffer_load_dwordx4 v[{r}:{r+3}], v9, s[28:31], s23 offen offset:{j*64}", f"xl{j}")
    k("s_mul_i32 s23, s18, 9792")
    k("v_mul_u32_u24 v10, 272, v8")
    k("v_lshl_add_u32 v10, v7, 4, v10")
    k("v_add_u32 v10, s23, v10")
    k("v_and_b32 v7, 15, v2")
    k("v_lshrrev_b32 v8, 4, v2")
    k("v_mul_u32_u24 v11, 272, v8")
    k("v_lshl_add_u32 v11, v7, 4, v11")
    k("v_add_u32 v11, s23, v11")
    k("s_mul_i32 s23, s22, 9216")
    k("s_add_u32 s32, s21, s23")
    if XF0: k(f"s_add_u32 s32, s32, {XF0}")
    for i in range(1, 3): k(f"s_add_u32 s{32+i}, s32, {4096*i}")
    k("v_mov_b32 v16, 0")
    k("v_mov_b32 v17, 0")
    for j in range(9):
        r = 32 + 4 * j
        k(f"WAITVM xl{j}")
        k(f"ds_write_b128 v10, v[{r}:{r+3}] offset:{j*1088}")
        k(f"ds_read_b128 v[{r+36}:{r+39}], v11 offset:{j*1088}", f"xr{j}")
    for j in range(9):
        r = 68 + 4 * j
        k(f"WAITLG xr{j}")
        k(f"buffer_store_dwordx4 v[{r}:{r+3}], v3, s[24:27], s{32 + j//4} offen offset:{(j%4)*1024}")
        for q in range(4):
            k(f"v_dot2c_f32_bf16 v16, v{r+q}, v4")
            k(f"v_dot2c_f32_bf16 v17, v{r+q}, v{r+q}")
    xreduce(k, [16, 17], [18, 19])
    k("v_cmp_eq_u32 vcc, 0, v8")
    k("v_cndmask_b32 v16, 0, v16, vcc")
    k("v_cndmask_b32 v17, 0, v17, vcc")
    k("s_lshl_b32 s21, s20, 10")
    k("s_lshl_b32 s22, s22, 3")
    k("s_add_u32 s21, s21, s22")
    k(f"s_add_u32 s21, s21, {ST0}")
    k("buffer_store_dwordx2 v[16:17], v3, s[24:27], s21 offen")
    k.stamp_out(16)
    k(f"{N}_end:")
    k("s_endpgm")
    launches = [("prep_kernel", grid, 256, PREP_LDS)]
    desc = descriptor("prep_kernel", 104, 0)
    return k, launches, desc, ["prep_kernel"]
```

```python
from asmgen import *
from layout import *
from k_prep import srd, xreduce

PFX = 'at'
REC = 3072
VR0 = 16 * REC
ONES = VR0 + 2048
LDS_END = ONES + 16
NEG = "0xf149f2ca"
def v4(r): return f"v[{r}:{r+3}]"
def qi(p, q): return 2 * p + (q == "B")
def Q(p, q): return 16 + 4 * qi(p, q)
KF = (32, 36); VM = 40; VRF = 44
ORDER = [(p, q, tl) for tl in range(2) for p in range(2) for q in "AB"]
def S(t): return 48 + 4 * ORDER.index(t)
def E(t): return 80 + 4 * ORDER.index(t)
def P(p, q): return 112 + 4 * qi(p, q)
def OM(p, q): return 128 + 4 * qi(p, q)
def OR(p, q): return 144 + 4 * qi(p, q)
MO = 160; MD = 164
def NM(p, q): return 168 + 4 * qi(p, q)
def CF(p, q): return 184 + 4 * qi(p, q)
def CL(p, q): return 200 + 4 * qi(p, q)
def MX(p, q): return 216 + qi(p, q)

def present(kinds, t):
    kind = kinds[t[0]]
    return kind is not None and not ((kind == "first" and t[1:] == ("B", 0)) or (kind == "last" and t[1:] == ("A", 1)))

def smfma(k, kinds, t, ps):
    if not present(kinds, t): return
    p, q, tl = t; kind = kinds[p]
    masked = kind in ("first", "last") and (q, tl) in (("A", 0), ("B", 1))
    if ps == 1: c = v4(MO if kind == "first" else MD) if masked else "0"
    else: c = v4((CF if kind == "first" else CL)(p, q)) if masked else v4(NM(p, q))
    k(f"v_mfma_f32_16x16x32_bf16 {v4(S(t))}, {v4(KF[tl])}, {v4(Q(p, q))}, {c}")

def pv(k, n, prev):
    p, q = n >> 2, "AB"[(n >> 1) & 1]
    if prev[p] is None: return
    o, v = (OM(p, q), VM) if n % 2 == 0 else (OR(p, q), VRF)
    k(f"v_mfma_f32_16x16x32_bf16 {v4(o)}, {v4(v)}, {v4(P(p, q))}, {v4(o)}")

def prologue(k, kinds, ps):
    k(f"ds_read_b128 {v4(KF[0])}, v2")
    k(f"ds_read_b128 {v4(KF[1])}, v2 offset:1024")
    k("s_waitcnt lgkmcnt(0)")
    for t in ORDER: smfma(k, kinds, t, ps)
    k(f"ds_read_b128 {v4(KF[0])}, v2 offset:{REC}")
    k(f"ds_read_b128 {v4(KF[1])}, v2 offset:{REC+1024}")
    if ps == 2:
        k(f"ds_read_b128 {v4(VM)}, v2 offset:2048")
        k(f"ds_read_b128 {v4(VRF)}, v3")
    k("s_nop 5")

def iteration(k, prev, cur, nxt, ps):
    for n, t in enumerate(ORDER):
        on = present(cur, t); s = S(t); e = E(t)
        if ps == 1:
            if on:
                m = MX(*t[:2])
                k(f"v_max3_f32 v{m}, v{m}, v{s}, v{s+1}")
                k(f"v_max3_f32 v{m}, v{m}, v{s+2}, v{s+3}")
            if nxt and n in (0, 4): k("s_waitcnt lgkmcnt(1)")
        else:
            if on:
                for i in range(2): k(f"v_exp_f32 v{e+i}, v{s+i}")
            if n == 1: k("s_waitcnt lgkmcnt(0)")
            if n >= 1: pv(k, n - 1, prev)
            if on:
                for i in range(2, 4): k(f"v_exp_f32 v{e+i}, v{s+i}")
            if nxt and n == 0: k("s_waitcnt lgkmcnt(3)")
        if nxt:
            smfma(k, nxt, t, ps)
            if n in (3, 7): k(f"ds_read_b128 {v4(KF[t[2]])}, v2 offset:{2*REC + 1024*t[2]}")
    if ps == 2:
        for p in range(2):
            cnt = 0
            for q in "AB":
                for tl in range(2):
                    r = P(p, q) + 2 * tl; e = E((p, q, tl))
                    if cur[p] is None: pass
                    elif present(cur, (p, q, tl)):
                        k(f"v_cvt_pk_bf16_f32 v{r}, v{e}, v{e+1}")
                        k(f"v_cvt_pk_bf16_f32 v{r+1}, v{e+2}, v{e+3}")
                    else:
                        k(f"v_mov_b32 v{r}, 0"); k(f"v_mov_b32 v{r+1}, 0")
                    cnt += 1
                    if p == 0 and cnt == 1:
                        pv(k, 7, prev)
                        k(f"ds_read_b128 {v4(VM)}, v2 offset:2048")
                        k(f"ds_read_b128 {v4(VRF)}, v3")
        k("v_add_u32 v3, v3, v4")
    if nxt: k(f"v_add_u32 v2, {REC}, v2")

def emit(k, signal, wait_flags, SC, after_stage=None):
    N = "at"
    k(f"{PFX}_main:")
    k("v_and_b32 v7, 15, v254")
    k("v_lshrrev_b32 v8, 4, v254")
    k("s_and_b32 s6, s2, 7")
    k("s_lshr_b32 s7, s2, 3")
    k("s_lshr_b32 s17, s7, 2")
    k("s_sub_u32 s17, 7, s17")
    k("s_and_b32 s7, s7, 3")
    k("s_lshl_b32 s16, s6, 2")
    k("s_add_u32 s16, s16, s7")
    k("s_lshr_b32 s33, s16, 3")
    k("s_mul_i32 s19, s33, 9")
    k("s_and_b32 s20, s16, 7")
    k("s_add_u32 s21, s19, s20")
    k("s_lshl_b32 s21, s21, 16")
    k("s_add_u32 s22, s19, 8")
    k("s_lshl_b32 s22, s22, 16")
    k("s_and_b32 s23, s6, 1")
    k("s_lshl_b32 s23, s23, 8")
    k("s_add_u32 s23, s23, s22")
    after_stage(k, "tag")
    k("s_cmp_ge_u32 s2, 192")
    k(f"s_cbranch_scc1 {N}_nosig")
    signal(k, 58, 0, "qk")
    k(f"{N}_nosig:")
    k.add(k.stamp(2))
    k("v_min_u32 v255, 11, v254")
    k("v_lshrrev_b32 v9, 2, v255")
    k("v_lshl_add_u32 v9, v9, 2, s33")
    k("v_and_b32 v255, 3, v255")
    k("s_lshl_b32 s24, s17, 1")
    k("s_sub_u32 s24, s24, 2")
    k("v_add_u32 v255, s24, v255")
    k("v_max_i32 v255, 0, v255")
    k("v_lshl_add_u32 v255, v9, 4, v255")
    k("v_lshlrev_b32 v255, 7, v255")
    k("v_add_u32 v9, s21, v1")
    k("v_lshl_add_u32 v10, v7, 4, s23")
    k("v_cmp_gt_u32 vcc, 32, v254")
    k("v_cndmask_b32 v9, v10, v9, vcc")
    k("v_bfe_u32 v10, v254, 1, 2")
    k("v_lshlrev_b32 v10, 8, v10")
    k("v_and_b32 v11, 1, v254")
    k("v_lshl_add_u32 v10, v11, 4, v10")
    k("v_bfe_u32 v11, v254, 3, 2")
    k("v_lshl_add_u32 v10, v11, 10, v10")
    k("s_lshl_b32 s24, s20, 5")
    k("s_add_u32 s24, s24, s22")
    k("v_add_u32 v10, s24, v10")
    k("s_lshl_b32 s24, s17, 4")
    k("s_lshl_b32 s25, s18, 2")
    k("s_add_u32 s26, s24, s25")
    k("s_lshl_b32 s27, s26, 9")
    k("s_add_u32 s24, s26, s25")
    k("s_lshl_b32 s24, s24, 9")
    k(f"s_add_u32 s28, s24, {XSZ - 16*512}")
    k(f"s_add_u32 s29, s24, {2*XSZ - 8*1024}")
    k("s_add_u32 s30, s29, s21")
    k(f"s_mul_i32 s31, s18, {4*REC}")
    k(f"s_mul_i32 s24, s54, {QKVB - QKV}")
    k(f"s_add_u32 s24, s24, {QKV}")
    k("s_add_u32 s8, s100, s24"); k("s_addc_u32 s9, s101, 0"); k("s_and_b32 s9, s9, 0xffff"); k(f"s_mov_b32 s10, {3*XSZ}"); k("s_mov_b32 s11, 0x20000")
    srd(k, 12, 100, OO, XSZ)
    for i in range(4): k(f"v_mov_b32 v{80+i}, 0x3f803f80")
    k(f"v_mov_b32 v11, {ONES}")
    k(f"ds_write_b128 v11, {v4(80)}")
    k("v_lshlrev_b32 v11, 2, v8")
    k(f"v_mov_b32 v12, {NEG}")
    for i in range(4):
        k(f"v_add_u32 v13, {i}, v11")
        k("v_cmp_gt_u32 vcc, v13, v7")
        k(f"v_cndmask_b32_e64 v{MO+i}, v12, 0, vcc")
        k(f"v_cndmask_b32 v{MD+i}, 0, v12, vcc")
    for r in range(112, 160): k(f"v_mov_b32 v{r}, 0")
    for r in range(216, 220): k(f"v_mov_b32 v{r}, v12")
    k("s_lshl_b32 s32, s18, 1")
    k("s_cmp_gt_u32 s17, 0")
    k("s_cselect_b32 s32, s32, 8")
    k(f"s_mul_i32 s33, s32, {REC}")
    k("v_add_u32 v6, s33, v1")
    k("s_lshl_b32 s33, s32, 7")
    k(f"s_add_u32 s33, s33, {VR0}")
    k("v_lshl_add_u32 v3, v8, 1, v7")
    k("v_lshl_add_u32 v3, v3, 4, s33")
    k(f"v_mov_b32 v11, {ONES}")
    k("v_mov_b32 v4, 128")
    k("v_cmp_gt_u32 vcc, 2, v7")
    k("v_cndmask_b32 v3, v11, v3, vcc")
    k("v_cndmask_b32 v4, 0, v4, vcc")
    k("s_lshl_b32 s58, s17, 5")
    k("s_add_u32 s58, s58, s16")
    k("s_lshl_b32 s58, s58, 7")
    k("s_add_u32 s58, s58, s59")
    k(f"s_add_u32 s58, s58, {FLG_SET}")
    after_stage(k, "setup")
    wait_flags(k, 59, None, N)
    k.add(k.stamp(3))
    for bl in range(4):
        for tl in range(2):
            k(f"s_add_u32 m0, s31, {bl*REC + tl*1024}")
            k(f"s_add_u32 s24, s28, {(2*bl + tl)*512}")
            k(f"buffer_load_dwordx4 v9, s[8:11], s24 offen {SC} lds", "ak")
    for j in range(4):
        k(f"buffer_load_dwordx4 {v4(16+4*j)}, v9, s[8:11], s27 offen offset:{512*j} {SC}", "aq")
    for bl in range(4):
        k(f"s_add_u32 m0, s31, {bl*REC + 2048}")
        k(f"s_add_u32 s24, s30, {bl*1024}")
        k(f"buffer_load_dwordx4 v1, s[8:11], s24 offen {SC} lds", "av")
    k("s_lshl_b32 s24, s18, 9")
    k(f"s_add_u32 m0, s24, {VR0}")
    k("s_mov_b32 exec_hi, 0")
    k(f"buffer_load_dwordx4 v10, s[8:11], s29 offen {SC} lds", "av")
    k("s_mov_b32 exec_hi, -1")
    after_stage(k, 0)
    k("s_waitcnt lgkmcnt(0)")
    k("s_barrier")
    for i in range(4):
        k(f"s_cmp_eq_u32 s7, {i}")
        k("s_cselect_b32 s24, 48, 32")
        k("v_cmp_gt_u32 vcc, s24, v254")
        for j in range(4): k(f"v_cndmask_b32 v{16+4*j+i}, 0, v{16+4*j+i}, vcc")
    after_stage(k, 2)
    M = ("mid", "mid")
    for ps in (1, 2):
        L = f"{N}_p{ps}"
        k.add(k.stamp(3 + ps))
        k("v_mov_b32 v2, v6")
        k("s_cmp_eq_u32 s17, 0")
        k(f"s_cbranch_scc1 {L}_q0")
        prologue(k, ("first", None), ps)
        iteration(k, (None, None), ("first", None), ("mid", "first"), ps)
        iteration(k, ("first", None), ("mid", "first"), M, ps)
        k("s_mov_b32 s34, 5")
        k(f"s_branch {L}_loop")
        k(f"{L}_q0:")
        k("s_cmp_eq_u32 s18, 0")
        k(f"s_cbranch_scc0 {L}_q0b")
        prologue(k, ("last", "mid"), ps)
        k(f"s_branch {L}_8")
        k(f"{L}_q0b:")
        prologue(k, M, ps)
        k("s_lshl_b32 s34, s18, 1")
        k("s_sub_u32 s34, s34, 1")
        k(f"{L}_loop:")
        iteration(k, M, M, M, ps)
        k("s_sub_u32 s34, s34, 1")
        k("s_cmp_lg_u32 s34, 0")
        k(f"s_cbranch_scc1 {L}_loop")
        iteration(k, M, M, ("last", "mid"), ps)
        k(f"{L}_8:")
        if ps == 2: after_stage(k, 4)
        iteration(k, M, ("last", "mid"), (None, "last"), ps)
        iteration(k, ("last", "mid"), (None, "last"), None, ps)
        if ps == 1:
            k("s_waitcnt lgkmcnt(0)")
            after_stage(k, 1)
            k("s_barrier")
            after_stage(k, 3)
            xreduce(k, [216, 217, 218, 219], [220, 221, 222, 223], op="v_max_f32")
            for p in range(2):
                for q in "AB":
                    for i in range(4):
                        k(f"v_sub_f32 v{NM(p,q)+i}, 0, v{MX(p,q)}")
                        k(f"v_sub_f32 v{CF(p,q)+i}, v{MO+i}, v{MX(p,q)}")
                        k(f"v_sub_f32 v{CL(p,q)+i}, v{MD+i}, v{MX(p,q)}")
    k("s_waitcnt lgkmcnt(0)")
    for n in range(4, 8): pv(k, n, (None, "last"))
    k.add(k.stamp(6))
    k("v_and_b32 v11, 1, v8")
    k("v_mul_u32_u24 v11, 18432, v11")
    k("v_lshl_add_u32 v11, v7, 4, v11")
    k("v_lshrrev_b32 v12, 1, v8")
    k("v_lshl_add_u32 v12, v12, 8, v11")
    k("s_mul_i32 s24, s26, 18432")
    k("s_lshl_b32 s25, s16, 9")
    k("s_add_u32 s25, s25, s24")
    k("s_lshr_b32 s27, s16, 2")
    k("s_lshl_b32 s27, s27, 8")
    k("s_lshl_b32 s28, s7, 2")
    k("s_add_u32 s27, s27, s28")
    k("s_add_u32 s27, s27, s24")
    k("s_add_u32 s27, s27, 16384")
    for p in range(2):
        for q in "AB": k(f"v_rcp_f32 v{80+qi(p,q)}, v{OR(p,q)+2}")
        for q in "AB":
            for i in range(4): k(f"v_mul_f32 v{OM(p,q)+i}, v{OM(p,q)+i}, v{80+qi(p,q)}")
            for i in range(2): k(f"v_mul_f32 v{OR(p,q)+i}, v{OR(p,q)+i}, v{80+qi(p,q)}")
        r = 88 + 8 * p
        for j, q in enumerate("AB"):
            k(f"v_cvt_pk_bf16_f32 v{r+2*j}, v{OM(p,q)}, v{OM(p,q)+1}")
            k(f"v_cvt_pk_bf16_f32 v{r+2*j+1}, v{OM(p,q)+2}, v{OM(p,q)+3}")
            k(f"v_cvt_pk_bf16_f32 v{r+4+j}, v{OR(p,q)}, v{OR(p,q)+1}")
        k(f"v_permlane16_swap_b32 v{r}, v{r+2}")
        k(f"v_permlane16_swap_b32 v{r+1}, v{r+3}")
        k(f"v_permlane16_swap_b32 v{r+4}, v{r+5}")
        k(f"buffer_store_dwordx4 {v4(r)}, v12, s[12:15], s25 offen {SC}")
        k("s_mov_b32 exec_hi, 0")
        k(f"buffer_store_dword v{r+4}, v11, s[12:15], s27 offen {SC}")
        k("s_mov_b32 exec_hi, -1")
        if p == 0:
            k("s_add_u32 s25, s25, 36864")
            k("s_add_u32 s27, s27, 36864")
```

```python
from asmgen import *
from layout import *
from k_prep import srd, xreduce
import os
SC = "sc1"
J_GU, J_WD, J_END = 9, 225, 297
NIDLE = int(os.environ.get("NIDLE", "3"))
J_ATT = 64 * NIDLE
A0 = 184

def trbase(k, d, t):
    k(f"v_lshrrev_b32 v{d}, 5, v254")
    k(f"v_lshlrev_b32 v{d}, 4, v{d}")
    k(f"v_bfe_u32 v{t}, v254, 4, 1")
    k(f"v_lshl_add_u32 v{d}, v{t}, 2, v{d}")
    k(f"v_bfe_u32 v{t}, v254, 2, 2")
    k(f"v_add_u32 v{d}, v{d}, v{t}")
    k(f"v_and_b32 v{d+1}, 3, v254")

def perm(k, dst, src, tmp):
    k(f"v_and_b32 v{dst}, 0xfffffff3, v{src}")
    k(f"v_bfe_u32 v{tmp}, v{src}, 2, 1")
    k(f"v_lshl_add_u32 v{dst}, v{tmp}, 3, v{dst}")
    k(f"v_bfe_u32 v{tmp}, v{src}, 3, 1")
    k(f"v_lshl_add_u32 v{dst}, v{tmp}, 2, v{dst}")

def frags(k, items, stride, tagp, R, ones):
    def fin(j):
        vb, imm, so, dimm, cs = items[j]; r = R + 4 * j
        k(f"WAITLG {tagp}{j}")
        k(f"buffer_store_dwordx4 v[{r}:{r+3}], v1, s[40:43], s{so} offen offset:{dimm} {SC}")
        if cs is not None:
            for q in range(4): k(f"v_dot2c_f32_bf16 v{cs}, v{r+q}, v{ones}")
    for i, (vb, imm, so, dimm, cs) in enumerate(items):
        r = R + 4 * i
        k(f"ds_read_b64_tr_b16 v[{r}:{r+1}], v{vb} offset:{imm}", f"{tagp}{i}")
        k(f"ds_read_b64_tr_b16 v[{r+2}:{r+3}], v{vb} offset:{imm + 8*stride}", f"{tagp}{i}")
        if i >= 3: fin(i - 3)
    for j in range(len(items) - 3, len(items)): fin(j)

def setup(k, L):
    k("s_load_dwordx4 s[60:63], s[0:1], 32")
    k("s_load_dwordx2 s[48:49], s[0:1], 16")
    k("s_load_dwordx2 s[52:53], s[0:1], 48")
    k(f"s_sub_u32 s47, s50, {J_GU}")
    k(f"s_cmp_lt_u32 s47, {J_WD - J_GU}")
    k(f"s_cbranch_scc0 {L}_rp")
    k("s_cmp_ge_u32 s47, 108")
    k("s_cselect_b32 s44, 1, 0")
    k("s_mul_i32 s45, s44, 108")
    k("s_sub_u32 s47, s47, s45")
    k("s_mul_i32 s45, s47, 43691")
    k("s_lshr_b32 s45, s45, 17")
    k("s_mul_i32 s46, s45, 3")
    k("s_sub_u32 s46, s47, s46")
    k("v_lshrrev_b32 v248, 4, v0")
    k("v_and_b32 v247, 15, v0")
    k("v_mul_u32_u24 v248, 9216, v248")
    k("v_lshl_add_u32 v248, v247, 4, v248")
    k(f"s_mul_i32 s47, s46, {192*9216}")
    k("s_lshl_b32 s51, s45, 8")
    k("s_add_u32 s47, s47, s51")
    k("s_cmp_eq_u32 s44, 0")
    k("s_waitcnt lgkmcnt(0)")
    k("s_cselect_b32 s60, s60, s62")
    k("s_cselect_b32 s61, s61, s63")
    k(f"s_mov_b32 s62, {576*4608*2}")
    k(f"s_branch {L}_sd")
    k(f"{L}_rp:")
    k("s_mov_b32 s44, 2")
    k(f"s_sub_u32 s45, s50, {J_WD}")
    k(f"s_cmp_lt_u32 s50, {J_GU}")
    k("s_cselect_b32 s45, s50, s45")
    k("s_cselect_b32 s46, 9, 72")
    k("s_lshl_b32 s47, s45, 6")
    k(f"s_cmp_lt_u32 s50, {J_GU}")
    for jj in range(2):
        d = 247 + jj
        k("v_lshrrev_b32 v240, 3, v0")
        k(f"v_add_u32 v240, s47, v240")
        if jj: k("v_add_u32 v240, 32, v240")
        k("v_lshrrev_b32 v241, 4, v240")
        k("v_mul_u32_u24 v242, 18, v241")
        k("v_and_b32 v243, 15, v240")
        k("v_add_u32 v242, v242, v243")
        k("v_and_b32 v243, 1, v241")
        k("v_lshl_add_u32 v242, v243, 1, v242")
        k("v_bfe_u32 v241, v240, 1, 5")
        k("v_mul_u32_u24 v243, 18, v241")
        k("v_and_b32 v244, 1, v240")
        k("v_add_u32 v243, v243, v244")
        k("v_and_b32 v244, 1, v241")
        k("v_xor_b32 v244, 1, v244")
        k("v_lshl_add_u32 v243, v244, 4, v243")
        k("v_cmp_gt_u32 vcc, 512, v240")
        k("v_cndmask_b32 v242, v243, v242, vcc")
        k("s_cselect_b64 vcc, -1, 0")
        k("v_cndmask_b32 v240, v240, v242, vcc")
        k("v_mul_u32_u24 v240, 1152, v240")
        k("v_and_b32 v241, 7, v0")
        k(f"v_lshl_add_u32 v{d}, v241, 4, v240")
    k("s_waitcnt lgkmcnt(0)")
    k("s_cselect_b32 s60, s48, s52")
    k("s_cselect_b32 s61, s49, s53")
    k(f"s_mov_b32 s62, {WD_SZ}")
    k(f"s_cselect_b32 s62, {WO_SZ}, s62")
    k(f"{L}_sd:")
    k("s_and_b32 s61, s61, 0xffff")
    k("s_mov_b32 s63, 0x20000")

def loads(k, L, part):
    k("s_cmp_eq_u32 s44, 2")
    k(f"s_cbranch_scc1 {L}_lr{part}")
    for j in (range(9) if part == 0 else range(9, 12)):
        k(f"buffer_load_dwordx4 a[{A0+4*j}:{A0+4*j+3}], v248, s[60:63], s47 offen nt")
        if j < 11: k(f"s_add_u32 s47, s47, {16*9216}")
    k(f"s_branch {L}_ld{part}")
    k(f"{L}_lr{part}:")
    for jc in range(9):
        r = A0 + 4 * (part * 9 + jc)
        k(f"buffer_load_dwordx4 a[{r}:{r+3}], v{247+part}, s[60:63], 0 offen offset:{jc*128} nt")
    k(f"{L}_ld{part}:")

SO = (30, 31, 32, 33, 36, 37)
def finish(k, L, mid=None):
    srd(k, 40, 4, 0, WS_END)
    trbase(k, 132, 130)
    k("s_mov_b32 s39, s44")
    k("s_cmp_eq_u32 s44, 2")
    k(f"s_cbranch_scc1 {L}_fr")
    k("v_lshrrev_b32 v130, 4, v0")
    perm(k, 131, 130, 134)
    k("v_and_b32 v130, 15, v0")
    k("v_mul_u32_u24 v131, 288, v131")
    k("v_lshl_add_u32 v131, v130, 4, v131")
    for j in range(12): k(f"ds_write_b128 v131, a[{A0+4*j}:{A0+4*j+3}] offset:{j*16*288}")
    k("v_mul_u32_u24 v132, 288, v132")
    k("s_lshl_b32 s3, s18, 6")
    k("v_add_u32 v132, s3, v132")
    k("v_lshl_add_u32 v132, v133, 3, v132")
    k("s_lshl_b32 s30, s45, 3")
    k("s_lshl_b32 s3, s18, 1")
    k("s_add_u32 s31, s30, s3")
    k("s_mul_i32 s38, s46, 36864")
    k("s_lshl_b32 s3, s31, 7")
    k("s_add_u32 s38, s38, s3")
    k("s_lshl_b32 s3, s44, 6")
    k("s_add_u32 s38, s38, s3")
    k(f"s_add_u32 s38, s38, {SGU}")
    k("s_mul_i32 s30, s31, 18")
    k("s_mul_i32 s3, s46, 6")
    k("s_add_u32 s30, s30, s3")
    k("s_lshl_b32 s30, s30, 11")
    k("s_lshl_b32 s3, s44, 10")
    k("s_add_u32 s30, s30, s3")
    k(f"s_add_u32 s30, s30, {WGU}")
    k(f"s_add_u32 s33, s30, {18*2048}")
    k("v_mov_b32 v134, 0")
    k("v_mov_b32 v135, 0")
    k("v_mov_b32 v128, 0x3f803f80")
    k(f"s_branch {L}_fm")
    k(f"{L}_fr:")
    k("v_lshrrev_b32 v130, 3, v0")
    perm(k, 131, 130, 134)
    k("v_and_b32 v130, 7, v0")
    k("v_mul_u32_u24 v131, 1184, v131")
    k("v_lshl_add_u32 v131, v130, 4, v131")
    for jj in range(2):
        for jc in range(9):
            r = A0 + 4 * (jj * 9 + jc)
            k(f"ds_write_b128 v131, a[{r}:{r+3}] offset:{jj*32*1184 + jc*128}")
        if jj == 0: k("s_waitcnt lgkmcnt(4)")
    k("v_mul_u32_u24 v132, 1184, v132")
    k("s_mul_i32 s3, s18, 288")
    k("v_add_u32 v132, s3, v132")
    k("v_and_b32 v130, 1, v133")
    k("v_lshl_add_u32 v134, v130, 3, v132")
    k("v_lshrrev_b32 v130, 1, v133")
    k(f"v_mul_u32_u24 v130, {32*1184}, v130")
    k("v_add_u32 v134, v134, v130")
    k("v_lshl_add_u32 v132, v133, 3, v132")
    k("s_mul_i32 s33, s46, 9216")
    k("s_mul_i32 s30, s45, 9216")
    k("s_lshl_b32 s3, s18, 1")
    k("s_mul_i32 s3, s3, s33")
    k("s_add_u32 s30, s30, s3")
    k("s_cmp_eq_u32 s46, 9")
    k(f"s_mov_b32 s3, {WD}")
    k(f"s_cselect_b32 s3, {WO}, s3")
    k("s_add_u32 s30, s30, s3")
    k("s_add_u32 s33, s33, s30")
    k(f"{L}_fm:")
    k("s_add_u32 s31, s30, 4096")
    k("s_add_u32 s32, s30, 8192")
    k("s_add_u32 s36, s33, 4096")
    k("s_add_u32 s37, s33, 8192")
    k("s_waitcnt lgkmcnt(0)")
    k("s_barrier")
    if mid: mid(k)
    k("s_cmp_eq_u32 s39, 2")
    k(f"s_cbranch_scc1 {L}_fr2")
    k.path = L + "g"
    items = [(132, 32*bb + ks*32*288, SO[3*bb + ks//2], (ks % 2)*2048, 134 + bb) for bb in range(2) for ks in range(6)]
    frags(k, items, 288, L + "g", 136, 128)
    xreduce(k, [134, 135], [130, 131])
    k("v_and_b32 v130, 15, v254")
    k("v_lshlrev_b32 v130, 2, v130")
    k("s_mov_b64 exec, 0xffff")
    k(f"buffer_store_dword v134, v130, s[40:43], s38 offen {SC}")
    k(f"buffer_store_dword v135, v130, s[40:43], s38 offen offset:128 {SC}")
    k("s_mov_b64 exec, -1")
    k(f"s_branch {L}_fd")
    k(f"{L}_fr2:")
    k.path = L + "r"
    items = []
    for nn in range(2):
        for ks in range(2):
            for b in range(4): items.append((132, 144*nn + 32*b + ks*32*1184, SO[3*nn + ks], b*1024, None))
        items.append((134, 144*nn + 128, SO[3*nn + 2], 0, None))
    frags(k, items, 1184, L + "r", 136, None)
    k.path = None
    k(f"{L}_fd:")

def idle_jobs(k):
    end = min(J_ATT, J_END)
    k("s_sub_u32 s50, s2, 256")
    k("s_mov_b32 s35, 0")
    srd(k, 40, 4, 0, WS_END)
    k("s_branch pi_next")
    k("pi_top:")
    k("s_waitcnt vmcnt(14)")
    k("s_cmp_lg_u32 s35, 0")
    k("s_cbranch_scc1 pi_t1")
    k("s_waitcnt vmcnt(0)")
    k("pi_t1:")
    k("s_mov_b32 s35, 1")
    k("s_barrier")
    def mid(k):
        k("pi_next:")
        k("s_add_u32 s50, s50, 64")
        k(f"s_cmp_ge_u32 s50, {end}")
        k("s_cbranch_scc1 pi_last")
        setup(k, "pi")
        loads(k, "pi", 0); loads(k, "pi", 1)
        k("s_cmp_eq_u32 s35, 0")
        k("s_cbranch_scc1 pi_top")
        k("pi_last:")
    finish(k, "pi", mid)
    k(f"s_cmp_lt_u32 s50, {end}")
    k("s_cbranch_scc1 pi_top")
    k("s_barrier")
```

```python
from asmgen import *
from layout import *
from k_prep import srd, xreduce
from k_qkv import f2u, QSCALE
from m_pack import trbase
SC = "sc1"
SLOT = 34816; NS = 3; LDS_ST = NS * SLOT
def v4(r): return f"v[{r}:{r+3}]"
for _e in range(1152): assert (_e * 3641) >> 16 == _e // 18

def emit(k):
    N = "q0"
    W = (32, 68); XF = 104; ACC = 120; AS = 192; AM = 228; AG = 236; ONE = 244
    k(f"{N}_tile:")
    k("s_and_b32 s9, s9, 0xffff"); k(f"s_mov_b32 s10, {XSZ}"); k("s_mov_b32 s11, 0x20000")
    k("s_and_b32 s13, s13, 0xffff"); k(f"s_mov_b32 s14, {WQKV_SZ}"); k("s_mov_b32 s15, 0x20000")
    k("s_lshl_b32 s19, s16, 3")
    k("s_lshl_b32 s6, s18, 1")
    k("s_add_u32 s19, s19, s6")
    k("s_mul_i32 s34, s19, 18432")
    k("s_mul_i32 s35, s17, 288")
    k("s_lshl_b32 s38, s18, 12")
    k("s_lshl_b32 s39, s18, 9")
    k("s_add_u32 s39, s39, 32768")
    k("v_lshrrev_b32 v6, 3, v254")
    k("v_and_b32 v7, 7, v254")
    k("v_xor_b32 v7, v7, v6")
    k("v_mul_u32_u24 v2, 1152, v6")
    k("v_lshl_add_u32 v2, v7, 4, v2")
    for i in range(1, 4): k(f"v_add_u32 v{2+i}, {8192*i}, v2")
    k("s_mov_b32 s36, 0")
    for g in range(2):
        k(f"s_add_u32 m0, s38, {g*SLOT}")
        for i in range(4):
            k(f"buffer_load_dwordx4 v{2+i}, s[8:11], s34 offen offset:{1024*i} lds")
        k("s_add_u32 s34, s34, 128")
    for j in range(5):
        d = 9 + j
        if j < 4:
            k(f"s_lshl_b32 s6, s18, 8"); k(f"s_add_u32 s6, s6, {64*j}"); k("v_add_u32 v6, s6, v254")
        else:
            k(f"s_lshl_b32 s6, s18, 5"); k("s_add_u32 s6, s6, 1024"); k("v_and_b32 v6, 31, v254"); k("v_add_u32 v6, s6, v6")
        k("v_mul_u32_u24 v7, 3641, v6")
        k("v_lshrrev_b32 v7, 16, v7")
        k("v_mul_u32_u24 v8, 18, v7")
        k("v_sub_u32 v6, v6, v8")
        k("v_and_b32 v8, 0xfffffff3, v7")
        k(f"v_bfe_u32 v{d}, v7, 2, 1")
        k(f"v_lshl_add_u32 v8, v{d}, 3, v8")
        k(f"v_bfe_u32 v{d}, v7, 3, 1")
        k(f"v_lshl_add_u32 v8, v{d}, 2, v8")
        k("v_mul_u32_u24 v8, 3456, v8")
        k(f"v_lshl_add_u32 v{d}, v6, 4, v8")
        if 0 < j < 4: k(f"v_subrev_u32 v{d}, {1024*j}, v{d}")
    def group():
        L = [["s_add_u32 m0, s36, s38", "s_nop 0", "buffer_load_dwordx4 v2, s[8:11], s34 offen lds"]]
        for i in range(1, 4): L.append([f"buffer_load_dwordx4 v{2+i}, s[8:11], s34 offen offset:{1024*i} lds"])
        L.append(["s_add_u32 m0, m0, 16384", "s_add_u32 s34, s34, 128", "buffer_load_dwordx4 v9, s[12:15], s35 offen lds"])
        for j in range(1, 4): L.append([f"buffer_load_dwordx4 v{9+j}, s[12:15], s35 offen offset:{1024*j} lds"])
        L.append(["s_add_u32 m0, s36, s39", "s_mov_b32 exec_hi, 0", "buffer_load_dwordx4 v13, s[12:15], s35 offen lds", "s_mov_b32 exec_hi, -1",
                  f"s_add_u32 s35, s35, {64*3456}", f"s_add_u32 s36, s36, {SLOT}", f"s_cmp_eq_u32 s36, {NS*SLOT}", "s_cselect_b32 s36, 0, s36"])
        return L
    for g in range(2):
        k("s_add_u32 m0, s36, s38")
        k("s_sub_u32 s34, s34, 128")
        for b in group()[4:]: k.add(b)
    k("v_and_b32 v7, 15, v254")
    k("v_lshrrev_b32 v8, 4, v254")
    k("v_and_b32 v6, 7, v7")
    k("v_xor_b32 v6, v6, v8")
    k("v_lshlrev_b32 v14, 7, v7")
    k("v_lshl_add_u32 v14, v6, 4, v14")
    k("v_add_u32 v14, s38, v14")
    k("v_xor_b32 v15, 64, v14")
    trbase(k, 18, 6)
    k("v_mul_u32_u24 v17, 288, v18")
    k("v_add_u32 v17, 16384, v17")
    k("v_lshl_add_u32 v16, v19, 3, v17")
    k("v_mul_u32_u24 v6, 72, v19")
    k("v_add_u32 v17, v17, v6")
    for r in range(ACC, ONE): k(f"v_mov_b32 v{r}, 0")
    for i in range(4): k(f"v_mov_b32 v{ONE+i}, 0x3f803f80")
    srd(k, 24, 100, QKV, 3 * XSZ)
    srd(k, 28, 4, WQKV, WQKV_SZ + 0)
    k("s_lshl_b32 s40, s16, 2")
    k("s_add_u32 s40, s40, s18")
    k("s_mul_i32 s41, s17, 18")
    k("s_add_u32 s41, s41, s40")
    k("s_mul_i32 s41, s41, 9216")
    k("s_add_u32 s42, s41, 4096")
    k("s_add_u32 s43, s41, 8192")
    k("s_cmp_lt_u32 s17, 4")
    k(f"s_cselect_b32 s46, {f2u(QSCALE)}, 1.0")
    k("s_lshl_b32 s47, s18, 8")
    k(f"s_add_u32 s47, s47, {LDS_ST}")
    k("s_mul_i32 s45, s17, 589824")
    k("s_lshl_b32 s48, s19, 9")
    k("s_lshl_b32 s58, s17, 4")
    k("s_add_u32 s58, s58, s16")
    k("s_lshl_b32 s58, s58, 7")
    k("s_mov_b32 s37, 0")
    k("s_mov_b32 s33, 0")
    import os
    if os.environ.get("FQ"): k.add(k.stamp(8))
    k("s_waitcnt vmcnt(5) lgkmcnt(0)")
    if os.environ.get("FQ"): k.add(k.stamp(9))
    k("s_cmp_ge_u32 s17, 8")
    k(f"s_cbranch_scc1 {N}_v")
    for path in ("qk", "v"):
        k.path = N + path; L = f"{N}_{path}"
        if path == "v": k(f"{N}_v:")
        def reads(s):
            R = [(f"ds_read_b128 {v4(XF+8*s+4*j)}, v{20+s} offset:{2048*j}", f"{L}x{s}") for j in range(2)]
            for b in range(9):
                r = W[s] + 4 * b
                va, off = (22 + 2 * s, 36 * b + 4 * (b & 1)) if b < 8 else (23 + 2 * s, 32)
                R.append((f"ds_read_b64_tr_b16 v[{r}:{r+1}], v{va} offset:{off + s*32*288}", f"{L}w{s}_{b}"))
                R.append((f"ds_read_b64_tr_b16 v[{r+2}:{r+3}], v{va} offset:{off + s*32*288 + 8*288}", f"{L}w{s}_{b}"))
            return R
        NP = 12
        k("s_barrier")
        for d, r in ((20, 14), (22, 16), (23, 17)): k(f"v_mov_b32 v{d}, v{r}")
        k.add(reads(0)[:NP])
        k(f"{L}_loop:")
        for d, r in ((21, 15), (24, 16), (25, 17)): k(f"v_add_u32 v{d}, s37, v{r}")
        k(f"s_add_u32 s37, s37, {SLOT}")
        k(f"s_cmp_eq_u32 s37, {NS*SLOT}")
        k("s_cselect_b32 s37, 0, s37")
        k("s_cmp_ge_u32 s33, 14")
        k("s_cselect_b32 s10, 0, s10")
        k("s_cselect_b32 s14, 0, s14")
        dm = group()
        for s in range(2):
            mine = reads(s)[NP:]; nxt = reads(1 - s)[:NP]
            x = [v4(XF + 8 * s + 4 * j) for j in range(2)]
            mf = []
            for j in range(2):
                mf.append((None if j else f"{L}x{s}", f"v_mfma_f32_16x16x32_bf16 {v4(AM+4*j)}, {v4(ONE)}, {x[j]}, {v4(AM+4*j)}"))
                mf.append((None, f"v_mfma_f32_16x16x32_bf16 {v4(AG+4*j)}, {x[j]}, {x[j]}, {v4(AG+4*j)}"))
            for b in range(9):
                w = v4(W[s] + 4 * b)
                for n, (o, a) in enumerate(((x[0], ACC + 4 * b), (x[1], ACC + 36 + 4 * b), (v4(ONE), AS + 4 * b))):
                    ins = f"v_mfma_f32_16x16x32_bf16 {v4(a)}, {w}, {o}, {v4(a)}" if path == "qk" else f"v_mfma_f32_16x16x32_bf16 {v4(a)}, {o}, {w}, {v4(a)}"
                    mf.append((None if n else f"{L}w{s}_{b}", ins))
            for i, (tag, ins) in enumerate(mf):
                if tag: k(f"WAITLG {tag}")
                k(ins)
                if mine: k.add([mine.pop(0)])
                elif s == 1 and i == 14:
                    k("s_waitcnt vmcnt(9) lgkmcnt(0)")
                    k("s_barrier")
                    for d, r in ((20, 14), (22, 16), (23, 17)): k(f"v_add_u32 v{d}, s37, v{r}")
                elif i >= 19 and nxt: k.add([nxt.pop(0)])
                elif s == 0 and dm and i >= 9: k.add(dm.pop(0))
            assert not nxt and not mine and not dm
            k("s_cmp_lg_u32 s33, s40")
            k(f"s_cbranch_scc1 {L}_ns{s}")
            for b in range(9):
                k(f"buffer_store_dwordx4 {v4(W[s]+4*b)}, v1, s[28:31], s{41 + b//4} offen offset:{(b % 4)*1024} {SC}")
            k(f"{L}_ns{s}:")
            k("s_add_u32 s33, s33, 1")
        k("s_cmp_lt_u32 s33, 18")
        k(f"s_cbranch_scc1 {L}_loop")
        k("s_waitcnt lgkmcnt(0)")
        k.add(k.stamp(1))
        k("v_and_b32 v6, 3, v7")
        k("v_lshrrev_b32 v9, 2, v7")
        for j in range(2):
            g = AG + 4 * j
            for i in range(1, 4):
                k(f"v_cmp_eq_u32 vcc, {i}, v6")
                k(f"v_cndmask_b32 v{g}, v{g}, v{g+i}, vcc")
            k("v_cmp_eq_u32 vcc, v9, v8")
            k(f"v_cndmask_b32 v{g}, 0, v{g}, vcc")
        xreduce(k, [AG, AG + 4], [AG + 1, AG + 5])
        for j in range(2):
            m, g = AM + 4 * j, AG + 4 * j
            k(f"v_mul_f32 v{m}, {f2u(1/576)}, v{m}")
            k(f"v_mul_f32 v{g}, {f2u(1/576)}, v{g}")
            k(f"v_fma_f32 v{g}, -v{m}, v{m}, v{g}")
            k(f"v_max_f32 v{g}, 0, v{g}")
            k(f"v_add_f32 v{g}, {f2u(1e-5)}, v{g}")
            k(f"v_rsq_f32 v{13+2*j}, v{g}")
            k(f"v_sub_f32 v{12+2*j}, 0, v{m}")
        R0 = 104; PR = 32
        if path == "qk":
            k("v_mul_f32 v13, s46, v13")
            k("v_mul_f32 v15, s46, v15")
            k("v_and_b32 v18, 1, v8")
            k("v_lshlrev_b32 v18, 9, v18")
            k("v_lshrrev_b32 v19, 1, v8")
            k("v_lshl_add_u32 v18, v19, 8, v18")
            k("v_lshl_add_u32 v18, v7, 4, v18")
            k("v_add_u32 v18, s48, v18")
        else:
            k("v_lshl_add_u32 v11, v7, 3, s47")
            k("ds_write_b64 v11, v[12:13]")
            k("ds_write_b64 v11, v[14:15] offset:128")
            k("v_lshl_add_u32 v11, v8, 5, s47")
            for j in range(2):
                for h in range(2): k(f"ds_read_b128 {v4(R0+8*j+4*h)}, v11 offset:{j*128+h*16}")
            k("v_add_u32 v18, s48, v1")
            k("s_waitcnt lgkmcnt(0)")
        for b in range(9):
            P = PR + 4 * (b % 4)
            for j in range(2):
                a = ACC + 36 * j + 4 * b
                if path == "qk":
                    for i in range(4): k(f"v_fma_f32 v{a+i}, v{12+2*j}, v{AS+4*b+i}, v{a+i}")
                    for i in range(4): k(f"v_mul_f32 v{a+i}, v{a+i}, v{13+2*j}")
                else:
                    for i in range(4): k(f"v_fma_f32 v{a+i}, v{R0+8*j+2*i}, v{AS+4*b}, v{a+i}")
                    for i in range(4): k(f"v_mul_f32 v{a+i}, v{a+i}, v{R0+8*j+2*i+1}")
                k(f"v_cvt_pk_bf16_f32 v{P+2*j}, v{a}, v{a+1}")
                k(f"v_cvt_pk_bf16_f32 v{P+2*j+1}, v{a+2}, v{a+3}")
            if path == "qk":
                k(f"v_permlane16_swap_b32 v{P}, v{P+2}")
                k(f"v_permlane16_swap_b32 v{P+1}, v{P+3}")
            k(f"buffer_store_dwordx4 {v4(P)}, v18, s[24:27], s45 offen {SC}")
            if b < 8: k("s_add_u32 s45, s45, 65536")
        k("s_cmp_lg_u32 s40, 63")
        k("s_cbranch_scc1 at_main")
        srd(k, 28, 4, SQKV, SQKV_SZ)
        k("s_mul_i32 s41, s17, 576")
        if path == "qk":
            k("v_lshlrev_b32 v6, 4, v8")
            k("s_mov_b32 exec_lo, 0x00010001"); k("s_mov_b32 exec_hi, 0x00010001")
            for b in range(9): k(f"buffer_store_dwordx4 {v4(AS+4*b)}, v6, s[28:31], s41 offen offset:{64*b} {SC}")
        else:
            k("v_lshlrev_b32 v6, 2, v7")
            k("s_mov_b64 exec, 0xffff")
            for b in range(9): k(f"buffer_store_dword v{AS+4*b}, v6, s[28:31], s41 offen offset:{64*b} {SC}")
        k("s_mov_b64 exec, -1")
        k("s_branch at_main")
    k.path = None
```

```python
import sys
from asmgen import *
from layout import *
import k_prep

def finalize(k, entries, verbose=True):
    k.resolve_waits()
    added = k.fix_hazards()
    errs = []
    for e in entries:
        if getattr(k, "script", False):
            for wg in (0, 1, 77, 200, 255):
                for w in range(getattr(k, "nwaves", 4)): errs += k.check(e, f"{e}[wg{wg},w{w}]", sim=(wg, w))
            continue
        fw = list(dict.fromkeys(k.fwd_targets()))
        runs = [set()] + [{t} for t in fw if not t.endswith("_end")]
        extra = getattr(k, "extra_paths", [])
        for tk in getattr(k, 'only_paths', None) or (runs + extra):
            if tk in getattr(k, 'skip_paths', []): continue
            errs += k.check(e, e + str(sorted(tk)), taken=tk)
    errs = list(dict.fromkeys(errs))
    for x in errs[:40]: print("ERR", x)
    if verbose: print(entries, "instrs:", sum(1 for x in k.ins if x.kind not in ("label", "dir")), "nops added:", added, "errors:", len(errs))
    assert not errs

HEADER = open("interleave_layers__sliding_block__swiglu_ffn__prompt.s.ref").read().split("; Override launch")[0]

def build(part, path):
    k, launches, desc, entries = part
    finalize(k, entries)
    _, g, b, lds = launches[0]
    out = HEADER + f"; @launch grid=({g},1,1) block=({b},1,1) lds={lds}\n"
    out += '.amdgcn_target "amdgcn-amd-amdhsa--gfx950"\n.text\n'
    t = k.text().replace(entries[0] + ":\n", entries[0] + ":\ncode_mega:\n")
    out += t + "code_end:\n  s_endpgm\n" + desc
    open(path, "w").write(out)

if __name__ == "__main__":
    import k_mega
    build(k_mega.gen(), sys.argv[1] if len(sys.argv) > 1 else "main.s")
```

```python
import re

TRANS = ("v_exp_f32", "v_log_f32", "v_rcp_f32", "v_rsq_f32", "v_sqrt_f32", "v_sin_f32", "v_cos_f32")

def regs_of(tok):
    tok = tok.strip()
    if tok.startswith("-"): tok = tok[1:]
    if tok.startswith("|") and tok.endswith("|"): tok = tok[1:-1]
    m = re.fullmatch(r"abs\((.*)\)", tok)
    if m: tok = m.group(1)
    m = re.fullmatch(r"([vas])(\d+)", tok)
    if m: return [tok]
    m = re.fullmatch(r"([vas])\[(\d+):(\d+)\]", tok)
    if m: return [f"{m.group(1)}{i}" for i in range(int(m.group(2)), int(m.group(3)) + 1)]
    if tok == "vcc": return ["vcc_lo", "vcc_hi"]
    if tok == "exec": return ["exec_lo", "exec_hi"]
    if tok in ("vcc_lo", "vcc_hi", "exec_lo", "exec_hi", "m0"): return [tok]
    return []

class Ins:
    __slots__ = ("text", "op", "ops", "dst", "src", "kind", "tag", "passes", "cregs", "abregs", "wide", "label", "target", "nop", "path")
    def __init__(self, text, tag=None, path=None):
        self.text = text; self.tag = tag; self.path = path
        self.label = None; self.target = None; self.nop = 0
        self.passes = 0; self.cregs = []; self.abregs = []; self.wide = False
        t = text.split(";")[0].strip()
        if t.endswith(":"):
            self.kind = "label"; self.label = t[:-1]; self.op = ""; self.ops = []; self.dst = []; self.src = []; return
        if t.startswith(".") or t == "":
            self.kind = "dir"; self.op = ""; self.ops = []; self.dst = []; self.src = []; return
        parts = t.split(None, 1)
        op = parts[0]; rest = parts[1] if len(parts) > 1 else ""
        self.op = op
        rest = re.sub(r"\s+op_sel\S*", "", rest)
        ops = [o.strip() for o in re.split(r",(?![^\[]*\])(?![^(]*\))", rest)] if rest else []
        mods = ""
        if ops:
            last = ops[-1].split(None, 1)
            if len(last) > 1 and not op.startswith("s_waitcnt"):
                ops[-1] = last[0]; mods = last[1]
        self.ops = ops
        R = [regs_of(o) for o in ops]
        flat = lambda l: [x for y in l for x in y]
        if op in ("WAITVM", "WAITLG"):
            self.kind = "pwait"; self.dst = []; self.src = []
        elif op.startswith("v_mfma"):
            self.kind = "mfma"; self.dst = R[0]; self.abregs = R[1] + R[2]; self.cregs = R[3]; self.src = self.abregs + self.cregs
            self.passes = 8 if "32x32" in op else 4
        elif op.startswith("v_"):
            self.kind = "valu"
            b = re.sub(r"_(e32|e64|dpp|sdwa)$", "", op)
            if b.startswith("v_permlane") and "swap" in b:
                self.dst = R[0] + R[1]; self.src = R[0] + R[1]
            elif b in ("v_add_co_u32", "v_sub_co_u32", "v_subrev_co_u32", "v_addc_co_u32", "v_subb_co_u32"):
                self.dst = R[0] + R[1]; self.src = flat(R[2:])
            else:
                self.dst = R[0]; self.src = flat(R[1:])
                if b in ("v_fmac_f32", "v_dot2c_f32_bf16", "v_writelane_b32") or "dpp" in op or "row_" in mods or "quad_perm" in mods:
                    self.src = self.src + R[0]
        elif op.startswith("buffer_load") or op.startswith("global_load"):
            if " lds" in " " + mods + " " or "_lds_" in op:
                self.kind = "dma"; self.dst = []; self.src = flat(R) + ["m0"]
            else:
                self.kind = "vload"; self.dst = R[0]; self.src = flat(R[1:])
        elif op.startswith("buffer_store") or op.startswith("global_store"):
            self.kind = "vstore"; self.dst = []; self.src = flat(R)
            self.wide = op.endswith("x4") or op.endswith("x3")
            self.cregs = R[0] if op.startswith("buffer") else R[1]
        elif op.startswith("buffer_atomic") or op.startswith("global_atomic"):
            self.kind = "vstore"; self.dst = []; self.src = flat(R)
            if "sc0" in mods: self.kind = "vload"; self.dst = R[0]
        elif op.startswith("buffer_wbl2") or op.startswith("buffer_inv"):
            self.kind = "vstore"; self.dst = []; self.src = []
        elif op.startswith("ds_read") or op.startswith("ds_bpermute") or op.startswith("ds_swizzle"):
            self.kind = "dsread"; self.dst = R[0]; self.src = flat(R[1:])
        elif op.startswith("ds_write"):
            self.kind = "dswrite"; self.dst = []; self.src = flat(R)
        elif op.startswith("s_load") or op in ("s_memtime", "s_memrealtime"):
            self.kind = "smem"; self.dst = R[0]; self.src = flat(R[1:])
        elif op == "s_waitcnt":
            self.kind = "wait"; self.dst = []; self.src = []
        elif op == "s_nop":
            self.kind = "nop"; self.nop = int(ops[0], 0); self.dst = []; self.src = []
        elif op in ("s_branch",) or op.startswith("s_cbranch"):
            self.kind = "branch"; self.target = ops[0]; self.dst = []; self.src = []
        elif op in ("s_barrier", "s_endpgm", "s_setprio", "s_sleep"):
            self.kind = "misc"; self.dst = []; self.src = []
        elif op.startswith("s_cmp") or op.startswith("s_bitcmp"):
            self.kind = "salu"; self.dst = []; self.src = flat(R)
        elif op.startswith("s_"):
            self.kind = "salu"; self.dst = R[0]; self.src = flat(R[1:])
            if "saveexec" in op: self.dst = self.dst + ["exec_lo", "exec_hi"]
        else:
            raise ValueError("unknown instruction: " + text)

def need_states(st, ins):
    need = 0
    def req(t, n):
        nonlocal need
        if t is not None: need = max(need, t + n + 1)
    k = ins.kind
    b = re.sub(r"_(e32|e64|dpp|sdwa)$", "", ins.op)
    if k == "mfma":
        for r in ins.src: req(st["valu_w"].get(r), 2)
        for r in ins.abregs:
            e = st["mfma_w"].get(r)
            if e: req(e[0], 8 if e[1] == 4 else 12)
        for r in ins.cregs:
            e = st["mfma_w"].get(r)
            if e and not (e[2] == tuple(ins.cregs) and e[1] == ins.passes): req(e[0], 6 if e[1] == 4 else 10)
        req(st.get("valu_exec"), 4)
    if k in ("valu", "vload", "vstore", "dma", "dsread", "dswrite"):
        for r in ins.src + ins.dst:
            e = st["mfma_w"].get(r)
            if e: req(e[0], 8 if e[1] == 4 else 12)
    if k == "valu":
        for r in ins.dst:
            e = st["mfma_c"].get(r)
            if e: req(e[0], 3 if e[1] == 4 else 7)
            req(st["store_d"].get(r), 2)
        if b not in TRANS:
            for r in ins.src: req(st["trans_w"].get(r), 1)
        if b.startswith("v_permlane") or "dpp" in ins.op or "row_" in ins.text or "quad_perm" in ins.text:
            for r in ins.src: req(st["valu_w"].get(r), 2)
        if b in ("v_readlane_b32", "v_readfirstlane_b32"):
            for r in ins.src:
                if r[0] == "v" and r[1].isdigit(): req(st["valu_w"].get(r), 1)
        for r in ins.src:
            if r[0] == "s" or r.startswith("vcc"):
                req(st["valu_sw"].get(r), 4 if b in ("v_readlane_b32", "v_writelane_b32") else 2)
    if k in ("valu", "mfma", "vstore", "vload", "dma", "dsread", "dswrite"):
        for r in ins.src + ins.dst:
            e = st["dot_w"].get(r)
            if e:
                if e[1] == b and r in ins.dst and not (r in regs_of(ins.ops[1]) + regs_of(ins.ops[2])): pass
                else: req(e[0], 3)
    if k in ("vload", "dsread"):
        for r in ins.dst: req(st["store_d"].get(r), 1)
    if k in ("vload", "vstore", "dma"):
        for r in ins.src:
            if r[0] == "s": req(st["valu_sw"].get(r), 5)
    if k == "salu":
        for r in ins.src:
            if r[0] == "s" or r.startswith("vcc"): req(st["valu_sw"].get(r), 1)
    if k == "dma": req(st.get("m0_w"), 1)
    return need

def new_state():
    return {"valu_w": {}, "mfma_w": {}, "mfma_c": {}, "trans_w": {}, "valu_sw": {}, "store_d": {}, "dot_w": {}}

def update(st, ins, t):
    k = ins.kind
    b = re.sub(r"_(e32|e64|dpp|sdwa)$", "", ins.op)
    if k == "valu":
        for r in ins.dst:
            if (r[0] in "va" and r[1].isdigit()):
                st["valu_w"][r] = t
                st["mfma_w"].pop(r, None)
                if b in TRANS: st["trans_w"][r] = t
                else: st["trans_w"].pop(r, None)
                if b.startswith("v_dot"): st["dot_w"][r] = (t, b)
                else: st["dot_w"].pop(r, None)
            else:
                st["valu_sw"][r] = t
                if r.startswith("exec"): st["valu_exec"] = t
    elif k == "mfma":
        for r in ins.dst:
            st["mfma_w"][r] = (t, ins.passes, tuple(ins.dst)); st["valu_w"].pop(r, None); st["trans_w"].pop(r, None)
        for r in ins.cregs: st["mfma_c"][r] = (t, ins.passes)
    elif k == "vstore" and ins.wide:
        for r in ins.cregs: st["store_d"][r] = t
    elif k in ("vload", "dsread"):
        for r in ins.dst:
            st["valu_w"].pop(r, None); st["mfma_w"].pop(r, None); st["trans_w"].pop(r, None)
    elif k == "salu":
        for r in ins.dst:
            st["valu_sw"].pop(r, None)
            if r == "m0": st["m0_w"] = t

class Kern:
    def __init__(self):
        self.ins = []
        self.path = None
    def __call__(self, text, tag=None):
        for line in text.strip().split("\n"):
            line = line.strip()
            if line: self.ins.append(Ins(line, tag, self.path))
    def add(self, lst):
        for x in lst:
            if isinstance(x, Ins): x.path = self.path; self.ins.append(x)
            elif isinstance(x, tuple): self(x[0], x[1])
            else: self(x)

    def stamp(self, n):
        import os
        if os.environ.get("STAMPS", "") != getattr(self, "name", None): return []
        L = [f"{'s_memrealtime' if os.environ.get('RT') else 's_memtime'} s[{64+2*n}:{65+2*n}]"]
        L.append("s_waitcnt lgkmcnt(0)")
        if os.environ.get("ST0") and n > 0:
            self._sn = getattr(self, "_sn", 0) + 1
            L = ["s_waitcnt lgkmcnt(0)", "s_cmp_eq_u32 s54, 0", f"s_cbranch_scc0 stp{self._sn}"] + L + [f"stp{self._sn}:"]
        return L
    def stamp_out(self, wsptr=4, nwaves=4):
        import os
        if os.environ.get("STAMPS", "") != getattr(self, "name", None): return
        k = self
        k("s_waitcnt vmcnt(0) lgkmcnt(0)")
        k("s_memrealtime s[90:91]" if os.environ.get('RT') else "s_memtime s[90:91]")
        k("s_waitcnt lgkmcnt(0)")
        k("s_mov_b64 exec, 1")
        if os.environ.get("DBGOUT"):
            k("s_load_dwordx2 s[60:61], s[0:1], 64")
            k("s_lshl_b32 s3, s2, 2"); k("s_add_u32 s3, s3, s18"); k(f"s_cmp_lg_u32 s3, {int(os.environ['DBGOUT'])*4}"); k("s_cbranch_scc1 mega_exit")
            for n in range(14): k(f"s_sub_u32 s3, s{64+2*n}, s64"); k(f"v_mov_b32 v{16+n}, s3")
            k("v_mov_b32 v30, 0"); k("v_mov_b32 v31, 0"); k("v_mov_b32 v15, 0")
            k("s_waitcnt lgkmcnt(0)"); k("s_and_b32 s61, s61, 0xffff"); k("s_mov_b32 s62, 256"); k("s_mov_b32 s63, 0x20000")
            for q in range(4): k(f"buffer_store_dwordx4 v[{16+4*q}:{19+4*q}], v15, s[60:63], 0 offen offset:{16*q}")
            return
        for n in range(14): k(f"v_mov_b32 v{16+n}, s{64+2*n}")
        k("v_mov_b32 v30, 0"); k("v_mov_b32 v31, 0")
        k(f"s_add_u32 s60, s{wsptr}, {128<<20}"); k(f"s_addc_u32 s61, s{wsptr+1}, 0"); k("s_and_b32 s61, s61, 0xffff")
        k("s_mov_b32 s62, 0x100000"); k("s_mov_b32 s63, 0x20000")
        k("s_lshl_b32 s59, s2, 3"); k("s_add_u32 s59, s59, s18"); k("s_lshl_b32 s59, s59, 6")
        k("v_mov_b32 v15, 0")
        for q in range(4): k(f"buffer_store_dwordx4 v[{16+4*q}:{19+4*q}], v15, s[60:63], s59 offen offset:{16*q}")

    def resolve_waits(self):
        out = []
        for i, x in enumerate(self.ins):
            if x.kind != "pwait":
                out.append(x); continue
            tags = set(x.ops)
            cls = ("vload", "vstore", "dma") if x.op == "WAITVM" else ("dsread", "dswrite", "smem")
            n = 0; found = False
            for y in reversed(self.ins[:i]):
                if y.path is not None and y.path != x.path: continue
                if y.kind == "wait" and (("vmcnt(0)" in y.text) if x.op == "WAITVM" else ("lgkmcnt(0)" in y.text)):
                    found = True; n = None; break
                if y.kind in cls:
                    if y.tag in tags: found = True; break
                    assert y.kind != "smem", "smem inside counted lgkm window"
                    n += 1
            assert found, f"wait tag {tags} not found"
            if n is None: continue
            if x.op == "WAITVM":
                if n >= 63: continue
                out.append(Ins(f"s_waitcnt vmcnt({n})"))
            else:
                n = min(n, 15)
                out.append(Ins(f"s_waitcnt lgkmcnt({n})"))
        self.ins = out

    def fix_hazards(self):
        st = new_state(); t = 0; out = []; added = 0
        for x in self.ins:
            if x.kind in ("label", "dir"):
                out.append(x); continue
            n = need_states(st, x)
            if n > t:
                k = n - t
                out.append(Ins(f"s_nop {k-1}")); added += k; t += k
            update(st, x, t)
            t += x.nop + 1
            out.append(x)
        self.ins = out
        return added

    def check(self, entry, name="", taken=None, maxloop=2, sim=None):
        idx = {x.label: i for i, x in enumerate(self.ins) if x.kind == "label"}
        taken = taken or set()
        st = new_state(); t = 0; i = idx[entry]; vm = []; lg = []; cnt = {}; errs = []
        pend = {}
        sv = {"s2": sim[0]} if sim else None; scc = None; steps = 0
        def val(tok):
            if re.fullmatch(r"s\d+|m0", tok): return sv.get(tok)
            try: return int(tok, 0) & 0xffffffff
            except ValueError: return None
        while i < len(self.ins):
            x = self.ins[i]
            steps += 1; assert steps < 400000
            if sim and x.kind in ("salu", "valu", "smem"):
                o = x.ops
                if x.op == "v_readfirstlane_b32": sv[o[0]] = sim[1] if o[0] == "s18" else None
                elif x.kind == "salu" and x.op.startswith("s_cmp_") and x.op.endswith("_u32"):
                    a, b = val(o[0]), val(o[1])
                    scc = None if a is None or b is None else {"eq": a == b, "lg": a != b, "ge": a >= b, "lt": a < b, "gt": a > b, "le": a <= b}[x.op.split("_")[2]]
                elif x.op == "s_mov_b32": sv[o[0]] = val(o[1])
                elif x.op == "s_cselect_b32": sv[o[0]] = None if scc is None else val(o[1] if scc else o[2])
                elif x.op in ("s_add_u32", "s_sub_u32", "s_mul_i32", "s_and_b32", "s_lshl_b32", "s_lshr_b32"):
                    a, b = val(o[1]), val(o[2])
                    r = None if a is None or b is None else {"s_add_u32": lambda: a + b, "s_sub_u32": lambda: a - b, "s_mul_i32": lambda: a * b,
                        "s_and_b32": lambda: a & b, "s_lshl_b32": lambda: a << (b & 31), "s_lshr_b32": lambda: a >> (b & 31)}[x.op]() & 0xffffffff
                    sv[o[0]] = r
                    if x.op != "s_mul_i32": scc = None
                else:
                    for r in x.dst: sv[r] = None
                    if x.kind == "salu" and x.op not in ("s_mov_b64",): scc = None
            if x.kind in ("label", "dir"): i += 1; continue
            n = need_states(st, x)
            if n > t: errs.append(f"{name}: hazard short by {n-t} at [{i}] {x.text}")
            for r in x.src + x.dst:
                if r in pend: errs.append(f"{name}: reg {r} still pending ({pend[r]}) at [{i}] {x.text}")
            if x.kind == "wait":
                m = re.search(r"vmcnt\((\d+)\)", x.text)
                if m:
                    while len(vm) > int(m.group(1)):
                        for r in vm.pop(0): pend.pop(r, None)
                m = re.search(r"lgkmcnt\((\d+)\)", x.text)
                if m:
                    nn = int(m.group(1))
                    if nn > 0 and any(e[1] for e in lg): errs.append(f"{name}: counted lgkm wait with smem outstanding [{i}]")
                    while len(lg) > nn:
                        for r in lg.pop(0)[0]: pend.pop(r, None)
            elif x.kind in ("vload", "vstore", "dma"):
                vm.append(list(x.dst))
                for r in x.dst: pend[r] = x.text
                while len(vm) > 63:
                    for r in vm.pop(0): pend.pop(r, None)
            elif x.kind in ("dsread", "dswrite", "smem"):
                lg.append((list(x.dst), x.kind == "smem"))
                for r in x.dst: pend[r] = x.text
                if len(lg) > 15 and not getattr(self, "_lgwarn", False):
                    print(f"note {name}: >15 lgkm ops outstanding at [{i}] {x.text}"); self._lgwarn = True
            update(st, x, t)
            t += x.nop + 1
            if x.op == "s_endpgm": break
            if x.kind == "branch":
                j = idx[x.target]
                if x.op == "s_branch":
                    if j <= i:
                        cnt[i] = cnt.get(i, 0) + 1
                        if cnt[i] > 1 and not sim: break
                        if sim and x.target.endswith("_wl") and cnt[i] % 2 == 0: i += 1; continue
                    i = j; continue
                if sim and x.target.endswith("_wl"):
                    cnt[i] = cnt.get(i, 0) + 1
                    i = j if cnt[i] % 2 else i + 1
                    continue
                if sim and scc is None and x.target.endswith("_redo") and sim[0] % 2 == 1: i = j; continue
                if sim and scc is None and x.target.endswith("_wd"):
                    cnt["wd"] = cnt.get("wd", 0) + 1
                    if (cnt["wd"] + sim[0]) % 5 == 0: i = j; continue
                if sim and scc is not None and x.op in ("s_cbranch_scc0", "s_cbranch_scc1"):
                    if scc == (x.op == "s_cbranch_scc1"): i = j
                    else: i += 1
                    continue
                if j <= i:
                    cnt[i] = cnt.get(i, 0) + 1
                    if cnt[i] < maxloop: i = j; continue
                elif x.target in taken or (i in taken):
                    i = j; continue
            i += 1
        return errs

    def fwd_targets(self):
        idx = {x.label: i for i, x in enumerate(self.ins) if x.kind == "label"}
        return [x.target for i, x in enumerate(self.ins) if x.kind == "branch" and x.op != "s_branch" and idx.get(x.target, -1) > i]

    def text(self):
        return "\n".join(("" if x.kind in ("label", "dir") else "  ") + x.text for x in self.ins) + "\n"

def interleave(main, fill, per_slot=2.0, start=0):
    out = []; budget = 0.0; fi = 0
    for s, item in enumerate(main):
        out.extend(item)
        budget += per_slot - (len(item) - 1)
        while fi < len(fill) and fill[fi][2] <= s + start and budget >= fill[fi][0] - 1e-9:
            out.append(fill[fi][1]); budget -= fill[fi][0]; fi += 1
        budget = min(budget, per_slot)
    return out, fill[fi:]

def descriptor(name, vgprs, agprs, sgprs=96):
    acc = (vgprs + 3) // 4 * 4
    nfv = acc + agprs if agprs else vgprs
    return f""".section .rodata,"a"
.p2align 6
.amdhsa_kernel {name}
  .amdhsa_next_free_vgpr {nfv}
  .amdhsa_next_free_sgpr {sgprs}
  .amdhsa_accum_offset {acc}
  .amdhsa_group_segment_fixed_size 0
  .amdhsa_kernarg_size 80
  .amdhsa_user_sgpr_count 2
  .amdhsa_user_sgpr_kernarg_segment_ptr 1
  .amdhsa_system_sgpr_workgroup_id_x 1
  .amdhsa_float_denorm_mode_32 3
.end_amdhsa_kernel
.text
"""

def unit_cost(x):
    if x.kind in ("salu", "wait", "pwait", "misc", "nop", "smem", "branch"): return 0
    if x.kind == "valu":
        b = re.sub(r"_(e32|e64)$", "", x.op)
        return 2 if (b in TRANS or b.startswith("v_permlane")) else 1
    if x.kind in ("dsread", "dswrite"): return 1
    if x.kind in ("dma", "vload"): return 2
    if x.kind == "vstore": return 0
    return 0

class Bundle:
    def __init__(self, items): self.items = [as_ins(x) for x in items]

def as_ins(x):
    if isinstance(x, Ins): return x
    if isinstance(x, tuple): return Ins(x[0], x[1])
    return Ins(x)

def depends(a, b):
    if a.kind in ("pwait", "wait") or b.kind in ("pwait", "wait"): return True
    if a.kind in ("vstore", "vload", "dma") and b.kind in ("vstore", "vload", "dma"): return True
    if a.kind in ("dsread", "dswrite") and b.kind in ("dsread", "dswrite"): return True
    sa, da, sb, db = set(a.src), set(a.dst), set(b.src), set(b.dst)
    return bool(da & sb or da & db or sa & db)

def pack(k, mfmas, fixed, flow, units=2, window=24, st=None, t0=0):
    st = st or new_state(); t = t0
    flow = [(as_ins(a), g) for a, g in flow]
    over = 0
    def emit(x):
        nonlocal t
        n = need_states(st, x)
        if n > t: t = n
        if x.kind not in ("label", "dir"): update(st, x, t); t += x.nop + 1
        x.path = k.path
        k.ins.append(x)
    units0 = units
    for i, m in enumerate(mfmas):
        units = units0(i) if callable(units0) else units0
        emit(as_ins(m))
        bnd = [x for x in fixed.get(i, []) if isinstance(x, Bundle)]
        fx = [as_ins(x) for x in fixed.get(i, []) if not isinstance(x, Bundle)]
        sc = [x for x in fx if unit_cost(x) == 0 and x.kind != "vstore"]
        ve = [x for x in fx if x not in sc]
        left = units - sum(unit_cost(x) for x in ve) - max(0, len(sc) - 1) - (units if bnd else 0)
        nsc = len(sc)
        chosen = []
        j = 0
        while j < min(len(flow), window):
            x, g = flow[j]
            if g > i: break
            c = unit_cost(x); isc = (c == 0 and x.kind != "vstore")
            ok = all(not depends(flow[q][0], x) for q in range(j))
            if ok and isc:
                ok = nsc == 0 and not chosen_dep(chosen, x)
            if ok and not isc:
                ok = c <= left
                if ok and x.kind in ("dsread",) and any(y.kind == "valu" for y in chosen + ve): ok = False
            if ok:
                tt = t + nsc + len(ve) + len(chosen)
                stc = st
                if need_states(stc, x) > tt: ok = False
                for y in chosen:
                    if depends(y, x) and (set(y.dst) & set(x.src)):
                        by = re.sub(r"_(e32|e64)$", "", y.op)
                        if by in TRANS or x.op.startswith("v_permlane") or y.kind == "dsread": ok = False
            if ok:
                chosen.append(x); flow.pop(j)
                if isc: nsc += 1
                else: left -= c
                continue
            j += 1
        csc = [x for x in chosen if unit_cost(x) == 0 and x.kind != "vstore"]
        cve = [x for x in chosen if x not in csc]
        for x in sc + csc: emit(x)
        ds = [x for x in ve + cve if x.kind == "dsread"]
        rest = [x for x in ve + cve if x.kind != "dsread"]
        if len(rest) == 2 and rest[1].op.startswith("v_cvt_pk") and not depends(rest[0], rest[1]): rest = [rest[1], rest[0]]
        for x in ds + rest: emit(x)
        for b_ in bnd:
            for x in b_.items: emit(x)
        if left < 0: over += -left
    return [x for x, g in flow], over

def chosen_dep(chosen, x):
    return any(depends(y, x) for y in chosen)
```

```python
from asmgen import *
from layout import *
from k_prep import srd, entry, xreduce
from k_qkv import load_stats, finish_stats, f2u, QSCALE
import k_gemmk as G
import k_ffn1 as F1
import m_attn as AT
import m_pack as PK
import m_qkv0 as Q0
import m_down as DN
from k_prep import code_prefetch
import math, os

GRID = 256
INPACK = True
KNAME = 'interleave_layers__sliding_block__swiglu_ffn__prompt_kernel'
SC = "sc1"
LDS = 39 * 4096 + 1024 + 576
SPIN = 150000
SLEEP = int(os.environ.get('SLEEP', '0'))
def v4(r): return f"v[{r}:{r+3}]"
def a4(r): return f"a[{r}:{r+3}]"

def make_tag(k):
    k("s_waitcnt lgkmcnt(0)")
    k("s_mul_i32 s3, s93, 0x9E3779B1")
    k("s_add_u32 s3, s3, 0x7F4A7C15")
    k("v_mov_b32 v253, s3")

def signal(k, so, nvm, lab):
    k(f"s_waitcnt vmcnt({nvm})")
    k("s_barrier")
    k("s_cmp_lg_u32 s18, 0")
    k(f"s_cbranch_scc1 {lab}_sg")
    k("s_mov_b64 exec, 1")
    k(f"buffer_store_dword v253, v252, s[96:99], s{so} offen {SC}")
    k("s_mov_b64 exec, -1")
    k(f"{lab}_sg:")

def wait_flags(k, so, n, lab, skip_if=None, keep=0):
    k("s_cmp_lg_u32 s18, 0")
    k(f"s_cbranch_scc1 {lab}_wn")
    if skip_if:
        k(f"s_cmp_eq_u32 {skip_if}, 0")
        k(f"s_cbranch_scc1 {lab}_wn")
    if n:
        k(f"v_min_u32 v255, {n-1}, v254")
        k("v_lshlrev_b32 v255, 7, v255")
    k(f"s_mov_b32 s3, {SPIN}")
    ld = lambda r: k(f"buffer_load_dword v{r}, v255, s[96:99], s{so} offen {SC}")
    ld(249); k("s_sleep 2"); ld(250); k("s_sleep 2")
    k(f"{lab}_wl:")
    for r, nx in ((249, 251), (250, 249), (251, 250)):
        ld(nx)
        k("s_waitcnt vmcnt(2)")
        k(f"v_cmp_ne_u32 vcc, v253, v{r}")
        k("s_nop 1")
        k("s_cmp_eq_u64 vcc, 0")
        k(f"s_cbranch_scc1 {lab}_wd")
    k("s_sub_u32 s3, s3, 1")
    k("s_cmp_lg_u32 s3, 0")
    k(f"s_cbranch_scc1 {lab}_wl")
    k(f"{lab}_wn:")
    k(f"s_waitcnt vmcnt({keep})")
    k(f"{lab}_wd:")
    k("s_barrier")

def gk_loads(s, part, half=None):
    L = [t for _, t in G.loads(s, half)]
    if part == "w": L = [t for t in L if "s[12:15]" in t]
    if part == "h": L = [t for t in L if "s[8:11]" in t]
    return L

def gk_tail(k):
    acc = G.acc; ACC = G.ACC; T = G.T; RES = G.RES; b0 = 68; ZA = 49152
    k("v_mov_b32 v20, 0")
    k("v_mov_b32 v21, 0")
    k("v_mov_b32 v22, 0xffff0000")
    k("v_mov_b32 v23, 0x3f803f80")
    FT = os.environ.get("FT")
    if FT: k.add(k.stamp(1))
    k("s_waitcnt vmcnt(0)")
    if FT: k.add(k.stamp(2))
    mf = []; flow = []
    for ks in range(2):
        for tb in range(4): mf.append(f"v_mfma_f32_16x16x32_bf16 {v4(acc(tb, 4+ks))}, {a4(b0+48)}, {a4(b0+(16, 52)[ks]+4*tb)}, {v4(acc(tb, 4+ks))}")
    for p in range(2):
        for i in range(4):
            flow.append((f"v_permlane32_swap_b32 v{acc(2*p,4)+i}, v{acc(2*p+1,4)+i}", 8))
            flow.append((f"v_permlane32_swap_b32 v{acc(2*p,5)+i}, v{acc(2*p+1,5)+i}", 8))
            flow.append((f"v_add_f32 v{acc(2*p,4)+i}, v{acc(2*p,4)+i}, v{acc(2*p+1,5)+i}", 8))
        flow.append((f"ds_write_b128 v{14+p}, {v4(acc(2*p,4))} offset:{ZA}", 8))
    fixed = {}
    for b in range(4):
        for ks in range(2):
            for tb in (1, 2, 3, 0):
                mf.append(f"v_mfma_f32_16x16x32_bf16 {v4(acc(tb, b))}, {a4(b0+32*ks+4*b)}, {a4(b0+(16, 52)[ks]+4*tb)}, {v4(acc(tb, b))}")
        for j in range(1, 4):
            fixed.setdefault(len(mf) + j, []).append(f"ds_write_b128 v{25+j}, {v4(acc(j, b))} offset:{b*1024}")
    late = [x for g in sorted(fixed) if g >= len(mf) for x in fixed[g]]
    left, over = pack(k, mf, fixed, flow)
    k.add(left); k.add(late)
    k("s_waitcnt lgkmcnt(0)")
    if FT: k.add(k.stamp(3))
    k("s_barrier")
    if FT: k.add(k.stamp(4))
    Z = acc(1, 0)
    for b in range(4):
        for ss in range(3): k(f"ds_read_b128 {v4(T+4*(b*3+ss))}, v19 offset:{(ss*4+b)*1024}", f"r{b}")
        if b == 1:
            for h in range(2): k(f"ds_read_b128 {v4(Z+4*h)}, v29 offset:{ZA + h*1024}", "z")
    def v2(r): return f"v[{r}:{r+1}]"
    def summ(b):
        F = acc(0, b)
        k(f"WAITLG r{b}")
        for i in (0, 2):
            k(f"v_pk_add_f32 {v2(F+i)}, {v2(F+i)}, {v2(T+12*b+i)}")
            k(f"v_pk_add_f32 {v2(T+12*b+4+i)}, {v2(T+12*b+4+i)}, {v2(T+12*b+8+i)}")
        for i in (0, 2): k(f"v_pk_add_f32 {v2(F+i)}, {v2(F+i)}, {v2(T+12*b+4+i)}")
    def finish(x, y, res, pk, va, so, u):
        for q in range(4):
            k(f"v_lshlrev_b32 v{u+2*q}, 16, v{res+q}")
            k(f"v_and_b32 v{u+2*q+1}, v22, v{res+q}")
        for q in range(4):
            r = (x, x + 2, y, y + 2)[q]
            k(f"v_pk_add_f32 {v2(r)}, {v2(r)}, {v2(u+2*q)}")
        for q in range(4):
            r = (x, x + 2, y, y + 2)[q]
            k(f"v_cvt_pk_bf16_f32 v{pk+q}, v{r}, v{r+1}")
        k(f"buffer_store_dwordx4 {v4(pk)}, v{va}, s[36:39], s44 offen offset:{so} {SC}")
    PK = acc(2, 0); U = acc(3, 0)
    for pr in range(2):
        summ(2 * pr); summ(2 * pr + 1)
        x, y = acc(0, 2 * pr), acc(0, 2 * pr + 1)
        for i in range(4): k(f"v_permlane16_swap_b32 v{x+i}, v{y+i}")
        finish(x, y, RES + 4 * pr, PK + 4 * pr, 9, 1024 * pr, U)
    if FT: k.add(k.stamp(5))
    for i in (0, 2): k(f"v_pk_add_f32 {v2(Z+i)}, {v2(Z+i)}, {v2(Z+4+i)}")
    for i in range(4): k(f"v_mov_b32 v{Z+4+i}, v{Z+i}")
    for i in range(4): k(f"v_permlane32_swap_b32 v{Z+i}, v{Z+4+i}")
    for i in (0, 2): k(f"v_pk_add_f32 {v2(Z+i)}, {v2(Z+i)}, {v2(Z+4+i)}")
    for i in range(4): k(f"v_mov_b32 v{Z+4+i}, v{Z+i}")
    for i in range(4): k(f"v_permlane16_swap_b32 v{Z+i}, v{Z+4+i}")
    k("s_mov_b64 exec, 0xffff")
    finish(Z, Z + 4, RES + 8, PK + 8, 18, 2048, U)
    for q in range(8, 12):
        k(f"v_dot2c_f32_bf16 v20, v{PK+q}, v23")
        k(f"v_dot2c_f32_bf16 v21, v{PK+q}, v{PK+q}")
    k("s_mov_b64 exec, -1")
    for q in range(8):
        k(f"v_dot2c_f32_bf16 v20, v{PK+q}, v23")
        k(f"v_dot2c_f32_bf16 v21, v{PK+q}, v{PK+q}")
    xreduce(k, [20, 21], [24, 25])
    k("s_mov_b64 exec, 0xffff")
    k(f"buffer_store_dwordx2 v[20:21], v18, s[40:43], s51 offen {SC}")
    k("s_mov_b64 exec, -1")
    if FT: k.add(k.stamp(6))

def emit_gk(k):
    N = "gk"; acc = G.acc; ACC = G.ACC; RES = G.RES
    G.NTH = SC
    k(f"{N}_main:")
    k("s_and_b32 s20, s2, 7")
    k("s_lshr_b32 s21, s2, 3")
    k("s_lshr_b32 s16, s20, 1")
    k("s_lshl_b32 s16, s16, 3")
    k("s_lshr_b32 s22, s21, 2")
    k("s_add_u32 s16, s16, s22")
    k("s_and_b32 s17, s20, 1")
    k("s_lshl_b32 s17, s17, 2")
    k("s_and_b32 s22, s21, 3")
    k("s_add_u32 s17, s17, s22")
    k("v_add_u32 v2, 4096, v1")
    k("v_add_u32 v3, 8192, v1")
    k(f"s_mul_i32 s22, s17, {9*9216}")
    k(f"s_add_u32 s22, s22, {WO}")
    k("s_add_u32 s12, s4, s22"); k("s_addc_u32 s13, s5, 0"); k("s_and_b32 s13, s13, 0xffff"); k(f"s_mov_b32 s14, {9*9216}"); k("s_mov_b32 s15, 0x20000")
    def resid():
        k(f"buffer_load_dwordx4 {v4(RES)}, v16, s[24:27], s33 offen {SC}")
        k(f"buffer_load_dwordx4 {v4(RES+4)}, v16, s[24:27], s48 offen {SC}")
        k(f"buffer_load_dwordx4 {v4(RES+8)}, v17, s[24:27], s49 offen {SC}")
    k(f"s_mul_i32 s34, s18, {2*9216}")
    for t in gk_loads(0, "w"): k(t)
    signal(k, 58, 9, "gk")
    k("s_cmp_lg_u32 s54, 0")
    k(f"s_cbranch_scc1 {N}_nopk")
    k(f"s_cmp_ge_u32 s50, {PK.J_END}")
    k(f"s_cbranch_scc1 {N}_nopk")
    PK.finish(k, "pa")
    k(f"{N}_nopk:")
    k("s_add_u32 s34, s34, 9216")
    for t in gk_loads(1, "w"): k(t)
    k(f"s_mov_b32 s34, {8*9216}")
    for hf in range(2):
        k(f"s_cmp_eq_u32 s18, {hf}")
        k(f"s_cbranch_scc0 {N}_lw{hf}")
        for t in gk_loads(2, "w", hf): k(t)
        k(f"{N}_lw{hf}:")
    k("s_cmp_eq_u32 s54, 0")
    k("s_cselect_b32 s24, s94, s100"); k("s_cselect_b32 s25, s95, s101")
    assert XIN == 0
    k("s_cselect_b32 s46, 16, 256")
    k("s_cselect_b32 s47, 1152, 16")
    k("s_and_b32 s25, s25, 0xffff"); k(f"s_mov_b32 s26, {XSZ}"); k("s_mov_b32 s27, 0x20000")
    k("v_and_b32 v10, 15, v254")
    k("v_bfe_u32 v12, v254, 4, 1")
    k("v_lshrrev_b32 v13, 5, v254")
    k("v_lshl_add_u32 v12, v12, 1, v13")
    k("v_mul_lo_u32 v17, v10, s47")
    k("v_mul_lo_u32 v16, v12, s46")
    k("v_add_u32 v16, v16, v17")
    k("s_lshl_b32 s30, s16, 2")
    k("s_add_u32 s30, s30, s18")
    k("s_mul_i32 s31, s30, 18432")
    k("s_mul_i32 s32, s17, 9")
    k("s_mul_i32 s33, s32, s46")
    k("s_add_u32 s33, s33, s31")
    k("s_lshl_b32 s3, s46, 2")
    k("s_add_u32 s48, s33, s3")
    k("s_add_u32 s49, s48, s3")
    k("s_cmp_lg_u32 s54, 0")
    k(f"s_cbranch_scc1 {N}_r0")
    resid()
    k(f"{N}_r0:")
    for j in range(4):
        k(f"s_add_u32 s22, s18, {j}")
        k("s_and_b32 s22, s22, 3")
        k("s_mul_i32 s22, s22, 18432")
        k(f"v_add_u32 v{4+j}, s22, v1")
    k(f"s_mul_i32 s21, s16, {4*18432}")
    k(f"s_add_u32 s21, s21, {OO}")
    k("s_add_u32 s8, s100, s21"); k("s_addc_u32 s9, s101, 0"); k("s_and_b32 s9, s9, 0xffff"); k(f"s_mov_b32 s10, {4*18432}"); k("s_mov_b32 s11, 0x20000")
    for r in range(ACC, ACC + 96): k(f"v_mov_b32 v{r}, 0")
    srd(k, 36, 100, X1, XSZ)
    srd(k, 40, 100, ST1, STSZ)
    k("v_lshlrev_b32 v18, 4, v10")
    k("v_lshl_add_u32 v9, v12, 8, v18")
    k("s_lshl_b32 s44, s32, 8")
    k("s_add_u32 s44, s44, s31")
    k("s_lshl_b32 s51, s30, 10")
    k("s_lshr_b32 s20, s17, 1")
    k("s_lshl_b32 s20, s20, 8")
    k("s_add_u32 s51, s51, s20")
    k("s_and_b32 s20, s17, 1")
    k("s_lshl_b32 s20, s20, 3")
    k("s_add_u32 s51, s51, s20")
    k("s_mul_i32 s20, s18, 12288")
    k("v_add_u32 v19, s20, v1")
    for j in range(1, 4):
        k(f"s_add_u32 s20, s18, {j}")
        k("s_and_b32 s20, s20, 3")
        k("s_mul_i32 s20, s20, 12288")
        k(f"s_add_u32 s20, s20, {(j-1)*4096}")
        k(f"v_add_u32 v{25+j}, s20, v1")
    k("v_and_b32 v29, 31, v254")
    k("v_lshlrev_b32 v29, 4, v29")
    k("s_lshl_b32 s20, s18, 9")
    k("v_add_u32 v29, s20, v29")
    for p in range(2):
        k(f"s_add_u32 s20, s18, {2*p}")
        k("v_add_u32 v30, s20, v13")
        k("v_and_b32 v30, 3, v30")
        k(f"v_lshl_add_u32 v{14+p}, v30, 11, v29")
    k("s_lshl_b32 s20, s18, 11")
    k("v_add_u32 v29, s20, v1")
    k("s_lshr_b32 s45, s16, 2")
    k("s_lshl_b32 s45, s45, 12")
    k("s_add_u32 s45, s45, s59")
    k(f"s_add_u32 s45, s45, {F_ATT*FLG_SET}")
    k("s_lshl_b32 s58, s16, 3")
    k("s_add_u32 s58, s58, s17")
    k("s_lshl_b32 s58, s58, 7")
    k("s_add_u32 s58, s58, s59")
    k(f"s_add_u32 s58, s58, {F_WO*FLG_SET}")
    wait_flags(k, 45, 32, "gk")
    k.add(k.stamp(7))
    k("s_cmp_eq_u32 s54, 0")
    k(f"s_cbranch_scc1 {N}_r1")
    resid()
    k(f"{N}_r1:")
    k(f"s_mov_b32 s35, {8*2048}")
    for hf in range(2):
        k(f"s_cmp_eq_u32 s18, {hf}")
        k(f"s_cbranch_scc0 {N}_lh{hf}")
        for t in gk_loads(2, "h", hf): k(t)
        k(f"{N}_lh{hf}:")
    k("s_lshl_b32 s35, s18, 12")
    for t in gk_loads(0, "h"): k(t)
    k("s_add_u32 s35, s35, 2048")
    for t in gk_loads(1, "h"): k(t)
    k("s_or_b32 s3, s54, s18")
    k("s_cmp_lg_u32 s3, 0")
    k(f"s_cbranch_scc1 {N}_nopk2")
    k("s_lshl_b32 s3, s2, 7")
    k(f"s_add_u32 s3, s3, {F_PK*FLG_SET}")
    k("s_mov_b64 exec, 1")
    k(f"buffer_store_dword v253, v252, s[96:99], s3 offen {SC}")
    k("s_mov_b64 exec, -1")
    k(f"{N}_nopk2:")
    k("s_waitcnt vmcnt(16)")
    k("s_cmp_eq_u32 s18, 0")
    k(f"s_cbranch_scc0 {N}_c1")
    G.compute(k, 2, False, groups=range(5))
    k(f"{N}_c1:")
    k("s_cmp_eq_u32 s18, 1")
    k(f"s_cbranch_scc0 {N}_c2")
    G.compute(k, 2, False, groups=range(5, 10))
    k(f"{N}_c2:")
    k("s_waitcnt vmcnt(8)")
    G.compute(k, 0, False)
    gk_tail(k)

def emit_ffn1(k):
    CH = F1.CH; LDS_S = F1.LDS_S; XV, WB, ACC, NMEAN, CC, QQ, SG, TT, PP = F1.XV, F1.WB, F1.ACC, F1.NMEAN, F1.CC, F1.QQ, F1.SG, F1.TT, F1.PP
    xop, accr, rd = F1.xop, F1.accr, F1.rd
    F1.STORE_MOD = SC
    k("f1_main:")
    k("s_and_b32 s6, s2, 7")
    k("s_lshr_b32 s7, s2, 3")
    k("s_and_b32 s16, s6, 1")
    k("s_lshl_b32 s16, s16, 2")
    k("s_lshr_b32 s17, s7, 3")
    k("s_add_u32 s16, s16, s17")
    k("s_lshr_b32 s17, s6, 1")
    k("s_lshl_b32 s17, s17, 3")
    k("s_and_b32 s7, s7, 7")
    k("s_add_u32 s17, s17, s7")
    k("s_mul_i32 s39, s18, 9216")
    k(f"s_mul_i32 s6, s17, {9*CH}")
    k(f"s_add_u32 s6, s6, {WGU}")
    k("s_add_u32 s12, s4, s6"); k("s_addc_u32 s13, s5, 0"); k("s_and_b32 s13, s13, 0xffff"); k(f"s_mov_b32 s14, {9*CH}")
    if INPACK:
        k("s_or_b32 s3, s54, s18")
        k("s_cmp_lg_u32 s3, 0")
        k("s_cbranch_scc1 f1_pkok")
        k("v_lshlrev_b32 v255, 7, v254")
        k(f"s_mov_b32 s3, {SPIN}")
        for j in range(4): k(f"s_mov_b32 s{40+j}, {F_PK*FLG_SET + j*8192}")
        k("f1_pk_wl:")
        for j in range(4): k(f"buffer_load_dword v{244+j}, v255, s[96:99], s{40+j} offen {SC}")
        k("s_waitcnt vmcnt(0)")
        for j in range(4): k(f"v_xor_b32 v{244+j}, v{244+j}, v253")
        k("v_or3_b32 v244, v244, v245, v246")
        k("v_or_b32 v244, v244, v247")
        k("v_cmp_ne_u32 vcc, 0, v244")
        k("s_nop 1")
        k("s_cmp_eq_u64 vcc, 0")
        k("s_cbranch_scc1 f1_pkok")
        k("s_sub_u32 s3, s3, 1")
        k("s_cmp_lg_u32 s3, 0")
        k("s_cbranch_scc1 f1_pk_wl")
        k("f1_pkok:")
    signal(k, 58, 0, "wo")
    k.add(k.stamp(8))
    PRE = int(os.environ.get("F1PRE", "5"))
    k("s_lshl_b32 s38, s18, 10")
    def wgrp(g): return [x if isinstance(x, str) else (x[0], "wl") for c in range(3) for x in F1.dma(c, g)]
    for g in range(PRE): k.add(wgrp(g))
    k("s_lshl_b32 s19, s16, 4")
    k("s_lshl_b32 s6, s18, 2")
    k("s_add_u32 s19, s19, s6")
    for i in range(1, 5): k(f"s_mov_b32 s{32+i}, {4096*i}")
    k("s_mul_i32 s6, s19, 18432")
    k("v_add_u32 v2, s6, v1")
    for tb in range(1, 4): k(f"v_add_u32 v{2+tb}, 18432, v{1+tb}")
    k("v_and_b32 v13, 15, v254")
    k("v_lshrrev_b32 v15, 4, v254")
    k("s_lshl_b32 s6, s19, 10")
    k("v_add_u32 v9, s6, v1")
    k("v_min_u32 v10, 35, v254")
    k("v_lshlrev_b32 v10, 3, v10")
    k("s_mul_i32 s6, s18, 288")
    k("v_add_u32 v10, s6, v10")
    k("s_mul_i32 s42, s17, 1152")
    k("s_add_u32 s43, s42, 36864")
    k("s_add_u32 s44, s42, 73728")
    srd(k, 8, 100, X1, XSZ)
    srd(k, 20, 100, ST1, STSZ)
    srd(k, 28, 4, SGU, SGU_SZ)
    srd(k, 24, 100, HH, H_SZ)
    k("v_add_u32 v6, 65536, v1")
    k("v_add_u32 v7, 131072, v1")
    k(f"v_add_u32 v8, {4*CH}, v1")
    k("v_and_b32 v11, 1, v15")
    k("v_mul_u32_u24 v11, 147456, v11")
    k("v_lshrrev_b32 v12, 1, v15")
    k("v_lshl_add_u32 v11, v12, 8, v11")
    k("v_lshl_add_u32 v11, v13, 4, v11")
    k("s_mul_i32 s6, s19, 147456")
    k("v_add_u32 v11, s6, v11")
    k(f"v_add_u32 v12, {2*147456}, v11")
    k("s_mul_i32 s45, s17, 4608")
    k("s_lshl_b32 s46, s16, 12")
    k("s_add_u32 s46, s46, s59")
    k(f"s_add_u32 s46, s46, {F_WO*FLG_SET}")
    k("s_lshl_b32 s58, s17, 7")
    k("s_add_u32 s58, s58, s46")
    k(f"s_add_u32 s58, s58, {FLG_SET}")
    DPF = int(os.environ.get("DPF", "0"))
    if DPF:
        k("s_lshr_b32 s6, s2, 3")
        k("s_lshl_b32 s6, s6, 2")
        k("s_add_u32 s6, s6, s18")
        k("s_lshl_b32 s6, s6, 13")
        k("v_lshl_add_u32 v244, v254, 7, s6")
        k("s_and_b32 s6, s2, 1")
        k(f"s_mul_i32 s6, s6, {WD_SZ//2}")
        k(f"s_add_u32 s6, s6, {WD}")
        k("s_add_u32 s48, s4, s6"); k("s_addc_u32 s49, s5, 0"); k("s_and_b32 s49, s49, 0xffff"); k(f"s_mov_b32 s50, {WD_SZ//2}"); k("s_mov_b32 s51, 0x20000")
        k(f"s_mov_b32 s52, {1<<20}"); k(f"s_mov_b32 s53, {2<<20}")
    wait_flags(k, 46, 32, "f1")
    k.add(k.stamp(9))
    def xl(ks):
        so = "0" if ks < 4 else f"s{32 + ks // 4}"
        return [(f"buffer_load_dwordx4 {xop(ks, tb)}, v{2+tb}, s[8:11], {so} offen offset:{(ks % 4) * 1024} {SC}", f"x{ks}") for tb in range(4)]
    D = int(os.environ.get("XDIST", "3")); DSP = int(os.environ.get("DSP", "60"))
    for ks in range(D): k.add(xl(ks))
    R0 = TT; CS = ACC + 120
    ks_ = Kern(); load_stats(ks_, 20, 9, 4, R0, "st", SC)
    for i, sr in enumerate((42, 43, 44)):
        ks_(f"buffer_load_dwordx2 v[{CS+2*i}:{CS+2*i+1}], v10, s[28:31], s{sr} offen", "st")
    st_loads = list(ks_.ins)
    kf = Kern()
    kf("WAITVM st")
    for q in range(2):
        kf(f"v_add_f32 v{CS+q}, v{CS+q}, v{CS+2+q}")
        kf(f"v_add_f32 v{CS+q}, v{CS+q}, v{CS+4+q}")
    kf(f"v_add_u32 v10, {LDS_S}, v10")
    kf(f"ds_write_b64 v10, v[{CS}:{CS+1}]", "sw")
    finish_stats(kf, 4, R0)
    for tb in range(4):
        kf(f"v_rsq_f32 v{CC+tb}, v{R0+4*tb+1}")
        kf(f"v_sub_f32 v{NMEAN+tb}, 0, v{R0+4*tb}")
        kf(f"v_mov_b32 v{QQ+tb}, v{R0+4*tb+1}")
        kf(f"v_mul_f32 v{CC+tb}, {f2u(-math.log2(math.e))}, v{CC+tb}")
    kf("v_lshlrev_b32 v10, 4, v15")
    kf(f"v_add_u32 v10, {LDS_S}, v10")
    kf(f"v_add_u32 v9, {8*CH}, v1")
    st_fin = list(kf.ins)
    mf = []; fixed = {}; flow = []
    def fx(i, x): fixed.setdefault(i, []).extend(x if isinstance(x, list) else [x])
    def spread(items, g0, g1):
        vm = [x for x in items if not (isinstance(x, str) and x.startswith("s_add_u32 m0"))]
        step = (g1 - g0) / len(vm); n = 0; pend = None; last = -1
        for x in items:
            if isinstance(x, str) and x.startswith("s_add_u32 m0"): pend = x; continue
            g = max(int(g0 + (n + 0.5) * step), last + 1); n += 1
            while g % 4 in (0, 1) or any(unit_cost(as_ins(y)) for y in fixed.get(g, [])) or (pend and any(as_ins(y).kind == "dma" for y in fixed.get(g - 1, []))): g += 1
            last = g
            if pend: fx(g - 1, pend); pend = None
            fx(g, x)
    PB = (ACC + 96, WB)
    for c in range(3):
        for gu in range(2): k.add([rd(PB[0] + 8 * c + 4 * gu, c, 0, gu)])
    k("WAITLG w0_0")
    k("WAITVM x0")
    d3 = F1.dma_chunk(3); d3s = [d3[0:5], d3[5:10], d3[10:12]]
    for ks in range(18):
        i0 = len(mf)
        if ks > 0: fx(i0 - 2, f"WAITVM x{ks}")
        ext = xl(ks + D) if ks + D < 18 else []
        if ks == 6: ext = ext + st_loads[:4]
        if ks == 7: ext = ext + st_loads[4:]
        if ks == 10: flow += [(x, i0) for x in st_fin]
        if ks in (10, 11, 12): ext = ext + d3s[ks - 10]
        if PRE + ks < 9: ext = wgrp(PRE + ks) + ext
        if ext: spread(ext, i0, i0 + 20)
        if ks == 2 * PRE - 1 and PRE < 9:
            fx(i0 - 5, "WAITVM wl"); fx(i0 - 4, "s_barrier")
        if ks == 17:
            fx(i0 - 5, "WAITVM d3"); fx(i0 - 4, "WAITLG sw"); fx(i0 - 3, "s_barrier")
        for c in range(3):
            for gu in range(2):
                for tb in range(4):
                    a = accr(c, gu, tb); w = PB[ks % 2] + 8 * c + 4 * gu
                    i = len(mf)
                    if gu == 0 and tb == 0 and i > 0: fx(i - 1, f"WAITLG w{c}_{ks}")
                    mf.append(f"v_mfma_f32_16x16x32_bf16 {v4(a)}, {v4(w)}, {xop(ks, tb)}, {'0' if ks == 0 else v4(a)}")
                    if tb == 0 and ks < 17: fx(i, rd(PB[(ks + 1) % 2] + 8 * c + 4 * gu, c, ks + 1, gu))
                    if ks == 17 and c >= 1 and tb == 0: fx(i, rd(WB + 8 * (c - 1) + 4 * gu, 3, c - 1, gu))
                    if ks == 17 and c == 0 and tb == 1:
                        flow.append(((f"ds_read_b128 {v4(SG + 4*gu)}, v10 offset:{64*gu}", "s0"), i))
    flow.append(("WAITLG s0", len(mf) + 1))
    for e in range(3): flow += [(x, len(mf) + 1) for x in F1.epilogue(e)]
    for c in range(3, 9):
        i0 = len(mf)
        if c == 3: fx(i0 - 2, "s_barrier")
        for ks in range(18):
            for gu in range(2):
                for tb in range(4):
                    a = accr(c, gu, tb); w = WB + 8 * (ks % 3) + 4 * gu
                    i = len(mf)
                    if gu == 0 and tb == 0:
                        fx(i - 1, f"WAITLG w{c}_{ks}")
                        if ks == 16 and c < 8:
                            fx(i - 3, f"WAITVM d{c+1}"); fx(i - 2, "s_barrier")
                    mf.append(f"v_mfma_f32_16x16x32_bf16 {v4(a)}, {v4(w)}, {xop(ks, tb)}, {'0' if ks == 0 else v4(a)}")
                    if tb == 0:
                        c2, k2 = (c, ks + 2) if ks < 16 else (c + 1, ks - 16)
                        if c2 < 9: fx(i, rd(WB + 8 * (k2 % 3) + 4 * gu, c2, k2, gu))
        for dc, k0, k1 in {3: [(4, 0, 64), (5, 72, 140)], 4: [(6, 0, 120)], 5: [(7, 0, 120)], 6: [(8, 0, 120)]}.get(c, []):
            spread(F1.dma_chunk(dc), i0 + k0, i0 + k1)
        flow += [(x, len(mf) + 2) for x in F1.epilogue(c)]
        if c == 7:
            for j in range(DPF): spread([f"buffer_load_dword v{245+j}, v244, s[48:51], {('0', 's52', 's53')[j]} offen"], i0 + 8 + DSP * j, i0 + 10 + DSP * j)
    n0 = len(k.ins)
    left, over = pack(k, mf, fixed, flow)
    print("mega ffn1 leftover instrs:", len(left), "overfull units:", over)
    k.add(k.stamp(10))
    k.add(left)
    sub = Kern(); sub.ins = k.ins[n0:]; F1.check_deadlines(sub)
    iw = [i for i, x in enumerate(sub.ins) if x.tag == "sw"][0]; ir = [i for i, x in enumerate(sub.ins) if x.tag == "s0"][0]
    assert any(x.op == "s_barrier" for x in sub.ins[iw + 3:ir])

def emit_qkv(k):
    N = "q2"; LDS_ST = 39 * 4096; LDS_S = LDS_ST + 1024
    k(f"{N}_main:")
    k("s_and_b32 s6, s2, 7")
    k("s_lshr_b32 s7, s2, 3")
    k("s_mul_i32 s16, s7, 43")
    k("s_lshr_b32 s16, s16, 8")
    k("s_mul_i32 s17, s16, 6")
    k("s_sub_u32 s17, s7, s17")
    k("s_lshr_b32 s7, s6, 1")
    k("s_lshl_b32 s7, s7, 2")
    k("s_add_u32 s16, s16, s7")
    k("s_and_b32 s6, s6, 1")
    k("s_mul_i32 s6, s6, 6")
    k("s_add_u32 s17, s17, s6")
    k("s_cmp_eq_u32 s54, 0")
    k(f"s_cbranch_scc0 {N}_l1")
    k("s_cmp_lt_u32 s2, 192")
    k("s_cbranch_scc1 q0_tile")
    k("s_sub_u32 s6, s2, 192")
    k("s_lshr_b32 s6, s6, 3")
    k("s_lshl_b32 s6, s6, 2")
    k("s_add_u32 s6, s6, s18")
    if not os.environ.get("NORA"):
        k("s_sub_u32 s7, s2, 192")
        k("s_lshl_b32 s7, s7, 2")
        k("s_add_u32 s7, s7, s18")
        k("s_and_b32 s9, s9, 0xffff"); k(f"s_mov_b32 s10, {XSZ}"); k("s_mov_b32 s11, 0x20000")
        k("s_and_b32 s13, s13, 0xffff"); k(f"s_mov_b32 s14, {WQKV_SZ}"); k("s_mov_b32 s15, 0x20000")
        k("v_lshlrev_b32 v2, 15, v254")
        k("s_lshl_b32 s3, s7, 7")
        k(f"s_add_u32 s3, s3, {128*3456}")
        k("buffer_load_dword v245, v2, s[12:15], s3 offen")
        k("v_and_b32 v2, 7, v254")
        k("v_mul_u32_u24 v2, 1152, v2")
        k("v_lshrrev_b32 v3, 3, v254")
        k("v_min_u32 v3, 6, v3")
        k("v_lshl_add_u32 v2, v3, 7, v2")
        k("s_mul_i32 s3, s7, 9216")
        k("buffer_load_dword v239, v2, s[8:11], s3 offen offset:256")
    code_prefetch(k, "code_mega", "code_end", 32, 6, 254, 246, 20)
    make_tag(k)
    assert PK.NI1 >= 2
    PK.idle_jobs(k)
    k("s_branch at_main")
    Q0.emit(k)
    k(f"{N}_l1:")
    k("s_mul_i32 s6, s17, 165888")
    k(f"s_add_u32 s6, s6, {WQKV}")
    k("s_add_u32 s12, s4, s6"); k("s_addc_u32 s13, s5, 0"); k("s_and_b32 s13, s13, 0xffff"); k("s_mov_b32 s14, 165888"); k("s_mov_b32 s15, 0x20000")
    signal(k, 58, 0, "dn")
    if not os.environ.get("DBGOUT"): k.add(k.stamp(0))
    k("s_cmp_ge_u32 s2, 192")
    k("s_cbranch_scc1 at_main")
    QPRE = int(os.environ.get("QPRE", "27")); GLKS = int(os.environ.get("GLKS", "14"))
    k("s_lshl_b32 s38, s18, 10")
    def wpiece(i): return [f"s_add_u32 m0, s38, {i*4096}", "s_nop 0", ("buffer_load_dwordx4 v1, s[12:15], m0 offen lds", "qwl")]
    for i in range(QPRE): k.add(wpiece(i))
    k("s_lshl_b32 s19, s16, 3")
    k("s_lshl_b32 s6, s18, 1")
    k("s_add_u32 s19, s19, s6")
    k("s_mul_i32 s6, s19, 18432")
    k("v_add_u32 v2, s6, v1")
    k("v_add_u32 v3, 18432, v2")
    for i in range(1, 5): k(f"s_mov_b32 s{32+i}, {4096*i}")
    k(f"v_add_u32 v6, {17*9216}, v1")
    k("v_and_b32 v7, 15, v254")
    k("v_lshrrev_b32 v8, 4, v254")
    k("s_lshl_b32 s6, s19, 11")
    k("v_add_u32 v9, s6, v1")
    k("v_min_u32 v10, 35, v254")
    k("v_lshlrev_b32 v10, 4, v10")
    k("s_mul_i32 s42, s17, 576")
    srd(k, 8, 100, XIN, XSZ)
    srd(k, 20, 100, STIN, ST2SZ)
    srd(k, 28, 4, SQKV, SQKV_SZ)
    srd(k, 24, 100, QKV, 3 * XSZ)
    k("v_add_u32 v16, 65536, v1")
    k("v_add_u32 v17, 131072, v1")
    k("s_cmp_lt_u32 s17, 4")
    k(f"s_cselect_b32 s46, {f2u(QSCALE)}, 1.0")
    k("s_lshl_b32 s47, s18, 8")
    k(f"s_add_u32 s47, s47, {LDS_ST}")
    k("s_mul_i32 s45, s17, 589824")
    k("s_lshl_b32 s48, s19, 9")
    k("s_lshl_b32 s49, s16, 11")
    k(f"s_add_u32 s49, s49, {F_DN*FLG_SET}")
    k("s_lshl_b32 s58, s17, 4")
    k("s_add_u32 s58, s58, s16")
    k("s_lshl_b32 s58, s58, 7")
    k("s_add_u32 s58, s58, s59")
    R0 = 176; CS = 184; W = (32, 68); ACC = 104; SV = 196; PR = 232; WL = 144
    def wlast(b):
        so = "0" if b < 4 else f"s{32 + b // 4}"
        return (f"buffer_load_dwordx4 {a4(WL+4*b)}, v6, s[12:15], {so} offen offset:{(b % 4) * 1024}", "qwlast")
    k(f"buffer_load_dwordx4 v[{CS}:{CS+3}], v10, s[28:31], s42 offen")
    wait_flags(k, 49, 16, N)
    k.add(k.stamp(1))
    def xfrag(ks, j): return 4 * (ks * 2 + j)
    def xl(ks):
        so = "0" if ks < 4 else f"s{32 + ks // 4}"
        return [(f"buffer_load_dwordx4 {a4(xfrag(ks, j))}, v{2+j}, s[8:11], {so} offen offset:{(ks % 4) * 1024} {SC}", f"qx{ks}") for j in range(2)]
    D = 5
    for ks in range(D): k.add(xl(ks))
    for j in range(2):
        for h in range(2):
            k(f"buffer_load_dwordx4 {v4(R0 + 4*j + 240*0 + (0 if h == 0 else 64))}, v9, s[20:23], 0 offen offset:{j*2048 + h*1024} {SC}", "qst")
    k("s_cmp_ge_u32 s17, 8")
    k(f"s_cbranch_scc1 {N}_v")
    for path in ("qk", "v"):
        k.path = path
        if path == "v": k(f"{N}_v:")
        kf = Kern()
        kf(f"v_add_u32 v10, {LDS_S}, v10")
        kf(f"ds_write_b128 v10, v[{CS}:{CS+3}]")
        kf("WAITVM qst")
        for r in range(R0, R0 + 8): kf(f"v_add_f32 v{r}, v{r}, v{r+64}")
        finish_stats(kf, 2, R0)
        kf(f"v_rsq_f32 v13, v{R0+1}")
        kf(f"v_rsq_f32 v15, v{R0+5}")
        kf(f"v_sub_f32 v12, 0, v{R0}")
        kf(f"v_sub_f32 v14, 0, v{R0+4}")
        if path == "qk":
            kf("v_mul_f32 v13, s46, v13")
            kf("v_mul_f32 v15, s46, v15")
            kf(f"v_lshlrev_b32 v10, 4, v8")
            kf("v_and_b32 v18, 1, v8")
            kf("v_lshlrev_b32 v18, 9, v18")
            kf("v_lshrrev_b32 v19, 1, v8")
            kf("v_lshl_add_u32 v18, v19, 8, v18")
            kf("v_lshl_add_u32 v18, v7, 4, v18")
            kf("v_add_u32 v18, s48, v18")
        else:
            kf("v_lshl_add_u32 v11, v7, 3, s47")
            kf("ds_write_b64 v11, v[12:13]")
            kf("ds_write_b64 v11, v[14:15] offset:128")
            kf("v_lshl_add_u32 v11, v8, 5, s47")
            for j in range(2):
                for h in range(2):
                    kf(f"ds_read_b128 v[{R0+8*j+4*h}:{R0+8*j+4*h+3}], v11 offset:{j*128+h*16}", "qvs")
            kf(f"v_lshlrev_b32 v10, 2, v7")
            kf("v_add_u32 v18, s48, v1")
        kf(f"v_add_u32 v10, {LDS_S}, v10")
        def rd(ks, b):
            r = W[ks % 2] + 4 * b
            off = ks * 9216 + b * 1024
            va = 1 if off < 65536 else (16 if off < 131072 else 17)
            return (f"ds_read_b128 v[{r}:{r+3}], v{va} offset:{off % 65536}", f"qw{ks}_{b}")
        def mfma(ks, b, j):
            w = v4(W[ks % 2] + 4 * b) if ks < 17 else a4(WL + 4 * b)
            a = ACC + 4 * (j * 9 + b); x = xfrag(ks, j)
            c = "0" if ks == 0 else v4(a)
            if path == "qk": return f"v_mfma_f32_16x16x32_bf16 {v4(a)}, {w}, {a4(x)}, {c}"
            return f"v_mfma_f32_16x16x32_bf16 {v4(a)}, {a4(x)}, {w}, {c}"
        def epi(b):
            L = []; P = PR + 4 * (b % 2)
            for j in range(2):
                a = ACC + 4 * (j * 9 + b)
                if path == "qk":
                    for i in range(4): L.append(f"v_fma_f32 v{a+i}, v{12+2*j}, v{SV+4*b+i}, v{a+i}")
                    for i in range(4): L.append(f"v_mul_f32 v{a+i}, v{a+i}, v{13+2*j}")
                else:
                    for i in range(4): L.append(f"v_fma_f32 v{a+i}, v{R0+8*j+2*i}, v{SV+b}, v{a+i}")
                    for i in range(4): L.append(f"v_mul_f32 v{a+i}, v{a+i}, v{R0+8*j+2*i+1}")
                L.append(f"v_cvt_pk_bf16_f32 v{P+2*j}, v{a}, v{a+1}")
                L.append(f"v_cvt_pk_bf16_f32 v{P+2*j+1}, v{a+2}, v{a+3}")
            if path == "qk":
                L.append(f"v_permlane16_swap_b32 v{P}, v{P+2}")
                L.append(f"v_permlane16_swap_b32 v{P+1}, v{P+3}")
            L.append(f"buffer_store_dwordx4 v[{P}:{P+3}], v18, s[24:27], s45 offen {SC}")
            if b < 8: L.append("s_add_u32 s45, s45, 65536")
            return L
        for b in range(9): k.add([rd(0, b)])
        k("WAITLG qw0_2")
        k("WAITVM qx0")
        mf = []; fixed = {}
        def fx(i, x): fixed.setdefault(i, []).extend(x if isinstance(x, list) else [x])
        flow = [(x, 4 * 18) for x in kf.ins]
        for b in range(9):
            ins = (f"ds_read_b128 v[{SV+4*b}:{SV+4*b+3}], v10 offset:{b*64}", "sv") if path == "qk" else (f"ds_read_b32 v{SV+b}, v10 offset:{b*64}", "sv")
            flow.append((ins, 9 * 18 + 8 * b))
        for ks in range(16):
            i0 = len(mf)
            if ks > 0: fx(i0 - 2, f"WAITVM qx{ks}")
            ext = [[x] for x in xl(ks + D)] if ks + D < 18 else []
            rest = list(range(QPRE, 39)); per = -(-len(rest) // 5)
            if ks < 5: ext += [wpiece(i) for i in rest[ks * per:(ks + 1) * per]]
            if 7 <= ks < 10: ext += [[wlast(b)] for b in range(3 * (ks - 7), 3 * (ks - 6))]
            for n, x in enumerate(ext): fixed.setdefault(i0 + 1 + 2 * (n * 8 // len(ext)), []).append(Bundle(x))
            if ks == QPRE * 4 // 9 - 1:
                fx(i0 - 4, "WAITVM qwl"); fx(i0 - 3, "s_barrier")
            for b in range(9):
                i = len(mf)
                if b % 3 == 0 and i > 0: fx(i - 1, f"WAITLG qw{ks}_{b+2}")
                mf += [mfma(ks, b, 0), mfma(ks, b, 1)]
                fx(i, rd(ks + 1, b))
        fx(len(mf) - 2, "WAITVM qx17, qwlast")
        for b in range(9):
            i = len(mf)
            if b % 3 == 0: fx(i - 1, f"WAITLG qw16_{b+2}")
            mf += [mfma(16, b, 0), mfma(16, b, 1), mfma(17, b, 0), mfma(17, b, 1)]
            flow += [(x, i + 5) for x in epi(b)]
        left, over = pack(k, mf, fixed, flow)
        k.add(left)
        if path == "qk": k("s_branch at_main")
    k.path = None

def gen():
    k = Kern(); k.name = "mega"
    entry(k, KNAME)
    k("s_load_dwordx2 s[4:5], s[0:1], 72")
    k("s_load_dwordx4 s[8:11], s[0:1], 0")
    k("s_load_dwordx2 s[56:57], s[0:1], 56")
    k(f"s_cmp_ge_u32 s2, {GRID}")
    k("s_cbranch_scc1 mega_exit")
    k.add(k.stamp(0))
    k("v_lshrrev_b32 v8, 6, v0")
    k("v_and_b32 v254, 63, v0")
    k("v_readfirstlane_b32 s18, v8")
    k("v_lshlrev_b32 v1, 4, v254")
    k("v_mov_b32 v252, 0")
    k("s_mov_b32 s54, 0")
    k("s_mov_b32 s59, 0")
    k("s_waitcnt lgkmcnt(0)")
    k(f"s_add_u32 s6, s4, {EPOCH}")
    k("s_addc_u32 s7, s5, 0")
    k("s_load_dword s93, s[6:7], 0")
    k("s_mov_b64 s[100:101], s[4:5]")
    k("s_mov_b64 s[94:95], s[8:9]")
    k("s_mov_b64 s[12:13], s[10:11]")
    srd(k, 96, 4, FLG, EPOCH + 4 - FLG)
    emit_qkv(k)
    def after_stage(k, part):
        if part == 0:
            k("v_min_u32 v255, 8, v254")
            k("v_lshlrev_b32 v255, 7, v255")
            k(f"s_mov_b32 s35, {F_WOPK*FLG_SET}")
            k(f"buffer_load_dword v246, v255, s[96:99], s35 offen {SC}")
            k("WAITVM aq")
            return
        if part == "tag": return make_tag(k)
        if part == "setup":
            k(f"s_add_u32 s50, s2, {PK.J_ATT}")
            k("s_waitcnt lgkmcnt(0)")
            PK.setup(k, "pa")
            return
        if part == 1:
            k(f"s_mov_b32 s3, {SPIN}")
            k("at_wo_wl:")
            k("s_waitcnt vmcnt(0)")
            k("v_cmp_ne_u32 vcc, v253, v246")
            k("s_nop 1")
            k("s_cmp_eq_u64 vcc, 0")
            k("s_cbranch_scc1 at_wo_wd")
            k(f"buffer_load_dword v246, v255, s[96:99], s35 offen {SC}")
            k("s_sub_u32 s3, s3, 1")
            k("s_cmp_lg_u32 s3, 0")
            k("s_cbranch_scc1 at_wo_wl")
            k("s_waitcnt vmcnt(0)")
            k("at_wo_wd:")
            return
        k("s_cmp_lg_u32 s54, 0")
        k(f"s_cbranch_scc1 at_nopk{part}")
        k(f"s_cmp_ge_u32 s50, {PK.J_END}")
        k(f"s_cbranch_scc1 at_nopk{part}")
        PK.loads(k, "pa", part - 2)
        k(f"at_nopk{part}:")
    if os.environ.get("STOP") == "q0":
        k("at_main:"); k("s_branch mega_end"); AT.PFX = "xx"
    AT.emit(k, signal, wait_flags, SC, after_stage)
    emit_gk(k)
    emit_ffn1(k)
    DN.emit(k, signal, wait_flags)
    k("s_cmp_eq_u32 s54, 0")
    k("s_cbranch_scc0 mega_fin")
    if os.environ.get("STOP") == "l1": k("s_branch mega_fin")
    k("s_mov_b32 s54, 1")
    k(f"s_add_u32 s100, s100, {LSTRIDE}")
    k("s_addc_u32 s101, s101, 0")
    k(f"s_mov_b32 s59, {F_LAYER*FLG_SET}")
    k("s_branch q2_main")
    k("mega_fin:")
    k("s_or_b32 s3, s2, s18")
    k("s_cmp_lg_u32 s3, 0")
    k("s_cbranch_scc1 mega_end")
    k("s_add_u32 s3, s93, 1")
    k("v_mov_b32 v251, s3")
    k(f"s_mov_b32 s3, {EPOCH - FLG}")
    k("s_mov_b64 exec, 1")
    k(f"buffer_store_dword v251, v252, s[96:99], s3 offen {SC}")
    k("mega_end:")
    k.stamp_out()
    k("mega_exit:")
    k("s_endpgm")
    k.script = True
    return k, [(KNAME, GRID, 256, LDS)], descriptor(KNAME, 256, 256, 102), [KNAME]
```

```python
XSZ = 2048 * 576 * 2
STSZ = 2048 * 64
ST2SZ = 2048 * 128
H_SZ = 2048 * 4608 * 2
PART_SZ = 256 * 27648
XIN = 0
X1 = XSZ
QKV = 2 * XSZ
OO = 5 * XSZ
STIN = 6 * XSZ
ST1 = STIN + ST2SZ
HH = ST1 + STSZ
PART = HH + H_SZ
LSTRIDE = PART + PART_SZ
X2 = LSTRIDE + XIN; ST2 = LSTRIDE + STIN
WQKV = 2 * LSTRIDE; WQKV_SZ = 576 * 1728 * 2
WO = WQKV + WQKV_SZ; WO_SZ = 576 * 576 * 2
WGU = WO + WO_SZ; WGU_SZ = 576 * 9216 * 2
WD = WGU + WGU_SZ; WD_SZ = 4608 * 576 * 2
SQKV = WD + WD_SZ; SQKV_SZ = 1728 * 4
SGU = SQKV + 20736 + 3840; SGU_NP = 3; SGU_SZ = 3 * 9216 * 4
F_QKV, F_ATT, F_WO, F_F1, F_DX, F_DN, F_FA, F_LAYER, F_WOPK, F_PK = 0, 1, 2, 3, 4, 5, 6, 7, 14, 15
FLG = SGU + SGU_SZ; FLG_SET = 256 * 128; FLG_SZ = 16 * FLG_SET
EPOCH = FLG + FLG_SZ + 4096
WS_END = EPOCH + 4096
XF0 = XIN; ST0 = STIN
for _v in (X1, QKV, OO, STIN, ST1, HH, PART, LSTRIDE, WQKV, WO, WGU, WD, SQKV, SGU, FLG): assert _v % 1024 == 0, _v
assert WS_END < 126 << 20
```

```python
from asmgen import *
from layout import *
from k_prep import srd
import os
SC = "sc1"
GRP = 36864
def v4(r): return f"v[{r}:{r+3}]"
def v2(r): return f"v[{r}:{r+1}]"
def a4(r): return f"a[{r}:{r+3}]"
W = (32, 68); ACC = 104

def body(it):
    mf = []; fixed = {}
    def fx(i, x): fixed.setdefault(i, []).extend(x if isinstance(x, list) else [x])
    dm = []
    for j in range(9):
        pre = []
        if j == 0: pre = ["s_mov_b32 m0, s38", "s_nop 0"]
        elif j % 4 == 0: pre = ["s_add_u32 m0, m0, 4096", "s_add_u32 s34, s34, 4096"]
        post = [f"s_add_u32 s34, s34, {GRP - 8192}"] if j == 8 else []
        dm.append(pre + [(f"buffer_load_dwordx4 v1, s[12:15], s34 offen offset:{(j % 4)*1024} lds", f"d{it+2}")] + post)
    for ks in range(4):
        i0 = len(mf); K = 4 * it + ks
        hl = [(f"buffer_load_dwordx4 {a4(8*((ks+3) % 4) + 4*j)}, v{2+j}, s[8:11], {'s35' if ks == 0 else 's36'} offen offset:{((ks+3) % 4)*1024} {SC}", f"h{K+3}") for j in range(2)]
        ext = [[x] for x in hl] + ([dm.pop(0) for _ in range(3)] if ks < 3 else [])
        for n, x in enumerate(ext): fixed.setdefault(i0 + 1 + 2 * (n * 8 // len(ext)), []).append(Bundle(x))
        if ks > 0: fx(i0 - 2, f"WAITVM h{K}")
        if ks == 3:
            fx(i0 - 6, f"WAITVM d{it+1}"); fx(i0 - 4, "s_barrier")
        for b in range(9):
            i = len(mf)
            if b % 3 == 0 and i > 0: fx(i - 1, f"WAITLG w{K}_{b+2}")
            for j in range(2):
                a = ACC + 4 * (j * 9 + b)
                mf.append(f"v_mfma_f32_16x16x32_bf16 {v4(a)}, {v4(W[ks % 2] + 4*b)}, {a4(8*ks + 4*j)}, {v4(a)}")
            va, off = (4, (ks + 1) * 9216) if ks < 3 else (5, 0)
            fx(i, (f"ds_read_b128 {v4(W[(ks+1) % 2] + 4*b)}, v{va} offset:{off + b*1024}", f"w{K+1}_{b}"))
    n = len(mf)
    fx(n - 2, f"WAITVM h{4*it+4}")
    fx(n - 1, f"WAITLG w{4*it+4}_2")
    fx(21, "s_add_u32 s35, s35, 4096"); fx(n - 8, "s_add_u32 s36, s36, 4096")
    fx(9, f"s_add_u32 s37, s37, {GRP}"); fx(11, f"s_cmp_eq_u32 s37, {4*GRP}"); fx(11, "s_cselect_b32 s37, 0, s37")
    fx(40, "v_add_u32 v5, s37, v1")
    fx(n - 3, "v_mov_b32 v4, v5")
    return mf, fixed

def emit(k, signal, wait_flags):
    N = "dn"
    k(f"{N}_main:")
    k("s_and_b32 s6, s2, 7")
    k("s_lshr_b32 s7, s2, 3")
    k("s_lshr_b32 s19, s6, 1")
    k("s_and_b32 s16, s6, 1")
    k("s_lshl_b32 s16, s16, 3")
    k("s_lshr_b32 s17, s7, 2")
    k("s_add_u32 s16, s16, s17")
    k("s_and_b32 s17, s7, 3")
    k("s_lshl_b32 s6, s17, 2")
    k("s_add_u32 s6, s6, s19")
    k(f"s_mul_i32 s6, s6, {9*GRP}")
    k(f"s_add_u32 s6, s6, {WD}")
    k("s_add_u32 s12, s4, s6"); k("s_addc_u32 s13, s5, 0"); k("s_and_b32 s13, s13, 0xffff"); k(f"s_mov_b32 s14, {9*GRP}"); k("s_mov_b32 s15, 0x20000")
    k("s_mul_i32 s39, s18, 9216")
    signal(k, 58, 0, "f1")
    k.add(k.stamp(10)) if os.environ.get("FH") else None
    for g in range(3):
        for j in range(9):
            if j % 4 == 0: k(f"s_add_u32 m0, s39, {g*GRP + j*1024}")
            k(f"buffer_load_dwordx4 v1, s[12:15], m0 offen offset:{(j % 4)*1024} lds")
    k("s_lshl_b32 s20, s16, 3")
    k("s_lshl_b32 s6, s18, 1")
    k("s_add_u32 s6, s6, s20")
    k("s_mul_i32 s6, s6, 147456")
    k("v_add_u32 v2, s6, v1")
    k("v_add_u32 v3, 147456, v2")
    srd(k, 8, 100, HH, H_SZ)
    k(f"s_mul_i32 s35, s19, {GRP}")
    k("s_add_u32 s36, s35, 4096")
    k(f"s_add_u32 s34, s39, {2*GRP}")
    k("s_mov_b32 s37, 0")
    k("v_mov_b32 v4, v1")
    for r in range(ACC, ACC + 72): k(f"v_mov_b32 v{r}, 0")
    k("s_lshr_b32 s46, s16, 1")
    k("s_lshl_b32 s46, s46, 5")
    k("s_lshl_b32 s6, s19, 3")
    k("s_add_u32 s46, s46, s6")
    k("s_lshl_b32 s46, s46, 7")
    k("s_add_u32 s46, s46, s59")
    k(f"s_add_u32 s46, s46, {F_F1*FLG_SET}")
    k("s_lshl_b32 s47, s16, 2")
    k("s_add_u32 s47, s47, s17")
    k("s_mov_b32 s22, 0")
    wait_flags(k, 46, 8, N)
    k.add(k.stamp(11))
    for ks in range(3):
        for j in range(2): k(f"buffer_load_dwordx4 {a4(8*ks + 4*j)}, v{2+j}, s[8:11], s35 offen offset:{ks*1024} {SC}")
    for b in range(9): k(f"ds_read_b128 {v4(W[0] + 4*b)}, v1 offset:{b*1024}")
    k("s_waitcnt vmcnt(0) lgkmcnt(0)")
    k(".p2align 3")
    k(f"{N}_loop:")
    k("s_add_u32 s6, s22, 2")
    k("s_and_b32 s6, s6, 3")
    k("s_cmp_eq_u32 s22, 0")
    k("s_cselect_b32 s6, 3, s6")
    k(f"s_cselect_b32 s14, 0, {9*GRP}")
    k("s_cmp_ge_u32 s22, 7")
    k("s_cselect_b32 s14, 0, s14")
    k(f"s_mul_i32 s38, s6, {GRP}")
    k("s_add_u32 s38, s38, s39")
    t = Kern()
    for h in range(3): t("buffer_load_dwordx4 a[0:3], v2, s[8:11], 0 offen", f"h{h}")
    t("buffer_load_dwordx4 v1, s[12:15], 0 offen lds", "d1")
    for b in range(9): t("ds_read_b128 v[32:35], v1", f"w0_{b}")
    n0 = []
    for it in range(2):
        n0.append(len(t.ins))
        mf, fixed = body(it)
        pack(t, mf, fixed, [])
    t("LOOPMARK:")
    t.ins.insert(n0[1], Ins("LOOPSTART:"))
    t.resolve_waits()
    names = [x.label for x in t.ins]
    k.add(t.ins[names.index("LOOPSTART") + 1:names.index("LOOPMARK")])
    k("s_add_u32 s22, s22, 1")
    k("s_cmp_eq_u32 s22, 8")
    k("s_cselect_b32 s36, 0x7ff00000, s36")
    k("s_cmp_lt_u32 s22, 9")
    k(f"s_cbranch_scc1 {N}_loop")
    k.add(k.stamp(12))
    srd(k, 24, 100, PART, PART_SZ)
    k("s_cmp_eq_u32 s18, s19")
    k(f"s_cbranch_scc1 {N}_own")
    k("s_lshl_b32 s6, s47, 2")
    k("s_add_u32 s6, s6, s18")
    k("s_mul_i32 s40, s6, 27648")
    k("s_sub_u32 s6, s19, s18")
    k("s_sub_u32 s6, s6, 1")
    k("s_and_b32 s6, s6, 3")
    k("s_mul_i32 s6, s6, 9216")
    k("s_add_u32 s40, s40, s6")
    k("s_add_u32 s41, s40, 4096")
    k("s_add_u32 s42, s40, 8192")
    for b in range(9):
        P = W[1] + 4 * b
        for j in range(2):
            a = ACC + 4 * (j * 9 + b)
            k(f"v_cvt_pk_bf16_f32 v{P+2*j}, v{a}, v{a+1}")
            k(f"v_cvt_pk_bf16_f32 v{P+2*j+1}, v{a+2}, v{a+3}")
        k(f"buffer_store_dwordx4 {v4(P)}, v1, s[24:27], s{40 + b//4} offen offset:{(b % 4)*1024} {SC}")
    k(f"s_branch {N}_pub")
    k(f"{N}_own:")
    k(f"v_add_u32 v6, {3*GRP}, v1")
    for b in range(9):
        for j in range(2): k(f"ds_write_b128 v6, {v4(ACC + 4*(j*9 + b))} offset:{(2*b + j)*1024}")
        if b in (2, 5): k("s_waitcnt lgkmcnt(4)")
    k(f"{N}_pub:")
    k("s_lshl_b32 s46, s47, 9")
    k("s_add_u32 s46, s46, s59")
    k(f"s_add_u32 s46, s46, {F_DX*FLG_SET}")
    k("s_lshl_b32 s58, s19, 7")
    k("s_add_u32 s58, s58, s46")
    k("s_waitcnt lgkmcnt(0)")
    signal(k, 58, 0, "dx")
    srd(k, 8, 100, X1, XSZ)
    k("v_and_b32 v10, 15, v254")
    k("v_bfe_u32 v12, v254, 4, 1")
    k("v_lshrrev_b32 v13, 5, v254")
    k("v_mul_u32_u24 v14, 18432, v12")
    k("v_lshl_add_u32 v16, v13, 8, v14")
    k("v_lshl_add_u32 v16, v10, 4, v16")
    k("s_lshl_b32 s30, s16, 3")
    k("s_lshl_b32 s6, s19, 1")
    k("s_add_u32 s30, s30, s6")
    k("s_mul_i32 s31, s30, 18432")
    k("s_mul_i32 s32, s17, 9")
    k("s_add_u32 s32, s32, s18")
    k("s_lshl_b32 s33, s32, 9")
    k("s_add_u32 s33, s33, s31")
    RES = 176; PT = 188; OW = 32
    k("s_add_u32 s34, s33, 4096")
    k(f"buffer_load_dwordx4 {v4(RES)}, v16, s[8:11], s33 offen {SC}")
    k(f"buffer_load_dwordx4 {v4(RES+4)}, v16, s[8:11], s33 offen offset:2048 {SC}")
    k(f"buffer_load_dwordx4 {v4(RES+8)}, v16, s[8:11], s34 offen {SC}")
    k("s_lshl_b32 s6, s18, 11")
    k(f"s_add_u32 s6, s6, {3*GRP}")
    k("v_add_u32 v6, s6, v1")
    for bi in range(3):
        for j in range(2): k(f"ds_read_b128 {v4(OW + 8*bi + 4*j)}, v6 offset:{bi*8192 + j*1024}")
    k("s_cmp_eq_u32 s54, 1")
    k("s_cselect_b32 s44, 16, 256")
    k("s_cselect_b32 s45, 1152, 16")
    k("s_cselect_b32 s36, s56, s100")
    k("s_cselect_b32 s37, s57, s101")
    k(f"s_cselect_b32 s6, 0, {X2}")
    k(f"s_cselect_b32 s42, 0, {ST2SZ}")
    k("s_add_u32 s36, s36, s6"); k("s_addc_u32 s37, s37, 0"); k("s_and_b32 s37, s37, 0xffff"); k(f"s_mov_b32 s38, {XSZ}"); k("s_mov_b32 s39, 0x20000")
    k(f"s_add_u32 s40, s100, {ST2}"); k("s_addc_u32 s41, s101, 0"); k("s_and_b32 s41, s41, 0xffff"); k("s_mov_b32 s43, 0x20000")
    k("v_mul_lo_u32 v17, v10, s45")
    k("v_mul_lo_u32 v15, v13, s44")
    k("v_add3_u32 v17, v17, v15, v14")
    k("s_lshl_b32 s6, s44, 1")
    k("s_mul_i32 s48, s32, s6")
    k("s_add_u32 s48, s48, s31")
    k("s_lshl_b32 s6, s44, 3")
    k("s_add_u32 s49, s48, s6")
    k("s_add_u32 s50, s49, s6")
    k("v_lshlrev_b32 v18, 4, v10")
    k("v_lshl_add_u32 v18, v12, 11, v18")
    k("s_lshl_b32 s51, s30, 11")
    k("s_lshl_b32 s6, s17, 9")
    k("s_add_u32 s51, s51, s6")
    k("s_lshr_b32 s6, s18, 1")
    k("s_lshl_b32 s6, s6, 8")
    k("s_add_u32 s51, s51, s6")
    k("s_and_b32 s6, s18, 1")
    k("s_lshl_b32 s6, s6, 3")
    k("s_add_u32 s51, s51, s6")
    k("s_lshl_b32 s6, s47, 2")
    k("s_add_u32 s6, s6, s19")
    k("s_mul_i32 s33, s6, 27648")
    k("s_lshl_b32 s7, s18, 10")
    k("s_add_u32 s33, s33, s7")
    k("s_add_u32 s34, s33, 9216")
    k("s_add_u32 s35, s33, 18432")
    k("s_lshl_b32 s58, s16, 4")
    k("s_lshl_b32 s7, s17, 2")
    k("s_add_u32 s58, s58, s7")
    k("s_add_u32 s58, s58, s19")
    k("s_lshl_b32 s58, s58, 7")
    k("s_add_u32 s58, s58, s59")
    k(f"s_add_u32 s58, s58, {F_DN*FLG_SET}")
    k("v_add_u32 v7, 4096, v1")
    k("v_add_u32 v8, 8192, v1")
    k("v_mov_b32 v20, 0")
    k("v_mov_b32 v21, 0")
    k("v_mov_b32 v22, 0xffff0000")
    k("v_mov_b32 v23, 0x3f803f80")
    k("s_waitcnt lgkmcnt(0)")
    wait_flags(k, 46, 4, "dx")
    k.add(k.stamp(1)) if os.environ.get("FH") else None
    def ld(bi):
        for p in range(3): k(f"buffer_load_dwordx4 {v4(PT + 12*bi + 4*p)}, v{(1, 7, 8)[bi]}, s[24:27], s{33+p} offen {SC}")
    U = 64
    def fin(bi):
        X = OW + 8 * bi; Y = X + 4
        for p in range(3):
            r = PT + 12 * bi + 4 * p
            for q in range(4):
                k(f"v_lshlrev_b32 v{U+2*q}, 16, v{r+q}")
                k(f"v_and_b32 v{U+2*q+1}, v22, v{r+q}")
            for q in range(4): k(f"v_pk_add_f32 {v2(X+2*q)}, {v2(X+2*q)}, {v2(U+2*q)}")
        for q in range(4):
            k(f"v_lshlrev_b32 v{U+2*q}, 16, v{RES+4*bi+q}")
            k(f"v_and_b32 v{U+2*q+1}, v22, v{RES+4*bi+q}")
        for i in range(4): k(f"v_permlane16_swap_b32 v{X+i}, v{Y+i}")
        for q in range(4): k(f"v_pk_add_f32 {v2(X+2*q)}, {v2(X+2*q)}, {v2(U+2*q)}")
        pk = 72 + 4 * bi
        for q in range(4): k(f"v_cvt_pk_bf16_f32 v{pk+q}, v{X+2*q}, v{X+2*q+1}")
        k(f"buffer_store_dwordx4 {v4(pk)}, v17, s[36:39], s{48+bi} offen {SC}")
        for q in range(4):
            k(f"v_dot2c_f32_bf16 v20, v{pk+q}, v23")
            k(f"v_dot2c_f32_bf16 v21, v{pk+q}, v{pk+q}")
    k("s_cmp_lg_u32 s18, 0")
    k(f"s_cbranch_scc1 {N}_l2")
    ld(2)
    k(f"{N}_l2:")
    ld(0); ld(1)
    k("s_cmp_lg_u32 s18, 0")
    k(f"s_cbranch_scc1 {N}_f2")
    k("s_waitcnt vmcnt(6)")
    fin(2)
    k(f"{N}_f2:")
    k("s_waitcnt vmcnt(3)")
    fin(0)
    k("s_waitcnt vmcnt(1)")
    fin(1)
    k("v_mov_b32 v24, v20")
    k("v_mov_b32 v25, v21")
    k("v_permlane32_swap_b32 v20, v24")
    k("v_permlane32_swap_b32 v21, v25")
    k("v_add_f32 v20, v20, v24")
    k("v_add_f32 v21, v21, v25")
    k("s_mov_b32 exec_hi, 0")
    k(f"buffer_store_dwordx2 v[20:21], v18, s[40:43], s51 offen {SC}")
    k("s_mov_b32 exec_hi, -1")
```

```python
from asmgen import *
from layout import *
from k_prep import srd, xreduce
import os
SC = "sc1"
J_GU, J_WD, J_END = 9, 225, 297
NI1 = int(os.environ.get("NI1", "3")); NI0 = int(os.environ.get("NI0", "3"))
assert NI0 >= NI1
J_ATT = 64 * NI1 + 32 * (NI0 - NI1)
A0 = 184

def trbase(k, d, t):
    k(f"v_lshrrev_b32 v{d}, 5, v254")
    k(f"v_lshlrev_b32 v{d}, 4, v{d}")
    k(f"v_bfe_u32 v{t}, v254, 4, 1")
    k(f"v_lshl_add_u32 v{d}, v{t}, 2, v{d}")
    k(f"v_bfe_u32 v{t}, v254, 2, 2")
    k(f"v_add_u32 v{d}, v{d}, v{t}")
    k(f"v_and_b32 v{d+1}, 3, v254")

def perm(k, dst, src, tmp):
    k(f"v_and_b32 v{dst}, 0xfffffff3, v{src}")
    k(f"v_bfe_u32 v{tmp}, v{src}, 2, 1")
    k(f"v_lshl_add_u32 v{dst}, v{tmp}, 3, v{dst}")
    k(f"v_bfe_u32 v{tmp}, v{src}, 3, 1")
    k(f"v_lshl_add_u32 v{dst}, v{tmp}, 2, v{dst}")

def frags(k, items, stride, tagp, R, ones):
    def fin(j):
        vb, imm, so, dimm, cs = items[j]; r = R + 4 * j
        k(f"WAITLG {tagp}{j}")
        k(f"buffer_store_dwordx4 v[{r}:{r+3}], v1, s[40:43], s{so} offen offset:{dimm} {SC}")
        if cs is not None:
            for q in range(4): k(f"v_dot2c_f32_bf16 v{cs}, v{r+q}, v{ones}")
    for i, (vb, imm, so, dimm, cs) in enumerate(items):
        r = R + 4 * i
        k(f"ds_read_b64_tr_b16 v[{r}:{r+1}], v{vb} offset:{imm}", f"{tagp}{i}")
        k(f"ds_read_b64_tr_b16 v[{r+2}:{r+3}], v{vb} offset:{imm + 8*stride}", f"{tagp}{i}")
        if i >= 3: fin(i - 3)
    for j in range(len(items) - 3, len(items)): fin(j)

def setup(k, L):
    k("s_load_dwordx4 s[60:63], s[0:1], 32")
    k("s_load_dwordx2 s[48:49], s[0:1], 16")
    k("s_load_dwordx2 s[52:53], s[0:1], 48")
    k(f"s_sub_u32 s47, s50, {J_GU}")
    k(f"s_cmp_lt_u32 s47, {J_WD - J_GU}")
    k(f"s_cbranch_scc0 {L}_rp")
    k("s_cmp_ge_u32 s47, 108")
    k("s_cselect_b32 s44, 1, 0")
    k("s_mul_i32 s45, s44, 108")
    k("s_sub_u32 s47, s47, s45")
    k("s_mul_i32 s45, s47, 43691")
    k("s_lshr_b32 s45, s45, 17")
    k("s_mul_i32 s46, s45, 3")
    k("s_sub_u32 s46, s47, s46")
    k("v_lshrrev_b32 v248, 4, v0")
    k("v_and_b32 v247, 15, v0")
    k("v_mul_u32_u24 v248, 9216, v248")
    k("v_lshl_add_u32 v248, v247, 4, v248")
    k(f"s_mul_i32 s47, s46, {192*9216}")
    k("s_lshl_b32 s51, s45, 8")
    k("s_add_u32 s47, s47, s51")
    k("s_cmp_eq_u32 s44, 0")
    k("s_waitcnt lgkmcnt(0)")
    k("s_cselect_b32 s60, s60, s62")
    k("s_cselect_b32 s61, s61, s63")
    k(f"s_mov_b32 s62, {576*4608*2}")
    k(f"s_branch {L}_sd")
    k(f"{L}_rp:")
    k("s_mov_b32 s44, 2")
    k(f"s_sub_u32 s45, s50, {J_WD}")
    k(f"s_cmp_lt_u32 s50, {J_GU}")
    k("s_cselect_b32 s45, s50, s45")
    k("s_cselect_b32 s46, 9, 72")
    k("s_lshl_b32 s47, s45, 6")
    k(f"s_cmp_lt_u32 s50, {J_GU}")
    for jj in range(2):
        d = 247 + jj
        k("v_lshrrev_b32 v240, 3, v0")
        k(f"v_add_u32 v240, s47, v240")
        if jj: k("v_add_u32 v240, 32, v240")
        k("v_lshrrev_b32 v241, 4, v240")
        k("v_mul_u32_u24 v242, 18, v241")
        k("v_and_b32 v243, 15, v240")
        k("v_add_u32 v242, v242, v243")
        k("v_and_b32 v243, 1, v241")
        k("v_lshl_add_u32 v242, v243, 1, v242")
        k("v_bfe_u32 v241, v240, 1, 5")
        k("v_mul_u32_u24 v243, 18, v241")
        k("v_and_b32 v244, 1, v240")
        k("v_add_u32 v243, v243, v244")
        k("v_and_b32 v244, 1, v241")
        k("v_xor_b32 v244, 1, v244")
        k("v_lshl_add_u32 v243, v244, 4, v243")
        k("v_cmp_gt_u32 vcc, 512, v240")
        k("v_cndmask_b32 v242, v243, v242, vcc")
        k("s_cselect_b64 vcc, -1, 0")
        k("v_cndmask_b32 v240, v240, v242, vcc")
        k("v_mul_u32_u24 v240, 1152, v240")
        k("v_and_b32 v241, 7, v0")
        k(f"v_lshl_add_u32 v{d}, v241, 4, v240")
    k("s_waitcnt lgkmcnt(0)")
    k("s_cselect_b32 s60, s48, s52")
    k("s_cselect_b32 s61, s49, s53")
    k(f"s_mov_b32 s62, {WD_SZ}")
    k(f"s_cselect_b32 s62, {WO_SZ}, s62")
    k(f"{L}_sd:")
    k("s_and_b32 s61, s61, 0xffff")
    k("s_mov_b32 s63, 0x20000")

def loads(k, L, part):
    k("s_cmp_eq_u32 s44, 2")
    k(f"s_cbranch_scc1 {L}_lr{part}")
    for j in (range(9) if part == 0 else range(9, 12)):
        k(f"buffer_load_dwordx4 a[{A0+4*j}:{A0+4*j+3}], v248, s[60:63], s47 offen nt")
        if j < 11: k(f"s_add_u32 s47, s47, {16*9216}")
    k(f"s_branch {L}_ld{part}")
    k(f"{L}_lr{part}:")
    for jc in range(9):
        r = A0 + 4 * (part * 9 + jc)
        k(f"buffer_load_dwordx4 a[{r}:{r+3}], v{247+part}, s[60:63], 0 offen offset:{jc*128} nt")
    k(f"{L}_ld{part}:")

SO = (30, 31, 32, 33, 36, 37)
def finish(k, L, mid=None):
    srd(k, 40, 4, 0, WS_END)
    trbase(k, 132, 130)
    k("s_cmp_eq_u32 s46, 72")
    k("s_cselect_b32 s39, 1, 0")
    k("s_and_b32 s3, s44, 2")
    k("s_mul_i32 s39, s39, s3")
    k("s_add_u32 s39, s39, s44")
    k("s_cmp_eq_u32 s44, 2")
    k(f"s_cbranch_scc1 {L}_fr")
    k("v_lshrrev_b32 v130, 4, v0")
    perm(k, 131, 130, 134)
    k("v_and_b32 v130, 15, v0")
    k("v_mul_u32_u24 v131, 288, v131")
    k("v_lshl_add_u32 v131, v130, 4, v131")
    for j in range(12): k(f"ds_write_b128 v131, a[{A0+4*j}:{A0+4*j+3}] offset:{j*16*288}")
    k("v_mul_u32_u24 v132, 288, v132")
    k("s_lshl_b32 s3, s18, 6")
    k("v_add_u32 v132, s3, v132")
    k("v_lshl_add_u32 v132, v133, 3, v132")
    k("s_lshl_b32 s30, s45, 3")
    k("s_lshl_b32 s3, s18, 1")
    k("s_add_u32 s31, s30, s3")
    k("s_mul_i32 s38, s46, 36864")
    k("s_lshl_b32 s3, s31, 7")
    k("s_add_u32 s38, s38, s3")
    k("s_lshl_b32 s3, s44, 6")
    k("s_add_u32 s38, s38, s3")
    k(f"s_add_u32 s38, s38, {SGU}")
    k("s_mul_i32 s30, s31, 18")
    k("s_mul_i32 s3, s46, 6")
    k("s_add_u32 s30, s30, s3")
    k("s_lshl_b32 s30, s30, 11")
    k("s_lshl_b32 s3, s44, 10")
    k("s_add_u32 s30, s30, s3")
    k(f"s_add_u32 s30, s30, {WGU}")
    k(f"s_add_u32 s33, s30, {18*2048}")
    k("v_mov_b32 v134, 0")
    k("v_mov_b32 v135, 0")
    k("v_mov_b32 v128, 0x3f803f80")
    k(f"s_branch {L}_fm")
    k(f"{L}_fr:")
    k("v_lshrrev_b32 v130, 3, v0")
    perm(k, 131, 130, 134)
    k("v_and_b32 v130, 7, v0")
    k("v_mul_u32_u24 v131, 1184, v131")
    k("v_lshl_add_u32 v131, v130, 4, v131")
    for jj in range(2):
        for jc in range(9):
            r = A0 + 4 * (jj * 9 + jc)
            k(f"ds_write_b128 v131, a[{r}:{r+3}] offset:{jj*32*1184 + jc*128}")
        if jj == 0: k("s_waitcnt lgkmcnt(4)")
    k("v_mul_u32_u24 v132, 1184, v132")
    k("s_mul_i32 s3, s18, 288")
    k("v_add_u32 v132, s3, v132")
    k("v_and_b32 v130, 1, v133")
    k("v_lshl_add_u32 v134, v130, 3, v132")
    k("v_lshrrev_b32 v130, 1, v133")
    k(f"v_mul_u32_u24 v130, {32*1184}, v130")
    k("v_add_u32 v134, v134, v130")
    k("v_lshl_add_u32 v132, v133, 3, v132")
    k("s_mul_i32 s33, s46, 9216")
    k("s_mul_i32 s30, s45, 9216")
    k("s_lshl_b32 s3, s18, 1")
    k("s_mul_i32 s3, s3, s33")
    k("s_add_u32 s30, s30, s3")
    k(f"s_add_u32 s30, s30, {WO}")
    k("s_add_u32 s33, s33, s30")
    k("s_cmp_eq_u32 s46, 9")
    k(f"s_cbranch_scc1 {L}_fm")
    k("s_mul_i32 s30, s18, 72")
    k("s_add_u32 s30, s30, s45")
    k("s_mul_i32 s30, s30, 18432")
    k(f"s_add_u32 s30, s30, {WD}")
    k("s_add_u32 s33, s30, 9216")
    k(f"{L}_fm:")
    k("s_add_u32 s31, s30, 4096")
    k("s_add_u32 s32, s30, 8192")
    k("s_add_u32 s36, s33, 4096")
    k("s_add_u32 s37, s33, 8192")
    k("s_waitcnt lgkmcnt(0)")
    k("s_barrier")
    if mid: mid(k)
    k("s_cmp_eq_u32 s39, 2")
    k(f"s_cbranch_scc1 {L}_fr2")
    k("s_cmp_eq_u32 s39, 4")
    k(f"s_cbranch_scc1 {L}_fr3")
    k.path = L + "g"
    items = [(132, 32*bb + ks*32*288, SO[3*bb + ks//2], (ks % 2)*2048, 134 + bb) for bb in range(2) for ks in range(6)]
    frags(k, items, 288, L + "g", 136, 128)
    xreduce(k, [134, 135], [130, 131])
    k("v_and_b32 v130, 15, v254")
    k("v_lshlrev_b32 v130, 2, v130")
    k("s_mov_b64 exec, 0xffff")
    k(f"buffer_store_dword v134, v130, s[40:43], s38 offen {SC}")
    k(f"buffer_store_dword v135, v130, s[40:43], s38 offen offset:128 {SC}")
    k("s_mov_b64 exec, -1")
    k(f"s_branch {L}_fd")
    k(f"{L}_fr2:")
    k.path = L + "r"
    items = []
    for nn in range(2):
        for ks in range(2):
            for b in range(4): items.append((132, 144*nn + 32*b + ks*32*1184, SO[3*nn + ks], b*1024, None))
        items.append((134, 144*nn + 128, SO[3*nn + 2], 0, None))
    frags(k, items, 1184, L + "r", 136, None)
    k(f"s_branch {L}_fd")
    k(f"{L}_fr3:")
    k.path = L + "d"
    items = [(132, 32*b + ks*32*1184, SO[3*ks + b//4], (b % 4)*1024, None) for ks in range(2) for b in range(9)]
    frags(k, items, 1184, L + "d", 136, None)
    k.path = None
    k(f"{L}_fd:")

def idle_jobs(k):
    k("s_sub_u32 s50, s2, 256")
    k("s_mov_b32 s35, 0")
    k("s_cmp_ge_u32 s2, 224")
    k(f"s_cselect_b32 s34, {NI0}, {NI1}")
    srd(k, 40, 4, 0, WS_END)
    k("s_branch pi_next")
    k("pi_top:")
    k("s_waitcnt vmcnt(14)")
    k("s_cmp_gt_u32 s35, 2")
    k("s_cbranch_scc1 pi_t1")
    k("s_cmp_eq_u32 s35, 1")
    k("s_cbranch_scc1 pi_t0")
    k(f"s_cmp_ge_u32 s2, {192 + J_GU}")
    k("s_cbranch_scc1 pi_t1")
    k("s_waitcnt vmcnt(0)")
    k("s_barrier")
    k("s_cmp_lg_u32 s18, 0")
    k("s_cbranch_scc1 pi_t1")
    k("s_lshl_b32 s3, s2, 7")
    k(f"s_add_u32 s3, s3, {F_WOPK*FLG_SET - 192*128}")
    k("s_mov_b64 exec, 1")
    k(f"buffer_store_dword v253, v252, s[96:99], s3 offen {SC}")
    k("s_mov_b64 exec, -1")
    k("s_branch pi_t1")
    k("pi_t0:")
    k("s_waitcnt vmcnt(0)")
    k("pi_t1:")
    k("s_barrier")
    def mid(k):
        k("pi_next:")
        k(f"s_cmp_gt_u32 s35, {NI1}")
        k("s_cselect_b32 s3, 32, 64")
        k(f"s_cmp_eq_u32 s35, {NI1}")
        k("s_cselect_b32 s3, 32, s3")
        k("s_add_u32 s50, s50, s3")
        k("s_add_u32 s35, s35, 1")
        k("s_cmp_gt_u32 s35, s34")
        k("s_cbranch_scc1 pi_last")
        setup(k, "pi")
        loads(k, "pi", 0); loads(k, "pi", 1)
        k("s_cmp_eq_u32 s35, 1")
        k("s_cbranch_scc1 pi_top")
        k("pi_last:")
    finish(k, "pi", mid)
    k("s_cmp_le_u32 s35, s34")
    k("s_cbranch_scc1 pi_top")
    k("s_barrier")
```

```python
from asmgen import *
from layout import *
from k_prep import srd, xreduce
from k_qkv import f2u, QSCALE
from m_pack import trbase
SC = "sc1"
SLOT = 34816; NS = 3; LDS_ST = NS * SLOT
def v4(r): return f"v[{r}:{r+3}]"
for _e in range(1152): assert (_e * 3641) >> 16 == _e // 18

def emit(k):
    N = "q0"
    W = (32, 68); XF = 104; ACC = 120; AS = 192; AM = 228; AG = 236; ONE = 244
    k(f"{N}_tile:")
    k("s_and_b32 s9, s9, 0xffff"); k(f"s_mov_b32 s10, {XSZ}"); k("s_mov_b32 s11, 0x20000")
    k("s_and_b32 s13, s13, 0xffff"); k(f"s_mov_b32 s14, {WQKV_SZ}"); k("s_mov_b32 s15, 0x20000")
    import os
    if "x" in os.environ.get("Q0Z", ""): k("s_mov_b32 s10, 0")
    if "w" in os.environ.get("Q0Z", ""): k("s_mov_b32 s14, 0")
    k("s_lshl_b32 s19, s16, 3")
    k("s_lshl_b32 s6, s18, 1")
    k("s_add_u32 s19, s19, s6")
    k("s_mul_i32 s34, s19, 18432")
    k("s_mul_i32 s35, s17, 288")
    k("s_lshl_b32 s38, s18, 12")
    k("s_lshl_b32 s39, s18, 9")
    k("s_add_u32 s39, s39, 32768")
    k("v_lshrrev_b32 v6, 3, v254")
    k("v_and_b32 v7, 7, v254")
    k("v_xor_b32 v7, v7, v6")
    k("v_mul_u32_u24 v2, 1152, v6")
    k("v_lshl_add_u32 v2, v7, 4, v2")
    for i in range(1, 4): k(f"v_add_u32 v{2+i}, {8192*i}, v2")
    k("s_mov_b32 s36, 0")
    for g in range(2):
        k(f"s_add_u32 m0, s38, {g*SLOT}")
        for i in range(4):
            k(f"buffer_load_dwordx4 v{2+i}, s[8:11], s34 offen offset:{1024*i} lds")
        k("s_add_u32 s34, s34, 128")
    for j in range(5):
        d = 9 + j
        if j < 4:
            k(f"s_lshl_b32 s6, s18, 8"); k(f"s_add_u32 s6, s6, {64*j}"); k("v_add_u32 v6, s6, v254")
        else:
            k(f"s_lshl_b32 s6, s18, 5"); k("s_add_u32 s6, s6, 1024"); k("v_and_b32 v6, 31, v254"); k("v_add_u32 v6, s6, v6")
        k("v_mul_u32_u24 v7, 3641, v6")
        k("v_lshrrev_b32 v7, 16, v7")
        k("v_mul_u32_u24 v8, 18, v7")
        k("v_sub_u32 v6, v6, v8")
        k("v_and_b32 v8, 0xfffffff3, v7")
        k(f"v_bfe_u32 v{d}, v7, 2, 1")
        k(f"v_lshl_add_u32 v8, v{d}, 3, v8")
        k(f"v_bfe_u32 v{d}, v7, 3, 1")
        k(f"v_lshl_add_u32 v8, v{d}, 2, v8")
        k("v_mul_u32_u24 v8, 3456, v8")
        k(f"v_lshl_add_u32 v{d}, v6, 4, v8")
        if 0 < j < 4: k(f"v_subrev_u32 v{d}, {1024*j}, v{d}")
    def group():
        L = [["s_add_u32 m0, s36, s38", "s_nop 0", "buffer_load_dwordx4 v2, s[8:11], s34 offen lds"]]
        for i in range(1, 4): L.append([f"buffer_load_dwordx4 v{2+i}, s[8:11], s34 offen offset:{1024*i} lds"])
        L.append(["s_add_u32 m0, m0, 16384", "s_add_u32 s34, s34, 128", "buffer_load_dwordx4 v9, s[12:15], s35 offen lds"])
        for j in range(1, 4): L.append([f"buffer_load_dwordx4 v{9+j}, s[12:15], s35 offen offset:{1024*j} lds"])
        L.append(["s_add_u32 m0, s36, s39", "s_mov_b32 exec_hi, 0", "buffer_load_dwordx4 v13, s[12:15], s35 offen lds", "s_mov_b32 exec_hi, -1",
                  f"s_add_u32 s35, s35, {64*3456}", f"s_add_u32 s36, s36, {SLOT}", f"s_cmp_eq_u32 s36, {NS*SLOT}", "s_cselect_b32 s36, 0, s36"])
        return L
    for g in range(2):
        k("s_add_u32 m0, s36, s38")
        k("s_sub_u32 s34, s34, 128")
        for b in group()[4:]: k.add(b)
    k("v_and_b32 v7, 15, v254")
    k("v_lshrrev_b32 v8, 4, v254")
    k("v_and_b32 v6, 7, v7")
    k("v_xor_b32 v6, v6, v8")
    k("v_lshlrev_b32 v14, 7, v7")
    k("v_lshl_add_u32 v14, v6, 4, v14")
    k("v_add_u32 v14, s38, v14")
    k("v_xor_b32 v15, 64, v14")
    trbase(k, 18, 6)
    k("v_mul_u32_u24 v17, 288, v18")
    k("v_add_u32 v17, 16384, v17")
    k("v_lshl_add_u32 v16, v19, 3, v17")
    k("v_mul_u32_u24 v6, 72, v19")
    k("v_add_u32 v17, v17, v6")
    for r in range(ACC, ONE): k(f"v_mov_b32 v{r}, 0")
    for i in range(4): k(f"v_mov_b32 v{ONE+i}, 0x3f803f80")
    srd(k, 24, 100, QKV, 3 * XSZ)
    srd(k, 28, 4, WQKV, WQKV_SZ + 0)
    k("s_lshl_b32 s40, s16, 2")
    k("s_add_u32 s40, s40, s18")
    k("s_mul_i32 s41, s17, 18")
    k("s_add_u32 s41, s41, s40")
    k("s_mul_i32 s41, s41, 9216")
    k("s_add_u32 s42, s41, 4096")
    k("s_add_u32 s43, s41, 8192")
    k("s_cmp_lt_u32 s17, 4")
    k(f"s_cselect_b32 s46, {f2u(QSCALE)}, 1.0")
    k("s_lshl_b32 s47, s18, 8")
    k(f"s_add_u32 s47, s47, {LDS_ST}")
    k("s_mul_i32 s45, s17, 589824")
    k("s_lshl_b32 s48, s19, 9")
    k("s_lshl_b32 s58, s17, 4")
    k("s_add_u32 s58, s58, s16")
    k("s_lshl_b32 s58, s58, 7")
    k("s_mov_b32 s37, 0")
    k("s_mov_b32 s33, 0")
    import os
    if os.environ.get("FQ"): k.add(k.stamp(8))
    k("s_waitcnt vmcnt(5) lgkmcnt(0)")
    if os.environ.get("FQ"): k.add(k.stamp(9))
    k("s_cmp_ge_u32 s17, 8")
    k(f"s_cbranch_scc1 {N}_v")
    for path in ("qk", "v"):
        k.path = N + path; L = f"{N}_{path}"
        if path == "v": k(f"{N}_v:")
        def reads(s):
            R = [(f"ds_read_b128 {v4(XF+8*s+4*j)}, v{20+s} offset:{2048*j}", f"{L}x{s}") for j in range(2)]
            for b in range(9):
                r = W[s] + 4 * b
                va, off = (22 + 2 * s, 36 * b + 4 * (b & 1)) if b < 8 else (23 + 2 * s, 32)
                R.append((f"ds_read_b64_tr_b16 v[{r}:{r+1}], v{va} offset:{off + s*32*288}", f"{L}w{s}_{b}"))
                R.append((f"ds_read_b64_tr_b16 v[{r+2}:{r+3}], v{va} offset:{off + s*32*288 + 8*288}", f"{L}w{s}_{b}"))
            return R
        NP = 12
        k("s_barrier")
        for d, r in ((20, 14), (22, 16), (23, 17)): k(f"v_mov_b32 v{d}, v{r}")
        k.add(reads(0)[:NP])
        k(f"{L}_loop:")
        for d, r in ((21, 15), (24, 16), (25, 17)): k(f"v_add_u32 v{d}, s37, v{r}")
        k(f"s_add_u32 s37, s37, {SLOT}")
        k(f"s_cmp_eq_u32 s37, {NS*SLOT}")
        k("s_cselect_b32 s37, 0, s37")
        k("s_cmp_ge_u32 s33, 14")
        k("s_cselect_b32 s10, 0, s10")
        k("s_cselect_b32 s14, 0, s14")
        dm = group()
        for s in range(2):
            mine = reads(s)[NP:]; nxt = reads(1 - s)[:NP]
            x = [v4(XF + 8 * s + 4 * j) for j in range(2)]
            mf = []
            for j in range(2):
                mf.append((None if j else f"{L}x{s}", f"v_mfma_f32_16x16x32_bf16 {v4(AM+4*j)}, {v4(ONE)}, {x[j]}, {v4(AM+4*j)}"))
                mf.append((None, f"v_mfma_f32_16x16x32_bf16 {v4(AG+4*j)}, {x[j]}, {x[j]}, {v4(AG+4*j)}"))
            for b in range(9):
                w = v4(W[s] + 4 * b)
                for n, (o, a) in enumerate(((x[0], ACC + 4 * b), (x[1], ACC + 36 + 4 * b), (v4(ONE), AS + 4 * b))):
                    ins = f"v_mfma_f32_16x16x32_bf16 {v4(a)}, {w}, {o}, {v4(a)}" if path == "qk" else f"v_mfma_f32_16x16x32_bf16 {v4(a)}, {o}, {w}, {v4(a)}"
                    mf.append((None if n else f"{L}w{s}_{b}", ins))
            for i, (tag, ins) in enumerate(mf):
                if tag: k(f"WAITLG {tag}")
                k(ins)
                if (31 * s + i) % 7 == 3: k.add(dm.pop(0))
                elif mine: k.add([mine.pop(0)])
                elif s == 1 and i == 15:
                    k(f"s_waitcnt vmcnt({9 - len(dm)}) lgkmcnt(0)")
                    k("s_barrier")
                    for d, r in ((20, 14), (22, 16), (23, 17)): k(f"v_add_u32 v{d}, s37, v{r}")
                elif i >= 16 and nxt: k.add([nxt.pop(0)])
            assert not nxt and not mine and (s == 0 or not dm)
            k("s_cmp_lg_u32 s33, s40")
            k(f"s_cbranch_scc1 {L}_ns{s}")
            for b in range(9):
                k(f"buffer_store_dwordx4 {v4(W[s]+4*b)}, v1, s[28:31], s{41 + b//4} offen offset:{(b % 4)*1024} {SC}")
            k(f"{L}_ns{s}:")
            k("s_add_u32 s33, s33, 1")
        k("s_cmp_lt_u32 s33, 18")
        k(f"s_cbranch_scc1 {L}_loop")
        k("s_waitcnt lgkmcnt(0)")
        k.add(k.stamp(1))
        k("v_and_b32 v6, 3, v7")
        k("v_lshrrev_b32 v9, 2, v7")
        for j in range(2):
            g = AG + 4 * j
            for i in range(1, 4):
                k(f"v_cmp_eq_u32 vcc, {i}, v6")
                k(f"v_cndmask_b32 v{g}, v{g}, v{g+i}, vcc")
            k("v_cmp_eq_u32 vcc, v9, v8")
            k(f"v_cndmask_b32 v{g}, 0, v{g}, vcc")
        xreduce(k, [AG, AG + 4], [AG + 1, AG + 5])
        for j in range(2):
            m, g = AM + 4 * j, AG + 4 * j
            k(f"v_mul_f32 v{m}, {f2u(1/576)}, v{m}")
            k(f"v_mul_f32 v{g}, {f2u(1/576)}, v{g}")
            k(f"v_fma_f32 v{g}, -v{m}, v{m}, v{g}")
            k(f"v_max_f32 v{g}, 0, v{g}")
            k(f"v_add_f32 v{g}, {f2u(1e-5)}, v{g}")
            k(f"v_rsq_f32 v{13+2*j}, v{g}")
            k(f"v_sub_f32 v{12+2*j}, 0, v{m}")
        R0 = 104; PR = 32
        if path == "qk":
            k("v_mul_f32 v13, s46, v13")
            k("v_mul_f32 v15, s46, v15")
            k("v_and_b32 v18, 1, v8")
            k("v_lshlrev_b32 v18, 9, v18")
            k("v_lshrrev_b32 v19, 1, v8")
            k("v_lshl_add_u32 v18, v19, 8, v18")
            k("v_lshl_add_u32 v18, v7, 4, v18")
            k("v_add_u32 v18, s48, v18")
        else:
            k("v_lshl_add_u32 v11, v7, 3, s47")
            k("ds_write_b64 v11, v[12:13]")
            k("ds_write_b64 v11, v[14:15] offset:128")
            k("v_lshl_add_u32 v11, v8, 5, s47")
            for j in range(2):
                for h in range(2): k(f"ds_read_b128 {v4(R0+8*j+4*h)}, v11 offset:{j*128+h*16}")
            k("v_add_u32 v18, s48, v1")
            k("s_waitcnt lgkmcnt(0)")
        for b in range(9):
            P = PR + 4 * (b % 4)
            for j in range(2):
                a = ACC + 36 * j + 4 * b
                if path == "qk":
                    for i in range(4): k(f"v_fma_f32 v{a+i}, v{12+2*j}, v{AS+4*b+i}, v{a+i}")
                    for i in range(4): k(f"v_mul_f32 v{a+i}, v{a+i}, v{13+2*j}")
                else:
                    for i in range(4): k(f"v_fma_f32 v{a+i}, v{R0+8*j+2*i}, v{AS+4*b}, v{a+i}")
                    for i in range(4): k(f"v_mul_f32 v{a+i}, v{a+i}, v{R0+8*j+2*i+1}")
                k(f"v_cvt_pk_bf16_f32 v{P+2*j}, v{a}, v{a+1}")
                k(f"v_cvt_pk_bf16_f32 v{P+2*j+1}, v{a+2}, v{a+3}")
            if path == "qk":
                k(f"v_permlane16_swap_b32 v{P}, v{P+2}")
                k(f"v_permlane16_swap_b32 v{P+1}, v{P+3}")
            k(f"buffer_store_dwordx4 {v4(P)}, v18, s[24:27], s45 offen {SC}")
            if b < 8: k("s_add_u32 s45, s45, 65536")
        k("s_cmp_lg_u32 s40, 63")
        k("s_cbranch_scc1 at_main")
        srd(k, 28, 4, SQKV, SQKV_SZ)
        k("s_mul_i32 s41, s17, 576")
        if path == "qk":
            k("v_lshlrev_b32 v6, 4, v8")
            k("s_mov_b32 exec_lo, 0x00010001"); k("s_mov_b32 exec_hi, 0x00010001")
            for b in range(9): k(f"buffer_store_dwordx4 {v4(AS+4*b)}, v6, s[28:31], s41 offen offset:{64*b} {SC}")
        else:
            k("v_lshlrev_b32 v6, 2, v7")
            k("s_mov_b64 exec, 0xffff")
            for b in range(9): k(f"buffer_store_dword v{AS+4*b}, v6, s[28:31], s41 offen offset:{64*b} {SC}")
        k("s_mov_b64 exec, -1")
        k("s_branch at_main")
    k.path = None
```

```python
from asmgen import *
from layout import *
from k_prep import srd, entry, xreduce
from k_qkv import load_stats, finish_stats, f2u, QSCALE
import k_gemmk as G
import k_ffn1 as F1
import m_attn as AT
import m_pack as PK
import m_qkv0 as Q0
import m_ffn as FF
from k_prep import code_prefetch
import math, os

GRID = 256
INPACK = True
KNAME = 'interleave_layers__sliding_block__swiglu_ffn__prompt_kernel'
SC = "sc1"
LDS = 39 * 4096 + 1024 + 576
SPIN = 150000
SLEEP = int(os.environ.get('SLEEP', '0'))
def v4(r): return f"v[{r}:{r+3}]"
def a4(r): return f"a[{r}:{r+3}]"

def make_tag(k):
    k("s_waitcnt lgkmcnt(0)")
    k("s_mul_i32 s3, s93, 0x9E3779B1")
    k("s_add_u32 s3, s3, 0x7F4A7C15")
    k("v_mov_b32 v253, s3")

def signal(k, so, nvm, lab):
    k(f"s_waitcnt vmcnt({nvm})")
    k("s_barrier")
    k("s_cmp_lg_u32 s18, 0")
    k(f"s_cbranch_scc1 {lab}_sg")
    k("s_mov_b64 exec, 1")
    k(f"buffer_store_dword v253, v252, s[96:99], s{so} offen {SC}")
    k("s_mov_b64 exec, -1")
    k(f"{lab}_sg:")

def wait_flags(k, so, n, lab, skip_if=None, keep=0):
    k("s_cmp_lg_u32 s18, 0")
    k(f"s_cbranch_scc1 {lab}_wn")
    if skip_if:
        k(f"s_cmp_eq_u32 {skip_if}, 0")
        k(f"s_cbranch_scc1 {lab}_wn")
    if n:
        k(f"v_min_u32 v255, {n-1}, v254")
        k("v_lshlrev_b32 v255, 7, v255")
    k(f"s_mov_b32 s3, {SPIN}")
    ld = lambda r: k(f"buffer_load_dword v{r}, v255, s[96:99], s{so} offen {SC}")
    ld(249); k("s_sleep 2"); ld(250); k("s_sleep 2")
    k(f"{lab}_wl:")
    for r, nx in ((249, 251), (250, 249), (251, 250)):
        ld(nx)
        k("s_waitcnt vmcnt(2)")
        k(f"v_cmp_ne_u32 vcc, v253, v{r}")
        k("s_nop 1")
        k("s_cmp_eq_u64 vcc, 0")
        k(f"s_cbranch_scc1 {lab}_wd")
    k("s_sub_u32 s3, s3, 1")
    k("s_cmp_lg_u32 s3, 0")
    k(f"s_cbranch_scc1 {lab}_wl")
    k(f"{lab}_wn:")
    k(f"s_waitcnt vmcnt({keep})")
    k(f"{lab}_wd:")
    k("s_barrier")

def gk_loads(s, part, half=None):
    L = [t for _, t in G.loads(s, half)]
    if part == "w": L = [t for t in L if "s[12:15]" in t]
    if part == "h": L = [t for t in L if "s[8:11]" in t]
    return L

def gk_tail(k):
    acc = G.acc; ACC = G.ACC; T = G.T; RES = G.RES; b0 = 68; ZA = 49152
    k("v_mov_b32 v20, 0")
    k("v_mov_b32 v21, 0")
    k("v_mov_b32 v22, 0xffff0000")
    k("v_mov_b32 v23, 0x3f803f80")
    FT = os.environ.get("FT")
    if FT: k.add(k.stamp(1))
    k("s_waitcnt vmcnt(0)")
    if FT: k.add(k.stamp(2))
    mf = []; flow = []
    for ks in range(2):
        for tb in range(4): mf.append(f"v_mfma_f32_16x16x32_bf16 {v4(acc(tb, 4+ks))}, {a4(b0+48)}, {a4(b0+(16, 52)[ks]+4*tb)}, {v4(acc(tb, 4+ks))}")
    for p in range(2):
        for i in range(4):
            flow.append((f"v_permlane32_swap_b32 v{acc(2*p,4)+i}, v{acc(2*p+1,4)+i}", 8))
            flow.append((f"v_permlane32_swap_b32 v{acc(2*p,5)+i}, v{acc(2*p+1,5)+i}", 8))
            flow.append((f"v_add_f32 v{acc(2*p,4)+i}, v{acc(2*p,4)+i}, v{acc(2*p+1,5)+i}", 8))
        flow.append((f"ds_write_b128 v{14+p}, {v4(acc(2*p,4))} offset:{ZA}", 8))
    fixed = {}
    for b in range(4):
        for ks in range(2):
            for tb in (1, 2, 3, 0):
                mf.append(f"v_mfma_f32_16x16x32_bf16 {v4(acc(tb, b))}, {a4(b0+32*ks+4*b)}, {a4(b0+(16, 52)[ks]+4*tb)}, {v4(acc(tb, b))}")
        for j in range(1, 4):
            fixed.setdefault(len(mf) + j, []).append(f"ds_write_b128 v{25+j}, {v4(acc(j, b))} offset:{b*1024}")
    late = [x for g in sorted(fixed) if g >= len(mf) for x in fixed[g]]
    left, over = pack(k, mf, fixed, flow)
    k.add(left); k.add(late)
    k("s_waitcnt lgkmcnt(0)")
    if FT: k.add(k.stamp(3))
    k("s_barrier")
    if FT: k.add(k.stamp(4))
    Z = acc(1, 0)
    for b in range(4):
        for ss in range(3): k(f"ds_read_b128 {v4(T+4*(b*3+ss))}, v19 offset:{(ss*4+b)*1024}", f"r{b}")
        if b == 1:
            for h in range(2): k(f"ds_read_b128 {v4(Z+4*h)}, v29 offset:{ZA + h*1024}", "z")
    def v2(r): return f"v[{r}:{r+1}]"
    def summ(b):
        F = acc(0, b)
        k(f"WAITLG r{b}")
        for i in (0, 2):
            k(f"v_pk_add_f32 {v2(F+i)}, {v2(F+i)}, {v2(T+12*b+i)}")
            k(f"v_pk_add_f32 {v2(T+12*b+4+i)}, {v2(T+12*b+4+i)}, {v2(T+12*b+8+i)}")
        for i in (0, 2): k(f"v_pk_add_f32 {v2(F+i)}, {v2(F+i)}, {v2(T+12*b+4+i)}")
    def finish(x, y, res, pk, va, so, u):
        for q in range(4):
            k(f"v_lshlrev_b32 v{u+2*q}, 16, v{res+q}")
            k(f"v_and_b32 v{u+2*q+1}, v22, v{res+q}")
        for q in range(4):
            r = (x, x + 2, y, y + 2)[q]
            k(f"v_pk_add_f32 {v2(r)}, {v2(r)}, {v2(u+2*q)}")
        for q in range(4):
            r = (x, x + 2, y, y + 2)[q]
            k(f"v_cvt_pk_bf16_f32 v{pk+q}, v{r}, v{r+1}")
        k(f"buffer_store_dwordx4 {v4(pk)}, v{va}, s[36:39], s44 offen offset:{so} {SC}")
    PK = acc(2, 0); U = acc(3, 0)
    for pr in range(2):
        summ(2 * pr); summ(2 * pr + 1)
        x, y = acc(0, 2 * pr), acc(0, 2 * pr + 1)
        for i in range(4): k(f"v_permlane16_swap_b32 v{x+i}, v{y+i}")
        finish(x, y, RES + 4 * pr, PK + 4 * pr, 9, 1024 * pr, U)
    if FT: k.add(k.stamp(5))
    for i in (0, 2): k(f"v_pk_add_f32 {v2(Z+i)}, {v2(Z+i)}, {v2(Z+4+i)}")
    for i in range(4): k(f"v_mov_b32 v{Z+4+i}, v{Z+i}")
    for i in range(4): k(f"v_permlane32_swap_b32 v{Z+i}, v{Z+4+i}")
    for i in (0, 2): k(f"v_pk_add_f32 {v2(Z+i)}, {v2(Z+i)}, {v2(Z+4+i)}")
    for i in range(4): k(f"v_mov_b32 v{Z+4+i}, v{Z+i}")
    for i in range(4): k(f"v_permlane16_swap_b32 v{Z+i}, v{Z+4+i}")
    k("s_mov_b64 exec, 0xffff")
    finish(Z, Z + 4, RES + 8, PK + 8, 18, 2048, U)
    for q in range(8, 12):
        k(f"v_dot2c_f32_bf16 v20, v{PK+q}, v23")
        k(f"v_dot2c_f32_bf16 v21, v{PK+q}, v{PK+q}")
    k("s_mov_b64 exec, -1")
    for q in range(8):
        k(f"v_dot2c_f32_bf16 v20, v{PK+q}, v23")
        k(f"v_dot2c_f32_bf16 v21, v{PK+q}, v{PK+q}")
    xreduce(k, [20, 21], [24, 25])
    k("s_mov_b64 exec, 0xffff")
    k(f"buffer_store_dwordx2 v[20:21], v18, s[40:43], s51 offen {SC}")
    k("s_mov_b64 exec, -1")
    if FT: k.add(k.stamp(6))

def emit_gk(k):
    N = "gk"; acc = G.acc; ACC = G.ACC; RES = G.RES
    G.NTH = SC
    k(f"{N}_main:")
    k("s_and_b32 s20, s2, 7")
    k("s_lshr_b32 s21, s2, 3")
    k("s_lshr_b32 s16, s20, 1")
    k("s_lshl_b32 s16, s16, 3")
    k("s_lshr_b32 s22, s21, 2")
    k("s_add_u32 s16, s16, s22")
    k("s_and_b32 s17, s20, 1")
    k("s_lshl_b32 s17, s17, 2")
    k("s_and_b32 s22, s21, 3")
    k("s_add_u32 s17, s17, s22")
    k("v_add_u32 v2, 4096, v1")
    k("v_add_u32 v3, 8192, v1")
    k(f"s_mul_i32 s22, s17, {9*9216}")
    k(f"s_add_u32 s22, s22, {WO}")
    k("s_add_u32 s12, s4, s22"); k("s_addc_u32 s13, s5, 0"); k("s_and_b32 s13, s13, 0xffff"); k(f"s_mov_b32 s14, {9*9216}"); k("s_mov_b32 s15, 0x20000")
    def resid():
        k(f"buffer_load_dwordx4 {v4(RES)}, v16, s[24:27], s33 offen {SC}")
        k(f"buffer_load_dwordx4 {v4(RES+4)}, v16, s[24:27], s48 offen {SC}")
        k(f"buffer_load_dwordx4 {v4(RES+8)}, v17, s[24:27], s49 offen {SC}")
    k(f"s_mul_i32 s34, s18, {2*9216}")
    for t in gk_loads(0, "w"): k(t)
    signal(k, 58, 9, "gk")
    k("s_cmp_lg_u32 s54, 0")
    k(f"s_cbranch_scc1 {N}_nopk")
    k(f"s_cmp_ge_u32 s50, {PK.J_END}")
    k(f"s_cbranch_scc1 {N}_nopk")
    PK.finish(k, "pa")
    k(f"{N}_nopk:")
    k("s_add_u32 s34, s34, 9216")
    for t in gk_loads(1, "w"): k(t)
    k(f"s_mov_b32 s34, {8*9216}")
    for hf in range(2):
        k(f"s_cmp_eq_u32 s18, {hf}")
        k(f"s_cbranch_scc0 {N}_lw{hf}")
        for t in gk_loads(2, "w", hf): k(t)
        k(f"{N}_lw{hf}:")
    k("s_cmp_eq_u32 s54, 0")
    k("s_cselect_b32 s24, s94, s100"); k("s_cselect_b32 s25, s95, s101")
    assert XIN == 0
    k("s_cselect_b32 s46, 16, 256")
    k("s_cselect_b32 s47, 1152, 16")
    k("s_and_b32 s25, s25, 0xffff"); k(f"s_mov_b32 s26, {XSZ}"); k("s_mov_b32 s27, 0x20000")
    k("v_and_b32 v10, 15, v254")
    k("v_bfe_u32 v12, v254, 4, 1")
    k("v_lshrrev_b32 v13, 5, v254")
    k("v_lshl_add_u32 v12, v12, 1, v13")
    k("v_mul_lo_u32 v17, v10, s47")
    k("v_mul_lo_u32 v16, v12, s46")
    k("v_add_u32 v16, v16, v17")
    k("s_lshl_b32 s30, s16, 2")
    k("s_add_u32 s30, s30, s18")
    k("s_mul_i32 s31, s30, 18432")
    k("s_mul_i32 s32, s17, 9")
    k("s_mul_i32 s33, s32, s46")
    k("s_add_u32 s33, s33, s31")
    k("s_lshl_b32 s3, s46, 2")
    k("s_add_u32 s48, s33, s3")
    k("s_add_u32 s49, s48, s3")
    k("s_cmp_lg_u32 s54, 0")
    k(f"s_cbranch_scc1 {N}_r0")
    resid()
    k(f"{N}_r0:")
    for j in range(4):
        k(f"s_add_u32 s22, s18, {j}")
        k("s_and_b32 s22, s22, 3")
        k("s_mul_i32 s22, s22, 18432")
        k(f"v_add_u32 v{4+j}, s22, v1")
    k(f"s_mul_i32 s21, s16, {4*18432}")
    k(f"s_add_u32 s21, s21, {OO}")
    k("s_add_u32 s8, s100, s21"); k("s_addc_u32 s9, s101, 0"); k("s_and_b32 s9, s9, 0xffff"); k(f"s_mov_b32 s10, {4*18432}"); k("s_mov_b32 s11, 0x20000")
    for r in range(ACC, ACC + 96): k(f"v_mov_b32 v{r}, 0")
    srd(k, 36, 100, X1, XSZ)
    srd(k, 40, 100, ST1, STSZ)
    k("v_lshlrev_b32 v18, 4, v10")
    k("v_lshl_add_u32 v9, v12, 8, v18")
    k("s_lshl_b32 s44, s32, 8")
    k("s_add_u32 s44, s44, s31")
    k("s_lshl_b32 s51, s30, 10")
    k("s_lshr_b32 s20, s17, 1")
    k("s_lshl_b32 s20, s20, 8")
    k("s_add_u32 s51, s51, s20")
    k("s_and_b32 s20, s17, 1")
    k("s_lshl_b32 s20, s20, 3")
    k("s_add_u32 s51, s51, s20")
    k("s_mul_i32 s20, s18, 12288")
    k("v_add_u32 v19, s20, v1")
    for j in range(1, 4):
        k(f"s_add_u32 s20, s18, {j}")
        k("s_and_b32 s20, s20, 3")
        k("s_mul_i32 s20, s20, 12288")
        k(f"s_add_u32 s20, s20, {(j-1)*4096}")
        k(f"v_add_u32 v{25+j}, s20, v1")
    k("v_and_b32 v29, 31, v254")
    k("v_lshlrev_b32 v29, 4, v29")
    k("s_lshl_b32 s20, s18, 9")
    k("v_add_u32 v29, s20, v29")
    for p in range(2):
        k(f"s_add_u32 s20, s18, {2*p}")
        k("v_add_u32 v30, s20, v13")
        k("v_and_b32 v30, 3, v30")
        k(f"v_lshl_add_u32 v{14+p}, v30, 11, v29")
    k("s_lshl_b32 s20, s18, 11")
    k("v_add_u32 v29, s20, v1")
    k("s_lshr_b32 s45, s16, 2")
    k("s_lshl_b32 s45, s45, 12")
    k("s_add_u32 s45, s45, s59")
    k(f"s_add_u32 s45, s45, {F_ATT*FLG_SET}")
    k("s_lshl_b32 s58, s16, 3")
    k("s_add_u32 s58, s58, s17")
    k("s_lshl_b32 s58, s58, 7")
    k("s_add_u32 s58, s58, s59")
    k(f"s_add_u32 s58, s58, {F_WO*FLG_SET}")
    wait_flags(k, 45, 32, "gk")
    k.add(k.stamp(7))
    k("s_cmp_eq_u32 s54, 0")
    k(f"s_cbranch_scc1 {N}_r1")
    resid()
    k(f"{N}_r1:")
    k(f"s_mov_b32 s35, {8*2048}")
    for hf in range(2):
        k(f"s_cmp_eq_u32 s18, {hf}")
        k(f"s_cbranch_scc0 {N}_lh{hf}")
        for t in gk_loads(2, "h", hf): k(t)
        k(f"{N}_lh{hf}:")
    k("s_lshl_b32 s35, s18, 12")
    for t in gk_loads(0, "h"): k(t)
    k("s_add_u32 s35, s35, 2048")
    for t in gk_loads(1, "h"): k(t)
    k("s_or_b32 s3, s54, s18")
    k("s_cmp_lg_u32 s3, 0")
    k(f"s_cbranch_scc1 {N}_nopk2")
    k("s_lshl_b32 s3, s2, 7")
    k(f"s_add_u32 s3, s3, {F_PK*FLG_SET}")
    k("s_mov_b64 exec, 1")
    k(f"buffer_store_dword v253, v252, s[96:99], s3 offen {SC}")
    k("s_mov_b64 exec, -1")
    k(f"{N}_nopk2:")
    k("s_waitcnt vmcnt(16)")
    k("s_cmp_eq_u32 s18, 0")
    k(f"s_cbranch_scc0 {N}_c1")
    G.compute(k, 2, False, groups=range(5))
    k(f"{N}_c1:")
    k("s_cmp_eq_u32 s18, 1")
    k(f"s_cbranch_scc0 {N}_c2")
    G.compute(k, 2, False, groups=range(5, 10))
    k(f"{N}_c2:")
    k("s_waitcnt vmcnt(8)")
    G.compute(k, 0, False)
    gk_tail(k)

def emit_qkv(k):
    N = "q2"; LDS_ST = 39 * 4096; LDS_S = LDS_ST + 1024
    k(f"{N}_main:")
    k("s_and_b32 s6, s2, 7")
    k("s_lshr_b32 s7, s2, 3")
    k("s_mul_i32 s16, s7, 43")
    k("s_lshr_b32 s16, s16, 8")
    k("s_mul_i32 s17, s16, 6")
    k("s_sub_u32 s17, s7, s17")
    k("s_lshr_b32 s7, s6, 1")
    k("s_lshl_b32 s7, s7, 2")
    k("s_add_u32 s16, s16, s7")
    k("s_and_b32 s6, s6, 1")
    k("s_mul_i32 s6, s6, 6")
    k("s_add_u32 s17, s17, s6")
    k("s_cmp_eq_u32 s54, 0")
    k(f"s_cbranch_scc0 {N}_l1")
    k("s_cmp_lt_u32 s2, 192")
    k("s_cbranch_scc1 q0_tile")
    k("s_sub_u32 s6, s2, 192")
    k("s_lshr_b32 s6, s6, 3")
    k("s_lshl_b32 s6, s6, 2")
    k("s_add_u32 s6, s6, s18")
    if not os.environ.get("NORA"):
        k("s_sub_u32 s7, s2, 192")
        k("s_lshl_b32 s7, s7, 2")
        k("s_add_u32 s7, s7, s18")
        k("s_and_b32 s9, s9, 0xffff"); k(f"s_mov_b32 s10, {XSZ}"); k("s_mov_b32 s11, 0x20000")
        k("s_and_b32 s13, s13, 0xffff"); k(f"s_mov_b32 s14, {WQKV_SZ}"); k("s_mov_b32 s15, 0x20000")
        k("v_lshlrev_b32 v2, 15, v254")
        k("s_lshl_b32 s3, s7, 7")
        k(f"s_add_u32 s3, s3, {128*3456}")
        k("buffer_load_dword v245, v2, s[12:15], s3 offen")
        k("v_and_b32 v2, 7, v254")
        k("v_mul_u32_u24 v2, 1152, v2")
        k("v_lshrrev_b32 v3, 3, v254")
        k("v_min_u32 v3, 6, v3")
        k("v_lshl_add_u32 v2, v3, 7, v2")
        k("s_mul_i32 s3, s7, 9216")
        k("buffer_load_dword v239, v2, s[8:11], s3 offen offset:256")
    code_prefetch(k, "code_mega", "code_end", 32, 6, 254, 246, 20)
    make_tag(k)
    assert PK.NI1 >= 2
    PK.idle_jobs(k)
    k("s_branch at_main")
    Q0.emit(k)
    k(f"{N}_l1:")
    k("s_mul_i32 s6, s17, 165888")
    k(f"s_add_u32 s6, s6, {WQKV}")
    k("s_add_u32 s12, s4, s6"); k("s_addc_u32 s13, s5, 0"); k("s_and_b32 s13, s13, 0xffff"); k("s_mov_b32 s14, 165888"); k("s_mov_b32 s15, 0x20000")
    signal(k, 58, 0, "dn")
    if not os.environ.get("DBGOUT"): k.add(k.stamp(0))
    k("s_cmp_ge_u32 s2, 192")
    k("s_cbranch_scc1 at_main")
    QPRE = int(os.environ.get("QPRE", "27")); GLKS = int(os.environ.get("GLKS", "14"))
    k("s_lshl_b32 s38, s18, 10")
    def wpiece(i): return [f"s_add_u32 m0, s38, {i*4096}", "s_nop 0", ("buffer_load_dwordx4 v1, s[12:15], m0 offen lds", "qwl")]
    for i in range(QPRE): k.add(wpiece(i))
    k("s_lshl_b32 s19, s16, 3")
    k("s_lshl_b32 s6, s18, 1")
    k("s_add_u32 s19, s19, s6")
    k("s_mul_i32 s6, s19, 18432")
    k("v_add_u32 v2, s6, v1")
    k("v_add_u32 v3, 18432, v2")
    for i in range(1, 5): k(f"s_mov_b32 s{32+i}, {4096*i}")
    k(f"v_add_u32 v6, {17*9216}, v1")
    k("v_and_b32 v7, 15, v254")
    k("v_lshrrev_b32 v8, 4, v254")
    k("s_lshl_b32 s6, s19, 11")
    k("v_add_u32 v9, s6, v1")
    k("v_min_u32 v10, 35, v254")
    k("v_lshlrev_b32 v10, 4, v10")
    k("s_mul_i32 s42, s17, 576")
    srd(k, 8, 100, XIN, XSZ)
    srd(k, 20, 100, STIN, ST2SZ)
    srd(k, 28, 4, SQKV, SQKV_SZ)
    srd(k, 24, 100, QKV, 3 * XSZ)
    k("v_add_u32 v16, 65536, v1")
    k("v_add_u32 v17, 131072, v1")
    k("s_cmp_lt_u32 s17, 4")
    k(f"s_cselect_b32 s46, {f2u(QSCALE)}, 1.0")
    k("s_lshl_b32 s47, s18, 8")
    k(f"s_add_u32 s47, s47, {LDS_ST}")
    k("s_mul_i32 s45, s17, 589824")
    k("s_lshl_b32 s48, s19, 9")
    k("s_lshl_b32 s49, s16, 11")
    k(f"s_add_u32 s49, s49, {F_DN*FLG_SET}")
    k("s_lshl_b32 s58, s17, 4")
    k("s_add_u32 s58, s58, s16")
    k("s_lshl_b32 s58, s58, 7")
    k("s_add_u32 s58, s58, s59")
    R0 = 176; CS = 184; W = (32, 68); ACC = 104; SV = 196; PR = 232; WL = 144
    def wlast(b):
        so = "0" if b < 4 else f"s{32 + b // 4}"
        return (f"buffer_load_dwordx4 {a4(WL+4*b)}, v6, s[12:15], {so} offen offset:{(b % 4) * 1024}", "qwlast")
    k(f"buffer_load_dwordx4 v[{CS}:{CS+3}], v10, s[28:31], s42 offen")
    wait_flags(k, 49, 16, N)
    k.add(k.stamp(1))
    def xfrag(ks, j): return 4 * (ks * 2 + j)
    def xl(ks):
        so = "0" if ks < 4 else f"s{32 + ks // 4}"
        return [(f"buffer_load_dwordx4 {a4(xfrag(ks, j))}, v{2+j}, s[8:11], {so} offen offset:{(ks % 4) * 1024} {SC}", f"qx{ks}") for j in range(2)]
    D = 5
    for ks in range(D): k.add(xl(ks))
    for j in range(2):
        for h in range(2):
            k(f"buffer_load_dwordx4 {v4(R0 + 4*j + 240*0 + (0 if h == 0 else 64))}, v9, s[20:23], 0 offen offset:{j*2048 + h*1024} {SC}", "qst")
    k("s_cmp_ge_u32 s17, 8")
    k(f"s_cbranch_scc1 {N}_v")
    for path in ("qk", "v"):
        k.path = path
        if path == "v": k(f"{N}_v:")
        kf = Kern()
        kf(f"v_add_u32 v10, {LDS_S}, v10")
        kf(f"ds_write_b128 v10, v[{CS}:{CS+3}]")
        kf("WAITVM qst")
        for r in range(R0, R0 + 8): kf(f"v_add_f32 v{r}, v{r}, v{r+64}")
        finish_stats(kf, 2, R0)
        kf(f"v_rsq_f32 v13, v{R0+1}")
        kf(f"v_rsq_f32 v15, v{R0+5}")
        kf(f"v_sub_f32 v12, 0, v{R0}")
        kf(f"v_sub_f32 v14, 0, v{R0+4}")
        if path == "qk":
            kf("v_mul_f32 v13, s46, v13")
            kf("v_mul_f32 v15, s46, v15")
            kf(f"v_lshlrev_b32 v10, 4, v8")
            kf("v_and_b32 v18, 1, v8")
            kf("v_lshlrev_b32 v18, 9, v18")
            kf("v_lshrrev_b32 v19, 1, v8")
            kf("v_lshl_add_u32 v18, v19, 8, v18")
            kf("v_lshl_add_u32 v18, v7, 4, v18")
            kf("v_add_u32 v18, s48, v18")
        else:
            kf("v_lshl_add_u32 v11, v7, 3, s47")
            kf("ds_write_b64 v11, v[12:13]")
            kf("ds_write_b64 v11, v[14:15] offset:128")
            kf("v_lshl_add_u32 v11, v8, 5, s47")
            for j in range(2):
                for h in range(2):
                    kf(f"ds_read_b128 v[{R0+8*j+4*h}:{R0+8*j+4*h+3}], v11 offset:{j*128+h*16}", "qvs")
            kf(f"v_lshlrev_b32 v10, 2, v7")
            kf("v_add_u32 v18, s48, v1")
        kf(f"v_add_u32 v10, {LDS_S}, v10")
        def rd(ks, b):
            r = W[ks % 2] + 4 * b
            off = ks * 9216 + b * 1024
            va = 1 if off < 65536 else (16 if off < 131072 else 17)
            return (f"ds_read_b128 v[{r}:{r+3}], v{va} offset:{off % 65536}", f"qw{ks}_{b}")
        def mfma(ks, b, j):
            w = v4(W[ks % 2] + 4 * b) if ks < 17 else a4(WL + 4 * b)
            a = ACC + 4 * (j * 9 + b); x = xfrag(ks, j)
            c = "0" if ks == 0 else v4(a)
            if path == "qk": return f"v_mfma_f32_16x16x32_bf16 {v4(a)}, {w}, {a4(x)}, {c}"
            return f"v_mfma_f32_16x16x32_bf16 {v4(a)}, {a4(x)}, {w}, {c}"
        def epi(b):
            L = []; P = PR + 4 * (b % 2)
            for j in range(2):
                a = ACC + 4 * (j * 9 + b)
                if path == "qk":
                    for i in range(4): L.append(f"v_fma_f32 v{a+i}, v{12+2*j}, v{SV+4*b+i}, v{a+i}")
                    for i in range(4): L.append(f"v_mul_f32 v{a+i}, v{a+i}, v{13+2*j}")
                else:
                    for i in range(4): L.append(f"v_fma_f32 v{a+i}, v{R0+8*j+2*i}, v{SV+b}, v{a+i}")
                    for i in range(4): L.append(f"v_mul_f32 v{a+i}, v{a+i}, v{R0+8*j+2*i+1}")
                L.append(f"v_cvt_pk_bf16_f32 v{P+2*j}, v{a}, v{a+1}")
                L.append(f"v_cvt_pk_bf16_f32 v{P+2*j+1}, v{a+2}, v{a+3}")
            if path == "qk":
                L.append(f"v_permlane16_swap_b32 v{P}, v{P+2}")
                L.append(f"v_permlane16_swap_b32 v{P+1}, v{P+3}")
            L.append(f"buffer_store_dwordx4 v[{P}:{P+3}], v18, s[24:27], s45 offen {SC}")
            if b < 8: L.append("s_add_u32 s45, s45, 65536")
            return L
        for b in range(9): k.add([rd(0, b)])
        k("WAITLG qw0_2")
        k("WAITVM qx0")
        mf = []; fixed = {}
        def fx(i, x): fixed.setdefault(i, []).extend(x if isinstance(x, list) else [x])
        flow = [(x, 4 * 18) for x in kf.ins]
        for b in range(9):
            ins = (f"ds_read_b128 v[{SV+4*b}:{SV+4*b+3}], v10 offset:{b*64}", "sv") if path == "qk" else (f"ds_read_b32 v{SV+b}, v10 offset:{b*64}", "sv")
            flow.append((ins, 9 * 18 + 8 * b))
        for ks in range(16):
            i0 = len(mf)
            if ks > 0: fx(i0 - 2, f"WAITVM qx{ks}")
            ext = [[x] for x in xl(ks + D)] if ks + D < 18 else []
            rest = list(range(QPRE, 39)); per = -(-len(rest) // 5)
            if ks < 5: ext += [wpiece(i) for i in rest[ks * per:(ks + 1) * per]]
            if 7 <= ks < 10: ext += [[wlast(b)] for b in range(3 * (ks - 7), 3 * (ks - 6))]
            for n, x in enumerate(ext): fixed.setdefault(i0 + 1 + 2 * (n * 8 // len(ext)), []).append(Bundle(x))
            if ks == QPRE * 4 // 9 - 1:
                fx(i0 - 4, "WAITVM qwl"); fx(i0 - 3, "s_barrier")
            for b in range(9):
                i = len(mf)
                if b % 3 == 0 and i > 0: fx(i - 1, f"WAITLG qw{ks}_{b+2}")
                mf += [mfma(ks, b, 0), mfma(ks, b, 1)]
                fx(i, rd(ks + 1, b))
        fx(len(mf) - 2, "WAITVM qx17, qwlast")
        for b in range(9):
            i = len(mf)
            if b % 3 == 0: fx(i - 1, f"WAITLG qw16_{b+2}")
            mf += [mfma(16, b, 0), mfma(16, b, 1), mfma(17, b, 0), mfma(17, b, 1)]
            flow += [(x, i + 5) for x in epi(b)]
        left, over = pack(k, mf, fixed, flow)
        k.add(left)
        if path == "qk": k("s_branch at_main")
    k.path = None

def gen():
    k = Kern(); k.name = "mega"
    entry(k, KNAME)
    k("s_load_dwordx2 s[4:5], s[0:1], 72")
    k("s_load_dwordx4 s[8:11], s[0:1], 0")
    k("s_load_dwordx2 s[56:57], s[0:1], 56")
    k(f"s_cmp_ge_u32 s2, {GRID}")
    k("s_cbranch_scc1 mega_exit")
    k.add(k.stamp(0))
    k("v_lshrrev_b32 v8, 6, v0")
    k("v_and_b32 v254, 63, v0")
    k("v_readfirstlane_b32 s18, v8")
    k("v_lshlrev_b32 v1, 4, v254")
    k("v_mov_b32 v252, 0")
    k("s_mov_b32 s54, 0")
    k("s_mov_b32 s59, 0")
    k("s_waitcnt lgkmcnt(0)")
    k(f"s_add_u32 s6, s4, {EPOCH}")
    k("s_addc_u32 s7, s5, 0")
    k("s_load_dword s93, s[6:7], 0")
    k("s_mov_b64 s[100:101], s[4:5]")
    k("s_mov_b64 s[94:95], s[8:9]")
    k("s_mov_b64 s[12:13], s[10:11]")
    srd(k, 96, 4, FLG, EPOCH + 4 - FLG)
    emit_qkv(k)
    def after_stage(k, part):
        if part == 0:
            k("v_min_u32 v255, 8, v254")
            k("v_lshlrev_b32 v255, 7, v255")
            k(f"s_mov_b32 s35, {F_WOPK*FLG_SET}")
            k(f"buffer_load_dword v246, v255, s[96:99], s35 offen {SC}")
            k("WAITVM aq")
            return
        if part == "tag": return make_tag(k)
        if part == "setup":
            k(f"s_add_u32 s50, s2, {PK.J_ATT}")
            k("s_waitcnt lgkmcnt(0)")
            PK.setup(k, "pa")
            return
        if part == 1:
            k(f"s_mov_b32 s3, {SPIN}")
            k("at_wo_wl:")
            k("s_waitcnt vmcnt(0)")
            k("v_cmp_ne_u32 vcc, v253, v246")
            k("s_nop 1")
            k("s_cmp_eq_u64 vcc, 0")
            k("s_cbranch_scc1 at_wo_wd")
            k(f"buffer_load_dword v246, v255, s[96:99], s35 offen {SC}")
            k("s_sub_u32 s3, s3, 1")
            k("s_cmp_lg_u32 s3, 0")
            k("s_cbranch_scc1 at_wo_wl")
            k("s_waitcnt vmcnt(0)")
            k("at_wo_wd:")
            return
        k("s_cmp_lg_u32 s54, 0")
        k(f"s_cbranch_scc1 at_nopk{part}")
        k(f"s_cmp_ge_u32 s50, {PK.J_END}")
        k(f"s_cbranch_scc1 at_nopk{part}")
        PK.loads(k, "pa", part - 2)
        k(f"at_nopk{part}:")
    if os.environ.get("STOP") == "q0":
        k("at_main:"); k("s_branch mega_end"); AT.PFX = "xx"
    AT.emit(k, signal, wait_flags, SC, after_stage)
    emit_gk(k)
    slow = FF.emit(k, signal, wait_flags)
    k("s_cmp_eq_u32 s54, 0")
    k("s_cbranch_scc0 mega_fin")
    if os.environ.get("STOP") == "l1": k("s_branch mega_fin")
    k("s_mov_b32 s54, 1")
    k(f"s_add_u32 s100, s100, {LSTRIDE}")
    k("s_addc_u32 s101, s101, 0")
    k(f"s_mov_b32 s59, {F_LAYER*FLG_SET}")
    k("s_branch q2_main")
    k.add(slow)
    k("mega_fin:")
    k("s_or_b32 s3, s2, s18")
    k("s_cmp_lg_u32 s3, 0")
    k("s_cbranch_scc1 mega_end")
    k("s_add_u32 s3, s93, 1")
    k("v_mov_b32 v251, s3")
    k(f"s_mov_b32 s3, {EPOCH - FLG}")
    k("s_mov_b64 exec, 1")
    k(f"buffer_store_dword v251, v252, s[96:99], s3 offen {SC}")
    k("mega_end:")
    k.stamp_out()
    k("mega_exit:")
    k("s_endpgm")
    k.script = True
    return k, [(KNAME, GRID, 256, LDS)], descriptor(KNAME, 256, 256, 102), [KNAME]
```

```python
from asmgen import *
from layout import *
from k_prep import srd, xreduce
from k_qkv import load_stats, finish_stats, f2u
import k_ffn1 as F1
import math, os
SC = "sc1"; SPIN = 150000
def v4(r): return f"v[{r}:{r+3}]"
def v2(r): return f"v[{r}:{r+1}]"
def a4(r): return f"a[{r}:{r+3}]"
GRP = 36864
def dacc(j, b):
    t = j * 9 + b
    return 16 + 4 * t if t < 14 else 104 + 4 * (t - 14)
def dw(buf, b):
    return 40 + 4 * (buf * 9 + b)
def lds(off): return (1, 6, 7)[off // 65536], off % 65536
def slot(g): return ((g + 1) % 4) * GRP

def emit(k, signal, wait_flags):
    CH = F1.CH; LDS_S = F1.LDS_S; XV, WB, ACC, NMEAN, CC, QQ, SG, TT, PP = F1.XV, F1.WB, F1.ACC, F1.NMEAN, F1.CC, F1.QQ, F1.SG, F1.TT, F1.PP
    xop, accr, rd = F1.xop, F1.accr, F1.rd
    F1.STORE_MOD = SC
    k("f1_main:")
    k("s_and_b32 s6, s2, 7")
    k("s_lshr_b32 s7, s2, 3")
    k("s_and_b32 s16, s6, 1")
    k("s_lshl_b32 s16, s16, 2")
    k("s_lshr_b32 s17, s7, 3")
    k("s_add_u32 s16, s16, s17")
    k("s_lshr_b32 s17, s6, 1")
    k("s_lshl_b32 s17, s17, 3")
    k("s_and_b32 s7, s7, 7")
    k("s_add_u32 s17, s17, s7")
    k("s_mul_i32 s39, s18, 9216")
    k(f"s_mul_i32 s6, s17, {9*CH}")
    k(f"s_add_u32 s6, s6, {WGU}")
    k("s_add_u32 s12, s4, s6"); k("s_addc_u32 s13, s5, 0"); k("s_and_b32 s13, s13, 0xffff"); k(f"s_mov_b32 s14, {9*CH}")
    if True:
        k("s_or_b32 s3, s54, s18")
        k("s_cmp_lg_u32 s3, 0")
        k("s_cbranch_scc1 f1_pkok")
        k("v_lshlrev_b32 v255, 7, v254")
        k(f"s_mov_b32 s3, {SPIN}")
        for j in range(4): k(f"s_mov_b32 s{40+j}, {F_PK*FLG_SET + j*8192}")
        k("f1_pk_wl:")
        for j in range(4): k(f"buffer_load_dword v{244+j}, v255, s[96:99], s{40+j} offen {SC}")
        k("s_waitcnt vmcnt(0)")
        for j in range(4): k(f"v_xor_b32 v{244+j}, v{244+j}, v253")
        k("v_or3_b32 v244, v244, v245, v246")
        k("v_or_b32 v244, v244, v247")
        k("v_cmp_ne_u32 vcc, 0, v244")
        k("s_nop 1")
        k("s_cmp_eq_u64 vcc, 0")
        k("s_cbranch_scc1 f1_pkok")
        k("s_sub_u32 s3, s3, 1")
        k("s_cmp_lg_u32 s3, 0")
        k("s_cbranch_scc1 f1_pk_wl")
        k("f1_pkok:")
    signal(k, 58, 0, "wo")
    k.add(k.stamp(8))
    PRE = int(os.environ.get("F1PRE", "5"))
    k("s_lshl_b32 s38, s18, 10")
    def wgrp(g): return [x if isinstance(x, str) else (x[0], "wl") for c in range(3) for x in F1.dma(c, g)]
    for g in range(PRE): k.add(wgrp(g))
    k("s_lshl_b32 s19, s16, 4")
    k("s_lshl_b32 s6, s18, 2")
    k("s_add_u32 s19, s19, s6")
    for i in range(1, 5): k(f"s_mov_b32 s{32+i}, {4096*i}")
    k("s_mul_i32 s6, s19, 18432")
    k("v_add_u32 v2, s6, v1")
    for tb in range(1, 4): k(f"v_add_u32 v{2+tb}, 18432, v{1+tb}")
    k("v_and_b32 v13, 15, v254")
    k("v_lshrrev_b32 v15, 4, v254")
    k("s_lshl_b32 s6, s19, 10")
    k("v_add_u32 v9, s6, v1")
    k("v_min_u32 v10, 35, v254")
    k("v_lshlrev_b32 v10, 3, v10")
    k("s_mul_i32 s6, s18, 288")
    k("v_add_u32 v10, s6, v10")
    k("s_mul_i32 s42, s17, 1152")
    k("s_add_u32 s43, s42, 36864")
    k("s_add_u32 s44, s42, 73728")
    srd(k, 8, 100, X1, XSZ)
    srd(k, 20, 100, ST1, STSZ)
    srd(k, 28, 4, SGU, SGU_SZ)
    srd(k, 24, 100, HH, H_SZ)
    k("v_add_u32 v6, 65536, v1")
    k("v_add_u32 v7, 131072, v1")
    k(f"v_add_u32 v8, {4*CH}, v1")
    k("v_and_b32 v11, 1, v15")
    k("v_mul_u32_u24 v11, 147456, v11")
    k("v_lshrrev_b32 v12, 1, v15")
    k("v_lshl_add_u32 v11, v12, 8, v11")
    k("v_lshl_add_u32 v11, v13, 4, v11")
    k("s_mul_i32 s6, s19, 147456")
    k("v_add_u32 v11, s6, v11")
    k(f"v_add_u32 v12, {2*147456}, v11")
    k("s_lshr_b32 s47, s17, 3")
    k(f"s_mul_i32 s45, s47, {GRP}")
    k("s_and_b32 s6, s17, 7")
    k("s_lshl_b32 s6, s6, 9")
    k("s_add_u32 s45, s45, s6")
    k("s_lshl_b32 s46, s16, 12")
    k("s_add_u32 s46, s46, s59")
    k("s_lshl_b32 s58, s17, 7")
    k("s_add_u32 s58, s58, s46")
    k(f"s_add_u32 s55, s58, {F_FA*FLG_SET}")
    k(f"s_add_u32 s58, s58, {F_F1*FLG_SET}")
    k(f"s_add_u32 s46, s46, {F_WO*FLG_SET}")
    k("s_lshr_b32 s7, s2, 3")
    k("s_and_b32 s48, s2, 1")
    k("s_lshl_b32 s48, s48, 3")
    k("s_lshr_b32 s6, s7, 2")
    k("s_add_u32 s48, s48, s6")
    k("s_and_b32 s49, s7, 3")
    k("s_lshl_b32 s6, s49, 2")
    k("s_add_u32 s6, s6, s47")
    k(f"s_mul_i32 s6, s6, {9*GRP}")
    k(f"s_add_u32 s6, s6, {WD}")
    k("s_add_u32 s60, s4, s6"); k("s_addc_u32 s61, s5, 0"); k("s_and_b32 s61, s61, 0xffff"); k(f"s_mov_b32 s62, {9*GRP}"); k("s_mov_b32 s63, 0x20000")
    k("s_lshl_b32 s6, s48, 3")
    k("s_lshl_b32 s7, s18, 1")
    k("s_add_u32 s6, s6, s7")
    k("s_mul_i32 s6, s6, 147456")
    k(f"s_mul_i32 s7, s47, {GRP}")
    k("s_add_u32 s6, s6, s7")
    k("v_add_u32 v244, s6, v1")
    k("v_add_u32 v245, 147456, v244")
    k("s_lshr_b32 s50, s48, 1")
    k("s_lshl_b32 s50, s50, 5")
    k("s_lshl_b32 s6, s47, 3")
    k("s_add_u32 s50, s50, s6")
    k("s_lshl_b32 s50, s50, 7")
    k("s_add_u32 s50, s50, s59")
    k(f"s_add_u32 s51, s50, {F_F1*FLG_SET}")
    k(f"s_add_u32 s50, s50, {F_FA*FLG_SET}")
    k("v_min_u32 v246, 7, v254")
    k("v_lshlrev_b32 v246, 7, v246")
    k("s_mov_b32 s52, s39")
    k("s_mov_b32 s53, 0")
    wait_flags(k, 46, 32, "f1")
    k.add(k.stamp(9))
    def xl(ks):
        so = "0" if ks < 4 else f"s{32 + ks // 4}"
        return [(f"buffer_load_dwordx4 {xop(ks, tb)}, v{2+tb}, s[8:11], {so} offen offset:{(ks % 4) * 1024} {SC}", f"x{ks}") for tb in range(4)]
    D = int(os.environ.get("XDIST", "3"))
    for ks in range(D): k.add(xl(ks))
    R0 = TT; CS = ACC + 120
    ks_ = Kern(); load_stats(ks_, 20, 9, 4, R0, "st", SC)
    for i, sr in enumerate((42, 43, 44)):
        ks_(f"buffer_load_dwordx2 v[{CS+2*i}:{CS+2*i+1}], v10, s[28:31], s{sr} offen", "st")
    st_loads = list(ks_.ins)
    kf = Kern()
    kf("WAITVM st")
    for q in range(2):
        kf(f"v_add_f32 v{CS+q}, v{CS+q}, v{CS+2+q}")
        kf(f"v_add_f32 v{CS+q}, v{CS+q}, v{CS+4+q}")
    kf(f"v_add_u32 v10, {LDS_S}, v10")
    kf(f"ds_write_b64 v10, v[{CS}:{CS+1}]", "sw")
    finish_stats(kf, 4, R0)
    for tb in range(4):
        kf(f"v_rsq_f32 v{CC+tb}, v{R0+4*tb+1}")
        kf(f"v_sub_f32 v{NMEAN+tb}, 0, v{R0+4*tb}")
        kf(f"v_mov_b32 v{QQ+tb}, v{R0+4*tb+1}")
        kf(f"v_mul_f32 v{CC+tb}, {f2u(-math.log2(math.e))}, v{CC+tb}")
    kf("v_lshlrev_b32 v10, 4, v15")
    kf(f"v_add_u32 v10, {LDS_S}, v10")
    kf(f"v_add_u32 v9, {8*CH}, v1")
    st_fin = list(kf.ins)
    mf = []; fixed = {}; flow = []
    def fx(i, x): fixed.setdefault(i, []).extend(x if isinstance(x, list) else [x])
    def spread(items, g0, g1):
        vm = [x for x in items if not (isinstance(x, str) and x.startswith("s_add_u32 m0"))]
        step = (g1 - g0) / len(vm); n = 0; pend = None; last = -1
        for x in items:
            if isinstance(x, str) and x.startswith("s_add_u32 m0"): pend = x; continue
            g = max(int(g0 + (n + 0.5) * step), last + 1); n += 1
            while g % 4 in (0, 1) or any(unit_cost(as_ins(y)) for y in fixed.get(g, [])) or (pend and any(as_ins(y).kind == "dma" for y in fixed.get(g - 1, []))): g += 1
            last = g
            if pend: fx(g - 1, pend); pend = None
            fx(g, x)
    PB = (ACC + 96, WB)
    for c in range(3):
        for gu in range(2): k.add([rd(PB[0] + 8 * c + 4 * gu, c, 0, gu)])
    k("WAITLG w0_0")
    k("WAITVM x0")
    d3 = F1.dma_chunk(3); d3s = [d3[0:5], d3[5:10], d3[10:12]]
    for ks in range(18):
        i0 = len(mf)
        if ks > 0: fx(i0 - 2, f"WAITVM x{ks}")
        ext = xl(ks + D) if ks + D < 18 else []
        if ks == 6: ext = ext + st_loads[:4]
        if ks == 7: ext = ext + st_loads[4:]
        if ks == 10: flow += [(x, i0) for x in st_fin]
        if ks in (10, 11, 12): ext = ext + d3s[ks - 10]
        if PRE + ks < 9: ext = wgrp(PRE + ks) + ext
        if ext: spread(ext, i0, i0 + 20)
        if ks == 2 * PRE - 1 and PRE < 9:
            fx(i0 - 5, "WAITVM wl"); fx(i0 - 4, "s_barrier")
        if ks == 17:
            fx(i0 - 5, "WAITVM d3"); fx(i0 - 4, "WAITLG sw"); fx(i0 - 3, "s_barrier")
        for c in range(3):
            for gu in range(2):
                for tb in range(4):
                    a = accr(c, gu, tb); w = PB[ks % 2] + 8 * c + 4 * gu
                    i = len(mf)
                    if gu == 0 and tb == 0 and i > 0: fx(i - 1, f"WAITLG w{c}_{ks}")
                    mf.append(f"v_mfma_f32_16x16x32_bf16 {v4(a)}, {v4(w)}, {xop(ks, tb)}, {'0' if ks == 0 else v4(a)}")
                    if tb == 0 and ks < 17: fx(i, rd(PB[(ks + 1) % 2] + 8 * c + 4 * gu, c, ks + 1, gu))
                    if ks == 17 and c >= 1 and tb == 0: fx(i, rd(WB + 8 * (c - 1) + 4 * gu, 3, c - 1, gu))
                    if ks == 17 and c == 0 and tb == 1:
                        flow.append(((f"ds_read_b128 {v4(SG + 4*gu)}, v10 offset:{64*gu}", "s0"), i))
    flow.append(("WAITLG s0", len(mf) + 1))
    for e in range(3): flow += [(x, len(mf) + 1) for x in F1.epilogue(e)]
    for c in range(3, 9):
        i0 = len(mf)
        if c == 3: fx(i0 - 2, "s_barrier")
        for ks in range(18):
            for gu in range(2):
                for tb in range(4):
                    a = accr(c, gu, tb); w = WB + 8 * (ks % 3) + 4 * gu
                    i = len(mf)
                    if gu == 0 and tb == 0:
                        fx(i - 1, f"WAITLG w{c}_{ks}")
                        if ks == 16 and c < 8:
                            fx(i - 3, f"WAITVM d{c+1}"); fx(i - 2, "s_barrier")
                    mf.append(f"v_mfma_f32_16x16x32_bf16 {v4(a)}, {v4(w)}, {xop(ks, tb)}, {'0' if ks == 0 else v4(a)}")
                    if tb == 0:
                        c2, k2 = (c, ks + 2) if ks < 16 else (c + 1, ks - 16)
                        if c2 < 9: fx(i, rd(WB + 8 * (k2 % 3) + 4 * gu, c2, k2, gu))
        for dc, k0, k1 in {3: [(4, 0, 64), (5, 72, 140)], 4: [(6, 0, 120)], 5: [(7, 0, 120)], 6: [(8, 0, 120)]}.get(c, []):
            spread(F1.dma_chunk(dc), i0 + k0, i0 + k1)
        flow += [(x, len(mf) + 2) for x in F1.epilogue(c)]
    def ddma(g):
        L = []
        for j in range(9):
            pre = []
            if j % 4 == 0:
                pre = [f"s_add_u32 m0, s39, {slot(g) + j*1024}", "s_nop 0" if j == 0 and g == 0 else f"s_add_u32 s52, s52, {4096 if j else GRP - 8192}"]
            L.append(pre + [(f"buffer_load_dwordx4 v1, s[60:63], s52 offen offset:{(j % 4)*1024} lds", f"e{g}")])
        return L
    def hreg(K): return 8 * (K % 4) if K != 35 else 32
    def hl(K):
        L = [[(f"buffer_load_dwordx4 {a4(hreg(K) + 4*j)}, v{244+j}, s[24:27], s53 offen offset:{(K % 4)*1024} {SC}", f"h{K}")] for j in range(2)]
        if K % 4 == 3 and K != 35: L[1].append("s_add_u32 s53, s53, 4096")
        return L
    def drd(K, b, r=None):
        va, off = lds(slot(K // 4) + (K % 4) * 9216 + b * 1024)
        return (f"ds_read_b128 {a4(dw(K % 2, b) if r is None else r)}, v{va} offset:{off}", f"u{K}_{b}")
    def bun(g, x): fixed.setdefault(g, []).append(Bundle(x))
    def freegap(g):
        while any(isinstance(y, Bundle) or unit_cost(as_ins(y)) for y in fixed.get(g, [])): g += 1
        return g
    def raise_flag(so): return ["s_mov_b64 exec, 1", f"buffer_store_dword v253, v252, s[96:99], s{so} offen {SC}", "s_mov_b64 exec, -1"]
    slow = []
    def poll(so, name, g_load, g_check):
        bun(freegap(g_load), [(f"buffer_load_dword v247, v246, s[96:99], s{so} offen {SC}", name)])
        bun(freegap(g_check), [f"WAITVM {name}", "v_cmp_ne_u32 vcc, v253, v247", "s_nop 1", "s_cmp_lg_u64 vcc, 0", f"s_cbranch_scc1 {name}_slow", f"{name}_ok:"])
        slow.extend([f"{name}_slow:", f"s_mov_b32 s3, {SPIN}", f"{name}_wl:", f"buffer_load_dword v247, v246, s[96:99], s{so} offen {SC}", "s_waitcnt vmcnt(0)",
                     "v_cmp_ne_u32 vcc, v253, v247", "s_nop 1", "s_cmp_eq_u64 vcc, 0", f"s_cbranch_scc1 {name}_ok", "s_sub_u32 s3, s3, 1", "s_cmp_lg_u32 s3, 0",
                     f"s_cbranch_scc1 {name}_wl", f"s_branch {name}_ok"])
    EA = int(os.environ.get("EA", "4"))
    c8 = len(mf) - 144; c7 = c8 - 144
    fx(c7 + 128 - 4, f"WAITVM hs{EA}")
    bun(freegap(c7 + 130), raise_flag(55))
    for c0, gg in ((c7, 0), (c8, 1)):
        g = c0 + 2
        for x in ddma(gg):
            g = freegap(g); bun(g, x); g += 9
    poll(50, "fa", c8 + 40, c8 + 86)
    g = c8 + 92
    for K in range(3):
        for x in hl(K):
            g = freegap(g); bun(g, x); g += 4
    fx(c8 + 128 - 3, "WAITVM e0"); fx(c8 + 128 - 2, "s_barrier")
    for b in range(9): fx(freegap(c8 + 129 + b), drd(0, b))
    fx(c8 + 142, "WAITVM h0")
    if k.stamp(10): bun(freegap(c8 + 140), k.stamp(10))
    for K in range(32):
        i0 = len(mf); gi, ks = divmod(K, 4)
        ext = hl(K + 3) if K + 3 < 35 else []
        if K == 28: ext = ext + hl(35)
        if ks < 3 and gi + 2 < 9: ext = ext + ddma(gi + 2)[3 * ks:3 * ks + 3]
        for n, x in enumerate(ext): bun(i0 + 1 + 2 * (n * 8 // len(ext)), x)
        if K > 0: fx(i0 - 2, f"WAITVM h{K}")
        if ks == 3:
            if gi == BG: fx(i0 - 8, "WAITVM hs8")
            fx(i0 - 6, f"WAITVM e{gi+1}"); fx(i0 - 4, "s_barrier")
            if gi == BG: bun(i0 + 13, raise_flag(58))
        for b in range(9):
            i = len(mf)
            if b % 3 == 0: fx(i - 1, f"WAITLG u{K}_{b+2}")
            for j in range(2):
                a = dacc(j, b)
                mf.append(f"v_mfma_f32_16x16x32_bf16 {v4(a)}, {a4(dw(K % 2, b))}, {a4(hreg(K) + 4*j)}, {'0' if K == 0 else v4(a)}")
            fx(i, drd(K + 1, b))
            if K == 31 and b >= 3: fx(i + 1, drd(33 + (b - 3) % 3, (b - 3) // 3, dw(1, b - 3)))
        if K == 4 * EA - 2: poll(51, "fb", i0 + 15, i0 + 18 * 2 + 15)
    assert 4 * EA - 2 >= 4 * BG + 6
    if os.environ.get("FF"):
        pts = [24 * 6, 24 * 12, 24 * 18, 432 + 144 * 2, 432 + 144 * 4, c8 + 144 + 72 * 2, c8 + 144 + 72 * 4, c8 + 144 + 72 * 6]
        for n, g in enumerate(pts): bun(freegap(g), k.stamp(1 + n))
    n0 = len(k.ins)
    left, over = pack(k, mf, fixed, flow, units=lambda i: 3 if i >= c8 + 144 else 2)
    for e in (EA, 8):
        iw = [i for i, x in enumerate(k.ins) if x.op == "WAITVM" and x.ops == [f"hs{e}"]][0]
        il = max(i for i, x in enumerate(k.ins) if x.tag == f"hs{e}")
        print("  h stores", e, "complete", sum(1 for x in k.ins[il:iw] if x.kind == "mfma"), "MFMAs before their wait")
        assert il < iw
    print("ffn leftover instrs:", len(left), "overfull units:", over)
    assert not left
    check_live(k.ins[n0:])
    sub = Kern(); sub.ins = k.ins[n0:]
    iw = [i for i, x in enumerate(sub.ins) if x.tag == "sw"][0]; ir = [i for i, x in enumerate(sub.ins) if x.tag == "s0"][0]
    assert any(x.op == "s_barrier" for x in sub.ins[iw + 3:ir])
    k.add(k.stamp(12))
    srd(k, 8, 100, PART, PART_SZ)
    k("s_lshl_b32 s21, s48, 2")
    k("s_add_u32 s21, s21, s49")
    k("s_lshl_b32 s6, s21, 2")
    k("s_add_u32 s6, s6, s18")
    k("s_mul_i32 s40, s6, 27648")
    k("s_sub_u32 s6, s47, s18")
    k("s_sub_u32 s6, s6, 1")
    k("s_and_b32 s6, s6, 3")
    k("s_mul_i32 s6, s6, 9216")
    k("s_add_u32 s40, s40, s6")
    k("s_add_u32 s41, s40, 4096")
    k("s_add_u32 s42, s40, 8192")
    k("WAITVM h35, h34")
    k("s_cmp_eq_u32 s18, s47")
    k("s_cbranch_scc1 dn_own")
    OWN = slot(6)
    for role in ("pub", "own"):
        k.path = "dn" + role
        if role == "own": k("dn_own:")
        mf = []; fixed = {}; flow = []
        for b in range(9):
            i = len(mf)
            if b == 0: k("WAITLG u35_0")
            else: fx(i - 1, f"WAITLG u35_{b}")
            for ks in range(4):
                w = dw(0, b) if ks == 0 else dw(1, 3 * (b % 3) + ks - 1)
                for j in range(2):
                    a = dacc(j, b)
                    mf.append(f"v_mfma_f32_16x16x32_bf16 {v4(a)}, {a4(w)}, {a4(hreg(32 + ks) + 4*j)}, {v4(a)}")
            if b + 2 < 9:
                for ks in range(1, 4): fx(i + 2 * ks - 2, drd(32 + ks, b + 2, dw(1, 3 * ((b + 2) % 3) + ks - 1)))
            if role == "pub":
                P = 200 + 4 * b
                for j in range(2):
                    a = dacc(j, b)
                    flow += [(f"v_cvt_pk_bf16_f32 v{P+2*j}, v{a}, v{a+1}", i + 9), (f"v_cvt_pk_bf16_f32 v{P+2*j+1}, v{a+2}, v{a+3}", i + 9)]
                flow.append((f"buffer_store_dwordx4 {v4(P)}, v1, s[8:11], s{40 + b//4} offen offset:{(b % 4)*1024} {SC}", i + 9))
            else:
                for j in range(2):
                    va, off = lds(OWN + (2 * b + j) * 1024)
                    flow.append((f"ds_write_b128 v{va}, {v4(dacc(j, b))} offset:{off}", i + 11))
        left, over = pack(k, mf, fixed, flow)
        k.add(left)
        if role == "pub": k("s_branch dn_pub")
    k.path = None
    k("dn_pub:")
    finish_down(k, signal, wait_flags, OWN)
    return slow

BG = int(os.environ.get("BG", "2"))

def check_live(ins):
    ACC = F1.ACC; busy = set()
    for x in ins:
        if x.kind == "mfma":
            r = int(x.dst[0][1:]); ffn1 = x.ops[1].startswith("v[")
            if x.ops[3] == "0":
                assert not (set(x.dst) & busy), f"restart of busy accumulator: {x.text}"
            if ffn1: busy |= set(x.dst)
        elif x.kind in ("dsread", "vload"):
            assert not (set(x.dst) & busy), f"load into busy accumulator: {x.text}"
        elif x.op == "v_cvt_pk_bf16_f32":
            g = int(x.src[1][1:])
            if ACC <= g < ACC + 128 and (g - ACC) % 4 == 3:
                for i in range(4): busy.discard(f"v{g-i}"); busy.discard(f"v{g+16-i}")
    assert not busy

def finish_down(k, signal, wait_flags, OWN):
    N = 'dn'
    k("s_lshl_b32 s46, s21, 9")
    k("s_add_u32 s46, s46, s59")
    k(f"s_add_u32 s46, s46, {F_DX*FLG_SET}")
    k("s_lshl_b32 s58, s47, 7")
    k("s_add_u32 s58, s58, s46")
    k("s_waitcnt lgkmcnt(0)")
    signal(k, 58, 0, "dx")
    k.add(k.stamp(11))
    srd(k, 24, 100, X1, XSZ)
    k("v_and_b32 v10, 15, v254")
    k("v_bfe_u32 v12, v254, 4, 1")
    k("v_lshrrev_b32 v13, 5, v254")
    k("v_mul_u32_u24 v14, 18432, v12")
    k("v_lshl_add_u32 v16, v13, 8, v14")
    k("v_lshl_add_u32 v16, v10, 4, v16")
    k("s_lshl_b32 s30, s48, 3")
    k("s_lshl_b32 s6, s47, 1")
    k("s_add_u32 s30, s30, s6")
    k("s_mul_i32 s31, s30, 18432")
    k("s_mul_i32 s32, s49, 9")
    k("s_add_u32 s32, s32, s18")
    k("s_lshl_b32 s33, s32, 9")
    k("s_add_u32 s33, s33, s31")
    RES = 176; PT = 188; OW = 32
    k("s_add_u32 s34, s33, 4096")
    k(f"buffer_load_dwordx4 {v4(RES)}, v16, s[24:27], s33 offen {SC}")
    k(f"buffer_load_dwordx4 {v4(RES+4)}, v16, s[24:27], s33 offen offset:2048 {SC}")
    k(f"buffer_load_dwordx4 {v4(RES+8)}, v16, s[24:27], s34 offen {SC}")
    k("s_lshl_b32 s6, s18, 11")
    k(f"s_add_u32 s6, s6, {OWN}")
    k("v_add_u32 v6, s6, v1")
    for bi in range(3):
        for j in range(2): k(f"ds_read_b128 {v4(OW + 8*bi + 4*j)}, v6 offset:{bi*8192 + j*1024}")
    k("s_cmp_eq_u32 s54, 1")
    k("s_cselect_b32 s44, 16, 256")
    k("s_cselect_b32 s45, 1152, 16")
    k("s_cselect_b32 s36, s56, s100")
    k("s_cselect_b32 s37, s57, s101")
    k(f"s_cselect_b32 s6, 0, {X2}")
    k(f"s_cselect_b32 s42, 0, {ST2SZ}")
    k("s_add_u32 s36, s36, s6"); k("s_addc_u32 s37, s37, 0"); k("s_and_b32 s37, s37, 0xffff"); k(f"s_mov_b32 s38, {XSZ}"); k("s_mov_b32 s39, 0x20000")
    k(f"s_add_u32 s40, s100, {ST2}"); k("s_addc_u32 s41, s101, 0"); k("s_and_b32 s41, s41, 0xffff"); k("s_mov_b32 s43, 0x20000")
    k("v_mul_lo_u32 v17, v10, s45")
    k("v_mul_lo_u32 v15, v13, s44")
    k("v_add3_u32 v17, v17, v15, v14")
    k("s_lshl_b32 s6, s44, 1")
    k("s_mul_i32 s16, s32, s6")
    k("s_add_u32 s16, s16, s31")
    k("s_lshl_b32 s6, s44, 3")
    k("s_add_u32 s17, s16, s6")
    k("s_add_u32 s19, s17, s6")
    k("v_lshlrev_b32 v18, 4, v10")
    k("v_lshl_add_u32 v18, v12, 11, v18")
    k("s_lshl_b32 s51, s30, 11")
    k("s_lshl_b32 s6, s49, 9")
    k("s_add_u32 s51, s51, s6")
    k("s_lshr_b32 s6, s18, 1")
    k("s_lshl_b32 s6, s6, 8")
    k("s_add_u32 s51, s51, s6")
    k("s_and_b32 s6, s18, 1")
    k("s_lshl_b32 s6, s6, 3")
    k("s_add_u32 s51, s51, s6")
    k("s_lshl_b32 s6, s21, 2")
    k("s_add_u32 s6, s6, s47")
    k("s_mul_i32 s33, s6, 27648")
    k("s_lshl_b32 s7, s18, 10")
    k("s_add_u32 s33, s33, s7")
    k("s_add_u32 s34, s33, 9216")
    k("s_add_u32 s35, s33, 18432")
    k("s_lshl_b32 s58, s48, 4")
    k("s_lshl_b32 s7, s49, 2")
    k("s_add_u32 s58, s58, s7")
    k("s_add_u32 s58, s58, s47")
    k("s_lshl_b32 s58, s58, 7")
    k("s_add_u32 s58, s58, s59")
    k(f"s_add_u32 s58, s58, {F_DN*FLG_SET}")
    k("v_add_u32 v7, 4096, v1")
    k("v_add_u32 v8, 8192, v1")
    k("v_mov_b32 v20, 0")
    k("v_mov_b32 v21, 0")
    k("v_mov_b32 v22, 0xffff0000")
    k("v_mov_b32 v23, 0x3f803f80")
    k("s_waitcnt lgkmcnt(0)")
    wait_flags(k, 46, 4, "dx")
    k.add(k.stamp(1)) if os.environ.get("FH") else None
    def ld(bi):
        for p in range(3): k(f"buffer_load_dwordx4 {v4(PT + 12*bi + 4*p)}, v{(1, 7, 8)[bi]}, s[8:11], s{33+p} offen {SC}")
    U = 64
    def fin(bi):
        X = OW + 8 * bi; Y = X + 4
        for p in range(3):
            r = PT + 12 * bi + 4 * p
            for q in range(4):
                k(f"v_lshlrev_b32 v{U+2*q}, 16, v{r+q}")
                k(f"v_and_b32 v{U+2*q+1}, v22, v{r+q}")
            for q in range(4): k(f"v_pk_add_f32 {v2(X+2*q)}, {v2(X+2*q)}, {v2(U+2*q)}")
        for q in range(4):
            k(f"v_lshlrev_b32 v{U+2*q}, 16, v{RES+4*bi+q}")
            k(f"v_and_b32 v{U+2*q+1}, v22, v{RES+4*bi+q}")
        for i in range(4): k(f"v_permlane16_swap_b32 v{X+i}, v{Y+i}")
        for q in range(4): k(f"v_pk_add_f32 {v2(X+2*q)}, {v2(X+2*q)}, {v2(U+2*q)}")
        pk = 72 + 4 * bi
        for q in range(4): k(f"v_cvt_pk_bf16_f32 v{pk+q}, v{X+2*q}, v{X+2*q+1}")
        k(f"buffer_store_dwordx4 {v4(pk)}, v17, s[36:39], s{(16, 17, 19)[bi]} offen {SC}")
        for q in range(4):
            k(f"v_dot2c_f32_bf16 v20, v{pk+q}, v23")
            k(f"v_dot2c_f32_bf16 v21, v{pk+q}, v{pk+q}")
    k("s_cmp_lg_u32 s18, 0")
    k(f"s_cbranch_scc1 {N}_l2")
    ld(2)
    k(f"{N}_l2:")
    ld(0); ld(1)
    k("s_cmp_lg_u32 s18, 0")
    k(f"s_cbranch_scc1 {N}_f2")
    k("s_waitcnt vmcnt(6)")
    fin(2)
    k(f"{N}_f2:")
    k("s_waitcnt vmcnt(3)")
    fin(0)
    k("s_waitcnt vmcnt(1)")
    fin(1)
    k("v_mov_b32 v24, v20")
    k("v_mov_b32 v25, v21")
    k("v_permlane32_swap_b32 v20, v24")
    k("v_permlane32_swap_b32 v21, v25")
    k("v_add_f32 v20, v20, v24")
    k("v_add_f32 v21, v21, v25")
    k("s_mov_b32 exec_hi, 0")
    k(f"buffer_store_dwordx2 v[20:21], v18, s[40:43], s51 offen {SC}")
    k("s_mov_b32 exec_hi, -1")
```

```python
from asmgen import *
from layout import *
from k_prep import srd, xreduce
import os
SC = "sc1"
J_GU, J_WD, J_END = 9, 225, 297
NI1 = int(os.environ.get("NI1", "3")); NI0 = int(os.environ.get("NI0", "3"))
assert NI0 >= NI1
J_ATT = 64 * NI1 + 32 * (NI0 - NI1)
A0 = 184

def trbase(k, d, t):
    k(f"v_lshrrev_b32 v{d}, 5, v254")
    k(f"v_lshlrev_b32 v{d}, 4, v{d}")
    k(f"v_bfe_u32 v{t}, v254, 4, 1")
    k(f"v_lshl_add_u32 v{d}, v{t}, 2, v{d}")
    k(f"v_bfe_u32 v{t}, v254, 2, 2")
    k(f"v_add_u32 v{d}, v{d}, v{t}")
    k(f"v_and_b32 v{d+1}, 3, v254")

def perm(k, dst, src, tmp):
    k(f"v_and_b32 v{dst}, 0xfffffff3, v{src}")
    k(f"v_bfe_u32 v{tmp}, v{src}, 2, 1")
    k(f"v_lshl_add_u32 v{dst}, v{tmp}, 3, v{dst}")
    k(f"v_bfe_u32 v{tmp}, v{src}, 3, 1")
    k(f"v_lshl_add_u32 v{dst}, v{tmp}, 2, v{dst}")

def frags(k, items, stride, tagp, R, ones):
    def fin(j):
        vb, imm, so, dimm, cs = items[j]; r = R + 4 * j
        k(f"WAITLG {tagp}{j}")
        k(f"buffer_store_dwordx4 v[{r}:{r+3}], v1, s[40:43], s{so} offen offset:{dimm} {SC}")
        if cs is not None:
            for q in range(4): k(f"v_dot2c_f32_bf16 v{cs}, v{r+q}, v{ones}")
    for i, (vb, imm, so, dimm, cs) in enumerate(items):
        r = R + 4 * i
        k(f"ds_read_b64_tr_b16 v[{r}:{r+1}], v{vb} offset:{imm}", f"{tagp}{i}")
        k(f"ds_read_b64_tr_b16 v[{r+2}:{r+3}], v{vb} offset:{imm + 8*stride}", f"{tagp}{i}")
        if i >= 3: fin(i - 3)
    for j in range(len(items) - 3, len(items)): fin(j)

def setup(k, L):
    k("s_load_dwordx4 s[60:63], s[0:1], 32")
    k("s_load_dwordx2 s[48:49], s[0:1], 16")
    k("s_load_dwordx2 s[52:53], s[0:1], 48")
    k(f"s_sub_u32 s47, s50, {J_GU}")
    k(f"s_cmp_lt_u32 s47, {J_WD - J_GU}")
    k(f"s_cbranch_scc0 {L}_rp")
    k("s_cmp_ge_u32 s47, 108")
    k("s_cselect_b32 s44, 1, 0")
    k("s_mul_i32 s45, s44, 108")
    k("s_sub_u32 s47, s47, s45")
    k("s_mul_i32 s45, s47, 43691")
    k("s_lshr_b32 s45, s45, 17")
    k("s_mul_i32 s46, s45, 3")
    k("s_sub_u32 s46, s47, s46")
    k("v_lshrrev_b32 v248, 4, v0")
    k("v_and_b32 v247, 15, v0")
    k("v_mul_u32_u24 v248, 9216, v248")
    k("v_lshl_add_u32 v248, v247, 4, v248")
    k(f"s_mul_i32 s47, s46, {192*9216}")
    k("s_lshl_b32 s51, s45, 8")
    k("s_add_u32 s47, s47, s51")
    k("s_cmp_eq_u32 s44, 0")
    k("s_waitcnt lgkmcnt(0)")
    k("s_cselect_b32 s60, s60, s62")
    k("s_cselect_b32 s61, s61, s63")
    k(f"s_mov_b32 s62, {576*4608*2}")
    k(f"s_branch {L}_sd")
    k(f"{L}_rp:")
    k("s_mov_b32 s44, 2")
    k(f"s_sub_u32 s45, s50, {J_WD}")
    k(f"s_cmp_lt_u32 s50, {J_GU}")
    k("s_cselect_b32 s45, s50, s45")
    k("s_cselect_b32 s46, 9, 72")
    k("s_lshl_b32 s47, s45, 6")
    k("s_mul_i32 s51, s45, 3641")
    k("s_lshr_b32 s51, s51, 16")
    k("s_mul_i32 s3, s51, 18")
    k("s_sub_u32 s3, s45, s3")
    k("s_lshr_b32 s3, s3, 1")
    k("s_lshl_b32 s3, s3, 4")
    k("s_mul_i32 s51, s51, 1152")
    k("s_add_u32 s51, s51, s3")
    k(f"s_cmp_lt_u32 s50, {J_GU}")
    for jj in range(2):
        d = 247 + jj
        k("v_lshrrev_b32 v240, 3, v0")
        k(f"v_add_u32 v240, s47, v240")
        if jj: k("v_add_u32 v240, 32, v240")
        k("v_lshrrev_b32 v241, 4, v240")
        k("v_mul_u32_u24 v242, 18, v241")
        k("v_and_b32 v243, 15, v240")
        k("v_add_u32 v242, v242, v243")
        k("v_and_b32 v243, 1, v241")
        k("v_lshl_add_u32 v242, v243, 1, v242")
        k("v_bfe_u32 v241, v240, 1, 5")
        k("v_mul_u32_u24 v243, 18, v241")
        k("v_and_b32 v244, 1, v240")
        k("v_add_u32 v243, v243, v244")
        k("v_and_b32 v244, 1, v241")
        k("v_xor_b32 v244, 1, v244")
        k("v_lshl_add_u32 v243, v244, 4, v243")
        k("v_cmp_gt_u32 vcc, 512, v240")
        k("v_cndmask_b32 v242, v243, v242, vcc")
        k("v_bfe_u32 v241, v240, 4, 3")
        k("v_mul_u32_u24 v241, 144, v241")
        k("v_and_b32 v243, 15, v240")
        k("v_add3_u32 v240, v241, v243, s51")
        k("s_cselect_b64 vcc, -1, 0")
        k("v_cndmask_b32 v240, v240, v242, vcc")
        k("v_mul_u32_u24 v240, 1152, v240")
        k("v_and_b32 v241, 7, v0")
        k(f"v_lshl_add_u32 v{d}, v241, 4, v240")
    k("s_waitcnt lgkmcnt(0)")
    k("s_cselect_b32 s60, s48, s52")
    k("s_cselect_b32 s61, s49, s53")
    k(f"s_mov_b32 s62, {WD_SZ}")
    k(f"s_cselect_b32 s62, {WO_SZ}, s62")
    k(f"{L}_sd:")
    k("s_and_b32 s61, s61, 0xffff")
    k("s_mov_b32 s63, 0x20000")

def loads(k, L, part):
    k("s_cmp_eq_u32 s44, 2")
    k(f"s_cbranch_scc1 {L}_lr{part}")
    for j in (range(9) if part == 0 else range(9, 12)):
        k(f"buffer_load_dwordx4 a[{A0+4*j}:{A0+4*j+3}], v248, s[60:63], s47 offen nt")
        if j < 11: k(f"s_add_u32 s47, s47, {16*9216}")
    k(f"s_branch {L}_ld{part}")
    k(f"{L}_lr{part}:")
    for jc in range(9):
        r = A0 + 4 * (part * 9 + jc)
        k(f"buffer_load_dwordx4 a[{r}:{r+3}], v{247+part}, s[60:63], 0 offen offset:{jc*128} nt")
    k(f"{L}_ld{part}:")

SO = (30, 31, 32, 33, 36, 37)
def finish(k, L, mid=None):
    srd(k, 40, 4, 0, WS_END)
    trbase(k, 132, 130)
    k("s_cmp_eq_u32 s46, 72")
    k("s_cselect_b32 s39, 1, 0")
    k("s_and_b32 s3, s44, 2")
    k("s_mul_i32 s39, s39, s3")
    k("s_add_u32 s39, s39, s44")
    k("s_cmp_eq_u32 s44, 2")
    k(f"s_cbranch_scc1 {L}_fr")
    k("v_lshrrev_b32 v130, 4, v0")
    perm(k, 131, 130, 134)
    k("v_and_b32 v130, 15, v0")
    k("v_mul_u32_u24 v131, 288, v131")
    k("v_lshl_add_u32 v131, v130, 4, v131")
    for j in range(12): k(f"ds_write_b128 v131, a[{A0+4*j}:{A0+4*j+3}] offset:{j*16*288}")
    k("v_mul_u32_u24 v132, 288, v132")
    k("s_lshl_b32 s3, s18, 6")
    k("v_add_u32 v132, s3, v132")
    k("v_lshl_add_u32 v132, v133, 3, v132")
    k("s_lshl_b32 s30, s45, 3")
    k("s_lshl_b32 s3, s18, 1")
    k("s_add_u32 s31, s30, s3")
    k("s_mul_i32 s38, s46, 36864")
    k("s_lshl_b32 s3, s31, 7")
    k("s_add_u32 s38, s38, s3")
    k("s_lshl_b32 s3, s44, 6")
    k("s_add_u32 s38, s38, s3")
    k(f"s_add_u32 s38, s38, {SGU}")
    k("s_mul_i32 s30, s31, 18")
    k("s_mul_i32 s3, s46, 6")
    k("s_add_u32 s30, s30, s3")
    k("s_lshl_b32 s30, s30, 11")
    k("s_lshl_b32 s3, s44, 10")
    k("s_add_u32 s30, s30, s3")
    k(f"s_add_u32 s30, s30, {WGU}")
    k(f"s_add_u32 s33, s30, {18*2048}")
    k("v_mov_b32 v134, 0")
    k("v_mov_b32 v135, 0")
    k("v_mov_b32 v128, 0x3f803f80")
    k(f"s_branch {L}_fm")
    k(f"{L}_fr:")
    k("v_lshrrev_b32 v130, 3, v0")
    perm(k, 131, 130, 134)
    k("v_and_b32 v130, 7, v0")
    k("v_mul_u32_u24 v131, 1184, v131")
    k("v_lshl_add_u32 v131, v130, 4, v131")
    for jj in range(2):
        for jc in range(9):
            r = A0 + 4 * (jj * 9 + jc)
            k(f"ds_write_b128 v131, a[{r}:{r+3}] offset:{jj*32*1184 + jc*128}")
        if jj == 0: k("s_waitcnt lgkmcnt(4)")
    k("v_mul_u32_u24 v132, 1184, v132")
    k("s_mul_i32 s3, s18, 288")
    k("v_add_u32 v132, s3, v132")
    k("v_and_b32 v130, 1, v133")
    k("v_lshl_add_u32 v134, v130, 3, v132")
    k("v_lshrrev_b32 v130, 1, v133")
    k(f"v_mul_u32_u24 v130, {32*1184}, v130")
    k("v_add_u32 v134, v134, v130")
    k("v_lshl_add_u32 v132, v133, 3, v132")
    k("s_mul_i32 s33, s46, 9216")
    k("s_mul_i32 s30, s45, 9216")
    k("s_lshl_b32 s3, s18, 1")
    k("s_mul_i32 s3, s3, s33")
    k("s_add_u32 s30, s30, s3")
    k(f"s_add_u32 s30, s30, {WO}")
    k("s_add_u32 s33, s33, s30")
    k("s_cmp_eq_u32 s46, 9")
    k(f"s_cbranch_scc1 {L}_fm")
    k("s_mul_i32 s30, s18, 72")
    k("s_add_u32 s30, s30, s45")
    k("s_mul_i32 s30, s30, 18432")
    k(f"s_add_u32 s30, s30, {WD}")
    k("s_add_u32 s33, s30, 9216")
    k(f"{L}_fm:")
    k("s_add_u32 s31, s30, 4096")
    k("s_add_u32 s32, s30, 8192")
    k("s_add_u32 s36, s33, 4096")
    k("s_add_u32 s37, s33, 8192")
    k("s_waitcnt lgkmcnt(0)")
    k("s_barrier")
    if mid: mid(k)
    k("s_cmp_eq_u32 s39, 2")
    k(f"s_cbranch_scc1 {L}_fr2")
    k("s_cmp_eq_u32 s39, 4")
    k(f"s_cbranch_scc1 {L}_fr3")
    k.path = L + "g"
    items = [(132, 32*bb + ks*32*288, SO[3*bb + ks//2], (ks % 2)*2048, 134 + bb) for bb in range(2) for ks in range(6)]
    frags(k, items, 288, L + "g", 136, 128)
    xreduce(k, [134, 135], [130, 131])
    k("v_and_b32 v130, 15, v254")
    k("v_lshlrev_b32 v130, 2, v130")
    k("s_mov_b64 exec, 0xffff")
    k(f"buffer_store_dword v134, v130, s[40:43], s38 offen {SC}")
    k(f"buffer_store_dword v135, v130, s[40:43], s38 offen offset:128 {SC}")
    k("s_mov_b64 exec, -1")
    k(f"s_branch {L}_fd")
    k(f"{L}_fr2:")
    k.path = L + "r"
    items = []
    for nn in range(2):
        for ks in range(2):
            for b in range(4): items.append((132, 144*nn + 32*b + ks*32*1184, SO[3*nn + ks], b*1024, None))
        items.append((134, 144*nn + 128, SO[3*nn + 2], 0, None))
    frags(k, items, 1184, L + "r", 136, None)
    k(f"s_branch {L}_fd")
    k(f"{L}_fr3:")
    k.path = L + "d"
    items = [(132, 32*b + ks*32*1184, SO[3*ks + b//4], (b % 4)*1024, None) for ks in range(2) for b in range(9)]
    frags(k, items, 1184, L + "d", 136, None)
    k.path = None
    k(f"{L}_fd:")

def idle_jobs(k):
    k("s_sub_u32 s50, s2, 256")
    k("s_mov_b32 s35, 0")
    k("s_cmp_ge_u32 s2, 224")
    k(f"s_cselect_b32 s34, {NI0}, {NI1}")
    srd(k, 40, 4, 0, WS_END)
    k("s_branch pi_next")
    k("pi_top:")
    k("s_waitcnt vmcnt(14)")
    k("s_cmp_gt_u32 s35, 2")
    k("s_cbranch_scc1 pi_t1")
    k("s_cmp_eq_u32 s35, 1")
    k("s_cbranch_scc1 pi_t0")
    k(f"s_cmp_ge_u32 s2, {192 + J_GU}")
    k("s_cbranch_scc1 pi_t1")
    k("s_waitcnt vmcnt(0)")
    k("s_barrier")
    k("s_cmp_lg_u32 s18, 0")
    k("s_cbranch_scc1 pi_t1")
    k("s_lshl_b32 s3, s2, 7")
    k(f"s_add_u32 s3, s3, {F_WOPK*FLG_SET - 192*128}")
    k("s_mov_b64 exec, 1")
    k(f"buffer_store_dword v253, v252, s[96:99], s3 offen {SC}")
    k("s_mov_b64 exec, -1")
    k("s_branch pi_t1")
    k("pi_t0:")
    k("s_waitcnt vmcnt(0)")
    k("pi_t1:")
    k("s_barrier")
    def mid(k):
        k("pi_next:")
        k(f"s_cmp_gt_u32 s35, {NI1}")
        k("s_cselect_b32 s3, 32, 64")
        k(f"s_cmp_eq_u32 s35, {NI1}")
        k("s_cselect_b32 s3, 32, s3")
        k("s_add_u32 s50, s50, s3")
        k("s_add_u32 s35, s35, 1")
        k("s_cmp_gt_u32 s35, s34")
        k("s_cbranch_scc1 pi_last")
        setup(k, "pi")
        loads(k, "pi", 0); loads(k, "pi", 1)
        k("s_cmp_eq_u32 s35, 1")
        k("s_cbranch_scc1 pi_top")
        k("pi_last:")
    finish(k, "pi", mid)
    k("s_cmp_le_u32 s35, s34")
    k("s_cbranch_scc1 pi_top")
    k("s_barrier")
```

```python
from asmgen import *
from layout import *
from k_prep import srd, entry, xreduce
from k_qkv import load_stats, finish_stats, f2u, QSCALE
import k_gemmk as G
import k_ffn1 as F1
import m_attn as AT
import m_pack as PK
import m_qkv0 as Q0
import m_ffn as FF
from k_prep import code_prefetch
import math, os

GRID = 256
INPACK = True
KNAME = 'interleave_layers__sliding_block__swiglu_ffn__prompt_kernel'
SC = "sc1"
LDS = 39 * 4096 + 1024 + 576
SPIN = 150000
SLEEP = int(os.environ.get('SLEEP', '0'))
def v4(r): return f"v[{r}:{r+3}]"
def a4(r): return f"a[{r}:{r+3}]"

def make_tag(k):
    k("s_waitcnt lgkmcnt(0)")
    k("s_mul_i32 s3, s93, 0x9E3779B1")
    k("s_add_u32 s3, s3, 0x7F4A7C15")
    k("v_mov_b32 v253, s3")

def signal(k, so, nvm, lab):
    k(f"s_waitcnt vmcnt({nvm})")
    k("s_barrier")
    k("s_cmp_lg_u32 s18, 0")
    k(f"s_cbranch_scc1 {lab}_sg")
    k("s_mov_b64 exec, 1")
    k(f"buffer_store_dword v253, v252, s[96:99], s{so} offen {SC}")
    k("s_mov_b64 exec, -1")
    k(f"{lab}_sg:")

def wait_flags(k, so, n, lab, skip_if=None, keep=0):
    k("s_cmp_lg_u32 s18, 0")
    k(f"s_cbranch_scc1 {lab}_wn")
    if skip_if:
        k(f"s_cmp_eq_u32 {skip_if}, 0")
        k(f"s_cbranch_scc1 {lab}_wn")
    if n:
        k(f"v_min_u32 v255, {n-1}, v254")
        k("v_lshlrev_b32 v255, 7, v255")
    k(f"s_mov_b32 s3, {SPIN}")
    ld = lambda r: k(f"buffer_load_dword v{r}, v255, s[96:99], s{so} offen {SC}")
    ld(249); k("s_sleep 2"); ld(250); k("s_sleep 2")
    k(f"{lab}_wl:")
    for r, nx in ((249, 251), (250, 249), (251, 250)):
        ld(nx)
        k("s_waitcnt vmcnt(2)")
        k(f"v_cmp_ne_u32 vcc, v253, v{r}")
        k("s_nop 1")
        k("s_cmp_eq_u64 vcc, 0")
        k(f"s_cbranch_scc1 {lab}_wd")
    k("s_sub_u32 s3, s3, 1")
    k("s_cmp_lg_u32 s3, 0")
    k(f"s_cbranch_scc1 {lab}_wl")
    k(f"{lab}_wn:")
    k(f"s_waitcnt vmcnt({keep})")
    k(f"{lab}_wd:")
    k("s_barrier")

def emit_gk(k):
    N = "gk"; WL = 77824; WB = 32; ACC = 104; RES = 128; U = 140; PK_ = 148
    def v2(r): return f"v[{r}:{r+1}]"
    k(f"{N}_main:")
    k("s_and_b32 s20, s2, 7")
    k("s_lshr_b32 s21, s2, 3")
    k("s_lshr_b32 s16, s20, 1")
    k("s_lshl_b32 s16, s16, 3")
    k("s_lshr_b32 s22, s21, 2")
    k("s_add_u32 s16, s16, s22")
    k("s_and_b32 s17, s20, 1")
    k("s_lshl_b32 s17, s17, 2")
    k("s_and_b32 s22, s21, 3")
    k("s_add_u32 s17, s17, s22")
    k(f"s_mul_i32 s22, s17, {9*9216}")
    k(f"s_add_u32 s22, s22, {WO - WL}")
    k("s_add_u32 s12, s4, s22"); k("s_addc_u32 s13, s5, 0"); k("s_and_b32 s13, s13, 0xffff"); k(f"s_mov_b32 s14, {WL + 9*9216}"); k("s_mov_b32 s15, 0x20000")
    k("s_lshl_b32 s23, s18, 10")
    def wp(i):
        k(f"s_add_u32 m0, s23, {WL + i*4096}")
        k("buffer_load_dwordx4 v1, s[12:15], m0 offen lds")
    def resid():
        k(f"buffer_load_dwordx4 {v4(RES)}, v16, s[24:27], s33 offen {SC}")
        k(f"buffer_load_dwordx4 {v4(RES+4)}, v16, s[24:27], s48 offen {SC}")
        k(f"buffer_load_dwordx4 {v4(RES+8)}, v17, s[24:27], s49 offen {SC}")
    for i in range(9): wp(i)
    signal(k, 58, 9, "gk")
    for i in range(9, 20): wp(i)
    k("s_cmp_lg_u32 s18, 0")
    k(f"s_cbranch_scc1 {N}_w20")
    wp(20)
    k(f"{N}_w20:")
    k("s_cmp_eq_u32 s54, 0")
    k("s_cselect_b32 s24, s94, s100"); k("s_cselect_b32 s25, s95, s101")
    assert XIN == 0
    k("s_cselect_b32 s46, 16, 256")
    k("s_cselect_b32 s47, 1152, 16")
    k("s_and_b32 s25, s25, 0xffff"); k(f"s_mov_b32 s26, {XSZ}"); k("s_mov_b32 s27, 0x20000")
    k("v_and_b32 v10, 15, v254")
    k("v_bfe_u32 v12, v254, 4, 1")
    k("v_lshrrev_b32 v13, 5, v254")
    k("v_lshl_add_u32 v12, v12, 1, v13")
    k("v_mul_lo_u32 v17, v10, s47")
    k("v_mul_lo_u32 v16, v12, s46")
    k("v_add_u32 v16, v16, v17")
    k("s_lshl_b32 s30, s16, 2")
    k("s_add_u32 s30, s30, s18")
    k("s_mul_i32 s31, s30, 18432")
    k("s_mul_i32 s32, s17, 9")
    k("s_mul_i32 s33, s32, s46")
    k("s_add_u32 s33, s33, s31")
    k("s_lshl_b32 s3, s46, 2")
    k("s_add_u32 s48, s33, s3")
    k("s_add_u32 s49, s48, s3")
    k("s_cmp_lg_u32 s54, 0")
    k(f"s_cbranch_scc1 {N}_r0")
    resid()
    k(f"{N}_r0:")
    srd(k, 8, 100, OO, XSZ)
    srd(k, 36, 100, X1, XSZ)
    srd(k, 40, 100, ST1, STSZ)
    k("v_add_u32 v2, s31, v1")
    k(f"v_add_u32 v3, {WL}, v1")
    k(f"v_add_u32 v4, {WL + 65536}, v1")
    for i in range(1, 5): k(f"s_mov_b32 s{59+i}, {4096*i}")
    k("v_lshlrev_b32 v18, 4, v10")
    k("v_lshl_add_u32 v9, v12, 8, v18")
    k("s_lshl_b32 s44, s32, 8")
    k("s_add_u32 s44, s44, s31")
    k("s_lshl_b32 s51, s30, 10")
    k("s_lshr_b32 s20, s17, 1")
    k("s_lshl_b32 s20, s20, 8")
    k("s_add_u32 s51, s51, s20")
    k("s_and_b32 s20, s17, 1")
    k("s_lshl_b32 s20, s20, 3")
    k("s_add_u32 s51, s51, s20")
    k("v_mov_b32 v20, 0")
    k("v_mov_b32 v21, 0")
    k("v_mov_b32 v22, 0xffff0000")
    k("v_mov_b32 v23, 0x3f803f80")
    k("s_lshr_b32 s45, s16, 2")
    k("s_lshl_b32 s45, s45, 12")
    k("s_add_u32 s45, s45, s59")
    k(f"s_add_u32 s45, s45, {F_ATT*FLG_SET}")
    k("s_lshl_b32 s58, s16, 3")
    k("s_add_u32 s58, s58, s17")
    k("s_lshl_b32 s58, s58, 7")
    k("s_add_u32 s58, s58, s59")
    k(f"s_add_u32 s58, s58, {F_WO*FLG_SET}")
    wait_flags(k, 45, 32, "gk")
    k.add(k.stamp(7))
    k("s_cmp_eq_u32 s54, 0")
    k(f"s_cbranch_scc1 {N}_r1")
    resid()
    k(f"{N}_r1:")
    def ol(ks): return (f"buffer_load_dwordx4 {a4(4*ks)}, v2, s[8:11], {'0' if ks < 4 else f's{59 + ks//4}'} offen offset:{(ks % 4)*1024} {SC}", f"o{ks}")
    NO = 11
    k.add([ol(ks) for ks in range(NO)])
    def rd(p, f):
        off = p * 9216 + f * 1024
        return (f"ds_read_b128 {v4(WB + 36*(p % 2) + 4*f)}, v{3 if off < 65536 else 4} offset:{off % 65536}", f"gw{p}_{f}")
    order = [0, 1, 2, 3, 8, 4, 5, 6, 7]
    k.add([rd(0, f) for f in order])
    k("s_cmp_lg_u32 s54, 0")
    k(f"s_cbranch_scc1 {N}_nopk2")
    k.path = "pkflag"
    k("s_lshl_b32 s3, s2, 7")
    k(f"s_add_u32 s3, s3, {F_PK*FLG_SET}")
    k("s_mov_b64 exec, 1")
    k(f"buffer_store_dword v253, v252, s[96:99], s3 offen {SC}")
    k("s_mov_b64 exec, -1")
    k.path = None
    k(f"{N}_nopk2:")
    k("WAITLG gw0_8")
    k("WAITVM o0")
    mf = []; fixed = {}
    def fx(i, x): fixed.setdefault(i, []).extend(x if isinstance(x, list) else [x])
    for p in range(9):
        for ks in range(2):
            K = 2 * p + ks; i0 = len(mf)
            if K: fx(i0 - 1, [f"WAITVM o{K}", f"WAITLG gw{p}_{7 if ks else 8}"])
            if K + NO < 18: fx(i0 + 4, ol(K + NO))
            for b in range(5):
                f = 4 * ks + b if b < 4 else 8; a = ACC + 4 * (b if b < 4 else 4 + ks)
                mf.append(f"v_mfma_f32_16x16x32_bf16 {v4(a)}, {v4(WB + 36*(p % 2) + 4*f)}, {a4(4*K)}, {'0' if p == 0 and (ks == 0 or b == 4) else v4(a)}")
        if p < 8:
            g = [len(mf) - 10 + x for x in (0, 1, 2, 3, 5, 6, 7, 8, 9)]
            for gg, f in zip(g, order): fx(gg, rd(p + 1, f))
    pack(k, mf, fixed, [])
    def finish(x, y, res, pk, va, so):
        for q in range(4):
            r = (x, x + 2, y, y + 2)[q]
            k(f"v_pk_add_f32 {v2(r)}, {v2(r)}, {v2(U + 8*res + 2*q)}")
        for q in range(4):
            r = (x, x + 2, y, y + 2)[q]
            k(f"v_cvt_pk_bf16_f32 v{pk+q}, v{r}, v{r+1}")
        k(f"buffer_store_dwordx4 {v4(pk)}, v{va}, s[36:39], s44 offen offset:{so} {SC}")
    U = 140; PKR = 164
    for q in range(12):
        k(f"v_lshlrev_b32 v{U+2*q}, 16, v{RES+q}")
        k(f"v_and_b32 v{U+2*q+1}, v22, v{RES+q}")
    for pr in range(2):
        x, y = ACC + 8 * pr, ACC + 8 * pr + 4
        for i in range(4): k(f"v_permlane16_swap_b32 v{x+i}, v{y+i}")
        finish(x, y, pr, PKR + 4 * pr, 9, 1024 * pr)
    Z = ACC + 16; T = WB
    for i in range(4): k(f"v_mov_b32 v{T+i}, v{Z+i}")
    for i in range(4): k(f"v_permlane32_swap_b32 v{Z+4+i}, v{T+i}")
    for i in (0, 2): k(f"v_pk_add_f32 {v2(Z+i)}, {v2(Z+i)}, {v2(T+i)}")
    for i in range(4): k(f"v_mov_b32 v{Z+4+i}, v{Z+i}")
    for i in range(4): k(f"v_permlane16_swap_b32 v{Z+i}, v{Z+4+i}")
    k("s_mov_b64 exec, 0xffff")
    finish(Z, Z + 4, 2, PKR + 8, 18, 2048)
    for q in range(8, 12):
        k(f"v_dot2c_f32_bf16 v20, v{PKR+q}, v23")
        k(f"v_dot2c_f32_bf16 v21, v{PKR+q}, v{PKR+q}")
    k("s_mov_b64 exec, -1")
    for q in range(8):
        k(f"v_dot2c_f32_bf16 v20, v{PKR+q}, v23")
        k(f"v_dot2c_f32_bf16 v21, v{PKR+q}, v{PKR+q}")
    xreduce(k, [20, 21], [24, 25])
    k("s_mov_b64 exec, 0xffff")
    k(f"buffer_store_dwordx2 v[20:21], v18, s[40:43], s51 offen {SC}")
    k("s_mov_b64 exec, -1")

def emit_qkv(k):
    N = "q2"; LDS_ST = 39 * 4096; LDS_S = LDS_ST + 1024
    k(f"{N}_main:")
    k("s_and_b32 s6, s2, 7")
    k("s_lshr_b32 s7, s2, 3")
    k("s_mul_i32 s16, s7, 43")
    k("s_lshr_b32 s16, s16, 8")
    k("s_mul_i32 s17, s16, 6")
    k("s_sub_u32 s17, s7, s17")
    k("s_lshr_b32 s7, s6, 1")
    k("s_lshl_b32 s7, s7, 2")
    k("s_add_u32 s16, s16, s7")
    k("s_and_b32 s6, s6, 1")
    k("s_mul_i32 s6, s6, 6")
    k("s_add_u32 s17, s17, s6")
    k("s_cmp_eq_u32 s54, 0")
    k(f"s_cbranch_scc0 {N}_l1")
    k("s_cmp_lt_u32 s2, 192")
    k("s_cbranch_scc1 q0_tile")
    k("s_sub_u32 s6, s2, 192")
    k("s_lshr_b32 s6, s6, 3")
    k("s_lshl_b32 s6, s6, 2")
    k("s_add_u32 s6, s6, s18")
    if not os.environ.get("NORA"):
        k("s_sub_u32 s7, s2, 192")
        k("s_lshl_b32 s7, s7, 2")
        k("s_add_u32 s7, s7, s18")
        k("s_and_b32 s9, s9, 0xffff"); k(f"s_mov_b32 s10, {XSZ}"); k("s_mov_b32 s11, 0x20000")
        k("s_and_b32 s13, s13, 0xffff"); k(f"s_mov_b32 s14, {WQKV_SZ}"); k("s_mov_b32 s15, 0x20000")
        k("v_lshlrev_b32 v2, 15, v254")
        k("s_lshl_b32 s3, s7, 7")
        k(f"s_add_u32 s3, s3, {128*3456}")
        k("buffer_load_dword v245, v2, s[12:15], s3 offen")
        k("v_and_b32 v2, 7, v254")
        k("v_mul_u32_u24 v2, 1152, v2")
        k("v_lshrrev_b32 v3, 3, v254")
        k("v_min_u32 v3, 6, v3")
        k("v_lshl_add_u32 v2, v3, 7, v2")
        k("s_mul_i32 s3, s7, 9216")
        k("buffer_load_dword v239, v2, s[8:11], s3 offen offset:256")
    code_prefetch(k, "code_mega", "code_end", 32, 6, 254, 246, 20)
    make_tag(k)
    assert PK.NI1 >= 2
    PK.idle_jobs(k)
    k("s_branch at_main")
    Q0.emit(k)
    k(f"{N}_l1:")
    k("s_mul_i32 s6, s17, 165888")
    k(f"s_add_u32 s6, s6, {WQKV}")
    k("s_add_u32 s12, s4, s6"); k("s_addc_u32 s13, s5, 0"); k("s_and_b32 s13, s13, 0xffff"); k("s_mov_b32 s14, 165888"); k("s_mov_b32 s15, 0x20000")
    signal(k, 58, 0, "dn")
    if not os.environ.get("DBGOUT"): k.add(k.stamp(0))
    k("s_cmp_ge_u32 s2, 192")
    k("s_cbranch_scc1 at_main")
    QPRE = int(os.environ.get("QPRE", "27")); GLKS = int(os.environ.get("GLKS", "14"))
    k("s_lshl_b32 s38, s18, 10")
    def wpiece(i): return [f"s_add_u32 m0, s38, {i*4096}", "s_nop 0", ("buffer_load_dwordx4 v1, s[12:15], m0 offen lds", "qwl")]
    for i in range(QPRE): k.add(wpiece(i))
    k("s_lshl_b32 s19, s16, 3")
    k("s_lshl_b32 s6, s18, 1")
    k("s_add_u32 s19, s19, s6")
    k("s_mul_i32 s6, s19, 18432")
    k("v_add_u32 v2, s6, v1")
    k("v_add_u32 v3, 18432, v2")
    for i in range(1, 5): k(f"s_mov_b32 s{32+i}, {4096*i}")
    k(f"v_add_u32 v6, {17*9216}, v1")
    k("v_and_b32 v7, 15, v254")
    k("v_lshrrev_b32 v8, 4, v254")
    k("s_lshl_b32 s6, s19, 11")
    k("v_add_u32 v9, s6, v1")
    k("v_min_u32 v10, 35, v254")
    k("v_lshlrev_b32 v10, 4, v10")
    k("s_mul_i32 s42, s17, 576")
    srd(k, 8, 100, XIN, XSZ)
    srd(k, 20, 100, STIN, ST2SZ)
    srd(k, 28, 4, SQKV, SQKV_SZ)
    srd(k, 24, 100, QKVB, 3 * XSZ)
    k("v_add_u32 v16, 65536, v1")
    k("v_add_u32 v17, 131072, v1")
    k("s_cmp_lt_u32 s17, 4")
    k(f"s_cselect_b32 s46, {f2u(QSCALE)}, 1.0")
    k("s_lshl_b32 s47, s18, 8")
    k(f"s_add_u32 s47, s47, {LDS_ST}")
    k("s_mul_i32 s45, s17, 589824")
    k("s_lshl_b32 s48, s19, 9")
    k("s_lshl_b32 s49, s16, 11")
    k(f"s_add_u32 s49, s49, {F_DN*FLG_SET}")
    k("s_lshl_b32 s58, s17, 4")
    k("s_add_u32 s58, s58, s16")
    k("s_lshl_b32 s58, s58, 7")
    k("s_add_u32 s58, s58, s59")
    R0 = 176; CS = 184; W = (32, 68); ACC = 104; SV = 196; PR = 232; WL = 144
    def wlast(b):
        so = "0" if b < 4 else f"s{32 + b // 4}"
        return (f"buffer_load_dwordx4 {a4(WL+4*b)}, v6, s[12:15], {so} offen offset:{(b % 4) * 1024}", "qwlast")
    k(f"buffer_load_dwordx4 v[{CS}:{CS+3}], v10, s[28:31], s42 offen")
    wait_flags(k, 49, 16, N)
    k.add(k.stamp(1))
    def xfrag(ks, j): return 4 * (ks * 2 + j)
    def xl(ks):
        so = "0" if ks < 4 else f"s{32 + ks // 4}"
        return [(f"buffer_load_dwordx4 {a4(xfrag(ks, j))}, v{2+j}, s[8:11], {so} offen offset:{(ks % 4) * 1024} {SC}", f"qx{ks}") for j in range(2)]
    D = 5
    for ks in range(D): k.add(xl(ks))
    for j in range(2):
        for h in range(2):
            k(f"buffer_load_dwordx4 {v4(R0 + 4*j + 240*0 + (0 if h == 0 else 64))}, v9, s[20:23], 0 offen offset:{j*2048 + h*1024} {SC}", "qst")
    k("s_cmp_ge_u32 s17, 8")
    k(f"s_cbranch_scc1 {N}_v")
    for path in ("qk", "v"):
        k.path = path
        if path == "v": k(f"{N}_v:")
        kf = Kern()
        kf(f"v_add_u32 v10, {LDS_S}, v10")
        kf(f"ds_write_b128 v10, v[{CS}:{CS+3}]")
        kf("WAITVM qst")
        for r in range(R0, R0 + 8): kf(f"v_add_f32 v{r}, v{r}, v{r+64}")
        finish_stats(kf, 2, R0)
        kf(f"v_rsq_f32 v13, v{R0+1}")
        kf(f"v_rsq_f32 v15, v{R0+5}")
        kf(f"v_sub_f32 v12, 0, v{R0}")
        kf(f"v_sub_f32 v14, 0, v{R0+4}")
        if path == "qk":
            kf("v_mul_f32 v13, s46, v13")
            kf("v_mul_f32 v15, s46, v15")
            kf(f"v_lshlrev_b32 v10, 4, v8")
            kf("v_and_b32 v18, 1, v8")
            kf("v_lshlrev_b32 v18, 9, v18")
            kf("v_lshrrev_b32 v19, 1, v8")
            kf("v_lshl_add_u32 v18, v19, 8, v18")
            kf("v_lshl_add_u32 v18, v7, 4, v18")
            kf("v_add_u32 v18, s48, v18")
        else:
            kf("v_lshl_add_u32 v11, v7, 3, s47")
            kf("ds_write_b64 v11, v[12:13]")
            kf("ds_write_b64 v11, v[14:15] offset:128")
            kf("v_lshl_add_u32 v11, v8, 5, s47")
            for j in range(2):
                for h in range(2):
                    kf(f"ds_read_b128 v[{R0+8*j+4*h}:{R0+8*j+4*h+3}], v11 offset:{j*128+h*16}", "qvs")
            kf(f"v_lshlrev_b32 v10, 2, v7")
            kf("v_add_u32 v18, s48, v1")
        kf(f"v_add_u32 v10, {LDS_S}, v10")
        def rd(ks, b):
            r = W[ks % 2] + 4 * b
            off = ks * 9216 + b * 1024
            va = 1 if off < 65536 else (16 if off < 131072 else 17)
            return (f"ds_read_b128 v[{r}:{r+3}], v{va} offset:{off % 65536}", f"qw{ks}_{b}")
        def mfma(ks, b, j):
            w = v4(W[ks % 2] + 4 * b) if ks < 17 else a4(WL + 4 * b)
            a = ACC + 4 * (j * 9 + b); x = xfrag(ks, j)
            c = "0" if ks == 0 else v4(a)
            if path == "qk": return f"v_mfma_f32_16x16x32_bf16 {v4(a)}, {w}, {a4(x)}, {c}"
            return f"v_mfma_f32_16x16x32_bf16 {v4(a)}, {a4(x)}, {w}, {c}"
        def epi(b):
            L = []; P = PR + 4 * (b % 2)
            for j in range(2):
                a = ACC + 4 * (j * 9 + b)
                if path == "qk":
                    for i in range(4): L.append(f"v_fma_f32 v{a+i}, v{12+2*j}, v{SV+4*b+i}, v{a+i}")
                    for i in range(4): L.append(f"v_mul_f32 v{a+i}, v{a+i}, v{13+2*j}")
                else:
                    for i in range(4): L.append(f"v_fma_f32 v{a+i}, v{R0+8*j+2*i}, v{SV+b}, v{a+i}")
                    for i in range(4): L.append(f"v_mul_f32 v{a+i}, v{a+i}, v{R0+8*j+2*i+1}")
                L.append(f"v_cvt_pk_bf16_f32 v{P+2*j}, v{a}, v{a+1}")
                L.append(f"v_cvt_pk_bf16_f32 v{P+2*j+1}, v{a+2}, v{a+3}")
            if path == "qk":
                L.append(f"v_permlane16_swap_b32 v{P}, v{P+2}")
                L.append(f"v_permlane16_swap_b32 v{P+1}, v{P+3}")
            L.append(f"buffer_store_dwordx4 v[{P}:{P+3}], v18, s[24:27], s45 offen {SC}")
            if b < 8: L.append("s_add_u32 s45, s45, 65536")
            return L
        for b in range(9): k.add([rd(0, b)])
        k("WAITLG qw0_2")
        k("WAITVM qx0")
        mf = []; fixed = {}
        def fx(i, x): fixed.setdefault(i, []).extend(x if isinstance(x, list) else [x])
        flow = [(x, 4 * 18) for x in kf.ins]
        for b in range(9):
            ins = (f"ds_read_b128 v[{SV+4*b}:{SV+4*b+3}], v10 offset:{b*64}", "sv") if path == "qk" else (f"ds_read_b32 v{SV+b}, v10 offset:{b*64}", "sv")
            flow.append((ins, 9 * 18 + 8 * b))
        for ks in range(16):
            i0 = len(mf)
            if ks > 0: fx(i0 - 2, f"WAITVM qx{ks}")
            ext = [[x] for x in xl(ks + D)] if ks + D < 18 else []
            rest = list(range(QPRE, 39)); per = -(-len(rest) // 5)
            if ks < 5: ext += [wpiece(i) for i in rest[ks * per:(ks + 1) * per]]
            if 7 <= ks < 10: ext += [[wlast(b)] for b in range(3 * (ks - 7), 3 * (ks - 6))]
            for n, x in enumerate(ext): fixed.setdefault(i0 + 1 + 2 * (n * 8 // len(ext)), []).append(Bundle(x))
            if ks == QPRE * 4 // 9 - 1:
                fx(i0 - 4, "WAITVM qwl"); fx(i0 - 3, "s_barrier")
            for b in range(9):
                i = len(mf)
                if b % 3 == 0 and i > 0: fx(i - 1, f"WAITLG qw{ks}_{b+2}")
                mf += [mfma(ks, b, 0), mfma(ks, b, 1)]
                fx(i, rd(ks + 1, b))
        fx(len(mf) - 2, "WAITVM qx17, qwlast")
        for b in range(9):
            i = len(mf)
            if b % 3 == 0: fx(i - 1, f"WAITLG qw16_{b+2}")
            mf += [mfma(16, b, 0), mfma(16, b, 1), mfma(17, b, 0), mfma(17, b, 1)]
            flow += [(x, i + 5) for x in epi(b)]
        left, over = pack(k, mf, fixed, flow)
        k.add(left)
        if path == "qk": k("s_branch at_main")
    k.path = None

def gen():
    k = Kern(); k.name = "mega"
    entry(k, KNAME)
    k("s_load_dwordx2 s[4:5], s[0:1], 72")
    k("s_load_dwordx4 s[8:11], s[0:1], 0")
    k("s_load_dwordx2 s[56:57], s[0:1], 56")
    k(f"s_cmp_ge_u32 s2, {GRID}")
    k("s_cbranch_scc1 mega_exit")
    k.add(k.stamp(0))
    k("v_lshrrev_b32 v8, 6, v0")
    k("v_and_b32 v254, 63, v0")
    k("v_readfirstlane_b32 s18, v8")
    k("v_lshlrev_b32 v1, 4, v254")
    k("v_mov_b32 v252, 0")
    k("s_mov_b32 s54, 0")
    k("s_mov_b32 s59, 0")
    k("s_waitcnt lgkmcnt(0)")
    if os.environ.get("WSOFF"):
        k(f"s_add_u32 s4, s4, {int(os.environ['WSOFF']) << 20}")
        k("s_addc_u32 s5, s5, 0")
    k(f"s_add_u32 s6, s4, {EPOCH}")
    k("s_addc_u32 s7, s5, 0")
    k("s_load_dword s93, s[6:7], 0")
    k("s_mov_b64 s[100:101], s[4:5]")
    k("s_mov_b64 s[94:95], s[8:9]")
    k("s_mov_b64 s[12:13], s[10:11]")
    srd(k, 96, 4, FLG, EPOCH + 4 - FLG)
    emit_qkv(k)
    def after_stage(k, part):
        if part == 0:
            k("v_min_u32 v255, 8, v254")
            k("v_lshlrev_b32 v255, 7, v255")
            k(f"s_mov_b32 s35, {F_WOPK*FLG_SET}")
            k(f"buffer_load_dword v246, v255, s[96:99], s35 offen {SC}")
            k("WAITVM aq")
            return
        if part == "tag": return make_tag(k)
        if part == "setup":
            k(f"s_add_u32 s50, s2, {PK.J_ATT}")
            k("s_waitcnt lgkmcnt(0)")
            PK.setup(k, "pa")
            return
        if part == 1:
            k("s_waitcnt vmcnt(9)")
            k(f"s_cmp_lt_u32 s50, {PK.J_END}")
            k("s_cselect_b32 s3, s54, 1")
            k("s_cmp_eq_u32 s3, 0")
            k(f"s_mov_b32 s3, {SPIN}")
            k("s_cbranch_scc1 at_wo_chk")
            k("at_wo_wl:")
            k("s_waitcnt vmcnt(0)")
            k("at_wo_chk:")
            k("v_cmp_ne_u32 vcc, v253, v246")
            k("s_nop 1")
            k("s_cmp_eq_u64 vcc, 0")
            k("s_cbranch_scc1 at_wo_wd")
            k(f"buffer_load_dword v246, v255, s[96:99], s35 offen {SC}")
            k("s_sub_u32 s3, s3, 1")
            k("s_cmp_lg_u32 s3, 0")
            k("s_cbranch_scc1 at_wo_wl")
            k("s_waitcnt vmcnt(0)")
            k("at_wo_wd:")
            return
        k("s_cmp_lg_u32 s54, 0")
        k(f"s_cbranch_scc1 at_nopk{part}")
        k(f"s_cmp_ge_u32 s50, {PK.J_END}")
        k(f"s_cbranch_scc1 at_nopk{part}")
        if part < 4: PK.loads(k, "pa", part - 2)
        else:
            k("s_waitcnt vmcnt(0) lgkmcnt(0)")
            PK.finish(k, "pa")
        k(f"at_nopk{part}:")
    if os.environ.get("STOP") == "q0":
        k("at_main:"); k("s_branch mega_end"); AT.PFX = "xx"
    AT.emit(k, signal, wait_flags, SC, after_stage)
    emit_gk(k)
    slow = FF.emit(k, signal, wait_flags)
    k("s_cmp_eq_u32 s54, 0")
    k("s_cbranch_scc0 mega_fin")
    if os.environ.get("STOP") == "l1": k("s_branch mega_fin")
    k("s_mov_b32 s54, 1")
    if LSTRIDE:
        k(f"s_add_u32 s100, s100, {LSTRIDE}")
        k("s_addc_u32 s101, s101, 0")
    k(f"s_mov_b32 s59, {F_LAYER*FLG_SET}")
    k("s_branch q2_main")
    k.add(slow)
    k("mega_fin:")
    k("s_or_b32 s3, s2, s18")
    k("s_cmp_lg_u32 s3, 0")
    k("s_cbranch_scc1 mega_end")
    k("s_add_u32 s3, s93, 1")
    k("v_mov_b32 v251, s3")
    k(f"s_mov_b32 s3, {EPOCH - FLG}")
    k("s_mov_b64 exec, 1")
    k(f"buffer_store_dword v251, v252, s[96:99], s3 offen {SC}")
    k("mega_end:")
    k.stamp_out()
    k("mega_exit:")
    k("s_endpgm")
    k.script = True
    return k, [(KNAME, GRID, 256, LDS)], descriptor(KNAME, 256, 256, 102), [KNAME]
```

```python
from asmgen import *
from layout import *
from k_prep import srd, xreduce
import os
SC = "sc1"
J_GU, J_WD, J_END = 9, 225, 369
NI1 = int(os.environ.get("NI1", "2")); NI0 = int(os.environ.get("NI0", "2"))
assert NI0 >= NI1
J_ATT = 64 * NI1 + 32 * (NI0 - NI1)
assert J_END - J_ATT <= 256
A0 = 184
LB = 53248

def trbase(k, d, t):
    k(f"v_lshrrev_b32 v{d}, 5, v254")
    k(f"v_lshlrev_b32 v{d}, 4, v{d}")
    k(f"v_bfe_u32 v{t}, v254, 4, 1")
    k(f"v_lshl_add_u32 v{d}, v{t}, 2, v{d}")
    k(f"v_bfe_u32 v{t}, v254, 2, 2")
    k(f"v_add_u32 v{d}, v{d}, v{t}")
    k(f"v_and_b32 v{d+1}, 3, v254")

def perm(k, dst, src, tmp):
    k(f"v_and_b32 v{dst}, 0xfffffff3, v{src}")
    k(f"v_bfe_u32 v{tmp}, v{src}, 2, 1")
    k(f"v_lshl_add_u32 v{dst}, v{tmp}, 3, v{dst}")
    k(f"v_bfe_u32 v{tmp}, v{src}, 3, 1")
    k(f"v_lshl_add_u32 v{dst}, v{tmp}, 2, v{dst}")

def frags(k, items, stride, tagp):
    seen = set()
    def fin(j):
        vb, imm, so, dimm, cs = items[j]; r = 4 * j
        k(f"WAITLG {tagp}{j}")
        k(f"buffer_store_dwordx4 a[{r}:{r+3}], v1, s[40:43], s{so} offen offset:{dimm} {SC}")
        if cs is not None:
            k(f"v_mfma_f32_16x16x32_bf16 v[{cs}:{cs+3}], a[{r}:{r+3}], a[72:75], {f'v[{cs}:{cs+3}]' if cs in seen else '0'}")
            seen.add(cs)
    for i, (vb, imm, so, dimm, cs) in enumerate(items):
        r = 4 * i
        k(f"ds_read_b64_tr_b16 a[{r}:{r+1}], v{vb} offset:{imm}", f"{tagp}{i}")
        k(f"ds_read_b64_tr_b16 a[{r+2}:{r+3}], v{vb} offset:{imm + 8*stride}", f"{tagp}{i}")
        if i >= 3: fin(i - 3)
    for j in range(len(items) - 3, len(items)): fin(j)

for _i in range(144): assert (_i * 1821) >> 16 == _i // 36
def setup(k, L):
    k("s_load_dwordx4 s[60:63], s[0:1], 32")
    k("s_load_dwordx2 s[48:49], s[0:1], 16")
    k("s_load_dwordx2 s[52:53], s[0:1], 48")
    k(f"s_sub_u32 s47, s50, {J_GU}")
    k(f"s_cmp_lt_u32 s47, {J_WD - J_GU}")
    k(f"s_cbranch_scc0 {L}_rp")
    k("s_cmp_ge_u32 s47, 108")
    k("s_cselect_b32 s44, 1, 0")
    k("s_mul_i32 s45, s44, 108")
    k("s_sub_u32 s47, s47, s45")
    k("s_mul_i32 s45, s47, 43691")
    k("s_lshr_b32 s45, s45, 17")
    k("s_mul_i32 s46, s45, 3")
    k("s_sub_u32 s46, s47, s46")
    k("v_lshrrev_b32 v248, 4, v0")
    k("v_and_b32 v247, 15, v0")
    k("v_mul_u32_u24 v248, 9216, v248")
    k("v_lshl_add_u32 v248, v247, 4, v248")
    k(f"s_mul_i32 s47, s46, {192*9216}")
    k("s_lshl_b32 s51, s45, 8")
    k("s_add_u32 s47, s47, s51")
    k("s_cmp_eq_u32 s44, 0")
    k("s_waitcnt lgkmcnt(0)")
    k("s_cselect_b32 s60, s60, s62")
    k("s_cselect_b32 s61, s61, s63")
    k(f"s_mov_b32 s62, {576*4608*2}")
    k(f"s_branch {L}_sd")
    k(f"{L}_rp:")
    k("s_mov_b32 s44, 2")
    k(f"s_sub_u32 s45, s50, {J_WD}")
    k(f"s_cmp_lt_u32 s50, {J_GU}")
    k("s_cselect_b32 s45, s50, s45")
    k("s_cselect_b32 s46, 9, 72")
    k("s_cselect_b32 s3, 6, 5")
    k("s_lshl_b32 s47, s45, s3")
    k("s_mul_i32 s51, s45, 1821")
    k("s_lshr_b32 s51, s51, 16")
    k("s_mul_i32 s3, s51, 36")
    k("s_sub_u32 s3, s45, s3")
    k("s_lshr_b32 s3, s3, 2")
    k("s_lshl_b32 s3, s3, 4")
    k("s_mul_i32 s51, s51, 1152")
    k("s_add_u32 s51, s51, s3")
    k(f"s_cmp_lt_u32 s50, {J_GU}")
    for jj in range(2):
        d = 247 + jj
        k("v_lshrrev_b32 v240, 3, v0")
        k(f"v_add_u32 v240, s47, v240")
        if jj: k("v_add_u32 v240, 32, v240")
        k("v_lshrrev_b32 v241, 4, v240")
        k("v_mul_u32_u24 v242, 18, v241")
        k("v_and_b32 v243, 15, v240")
        k("v_add_u32 v242, v242, v243")
        k("v_and_b32 v243, 1, v241")
        k("v_lshl_add_u32 v242, v243, 1, v242")
        k("v_bfe_u32 v241, v240, 1, 5")
        k("v_mul_u32_u24 v243, 18, v241")
        k("v_and_b32 v244, 1, v240")
        k("v_add_u32 v243, v243, v244")
        k("v_and_b32 v244, 1, v241")
        k("v_xor_b32 v244, 1, v244")
        k("v_lshl_add_u32 v243, v244, 4, v243")
        k("v_cmp_gt_u32 vcc, 512, v240")
        k("v_cndmask_b32 v242, v243, v242, vcc")
        k("v_bfe_u32 v241, v240, 4, 3")
        k("v_mul_u32_u24 v241, 144, v241")
        k("v_and_b32 v243, 15, v240")
        k("v_add3_u32 v240, v241, v243, s51")
        k("s_cselect_b64 vcc, -1, 0")
        k("v_cndmask_b32 v240, v240, v242, vcc")
        k("v_mul_u32_u24 v240, 1152, v240")
        k("v_and_b32 v241, 7, v0")
        k(f"v_lshl_add_u32 v{d}, v241, 4, v240")
    k("s_waitcnt lgkmcnt(0)")
    k("s_cselect_b32 s60, s48, s52")
    k("s_cselect_b32 s61, s49, s53")
    k(f"s_mov_b32 s62, {WD_SZ}")
    k(f"s_cselect_b32 s62, {WO_SZ}, s62")
    k(f"{L}_sd:")
    k("s_and_b32 s61, s61, 0xffff")
    k("s_mov_b32 s63, 0x20000")

def loads(k, L, part):
    k("s_cmp_eq_u32 s44, 2")
    k(f"s_cbranch_scc1 {L}_lr{part}")
    for j in (range(9) if part == 0 else range(9, 12)):
        k(f"buffer_load_dwordx4 a[{A0+4*j}:{A0+4*j+3}], v248, s[60:63], s47 offen nt")
        if j < 11: k(f"s_add_u32 s47, s47, {16*9216}")
    k(f"s_branch {L}_ld{part}")
    k(f"{L}_lr{part}:")
    if part:
        k("s_cmp_eq_u32 s46, 72")
        k(f"s_cbranch_scc1 {L}_ld{part}")
    for jc in range(9):
        r = A0 + 4 * (part * 9 + jc)
        k(f"buffer_load_dwordx4 a[{r}:{r+3}], v{247+part}, s[60:63], 0 offen offset:{jc*128} nt")
    k(f"{L}_ld{part}:")

SO = (30, 31, 32, 33, 36, 37)
def finish(k, L, mid=None):
    srd(k, 40, 4, 0, WS_END)
    trbase(k, 234, 232)
    k("s_cmp_eq_u32 s46, 72")
    k("s_cselect_b32 s39, 1, 0")
    k("s_and_b32 s3, s44, 2")
    k("s_mul_i32 s39, s39, s3")
    k("s_add_u32 s39, s39, s44")
    k("s_cmp_eq_u32 s44, 2")
    k(f"s_cbranch_scc1 {L}_fr")
    k("v_lshrrev_b32 v232, 4, v0")
    perm(k, 233, 232, 236)
    k("v_and_b32 v232, 15, v0")
    k("v_mul_u32_u24 v233, 288, v233")
    k("v_lshl_add_u32 v233, v232, 4, v233")
    k(f"v_add_u32 v233, {LB}, v233")
    for j in range(12): k(f"ds_write_b128 v233, a[{A0+4*j}:{A0+4*j+3}] offset:{j*16*288}")
    k("v_mul_u32_u24 v234, 288, v234")
    k("s_lshl_b32 s3, s18, 6")
    k(f"s_add_u32 s3, s3, {LB}")
    k("v_add_u32 v234, s3, v234")
    k("v_lshl_add_u32 v234, v235, 3, v234")
    k("s_lshl_b32 s30, s45, 3")
    k("s_lshl_b32 s3, s18, 1")
    k("s_add_u32 s31, s30, s3")
    k("s_mul_i32 s38, s46, 36864")
    k("s_lshl_b32 s3, s31, 7")
    k("s_add_u32 s38, s38, s3")
    k("s_lshl_b32 s3, s44, 6")
    k("s_add_u32 s38, s38, s3")
    k(f"s_add_u32 s38, s38, {SGU}")
    k("s_mul_i32 s30, s31, 18")
    k("s_mul_i32 s3, s46, 6")
    k("s_add_u32 s30, s30, s3")
    k("s_lshl_b32 s30, s30, 11")
    k("s_lshl_b32 s3, s44, 10")
    k("s_add_u32 s30, s30, s3")
    k(f"s_add_u32 s30, s30, {WGU}")
    k(f"s_add_u32 s33, s30, {18*2048}")
    k("v_mov_b32 v232, 0x3f803f80")
    for i in range(4): k(f"v_accvgpr_write_b32 a{72+i}, v232")
    k(f"s_branch {L}_fm")
    k(f"{L}_fr:")
    k("v_lshrrev_b32 v232, 3, v0")
    perm(k, 233, 232, 236)
    k("v_and_b32 v232, 7, v0")
    k("v_mul_u32_u24 v233, 1184, v233")
    k("v_lshl_add_u32 v233, v232, 4, v233")
    k(f"v_add_u32 v233, {LB}, v233")
    for jj in range(2):
        for jc in range(9):
            r = A0 + 4 * (jj * 9 + jc)
            k(f"ds_write_b128 v233, a[{r}:{r+3}] offset:{jj*32*1184 + jc*128}")
        if jj == 0:
            k("s_cmp_eq_u32 s46, 72")
            k(f"s_cbranch_scc1 {L}_fw")
            k("s_waitcnt lgkmcnt(4)")
    k(f"{L}_fw:")
    k("v_mul_u32_u24 v234, 1184, v234")
    k("s_mul_i32 s3, s18, 288")
    k(f"s_add_u32 s3, s3, {LB}")
    k("v_add_u32 v234, s3, v234")
    k("v_and_b32 v232, 1, v235")
    k("v_lshl_add_u32 v236, v232, 3, v234")
    k("v_lshrrev_b32 v232, 1, v235")
    k(f"v_mul_u32_u24 v232, {32*1184}, v232")
    k("v_add_u32 v236, v236, v232")
    k("v_lshl_add_u32 v234, v235, 3, v234")
    k("s_mul_i32 s33, s46, 9216")
    k("s_mul_i32 s30, s45, 9216")
    k("s_lshl_b32 s3, s18, 1")
    k("s_mul_i32 s3, s3, s33")
    k("s_add_u32 s30, s30, s3")
    k(f"s_add_u32 s30, s30, {WO}")
    k("s_add_u32 s33, s33, s30")
    k("s_cmp_eq_u32 s46, 9")
    k(f"s_cbranch_scc1 {L}_fm")
    k("s_mul_i32 s30, s18, 144")
    k("s_add_u32 s30, s30, s45")
    k("s_mul_i32 s30, s30, 9216")
    k(f"s_add_u32 s30, s30, {WD}")
    k("s_add_u32 s33, s30, 9216")
    k(f"{L}_fm:")
    k("s_add_u32 s31, s30, 4096")
    k("s_add_u32 s32, s30, 8192")
    k("s_add_u32 s36, s33, 4096")
    k("s_add_u32 s37, s33, 8192")
    k("s_waitcnt lgkmcnt(0)")
    k("s_barrier")
    if mid: mid(k)
    k("s_cmp_eq_u32 s39, 2")
    k(f"s_cbranch_scc1 {L}_fr2")
    k("s_cmp_eq_u32 s39, 4")
    k(f"s_cbranch_scc1 {L}_fr3")
    k.path = L + "g"
    items = [(234, 32*bb + ks*32*288, SO[3*bb + ks//2], (ks % 2)*2048, 224 + 4*bb) for bb in range(2) for ks in range(6)]
    frags(k, items, 288, L + "g")
    k("v_lshrrev_b32 v232, 4, v254")
    k("v_lshlrev_b32 v232, 4, v232")
    k("s_mov_b32 exec_lo, 0x00010001"); k("s_mov_b32 exec_hi, 0x00010001")
    k(f"buffer_store_dwordx4 v[224:227], v232, s[40:43], s38 offen {SC}")
    k(f"buffer_store_dwordx4 v[228:231], v232, s[40:43], s38 offen offset:128 {SC}")
    k("s_mov_b64 exec, -1")
    k(f"s_branch {L}_fd")
    k(f"{L}_fr2:")
    k.path = L + "r"
    items = []
    for nn in range(2):
        for ks in range(2):
            for b in range(4): items.append((234, 144*nn + 32*b + ks*32*1184, SO[3*nn + ks], b*1024, None))
        items.append((236, 144*nn + 128, SO[3*nn + 2], 0, None))
    frags(k, items, 1184, L + "r")
    k(f"s_branch {L}_fd")
    k(f"{L}_fr3:")
    k.path = L + "d"
    items = [(234, 32*b + ks*32*1184, SO[3*ks + b//4], (b % 4)*1024, None) for ks in range(1) for b in range(9)]
    frags(k, items, 1184, L + "d")
    k.path = None
    k(f"{L}_fd:")

def idle_jobs(k):
    k("s_sub_u32 s50, s2, 256")
    k("s_mov_b32 s35, 0")
    k("s_cmp_ge_u32 s2, 224")
    k(f"s_cselect_b32 s34, {NI0}, {NI1}")
    srd(k, 40, 4, 0, WS_END)
    k("s_branch pi_next")
    k("pi_top:")
    k("s_waitcnt vmcnt(9)")
    k("s_cmp_gt_u32 s35, 2")
    k("s_cbranch_scc1 pi_t1")
    k("s_cmp_eq_u32 s35, 1")
    k("s_cbranch_scc1 pi_t0")
    k(f"s_cmp_ge_u32 s2, {192 + J_GU}")
    k("s_cbranch_scc1 pi_t1")
    k("s_waitcnt vmcnt(0)")
    k("s_barrier")
    k("s_cmp_lg_u32 s18, 0")
    k("s_cbranch_scc1 pi_t1")
    k("s_lshl_b32 s3, s2, 7")
    k(f"s_add_u32 s3, s3, {F_WOPK*FLG_SET - 192*128}")
    k("s_mov_b64 exec, 1")
    k(f"buffer_store_dword v253, v252, s[96:99], s3 offen {SC}")
    k("s_mov_b64 exec, -1")
    k("s_branch pi_t1")
    k("pi_t0:")
    k("s_waitcnt vmcnt(0)")
    k("pi_t1:")
    k("s_barrier")
    def mid(k):
        k("pi_next:")
        k(f"s_cmp_gt_u32 s35, {NI1}")
        k("s_cselect_b32 s3, 32, 64")
        k(f"s_cmp_eq_u32 s35, {NI1}")
        k("s_cselect_b32 s3, 32, s3")
        k("s_add_u32 s50, s50, s3")
        k("s_add_u32 s35, s35, 1")
        k("s_cmp_gt_u32 s35, s34")
        k("s_cbranch_scc1 pi_last")
        setup(k, "pi")
        loads(k, "pi", 0); loads(k, "pi", 1)
        k("s_cmp_eq_u32 s35, 1")
        k("s_cbranch_scc1 pi_top")
        k("pi_last:")
    finish(k, "pi", mid)
    k("s_cmp_le_u32 s35, s34")
    k("s_cbranch_scc1 pi_top")
    k("s_barrier")
```

```python
XSZ = 2048 * 576 * 2
STSZ = 2048 * 64
ST2SZ = 2048 * 128
H_SZ = 2048 * 4608 * 2
PART_SZ = 256 * 27648
XIN = 0
X1 = XSZ
QKV = 2 * XSZ
OO = 5 * XSZ
STIN = 6 * XSZ
ST1 = STIN + ST2SZ
HH = ST1 + STSZ
PART = HH + H_SZ
import os
QKVB = PART + PART_SZ
ACT_END = QKVB + 3 * XSZ
LSTRIDE = ACT_END if os.environ.get("TWOBUF") else 0
X2 = LSTRIDE + XIN; ST2 = LSTRIDE + STIN
WQKV = ACT_END + LSTRIDE; WQKV_SZ = 576 * 1728 * 2
WO = WQKV + WQKV_SZ; WO_SZ = 576 * 576 * 2
WGU = WO + WO_SZ; WGU_SZ = 576 * 9216 * 2
WD = WGU + WGU_SZ; WD_SZ = 4608 * 576 * 2
SQKV = WD + WD_SZ; SQKV_SZ = 1728 * 4
SGU = SQKV + 20736 + 3840; SGU_NP = 3; SGU_SZ = 3 * 9216 * 4
F_QKV, F_ATT, F_WO, F_F1, F_DX, F_DN, F_FA, F_FM, F_LAYER, F_WOPK, F_PK = 0, 1, 2, 3, 4, 5, 6, 7, 8, 16, 17
FLG = SGU + SGU_SZ; FS = int(os.environ.get('FS', '7')); FLG_SET = 32768; FLG_SZ = 18 * FLG_SET
NREP = int(os.environ.get('NREP', '1'))
EPOCH = FLG + NREP * FLG_SZ + 4096
WS_END = EPOCH + 4096
XF0 = XIN; ST0 = STIN
for _v in (X1, QKV, OO, STIN, ST1, HH, PART, LSTRIDE, WQKV, WO, WGU, WD, SQKV, SGU, FLG): assert _v % 1024 == 0, _v
assert WS_END < 126 << 20
```

```python
from asmgen import *
from layout import *
from k_prep import srd, xreduce
from k_qkv import load_stats, finish_stats, f2u
import k_ffn1 as F1
import math, os
SC = "sc1"; SPIN = 150000
def v4(r): return f"v[{r}:{r+3}]"
def v2(r): return f"v[{r}:{r+1}]"
def a4(r): return f"a[{r}:{r+3}]"
GRP = 36864
def dacc(j, b):
    t = j * 9 + b
    return 16 + 4 * t if t < 14 else 104 + 4 * (t - 14)
def dw(buf, b):
    return 40 + 4 * (buf * 9 + b)
def lds(off): return (1, 6, 7)[off // 65536], off % 65536
def slot(g): return ((g + 1) % 4) * GRP

def emit(k, signal, wait_flags):
    CH = F1.CH; LDS_S = F1.LDS_S; XV, WB, ACC, NMEAN, CC, QQ, SG, TT, PP = F1.XV, F1.WB, F1.ACC, F1.NMEAN, F1.CC, F1.QQ, F1.SG, F1.TT, F1.PP
    xop, accr, rd = F1.xop, F1.accr, F1.rd
    F1.STORE_MOD = SC
    k("f1_main:")
    k("s_and_b32 s6, s2, 7")
    k("s_lshr_b32 s7, s2, 3")
    k("s_and_b32 s16, s6, 1")
    k("s_lshl_b32 s16, s16, 2")
    k("s_lshr_b32 s17, s7, 3")
    k("s_add_u32 s16, s16, s17")
    k("s_lshr_b32 s17, s6, 1")
    k("s_lshl_b32 s17, s17, 3")
    k("s_and_b32 s7, s7, 7")
    k("s_add_u32 s17, s17, s7")
    k("s_mul_i32 s39, s18, 9216")
    k(f"s_mul_i32 s6, s17, {9*CH}")
    k(f"s_add_u32 s6, s6, {WGU}")
    k("s_add_u32 s12, s4, s6"); k("s_addc_u32 s13, s5, 0"); k("s_and_b32 s13, s13, 0xffff"); k(f"s_mov_b32 s14, {9*CH}")
    if True:
        k("s_or_b32 s3, s54, s18")
        k("s_cmp_lg_u32 s3, 0")
        k("s_cbranch_scc1 f1_pkok")
        k("v_lshlrev_b32 v255, 7, v254")
        k(f"s_mov_b32 s3, {SPIN}")
        for j in range(4): k(f"s_mov_b32 s{40+j}, {F_PK*FLG_SET + j*8192}")
        k("f1_pk_wl:")
        for j in range(4): k(f"buffer_load_dword v{244+j}, v255, s[96:99], s{40+j} offen {SC}")
        k("s_waitcnt vmcnt(0)")
        for j in range(4): k(f"v_xor_b32 v{244+j}, v{244+j}, v253")
        k("v_or3_b32 v244, v244, v245, v246")
        k("v_or_b32 v244, v244, v247")
        k("v_cmp_ne_u32 vcc, 0, v244")
        k("s_nop 1")
        k("s_cmp_eq_u64 vcc, 0")
        k("s_cbranch_scc1 f1_pkok")
        k("s_sub_u32 s3, s3, 1")
        k("s_cmp_lg_u32 s3, 0")
        k("s_cbranch_scc1 f1_pk_wl")
        k("f1_pkok:")
    signal(k, 58, 0, "wo")
    k.add(k.stamp(8))
    PRE = int(os.environ.get("F1PRE", "5"))
    k("s_lshl_b32 s38, s18, 10")
    def wgrp(g): return [x if isinstance(x, str) else (x[0], "wl") for c in range(3) for x in F1.dma(c, g)]
    for g in range(PRE): k.add(wgrp(g))
    k("s_lshl_b32 s19, s16, 4")
    k("s_lshl_b32 s6, s18, 2")
    k("s_add_u32 s19, s19, s6")
    for i in range(1, 5): k(f"s_mov_b32 s{32+i}, {4096*i}")
    k("s_mul_i32 s6, s19, 18432")
    k("v_add_u32 v2, s6, v1")
    for tb in range(1, 4): k(f"v_add_u32 v{2+tb}, 18432, v{1+tb}")
    k("v_and_b32 v13, 15, v254")
    k("v_lshrrev_b32 v15, 4, v254")
    k("s_lshl_b32 s6, s19, 10")
    k("v_add_u32 v9, s6, v1")
    k("v_min_u32 v10, 35, v254")
    k("v_lshlrev_b32 v10, 3, v10")
    k("s_mul_i32 s6, s18, 288")
    k("v_add_u32 v10, s6, v10")
    k("s_mul_i32 s42, s17, 1152")
    k("s_add_u32 s43, s42, 36864")
    k("s_add_u32 s44, s42, 73728")
    srd(k, 8, 100, X1, XSZ)
    srd(k, 20, 100, ST1, STSZ)
    srd(k, 28, 4, SGU, SGU_SZ)
    srd(k, 24, 100, HH, H_SZ)
    k("v_add_u32 v6, 65536, v1")
    k("v_add_u32 v7, 131072, v1")
    k(f"v_add_u32 v8, {4*CH}, v1")
    k("v_and_b32 v11, 1, v15")
    k("v_mul_u32_u24 v11, 147456, v11")
    k("v_lshrrev_b32 v12, 1, v15")
    k("v_lshl_add_u32 v11, v12, 8, v11")
    k("v_lshl_add_u32 v11, v13, 4, v11")
    k("s_mul_i32 s6, s19, 147456")
    k("v_add_u32 v11, s6, v11")
    k(f"v_add_u32 v12, {2*147456}, v11")
    k("s_lshr_b32 s47, s17, 3")
    k(f"s_mul_i32 s45, s47, {GRP}")
    k("s_and_b32 s6, s17, 7")
    k("s_lshl_b32 s6, s6, 9")
    k("s_add_u32 s45, s45, s6")
    k("s_lshl_b32 s46, s16, 12")
    k("s_add_u32 s46, s46, s59")
    k("s_lshl_b32 s58, s17, 7")
    k("s_add_u32 s58, s58, s46")
    k(f"s_add_u32 s55, s58, {F_FA*FLG_SET}")
    k(f"s_add_u32 s58, s58, {F_F1*FLG_SET}")
    k(f"s_add_u32 s46, s46, {F_WO*FLG_SET}")
    k("s_lshr_b32 s7, s2, 3")
    k("s_and_b32 s48, s2, 1")
    k("s_lshl_b32 s48, s48, 3")
    k("s_lshr_b32 s6, s7, 2")
    k("s_add_u32 s48, s48, s6")
    k("s_and_b32 s49, s7, 3")
    k("s_lshl_b32 s6, s49, 2")
    k("s_add_u32 s6, s6, s47")
    k(f"s_mul_i32 s6, s6, {9*GRP}")
    k(f"s_add_u32 s6, s6, {WD}")
    k("s_add_u32 s60, s4, s6"); k("s_addc_u32 s61, s5, 0"); k("s_and_b32 s61, s61, 0xffff"); k(f"s_mov_b32 s62, {9*GRP}"); k("s_mov_b32 s63, 0x20000")
    k("s_lshl_b32 s6, s48, 3")
    k("s_lshl_b32 s7, s18, 1")
    k("s_add_u32 s6, s6, s7")
    k("s_mul_i32 s6, s6, 147456")
    k(f"s_mul_i32 s7, s47, {GRP}")
    k("s_add_u32 s6, s6, s7")
    k("v_add_u32 v244, s6, v1")
    k("v_add_u32 v245, 147456, v244")
    k("s_lshr_b32 s50, s48, 1")
    k("s_lshl_b32 s50, s50, 5")
    k("s_lshl_b32 s6, s47, 3")
    k("s_add_u32 s50, s50, s6")
    k("s_lshl_b32 s50, s50, 7")
    k("s_add_u32 s50, s50, s59")
    k(f"s_add_u32 s51, s50, {F_F1*FLG_SET}")
    k(f"s_add_u32 s50, s50, {F_FA*FLG_SET}")
    k("v_min_u32 v246, 7, v254")
    k("v_lshlrev_b32 v246, 7, v246")
    k("s_mov_b32 s52, s39")
    k("s_mov_b32 s53, 0")
    wait_flags(k, 46, 32, "f1")
    k.add(k.stamp(9))
    def xl(ks):
        so = "0" if ks < 4 else f"s{32 + ks // 4}"
        return [(f"buffer_load_dwordx4 {xop(ks, tb)}, v{2+tb}, s[8:11], {so} offen offset:{(ks % 4) * 1024} {SC}", f"x{ks}") for tb in range(4)]
    D = int(os.environ.get("XDIST", "3"))
    for ks in range(D): k.add(xl(ks))
    R0 = TT; CS = ACC + 120
    ks_ = Kern(); load_stats(ks_, 20, 9, 4, R0, "st", SC)
    for i, sr in enumerate((42, 43, 44)):
        ks_(f"buffer_load_dwordx2 v[{CS+2*i}:{CS+2*i+1}], v10, s[28:31], s{sr} offen", "st")
    st_loads = list(ks_.ins)
    kf = Kern()
    kf("WAITVM st")
    for q in range(2):
        kf(f"v_add_f32 v{CS+q}, v{CS+q}, v{CS+2+q}")
        kf(f"v_add_f32 v{CS+q}, v{CS+q}, v{CS+4+q}")
    kf(f"v_add_u32 v10, {LDS_S}, v10")
    kf(f"ds_write_b64 v10, v[{CS}:{CS+1}]", "sw")
    finish_stats(kf, 4, R0)
    for tb in range(4):
        kf(f"v_rsq_f32 v{CC+tb}, v{R0+4*tb+1}")
        kf(f"v_sub_f32 v{NMEAN+tb}, 0, v{R0+4*tb}")
        kf(f"v_mov_b32 v{QQ+tb}, v{R0+4*tb+1}")
        kf(f"v_mul_f32 v{CC+tb}, {f2u(-math.log2(math.e))}, v{CC+tb}")
    kf("v_lshlrev_b32 v10, 4, v15")
    kf(f"v_add_u32 v10, {LDS_S}, v10")
    kf(f"v_add_u32 v9, {8*CH}, v1")
    st_fin = list(kf.ins)
    mf = []; fixed = {}; flow = []
    def fx(i, x): fixed.setdefault(i, []).extend(x if isinstance(x, list) else [x])
    def spread(items, g0, g1):
        vm = [x for x in items if not (isinstance(x, str) and x.startswith("s_add_u32 m0"))]
        step = (g1 - g0) / len(vm); n = 0; pend = None; last = -1
        for x in items:
            if isinstance(x, str) and x.startswith("s_add_u32 m0"): pend = x; continue
            g = max(int(g0 + (n + 0.5) * step), last + 1); n += 1
            while g % 4 in (0, 1) or any(unit_cost(as_ins(y)) for y in fixed.get(g, [])) or (pend and any(as_ins(y).kind == "dma" for y in fixed.get(g - 1, []))): g += 1
            last = g
            if pend: fx(g - 1, pend); pend = None
            fx(g, x)
    PB = (ACC + 96, WB)
    for c in range(3):
        for gu in range(2): k.add([rd(PB[0] + 8 * c + 4 * gu, c, 0, gu)])
    k("WAITLG w0_0")
    k("WAITVM x0")
    d3 = F1.dma_chunk(3); d3s = [d3[0:5], d3[5:10], d3[10:12]]
    for ks in range(18):
        i0 = len(mf)
        if ks > 0: fx(i0 - 2, f"WAITVM x{ks}")
        ext = xl(ks + D) if ks + D < 18 else []
        if ks == 6: ext = ext + st_loads[:4]
        if ks == 7: ext = ext + st_loads[4:]
        if ks == 10: flow += [(x, i0) for x in st_fin]
        if ks in (10, 11, 12): ext = ext + d3s[ks - 10]
        if PRE + ks < 9: ext = wgrp(PRE + ks) + ext
        if ext: spread(ext, i0, i0 + 20)
        if ks == 2 * PRE - 1 and PRE < 9:
            fx(i0 - 5, "WAITVM wl"); fx(i0 - 4, "s_barrier")
        if ks == 17:
            fx(i0 - 5, "WAITVM d3"); fx(i0 - 4, "WAITLG sw"); fx(i0 - 3, "s_barrier")
        for c in range(3):
            for gu in range(2):
                for tb in range(4):
                    a = accr(c, gu, tb); w = PB[ks % 2] + 8 * c + 4 * gu
                    i = len(mf)
                    if gu == 0 and tb == 0 and i > 0: fx(i - 1, f"WAITLG w{c}_{ks}")
                    mf.append(f"v_mfma_f32_16x16x32_bf16 {v4(a)}, {v4(w)}, {xop(ks, tb)}, {'0' if ks == 0 else v4(a)}")
                    if tb == 0 and ks < 17: fx(i, rd(PB[(ks + 1) % 2] + 8 * c + 4 * gu, c, ks + 1, gu))
                    if ks == 17 and c >= 1 and tb == 0: fx(i, rd(WB + 8 * (c - 1) + 4 * gu, 3, c - 1, gu))
                    if ks == 17 and c == 0 and tb == 1:
                        flow.append(((f"ds_read_b128 {v4(SG + 4*gu)}, v10 offset:{64*gu}", "s0"), i))
    flow.append(("WAITLG s0", len(mf) + 1))
    for e in range(3): flow += [(x, len(mf) + 1) for x in F1.epilogue(e)]
    for c in range(3, 9):
        i0 = len(mf)
        if c == 3: fx(i0 - 2, "s_barrier")
        for ks in range(18):
            for gu in range(2):
                for tb in range(4):
                    a = accr(c, gu, tb); w = WB + 8 * (ks % 3) + 4 * gu
                    i = len(mf)
                    if gu == 0 and tb == 0:
                        fx(i - 1, f"WAITLG w{c}_{ks}")
                        if ks == 16 and c < 8:
                            fx(i - 3, f"WAITVM d{c+1}"); fx(i - 2, "s_barrier")
                    mf.append(f"v_mfma_f32_16x16x32_bf16 {v4(a)}, {v4(w)}, {xop(ks, tb)}, {'0' if ks == 0 else v4(a)}")
                    if tb == 0:
                        c2, k2 = (c, ks + 2) if ks < 16 else (c + 1, ks - 16)
                        if c2 < 9: fx(i, rd(WB + 8 * (k2 % 3) + 4 * gu, c2, k2, gu))
        for dc, k0, k1 in {3: [(4, 0, 64), (5, 72, 140)], 4: [(6, 0, 120)], 5: [(7, 0, 120)], 6: [(8, 0, 120)]}.get(c, []):
            spread(F1.dma_chunk(dc), i0 + k0, i0 + k1)
        flow += [(x, len(mf) + 2) for x in F1.epilogue(c)]
    def ddma(g):
        L = []
        for j in range(9):
            pre = []
            if j % 4 == 0:
                pre = [f"s_add_u32 m0, s39, {slot(g) + j*1024}", "s_nop 0" if j == 0 and g == 0 else f"s_add_u32 s52, s52, {4096 if j else GRP - 8192}"]
            L.append(pre + [(f"buffer_load_dwordx4 v1, s[60:63], s52 offen offset:{(j % 4)*1024} lds", f"e{g}")])
        return L
    KB = 36 - 4 * NBG
    def hreg(K): return 8 * (K % 4) if K < 20 else 120 + 8 * (K - 20)
    def hl(K):
        L = [[(f"buffer_load_dwordx4 {a4(hreg(K) + 4*j)}, v{244+j}, s[24:27], s53 offen offset:{(K % 4)*1024} {SC}", f"h{K}")] for j in range(2)]
        if K % 4 == 3: L[1].append("s_add_u32 s53, s53, 4096")
        return L
    def drd(K, b, r=None):
        va, off = lds(slot(K // 4) + (K % 4) * 9216 + b * 1024)
        return (f"ds_read_b128 {a4(dw(K % 2, b) if r is None else r)}, v{va} offset:{off}", f"u{K}_{b}")
    def bun(g, x): fixed.setdefault(g, []).append(Bundle(x))
    def freegap(g):
        while any(isinstance(y, Bundle) or unit_cost(as_ins(y)) for y in fixed.get(g, [])): g += 1
        return g
    def raise_flag(so): return ["s_mov_b64 exec, 1", f"buffer_store_dword v253, v252, s[96:99], s{so} offen {SC}", "s_mov_b64 exec, -1"]
    slow = []
    def poll(so, name, g_load, g_check):
        bun(freegap(g_load), [(f"buffer_load_dword v247, v246, s[96:99], s{so} offen {SC}", name)])
        bun(freegap(g_check), [f"WAITVM {name}", "v_cmp_ne_u32 vcc, v253, v247", "s_nop 1", "s_cmp_lg_u64 vcc, 0", f"s_cbranch_scc1 {name}_slow", f"{name}_ok:"])
        slow.extend([f"{name}_slow:", f"s_mov_b32 s3, {SPIN}", f"{name}_wl:", f"buffer_load_dword v247, v246, s[96:99], s{so} offen {SC}", "s_waitcnt vmcnt(0)",
                     "v_cmp_ne_u32 vcc, v253, v247", "s_nop 1", "s_cmp_eq_u64 vcc, 0", f"s_cbranch_scc1 {name}_ok", "s_sub_u32 s3, s3, 1", "s_cmp_lg_u32 s3, 0",
                     f"s_cbranch_scc1 {name}_wl", f"s_branch {name}_ok"])
    EA = int(os.environ.get("EA", "4"))
    c8 = len(mf) - 144; c7 = c8 - 144
    fx(c7 + 128 - 4, f"WAITVM hs{EA}")
    bun(freegap(c7 + 130), raise_flag(55))
    for c0, gg in ((c7, 0), (c8, 1)):
        g = c0 + 2
        for x in ddma(gg):
            g = freegap(g); bun(g, x); g += 9
    poll(50, "fa", c8 + 40, c8 + 86)
    g = c8 + 92
    for K in range(3):
        for x in hl(K):
            g = freegap(g); bun(g, x); g += 4
    fx(c8 + 128 - 3, "WAITVM e0"); fx(c8 + 128 - 2, "s_barrier")
    for b in range(9): fx(freegap(c8 + 129 + b), drd(0, b))
    fx(c8 + 142, "WAITVM h0")
    if k.stamp(10): bun(freegap(c8 + 140), k.stamp(10))
    nh = 3; NT = 4 * NBG; RING = 18; HA = max(17, KB - 11)
    def treg(b, t): return dw(0, 0) + 4 * ((b * NT + t) % RING)
    tail = [(b, t) for b in range(9) for t in range(NT)]
    for K in range(KB):
        i0 = len(mf); gi, ks = divmod(K, 4)
        ext = []
        want = K + 4 if K < HA else (3 + HA + -(-(33 - HA) * (K + 1 - HA) // (KB - 1 - HA)) if K < KB - 1 else 36)
        while nh < want: ext += hl(nh); nh += 1
        if NBG == 2 and 23 <= K < 28:
            if K < 26: ext = ext + ddma(8)[3 * (K - 23):3 * (K - 22)]
        elif ks < 3 and gi + 2 < 9: ext = ext + ddma(gi + 2)[3 * ks:3 * ks + 3]
        for n, x in enumerate(ext): bun(i0 + 1 + 2 * (n * 8 // len(ext)), x)
        if K > 0: fx(i0 - 2, f"WAITVM h{K}")
        if ks == 3:
            if gi == BG: fx(i0 - 8, "WAITVM hs8")
            fx(i0 - 6, f"WAITVM e{gi+1}" if K < KB - 1 else "WAITVM e8"); fx(i0 - 4, "s_barrier")
            if gi == BG: bun(i0 + 13, raise_flag(58))
        for b in range(9):
            i = len(mf)
            if b % 3 == 0: fx(i - 1, f"WAITLG u{K}_{b+2}")
            for j in range(2):
                a = dacc(j, b)
                mf.append(f"v_mfma_f32_16x16x32_bf16 {v4(a)}, {a4(dw(K % 2, b))}, {a4(hreg(K) + 4*j)}, {'0' if K == 0 else v4(a)}")
            if K < KB - 1: fx(i, drd(K + 1, b))
            else:
                bb, t = tail[b]; fx(i, drd(KB + t, bb, treg(bb, t)))
        if K == 4 * EA - 2: poll(51, "fb", i0 + 15, i0 + 18 * 2 + 15)
    assert 4 * EA - 2 >= 4 * BG + 6
    if os.environ.get("FF"):
        pts = [24 * 6, 24 * 12, 24 * 18, 432 + 144 * 2, 432 + 144 * 4, c8 + 144 + 72 * 2, c8 + 144 + 72 * 4, c8 + 144 + 72 * 6]
        for n, g in enumerate(pts): bun(freegap(g), k.stamp(1 + n))
    n0 = len(k.ins)
    left, over = pack(k, mf, fixed, flow, units=lambda i: 3 if i >= c8 + 144 else 2)
    for e in (EA, 8):
        iw = [i for i, x in enumerate(k.ins) if x.op == "WAITVM" and x.ops == [f"hs{e}"]][0]
        il = max(i for i, x in enumerate(k.ins) if x.tag == f"hs{e}")
        print("  h stores", e, "complete", sum(1 for x in k.ins[il:iw] if x.kind == "mfma"), "MFMAs before their wait")
        assert il < iw
    for i, x in enumerate(k.ins):
        if x.op == "WAITVM" and i >= n0:
            assert all(y.tag not in x.ops for y in k.ins[i:]), f"ops tagged {x.ops} follow their wait"
    print("ffn leftover instrs:", len(left), "overfull units:", over)
    assert not left
    check_live(k.ins[n0:])
    sub = Kern(); sub.ins = k.ins[n0:]
    iw = [i for i, x in enumerate(sub.ins) if x.tag == "sw"][0]; ir = [i for i, x in enumerate(sub.ins) if x.tag == "s0"][0]
    assert any(x.op == "s_barrier" for x in sub.ins[iw + 3:ir])
    k.add(k.stamp(12))
    srd(k, 8, 100, PART, PART_SZ)
    k("s_lshl_b32 s21, s48, 2")
    k("s_add_u32 s21, s21, s49")
    k("s_lshl_b32 s6, s21, 2")
    k("s_add_u32 s6, s6, s18")
    k("s_mul_i32 s40, s6, 27648")
    k("s_sub_u32 s6, s47, s18")
    k("s_sub_u32 s6, s6, 1")
    k("s_and_b32 s6, s6, 3")
    k("s_mul_i32 s6, s6, 9216")
    k("s_add_u32 s40, s40, s6")
    k("s_add_u32 s41, s40, 4096")
    k("s_add_u32 s42, s40, 8192")
    k("WAITVM h35")
    k("s_cmp_eq_u32 s18, s47")
    k("s_cbranch_scc1 dn_own")
    OWN = slot(7 - NBG)
    for role in ("pub", "own"):
        k.path = "dn" + role
        if role == "own": k("dn_own:")
        mf = []; fixed = {}; flow = []
        k(f"WAITLG u{KB+1}_0")
        for b in range(9):
            for t in range(NT):
                i = len(mf); n = b * NT + t
                if n and n % 2 == 0:
                    bb, tt = tail[n + 1]; fx(i - 1, f"WAITLG u{KB+tt}_{bb}")
                for j in range(2):
                    a = dacc(j, b)
                    mf.append(f"v_mfma_f32_16x16x32_bf16 {v4(a)}, {a4(treg(b, t))}, {a4(hreg(KB + t) + 4*j)}, {v4(a)}")
                if n + 9 < len(tail):
                    bb, tt = tail[n + 9]; fx(i, drd(KB + tt, bb, treg(bb, tt)))
            i = len(mf) - 8
            if role == "pub":
                P = 200 + 4 * b
                for j in range(2):
                    a = dacc(j, b)
                    flow += [(f"v_cvt_pk_bf16_f32 v{P+2*j}, v{a}, v{a+1}", i + 9), (f"v_cvt_pk_bf16_f32 v{P+2*j+1}, v{a+2}, v{a+3}", i + 9)]
                flow.append((f"buffer_store_dwordx4 {v4(P)}, v1, s[8:11], s{40 + b//4} offen offset:{(b % 4)*1024} {SC}", i + 9))
            else:
                for j in range(2):
                    va, off = lds(OWN + (2 * b + j) * 1024)
                    flow.append((f"ds_write_b128 v{va}, {v4(dacc(j, b))} offset:{off}", i + 11))
        left, over = pack(k, mf, fixed, flow)
        k.add(left)
        if role == "pub": k("s_branch dn_pub")
    k.path = None
    k("dn_pub:")
    finish_down(k, signal, wait_flags, OWN)
    return slow

BG = int(os.environ.get("BG", "2")); NBG = int(os.environ.get("NBG", "1"))

def check_live(ins):
    ACC = F1.ACC; busy = set()
    for x in ins:
        if x.kind == "mfma":
            r = int(x.dst[0][1:]); ffn1 = x.ops[1].startswith("v[")
            if x.ops[3] == "0":
                assert not (set(x.dst) & busy), f"restart of busy accumulator: {x.text}"
            if ffn1: busy |= set(x.dst)
        elif x.kind in ("dsread", "vload"):
            assert not (set(x.dst) & busy), f"load into busy accumulator: {x.text}"
        elif x.op == "v_cvt_pk_bf16_f32":
            g = int(x.src[1][1:])
            if ACC <= g < ACC + 128 and (g - ACC) % 4 == 3:
                for i in range(4): busy.discard(f"v{g-i}"); busy.discard(f"v{g+16-i}")
    assert not busy

def finish_down(k, signal, wait_flags, OWN):
    N = 'dn'
    k("s_lshl_b32 s46, s21, 9")
    k("s_add_u32 s46, s46, s59")
    k(f"s_add_u32 s46, s46, {F_DX*FLG_SET}")
    k("s_lshl_b32 s58, s47, 7")
    k("s_add_u32 s58, s58, s46")
    k("s_waitcnt lgkmcnt(0)")
    signal(k, 58, 0, "dx")
    k.add(k.stamp(11))
    srd(k, 24, 100, X1, XSZ)
    k("v_and_b32 v10, 15, v254")
    k("v_bfe_u32 v12, v254, 4, 1")
    k("v_lshrrev_b32 v13, 5, v254")
    k("v_mul_u32_u24 v14, 18432, v12")
    k("v_lshl_add_u32 v16, v13, 8, v14")
    k("v_lshl_add_u32 v16, v10, 4, v16")
    k("s_lshl_b32 s30, s48, 3")
    k("s_lshl_b32 s6, s47, 1")
    k("s_add_u32 s30, s30, s6")
    k("s_mul_i32 s31, s30, 18432")
    k("s_mul_i32 s32, s49, 9")
    k("s_add_u32 s32, s32, s18")
    k("s_lshl_b32 s33, s32, 9")
    k("s_add_u32 s33, s33, s31")
    RES = 176; PT = 188; OW = 32
    k("s_add_u32 s34, s33, 4096")
    k(f"buffer_load_dwordx4 {v4(RES)}, v16, s[24:27], s33 offen {SC}")
    k(f"buffer_load_dwordx4 {v4(RES+4)}, v16, s[24:27], s33 offen offset:2048 {SC}")
    k(f"buffer_load_dwordx4 {v4(RES+8)}, v16, s[24:27], s34 offen {SC}")
    k("s_lshl_b32 s6, s18, 11")
    k(f"s_add_u32 s6, s6, {OWN}")
    k("v_add_u32 v6, s6, v1")
    for bi in range(3):
        for j in range(2): k(f"ds_read_b128 {v4(OW + 8*bi + 4*j)}, v6 offset:{bi*8192 + j*1024}")
    k("s_cmp_eq_u32 s54, 1")
    k("s_cselect_b32 s44, 16, 256")
    k("s_cselect_b32 s45, 1152, 16")
    k("s_cselect_b32 s36, s56, s100")
    k("s_cselect_b32 s37, s57, s101")
    k(f"s_cselect_b32 s6, 0, {X2}")
    k(f"s_cselect_b32 s42, 0, {ST2SZ}")
    k("s_add_u32 s36, s36, s6"); k("s_addc_u32 s37, s37, 0"); k("s_and_b32 s37, s37, 0xffff"); k(f"s_mov_b32 s38, {XSZ}"); k("s_mov_b32 s39, 0x20000")
    k(f"s_add_u32 s40, s100, {ST2}"); k("s_addc_u32 s41, s101, 0"); k("s_and_b32 s41, s41, 0xffff"); k("s_mov_b32 s43, 0x20000")
    k("v_mul_lo_u32 v17, v10, s45")
    k("v_mul_lo_u32 v15, v13, s44")
    k("v_add3_u32 v17, v17, v15, v14")
    k("s_lshl_b32 s6, s44, 1")
    k("s_mul_i32 s16, s32, s6")
    k("s_add_u32 s16, s16, s31")
    k("s_lshl_b32 s6, s44, 3")
    k("s_add_u32 s17, s16, s6")
    k("s_add_u32 s19, s17, s6")
    k("v_lshlrev_b32 v18, 4, v10")
    k("v_lshl_add_u32 v18, v12, 11, v18")
    k("s_lshl_b32 s51, s30, 11")
    k("s_lshl_b32 s6, s49, 9")
    k("s_add_u32 s51, s51, s6")
    k("s_lshr_b32 s6, s18, 1")
    k("s_lshl_b32 s6, s6, 8")
    k("s_add_u32 s51, s51, s6")
    k("s_and_b32 s6, s18, 1")
    k("s_lshl_b32 s6, s6, 3")
    k("s_add_u32 s51, s51, s6")
    k("s_lshl_b32 s6, s21, 2")
    k("s_add_u32 s6, s6, s47")
    k("s_mul_i32 s33, s6, 27648")
    k("s_lshl_b32 s7, s18, 10")
    k("s_add_u32 s33, s33, s7")
    k("s_add_u32 s34, s33, 9216")
    k("s_add_u32 s35, s33, 18432")
    k("s_lshl_b32 s58, s48, 4")
    k("s_lshl_b32 s7, s49, 2")
    k("s_add_u32 s58, s58, s7")
    k("s_add_u32 s58, s58, s47")
    k("s_lshl_b32 s58, s58, 7")
    k("s_add_u32 s58, s58, s59")
    k(f"s_add_u32 s58, s58, {F_DN*FLG_SET}")
    k("v_add_u32 v7, 4096, v1")
    k("v_add_u32 v8, 8192, v1")
    k("v_mov_b32 v20, 0")
    k("v_mov_b32 v21, 0")
    k("v_mov_b32 v22, 0xffff0000")
    k("v_mov_b32 v23, 0x3f803f80")
    k("s_waitcnt lgkmcnt(0)")
    wait_flags(k, 46, 4, "dx")
    k.add(k.stamp(1)) if os.environ.get("FH") else None
    def ld(bi):
        for p in range(3): k(f"buffer_load_dwordx4 {v4(PT + 12*bi + 4*p)}, v{(1, 7, 8)[bi]}, s[8:11], s{33+p} offen {SC}")
    U = 64
    def fin(bi):
        X = OW + 8 * bi; Y = X + 4
        for p in range(3):
            r = PT + 12 * bi + 4 * p
            for q in range(4):
                k(f"v_lshlrev_b32 v{U+2*q}, 16, v{r+q}")
                k(f"v_and_b32 v{U+2*q+1}, v22, v{r+q}")
            for q in range(4): k(f"v_pk_add_f32 {v2(X+2*q)}, {v2(X+2*q)}, {v2(U+2*q)}")
        for q in range(4):
            k(f"v_lshlrev_b32 v{U+2*q}, 16, v{RES+4*bi+q}")
            k(f"v_and_b32 v{U+2*q+1}, v22, v{RES+4*bi+q}")
        for i in range(4): k(f"v_permlane16_swap_b32 v{X+i}, v{Y+i}")
        for q in range(4): k(f"v_pk_add_f32 {v2(X+2*q)}, {v2(X+2*q)}, {v2(U+2*q)}")
        pk = 72 + 4 * bi
        for q in range(4): k(f"v_cvt_pk_bf16_f32 v{pk+q}, v{X+2*q}, v{X+2*q+1}")
        k(f"buffer_store_dwordx4 {v4(pk)}, v17, s[36:39], s{(16, 17, 19)[bi]} offen {SC}")
        for q in range(4):
            k(f"v_dot2c_f32_bf16 v20, v{pk+q}, v23")
            k(f"v_dot2c_f32_bf16 v21, v{pk+q}, v{pk+q}")
    k("s_cmp_lg_u32 s18, 0")
    k(f"s_cbranch_scc1 {N}_l2")
    ld(2)
    k(f"{N}_l2:")
    ld(0); ld(1)
    k("s_cmp_lg_u32 s18, 0")
    k(f"s_cbranch_scc1 {N}_f2")
    k("s_waitcnt vmcnt(6)")
    fin(2)
    k(f"{N}_f2:")
    k("s_waitcnt vmcnt(3)")
    fin(0)
    k("s_waitcnt vmcnt(1)")
    fin(1)
    k("v_mov_b32 v24, v20")
    k("v_mov_b32 v25, v21")
    k("v_permlane32_swap_b32 v20, v24")
    k("v_permlane32_swap_b32 v21, v25")
    k("v_add_f32 v20, v20, v24")
    k("v_add_f32 v21, v21, v25")
    k("s_mov_b32 exec_hi, 0")
    k(f"buffer_store_dwordx2 v[20:21], v18, s[40:43], s51 offen {SC}")
    k("s_mov_b32 exec_hi, -1")
```

```python
from asmgen import *
from layout import *
from k_prep import srd, xreduce
from k_qkv import f2u, QSCALE
from m_pack import trbase
SC = "sc1"
SLOT = 34816; NS = 3; LDS_ST = NS * SLOT
def v4(r): return f"v[{r}:{r+3}]"
for _e in range(1152): assert (_e * 3641) >> 16 == _e // 18

def emit(k):
    N = "q0"
    W = (32, 68); XF = 104; ACC = 120; AS = 192; AM = 228; AG = 236; ONE = 244
    k(f"{N}_tile:")
    k("s_and_b32 s9, s9, 0xffff"); k(f"s_mov_b32 s10, {XSZ}"); k("s_mov_b32 s11, 0x20000")
    k("s_and_b32 s13, s13, 0xffff"); k(f"s_mov_b32 s14, {WQKV_SZ}"); k("s_mov_b32 s15, 0x20000")
    import os
    if "x" in os.environ.get("Q0Z", ""): k("s_mov_b32 s10, 0")
    if "w" in os.environ.get("Q0Z", ""): k("s_mov_b32 s14, 0")
    k("s_lshl_b32 s19, s16, 3")
    k("s_lshl_b32 s6, s18, 1")
    k("s_add_u32 s19, s19, s6")
    k("s_mul_i32 s34, s19, 18432")
    k("s_mul_i32 s35, s17, 288")
    k("s_lshl_b32 s38, s18, 12")
    k("s_lshl_b32 s39, s18, 9")
    k("s_add_u32 s39, s39, 32768")
    k("v_lshrrev_b32 v6, 3, v254")
    k("v_and_b32 v7, 7, v254")
    k("v_xor_b32 v7, v7, v6")
    k("v_mul_u32_u24 v2, 1152, v6")
    k("v_lshl_add_u32 v2, v7, 4, v2")
    for i in range(1, 4): k(f"v_add_u32 v{2+i}, {8192*i}, v2")
    k("s_mov_b32 s36, 0")
    for g in range(2):
        k(f"s_add_u32 m0, s38, {g*SLOT}")
        for i in range(4):
            k(f"buffer_load_dwordx4 v{2+i}, s[8:11], s34 offen offset:{1024*i} lds")
        k("s_add_u32 s34, s34, 128")
    for j in range(5):
        d = 9 + j
        if j < 4:
            k(f"s_lshl_b32 s6, s18, 8"); k(f"s_add_u32 s6, s6, {64*j}"); k("v_add_u32 v6, s6, v254")
        else:
            k(f"s_lshl_b32 s6, s18, 5"); k("s_add_u32 s6, s6, 1024"); k("v_and_b32 v6, 31, v254"); k("v_add_u32 v6, s6, v6")
        k("v_mul_u32_u24 v7, 3641, v6")
        k("v_lshrrev_b32 v7, 16, v7")
        k("v_mul_u32_u24 v8, 18, v7")
        k("v_sub_u32 v6, v6, v8")
        k("v_and_b32 v8, 0xfffffff3, v7")
        k(f"v_bfe_u32 v{d}, v7, 2, 1")
        k(f"v_lshl_add_u32 v8, v{d}, 3, v8")
        k(f"v_bfe_u32 v{d}, v7, 3, 1")
        k(f"v_lshl_add_u32 v8, v{d}, 2, v8")
        k("v_mul_u32_u24 v8, 3456, v8")
        k(f"v_lshl_add_u32 v{d}, v6, 4, v8")
        if 0 < j < 4: k(f"v_subrev_u32 v{d}, {1024*j}, v{d}")
    def group():
        L = [["s_add_u32 m0, s36, s38", "s_nop 0", "buffer_load_dwordx4 v2, s[8:11], s34 offen lds"]]
        for i in range(1, 4): L.append([f"buffer_load_dwordx4 v{2+i}, s[8:11], s34 offen offset:{1024*i} lds"])
        L.append(["s_add_u32 m0, m0, 16384", "s_add_u32 s34, s34, 128", "buffer_load_dwordx4 v9, s[12:15], s35 offen lds"])
        for j in range(1, 4): L.append([f"buffer_load_dwordx4 v{9+j}, s[12:15], s35 offen offset:{1024*j} lds"])
        L.append(["s_add_u32 m0, s36, s39", "s_mov_b32 exec_hi, 0", "buffer_load_dwordx4 v13, s[12:15], s35 offen lds", "s_mov_b32 exec_hi, -1",
                  f"s_add_u32 s35, s35, {64*3456}", f"s_add_u32 s36, s36, {SLOT}", f"s_cmp_eq_u32 s36, {NS*SLOT}", "s_cselect_b32 s36, 0, s36"])
        return L
    for g in range(2):
        k("s_add_u32 m0, s36, s38")
        k("s_sub_u32 s34, s34, 128")
        for b in group()[4:]: k.add(b)
    k("v_and_b32 v7, 15, v254")
    k("v_lshrrev_b32 v8, 4, v254")
    k("v_and_b32 v6, 7, v7")
    k("v_xor_b32 v6, v6, v8")
    k("v_lshlrev_b32 v14, 7, v7")
    k("v_lshl_add_u32 v14, v6, 4, v14")
    k("v_add_u32 v14, s38, v14")
    k("v_xor_b32 v15, 64, v14")
    trbase(k, 18, 6)
    k("v_mul_u32_u24 v17, 288, v18")
    k("v_add_u32 v17, 16384, v17")
    k("v_lshl_add_u32 v16, v19, 3, v17")
    k("v_mul_u32_u24 v6, 72, v19")
    k("v_add_u32 v208, v17, v6")
    k("s_lshl_b32 s40, s16, 2")
    k("s_add_u32 s40, s40, s18")
    k("s_mul_i32 s6, s17, 18")
    k("s_add_u32 s6, s6, s40")
    k("s_mul_i32 s6, s6, 9216")
    k("s_mul_i32 s7, s17, 589824")
    for p in range(4):
        k(f"s_add_u32 s3, s18, {p}")
        k("s_and_b32 s3, s3, 3")
        k(f"s_lshl_b32 s{20+p}, s3, 7")
        k(f"s_lshl_b32 s{41+p}, s3, 11")
        k(f"s_add_u32 s{41+p}, s{41+p}, s6")
        k(f"s_lshl_b32 s{49+p}, s3, 17")
        k(f"s_add_u32 s{49+p}, s{49+p}, s7")
        k(f"s_add_u32 s{60+p}, s{49+p}, 65536")
        k("s_mul_i32 s3, s3, 72")
        k(f"v_add_u32 v{204+p}, s3, v16")
    k("s_add_u32 s45, s6, 8192")
    k("s_add_u32 s53, s7, 524288")
    for r in list(range(ACC, AS + 12)) + list(range(AM, ONE)): k(f"v_mov_b32 v{r}, 0")
    for i in range(4): k(f"v_mov_b32 v{ONE+i}, 0x3f803f80")
    srd(k, 24, 100, QKV, 3 * XSZ)
    srd(k, 28, 4, WQKV, WQKV_SZ + 0)
    k("s_cmp_lt_u32 s17, 4")
    k(f"s_cselect_b32 s46, {f2u(QSCALE)}, 1.0")
    k("s_lshl_b32 s47, s18, 8")
    k(f"s_add_u32 s47, s47, {LDS_ST}")
    k("s_lshl_b32 s48, s19, 9")
    k("s_lshl_b32 s58, s17, 4")
    k("s_add_u32 s58, s58, s16")
    k("s_lshl_b32 s58, s58, 7")
    k("s_mov_b32 s37, 0")
    k("s_mov_b32 s33, 0")
    import os
    if os.environ.get("FQ"): k.add(k.stamp(8))
    k("s_waitcnt vmcnt(5) lgkmcnt(0)")
    if os.environ.get("FQ"): k.add(k.stamp(9))
    TAB = LDS_ST + 1024
    def v2(r): return f"v[{r}:{r+1}]"
    k("s_cmp_ge_u32 s17, 8")
    k(f"s_cbranch_scc1 {N}_v")
    for path in ("qk", "v"):
        k.path = N + path; L = f"{N}_{path}"
        if path == "v": k(f"{N}_v:")
        AD = (209, 215)
        def addrs(s, first=False):
            src = [14 + s, 204, 205, 206, 207, 208]
            return [f"v_mov_b32 v{AD[s]+i}, v{r}" if first else f"v_add_u32 v{AD[s]+i}, s37, v{r}" for i, r in enumerate(src)]
        def reads(s):
            R = [(f"ds_read_b128 {v4(XF+8*s+4*j)}, v{AD[s]} offset:{2048*j}", f"{L}x{s}") for j in range(2)]
            for b in range(9):
                r = W[s] + 4 * b
                va, off = (AD[s] + 1 + b // 2, 40 * (b & 1)) if b < 8 else (AD[s] + 5, 32)
                R.append((f"ds_read_b64_tr_b16 v[{r}:{r+1}], v{va} offset:{off + s*32*288}", f"{L}w{s}_{b}"))
                R.append((f"ds_read_b64_tr_b16 v[{r+2}:{r+3}], v{va} offset:{off + s*32*288 + 8*288}", f"{L}w{s}_{b}"))
            return R
        NP = 10
        k("s_barrier")
        k.add(addrs(0, True))
        k.add(reads(0)[:NP])
        k(f"{L}_loop:")
        k("s_cmp_ge_u32 s33, 14")
        k("s_cselect_b32 s10, 0, s10")
        k("s_cselect_b32 s14, 0, s14")
        dm = group()
        for s in range(2):
            mine = reads(s)[NP:]; nxt = reads(1 - s)[:NP]; ad = addrs(1 - s)
            x = [v4(XF + 8 * s + 4 * j) for j in range(2)]
            mf = []
            for j in range(2):
                mf.append((None if j else f"{L}x{s}", f"v_mfma_f32_16x16x32_bf16 {v4(AM+4*j)}, {v4(ONE)}, {x[j]}, {v4(AM+4*j)}"))
                mf.append((None, f"v_mfma_f32_16x16x32_bf16 {v4(AG+4*j)}, {x[j]}, {x[j]}, {v4(AG+4*j)}"))
            for b in range(9):
                w = v4(W[s] + 4 * b)
                ops = [(x[0], ACC + 4 * b), (x[1], ACC + 36 + 4 * b)]
                if b in (0, 1, 8): ops.append((v4(ONE), AS + 4 * min(b, 2)))
                for n, (o, a) in enumerate(ops):
                    ins = f"v_mfma_f32_16x16x32_bf16 {v4(a)}, {w}, {o}, {v4(a)}" if path == "qk" else f"v_mfma_f32_16x16x32_bf16 {v4(a)}, {o}, {w}, {v4(a)}"
                    mf.append((None if n else f"{L}w{s}_{b}", ins))
            for i, (tag, ins) in enumerate(mf):
                if tag: k(f"WAITLG {tag}")
                k(ins)
                if (25 * s + i) % 11 in (2, 7): k.add(dm.pop(0))
                elif mine: k.add([mine.pop(0) for _ in range(1 if i < 4 else min(2, len(mine)))])
                elif ad and i < 13:
                    if s == 1 and len(ad) == 6:
                        k(f"s_add_u32 s37, s37, {SLOT}"); k(f"s_cmp_eq_u32 s37, {NS*SLOT}"); k("s_cselect_b32 s37, 0, s37")
                    k.add([ad.pop(0) for _ in range(2)])
                elif s == 1 and i == 13:
                    k(f"s_waitcnt vmcnt({9 - len(dm)}) lgkmcnt(0)")
                    k("s_barrier")
                elif i >= 14 and nxt: k.add([nxt.pop(0) for _ in range(min(len(nxt), 1 + (i % 2 == 0)))])
            assert not nxt and not mine and not ad and (s == 0 or not dm), (len(nxt), len(mine), len(ad), len(dm))
            k("s_cmp_lg_u32 s33, s40")
            k(f"s_cbranch_scc1 {L}_ns{s}")
            for b in range(9):
                k(f"buffer_store_dwordx4 {v4(W[s]+4*b)}, v1, s[28:31], s{41 + b//2} offen offset:{(b & 1)*1024} {SC}")
            k(f"{L}_ns{s}:")
            k("s_add_u32 s33, s33, 1")
        k("s_cmp_lt_u32 s33, 18")
        k(f"s_cbranch_scc1 {L}_loop")
        k.add(k.stamp(1))
        SV = 68
        if path == "qk": k("v_lshlrev_b32 v10, 4, v8")
        else: k("v_lshlrev_b32 v10, 2, v7")
        k(f"v_add_u32 v10, {TAB}, v10")
        for p in range(4): k(f"v_add_u32 v{204+p}, s{20+p}, v10")
        k("v_and_b32 v6, 3, v7")
        k("v_lshrrev_b32 v9, 2, v7")
        k("s_waitcnt lgkmcnt(0)")
        for i, (va, off) in enumerate(((204, 0), (204, 64), (10, 512))):
            if path == "qk": k(f"ds_write_b128 v{va}, {v4(AS+4*i)} offset:{off}")
            else: k(f"ds_write_b32 v{va}, v{AS+4*i} offset:{off}")
        for i in range(1, 4):
            k(f"v_cmp_eq_u32 vcc, {i}, v6")
            for j in range(2): k(f"v_cndmask_b32 v{AG+4*j}, v{AG+4*j}, v{AG+4*j+i}, vcc")
        k("v_cmp_eq_u32 vcc, v9, v8")
        for j in range(2): k(f"v_cndmask_b32 v{AG+4*j}, 0, v{AG+4*j}, vcc")
        k("s_waitcnt lgkmcnt(0)")
        k("s_barrier")
        for b in range(9):
            va, off = (204 + b // 2, 64 * (b & 1)) if b < 8 else (10, 512)
            if path == "qk": k(f"ds_read_b128 {v4(SV+4*b)}, v{va} offset:{off}")
            else: k(f"ds_read_b32 v{SV+2*b}, v{va} offset:{off}")
        xreduce(k, [AG, AG + 4], [AG + 1, AG + 5])
        for op in range(7):
            for j in range(2):
                m, g = AM + 4 * j, AG + 4 * j
                k([f"v_mul_f32 v{m}, {f2u(1/576)}, v{m}", f"v_mul_f32 v{g}, {f2u(1/576)}, v{g}", f"v_fma_f32 v{g}, -v{m}, v{m}, v{g}",
                   f"v_max_f32 v{g}, 0, v{g}", f"v_add_f32 v{g}, {f2u(1e-5)}, v{g}", f"v_rsq_f32 v{13+2*j}, v{g}", f"v_sub_f32 v{12+2*j}, 0, v{m}"][op])
        R0 = 104; PR = 32
        if path == "qk":
            k("v_mul_f32 v13, s46, v13")
            k("v_mul_f32 v15, s46, v15")
            k("v_and_b32 v18, 1, v8")
            k("v_lshlrev_b32 v18, 9, v18")
            k("v_lshrrev_b32 v19, 1, v8")
            k("v_lshl_add_u32 v18, v19, 8, v18")
            k("v_lshl_add_u32 v18, v7, 4, v18")
            k("v_add_u32 v18, s48, v18")
        else:
            k("v_lshl_add_u32 v11, v7, 2, s47")
            k("s_waitcnt lgkmcnt(0)")
            for q in range(4): k(f"ds_write_b32 v11, v{12+q} offset:{64*q}")
            k("v_lshl_add_u32 v11, v8, 4, s47")
            for q in range(4): k(f"ds_read_b128 {v4(R0+4*q)}, v11 offset:{64*q}")
            k("v_add_u32 v18, s48, v1")
        k("s_waitcnt lgkmcnt(0)")
        for b in range(9):
            P = PR + 4 * b
            for j in range(2):
                a = ACC + 36 * j + 4 * b
                for i in (0, 2):
                    if path == "qk": k(f"v_pk_fma_f32 {v2(a+i)}, {v2(12+2*j)}, {v2(SV+4*b+i)}, {v2(a+i)} op_sel_hi:[0,1,1]")
                    else: k(f"v_pk_fma_f32 {v2(a+i)}, {v2(R0+8*j+i)}, {v2(SV+2*b)}, {v2(a+i)} op_sel_hi:[1,0,1]")
                for i in (0, 2):
                    if path == "qk": k(f"v_pk_mul_f32 {v2(a+i)}, {v2(a+i)}, {v2(12+2*j)} op_sel:[0,1] op_sel_hi:[1,1]")
                    else: k(f"v_pk_mul_f32 {v2(a+i)}, {v2(a+i)}, {v2(R0+8*j+4+i)}")
                k(f"v_cvt_pk_bf16_f32 v{P+2*j}, v{a}, v{a+1}")
                k(f"v_cvt_pk_bf16_f32 v{P+2*j+1}, v{a+2}, v{a+3}")
            def fin(b):
                P = PR + 4 * b
                if path == "qk":
                    k(f"v_permlane16_swap_b32 v{P}, v{P+2}")
                    k(f"v_permlane16_swap_b32 v{P+1}, v{P+3}")
                k(f"buffer_store_dwordx4 {v4(P)}, v18, s[24:27], s{53 if b == 8 else (60 if b & 1 else 49) + b // 2} offen {SC}")
            if b: fin(b - 1)
        fin(8)
        if path == "qk": k(f"s_branch {N}_cs")
    k.path = None
    k(f"{N}_cs:")
    k("s_cmp_lg_u32 s40, 63")
    k("s_cbranch_scc1 at_main")
    srd(k, 28, 4, SQKV, SQKV_SZ)
    k("s_mul_i32 s41, s17, 576")
    k("v_min_u32 v6, 35, v254")
    k("v_lshlrev_b32 v6, 4, v6")
    k(f"v_add_u32 v9, {TAB}, v6")
    k(f"ds_read_b128 {v4(96)}, v9")
    k("s_waitcnt lgkmcnt(0)")
    k(f"buffer_store_dwordx4 {v4(96)}, v6, s[28:31], s41 offen {SC}")
    k("s_branch at_main")
```

```python
from asmgen import *
from layout import *
from k_prep import srd, entry, xreduce
from k_qkv import load_stats, finish_stats, f2u, QSCALE
import k_gemmk as G
import k_ffn1 as F1
import m_attn as AT
import m_pack as PK
import m_qkv0 as Q0
import m_ffn as FF
from k_prep import code_prefetch
import math, os

GRID = 256
INPACK = True
KNAME = 'interleave_layers__sliding_block__swiglu_ffn__prompt_kernel'
SC = "sc1"
LDS = 39 * 4096 + 1024 + 576
SPIN = 150000
SLEEP = int(os.environ.get('SLEEP', '0'))
def v4(r): return f"v[{r}:{r+3}]"
def a4(r): return f"a[{r}:{r+3}]"

def make_tag(k):
    k("s_waitcnt lgkmcnt(0)")
    k("s_mul_i32 s3, s93, 0x9E3779B1")
    k("s_add_u32 s3, s3, 0x7F4A7C15")
    k("v_mov_b32 v253, s3")

def signal(k, so, nvm, lab):
    k(f"s_waitcnt vmcnt({nvm})")
    k("s_barrier")
    k("s_cmp_lg_u32 s18, 0")
    k(f"s_cbranch_scc1 {lab}_sg")
    k("s_mov_b64 exec, 1")
    k(f"buffer_store_dword v253, v252, s[96:99], s{so} offen {SC}")
    k("s_mov_b64 exec, -1")
    k(f"{lab}_sg:")

def wait_flags(k, so, n, lab, skip_if=None, keep=0):
    k("s_cmp_lg_u32 s18, 0")
    k(f"s_cbranch_scc1 {lab}_wn")
    if skip_if:
        k(f"s_cmp_eq_u32 {skip_if}, 0")
        k(f"s_cbranch_scc1 {lab}_wn")
    if n:
        k(f"v_min_u32 v255, {n-1}, v254")
        k("v_lshlrev_b32 v255, 7, v255")
    k(f"s_mov_b32 s3, {SPIN}")
    ld = lambda r: k(f"buffer_load_dword v{r}, v255, s[96:99], s{so} offen {SC}")
    ld(249); k("s_sleep 2"); ld(250); k("s_sleep 2")
    k(f"{lab}_wl:")
    for r, nx in ((249, 251), (250, 249), (251, 250)):
        ld(nx)
        k("s_waitcnt vmcnt(2)")
        k(f"v_cmp_ne_u32 vcc, v253, v{r}")
        k("s_nop 1")
        k("s_cmp_eq_u64 vcc, 0")
        k(f"s_cbranch_scc1 {lab}_wd")
    k("s_sub_u32 s3, s3, 1")
    k("s_cmp_lg_u32 s3, 0")
    k(f"s_cbranch_scc1 {lab}_wl")
    k(f"{lab}_wn:")
    k(f"s_waitcnt vmcnt({keep})")
    k(f"{lab}_wd:")
    k("s_barrier")

def emit_gk(k):
    N = "gk"; WL = 77824; WB = 32; ACC = 104; RES = 128; U = 140; PK_ = 148
    def v2(r): return f"v[{r}:{r+1}]"
    k(f"{N}_main:")
    k("s_and_b32 s20, s2, 7")
    k("s_lshr_b32 s21, s2, 3")
    k("s_lshr_b32 s16, s20, 1")
    k("s_lshl_b32 s16, s16, 3")
    k("s_lshr_b32 s22, s21, 2")
    k("s_add_u32 s16, s16, s22")
    k("s_and_b32 s17, s20, 1")
    k("s_lshl_b32 s17, s17, 2")
    k("s_and_b32 s22, s21, 3")
    k("s_add_u32 s17, s17, s22")
    k(f"s_mul_i32 s22, s17, {9*9216}")
    k(f"s_add_u32 s22, s22, {WO - WL}")
    k("s_add_u32 s12, s4, s22"); k("s_addc_u32 s13, s5, 0"); k("s_and_b32 s13, s13, 0xffff"); k(f"s_mov_b32 s14, {WL + 9*9216}"); k("s_mov_b32 s15, 0x20000")
    k("s_lshl_b32 s23, s18, 10")
    def wp(i):
        k(f"s_add_u32 m0, s23, {WL + i*4096}")
        k("buffer_load_dwordx4 v1, s[12:15], m0 offen lds")
    def resid():
        k(f"buffer_load_dwordx4 {v4(RES)}, v16, s[24:27], s33 offen {SC}")
        k(f"buffer_load_dwordx4 {v4(RES+4)}, v16, s[24:27], s48 offen {SC}")
        k(f"buffer_load_dwordx4 {v4(RES+8)}, v17, s[24:27], s49 offen {SC}")
    for i in range(9): wp(i)
    signal(k, 58, 9, "gk")
    for i in range(9, 20): wp(i)
    k("s_cmp_lg_u32 s18, 0")
    k(f"s_cbranch_scc1 {N}_w20")
    wp(20)
    k(f"{N}_w20:")
    k("s_cmp_eq_u32 s54, 0")
    k("s_cselect_b32 s24, s94, s100"); k("s_cselect_b32 s25, s95, s101")
    assert XIN == 0
    k("s_cselect_b32 s46, 16, 256")
    k("s_cselect_b32 s47, 1152, 16")
    k("s_and_b32 s25, s25, 0xffff"); k(f"s_mov_b32 s26, {XSZ}"); k("s_mov_b32 s27, 0x20000")
    k("v_and_b32 v10, 15, v254")
    k("v_bfe_u32 v12, v254, 4, 1")
    k("v_lshrrev_b32 v13, 5, v254")
    k("v_lshl_add_u32 v12, v12, 1, v13")
    k("v_mul_lo_u32 v17, v10, s47")
    k("v_mul_lo_u32 v16, v12, s46")
    k("v_add_u32 v16, v16, v17")
    k("s_lshl_b32 s30, s16, 2")
    k("s_add_u32 s30, s30, s18")
    k("s_mul_i32 s31, s30, 18432")
    k("s_mul_i32 s32, s17, 9")
    k("s_mul_i32 s33, s32, s46")
    k("s_add_u32 s33, s33, s31")
    k("s_lshl_b32 s3, s46, 2")
    k("s_add_u32 s48, s33, s3")
    k("s_add_u32 s49, s48, s3")
    k("s_cmp_lg_u32 s54, 0")
    k(f"s_cbranch_scc1 {N}_r0")
    resid()
    k(f"{N}_r0:")
    srd(k, 8, 100, OO, XSZ)
    srd(k, 36, 100, X1, XSZ)
    srd(k, 40, 100, ST1, STSZ)
    k("v_add_u32 v2, s31, v1")
    k(f"v_add_u32 v3, {WL}, v1")
    k(f"v_add_u32 v4, {WL + 65536}, v1")
    for i in range(1, 5): k(f"s_mov_b32 s{59+i}, {4096*i}")
    k("v_lshlrev_b32 v18, 4, v10")
    k("v_lshl_add_u32 v9, v12, 8, v18")
    k("s_lshl_b32 s44, s32, 8")
    k("s_add_u32 s44, s44, s31")
    k("s_lshl_b32 s51, s30, 10")
    k("s_lshr_b32 s20, s17, 1")
    k("s_lshl_b32 s20, s20, 8")
    k("s_add_u32 s51, s51, s20")
    k("s_and_b32 s20, s17, 1")
    k("s_lshl_b32 s20, s20, 3")
    k("s_add_u32 s51, s51, s20")
    k("v_mov_b32 v20, 0")
    k("v_mov_b32 v21, 0")
    k("v_mov_b32 v22, 0xffff0000")
    k("v_mov_b32 v23, 0x3f803f80")
    k("s_lshr_b32 s45, s16, 2")
    k("s_lshl_b32 s45, s45, 12")
    k("s_add_u32 s45, s45, s59")
    k(f"s_add_u32 s45, s45, {F_ATT*FLG_SET}")
    k("s_lshl_b32 s58, s16, 3")
    k("s_add_u32 s58, s58, s17")
    k("s_lshl_b32 s58, s58, 7")
    k("s_add_u32 s58, s58, s59")
    k(f"s_add_u32 s58, s58, {F_WO*FLG_SET}")
    wait_flags(k, 45, 32, "gk")
    k.add(k.stamp(7))
    k("s_cmp_eq_u32 s54, 0")
    k(f"s_cbranch_scc1 {N}_r1")
    resid()
    k(f"{N}_r1:")
    def ol(ks): return (f"buffer_load_dwordx4 {a4(4*ks)}, v2, s[8:11], {'0' if ks < 4 else f's{59 + ks//4}'} offen offset:{(ks % 4)*1024} {SC}", f"o{ks}")
    NO = 11
    k.add([ol(ks) for ks in range(NO)])
    def rd(p, f):
        off = p * 9216 + f * 1024
        return (f"ds_read_b128 {v4(WB + 36*(p % 2) + 4*f)}, v{3 if off < 65536 else 4} offset:{off % 65536}", f"gw{p}_{f}")
    order = [0, 1, 2, 3, 8, 4, 5, 6, 7]
    k.add([rd(0, f) for f in order])
    k("s_cmp_lg_u32 s54, 0")
    k(f"s_cbranch_scc1 {N}_nopk2")
    k.path = "pkflag"
    k("s_lshl_b32 s3, s2, 7")
    k(f"s_add_u32 s3, s3, {F_PK*FLG_SET}")
    k("s_mov_b64 exec, 1")
    k(f"buffer_store_dword v253, v252, s[96:99], s3 offen {SC}")
    k("s_mov_b64 exec, -1")
    k.path = None
    k(f"{N}_nopk2:")
    k("WAITLG gw0_8")
    k("WAITVM o0")
    mf = []; fixed = {}
    def fx(i, x): fixed.setdefault(i, []).extend(x if isinstance(x, list) else [x])
    for p in range(9):
        for ks in range(2):
            K = 2 * p + ks; i0 = len(mf)
            if K: fx(i0 - 1, [f"WAITVM o{K}", f"WAITLG gw{p}_{7 if ks else 8}"])
            if K + NO < 18: fx(i0 + 4, ol(K + NO))
            for b in range(5):
                f = 4 * ks + b if b < 4 else 8; a = ACC + 4 * (b if b < 4 else 4 + ks)
                mf.append(f"v_mfma_f32_16x16x32_bf16 {v4(a)}, {v4(WB + 36*(p % 2) + 4*f)}, {a4(4*K)}, {'0' if p == 0 and (ks == 0 or b == 4) else v4(a)}")
        if p < 8:
            g = [len(mf) - 10 + x for x in (0, 1, 2, 3, 5, 6, 7, 8, 9)]
            for gg, f in zip(g, order): fx(gg, rd(p + 1, f))
    pack(k, mf, fixed, [])
    def finish(x, y, res, pk, va, so):
        for q in range(4):
            r = (x, x + 2, y, y + 2)[q]
            k(f"v_pk_add_f32 {v2(r)}, {v2(r)}, {v2(U + 8*res + 2*q)}")
        for q in range(4):
            r = (x, x + 2, y, y + 2)[q]
            k(f"v_cvt_pk_bf16_f32 v{pk+q}, v{r}, v{r+1}")
        k(f"buffer_store_dwordx4 {v4(pk)}, v{va}, s[36:39], s44 offen offset:{so} {SC}")
    U = 140; PKR = 164
    for q in range(12):
        k(f"v_lshlrev_b32 v{U+2*q}, 16, v{RES+q}")
        k(f"v_and_b32 v{U+2*q+1}, v22, v{RES+q}")
    for pr in range(2):
        x, y = ACC + 8 * pr, ACC + 8 * pr + 4
        for i in range(4): k(f"v_permlane16_swap_b32 v{x+i}, v{y+i}")
        finish(x, y, pr, PKR + 4 * pr, 9, 1024 * pr)
    Z = ACC + 16; T = WB
    for i in range(4): k(f"v_mov_b32 v{T+i}, v{Z+i}")
    for i in range(4): k(f"v_permlane32_swap_b32 v{Z+4+i}, v{T+i}")
    for i in (0, 2): k(f"v_pk_add_f32 {v2(Z+i)}, {v2(Z+i)}, {v2(T+i)}")
    for i in range(4): k(f"v_mov_b32 v{Z+4+i}, v{Z+i}")
    for i in range(4): k(f"v_permlane16_swap_b32 v{Z+i}, v{Z+4+i}")
    k("s_mov_b64 exec, 0xffff")
    finish(Z, Z + 4, 2, PKR + 8, 18, 2048)
    for q in range(8, 12):
        k(f"v_dot2c_f32_bf16 v20, v{PKR+q}, v23")
        k(f"v_dot2c_f32_bf16 v21, v{PKR+q}, v{PKR+q}")
    k("s_mov_b64 exec, -1")
    for q in range(8):
        k(f"v_dot2c_f32_bf16 v20, v{PKR+q}, v23")
        k(f"v_dot2c_f32_bf16 v21, v{PKR+q}, v{PKR+q}")
    xreduce(k, [20, 21], [24, 25])
    k("s_mov_b64 exec, 0xffff")
    k(f"buffer_store_dwordx2 v[20:21], v18, s[40:43], s51 offen {SC}")
    k("s_mov_b64 exec, -1")

def emit_qkv(k):
    N = "q2"; LDS_ST = 39 * 4096; LDS_S = LDS_ST + 1024
    k(f"{N}_main:")
    k("s_and_b32 s6, s2, 7")
    k("s_lshr_b32 s7, s2, 3")
    k("s_mul_i32 s16, s7, 43")
    k("s_lshr_b32 s16, s16, 8")
    k("s_mul_i32 s17, s16, 6")
    k("s_sub_u32 s17, s7, s17")
    k("s_lshr_b32 s7, s6, 1")
    k("s_lshl_b32 s7, s7, 2")
    k("s_add_u32 s16, s16, s7")
    k("s_and_b32 s6, s6, 1")
    k("s_mul_i32 s6, s6, 6")
    k("s_add_u32 s17, s17, s6")
    k("s_cmp_eq_u32 s54, 0")
    k(f"s_cbranch_scc0 {N}_l1")
    k("s_cmp_lt_u32 s2, 192")
    k("s_cbranch_scc1 q0_tile")
    k("s_sub_u32 s6, s2, 192")
    k("s_lshr_b32 s6, s6, 3")
    k("s_lshl_b32 s6, s6, 2")
    k("s_add_u32 s6, s6, s18")
    if not os.environ.get("NORA"):
        k("s_sub_u32 s7, s2, 192")
        k("s_lshl_b32 s7, s7, 2")
        k("s_add_u32 s7, s7, s18")
        k("s_and_b32 s9, s9, 0xffff"); k(f"s_mov_b32 s10, {XSZ}"); k("s_mov_b32 s11, 0x20000")
        k("s_and_b32 s13, s13, 0xffff"); k(f"s_mov_b32 s14, {WQKV_SZ}"); k("s_mov_b32 s15, 0x20000")
        k("v_lshlrev_b32 v2, 15, v254")
        k("s_lshl_b32 s3, s7, 7")
        k(f"s_add_u32 s3, s3, {128*3456}")
        k("buffer_load_dword v245, v2, s[12:15], s3 offen")
        k("v_and_b32 v2, 7, v254")
        k("v_mul_u32_u24 v2, 1152, v2")
        k("v_lshrrev_b32 v3, 3, v254")
        k("v_min_u32 v3, 6, v3")
        k("v_lshl_add_u32 v2, v3, 7, v2")
        k("s_mul_i32 s3, s7, 9216")
        k("buffer_load_dword v239, v2, s[8:11], s3 offen offset:256")
    code_prefetch(k, "code_mega", "code_end", 32, 6, 254, 246, 20)
    make_tag(k)
    assert PK.NI1 >= 2
    PK.idle_jobs(k)
    k("s_branch at_main")
    Q0.emit(k)
    k(f"{N}_l1:")
    k("s_mul_i32 s6, s17, 165888")
    k(f"s_add_u32 s6, s6, {WQKV}")
    k("s_add_u32 s12, s4, s6"); k("s_addc_u32 s13, s5, 0"); k("s_and_b32 s13, s13, 0xffff"); k("s_mov_b32 s14, 165888"); k("s_mov_b32 s15, 0x20000")
    signal(k, 58, 0, "dn")
    if not os.environ.get("DBGOUT"): k.add(k.stamp(0))
    k("s_cmp_ge_u32 s2, 192")
    k("s_cbranch_scc1 at_main")
    QPRE = int(os.environ.get("QPRE", "27")); GLKS = int(os.environ.get("GLKS", "14"))
    k("s_lshl_b32 s38, s18, 10")
    def wpiece(i): return [f"s_add_u32 m0, s38, {i*4096}", "s_nop 0", ("buffer_load_dwordx4 v1, s[12:15], m0 offen lds", "qwl")]
    for i in range(QPRE): k.add(wpiece(i))
    k("s_lshl_b32 s19, s16, 3")
    k("s_lshl_b32 s6, s18, 1")
    k("s_add_u32 s19, s19, s6")
    k("s_mul_i32 s6, s19, 18432")
    k("v_add_u32 v2, s6, v1")
    k("v_add_u32 v3, 18432, v2")
    for i in range(1, 5): k(f"s_mov_b32 s{32+i}, {4096*i}")
    k(f"v_add_u32 v6, {17*9216}, v1")
    k("v_and_b32 v7, 15, v254")
    k("v_lshrrev_b32 v8, 4, v254")
    k("s_lshl_b32 s6, s19, 11")
    k("v_add_u32 v9, s6, v1")
    k("v_min_u32 v10, 35, v254")
    k("v_lshlrev_b32 v10, 4, v10")
    k("s_mul_i32 s42, s17, 576")
    srd(k, 8, 100, XIN, XSZ)
    srd(k, 20, 100, STIN, ST2SZ)
    srd(k, 28, 4, SQKV, SQKV_SZ)
    srd(k, 24, 100, QKVB, 3 * XSZ)
    k("v_add_u32 v16, 65536, v1")
    k("v_add_u32 v17, 131072, v1")
    k("s_cmp_lt_u32 s17, 4")
    k(f"s_cselect_b32 s46, {f2u(QSCALE)}, 1.0")
    k("s_lshl_b32 s47, s18, 8")
    k(f"s_add_u32 s47, s47, {LDS_ST}")
    k("s_mul_i32 s45, s17, 589824")
    k("s_lshl_b32 s48, s19, 9")
    k("s_lshl_b32 s49, s16, 11")
    k(f"s_add_u32 s49, s49, {F_DN*FLG_SET}")
    k("s_lshl_b32 s58, s17, 4")
    k("s_add_u32 s58, s58, s16")
    k("s_lshl_b32 s58, s58, 7")
    k("s_add_u32 s58, s58, s59")
    R0 = 176; CS = 184; W = (32, 68); ACC = 104; SV = 196; PR = 232; WL = 144
    def wlast(b):
        so = "0" if b < 4 else f"s{32 + b // 4}"
        return (f"buffer_load_dwordx4 {a4(WL+4*b)}, v6, s[12:15], {so} offen offset:{(b % 4) * 1024}", "qwlast")
    k(f"buffer_load_dwordx4 v[{CS}:{CS+3}], v10, s[28:31], s42 offen")
    wait_flags(k, 49, 16, N)
    k.add(k.stamp(1))
    def xfrag(ks, j): return 4 * (ks * 2 + j)
    def xl(ks):
        so = "0" if ks < 4 else f"s{32 + ks // 4}"
        return [(f"buffer_load_dwordx4 {a4(xfrag(ks, j))}, v{2+j}, s[8:11], {so} offen offset:{(ks % 4) * 1024} {SC}", f"qx{ks}") for j in range(2)]
    D = 5
    for ks in range(D): k.add(xl(ks))
    for j in range(2):
        for h in range(2):
            k(f"buffer_load_dwordx4 {v4(R0 + 4*j + 240*0 + (0 if h == 0 else 64))}, v9, s[20:23], 0 offen offset:{j*2048 + h*1024} {SC}", "qst")
    k("s_cmp_ge_u32 s17, 8")
    k(f"s_cbranch_scc1 {N}_v")
    for path in ("qk", "v"):
        k.path = path
        if path == "v": k(f"{N}_v:")
        kf = Kern()
        kf(f"v_add_u32 v10, {LDS_S}, v10")
        kf(f"ds_write_b128 v10, v[{CS}:{CS+3}]")
        kf("WAITVM qst")
        for r in range(R0, R0 + 8): kf(f"v_add_f32 v{r}, v{r}, v{r+64}")
        finish_stats(kf, 2, R0)
        kf(f"v_rsq_f32 v13, v{R0+1}")
        kf(f"v_rsq_f32 v15, v{R0+5}")
        kf(f"v_sub_f32 v12, 0, v{R0}")
        kf(f"v_sub_f32 v14, 0, v{R0+4}")
        if path == "qk":
            kf("v_mul_f32 v13, s46, v13")
            kf("v_mul_f32 v15, s46, v15")
            kf(f"v_lshlrev_b32 v10, 4, v8")
            kf("v_and_b32 v18, 1, v8")
            kf("v_lshlrev_b32 v18, 9, v18")
            kf("v_lshrrev_b32 v19, 1, v8")
            kf("v_lshl_add_u32 v18, v19, 8, v18")
            kf("v_lshl_add_u32 v18, v7, 4, v18")
            kf("v_add_u32 v18, s48, v18")
        else:
            kf("v_lshl_add_u32 v11, v7, 3, s47")
            kf("ds_write_b64 v11, v[12:13]")
            kf("ds_write_b64 v11, v[14:15] offset:128")
            kf("v_lshl_add_u32 v11, v8, 5, s47")
            for j in range(2):
                for h in range(2):
                    kf(f"ds_read_b128 v[{R0+8*j+4*h}:{R0+8*j+4*h+3}], v11 offset:{j*128+h*16}", "qvs")
            kf(f"v_lshlrev_b32 v10, 2, v7")
            kf("v_add_u32 v18, s48, v1")
        kf(f"v_add_u32 v10, {LDS_S}, v10")
        def rd(ks, b):
            r = W[ks % 2] + 4 * b
            off = ks * 9216 + b * 1024
            va = 1 if off < 65536 else (16 if off < 131072 else 17)
            return (f"ds_read_b128 v[{r}:{r+3}], v{va} offset:{off % 65536}", f"qw{ks}_{b}")
        def mfma(ks, b, j):
            w = v4(W[ks % 2] + 4 * b) if ks < 17 else a4(WL + 4 * b)
            a = ACC + 4 * (j * 9 + b); x = xfrag(ks, j)
            c = "0" if ks == 0 else v4(a)
            if path == "qk": return f"v_mfma_f32_16x16x32_bf16 {v4(a)}, {w}, {a4(x)}, {c}"
            return f"v_mfma_f32_16x16x32_bf16 {v4(a)}, {a4(x)}, {w}, {c}"
        def epi(b):
            L = []; P = PR + 4 * (b % 2)
            for j in range(2):
                a = ACC + 4 * (j * 9 + b)
                if path == "qk":
                    for i in range(4): L.append(f"v_fma_f32 v{a+i}, v{12+2*j}, v{SV+4*b+i}, v{a+i}")
                    for i in range(4): L.append(f"v_mul_f32 v{a+i}, v{a+i}, v{13+2*j}")
                else:
                    for i in range(4): L.append(f"v_fma_f32 v{a+i}, v{R0+8*j+2*i}, v{SV+b}, v{a+i}")
                    for i in range(4): L.append(f"v_mul_f32 v{a+i}, v{a+i}, v{R0+8*j+2*i+1}")
                L.append(f"v_cvt_pk_bf16_f32 v{P+2*j}, v{a}, v{a+1}")
                L.append(f"v_cvt_pk_bf16_f32 v{P+2*j+1}, v{a+2}, v{a+3}")
            if path == "qk":
                L.append(f"v_permlane16_swap_b32 v{P}, v{P+2}")
                L.append(f"v_permlane16_swap_b32 v{P+1}, v{P+3}")
            L.append(f"buffer_store_dwordx4 v[{P}:{P+3}], v18, s[24:27], s45 offen {SC}")
            if b < 8: L.append("s_add_u32 s45, s45, 65536")
            return L
        for b in range(9): k.add([rd(0, b)])
        k("WAITLG qw0_2")
        k("WAITVM qx0")
        mf = []; fixed = {}
        def fx(i, x): fixed.setdefault(i, []).extend(x if isinstance(x, list) else [x])
        flow = [(x, 4 * 18) for x in kf.ins]
        for b in range(9):
            ins = (f"ds_read_b128 v[{SV+4*b}:{SV+4*b+3}], v10 offset:{b*64}", "sv") if path == "qk" else (f"ds_read_b32 v{SV+b}, v10 offset:{b*64}", "sv")
            flow.append((ins, 9 * 18 + 8 * b))
        for ks in range(16):
            i0 = len(mf)
            if ks > 0: fx(i0 - 2, f"WAITVM qx{ks}")
            ext = [[x] for x in xl(ks + D)] if ks + D < 18 else []
            rest = list(range(QPRE, 39)); per = -(-len(rest) // 5)
            if ks < 5: ext += [wpiece(i) for i in rest[ks * per:(ks + 1) * per]]
            if 7 <= ks < 10: ext += [[wlast(b)] for b in range(3 * (ks - 7), 3 * (ks - 6))]
            for n, x in enumerate(ext): fixed.setdefault(i0 + 1 + 2 * (n * 8 // len(ext)), []).append(Bundle(x))
            if ks == QPRE * 4 // 9 - 1:
                fx(i0 - 4, "WAITVM qwl"); fx(i0 - 3, "s_barrier")
            for b in range(9):
                i = len(mf)
                if b % 3 == 0 and i > 0: fx(i - 1, f"WAITLG qw{ks}_{b+2}")
                mf += [mfma(ks, b, 0), mfma(ks, b, 1)]
                fx(i, rd(ks + 1, b))
        fx(len(mf) - 2, "WAITVM qx17, qwlast")
        for b in range(9):
            i = len(mf)
            if b % 3 == 0: fx(i - 1, f"WAITLG qw16_{b+2}")
            mf += [mfma(16, b, 0), mfma(16, b, 1), mfma(17, b, 0), mfma(17, b, 1)]
            flow += [(x, i + 5) for x in epi(b)]
        left, over = pack(k, mf, fixed, flow)
        k.add(left)
        if path == "qk": k("s_branch at_main")
    k.path = None

def gen():
    k = Kern(); k.name = "mega"
    entry(k, KNAME)
    k("s_load_dwordx2 s[4:5], s[0:1], 72")
    k("s_load_dwordx4 s[8:11], s[0:1], 0")
    k("s_load_dwordx2 s[56:57], s[0:1], 56")
    k(f"s_cmp_ge_u32 s2, {GRID}")
    k("s_cbranch_scc1 mega_exit")
    k.add(k.stamp(0))
    k("v_lshrrev_b32 v8, 6, v0")
    k("v_and_b32 v254, 63, v0")
    k("v_readfirstlane_b32 s18, v8")
    k("v_lshlrev_b32 v1, 4, v254")
    k("v_mov_b32 v252, 0")
    k("s_mov_b32 s54, 0")
    k("s_mov_b32 s59, 0")
    k("s_waitcnt lgkmcnt(0)")
    if os.environ.get("WSOFF"):
        k(f"s_add_u32 s4, s4, {int(os.environ['WSOFF']) << 20}")
        k("s_addc_u32 s5, s5, 0")
    k(f"s_add_u32 s6, s4, {EPOCH}")
    k("s_addc_u32 s7, s5, 0")
    k("s_load_dword s93, s[6:7], 0")
    k("s_mov_b64 s[100:101], s[4:5]")
    k("s_mov_b64 s[94:95], s[8:9]")
    k("s_mov_b64 s[12:13], s[10:11]")
    srd(k, 96, 4, FLG, EPOCH + 4 - FLG)
    emit_qkv(k)
    def after_stage(k, part):
        if part == "tag": return make_tag(k)
        if part == "setup":
            k(f"s_add_u32 s50, s2, {PK.J_ATT}")
            k("s_cmp_lg_u32 s54, 0")
            k(f"s_cselect_b32 s50, {PK.J_END}, s50")
            k("s_waitcnt lgkmcnt(0)")
            PK.setup(k, "pa")
            return
        if part == 0:
            k("v_min_u32 v255, 8, v254")
            k("v_lshlrev_b32 v255, 7, v255")
            k(f"s_mov_b32 s35, {F_WOPK*FLG_SET}")
            k(f"buffer_load_dword v246, v255, s[96:99], s35 offen {SC}")
            k(f"s_cmp_ge_u32 s50, {PK.J_END}")
            k("s_cbranch_scc1 at_nojob")
            k.path = "job"
            PK.loads(k, "pa", 0)
            k("s_waitcnt vmcnt(15)")
            k("s_branch at_job")
            k.path = None
            k("at_nojob:")
            k("s_waitcnt vmcnt(6)")
            k("at_job:")
            return
        if isinstance(part, tuple):
            L = f"at_h{part[1]}"
            k("s_waitcnt vmcnt(9)")
            k(f"s_mov_b32 s3, {SPIN}")
            k(f"s_cmp_lt_u32 s50, {PK.J_END}")
            k(f"s_cbranch_scc1 {L}_chk")
            k(f"{L}_wl:")
            k("s_waitcnt vmcnt(0)")
            k(f"{L}_chk:")
            k("v_cmp_ne_u32 vcc, v253, v246")
            k("s_nop 1")
            k("s_cmp_eq_u64 vcc, 0")
            k(f"s_cbranch_scc1 {L}_wd")
            k(f"buffer_load_dword v246, v255, s[96:99], s35 offen {SC}")
            k("s_sub_u32 s3, s3, 1")
            k("s_cmp_lg_u32 s3, 0")
            k(f"s_cbranch_scc1 {L}_wl")
            k("s_waitcnt vmcnt(0)")
            k(f"{L}_wd:")
            k(f"s_cmp_ge_u32 s50, {PK.J_END}")
            k(f"s_cbranch_scc1 {L}_nj")
            PK.loads(k, L, 1)
            k(f"{L}_nj:")
            return
        k(f"s_cmp_ge_u32 s50, {PK.J_END}")
        k("s_cbranch_scc1 at_nojob4")
        k(f"s_mov_b32 s50, {PK.J_END}")
        k("s_waitcnt vmcnt(0) lgkmcnt(0)")
        PK.finish(k, "pa")
        k("at_nojob4:")
    if os.environ.get("STOP") == "q0":
        k("at_main:"); k("s_branch mega_end"); AT.PFX = "xx"
    redo = AT.emit(k, signal, wait_flags, SC, after_stage)
    emit_gk(k)
    slow = FF.emit(k, signal, wait_flags)
    k("s_cmp_eq_u32 s54, 0")
    k("s_cbranch_scc0 mega_fin")
    if os.environ.get("STOP") == "l1": k("s_branch mega_fin")
    k("s_mov_b32 s54, 1")
    if LSTRIDE:
        k(f"s_add_u32 s100, s100, {LSTRIDE}")
        k("s_addc_u32 s101, s101, 0")
    k(f"s_mov_b32 s59, {F_LAYER*FLG_SET}")
    k("s_branch q2_main")
    k.add(slow)
    redo(k)
    k("mega_fin:")
    k("s_or_b32 s3, s2, s18")
    k("s_cmp_lg_u32 s3, 0")
    k("s_cbranch_scc1 mega_end")
    k("s_add_u32 s3, s93, 1")
    k("v_mov_b32 v251, s3")
    k(f"s_mov_b32 s3, {EPOCH - FLG}")
    k("s_mov_b64 exec, 1")
    k(f"buffer_store_dword v251, v252, s[96:99], s3 offen {SC}")
    k("mega_end:")
    k.stamp_out()
    k("mega_exit:")
    k("s_endpgm")
    k.script = True
    return k, [(KNAME, GRID, 256, LDS)], descriptor(KNAME, 256, 256, 102), [KNAME]
```

```python
from asmgen import *
from layout import *
from k_prep import srd, xreduce

PFX = 'at'
REC = 3072
VR0 = 16 * REC
ONES = VR0 + 2048
LDS_END = ONES + 16
import os
LO, HI = ("0x2b800000", "0x53800000") if not os.environ.get("FORCE_REDO") else ("0x7f000000", "0x53800000")
NEG = "0xf149f2ca"
def v4(r): return f"v[{r}:{r+3}]"
def qi(p, q): return 2 * p + (q == "B")
def Q(p, q): return 16 + 4 * qi(p, q)
KF = (32, 36); VM = 40; VRF = 44
ORDER = [(p, q, tl) for tl in range(2) for p in range(2) for q in "AB"]
def S(t): return 48 + 4 * ORDER.index(t)
def E(t): return 80 + 4 * ORDER.index(t)
def P(p, q): return 112 + 4 * qi(p, q)
def OM(p, q): return 128 + 4 * qi(p, q)
def OR(p, q): return 144 + 4 * qi(p, q)
MO = 160; MD = 164
def NM(p, q): return 168 + 4 * qi(p, q)
def CF(p, q): return 184 + 4 * qi(p, q)
def CL(p, q): return 200 + 4 * qi(p, q)
def MX(p, q): return 216 + qi(p, q)

def present(kinds, t):
    kind = kinds[t[0]]
    return kind is not None and not ((kind == "first" and t[1:] == ("B", 0)) or (kind == "last" and t[1:] == ("A", 1)))

def smfma(k, kinds, t, ps):
    if not present(kinds, t): return
    p, q, tl = t; kind = kinds[p]
    masked = kind in ("first", "last") and (q, tl) in (("A", 0), ("B", 1))
    if ps == 1: c = v4(MO if kind == "first" else MD) if masked else "0"
    else: c = v4((CF if kind == "first" else CL)(p, q)) if masked else v4(NM(p, q))
    k(f"v_mfma_f32_16x16x32_bf16 {v4(S(t))}, {v4(KF[tl])}, {v4(Q(p, q))}, {c}")

def pv(k, n, prev):
    p, q = n >> 2, "AB"[(n >> 1) & 1]
    if prev[p] is None: return
    o, v = (OM(p, q), VM) if n % 2 == 0 else (OR(p, q), VRF)
    k(f"v_mfma_f32_16x16x32_bf16 {v4(o)}, {v4(v)}, {v4(P(p, q))}, {v4(o)}")

def prologue(k, kinds, ps, vhook=None):
    k(f"ds_read_b128 {v4(KF[0])}, v2")
    k(f"ds_read_b128 {v4(KF[1])}, v2 offset:1024")
    k("s_waitcnt lgkmcnt(0)")
    for t in ORDER: smfma(k, kinds, t, ps)
    k(f"ds_read_b128 {v4(KF[0])}, v2 offset:{REC}")
    k(f"ds_read_b128 {v4(KF[1])}, v2 offset:{REC+1024}")
    if ps == 2:
        if vhook: vhook()
        k(f"ds_read_b128 {v4(VM)}, v2 offset:2048")
        k(f"ds_read_b128 {v4(VRF)}, v3")
    k("s_nop 5")

def iteration(k, prev, cur, nxt, ps, vhook=None):
    for n, t in enumerate(ORDER):
        on = present(cur, t); s = S(t); e = E(t)
        if ps == 1:
            if on:
                m = MX(*t[:2])
                k(f"v_max3_f32 v{m}, v{m}, v{s}, v{s+1}")
                k(f"v_max3_f32 v{m}, v{m}, v{s+2}, v{s+3}")
            if nxt and n in (0, 4): k("s_waitcnt lgkmcnt(1)")
        else:
            if on:
                for i in range(2): k(f"v_exp_f32 v{e+i}, v{s+i}")
            if n == 1: k("s_waitcnt lgkmcnt(0)")
            if n >= 1: pv(k, n - 1, prev)
            if on:
                for i in range(2, 4): k(f"v_exp_f32 v{e+i}, v{s+i}")
            if nxt and n == 0: k("s_waitcnt lgkmcnt(3)")
        if nxt:
            smfma(k, nxt, t, ps)
            if n in (3, 7): k(f"ds_read_b128 {v4(KF[t[2]])}, v2 offset:{2*REC + 1024*t[2]}")
    if ps == 2:
        for p in range(2):
            cnt = 0
            for q in "AB":
                for tl in range(2):
                    r = P(p, q) + 2 * tl; e = E((p, q, tl))
                    if cur[p] is None: pass
                    elif present(cur, (p, q, tl)):
                        k(f"v_cvt_pk_bf16_f32 v{r}, v{e}, v{e+1}")
                        k(f"v_cvt_pk_bf16_f32 v{r+1}, v{e+2}, v{e+3}")
                    else:
                        k(f"v_mov_b32 v{r}, 0"); k(f"v_mov_b32 v{r+1}, 0")
                    cnt += 1
                    if p == 0 and cnt == 1:
                        pv(k, 7, prev)
                        if vhook: vhook()
                        k(f"ds_read_b128 {v4(VM)}, v2 offset:2048")
                        k(f"ds_read_b128 {v4(VRF)}, v3")
        k("v_add_u32 v3, v3, v4")
    if nxt: k(f"v_add_u32 v2, {REC}, v2")

def emit(k, signal, wait_flags, SC, after_stage=None):
    N = "at"
    k(f"{PFX}_main:")
    k("v_and_b32 v7, 15, v254")
    k("v_lshrrev_b32 v8, 4, v254")
    k("s_and_b32 s6, s2, 7")
    k("s_lshr_b32 s7, s2, 3")
    k("s_lshr_b32 s17, s7, 2")
    k("s_sub_u32 s17, 7, s17")
    k("s_and_b32 s7, s7, 3")
    k("s_lshl_b32 s16, s6, 2")
    k("s_add_u32 s16, s16, s7")
    k("s_lshr_b32 s33, s16, 3")
    k("s_mul_i32 s19, s33, 9")
    k("s_and_b32 s20, s16, 7")
    k("s_add_u32 s21, s19, s20")
    k("s_lshl_b32 s21, s21, 16")
    k("s_add_u32 s22, s19, 8")
    k("s_lshl_b32 s22, s22, 16")
    k("s_and_b32 s23, s6, 1")
    k("s_lshl_b32 s23, s23, 8")
    k("s_add_u32 s23, s23, s22")
    after_stage(k, "tag")
    k("s_cmp_ge_u32 s2, 192")
    k(f"s_cbranch_scc1 {N}_nosig")
    signal(k, 58, 0, "qk")
    k(f"{N}_nosig:")
    k.add(k.stamp(2))
    k("v_min_u32 v255, 11, v254")
    k("v_lshrrev_b32 v9, 2, v255")
    k("v_lshl_add_u32 v9, v9, 2, s33")
    k("v_and_b32 v255, 3, v255")
    k("s_lshl_b32 s24, s17, 1")
    k("s_sub_u32 s24, s24, 2")
    k("v_add_u32 v255, s24, v255")
    k("v_max_i32 v255, 0, v255")
    k("v_lshl_add_u32 v255, v9, 4, v255")
    k("v_lshlrev_b32 v255, 7, v255")
    k("v_add_u32 v9, s21, v1")
    k("v_lshl_add_u32 v10, v7, 4, s23")
    k("v_cmp_gt_u32 vcc, 32, v254")
    k("v_cndmask_b32 v9, v10, v9, vcc")
    k("v_bfe_u32 v10, v254, 1, 2")
    k("v_lshlrev_b32 v10, 8, v10")
    k("v_and_b32 v11, 1, v254")
    k("v_lshl_add_u32 v10, v11, 4, v10")
    k("v_bfe_u32 v11, v254, 3, 2")
    k("v_lshl_add_u32 v10, v11, 10, v10")
    k("s_lshl_b32 s24, s20, 5")
    k("s_add_u32 s24, s24, s22")
    k("v_add_u32 v10, s24, v10")
    k("s_lshl_b32 s24, s17, 4")
    k("s_lshl_b32 s25, s18, 2")
    k("s_add_u32 s26, s24, s25")
    k("s_lshl_b32 s27, s26, 9")
    k("s_add_u32 s24, s26, s25")
    k("s_lshl_b32 s24, s24, 9")
    k(f"s_add_u32 s28, s24, {XSZ - 16*512}")
    k(f"s_add_u32 s29, s24, {2*XSZ - 8*1024}")
    k("s_add_u32 s30, s29, s21")
    k(f"s_mul_i32 s31, s18, {4*REC}")
    k(f"s_mul_i32 s24, s54, {QKVB - QKV}")
    k(f"s_add_u32 s24, s24, {QKV}")
    k("s_add_u32 s8, s100, s24"); k("s_addc_u32 s9, s101, 0"); k("s_and_b32 s9, s9, 0xffff"); k(f"s_mov_b32 s10, {3*XSZ}"); k("s_mov_b32 s11, 0x20000")
    srd(k, 12, 100, OO, XSZ)
    for i in range(4): k(f"v_mov_b32 v{80+i}, 0x3f803f80")
    k(f"v_mov_b32 v11, {ONES}")
    k(f"ds_write_b128 v11, {v4(80)}")
    k("v_lshlrev_b32 v11, 2, v8")
    k(f"v_mov_b32 v12, {NEG}")
    for i in range(4):
        k(f"v_add_u32 v13, {i}, v11")
        k("v_cmp_gt_u32 vcc, v13, v7")
        k(f"v_cndmask_b32_e64 v{MO+i}, v12, 0, vcc")
        k(f"v_cndmask_b32 v{MD+i}, 0, v12, vcc")
    for r in range(112, 160): k(f"v_mov_b32 v{r}, 0")
    def cregs(zero):
        for p in range(2):
            for q in "AB":
                for i in range(4):
                    if zero:
                        k(f"v_mov_b32 v{NM(p,q)+i}, 0"); k(f"v_mov_b32 v{CF(p,q)+i}, v{MO+i}"); k(f"v_mov_b32 v{CL(p,q)+i}, v{MD+i}")
                    else:
                        k(f"v_sub_f32 v{NM(p,q)+i}, 0, v{MX(p,q)}")
                        k(f"v_sub_f32 v{CF(p,q)+i}, v{MO+i}, v{MX(p,q)}")
                        k(f"v_sub_f32 v{CL(p,q)+i}, v{MD+i}, v{MX(p,q)}")
    cregs(True)
    k("s_lshl_b32 s32, s18, 1")
    k("s_cmp_gt_u32 s17, 0")
    k("s_cselect_b32 s32, s32, 8")
    k(f"s_mul_i32 s33, s32, {REC}")
    k("v_add_u32 v6, s33, v1")
    k("s_lshl_b32 s33, s32, 7")
    k(f"s_add_u32 s33, s33, {VR0}")
    k("v_lshl_add_u32 v3, v8, 1, v7")
    k("v_lshl_add_u32 v3, v3, 4, s33")
    k(f"v_mov_b32 v11, {ONES}")
    k("v_mov_b32 v4, 128")
    k("v_cmp_gt_u32 vcc, 2, v7")
    k("v_cndmask_b32 v5, v11, v3, vcc")
    k("v_cndmask_b32 v4, 0, v4, vcc")
    k("s_lshl_b32 s58, s17, 5")
    k("s_add_u32 s58, s58, s16")
    k("s_lshl_b32 s58, s58, 7")
    k("s_add_u32 s58, s58, s59")
    k(f"s_add_u32 s58, s58, {FLG_SET}")
    after_stage(k, "setup")
    wait_flags(k, 59, None, N)
    k.add(k.stamp(3))
    for bl in range(4):
        for tl in range(2):
            k(f"s_add_u32 m0, s31, {bl*REC + tl*1024}")
            k(f"s_add_u32 s24, s28, {(2*bl + tl)*512}")
            k(f"buffer_load_dwordx4 v9, s[8:11], s24 offen {SC} lds", "ak")
    for j in range(4):
        k(f"buffer_load_dwordx4 {v4(16+4*j)}, v9, s[8:11], s27 offen offset:{512*j} {SC}", "aq")
    for bl in range(4):
        k(f"s_add_u32 m0, s31, {bl*REC + 2048}")
        k(f"s_add_u32 s24, s30, {bl*1024}")
        k(f"buffer_load_dwordx4 v1, s[8:11], s24 offen {SC} lds", "av")
    k("s_lshl_b32 s24, s18, 9")
    k(f"s_add_u32 m0, s24, {VR0}")
    k("s_mov_b32 exec_hi, 0")
    k(f"buffer_load_dwordx4 v10, s[8:11], s29 offen {SC} lds", "av")
    k("s_mov_b32 exec_hi, -1")
    after_stage(k, 0)
    for i in range(4):
        k(f"s_cmp_eq_u32 s7, {i}")
        k("s_cselect_b32 s24, 48, 32")
        k("v_cmp_gt_u32 vcc, s24, v254")
        for j in range(4): k(f"v_cndmask_b32 v{16+4*j+i}, 0, v{16+4*j+i}, vcc")
    k("s_mov_b32 s29, 0")
    k("s_waitcnt lgkmcnt(0)")
    k("s_barrier")
    nv = [0]
    def vhook():
        nv[0] += 1
        k("s_cmp_lg_u32 s29, 0")
        k(f"s_cbranch_scc1 {N}_v{nv[0]}")
        after_stage(k, ("v", nv[0]))
        k("s_barrier")
        k(f"{N}_v{nv[0]}:")
    M = ("mid", "mid")
    def one_pass(ps):
        L = f"{N}_p{ps}"
        k(f"{L}:")
        k("v_mov_b32 v2, v6")
        k("v_mov_b32 v3, v5")
        k("s_cmp_eq_u32 s17, 0")
        k(f"s_cbranch_scc1 {L}_q0")
        prologue(k, ("first", None), ps)
        iteration(k, (None, None), ("first", None), ("mid", "first"), ps, vhook)
        iteration(k, ("first", None), ("mid", "first"), M, ps)
        k("s_mov_b32 s34, 5")
        k(f"s_branch {L}_loop")
        k(f"{L}_q0:")
        k("s_cmp_eq_u32 s18, 0")
        k(f"s_cbranch_scc0 {L}_q0b")
        prologue(k, ("last", "mid"), ps, vhook)
        k(f"s_branch {L}_8")
        k(f"{L}_q0b:")
        prologue(k, M, ps, vhook)
        k("s_lshl_b32 s34, s18, 1")
        k("s_sub_u32 s34, s34, 1")
        k(f"{L}_loop:")
        iteration(k, M, M, M, ps)
        k("s_sub_u32 s34, s34, 1")
        k("s_cmp_lg_u32 s34, 0")
        k(f"s_cbranch_scc1 {L}_loop")
        iteration(k, M, M, ("last", "mid"), ps)
        k(f"{L}_8:")
        if ps == 2: after_stage(k, 4)
        iteration(k, M, ("last", "mid"), (None, "last"), ps)
        iteration(k, ("last", "mid"), (None, "last"), None, ps)
    if not os.environ.get('FW'): k.add(k.stamp(5))
    one_pass(2)
    k("s_waitcnt lgkmcnt(0)")
    for n in range(4, 8): pv(k, n, (None, "last"))
    k("s_cmp_lg_u32 s29, 0")
    k(f"s_cbranch_scc1 {N}_fine")
    k(f"s_mov_b32 s24, {LO}")
    k(f"s_mov_b32 s25, {HI}")
    d = [OR(p, q) + 2 for p in range(2) for q in "AB"]
    k(f"v_min3_f32 v80, v{d[0]}, v{d[1]}, v{d[2]}")
    k(f"v_min_f32 v80, v80, v{d[3]}")
    k(f"v_add_f32 v81, v{d[0]}, v{d[1]}")
    k(f"v_add_f32 v82, v{d[2]}, v{d[3]}")
    k("v_add_f32 v81, v81, v82")
    k("v_cmp_lt_f32 vcc, s24, v80")
    k("v_cmp_gt_f32 s[24:25], s25, v81")
    k("s_nop 1")
    k("s_and_b64 vcc, vcc, s[24:25]")
    k("s_cmp_eq_u64 vcc, -1")
    k(f"s_cbranch_scc0 {N}_redo")
    k(f"{N}_fine:")
    if not os.environ.get('FW'): k.add(k.stamp(6))
    def redo(k):
        k(f"{N}_redo:")
        k("s_mov_b32 s29, 1")
        for r in range(112, 160): k(f"v_mov_b32 v{r}, 0")
        for r in range(216, 220): k(f"v_mov_b32 v{r}, {NEG}")
        one_pass(1)
        k("s_waitcnt lgkmcnt(0)")
        xreduce(k, [216, 217, 218, 219], [220, 221, 222, 223], op="v_max_f32")
        cregs(False)
        k(f"s_branch {N}_p2")
    k("v_and_b32 v11, 1, v8")
    k("v_mul_u32_u24 v11, 18432, v11")
    k("v_lshl_add_u32 v11, v7, 4, v11")
    k("v_lshrrev_b32 v12, 1, v8")
    k("v_lshl_add_u32 v12, v12, 8, v11")
    k("s_mul_i32 s24, s26, 18432")
    k("s_lshl_b32 s25, s16, 9")
    k("s_add_u32 s25, s25, s24")
    k("s_lshr_b32 s27, s16, 2")
    k("s_lshl_b32 s27, s27, 8")
    k("s_lshl_b32 s28, s7, 2")
    k("s_add_u32 s27, s27, s28")
    k("s_add_u32 s27, s27, s24")
    k("s_add_u32 s27, s27, 16384")
    for p in range(2):
        for q in "AB": k(f"v_rcp_f32 v{80+qi(p,q)}, v{OR(p,q)+2}")
        for q in "AB":
            for i in range(4): k(f"v_mul_f32 v{OM(p,q)+i}, v{OM(p,q)+i}, v{80+qi(p,q)}")
            for i in range(2): k(f"v_mul_f32 v{OR(p,q)+i}, v{OR(p,q)+i}, v{80+qi(p,q)}")
        r = 88 + 8 * p
        for j, q in enumerate("AB"):
            k(f"v_cvt_pk_bf16_f32 v{r+2*j}, v{OM(p,q)}, v{OM(p,q)+1}")
            k(f"v_cvt_pk_bf16_f32 v{r+2*j+1}, v{OM(p,q)+2}, v{OM(p,q)+3}")
            k(f"v_cvt_pk_bf16_f32 v{r+4+j}, v{OR(p,q)}, v{OR(p,q)+1}")
        k(f"v_permlane16_swap_b32 v{r}, v{r+2}")
        k(f"v_permlane16_swap_b32 v{r+1}, v{r+3}")
        k(f"v_permlane16_swap_b32 v{r+4}, v{r+5}")
        k(f"buffer_store_dwordx4 {v4(r)}, v12, s[12:15], s25 offen {SC}")
        k("s_mov_b32 exec_hi, 0")
        k(f"buffer_store_dword v{r+4}, v11, s[12:15], s27 offen {SC}")
        k("s_mov_b32 exec_hi, -1")
        if p == 0:
            k("s_add_u32 s25, s25, 36864")
            k("s_add_u32 s27, s27, 36864")
    return redo
```

```python
from asmgen import *
from layout import *
from k_prep import srd, xreduce
from k_qkv import load_stats, finish_stats, f2u
import k_ffn1 as F1
import math, os
SC = "sc1"; SPIN = 150000
def v4(r): return f"v[{r}:{r+3}]"
def v2(r): return f"v[{r}:{r+1}]"
def a4(r): return f"a[{r}:{r+3}]"
GRP = 36864
def dacc(j, b):
    t = j * 9 + b
    return 16 + 4 * t if t < 14 else 104 + 4 * (t - 14)
def dw(buf, b):
    return 40 + 4 * (buf * 9 + b)
def lds(off): return (1, 6, 7)[off // 65536], off % 65536
def slot(g): return ((g + 1) % 4) * GRP

def emit(k, signal, wait_flags):
    CH = F1.CH; LDS_S = F1.LDS_S; XV, WB, ACC, NMEAN, CC, QQ, SG, TT, PP = F1.XV, F1.WB, F1.ACC, F1.NMEAN, F1.CC, F1.QQ, F1.SG, F1.TT, F1.PP
    xop, accr, rd = F1.xop, F1.accr, F1.rd
    F1.STORE_MOD = SC
    k("f1_main:")
    k("s_and_b32 s6, s2, 7")
    k("s_lshr_b32 s7, s2, 3")
    k("s_and_b32 s16, s6, 1")
    k("s_lshl_b32 s16, s16, 2")
    k("s_lshr_b32 s17, s7, 3")
    k("s_add_u32 s16, s16, s17")
    k("s_lshr_b32 s17, s6, 1")
    k("s_lshl_b32 s17, s17, 3")
    k("s_and_b32 s7, s7, 7")
    k("s_add_u32 s17, s17, s7")
    k("s_mul_i32 s39, s18, 9216")
    k(f"s_mul_i32 s6, s17, {9*CH}")
    k(f"s_add_u32 s6, s6, {WGU}")
    k("s_add_u32 s12, s4, s6"); k("s_addc_u32 s13, s5, 0"); k("s_and_b32 s13, s13, 0xffff"); k(f"s_mov_b32 s14, {9*CH}")
    if True:
        k("s_or_b32 s3, s54, s18")
        k("s_cmp_lg_u32 s3, 0")
        k("s_cbranch_scc1 f1_pkok")
        k("v_lshlrev_b32 v255, 7, v254")
        k(f"s_mov_b32 s3, {SPIN}")
        for j in range(4): k(f"s_mov_b32 s{40+j}, {F_PK*FLG_SET + j*8192}")
        k("f1_pk_wl:")
        for j in range(4): k(f"buffer_load_dword v{244+j}, v255, s[96:99], s{40+j} offen {SC}")
        k("s_waitcnt vmcnt(0)")
        for j in range(4): k(f"v_xor_b32 v{244+j}, v{244+j}, v253")
        k("v_or3_b32 v244, v244, v245, v246")
        k("v_or_b32 v244, v244, v247")
        k("v_cmp_ne_u32 vcc, 0, v244")
        k("s_nop 1")
        k("s_cmp_eq_u64 vcc, 0")
        k("s_cbranch_scc1 f1_pkok")
        k("s_sub_u32 s3, s3, 1")
        k("s_cmp_lg_u32 s3, 0")
        k("s_cbranch_scc1 f1_pk_wl")
        k("f1_pkok:")
    signal(k, 58, 0, "wo")
    k.add(k.stamp(8))
    PRE = int(os.environ.get("F1PRE", "5"))
    k("s_lshl_b32 s38, s18, 10")
    def wgrp(g): return [x if isinstance(x, str) else (x[0], "wl") for c in range(3) for x in F1.dma(c, g)]
    for g in range(PRE): k.add(wgrp(g))
    k("s_lshl_b32 s19, s16, 4")
    k("s_lshl_b32 s6, s18, 2")
    k("s_add_u32 s19, s19, s6")
    for i in range(1, 5): k(f"s_mov_b32 s{32+i}, {4096*i}")
    k("s_mul_i32 s6, s19, 18432")
    k("v_add_u32 v2, s6, v1")
    for tb in range(1, 4): k(f"v_add_u32 v{2+tb}, 18432, v{1+tb}")
    k("v_and_b32 v13, 15, v254")
    k("v_lshrrev_b32 v15, 4, v254")
    k("s_lshl_b32 s6, s19, 10")
    k("v_add_u32 v9, s6, v1")
    k("v_min_u32 v10, 35, v254")
    k("v_lshlrev_b32 v10, 3, v10")
    k("s_mul_i32 s6, s18, 288")
    k("v_add_u32 v10, s6, v10")
    k("s_mul_i32 s42, s17, 1152")
    k("s_add_u32 s43, s42, 36864")
    k("s_add_u32 s44, s42, 73728")
    srd(k, 8, 100, X1, XSZ)
    srd(k, 20, 100, ST1, STSZ)
    srd(k, 28, 4, SGU, SGU_SZ)
    srd(k, 24, 100, HH, H_SZ)
    k("v_add_u32 v6, 65536, v1")
    k("v_add_u32 v7, 131072, v1")
    k(f"v_add_u32 v8, {4*CH}, v1")
    k("v_and_b32 v11, 1, v15")
    k("v_mul_u32_u24 v11, 147456, v11")
    k("v_lshrrev_b32 v12, 1, v15")
    k("v_lshl_add_u32 v11, v12, 8, v11")
    k("v_lshl_add_u32 v11, v13, 4, v11")
    k("s_mul_i32 s6, s19, 147456")
    k("v_add_u32 v11, s6, v11")
    k(f"v_add_u32 v12, {2*147456}, v11")
    k("s_lshr_b32 s47, s17, 3")
    k(f"s_mul_i32 s45, s47, {GRP}")
    k("s_and_b32 s6, s17, 7")
    k("s_lshl_b32 s6, s6, 9")
    k("s_add_u32 s45, s45, s6")
    k("s_lshl_b32 s46, s16, 12")
    k("s_add_u32 s46, s46, s59")
    k("s_lshl_b32 s58, s17, 7")
    k("s_add_u32 s58, s58, s46")
    k(f"s_add_u32 s55, s58, {F_FA*FLG_SET}")
    k(f"s_add_u32 s58, s58, {F_F1*FLG_SET}")
    k(f"s_add_u32 s46, s46, {F_WO*FLG_SET}")
    k("s_lshr_b32 s7, s2, 3")
    k("s_and_b32 s48, s2, 1")
    k("s_lshl_b32 s48, s48, 3")
    k("s_lshr_b32 s6, s7, 2")
    k("s_add_u32 s48, s48, s6")
    k("s_and_b32 s49, s7, 3")
    k("s_lshl_b32 s6, s49, 2")
    k("s_add_u32 s6, s6, s47")
    k(f"s_mul_i32 s6, s6, {9*GRP}")
    k(f"s_add_u32 s6, s6, {WD}")
    k("s_add_u32 s60, s4, s6"); k("s_addc_u32 s61, s5, 0"); k("s_and_b32 s61, s61, 0xffff"); k(f"s_mov_b32 s62, {9*GRP}"); k("s_mov_b32 s63, 0x20000")
    k("s_lshl_b32 s6, s48, 3")
    k("s_lshl_b32 s7, s18, 1")
    k("s_add_u32 s6, s6, s7")
    k("s_mul_i32 s6, s6, 147456")
    k(f"s_mul_i32 s7, s47, {GRP}")
    k("s_add_u32 s6, s6, s7")
    k("v_add_u32 v244, s6, v1")
    k("v_add_u32 v245, 147456, v244")
    k("s_lshr_b32 s50, s48, 1")
    k("s_lshl_b32 s50, s50, 5")
    k("s_lshl_b32 s6, s47, 3")
    k("s_add_u32 s50, s50, s6")
    k("s_lshl_b32 s50, s50, 7")
    k("s_add_u32 s50, s50, s59")
    k(f"s_add_u32 s51, s50, {F_F1*FLG_SET}")
    k(f"s_add_u32 s50, s50, {F_FA*FLG_SET}")
    k("v_min_u32 v246, 7, v254")
    k("v_lshlrev_b32 v246, 7, v246")
    k("s_mov_b32 s52, s39")
    k("s_mov_b32 s53, 0")
    wait_flags(k, 46, 32, "f1")
    k.add(k.stamp(9))
    def xl(ks):
        so = "0" if ks < 4 else f"s{32 + ks // 4}"
        return [(f"buffer_load_dwordx4 {xop(ks, tb)}, v{2+tb}, s[8:11], {so} offen offset:{(ks % 4) * 1024} {SC}", f"x{ks}") for tb in range(4)]
    D = int(os.environ.get("XDIST", "3"))
    for ks in range(D): k.add(xl(ks))
    R0 = TT; CS = ACC + 120
    ks_ = Kern(); load_stats(ks_, 20, 9, 4, R0, "st", SC)
    for i, sr in enumerate((42, 43, 44)):
        ks_(f"buffer_load_dwordx2 v[{CS+2*i}:{CS+2*i+1}], v10, s[28:31], s{sr} offen", "st")
    st_loads = list(ks_.ins)
    kf = Kern()
    kf("WAITVM st")
    for q in range(2):
        kf(f"v_add_f32 v{CS+q}, v{CS+q}, v{CS+2+q}")
        kf(f"v_add_f32 v{CS+q}, v{CS+q}, v{CS+4+q}")
    kf(f"v_add_u32 v10, {LDS_S}, v10")
    kf(f"ds_write_b64 v10, v[{CS}:{CS+1}]", "sw")
    finish_stats(kf, 4, R0)
    for tb in range(4):
        kf(f"v_rsq_f32 v{CC+tb}, v{R0+4*tb+1}")
        kf(f"v_sub_f32 v{NMEAN+tb}, 0, v{R0+4*tb}")
        kf(f"v_mov_b32 v{QQ+tb}, v{R0+4*tb+1}")
        kf(f"v_mul_f32 v{CC+tb}, {f2u(-math.log2(math.e))}, v{CC+tb}")
    kf("v_lshlrev_b32 v10, 4, v15")
    kf(f"v_add_u32 v10, {LDS_S}, v10")
    kf(f"v_add_u32 v9, {8*CH}, v1")
    st_fin = list(kf.ins)
    mf = []; fixed = {}; flow = []
    def fx(i, x): fixed.setdefault(i, []).extend(x if isinstance(x, list) else [x])
    def spread(items, g0, g1):
        vm = [x for x in items if not (isinstance(x, str) and x.startswith("s_add_u32 m0"))]
        step = (g1 - g0) / len(vm); n = 0; pend = None; last = -1
        for x in items:
            if isinstance(x, str) and x.startswith("s_add_u32 m0"): pend = x; continue
            g = max(int(g0 + (n + 0.5) * step), last + 1); n += 1
            while g % 4 in (0, 1) or any(unit_cost(as_ins(y)) for y in fixed.get(g, [])) or (pend and any(as_ins(y).kind == "dma" for y in fixed.get(g - 1, []))): g += 1
            last = g
            if pend: fx(g - 1, pend); pend = None
            fx(g, x)
    PB = (ACC + 96, WB)
    for c in range(3):
        for gu in range(2): k.add([rd(PB[0] + 8 * c + 4 * gu, c, 0, gu)])
    k("WAITLG w0_0")
    k("WAITVM x0")
    d3 = F1.dma_chunk(3); d3s = [d3[0:5], d3[5:10], d3[10:12]]
    for ks in range(18):
        i0 = len(mf)
        if ks > 0: fx(i0 - 2, f"WAITVM x{ks}")
        ext = xl(ks + D) if ks + D < 18 else []
        if ks == 6: ext = ext + st_loads[:4]
        if ks == 7: ext = ext + st_loads[4:]
        if ks == 10: flow += [(x, i0) for x in st_fin]
        if ks in (10, 11, 12): ext = ext + d3s[ks - 10]
        if PRE + ks < 9: ext = wgrp(PRE + ks) + ext
        if ext: spread(ext, i0, i0 + 20)
        if ks == 2 * PRE - 1 and PRE < 9:
            fx(i0 - 5, "WAITVM wl"); fx(i0 - 4, "s_barrier")
        if ks == 17:
            fx(i0 - 5, "WAITVM d3"); fx(i0 - 4, "WAITLG sw"); fx(i0 - 3, "s_barrier")
        for c in range(3):
            for gu in range(2):
                for tb in range(4):
                    a = accr(c, gu, tb); w = PB[ks % 2] + 8 * c + 4 * gu
                    i = len(mf)
                    if gu == 0 and tb == 0 and i > 0: fx(i - 1, f"WAITLG w{c}_{ks}")
                    mf.append(f"v_mfma_f32_16x16x32_bf16 {v4(a)}, {v4(w)}, {xop(ks, tb)}, {'0' if ks == 0 else v4(a)}")
                    if tb == 0 and ks < 17: fx(i, rd(PB[(ks + 1) % 2] + 8 * c + 4 * gu, c, ks + 1, gu))
                    if ks == 17 and c >= 1 and tb == 0: fx(i, rd(WB + 8 * (c - 1) + 4 * gu, 3, c - 1, gu))
                    if ks == 17 and c == 0 and tb == 1:
                        flow.append(((f"ds_read_b128 {v4(SG + 4*gu)}, v10 offset:{64*gu}", "s0"), i))
    flow.append(("WAITLG s0", len(mf) + 1))
    for e in range(3): flow += [(x, len(mf) + 1) for x in F1.epilogue(e)]
    for c in range(3, 9):
        i0 = len(mf)
        if c == 3: fx(i0 - 2, "s_barrier")
        for ks in range(18):
            for gu in range(2):
                for tb in range(4):
                    a = accr(c, gu, tb); w = WB + 8 * (ks % 3) + 4 * gu
                    i = len(mf)
                    if gu == 0 and tb == 0:
                        fx(i - 1, f"WAITLG w{c}_{ks}")
                        if ks == 16 and c < 8:
                            fx(i - 3, f"WAITVM d{c+1}"); fx(i - 2, "s_barrier")
                    mf.append(f"v_mfma_f32_16x16x32_bf16 {v4(a)}, {v4(w)}, {xop(ks, tb)}, {'0' if ks == 0 else v4(a)}")
                    if tb == 0:
                        c2, k2 = (c, ks + 2) if ks < 16 else (c + 1, ks - 16)
                        if c2 < 9: fx(i, rd(WB + 8 * (k2 % 3) + 4 * gu, c2, k2, gu))
        for dc, k0, k1 in {3: [(4, 0, 64), (5, 72, 140)], 4: [(6, 0, 120)], 5: [(7, 0, 120)], 6: [(8, 0, 120)]}.get(c, []):
            spread(F1.dma_chunk(dc), i0 + k0, i0 + k1)
        flow += [(x, len(mf) + 2) for x in F1.epilogue(c)]
    def ddma(g):
        L = []
        for j in range(9):
            pre = []
            if j % 4 == 0:
                pre = [f"s_add_u32 m0, s39, {slot(g) + j*1024}", "s_nop 0" if j == 0 and g == 0 else f"s_add_u32 s52, s52, {4096 if j else GRP - 8192}"]
            L.append(pre + [(f"buffer_load_dwordx4 v1, s[60:63], s52 offen offset:{(j % 4)*1024} lds", f"e{g}")])
        return L
    KB = 36 - 4 * NBG
    def hreg(K): return 8 * (K % 4) if K < 20 else 120 + 8 * (K - 20)
    def hl(K):
        L = [[(f"buffer_load_dwordx4 {a4(hreg(K) + 4*j)}, v{244+j}, s[24:27], s53 offen offset:{(K % 4)*1024} {SC}", f"h{K}")] for j in range(2)]
        if K % 4 == 3: L[1].append("s_add_u32 s53, s53, 4096")
        return L
    def drd(K, b, r=None):
        va, off = lds(slot(K // 4) + (K % 4) * 9216 + b * 1024)
        return (f"ds_read_b128 {a4(dw(K % 2, b) if r is None else r)}, v{va} offset:{off}", f"u{K}_{b}")
    def bun(g, x): fixed.setdefault(g, []).append(Bundle(x))
    def freegap(g):
        while any(isinstance(y, Bundle) or unit_cost(as_ins(y)) for y in fixed.get(g, [])): g += 1
        return g
    def raise_flag(so): return ["s_mov_b64 exec, 1", f"buffer_store_dword v253, v252, s[96:99], s{so} offen {SC}", "s_mov_b64 exec, -1"]
    slow = []
    def poll(so, name, g_load, g_check):
        bun(freegap(g_load), [(f"buffer_load_dword v247, v246, s[96:99], s{so} offen {SC}", name)])
        bun(freegap(g_check), [f"WAITVM {name}", "v_cmp_ne_u32 vcc, v253, v247", "s_nop 1", "s_cmp_lg_u64 vcc, 0", f"s_cbranch_scc1 {name}_slow", f"{name}_ok:"])
        slow.extend([f"{name}_slow:", f"s_mov_b32 s3, {SPIN}", f"{name}_wl:", f"buffer_load_dword v247, v246, s[96:99], s{so} offen {SC}", "s_waitcnt vmcnt(0)",
                     "v_cmp_ne_u32 vcc, v253, v247", "s_nop 1", "s_cmp_eq_u64 vcc, 0", f"s_cbranch_scc1 {name}_ok", "s_sub_u32 s3, s3, 1", "s_cmp_lg_u32 s3, 0",
                     f"s_cbranch_scc1 {name}_wl", f"s_branch {name}_ok"])
    EA = int(os.environ.get("EA", "4"))
    c8 = len(mf) - 144; c7 = c8 - 144
    fx(c7 + 128 - 4, f"WAITVM hs{EA}")
    bun(freegap(c7 + 130), raise_flag(55))
    for c0, gg in ((c7, 0), (c8, 1)):
        g = c0 + 2
        for x in ddma(gg):
            g = freegap(g); bun(g, x); g += 9
    poll(50, "fa", c8 + 40, c8 + 86)
    g = c8 + 92
    for K in range(3):
        for x in hl(K):
            g = freegap(g); bun(g, x); g += 4
    fx(c8 + 128 - 3, "WAITVM e0"); fx(c8 + 128 - 2, "s_barrier")
    for b in range(9): fx(freegap(c8 + 129 + b), drd(0, b))
    fx(c8 + 142, "WAITVM h0")
    if k.stamp(10): bun(freegap(c8 + 140), k.stamp(10))
    nh = 3; NT = 4 * NBG; RING = 18; HA = max(17, KB - 11)
    def treg(b, t): return dw(0, 0) + 4 * ((b * NT + t) % RING)
    tail = [(b, t) for b in range(9) for t in range(NT)]
    for K in range(KB):
        i0 = len(mf); gi, ks = divmod(K, 4)
        ext = []
        want = K + 4 if K < HA else (3 + HA + -(-(33 - HA) * (K + 1 - HA) // (KB - 1 - HA)) if K < KB - 1 else 36)
        while nh < want: ext += hl(nh); nh += 1
        if NBG == 2 and 23 <= K < 28:
            if K < 26: ext = ext + ddma(8)[3 * (K - 23):3 * (K - 22)]
        elif ks < 3 and gi + 2 < 9: ext = ext + ddma(gi + 2)[3 * ks:3 * ks + 3]
        for n, x in enumerate(ext): bun(i0 + 1 + 2 * (n * 8 // len(ext)), x)
        if K > 0: fx(i0 - 2, f"WAITVM h{K}")
        if ks == 3:
            if gi == BG: fx(i0 - 8, "WAITVM hs8")
            fx(i0 - 6, f"WAITVM e{gi+1}" if K < KB - 1 else "WAITVM e8"); fx(i0 - 4, "s_barrier")
            if gi == BG: bun(i0 + 13, raise_flag(58))
        for b in range(9):
            i = len(mf)
            if b % 3 == 0: fx(i - 1, f"WAITLG u{K}_{b+2}")
            for j in range(2):
                a = dacc(j, b)
                mf.append(f"v_mfma_f32_16x16x32_bf16 {v4(a)}, {a4(dw(K % 2, b))}, {a4(hreg(K) + 4*j)}, {'0' if K == 0 else v4(a)}")
            if K < KB - 1: fx(i, drd(K + 1, b))
            else:
                bb, t = tail[b]; fx(i, drd(KB + t, bb, treg(bb, t)))
        if K == 4 * EA - 2: poll(51, "fb", i0 + 15, i0 + 18 * 2 + 15)
    assert 4 * EA - 2 >= 4 * BG + 6
    if os.environ.get("FF"):
        pts = [24 * 6, 24 * 12, 24 * 18, 432 + 144 * 2, 432 + 144 * 4, c8 + 144 + 72 * 2, c8 + 144 + 72 * 4, c8 + 144 + 72 * 6]
        for n, g in enumerate(pts): bun(freegap(g), k.stamp(1 + n))
    n0 = len(k.ins)
    left, over = pack(k, mf, fixed, flow, units=lambda i: 3 if i >= c8 + 144 else 2)
    for e in (EA, 8):
        iw = [i for i, x in enumerate(k.ins) if x.op == "WAITVM" and x.ops == [f"hs{e}"]][0]
        il = max(i for i, x in enumerate(k.ins) if x.tag == f"hs{e}")
        print("  h stores", e, "complete", sum(1 for x in k.ins[il:iw] if x.kind == "mfma"), "MFMAs before their wait")
        assert il < iw
    for i, x in enumerate(k.ins):
        if x.op == "WAITVM" and i >= n0:
            assert all(y.tag not in x.ops for y in k.ins[i:]), f"ops tagged {x.ops} follow their wait"
    print("ffn leftover instrs:", len(left), "overfull units:", over)
    assert not left
    check_live(k.ins[n0:])
    sub = Kern(); sub.ins = k.ins[n0:]
    iw = [i for i, x in enumerate(sub.ins) if x.tag == "sw"][0]; ir = [i for i, x in enumerate(sub.ins) if x.tag == "s0"][0]
    assert any(x.op == "s_barrier" for x in sub.ins[iw + 3:ir])
    k.add(k.stamp(12))
    srd(k, 8, 100, PART, PART_SZ)
    k("s_lshl_b32 s21, s48, 2")
    k("s_add_u32 s21, s21, s49")
    k("s_lshl_b32 s6, s21, 2")
    k("s_add_u32 s6, s6, s18")
    k("s_mul_i32 s40, s6, 27648")
    k("s_sub_u32 s6, s47, s18")
    k("s_sub_u32 s6, s6, 1")
    k("s_and_b32 s6, s6, 3")
    k("s_mul_i32 s6, s6, 9216")
    k("s_add_u32 s40, s40, s6")
    k("s_add_u32 s41, s40, 4096")
    k("s_add_u32 s42, s40, 8192")
    k("WAITVM h35")
    k("s_cmp_eq_u32 s18, s47")
    k("s_cbranch_scc1 dn_own")
    OWN = slot(7 - NBG)
    for role in ("pub", "own"):
        k.path = "dn" + role
        if role == "own": k("dn_own:")
        mf = []; fixed = {}; flow = []
        k(f"WAITLG u{KB+1}_0")
        for b in range(9):
            for t in range(NT):
                i = len(mf); n = b * NT + t
                if n and n % 2 == 0:
                    bb, tt = tail[n + 1]; fx(i - 1, f"WAITLG u{KB+tt}_{bb}")
                for j in range(2):
                    a = dacc(j, b)
                    mf.append(f"v_mfma_f32_16x16x32_bf16 {v4(a)}, {a4(treg(b, t))}, {a4(hreg(KB + t) + 4*j)}, {v4(a)}")
                if n + 9 < len(tail):
                    bb, tt = tail[n + 9]; fx(i, drd(KB + tt, bb, treg(bb, tt)))
            i = len(mf) - 8
            if role == "pub":
                P = 200 + 4 * b
                for j in range(2):
                    a = dacc(j, b)
                    flow += [(f"v_cvt_pk_bf16_f32 v{P+2*j}, v{a}, v{a+1}", i + 9), (f"v_cvt_pk_bf16_f32 v{P+2*j+1}, v{a+2}, v{a+3}", i + 9)]
                flow.append((f"buffer_store_dwordx4 {v4(P)}, v1, s[8:11], s{40 + b//4} offen offset:{(b % 4)*1024} {SC}", i + 9))
            else:
                for j in range(2):
                    va, off = lds(OWN + (2 * b + j) * 1024)
                    flow.append((f"ds_write_b128 v{va}, {v4(dacc(j, b))} offset:{off}", i + 11))
        left, over = pack(k, mf, fixed, flow)
        k.add(left)
        if role == "pub": k("s_branch dn_pub")
    k.path = None
    k("dn_pub:")
    finish_down(k, signal, wait_flags, OWN)
    return slow

BG = int(os.environ.get("BG", "2")); NBG = int(os.environ.get("NBG", "1"))

def check_live(ins):
    ACC = F1.ACC; busy = set()
    for x in ins:
        if x.kind == "mfma":
            r = int(x.dst[0][1:]); ffn1 = x.ops[1].startswith("v[")
            if x.ops[3] == "0":
                assert not (set(x.dst) & busy), f"restart of busy accumulator: {x.text}"
            if ffn1: busy |= set(x.dst)
        elif x.kind in ("dsread", "vload"):
            assert not (set(x.dst) & busy), f"load into busy accumulator: {x.text}"
        elif x.op == "v_cvt_pk_bf16_f32":
            g = int(x.src[1][1:])
            if ACC <= g < ACC + 128 and (g - ACC) % 4 == 3:
                for i in range(4): busy.discard(f"v{g-i}"); busy.discard(f"v{g+16-i}")
    assert not busy

def finish_down(k, signal, wait_flags, OWN):
    N = 'dn'
    k("s_lshl_b32 s46, s21, 9")
    k("s_add_u32 s46, s46, s59")
    k(f"s_add_u32 s46, s46, {F_DX*FLG_SET}")
    k("s_lshl_b32 s58, s47, 7")
    k("s_add_u32 s58, s58, s46")
    k("s_waitcnt lgkmcnt(0)")
    signal(k, 58, 0, "dx")
    k.add(k.stamp(11))
    srd(k, 24, 100, X1, XSZ)
    k("v_and_b32 v10, 15, v254")
    k("v_bfe_u32 v12, v254, 4, 1")
    k("v_lshrrev_b32 v13, 5, v254")
    k("v_mul_u32_u24 v14, 18432, v12")
    k("v_lshl_add_u32 v16, v13, 8, v14")
    k("v_lshl_add_u32 v16, v10, 4, v16")
    k("s_lshl_b32 s30, s48, 3")
    k("s_lshl_b32 s6, s47, 1")
    k("s_add_u32 s30, s30, s6")
    k("s_mul_i32 s31, s30, 18432")
    k("s_mul_i32 s32, s49, 9")
    k("s_add_u32 s32, s32, s18")
    k("s_lshl_b32 s33, s32, 9")
    k("s_add_u32 s33, s33, s31")
    RES = 176; PT = 188; OW = 32
    k("s_add_u32 s34, s33, 4096")
    k(f"buffer_load_dwordx4 {v4(RES)}, v16, s[24:27], s33 offen {SC}")
    k(f"buffer_load_dwordx4 {v4(RES+4)}, v16, s[24:27], s33 offen offset:2048 {SC}")
    k(f"buffer_load_dwordx4 {v4(RES+8)}, v16, s[24:27], s34 offen {SC}")
    k("s_lshl_b32 s6, s18, 11")
    k(f"s_add_u32 s6, s6, {OWN}")
    k("v_add_u32 v6, s6, v1")
    for bi in range(3):
        for j in range(2): k(f"ds_read_b128 {v4(OW + 8*bi + 4*j)}, v6 offset:{bi*8192 + j*1024}")
    k("s_cmp_eq_u32 s54, 1")
    k("s_cselect_b32 s44, 16, 256")
    k("s_cselect_b32 s45, 1152, 16")
    k("s_cselect_b32 s36, s56, s100")
    k("s_cselect_b32 s37, s57, s101")
    k(f"s_cselect_b32 s6, 0, {X2}")
    k(f"s_cselect_b32 s42, 0, {ST2SZ}")
    k("s_add_u32 s36, s36, s6"); k("s_addc_u32 s37, s37, 0"); k("s_and_b32 s37, s37, 0xffff"); k(f"s_mov_b32 s38, {XSZ}"); k("s_mov_b32 s39, 0x20000")
    k(f"s_add_u32 s40, s100, {ST2}"); k("s_addc_u32 s41, s101, 0"); k("s_and_b32 s41, s41, 0xffff"); k("s_mov_b32 s43, 0x20000")
    k("v_mul_lo_u32 v17, v10, s45")
    k("v_mul_lo_u32 v15, v13, s44")
    k("v_add3_u32 v17, v17, v15, v14")
    k("s_lshl_b32 s6, s44, 1")
    k("s_mul_i32 s16, s32, s6")
    k("s_add_u32 s16, s16, s31")
    k("s_lshl_b32 s6, s44, 3")
    k("s_add_u32 s17, s16, s6")
    k("s_add_u32 s19, s17, s6")
    k("v_lshlrev_b32 v18, 4, v10")
    k("v_lshl_add_u32 v18, v12, 11, v18")
    k("s_lshl_b32 s51, s30, 11")
    k("s_lshl_b32 s6, s49, 9")
    k("s_add_u32 s51, s51, s6")
    k("s_lshr_b32 s6, s18, 1")
    k("s_lshl_b32 s6, s6, 8")
    k("s_add_u32 s51, s51, s6")
    k("s_and_b32 s6, s18, 1")
    k("s_lshl_b32 s6, s6, 3")
    k("s_add_u32 s51, s51, s6")
    k("s_lshl_b32 s6, s21, 2")
    k("s_add_u32 s6, s6, s47")
    k("s_mul_i32 s33, s6, 27648")
    k("s_lshl_b32 s7, s18, 10")
    k("s_add_u32 s33, s33, s7")
    k("s_add_u32 s34, s33, 9216")
    k("s_add_u32 s35, s33, 18432")
    k("s_lshl_b32 s58, s48, 4")
    k("s_lshl_b32 s7, s49, 2")
    k("s_add_u32 s58, s58, s7")
    k("s_add_u32 s58, s58, s47")
    k("s_lshl_b32 s58, s58, 7")
    k("s_add_u32 s58, s58, s59")
    k(f"s_add_u32 s58, s58, {F_DN*FLG_SET}")
    k("v_add_u32 v7, 4096, v1")
    k("v_add_u32 v8, 8192, v1")
    k("v_mov_b32 v20, 0")
    k("v_mov_b32 v21, 0")
    k("v_mov_b32 v22, 0xffff0000")
    k("v_mov_b32 v23, 0x3f803f80")
    k("s_waitcnt lgkmcnt(0)")
    wait_flags(k, 46, 4, "dx")
    k.add(k.stamp(1)) if os.environ.get("FH") else None
    def ld(bi):
        for p in range(3): k(f"buffer_load_dwordx4 {v4(PT + 12*bi + 4*p)}, v{(1, 7, 8)[bi]}, s[8:11], s{33+p} offen {SC}")
    U = 64
    def fin(bi):
        X = OW + 8 * bi; Y = X + 4
        for p in range(3):
            r = PT + 12 * bi + 4 * p
            for q in range(4):
                k(f"v_lshlrev_b32 v{U+2*q}, 16, v{r+q}")
                k(f"v_and_b32 v{U+2*q+1}, v22, v{r+q}")
            for q in range(4): k(f"v_pk_add_f32 {v2(X+2*q)}, {v2(X+2*q)}, {v2(U+2*q)}")
        for q in range(4):
            k(f"v_lshlrev_b32 v{U+2*q}, 16, v{RES+4*bi+q}")
            k(f"v_and_b32 v{U+2*q+1}, v22, v{RES+4*bi+q}")
        for i in range(4): k(f"v_permlane16_swap_b32 v{X+i}, v{Y+i}")
        for q in range(4): k(f"v_pk_add_f32 {v2(X+2*q)}, {v2(X+2*q)}, {v2(U+2*q)}")
        pk = 72 + 4 * bi
        for q in range(4): k(f"v_cvt_pk_bf16_f32 v{pk+q}, v{X+2*q}, v{X+2*q+1}")
        k("s_cmp_eq_u32 s54, 0")
        k(f"s_cbranch_scc1 {N}_s{bi}")
        k(f"buffer_store_dwordx4 {v4(pk)}, v17, s[36:39], s{(16, 17, 19)[bi]} offen")
        k(f"s_branch {N}_t{bi}")
        k(f"{N}_s{bi}:")
        k(f"buffer_store_dwordx4 {v4(pk)}, v17, s[36:39], s{(16, 17, 19)[bi]} offen {SC}")
        k(f"{N}_t{bi}:")
        for q in range(4):
            k(f"v_dot2c_f32_bf16 v20, v{pk+q}, v23")
            k(f"v_dot2c_f32_bf16 v21, v{pk+q}, v{pk+q}")
    k("s_cmp_lg_u32 s18, 0")
    k(f"s_cbranch_scc1 {N}_l2")
    ld(2)
    k(f"{N}_l2:")
    ld(0); ld(1)
    k("s_cmp_lg_u32 s18, 0")
    k(f"s_cbranch_scc1 {N}_f2")
    k("s_waitcnt vmcnt(6)")
    fin(2)
    k(f"{N}_f2:")
    k("s_waitcnt vmcnt(3)")
    fin(0)
    k("s_waitcnt vmcnt(1)")
    fin(1)
    k("v_mov_b32 v24, v20")
    k("v_mov_b32 v25, v21")
    k("v_permlane32_swap_b32 v20, v24")
    k("v_permlane32_swap_b32 v21, v25")
    k("v_add_f32 v20, v20, v24")
    k("v_add_f32 v21, v21, v25")
    k("s_mov_b32 exec_hi, 0")
    k(f"buffer_store_dwordx2 v[20:21], v18, s[40:43], s51 offen {SC}")
    k("s_mov_b32 exec_hi, -1")
```

```python
from asmgen import *
from layout import *
from k_prep import srd, entry, xreduce
from k_qkv import load_stats, finish_stats, f2u, QSCALE
import k_gemmk as G
import k_ffn1 as F1
import m_attn as AT
import m_pack as PK
import m_qkv0 as Q0
import m_ffn as FF
from k_prep import code_prefetch
import math, os

GRID = 256
INPACK = True
KNAME = 'interleave_layers__sliding_block__swiglu_ffn__prompt_kernel'
SC = "sc1"
LDS = 39 * 4096 + 1024 + 576
SPIN = 150000
SLEEP = int(os.environ.get('SLEEP', '0'))
def v4(r): return f"v[{r}:{r+3}]"
def a4(r): return f"a[{r}:{r+3}]"

def make_tag(k):
    k("s_waitcnt lgkmcnt(0)")
    k("s_mul_i32 s3, s93, 0x9E3779B1")
    k("s_add_u32 s3, s3, 0x7F4A7C15")
    k("v_mov_b32 v253, s3")

def signal(k, so, nvm, lab):
    k(f"s_waitcnt vmcnt({nvm})")
    k("s_barrier")
    k("s_cmp_lg_u32 s18, 0")
    k(f"s_cbranch_scc1 {lab}_sg")
    k("s_mov_b64 exec, 1")
    k(f"buffer_store_dword v253, v252, s[96:99], s{so} offen {SC}")
    k("s_mov_b64 exec, -1")
    k(f"{lab}_sg:")

def wait_flags(k, so, n, lab, skip_if=None, keep=0):
    k("s_cmp_lg_u32 s18, 0")
    k(f"s_cbranch_scc1 {lab}_wn")
    if skip_if:
        k(f"s_cmp_eq_u32 {skip_if}, 0")
        k(f"s_cbranch_scc1 {lab}_wn")
    if n:
        k(f"v_min_u32 v255, {n-1}, v254")
        k("v_lshlrev_b32 v255, 7, v255")
    k(f"s_mov_b32 s3, {SPIN}")
    ld = lambda r: k(f"buffer_load_dword v{r}, v255, s[96:99], s{so} offen {SC}")
    ld(249); k("s_sleep 2"); ld(250); k("s_sleep 2")
    k(f"{lab}_wl:")
    for r, nx in ((249, 251), (250, 249), (251, 250)):
        ld(nx)
        k("s_waitcnt vmcnt(2)")
        k(f"v_cmp_ne_u32 vcc, v253, v{r}")
        k("s_nop 1")
        k("s_cmp_eq_u64 vcc, 0")
        k(f"s_cbranch_scc1 {lab}_wd")
    k("s_sub_u32 s3, s3, 1")
    k("s_cmp_lg_u32 s3, 0")
    k(f"s_cbranch_scc1 {lab}_wl")
    k(f"{lab}_wn:")
    k(f"s_waitcnt vmcnt({keep})")
    k(f"{lab}_wd:")
    k("s_barrier")

def emit_gk(k):
    N = "gk"; WL = 77824; WB = 32; ACC = 104; RES = 128; U = 140; PK_ = 148
    def v2(r): return f"v[{r}:{r+1}]"
    k(f"{N}_main:")
    k("s_and_b32 s20, s2, 7")
    k("s_lshr_b32 s21, s2, 3")
    k("s_lshr_b32 s16, s20, 1")
    k("s_lshl_b32 s16, s16, 3")
    k("s_lshr_b32 s22, s21, 2")
    k("s_add_u32 s16, s16, s22")
    k("s_and_b32 s17, s20, 1")
    k("s_lshl_b32 s17, s17, 2")
    k("s_and_b32 s22, s21, 3")
    k("s_add_u32 s17, s17, s22")
    k(f"s_mul_i32 s22, s17, {9*9216}")
    k(f"s_add_u32 s22, s22, {WO - WL}")
    k("s_add_u32 s12, s4, s22"); k("s_addc_u32 s13, s5, 0"); k("s_and_b32 s13, s13, 0xffff"); k(f"s_mov_b32 s14, {WL + 9*9216}"); k("s_mov_b32 s15, 0x20000")
    k("s_lshl_b32 s23, s18, 10")
    def wp(i):
        k(f"s_add_u32 m0, s23, {WL + i*4096}")
        k("buffer_load_dwordx4 v1, s[12:15], m0 offen lds")
    def resid():
        k(f"buffer_load_dwordx4 {v4(RES)}, v16, s[24:27], s33 offen {SC}")
        k(f"buffer_load_dwordx4 {v4(RES+4)}, v16, s[24:27], s48 offen {SC}")
        k(f"buffer_load_dwordx4 {v4(RES+8)}, v17, s[24:27], s49 offen {SC}")
    for i in range(11, 20): wp(i)
    assert WL + 11 * 4096 >= PK.LB + 192 * 288
    signal(k, 58, 9, "gk")
    for i in range(11): wp(i)
    k("s_cmp_lg_u32 s18, 0")
    k(f"s_cbranch_scc1 {N}_w20")
    wp(20)
    k(f"{N}_w20:")
    k("s_cmp_eq_u32 s54, 0")
    k("s_cselect_b32 s24, s94, s100"); k("s_cselect_b32 s25, s95, s101")
    assert XIN == 0
    k("s_cselect_b32 s46, 16, 256")
    k("s_cselect_b32 s47, 1152, 16")
    k("s_and_b32 s25, s25, 0xffff"); k(f"s_mov_b32 s26, {XSZ}"); k("s_mov_b32 s27, 0x20000")
    k("v_and_b32 v10, 15, v254")
    k("v_bfe_u32 v12, v254, 4, 1")
    k("v_lshrrev_b32 v13, 5, v254")
    k("v_lshl_add_u32 v12, v12, 1, v13")
    k("v_mul_lo_u32 v17, v10, s47")
    k("v_mul_lo_u32 v16, v12, s46")
    k("v_add_u32 v16, v16, v17")
    k("s_lshl_b32 s30, s16, 2")
    k("s_add_u32 s30, s30, s18")
    k("s_mul_i32 s31, s30, 18432")
    k("s_mul_i32 s32, s17, 9")
    k("s_mul_i32 s33, s32, s46")
    k("s_add_u32 s33, s33, s31")
    k("s_lshl_b32 s3, s46, 2")
    k("s_add_u32 s48, s33, s3")
    k("s_add_u32 s49, s48, s3")
    k("s_cmp_lg_u32 s54, 0")
    k(f"s_cbranch_scc1 {N}_r0")
    resid()
    k(f"{N}_r0:")
    srd(k, 8, 100, OO, XSZ)
    srd(k, 36, 100, X1, XSZ)
    srd(k, 40, 100, ST1, STSZ)
    k("v_add_u32 v2, s31, v1")
    k(f"v_add_u32 v3, {WL}, v1")
    k(f"v_add_u32 v4, {WL + 65536}, v1")
    for i in range(1, 5): k(f"s_mov_b32 s{59+i}, {4096*i}")
    k("v_lshlrev_b32 v18, 4, v10")
    k("v_lshl_add_u32 v9, v12, 8, v18")
    k("s_lshl_b32 s44, s32, 8")
    k("s_add_u32 s44, s44, s31")
    k("s_lshl_b32 s51, s30, 10")
    k("s_lshr_b32 s20, s17, 1")
    k("s_lshl_b32 s20, s20, 8")
    k("s_add_u32 s51, s51, s20")
    k("s_and_b32 s20, s17, 1")
    k("s_lshl_b32 s20, s20, 3")
    k("s_add_u32 s51, s51, s20")
    k("v_mov_b32 v20, 0")
    k("v_mov_b32 v21, 0")
    k("v_mov_b32 v22, 0xffff0000")
    k("v_mov_b32 v23, 0x3f803f80")
    k("s_lshr_b32 s45, s16, 2")
    k("s_lshl_b32 s45, s45, 12")
    k("s_add_u32 s45, s45, s59")
    k(f"s_add_u32 s45, s45, {F_ATT*FLG_SET}")
    k("s_lshl_b32 s58, s16, 3")
    k("s_add_u32 s58, s58, s17")
    k("s_lshl_b32 s58, s58, 7")
    k("s_add_u32 s58, s58, s59")
    k(f"s_add_u32 s58, s58, {F_WO*FLG_SET}")
    if not os.environ.get("NOCPF2"):
        k("s_lshr_b32 s20, s2, 3")
        k("s_lshl_b32 s20, s20, 2")
        k("s_add_u32 s20, s20, s18")
        k("s_mov_b64 exec, 7")
        code_prefetch(k, "f1_main", "code_end", 128, 20, 254, 248, 28, ahead=True)
        k("s_mov_b64 exec, -1")
    wait_flags(k, 45, 32, "gk")
    k.add(k.stamp(7))
    k("s_cmp_eq_u32 s54, 0")
    k(f"s_cbranch_scc1 {N}_r1")
    resid()
    k(f"{N}_r1:")
    def ol(ks): return (f"buffer_load_dwordx4 {a4(4*ks)}, v2, s[8:11], {'0' if ks < 4 else f's{59 + ks//4}'} offen offset:{(ks % 4)*1024} {SC}", f"o{ks}")
    NO = 11
    k.add([ol(ks) for ks in range(NO)])
    def rd(p, f):
        off = p * 9216 + f * 1024
        return (f"ds_read_b128 {v4(WB + 36*(p % 2) + 4*f)}, v{3 if off < 65536 else 4} offset:{off % 65536}", f"gw{p}_{f}")
    order = [0, 1, 2, 3, 8, 4, 5, 6, 7]
    k.add([rd(0, f) for f in order])
    k("s_cmp_lg_u32 s54, 0")
    k(f"s_cbranch_scc1 {N}_nopk2")
    k.path = "pkflag"
    k("s_lshl_b32 s3, s2, 7")
    k(f"s_add_u32 s3, s3, {F_PK*FLG_SET}")
    k("s_mov_b64 exec, 1")
    k(f"buffer_store_dword v253, v252, s[96:99], s3 offen {SC}")
    k("s_mov_b64 exec, -1")
    k.path = None
    k(f"{N}_nopk2:")
    k("WAITLG gw0_8")
    k("WAITVM o0")
    if os.environ.get("FW"): k.add(k.stamp(10))
    mf = []; fixed = {}
    def fx(i, x): fixed.setdefault(i, []).extend(x if isinstance(x, list) else [x])
    for p in range(9):
        for ks in range(2):
            K = 2 * p + ks; i0 = len(mf)
            if K: fx(i0 - 1, [f"WAITVM o{K}", f"WAITLG gw{p}_{7 if ks else 8}"])
            if K + NO < 18: fx(i0 + 4, ol(K + NO))
            for b in range(5):
                f = 4 * ks + b if b < 4 else 8; a = ACC + 4 * (b if b < 4 else 4 + ks)
                mf.append(f"v_mfma_f32_16x16x32_bf16 {v4(a)}, {v4(WB + 36*(p % 2) + 4*f)}, {a4(4*K)}, {'0' if p == 0 and (ks == 0 or b == 4) else v4(a)}")
        if p < 8:
            g = [len(mf) - 10 + x for x in (0, 1, 2, 3, 5, 6, 7, 8, 9)]
            for gg, f in zip(g, order): fx(gg, rd(p + 1, f))
    pack(k, mf, fixed, [])
    if os.environ.get("FW"): k.add(k.stamp(11))
    def finish(x, y, res, pk, va, so):
        for q in range(4):
            r = (x, x + 2, y, y + 2)[q]
            k(f"v_pk_add_f32 {v2(r)}, {v2(r)}, {v2(U + 8*res + 2*q)}")
        for q in range(4):
            r = (x, x + 2, y, y + 2)[q]
            k(f"v_cvt_pk_bf16_f32 v{pk+q}, v{r}, v{r+1}")
        k(f"buffer_store_dwordx4 {v4(pk)}, v{va}, s[36:39], s44 offen offset:{so} {SC}")
    U = 140; PKR = 164
    for q in range(12):
        k(f"v_lshlrev_b32 v{U+2*q}, 16, v{RES+q}")
        k(f"v_and_b32 v{U+2*q+1}, v22, v{RES+q}")
    for pr in range(2):
        x, y = ACC + 8 * pr, ACC + 8 * pr + 4
        for i in range(4): k(f"v_permlane16_swap_b32 v{x+i}, v{y+i}")
        finish(x, y, pr, PKR + 4 * pr, 9, 1024 * pr)
    Z = ACC + 16; T = WB
    for i in range(4): k(f"v_mov_b32 v{T+i}, v{Z+i}")
    for i in range(4): k(f"v_permlane32_swap_b32 v{Z+4+i}, v{T+i}")
    for i in (0, 2): k(f"v_pk_add_f32 {v2(Z+i)}, {v2(Z+i)}, {v2(T+i)}")
    for i in range(4): k(f"v_mov_b32 v{Z+4+i}, v{Z+i}")
    for i in range(4): k(f"v_permlane16_swap_b32 v{Z+i}, v{Z+4+i}")
    k("s_mov_b64 exec, 0xffff")
    finish(Z, Z + 4, 2, PKR + 8, 18, 2048)
    for q in range(8, 12):
        k(f"v_dot2c_f32_bf16 v20, v{PKR+q}, v23")
        k(f"v_dot2c_f32_bf16 v21, v{PKR+q}, v{PKR+q}")
    k("s_mov_b64 exec, -1")
    for q in range(8):
        k(f"v_dot2c_f32_bf16 v20, v{PKR+q}, v23")
        k(f"v_dot2c_f32_bf16 v21, v{PKR+q}, v{PKR+q}")
    xreduce(k, [20, 21], [24, 25])
    k("s_mov_b64 exec, 0xffff")
    k(f"buffer_store_dwordx2 v[20:21], v18, s[40:43], s51 offen {SC}")
    k("s_mov_b64 exec, -1")
    if os.environ.get("FW"): k.add(k.stamp(12))

def emit_qkv(k, late_setup):
    N = "q2"; LDS_ST = 39 * 4096; LDS_S = LDS_ST + 1024
    k(f"{N}_main:")
    k("s_and_b32 s6, s2, 7")
    k("s_lshr_b32 s7, s2, 3")
    k("s_mul_i32 s16, s7, 43")
    k("s_lshr_b32 s16, s16, 8")
    k("s_mul_i32 s17, s16, 6")
    k("s_sub_u32 s17, s7, s17")
    k("s_lshr_b32 s7, s6, 1")
    k("s_lshl_b32 s7, s7, 2")
    k("s_add_u32 s16, s16, s7")
    k("s_and_b32 s6, s6, 1")
    k("s_mul_i32 s6, s6, 6")
    k("s_add_u32 s17, s17, s6")
    k("s_cmp_eq_u32 s54, 0")
    k("s_waitcnt lgkmcnt(0)")
    k(f"s_cbranch_scc0 {N}_l1")
    k("s_mov_b64 s[94:95], s[8:9]")
    k("s_mov_b64 s[12:13], s[10:11]")
    k("s_cmp_ge_u32 s2, 192")
    k("s_cbranch_scc1 q0_idle")
    Q0.emit(k, late_setup)
    k("q0_idle:")
    k("s_sub_u32 s6, s2, 192")
    k("s_lshr_b32 s6, s6, 3")
    k("s_lshl_b32 s6, s6, 2")
    k("s_add_u32 s6, s6, s18")
    if not os.environ.get("NORA"):
        k("s_sub_u32 s7, s2, 192")
        k("s_lshl_b32 s7, s7, 2")
        k("s_add_u32 s7, s7, s18")
        k("s_and_b32 s9, s9, 0xffff"); k(f"s_mov_b32 s10, {XSZ}"); k("s_mov_b32 s11, 0x20000")
        k("s_and_b32 s13, s13, 0xffff"); k(f"s_mov_b32 s14, {WQKV_SZ}"); k("s_mov_b32 s15, 0x20000")
        k("v_lshlrev_b32 v2, 15, v254")
        k("s_lshl_b32 s3, s7, 7")
        k(f"s_add_u32 s3, s3, {128*3456}")
        k("buffer_load_dword v245, v2, s[12:15], s3 offen")
        k("v_and_b32 v2, 7, v254")
        k("v_mul_u32_u24 v2, 1152, v2")
        k("v_lshrrev_b32 v3, 3, v254")
        k("v_min_u32 v3, 6, v3")
        k("v_lshl_add_u32 v2, v3, 7, v2")
        k("s_mul_i32 s3, s7, 9216")
        k("buffer_load_dword v239, v2, s[8:11], s3 offen offset:256")
    code_prefetch(k, "code_mega", "code_end", 32, 6, 254, 246, 20)
    late_setup(k)
    make_tag(k)
    assert PK.NI1 >= 2
    PK.idle_jobs(k)
    k("s_branch at_main")
    k(f"{N}_l1:")
    k("s_mul_i32 s6, s17, 165888")
    k(f"s_add_u32 s6, s6, {WQKV}")
    k("s_add_u32 s12, s4, s6"); k("s_addc_u32 s13, s5, 0"); k("s_and_b32 s13, s13, 0xffff"); k("s_mov_b32 s14, 165888"); k("s_mov_b32 s15, 0x20000")
    signal(k, 58, 0, "dn")
    if not os.environ.get("DBGOUT"): k.add(k.stamp(0))
    k("s_cmp_ge_u32 s2, 192")
    k("s_cbranch_scc1 at_main")
    QPRE = int(os.environ.get("QPRE", "27")); GLKS = int(os.environ.get("GLKS", "14"))
    k("s_lshl_b32 s38, s18, 10")
    def wpiece(i): return [f"s_add_u32 m0, s38, {i*4096}", "s_nop 0", ("buffer_load_dwordx4 v1, s[12:15], m0 offen lds", "qwl")]
    for i in range(FF.QE, QPRE): k.add(wpiece(i))
    k("s_lshl_b32 s19, s16, 3")
    k("s_lshl_b32 s6, s18, 1")
    k("s_add_u32 s19, s19, s6")
    k("s_mul_i32 s6, s19, 18432")
    k("v_add_u32 v2, s6, v1")
    k("v_add_u32 v3, 18432, v2")
    for i in range(1, 5): k(f"s_mov_b32 s{32+i}, {4096*i}")
    k(f"v_add_u32 v6, {17*9216}, v1")
    k("v_and_b32 v7, 15, v254")
    k("v_lshrrev_b32 v8, 4, v254")
    k("s_lshl_b32 s6, s19, 11")
    k("v_add_u32 v9, s6, v1")
    k("v_min_u32 v10, 35, v254")
    k("v_lshlrev_b32 v10, 4, v10")
    k("s_mul_i32 s42, s17, 576")
    srd(k, 8, 100, XIN, XSZ)
    srd(k, 20, 100, STIN, ST2SZ)
    srd(k, 28, 4, SQKV, SQKV_SZ)
    srd(k, 24, 100, QKVB, 3 * XSZ)
    k("v_add_u32 v16, 65536, v1")
    k("v_add_u32 v17, 131072, v1")
    k("s_cmp_lt_u32 s17, 4")
    k(f"s_cselect_b32 s46, {f2u(QSCALE)}, 1.0")
    k("s_lshl_b32 s47, s18, 8")
    k(f"s_add_u32 s47, s47, {LDS_ST}")
    k("s_mul_i32 s45, s17, 589824")
    k("s_lshl_b32 s48, s19, 9")
    k("s_lshl_b32 s49, s16, 11")
    k(f"s_add_u32 s49, s49, {F_DN*FLG_SET}")
    k("s_lshl_b32 s58, s17, 4")
    k("s_add_u32 s58, s58, s16")
    k("s_lshl_b32 s58, s58, 7")
    k("s_add_u32 s58, s58, s59")
    R0 = 176; CS = 184; W = (32, 68); ACC = 104; SV = 196; PR = 232; WL = 144
    def wlast(b):
        so = "0" if b < 4 else f"s{32 + b // 4}"
        return (f"buffer_load_dwordx4 {a4(WL+4*b)}, v6, s[12:15], {so} offen offset:{(b % 4) * 1024}", "qwlast")
    k(f"buffer_load_dwordx4 v[{CS}:{CS+3}], v10, s[28:31], s42 offen")
    wait_flags(k, 49, 16, N)
    k.add(k.stamp(1))
    def xfrag(ks, j): return 4 * (ks * 2 + j)
    def xl(ks):
        so = "0" if ks < 4 else f"s{32 + ks // 4}"
        return [(f"buffer_load_dwordx4 {a4(xfrag(ks, j))}, v{2+j}, s[8:11], {so} offen offset:{(ks % 4) * 1024} {SC}", f"qx{ks}") for j in range(2)]
    D = 5
    for ks in range(D): k.add(xl(ks))
    for j in range(2):
        for h in range(2):
            k(f"buffer_load_dwordx4 {v4(R0 + 4*j + 240*0 + (0 if h == 0 else 64))}, v9, s[20:23], 0 offen offset:{j*2048 + h*1024} {SC}", "qst")
    k("s_cmp_ge_u32 s17, 8")
    k(f"s_cbranch_scc1 {N}_v")
    for path in ("qk", "v"):
        k.path = path
        if path == "v": k(f"{N}_v:")
        kf = Kern()
        kf(f"v_add_u32 v10, {LDS_S}, v10")
        kf(f"ds_write_b128 v10, v[{CS}:{CS+3}]")
        kf("WAITVM qst")
        for r in range(R0, R0 + 8): kf(f"v_add_f32 v{r}, v{r}, v{r+64}")
        finish_stats(kf, 2, R0)
        kf(f"v_rsq_f32 v13, v{R0+1}")
        kf(f"v_rsq_f32 v15, v{R0+5}")
        kf(f"v_sub_f32 v12, 0, v{R0}")
        kf(f"v_sub_f32 v14, 0, v{R0+4}")
        if path == "qk":
            kf("v_mul_f32 v13, s46, v13")
            kf("v_mul_f32 v15, s46, v15")
            kf(f"v_lshlrev_b32 v10, 4, v8")
            kf("v_and_b32 v18, 1, v8")
            kf("v_lshlrev_b32 v18, 9, v18")
            kf("v_lshrrev_b32 v19, 1, v8")
            kf("v_lshl_add_u32 v18, v19, 8, v18")
            kf("v_lshl_add_u32 v18, v7, 4, v18")
            kf("v_add_u32 v18, s48, v18")
        else:
            kf("v_lshl_add_u32 v11, v7, 3, s47")
            kf("ds_write_b64 v11, v[12:13]")
            kf("ds_write_b64 v11, v[14:15] offset:128")
            kf("v_lshl_add_u32 v11, v8, 5, s47")
            for j in range(2):
                for h in range(2):
                    kf(f"ds_read_b128 v[{R0+8*j+4*h}:{R0+8*j+4*h+3}], v11 offset:{j*128+h*16}", "qvs")
            kf(f"v_lshlrev_b32 v10, 2, v7")
            kf("v_add_u32 v18, s48, v1")
        kf(f"v_add_u32 v10, {LDS_S}, v10")
        def rd(ks, b):
            r = W[ks % 2] + 4 * b
            off = ks * 9216 + b * 1024
            va = 1 if off < 65536 else (16 if off < 131072 else 17)
            return (f"ds_read_b128 v[{r}:{r+3}], v{va} offset:{off % 65536}", f"qw{ks}_{b}")
        def mfma(ks, b, j):
            w = v4(W[ks % 2] + 4 * b) if ks < 17 else a4(WL + 4 * b)
            a = ACC + 4 * (j * 9 + b); x = xfrag(ks, j)
            c = "0" if ks == 0 else v4(a)
            if path == "qk": return f"v_mfma_f32_16x16x32_bf16 {v4(a)}, {w}, {a4(x)}, {c}"
            return f"v_mfma_f32_16x16x32_bf16 {v4(a)}, {a4(x)}, {w}, {c}"
        def epi(b):
            L = []; P = PR + 4 * (b % 2)
            for j in range(2):
                a = ACC + 4 * (j * 9 + b)
                if path == "qk":
                    for i in range(4): L.append(f"v_fmac_f32 v{a+i}, v{12+2*j}, v{SV+4*b+i}")
                    for i in range(4): L.append(f"v_mul_f32 v{a+i}, v{a+i}, v{13+2*j}")
                else:
                    for i in range(4): L.append(f"v_fmac_f32 v{a+i}, v{R0+8*j+2*i}, v{SV+b}")
                    for i in range(4): L.append(f"v_mul_f32 v{a+i}, v{a+i}, v{R0+8*j+2*i+1}")
                L.append(f"v_cvt_pk_bf16_f32 v{P+2*j}, v{a}, v{a+1}")
                L.append(f"v_cvt_pk_bf16_f32 v{P+2*j+1}, v{a+2}, v{a+3}")
            if path == "qk":
                L.append(f"v_permlane16_swap_b32 v{P}, v{P+2}")
                L.append(f"v_permlane16_swap_b32 v{P+1}, v{P+3}")
            L.append(f"buffer_store_dwordx4 v[{P}:{P+3}], v18, s[24:27], s45 offen {SC}")
            if b < 8: L.append("s_add_u32 s45, s45, 65536")
            return L
        for b in range(9): k.add([rd(0, b)])
        k("WAITLG qw0_2")
        k("WAITVM qx0")
        if os.environ.get("FW"): k.add(k.stamp(4))
        mf = []; fixed = {}
        def fx(i, x): fixed.setdefault(i, []).extend(x if isinstance(x, list) else [x])
        flow = [(x, 4 * 18) for x in kf.ins]
        for b in range(9):
            ins = (f"ds_read_b128 v[{SV+4*b}:{SV+4*b+3}], v10 offset:{b*64}", "sv") if path == "qk" else (f"ds_read_b32 v{SV+b}, v10 offset:{b*64}", "sv")
            flow.append((ins, 9 * 18 + 8 * b))
        for ks in range(16):
            i0 = len(mf)
            if ks > 0: fx(i0 - 2, f"WAITVM qx{ks}")
            ext = [[x] for x in xl(ks + D)] if ks + D < 18 else []
            rest = list(range(QPRE, 39)); per = -(-len(rest) // 5)
            if ks < 5: ext += [wpiece(i) for i in rest[ks * per:(ks + 1) * per]]
            if 7 <= ks < 10: ext += [[wlast(b)] for b in range(3 * (ks - 7), 3 * (ks - 6))]
            for n, x in enumerate(ext): fixed.setdefault(i0 + 1 + 2 * (n * 8 // len(ext)), []).append(Bundle(x))
            if ks == QPRE * 4 // 9 - 1:
                fx(i0 - 4, "WAITVM qwl"); fx(i0 - 3, "s_barrier")
            for b in range(9):
                i = len(mf)
                if b % 3 == 0 and i > 0: fx(i - 1, f"WAITLG qw{ks}_{b+2}")
                mf += [mfma(ks, b, 0), mfma(ks, b, 1)]
                fx(i, rd(ks + 1, b))
        fx(len(mf) - 2, "WAITVM qx17, qwlast")
        for b in range(9):
            i = len(mf)
            if b % 3 == 0: fx(i - 1, f"WAITLG qw16_{b+2}")
            mf += [mfma(16, b, 0), mfma(16, b, 1), mfma(17, b, 0), mfma(17, b, 1)]
            flow += [(x, i + 5) for x in epi(b)]
        left, over = pack(k, mf, fixed, flow)
        if os.environ.get("FW"): k.add(k.stamp(5))
        k.add(left)
        if os.environ.get("FW"): k.add(k.stamp(6))
        if path == "qk": k("s_branch at_main")
    k.path = None

def gen():
    k = Kern(); k.name = "mega"
    entry(k, KNAME)
    k("s_load_dwordx2 s[4:5], s[0:1], 72")
    k("s_load_dwordx4 s[8:11], s[0:1], 0")
    k("s_load_dwordx2 s[56:57], s[0:1], 56")
    k(f"s_cmp_ge_u32 s2, {GRID}")
    k("s_cbranch_scc1 mega_exit")
    k.add(k.stamp(0))
    k("v_lshrrev_b32 v8, 6, v0")
    k("v_and_b32 v254, 63, v0")
    k("v_readfirstlane_b32 s18, v8")
    k("v_lshlrev_b32 v1, 4, v254")
    k("s_mov_b32 s54, 0")
    def late_setup(k):
        k(f"s_add_u32 s6, s4, {EPOCH}")
        k("s_addc_u32 s7, s5, 0")
        k("s_load_dword s93, s[6:7], 0")
        k("s_mov_b64 s[100:101], s[4:5]")
        srd(k, 96, 4, FLG, EPOCH + 4 - FLG)
        k("v_mov_b32 v252, 0")
        k("s_mov_b32 s59, 0")
    emit_qkv(k, late_setup)
    def after_stage(k, part):
        if part == "tag": return make_tag(k)
        if part == "setup":
            k(f"s_add_u32 s50, s2, {PK.J_ATT}")
            if PK.SWAP:
                k(f"s_add_u32 s3, s2, {PK.J_GU}")
                k(f"s_cmp_lt_u32 s2, {PK.J_WD - PK.J_GU}")
                k("s_cselect_b32 s50, s3, s50")
            k("s_cmp_lg_u32 s54, 0")
            k(f"s_cselect_b32 s50, {PK.J_END}, s50")
            k("s_waitcnt lgkmcnt(0)")
            PK.setup(k, "pa")
            return
        if part == 0:
            k("v_min_u32 v255, 8, v254")
            k("v_lshlrev_b32 v255, 7, v255")
            k(f"s_mov_b32 s35, {F_WOPK*FLG_SET}")
            k(f"buffer_load_dword v246, v255, s[96:99], s35 offen {SC}")
            k(f"s_cmp_ge_u32 s50, {PK.J_END}")
            k("s_cbranch_scc1 at_nojob")
            k.path = "job"
            PK.loads(k, "pa", 0)
            k("s_waitcnt vmcnt(15)")
            k("s_branch at_job")
            k.path = None
            k("at_nojob:")
            k("s_waitcnt vmcnt(6)")
            k("at_job:")
            return
        if isinstance(part, tuple):
            L = f"at_h{part[1]}"
            k("s_waitcnt vmcnt(9)")
            k(f"s_mov_b32 s3, {SPIN}")
            k(f"s_cmp_lt_u32 s50, {PK.J_END}")
            k(f"s_cbranch_scc1 {L}_chk")
            k(f"{L}_wl:")
            k("s_waitcnt vmcnt(0)")
            k(f"{L}_chk:")
            k("v_cmp_ne_u32 vcc, v253, v246")
            k("s_nop 1")
            k("s_cmp_eq_u64 vcc, 0")
            k(f"s_cbranch_scc1 {L}_wd")
            k(f"buffer_load_dword v246, v255, s[96:99], s35 offen {SC}")
            k("s_sub_u32 s3, s3, 1")
            k("s_cmp_lg_u32 s3, 0")
            k(f"s_cbranch_scc1 {L}_wl")
            k("s_waitcnt vmcnt(0)")
            k(f"{L}_wd:")
            k(f"s_cmp_ge_u32 s50, {PK.J_END}")
            k(f"s_cbranch_scc1 {L}_nj")
            PK.loads(k, L, 1)
            k(f"{L}_nj:")
            return
        k(f"s_cmp_ge_u32 s50, {PK.J_END}")
        k("s_cbranch_scc1 at_nojob4")
        k(f"s_mov_b32 s50, {PK.J_END}")
        k("s_waitcnt vmcnt(0) lgkmcnt(0)")
        PK.finish(k, "pa")
        k("at_nojob4:")
    if os.environ.get("STOP") == "q0":
        k("at_main:"); k("s_branch mega_end"); AT.PFX = "xx"
    redo = AT.emit(k, signal, wait_flags, SC, after_stage)
    emit_gk(k)
    slow = FF.emit(k, signal, wait_flags)
    k("s_cmp_eq_u32 s54, 0")
    k("s_cbranch_scc0 mega_fin")
    if os.environ.get("STOP") == "l1": k("s_branch mega_fin")
    k("s_mov_b32 s54, 1")
    if LSTRIDE:
        k(f"s_add_u32 s100, s100, {LSTRIDE}")
        k("s_addc_u32 s101, s101, 0")
    k(f"s_mov_b32 s59, {F_LAYER*FLG_SET}")
    k("s_branch q2_main")
    k.add(slow)
    redo(k)
    k("mega_fin:")
    k("s_or_b32 s3, s2, s18")
    k("s_cmp_lg_u32 s3, 0")
    k("s_cbranch_scc1 mega_end")
    k("s_add_u32 s3, s93, 1")
    k("v_mov_b32 v251, s3")
    k(f"s_mov_b32 s3, {EPOCH - FLG}")
    k("s_mov_b64 exec, 1")
    k(f"buffer_store_dword v251, v252, s[96:99], s3 offen {SC}")
    k("mega_end:")
    k.stamp_out()
    k("mega_exit:")
    k("s_endpgm")
    k.script = True
    return k, [(KNAME, GRID, 256, LDS)], descriptor(KNAME, 256, 256, 102), [KNAME]
```

```python
from asmgen import *
from layout import *

def srd(k, d, p, off, size):
    if off:
        k(f"s_add_u32 s{d}, s{p}, {off}")
        k(f"s_addc_u32 s{d+1}, s{p+1}, 0")
        k(f"s_and_b32 s{d+1}, s{d+1}, 0xffff")
    else:
        k(f"s_mov_b32 s{d}, s{p}")
        k(f"s_and_b32 s{d+1}, s{p+1}, 0xffff")
    k(f"s_mov_b32 s{d+2}, {size}")
    k(f"s_mov_b32 s{d+3}, 0x20000")

def entry(k, name):
    k(f".globl {name}")
    k(".p2align 8")
    k(f".type {name},@function")
    k(f"{name}:")

_pfn = [0]
def code_prefetch(k, lo, hi, nslices, slice_sreg, lane_v, tmp_v, tmp_s, ahead=False):
    import os
    if os.environ.get("NOCPF"): return
    _pfn[0] += 1; L = f"cpf{_pfn[0]}"
    k(f"s_getpc_b64 s[{tmp_s}:{tmp_s+1}]")
    k(f"{L}:")
    if ahead:
        k(f"s_add_u32 s{tmp_s}, s{tmp_s}, {lo}-{L}")
        k(f"s_addc_u32 s{tmp_s+1}, s{tmp_s+1}, 0")
    else:
        k(f"s_sub_u32 s{tmp_s}, s{tmp_s}, {L}-{lo}")
        k(f"s_subb_u32 s{tmp_s+1}, s{tmp_s+1}, 0")
    k(f"v_mul_u32_u24 v{tmp_v}, {nslices}, v{lane_v}")
    k(f"v_add_u32 v{tmp_v}, s{slice_sreg}, v{tmp_v}")
    k(f"v_lshlrev_b32 v{tmp_v}, 7, v{tmp_v}")
    k(f"v_min_u32 v{tmp_v}, {hi}-{lo}-4, v{tmp_v}")
    k(f"global_load_dword v{tmp_v}, v{tmp_v}, s[{tmp_s}:{tmp_s+1}]")

def xreduce(k, regs, tmp, op="v_add_f32"):
    for sw in ("v_permlane16_swap_b32", "v_permlane32_swap_b32"):
        for r, t in zip(regs, tmp): k(f"v_mov_b32 v{t}, v{r}")
        for r, t in zip(regs, tmp): k(f"{sw} v{r}, v{t}")
        for r, t in zip(regs, tmp): k(f"{op} v{r}, v{r}, v{t}")

import os
NT = os.environ.get("PNT", "nt")
N_X, N_QKV, N_WO, N_GU, N_WD = 64, 36, 9, 216, 72
PREP_GRID = N_X + N_QKV + N_WO + N_GU + N_WD
PREP_LDS = 64 * 1184

for _t in range(192): assert (_t * 171) >> 10 == _t // 6

FFN0 = N_X + N_QKV + N_WO
PREP0_GRID = FFN0

def jump_to_pack(k, unit_expr_lines, repeats, stride):
    for l in unit_expr_lines: k(l)
    k(f"s_mov_b32 s57, {repeats}")
    k(f"s_mov_b32 s58, {stride}")
    k("s_branch prep_unit")

def gen_prep():
    import os
    SPLIT = not os.environ.get("NOSPLIT")
    NT_WG = 128 if SPLIT and not os.environ.get("NOTOUCH") else 0
    grid = PREP0_GRID + 8 + NT_WG if SPLIT else PREP_GRID
    k = Kern(); N = "prep"; k.name = N
    entry(k, "prep_kernel")
    k(f"s_cmp_ge_u32 s2, {grid}")
    k(f"s_cbranch_scc1 {N}_end")
    assert FLG_SZ // 4096 <= grid
    k(f"s_cmp_ge_u32 s2, {FLG_SZ // 4096}")
    k(f"s_cbranch_scc1 {N}_noz")
    k("s_load_dwordx2 s[16:17], s[0:1], 72")
    for r in range(4, 8): k(f"v_mov_b32 v{r}, 0")
    k("v_lshlrev_b32 v3, 4, v0")
    k("s_lshl_b32 s3, s2, 12")
    k("s_waitcnt lgkmcnt(0)")
    srd(k, 24, 16, FLG, FLG_SZ)
    k("buffer_store_dwordx4 v[4:7], v3, s[24:27], s3 offen")
    k(f"{N}_noz:")
    if NT_WG:
        k(f"s_cmp_lt_u32 s2, {PREP0_GRID + 8}")
        k(f"s_cbranch_scc1 {N}_not")
        k("s_load_dwordx4 s[12:15], s[0:1], 32")
        k(f"s_sub_u32 s3, s2, {PREP0_GRID + 8}")
        k("v_lshlrev_b32 v3, 7, v0")
        k("s_and_b32 s4, s3, 63")
        k("s_mul_i32 s4, s4, 82944")
        k("s_cmp_lt_u32 s3, 64")
        k("s_waitcnt lgkmcnt(0)")
        k("s_cselect_b32 s12, s12, s14")
        k("s_cselect_b32 s13, s13, s15")
        k("s_add_u32 s12, s12, s4")
        k("s_addc_u32 s13, s13, 0")
        k("s_and_b32 s13, s13, 0xffff")
        k("s_mov_b32 s14, 82944")
        k("s_mov_b32 s15, 0x20000")
        for j in range(3):
            k(f"s_mov_b32 s3, {j*32768}")
            k(f"buffer_load_dword v{4+j}, v3, s[12:15], s3 offen")
        k("s_endpgm")
        k(f"{N}_not:")
    k("s_mov_b32 s56, s2")
    if SPLIT:
        k(f"s_cmp_ge_u32 s2, {FFN0}")
        k(f"s_cselect_b32 s57, {N_GU + 64}, 0")
        k("s_add_u32 s56, s56, s57")
    k("s_mov_b32 s57, 1")
    k("s_mov_b32 s58, 0")
    k("prep_unit:")
    k.add(k.stamp(0))
    k("s_load_dwordx4 s[4:7], s[0:1], 0")
    k("s_load_dwordx2 s[8:9], s[0:1], 16")
    k("s_load_dwordx4 s[12:15], s[0:1], 32")
    k("s_load_dwordx2 s[10:11], s[0:1], 48")
    k("s_load_dwordx2 s[16:17], s[0:1], 72")
    k("v_lshrrev_b32 v1, 6, v0")
    k("v_and_b32 v2, 63, v0")
    k("v_readfirstlane_b32 s18, v1")
    k("v_lshlrev_b32 v3, 4, v2")
    k("v_mov_b32 v4, 0x3f803f80")
    k("v_lshrrev_b32 v5, 5, v2")
    k("v_lshlrev_b32 v5, 4, v5")
    k("v_bfe_u32 v6, v2, 4, 1")
    k("v_lshl_add_u32 v5, v6, 2, v5")
    k("v_bfe_u32 v6, v2, 2, 2")
    k("v_add_u32 v5, v5, v6")
    k("v_and_b32 v6, 3, v2")
    k("s_waitcnt lgkmcnt(0)")
    k.add(k.stamp(1))
    srd(k, 24, 16, 0, WS_END)
    k(f"s_cmp_lt_u32 s56, {N_X}")
    k(f"s_cbranch_scc1 {N}_x")
    k(f"s_cmp_lt_u32 s56, {N_X+N_QKV}")
    k(f"s_cbranch_scc1 {N}_qkv")
    k(f"s_cmp_lt_u32 s56, {N_X+N_QKV+N_WO}")
    k(f"s_cbranch_scc1 {N}_wo")
    k(f"s_cmp_lt_u32 s56, {N_X+N_QKV+N_WO+N_GU}")
    k(f"s_cbranch_scc1 {N}_gu")

    def perm(dst, src, tmp):
        k(f"v_and_b32 v{dst}, 0xfffffff3, v{src}")
        k(f"v_bfe_u32 v{tmp}, v{src}, 2, 1")
        k(f"v_lshl_add_u32 v{dst}, v{tmp}, 3, v{dst}")
        k(f"v_bfe_u32 v{tmp}, v{src}, 3, 1")
        k(f"v_lshl_add_u32 v{dst}, v{tmp}, 2, v{dst}")

    def frags(items, stride, tagp):
        for i, (vb, imm, so, dimm, cs) in enumerate(items):
            r = 32 + 4 * (i % 18)
            k(f"ds_read_b64_tr_b16 v[{r}:{r+1}], v{vb} offset:{imm}", f"{tagp}{i}")
            k(f"ds_read_b64_tr_b16 v[{r+2}:{r+3}], v{vb} offset:{imm + 8*stride}", f"{tagp}{i}")
            if i >= 3:
                j = i - 3
                fin(items[j], j, tagp)
        for j in range(max(0, len(items) - 3), len(items)): fin(items[j], j, tagp)
    def fin(item, j, tagp):
        vb, imm, so, dimm, cs = item
        r = 32 + 4 * (j % 18)
        k(f"WAITLG {tagp}{j}")
        k(f"buffer_store_dwordx4 v[{r}:{r+3}], v3, s[24:27], s{so} offen offset:{dimm}")
        if cs is not None:
            for q in range(4): k(f"v_dot2c_f32_bf16 v{cs}, v{r+q}, v4")

    k(f"s_sub_u32 s20, s56, {N_X+N_QKV+N_WO+N_GU}")
    srd(k, 28, 10, 0, WD_SZ)
    k("v_lshrrev_b32 v7, 3, v0")
    k("s_lshl_b32 s21, s20, 6")
    k("v_add_u32 v8, s21, v7")
    k("v_add_u32 v9, 32, v8")
    k(f"s_mul_i32 s22, s20, 9216")
    k(f"s_add_u32 s22, s22, {WD}")
    k(f"s_mov_b32 s23, {72*9216}")
    k(f"s_branch {N}_dn_common")
    k(f"{N}_wo:")
    k(f"s_sub_u32 s20, s56, {N_X+N_QKV}")
    srd(k, 28, 8, 0, WO_SZ)
    k("v_lshrrev_b32 v7, 3, v0")
    k("s_lshl_b32 s21, s20, 6")
    k(f"s_mul_i32 s22, s20, 9216")
    k(f"s_add_u32 s22, s22, {WO}")
    k(f"s_mov_b32 s23, {9*9216}")
    for jj, dst in ((0, 8), (1, 9)):
        k(f"v_add_u32 v10, s21, v7")
        if jj: k("v_add_u32 v10, 32, v10")
        k("v_lshrrev_b32 v11, 4, v10")
        k("v_mul_u32_u24 v12, 18, v11")
        k("v_and_b32 v13, 15, v10")
        k("v_add_u32 v12, v12, v13")
        k("v_and_b32 v13, 1, v11")
        k("v_lshl_add_u32 v12, v13, 1, v12")
        k("v_subrev_u32 v11, 512, v10")
        k("v_lshrrev_b32 v11, 1, v11")
        k("v_and_b32 v11, 31, v11")
        k("v_mul_u32_u24 v13, 18, v11")
        k("v_and_b32 v14, 1, v10")
        k("v_add_u32 v13, v13, v14")
        k("v_and_b32 v14, 1, v11")
        k("v_xor_b32 v14, 1, v14")
        k("v_lshl_add_u32 v13, v14, 4, v13")
        k("v_cmp_gt_u32 vcc, 512, v10")
        k(f"v_cndmask_b32 v{dst}, v13, v12, vcc")
    k(f"{N}_dn_common:")
    k("v_and_b32 v10, 7, v0")
    k("v_lshlrev_b32 v10, 4, v10")
    k("v_mul_u32_u24 v8, 1152, v8")
    k("v_mul_u32_u24 v9, 1152, v9")
    k("v_add_u32 v8, v8, v10")
    k("v_add_u32 v9, v9, v10")
    for jj in range(2):
        for jc in range(9):
            r = 32 + 4 * (jj * 9 + jc)
            k(f"buffer_load_dwordx4 v[{r}:{r+3}], v{8+jj}, s[28:31], 0 offen offset:{jc*128} {NT}", f"dl{jj*9+jc}")
    perm(11, 7, 12)
    k("v_mul_u32_u24 v11, 1184, v11")
    k("v_add_u32 v11, v11, v10")
    for jj in range(2):
        for jc in range(9):
            r = 32 + 4 * (jj * 9 + jc)
            k(f"WAITVM dl{jj*9+jc}")
            k(f"ds_write_b128 v11, v[{r}:{r+3}] offset:{jj*32*1184 + jc*128}")
    k("v_mul_u32_u24 v12, 1184, v5")
    k("s_mul_i32 s21, s18, 288")
    k("v_add_u32 v12, s21, v12")
    k("v_and_b32 v14, 1, v6")
    k("v_lshl_add_u32 v13, v14, 3, v12")
    k("v_lshrrev_b32 v14, 1, v6")
    k(f"v_mul_u32_u24 v14, {32*1184}, v14")
    k("v_add_u32 v13, v13, v14")
    k("v_lshl_add_u32 v12, v6, 3, v12")
    k("s_lshl_b32 s21, s18, 1")
    k("s_mul_i32 s21, s21, s23")
    k("s_add_u32 s32, s22, s21")
    k("s_add_u32 s33, s32, 4096")
    k("s_add_u32 s34, s32, 8192")
    k("s_add_u32 s35, s32, s23")
    k("s_add_u32 s36, s35, 4096")
    k("s_add_u32 s37, s35, 8192")
    k("s_waitcnt lgkmcnt(0)")
    k("s_barrier")
    items = []
    for nn in range(2):
        for ks in range(2):
            for b in range(4):
                items.append((12, 144*nn + 32*b + ks*32*1184, 32 + 3*nn + ks, b*1024, None))
        items.append((13, 144*nn + 128, 32 + 3*nn + 2, 0, None))
    k.add(k.stamp(2))
    frags(items, 1184, "df")
    k.stamp_out(16)
    k("s_endpgm")

    k(f"{N}_gu:")
    k(f"s_sub_u32 s20, s56, {N_X+N_QKV+N_WO}")
    k("s_cmp_ge_u32 s20, 108")
    k("s_cselect_b32 s21, 1, 0")
    k("s_cselect_b32 s4, s14, s12")
    k("s_cselect_b32 s5, s15, s13")
    k("s_mul_i32 s22, s21, 108")
    k("s_sub_u32 s20, s20, s22")
    k("s_mul_i32 s22, s20, 43691")
    k("s_lshr_b32 s22, s22, 17")
    k("s_mul_i32 s23, s22, 3")
    k("s_sub_u32 s23, s20, s23")
    srd(k, 28, 4, 0, 576 * 4608 * 2)
    k("v_lshrrev_b32 v7, 4, v0")
    k("v_and_b32 v10, 15, v0")
    k("v_lshlrev_b32 v10, 4, v10")
    k("v_mul_u32_u24 v8, 9216, v7")
    k("v_add_u32 v8, v8, v10")
    k(f"s_mul_i32 s32, s23, {192*9216}")
    k("s_lshl_b32 s33, s22, 8")
    k("s_add_u32 s32, s32, s33")
    for j in range(12):
        r = 32 + 4 * j
        k(f"buffer_load_dwordx4 v[{r}:{r+3}], v8, s[28:31], s32 offen {NT}", f"gl{j}")
        if j < 11: k(f"s_add_u32 s32, s32, {16*9216}")
    perm(11, 7, 12)
    k("v_mul_u32_u24 v11, 288, v11")
    k("v_add_u32 v11, v11, v10")
    for j in range(12):
        r = 32 + 4 * j
        k(f"WAITVM gl{j}")
        k(f"ds_write_b128 v11, v[{r}:{r+3}] offset:{j*16*288}")
    k("v_mul_u32_u24 v12, 288, v5")
    k("s_lshl_b32 s33, s18, 6")
    k("v_add_u32 v12, s33, v12")
    k("v_lshl_add_u32 v12, v6, 3, v12")
    k("s_lshl_b32 s32, s22, 3")
    k("s_lshl_b32 s33, s18, 1")
    k("s_add_u32 s38, s32, s33")
    k("s_mul_i32 s32, s38, 18")
    k("s_mul_i32 s33, s23, 6")
    k("s_add_u32 s32, s32, s33")
    k("s_lshl_b32 s32, s32, 11")
    k("s_lshl_b32 s33, s21, 10")
    k("s_add_u32 s32, s32, s33")
    k(f"s_add_u32 s32, s32, {WGU}")
    k("s_add_u32 s33, s32, 4096")
    k("s_add_u32 s34, s32, 8192")
    k(f"s_add_u32 s35, s32, {18*2048}")
    k("s_add_u32 s36, s35, 4096")
    k("s_add_u32 s37, s35, 8192")
    k("v_mov_b32 v16, 0")
    k("v_mov_b32 v17, 0")
    k("s_waitcnt lgkmcnt(0)")
    k("s_barrier")
    items = []
    for bb in range(2):
        for ks in range(6):
            items.append((12, 32*bb + ks*32*288, 32 + 3*bb + ks//2, (ks % 2)*2048, 16 + bb))
    k.add(k.stamp(2))
    frags(items, 288, "gf")
    xreduce(k, [16, 17], [18, 19])
    k("s_mul_i32 s32, s23, 36864")
    k("s_lshl_b32 s33, s38, 7")
    k("s_add_u32 s32, s32, s33")
    k("s_lshl_b32 s33, s21, 6")
    k("s_add_u32 s32, s32, s33")
    k(f"s_add_u32 s32, s32, {SGU}")
    k("v_and_b32 v18, 15, v2")
    k("v_lshlrev_b32 v18, 2, v18")
    k("buffer_store_dword v16, v18, s[24:27], s32 offen")
    k("buffer_store_dword v17, v18, s[24:27], s32 offen offset:128")
    k.stamp_out(16)
    k("s_mov_b64 exec, -1")
    k("s_sub_u32 s57, s57, 1")
    k("s_cmp_eq_u32 s57, 0")
    k(f"s_cbranch_scc1 {N}_end")
    k("s_add_u32 s56, s56, s58")
    k("s_barrier")
    k("s_branch prep_unit")

    k(f"{N}_qkv:")
    k(f"s_sub_u32 s20, s56, {N_X}")
    k("s_mul_i32 s22, s20, 43691")
    k("s_lshr_b32 s22, s22, 17")
    k("s_mul_i32 s23, s22, 3")
    k("s_sub_u32 s23, s20, s23")
    srd(k, 28, 6, 0, WQKV_SZ)
    k("s_cmp_eq_u32 s18, 3")
    k(f"s_cbranch_scc1 {N}_qkv_noload")
    k("v_mul_u32_u24 v7, 171, v0")
    k("v_lshrrev_b32 v7, 10, v7")
    k("v_mul_u32_u24 v10, 6, v7")
    k("v_sub_u32 v10, v0, v10")
    k("v_lshlrev_b32 v10, 4, v10")
    k("v_mul_u32_u24 v8, 3456, v7")
    k("v_add_u32 v8, v8, v10")
    k(f"s_mul_i32 s32, s23, {192*3456}")
    k("s_mul_i32 s33, s22, 288")
    k("s_add_u32 s32, s32, s33")
    for jj in range(6):
        for jc in range(3):
            r = 32 + 4 * (jj * 3 + jc)
            k(f"buffer_load_dwordx4 v[{r}:{r+3}], v8, s[28:31], s32 offen offset:{jc*96}", f"ql{jj*3+jc}")
        if jj < 5: k(f"s_add_u32 s32, s32, {32*3456}")
    perm(11, 7, 12)
    k("v_mul_u32_u24 v11, 288, v11")
    k("v_add_u32 v11, v11, v10")
    for jj in range(6):
        for jc in range(3):
            r = 32 + 4 * (jj * 3 + jc)
            k(f"WAITVM ql{jj*3+jc}")
            k(f"ds_write_b128 v11, v[{r}:{r+3}] offset:{jj*32*288 + jc*96}")
    k(f"{N}_qkv_noload:")
    k("v_mul_u32_u24 v13, 288, v5")
    k("s_mul_i32 s33, s18, 72")
    k("v_add_u32 v12, s33, v13")
    k("v_lshl_add_u32 v12, v6, 3, v12")
    k("v_mul_u32_u24 v14, 72, v6")
    k("v_add_u32 v13, v13, v14")
    k("s_mul_i32 s32, s22, 18")
    k("s_mul_i32 s33, s23, 6")
    k("s_add_u32 s32, s32, s33")
    k("s_mul_i32 s32, s32, 9216")
    k(f"s_add_u32 s39, s32, {WQKV}")
    k("s_lshl_b32 s33, s18, 11")
    k("s_add_u32 s32, s39, s33")
    for ks in range(1, 6):
        k(f"s_add_u32 s{32+ks}, s32, {ks*9216}")
    k("s_add_u32 s40, s39, 8192")
    for ks in range(1, 6):
        k(f"s_add_u32 s{40+ks}, s40, {ks*9216}")
    k("v_mov_b32 v16, 0")
    k("v_mov_b32 v17, 0")
    k("v_mov_b32 v20, 0")
    k("s_waitcnt lgkmcnt(0)")
    k("s_barrier")
    items = []
    for bb in range(2):
        for ks in range(6):
            items.append((12, 40*bb + ks*32*288, 32 + ks, bb*1024, 16 + bb))
    k.add(k.stamp(2))
    frags(items, 288, "qf")
    xreduce(k, [16, 17], [18, 19])
    k("s_mul_i32 s46, s23, 6912")
    k("s_mul_i32 s47, s22, 576")
    k("s_add_u32 s46, s46, s47")
    k(f"s_add_u32 s46, s46, {SQKV}")
    k("s_lshl_b32 s47, s18, 7")
    k("s_add_u32 s47, s47, s46")
    k("v_and_b32 v18, 15, v2")
    k("v_lshlrev_b32 v18, 2, v18")
    k("buffer_store_dword v16, v18, s[24:27], s47 offen")
    k("buffer_store_dword v17, v18, s[24:27], s47 offen offset:64")
    k.stamp_out(16)
    k("s_mov_b64 exec, -1")
    k("s_cmp_lg_u32 s18, 3")
    k(f"s_cbranch_scc1 {N}_end")
    k("s_waitcnt vmcnt(0)")
    items = [(13, 32 + ks*32*288, 40 + ks, 0, 20) for ks in range(6)]
    frags(items, 288, "rf")
    xreduce(k, [20], [19])
    k("buffer_store_dword v20, v18, s[24:27], s46 offen offset:512")
    k("s_endpgm")

    k(f"{N}_x:")
    k("s_lshr_b32 s20, s56, 3")
    k("s_lshl_b32 s20, s20, 2")
    k("s_add_u32 s20, s20, s18")
    code_prefetch(k, "code_mega", "code_end", 32, 20, 2, 30, 22)
    srd(k, 28, 4, 0, XSZ)
    k("s_lshl_b32 s20, s56, 1")
    k("s_lshr_b32 s21, s18, 1")
    k("s_add_u32 s20, s20, s21")
    k("s_and_b32 s22, s18, 1")
    k("v_lshrrev_b32 v7, 2, v2")
    k("v_and_b32 v8, 3, v2")
    k("v_mul_u32_u24 v9, 1152, v7")
    k("v_lshl_add_u32 v9, v8, 4, v9")
    k("s_mul_i32 s21, s20, 18432")
    k("s_mul_i32 s23, s22, 576")
    k("s_add_u32 s23, s23, s21")
    for j in range(9):
        r = 32 + 4 * j
        k(f"buffer_load_dwordx4 v[{r}:{r+3}], v9, s[28:31], s23 offen offset:{j*64}", f"xl{j}")
    k("s_mul_i32 s23, s18, 9792")
    k("v_mul_u32_u24 v10, 272, v8")
    k("v_lshl_add_u32 v10, v7, 4, v10")
    k("v_add_u32 v10, s23, v10")
    k("v_and_b32 v7, 15, v2")
    k("v_lshrrev_b32 v8, 4, v2")
    k("v_mul_u32_u24 v11, 272, v8")
    k("v_lshl_add_u32 v11, v7, 4, v11")
    k("v_add_u32 v11, s23, v11")
    k("s_mul_i32 s23, s22, 9216")
    k("s_add_u32 s32, s21, s23")
    if XF0: k(f"s_add_u32 s32, s32, {XF0}")
    for i in range(1, 3): k(f"s_add_u32 s{32+i}, s32, {4096*i}")
    k("v_mov_b32 v16, 0")
    k("v_mov_b32 v17, 0")
    for j in range(9):
        r = 32 + 4 * j
        k(f"WAITVM xl{j}")
        k(f"ds_write_b128 v10, v[{r}:{r+3}] offset:{j*1088}")
        k(f"ds_read_b128 v[{r+36}:{r+39}], v11 offset:{j*1088}", f"xr{j}")
    for j in range(9):
        r = 68 + 4 * j
        k(f"WAITLG xr{j}")
        k(f"buffer_store_dwordx4 v[{r}:{r+3}], v3, s[24:27], s{32 + j//4} offen offset:{(j%4)*1024}")
        for q in range(4):
            k(f"v_dot2c_f32_bf16 v16, v{r+q}, v4")
            k(f"v_dot2c_f32_bf16 v17, v{r+q}, v{r+q}")
    xreduce(k, [16, 17], [18, 19])
    k("v_cmp_eq_u32 vcc, 0, v8")
    k("v_cndmask_b32 v16, 0, v16, vcc")
    k("v_cndmask_b32 v17, 0, v17, vcc")
    k("s_lshl_b32 s21, s20, 10")
    k("s_lshl_b32 s22, s22, 3")
    k("s_add_u32 s21, s21, s22")
    k(f"s_add_u32 s21, s21, {ST0}")
    k("buffer_store_dwordx2 v[16:17], v3, s[24:27], s21 offen")
    k.stamp_out(16)
    k(f"{N}_end:")
    k("s_endpgm")
    launches = [("prep_kernel", grid, 256, PREP_LDS)]
    desc = descriptor("prep_kernel", 104, 0)
    return k, launches, desc, ["prep_kernel"]
```

```python
from asmgen import *
from layout import *
from k_prep import srd, xreduce, code_prefetch
from k_qkv import load_stats, finish_stats, f2u
import k_ffn1 as F1
import math, os
SC = "sc1"; SPIN = 150000
def v4(r): return f"v[{r}:{r+3}]"
def v2(r): return f"v[{r}:{r+1}]"
def a4(r): return f"a[{r}:{r+3}]"
GRP = 36864
def dacc(j, b):
    t = j * 9 + b
    return 16 + 4 * t if t < 14 else 104 + 4 * (t - 14)
def dw(buf, b):
    return 40 + 4 * (buf * 9 + b)
def lds(off): return (1, 6, 7)[off // 65536], off % 65536
def slot(g): return ((g + 1) % 4) * GRP

def emit(k, signal, wait_flags):
    CH = F1.CH; LDS_S = F1.LDS_S; XV, WB, ACC, NMEAN, CC, QQ, SG, TT, PP = F1.XV, F1.WB, F1.ACC, F1.NMEAN, F1.CC, F1.QQ, F1.SG, F1.TT, F1.PP
    xop, accr, rd = F1.xop, F1.accr, F1.rd
    F1.STORE_MOD = SC
    k("f1_main:")
    k("s_and_b32 s6, s2, 7")
    k("s_lshr_b32 s7, s2, 3")
    k("s_and_b32 s16, s6, 1")
    k("s_lshl_b32 s16, s16, 2")
    k("s_lshr_b32 s17, s7, 3")
    k("s_add_u32 s16, s16, s17")
    k("s_lshr_b32 s17, s6, 1")
    k("s_lshl_b32 s17, s17, 3")
    k("s_and_b32 s7, s7, 7")
    k("s_add_u32 s17, s17, s7")
    k("s_mul_i32 s39, s18, 9216")
    k(f"s_mul_i32 s6, s17, {9*CH}")
    k(f"s_add_u32 s6, s6, {WGU}")
    k("s_add_u32 s12, s4, s6"); k("s_addc_u32 s13, s5, 0"); k("s_and_b32 s13, s13, 0xffff"); k(f"s_mov_b32 s14, {9*CH}")
    if True:
        k("s_or_b32 s3, s54, s18")
        k("s_cmp_lg_u32 s3, 0")
        k("s_cbranch_scc1 f1_pkok")
        k("v_lshlrev_b32 v255, 7, v254")
        k(f"s_mov_b32 s3, {SPIN}")
        for j in range(4): k(f"s_mov_b32 s{40+j}, {F_PK*FLG_SET + j*8192}")
        k("f1_pk_wl:")
        for j in range(4): k(f"buffer_load_dword v{244+j}, v255, s[96:99], s{40+j} offen {SC}")
        k("s_waitcnt vmcnt(0)")
        for j in range(4): k(f"v_xor_b32 v{244+j}, v{244+j}, v253")
        k("v_or3_b32 v244, v244, v245, v246")
        k("v_or_b32 v244, v244, v247")
        k("v_cmp_ne_u32 vcc, 0, v244")
        k("s_nop 1")
        k("s_cmp_eq_u64 vcc, 0")
        k("s_cbranch_scc1 f1_pkok")
        k("s_sub_u32 s3, s3, 1")
        k("s_cmp_lg_u32 s3, 0")
        k("s_cbranch_scc1 f1_pk_wl")
        k("f1_pkok:")
    signal(k, 58, 0, "wo")
    k.add(k.stamp(8))
    PRE = int(os.environ.get("F1PRE", "5"))
    k("s_lshl_b32 s38, s18, 10")
    def wgrp(g): return [x if isinstance(x, str) else (x[0], "wl") for c in range(3) for x in F1.dma(c, g)]
    for g in range(PRE): k.add(wgrp(g))
    k("s_lshl_b32 s19, s16, 4")
    k("s_lshl_b32 s6, s18, 2")
    k("s_add_u32 s19, s19, s6")
    for i in range(1, 5): k(f"s_mov_b32 s{32+i}, {4096*i}")
    k("s_mul_i32 s6, s19, 18432")
    k("v_add_u32 v2, s6, v1")
    for tb in range(1, 4): k(f"v_add_u32 v{2+tb}, 18432, v{1+tb}")
    k("v_and_b32 v13, 15, v254")
    k("v_lshrrev_b32 v15, 4, v254")
    k("s_lshl_b32 s6, s19, 10")
    k("v_add_u32 v9, s6, v1")
    k("v_min_u32 v10, 35, v254")
    k("v_lshlrev_b32 v10, 3, v10")
    k("s_mul_i32 s6, s18, 288")
    k("v_add_u32 v10, s6, v10")
    k("s_mul_i32 s42, s17, 1152")
    k("s_add_u32 s43, s42, 36864")
    k("s_add_u32 s44, s42, 73728")
    srd(k, 8, 100, X1, XSZ)
    srd(k, 20, 100, ST1, STSZ)
    srd(k, 28, 4, SGU, SGU_SZ)
    srd(k, 24, 100, HH, H_SZ)
    k("v_add_u32 v6, 65536, v1")
    k("v_add_u32 v7, 131072, v1")
    k(f"v_add_u32 v8, {4*CH}, v1")
    k("v_and_b32 v11, 1, v15")
    k("v_mul_u32_u24 v11, 147456, v11")
    k("v_lshrrev_b32 v12, 1, v15")
    k("v_lshl_add_u32 v11, v12, 8, v11")
    k("v_lshl_add_u32 v11, v13, 4, v11")
    k("s_mul_i32 s6, s19, 147456")
    k("v_add_u32 v11, s6, v11")
    k(f"v_add_u32 v12, {2*147456}, v11")
    k("s_lshr_b32 s47, s17, 3")
    k(f"s_mul_i32 s45, s47, {GRP}")
    k("s_and_b32 s6, s17, 7")
    k("s_lshl_b32 s6, s6, 9")
    k("s_add_u32 s45, s45, s6")
    k("s_lshl_b32 s46, s16, 12")
    k("s_add_u32 s46, s46, s59")
    k("s_lshl_b32 s58, s17, 7")
    k("s_add_u32 s58, s58, s46")
    k(f"s_add_u32 s55, s58, {F_FA*FLG_SET}")
    k(f"s_add_u32 s58, s58, {F_F1*FLG_SET}")
    k(f"s_add_u32 s46, s46, {F_WO*FLG_SET}")
    k("s_lshr_b32 s7, s2, 3")
    k("s_and_b32 s48, s2, 1")
    k("s_lshl_b32 s48, s48, 3")
    k("s_lshr_b32 s6, s7, 2")
    k("s_add_u32 s48, s48, s6")
    k("s_and_b32 s49, s7, 3")
    k("s_lshl_b32 s6, s49, 2")
    k("s_add_u32 s6, s6, s47")
    k(f"s_mul_i32 s6, s6, {9*GRP}")
    k(f"s_add_u32 s6, s6, {WD}")
    k("s_add_u32 s60, s4, s6"); k("s_addc_u32 s61, s5, 0"); k("s_and_b32 s61, s61, 0xffff"); k(f"s_mov_b32 s62, {9*GRP}"); k("s_mov_b32 s63, 0x20000")
    k("s_lshl_b32 s6, s48, 3")
    k("s_lshl_b32 s7, s18, 1")
    k("s_add_u32 s6, s6, s7")
    k("s_mul_i32 s6, s6, 147456")
    k(f"s_mul_i32 s7, s47, {GRP}")
    k("s_add_u32 s6, s6, s7")
    k("v_add_u32 v244, s6, v1")
    k("v_add_u32 v245, 147456, v244")
    k("s_lshr_b32 s50, s48, 1")
    k("s_lshl_b32 s50, s50, 5")
    k("s_lshl_b32 s6, s47, 3")
    k("s_add_u32 s50, s50, s6")
    k("s_lshl_b32 s50, s50, 7")
    k("s_add_u32 s50, s50, s59")
    k(f"s_add_u32 s51, s50, {F_F1*FLG_SET}")
    k(f"s_add_u32 s50, s50, {F_FA*FLG_SET}")
    k("v_min_u32 v246, 7, v254")
    k("v_lshlrev_b32 v246, 7, v246")
    k("s_mov_b32 s52, s39")
    k("s_mov_b32 s53, 0")
    wait_flags(k, 46, 32, "f1")
    k.add(k.stamp(9))
    def xl(ks):
        so = "0" if ks < 4 else f"s{32 + ks // 4}"
        return [(f"buffer_load_dwordx4 {xop(ks, tb)}, v{2+tb}, s[8:11], {so} offen offset:{(ks % 4) * 1024} {SC}", f"x{ks}") for tb in range(4)]
    D = int(os.environ.get("XDIST", "3"))
    for ks in range(D): k.add(xl(ks))
    R0 = TT; CS = ACC + 120
    ks_ = Kern(); load_stats(ks_, 20, 9, 4, R0, "st", SC)
    for i, sr in enumerate((42, 43, 44)):
        ks_(f"buffer_load_dwordx2 v[{CS+2*i}:{CS+2*i+1}], v10, s[28:31], s{sr} offen", "st")
    st_loads = list(ks_.ins)
    kf = Kern()
    kf("WAITVM st")
    for q in range(2):
        kf(f"v_add_f32 v{CS+q}, v{CS+q}, v{CS+2+q}")
        kf(f"v_add_f32 v{CS+q}, v{CS+q}, v{CS+4+q}")
    kf(f"v_add_u32 v10, {LDS_S}, v10")
    kf(f"ds_write_b64 v10, v[{CS}:{CS+1}]", "sw")
    finish_stats(kf, 4, R0)
    for tb in range(4):
        kf(f"v_rsq_f32 v{CC+tb}, v{R0+4*tb+1}")
        kf(f"v_sub_f32 v{NMEAN+tb}, 0, v{R0+4*tb}")
        kf(f"v_mov_b32 v{QQ+tb}, v{R0+4*tb+1}")
        kf(f"v_mul_f32 v{CC+tb}, {f2u(-math.log2(math.e))}, v{CC+tb}")
    kf("v_lshlrev_b32 v10, 4, v15")
    kf(f"v_add_u32 v10, {LDS_S}, v10")
    kf(f"v_add_u32 v9, {8*CH}, v1")
    st_fin = list(kf.ins)
    mf = []; fixed = {}; flow = []
    def fx(i, x): fixed.setdefault(i, []).extend(x if isinstance(x, list) else [x])
    def spread(items, g0, g1):
        vm = [x for x in items if not (isinstance(x, str) and x.startswith("s_add_u32 m0"))]
        step = (g1 - g0) / len(vm); n = 0; pend = None; last = -1
        for x in items:
            if isinstance(x, str) and x.startswith("s_add_u32 m0"): pend = x; continue
            g = max(int(g0 + (n + 0.5) * step), last + 1); n += 1
            while g % 4 in (0, 1) or any(unit_cost(as_ins(y)) for y in fixed.get(g, [])) or (pend and any(as_ins(y).kind == "dma" for y in fixed.get(g - 1, []))): g += 1
            last = g
            if pend: fx(g - 1, pend); pend = None
            fx(g, x)
    PB = (ACC + 96, WB)
    for c in range(3):
        for gu in range(2): k.add([rd(PB[0] + 8 * c + 4 * gu, c, 0, gu)])
    k("WAITLG w0_0")
    k("WAITVM x0")
    d3 = F1.dma_chunk(3); d3s = [d3[0:4], d3[4:8], d3[8:12]]
    for ks in range(18):
        i0 = len(mf)
        if ks > 0: fx(i0 - 2, f"WAITVM x{ks}")
        ext = xl(ks + D) if ks + D < 18 else []
        STK = int(os.environ.get("STK", "5")); D3K = int(os.environ.get("D3K", "10"))
        if STK <= ks < STK + 4: ext = ext + st_loads[2 * (ks - STK):2 * (ks - STK) + 2]
        if ks == STK + 6: flow += [(x, i0) for x in st_fin]
        if D3K <= ks < D3K + 3: ext = ext + d3s[ks - D3K]
        if PRE + ks < 9: ext = wgrp(PRE + ks) + ext
        if ext: spread(ext, i0, i0 + 20)
        if ks == 2 * PRE - 1 and PRE < 9:
            fx(i0 - 5, "WAITVM wl"); fx(i0 - 4, "s_barrier")
        if ks == 17:
            fx(i0 - 5, "WAITVM d3"); fx(i0 - 4, "WAITLG sw"); fx(i0 - 3, "s_barrier")
        for c in range(3):
            for gu in range(2):
                for tb in range(4):
                    a = accr(c, gu, tb); w = PB[ks % 2] + 8 * c + 4 * gu
                    i = len(mf)
                    if gu == 0 and tb == 0 and i > 0: fx(i - 1, f"WAITLG w{c}_{ks}")
                    mf.append(f"v_mfma_f32_16x16x32_bf16 {v4(a)}, {v4(w)}, {xop(ks, tb)}, {'0' if ks == 0 else v4(a)}")
                    if tb == 0 and ks < 17: fx(i, rd(PB[(ks + 1) % 2] + 8 * c + 4 * gu, c, ks + 1, gu))
                    if ks == 17 and c >= 1 and tb == 0: fx(i, rd(WB + 8 * (c - 1) + 4 * gu, 3, c - 1, gu))
                    if ks == 17 and c == 0 and tb == 1:
                        flow.append(((f"ds_read_b128 {v4(SG + 4*gu)}, v10 offset:{64*gu}", "s0"), i))
    flow.append(("WAITLG s0", len(mf) + 1))
    for e in range(3): flow += [(x, len(mf) + 1) for x in F1.epilogue(e)]
    for c in range(3, 9):
        i0 = len(mf)
        if c == 3: fx(i0 - 2, "s_barrier")
        for ks in range(18):
            for gu in range(2):
                for tb in range(4):
                    a = accr(c, gu, tb); w = WB + 8 * (ks % 3) + 4 * gu
                    i = len(mf)
                    if gu == 0 and tb == 0:
                        fx(i - 1, f"WAITLG w{c}_{ks}")
                        if ks == 16 and c < 8:
                            fx(i - 3, f"WAITVM d{c+1}"); fx(i - 2, "s_barrier")
                    mf.append(f"v_mfma_f32_16x16x32_bf16 {v4(a)}, {v4(w)}, {xop(ks, tb)}, {'0' if ks == 0 else v4(a)}")
                    if tb == 0:
                        c2, k2 = (c, ks + 2) if ks < 16 else (c + 1, ks - 16)
                        if c2 < 9: fx(i, rd(WB + 8 * (k2 % 3) + 4 * gu, c2, k2, gu))
        for dc, k0, k1 in {3: [(4, 0, 64), (5, 72, 140)], 4: [(6, 0, 120)], 5: [(7, 0, 120)], 6: [(8, 0, 120)]}.get(c, []):
            spread(F1.dma_chunk(dc), i0 + k0, i0 + k1)
        flow += [(x, len(mf) + 2) for x in F1.epilogue(c)]
    def ddma(g):
        L = []
        for j in range(9):
            pre = []
            if j % 4 == 0:
                pre = [f"s_add_u32 m0, s39, {slot(g) + j*1024}", "s_nop 0" if j == 0 and g == 0 else f"s_add_u32 s52, s52, {4096 if j else GRP - 8192}"]
            L.append(pre + [(f"buffer_load_dwordx4 v1, s[60:63], s52 offen offset:{(j % 4)*1024} lds", f"e{g}")])
        return L
    KB = 36 - 4 * NBG
    HSL = [0, 8, 16, 24, 32] + list(range(112, 256, 8))
    def hreg(K): return HSL[K % 23]
    def hl(K):
        L = [[(f"buffer_load_dwordx4 {a4(hreg(K) + 4*j)}, v{244+j}, s[24:27], s53 offen offset:{(K % 4)*1024} {SC}", f"h{K}")] for j in range(2)]
        if K % 4 == 3: L[1].append("s_add_u32 s53, s53, 4096")
        return L
    def drd(K, b, r=None):
        va, off = lds(slot(K // 4) + (K % 4) * 9216 + b * 1024)
        return (f"ds_read_b128 {a4(dw(K % 2, b) if r is None else r)}, v{va} offset:{off}", f"u{K}_{b}")
    def bun(g, x): fixed.setdefault(g, []).append(Bundle(x))
    def freegap(g):
        while any(isinstance(y, Bundle) or unit_cost(as_ins(y)) for y in fixed.get(g, [])): g += 1
        return g
    def raise_flag(so): return ["s_mov_b64 exec, 1", f"buffer_store_dword v253, v252, s[96:99], s{so} offen {SC}", "s_mov_b64 exec, -1"]
    slow = []
    def poll(so, name, g_load, g_check):
        bun(freegap(g_load), [(f"buffer_load_dword v247, v246, s[96:99], s{so} offen {SC}", name)])
        bun(freegap(g_check), [f"WAITVM {name}", "v_cmp_ne_u32 vcc, v253, v247", "s_nop 1", "s_cmp_lg_u64 vcc, 0", f"s_cbranch_scc1 {name}_slow", f"{name}_ok:"])
        slow.extend([f"{name}_slow:", f"s_mov_b32 s3, {SPIN}", f"{name}_wl:", f"buffer_load_dword v247, v246, s[96:99], s{so} offen {SC}", "s_waitcnt vmcnt(0)",
                     "v_cmp_ne_u32 vcc, v253, v247", "s_nop 1", "s_cmp_eq_u64 vcc, 0", f"s_cbranch_scc1 {name}_ok", "s_sub_u32 s3, s3, 1", "s_cmp_lg_u32 s3, 0",
                     f"s_cbranch_scc1 {name}_wl", f"s_branch {name}_ok"])
    if not os.environ.get("NOCPF3"):
        t = Kern()
        t("s_lshr_b32 s6, s2, 3"); t("s_lshl_b32 s6, s6, 2"); t("s_add_u32 s6, s6, s18"); t("s_mov_b64 exec, 7")
        code_prefetch(t, "q2_l1", "at_main", 128, 6, 254, 248, 20)
        code_prefetch(t, "fa_ok", "code_end", 128, 6, 254, 249, 20, ahead=True)
        t("s_mov_b64 exec, -1")
        t.fix_hazards()
        bun(freegap(len(mf) - 144 * 3 + 130), t.ins)
    EA = int(os.environ.get("EA", "4"))
    c8 = len(mf) - 144; c7 = c8 - 144
    fx(c7 + 128 - 4, f"WAITVM hs{EA}")
    bun(freegap(c7 + 130), raise_flag(55))
    for c0, gg in ((c7, 0), (c8, 1)):
        g = c0 + 2
        for x in ddma(gg):
            g = freegap(g); bun(g, x); g += 9
    poll(50, "fa", c8 + 40, c8 + 86)
    H0 = int(os.environ.get("H0", "8"))
    g = c8 + 90
    for K in range(H0):
        for x in hl(K):
            g = freegap(g); bun(g, x); g += (2 if H0 > 4 else 4)
    assert g < c8 + 146
    fx(c8 + 128 - 3, "WAITVM e0"); fx(c8 + 128 - 2, "s_barrier")
    for b in range(9): fx(freegap(c8 + 129 + b), drd(0, b))
    fx(c8 + 142, "WAITVM h0")
    if k.stamp(10) and not os.environ.get('FW'): bun(freegap(c8 + 140), k.stamp(10))
    nh = H0; NT = 4 * NBG; RING = 18; HA = max(17, KB - 11)
    def treg(b, t): return dw(0, 0) + 4 * ((b * NT + t) % RING)
    tail = [(b, t) for b in range(9) for t in range(NT)]
    for K in range(KB):
        i0 = len(mf); gi, ks = divmod(K, 4)
        ext = []
        want = (min(K + H0 + 1, 4 * EA + 4) if K <= 4 * EA else K + 4) if K < HA else (3 + HA + -(-(33 - HA) * (K + 1 - HA) // (KB - 1 - HA)) if K < KB - 1 else 36)
        while nh < want: ext += hl(nh); nh += 1
        if NBG == 2 and 23 <= K < 28:
            if K < 26: ext = ext + ddma(8)[3 * (K - 23):3 * (K - 22)]
        elif ks < 3 and gi + 2 < 9: ext = ext + ddma(gi + 2)[3 * ks:3 * ks + 3]
        for n, x in enumerate(ext): bun(i0 + 1 + 2 * (n * 8 // len(ext)), x)
        if K > 0: fx(i0 - 2, f"WAITVM h{K}")
        if ks == 3:
            if gi == BG: fx(i0 - 8, "WAITVM hs8")
            fx(i0 - 6, f"WAITVM e{gi+1}" if K < KB - 1 else "WAITVM e8"); fx(i0 - 4, "s_barrier")
            if gi == BG: bun(i0 + 13, raise_flag(58))
        for b in range(9):
            i = len(mf)
            if b % 3 == 0: fx(i - 1, f"WAITLG u{K}_{b+2}")
            for j in range(2):
                a = dacc(j, b)
                mf.append(f"v_mfma_f32_16x16x32_bf16 {v4(a)}, {a4(dw(K % 2, b))}, {a4(hreg(K) + 4*j)}, {'0' if K == 0 else v4(a)}")
            if K < KB - 1: fx(i, drd(K + 1, b))
            else:
                bb, t = tail[b]; fx(i, drd(KB + t, bb, treg(bb, t)))
        if K == 4 * EA - 2: poll(51, "fb", i0 + 15, i0 + 18 * 2 + 15)
    assert 4 * EA - 2 >= 4 * BG + 6
    if os.environ.get("FF"):
        pts = [24 * 6, 24 * 12, 24 * 18, 432 + 144 * 2, 432 + 144 * 4, c8 + 144 + 72 * 2, c8 + 144 + 72 * 4, c8 + 144 + 72 * 6]
        for n, g in enumerate(pts): bun(freegap(g), k.stamp(1 + n))
    n0 = len(k.ins)
    left, over = pack(k, mf, fixed, flow, units=lambda i: 3 if i >= c8 + 144 else 2)
    for e in (EA, 8):
        iw = [i for i, x in enumerate(k.ins) if x.op == "WAITVM" and x.ops == [f"hs{e}"]][0]
        il = max(i for i, x in enumerate(k.ins) if x.tag == f"hs{e}")
        print("  h stores", e, "complete", sum(1 for x in k.ins[il:iw] if x.kind == "mfma"), "MFMAs before their wait")
        assert il < iw
    for i, x in enumerate(k.ins):
        if x.op == "WAITVM" and i >= n0:
            assert all(y.tag not in x.ops for y in k.ins[i:]), f"ops tagged {x.ops} follow their wait"
    print("ffn leftover instrs:", len(left), "overfull units:", over)
    assert not left
    check_live(k.ins[n0:])
    sub = Kern(); sub.ins = k.ins[n0:]
    iw = [i for i, x in enumerate(sub.ins) if x.tag == "sw"][0]; ir = [i for i, x in enumerate(sub.ins) if x.tag == "s0"][0]
    assert any(x.op == "s_barrier" for x in sub.ins[iw + 3:ir])
    if not os.environ.get("FW"): k.add(k.stamp(12))
    srd(k, 8, 100, PART, PART_SZ)
    k("s_lshl_b32 s21, s48, 2")
    k("s_add_u32 s21, s21, s49")
    k("s_lshl_b32 s6, s21, 2")
    k("s_add_u32 s6, s6, s18")
    k("s_mul_i32 s40, s6, 27648")
    k("s_sub_u32 s6, s47, s18")
    k("s_sub_u32 s6, s6, 1")
    k("s_and_b32 s6, s6, 3")
    k("s_mul_i32 s6, s6, 9216")
    k("s_add_u32 s40, s40, s6")
    k("s_add_u32 s41, s40, 4096")
    k("s_add_u32 s42, s40, 8192")
    k("WAITVM h35")
    k("s_cmp_eq_u32 s18, s47")
    k("s_cbranch_scc1 dn_own")
    OWN = slot(7 - NBG)
    for role in ("pub", "own"):
        k.path = "dn" + role
        if role == "own": k("dn_own:")
        mf = []; fixed = {}; flow = []
        k(f"WAITLG u{KB+1}_0")
        for b in range(9):
            for t in range(NT):
                i = len(mf); n = b * NT + t
                if n and n % 2 == 0:
                    bb, tt = tail[n + 1]; fx(i - 1, f"WAITLG u{KB+tt}_{bb}")
                for j in range(2):
                    a = dacc(j, b)
                    mf.append(f"v_mfma_f32_16x16x32_bf16 {v4(a)}, {a4(treg(b, t))}, {a4(hreg(KB + t) + 4*j)}, {v4(a)}")
                if n + 9 < len(tail):
                    bb, tt = tail[n + 9]; fx(i, drd(KB + tt, bb, treg(bb, tt)))
            i = len(mf) - 8
            if role == "pub":
                P = 200 + 4 * b
                for j in range(2):
                    a = dacc(j, b)
                    flow += [(f"v_cvt_pk_bf16_f32 v{P+2*j}, v{a}, v{a+1}", i + 9), (f"v_cvt_pk_bf16_f32 v{P+2*j+1}, v{a+2}, v{a+3}", i + 9)]
                flow.append((f"buffer_store_dwordx4 {v4(P)}, v1, s[8:11], s{40 + b//4} offen offset:{(b % 4)*1024} {SC}", i + 9))
            else:
                for j in range(2):
                    va, off = lds(OWN + (2 * b + j) * 1024)
                    flow.append((f"ds_write_b128 v{va}, {v4(dacc(j, b))} offset:{off}", i + 11))
        left, over = pack(k, mf, fixed, flow)
        k.add(left)
        if role == "pub": k("s_branch dn_pub")
    k.path = None
    k("dn_pub:")
    finish_down(k, signal, wait_flags, OWN)
    return slow

QE = int(os.environ.get("QE", "14")); BG = int(os.environ.get("BG", "2")); NBG = int(os.environ.get("NBG", "1"))

def check_live(ins):
    ACC = F1.ACC; busy = set()
    for x in ins:
        if x.kind == "mfma":
            r = int(x.dst[0][1:]); ffn1 = x.ops[1].startswith("v[")
            if x.ops[3] == "0":
                assert not (set(x.dst) & busy), f"restart of busy accumulator: {x.text}"
            if ffn1: busy |= set(x.dst)
        elif x.kind in ("dsread", "vload"):
            assert not (set(x.dst) & busy), f"load into busy accumulator: {x.text}"
        elif x.op == "v_cvt_pk_bf16_f32":
            g = int(x.src[1][1:])
            if ACC <= g < ACC + 128 and (g - ACC) % 4 == 3:
                for i in range(4): busy.discard(f"v{g-i}"); busy.discard(f"v{g+16-i}")
    assert not busy

def finish_down(k, signal, wait_flags, OWN):
    N = 'dn'
    k("s_lshl_b32 s46, s21, 9")
    k("s_add_u32 s46, s46, s59")
    k(f"s_add_u32 s46, s46, {F_DX*FLG_SET}")
    k("s_lshl_b32 s58, s47, 7")
    k("s_add_u32 s58, s58, s46")
    k("s_waitcnt lgkmcnt(0)")
    signal(k, 58, 0, "dx")
    if not os.environ.get("FW"): k.add(k.stamp(11))
    if QE:
        k("s_cmp_lg_u32 s54, 0")
        k(f"s_cbranch_scc1 {N}_noq")
        k("s_lshr_b32 s7, s2, 3")
        k("s_mul_i32 s6, s7, 43")
        k("s_lshr_b32 s6, s6, 8")
        k("s_mul_i32 s6, s6, 6")
        k("s_sub_u32 s7, s7, s6")
        k("s_and_b32 s6, s2, 1")
        k("s_mul_i32 s6, s6, 6")
        k("s_add_u32 s6, s6, s7")
        k("s_mul_i32 s6, s6, 165888")
        k(f"s_add_u32 s6, s6, {WQKV}")
        k("s_add_u32 s12, s4, s6"); k("s_addc_u32 s13, s5, 0"); k("s_and_b32 s13, s13, 0xffff"); k("s_mov_b32 s15, 0x20000")
        k("s_cmp_lt_u32 s2, 192")
        k("s_cselect_b32 s14, 165888, 0")
        k("s_lshl_b32 s6, s18, 10")
        for i in range(QE):
            k(f"s_add_u32 m0, s6, {i*4096}")
            k("buffer_load_dwordx4 v1, s[12:15], m0 offen lds")
        k(f"{N}_noq:")
    srd(k, 24, 100, X1, XSZ)
    k("v_and_b32 v10, 15, v254")
    k("v_bfe_u32 v12, v254, 4, 1")
    k("v_lshrrev_b32 v13, 5, v254")
    k("v_mul_u32_u24 v14, 18432, v12")
    k("v_lshl_add_u32 v16, v13, 8, v14")
    k("v_lshl_add_u32 v16, v10, 4, v16")
    k("s_lshl_b32 s30, s48, 3")
    k("s_lshl_b32 s6, s47, 1")
    k("s_add_u32 s30, s30, s6")
    k("s_mul_i32 s31, s30, 18432")
    k("s_mul_i32 s32, s49, 9")
    k("s_add_u32 s32, s32, s18")
    k("s_lshl_b32 s33, s32, 9")
    k("s_add_u32 s33, s33, s31")
    RES = 176; PT = 188; OW = 32
    k("s_add_u32 s34, s33, 4096")
    k(f"buffer_load_dwordx4 {v4(RES)}, v16, s[24:27], s33 offen {SC}")
    k(f"buffer_load_dwordx4 {v4(RES+4)}, v16, s[24:27], s33 offen offset:2048 {SC}")
    k(f"buffer_load_dwordx4 {v4(RES+8)}, v16, s[24:27], s34 offen {SC}")
    k("s_lshl_b32 s6, s18, 11")
    k(f"s_add_u32 s6, s6, {OWN}")
    k("v_add_u32 v6, s6, v1")
    for bi in range(3):
        for j in range(2): k(f"ds_read_b128 {v4(OW + 8*bi + 4*j)}, v6 offset:{bi*8192 + j*1024}")
    k("s_cmp_eq_u32 s54, 1")
    k("s_cselect_b32 s44, 16, 256")
    k("s_cselect_b32 s45, 1152, 16")
    k("s_cselect_b32 s36, s56, s100")
    k("s_cselect_b32 s37, s57, s101")
    k(f"s_cselect_b32 s6, 0, {X2}")
    k(f"s_cselect_b32 s42, 0, {ST2SZ}")
    k("s_add_u32 s36, s36, s6"); k("s_addc_u32 s37, s37, 0"); k("s_and_b32 s37, s37, 0xffff"); k(f"s_mov_b32 s38, {XSZ}"); k("s_mov_b32 s39, 0x20000")
    k(f"s_add_u32 s40, s100, {ST2}"); k("s_addc_u32 s41, s101, 0"); k("s_and_b32 s41, s41, 0xffff"); k("s_mov_b32 s43, 0x20000")
    k("v_mul_lo_u32 v17, v10, s45")
    k("v_mul_lo_u32 v15, v13, s44")
    k("v_add3_u32 v17, v17, v15, v14")
    k("s_lshl_b32 s6, s44, 1")
    k("s_mul_i32 s16, s32, s6")
    k("s_add_u32 s16, s16, s31")
    k("s_lshl_b32 s6, s44, 3")
    k("s_add_u32 s17, s16, s6")
    k("s_add_u32 s19, s17, s6")
    k("v_lshlrev_b32 v18, 4, v10")
    k("v_lshl_add_u32 v18, v12, 11, v18")
    k("s_lshl_b32 s51, s30, 11")
    k("s_lshl_b32 s6, s49, 9")
    k("s_add_u32 s51, s51, s6")
    k("s_lshr_b32 s6, s18, 1")
    k("s_lshl_b32 s6, s6, 8")
    k("s_add_u32 s51, s51, s6")
    k("s_and_b32 s6, s18, 1")
    k("s_lshl_b32 s6, s6, 3")
    k("s_add_u32 s51, s51, s6")
    k("s_lshl_b32 s6, s21, 2")
    k("s_add_u32 s6, s6, s47")
    k("s_mul_i32 s33, s6, 27648")
    k("s_lshl_b32 s7, s18, 10")
    k("s_add_u32 s33, s33, s7")
    k("s_add_u32 s34, s33, 9216")
    k("s_add_u32 s35, s33, 18432")
    k("s_lshl_b32 s58, s48, 4")
    k("s_lshl_b32 s7, s49, 2")
    k("s_add_u32 s58, s58, s7")
    k("s_add_u32 s58, s58, s47")
    k("s_lshl_b32 s58, s58, 7")
    k("s_add_u32 s58, s58, s59")
    k(f"s_add_u32 s58, s58, {F_DN*FLG_SET}")
    k("v_add_u32 v7, 4096, v1")
    k("v_add_u32 v8, 8192, v1")
    k("v_mov_b32 v20, 0")
    k("v_mov_b32 v21, 0")
    k("v_mov_b32 v22, 0xffff0000")
    k("v_mov_b32 v23, 0x3f803f80")
    k("s_waitcnt lgkmcnt(0)")
    wait_flags(k, 46, 4, "dx")
    k.add(k.stamp(1)) if os.environ.get("FH") else None
    def ld(bi):
        for p in range(3): k(f"buffer_load_dwordx4 {v4(PT + 12*bi + 4*p)}, v{(1, 7, 8)[bi]}, s[8:11], s{33+p} offen {SC}")
    U = 64
    def fin(bi):
        X = OW + 8 * bi; Y = X + 4
        for p in range(3):
            r = PT + 12 * bi + 4 * p
            for q in range(4):
                k(f"v_lshlrev_b32 v{U+2*q}, 16, v{r+q}")
                k(f"v_and_b32 v{U+2*q+1}, v22, v{r+q}")
            for q in range(4): k(f"v_pk_add_f32 {v2(X+2*q)}, {v2(X+2*q)}, {v2(U+2*q)}")
        for q in range(4):
            k(f"v_lshlrev_b32 v{U+2*q}, 16, v{RES+4*bi+q}")
            k(f"v_and_b32 v{U+2*q+1}, v22, v{RES+4*bi+q}")
        for i in range(4): k(f"v_permlane16_swap_b32 v{X+i}, v{Y+i}")
        for q in range(4): k(f"v_pk_add_f32 {v2(X+2*q)}, {v2(X+2*q)}, {v2(U+2*q)}")
        pk = 72 + 4 * bi
        for q in range(4): k(f"v_cvt_pk_bf16_f32 v{pk+q}, v{X+2*q}, v{X+2*q+1}")
        k("s_cmp_eq_u32 s54, 0")
        k(f"s_cbranch_scc1 {N}_s{bi}")
        k(f"buffer_store_dwordx4 {v4(pk)}, v17, s[36:39], s{(16, 17, 19)[bi]} offen")
        k(f"s_branch {N}_t{bi}")
        k(f"{N}_s{bi}:")
        k(f"buffer_store_dwordx4 {v4(pk)}, v17, s[36:39], s{(16, 17, 19)[bi]} offen {SC}")
        k(f"{N}_t{bi}:")
        for q in range(4):
            k(f"v_dot2c_f32_bf16 v20, v{pk+q}, v23")
            k(f"v_dot2c_f32_bf16 v21, v{pk+q}, v{pk+q}")
    k("s_cmp_lg_u32 s18, 0")
    k(f"s_cbranch_scc1 {N}_l2")
    ld(2)
    k(f"{N}_l2:")
    ld(0); ld(1)
    k("s_cmp_lg_u32 s18, 0")
    k(f"s_cbranch_scc1 {N}_f2")
    k("s_waitcnt vmcnt(6)")
    fin(2)
    k(f"{N}_f2:")
    k("s_waitcnt vmcnt(3)")
    fin(0)
    k("s_waitcnt vmcnt(1)")
    fin(1)
    k("v_mov_b32 v24, v20")
    k("v_mov_b32 v25, v21")
    k("v_permlane32_swap_b32 v20, v24")
    k("v_permlane32_swap_b32 v21, v25")
    k("v_add_f32 v20, v20, v24")
    k("v_add_f32 v21, v21, v25")
    k("s_mov_b32 exec_hi, 0")
    k(f"buffer_store_dwordx2 v[20:21], v18, s[40:43], s51 offen {SC}")
    k("s_mov_b32 exec_hi, -1")
```

```python
from asmgen import *
from layout import *
from k_prep import srd, xreduce
import os
SC = "sc1"
J_GU, J_WD, J_END = 9, 225, 369
NI1 = int(os.environ.get("NI1", "2")); NI0 = int(os.environ.get("NI0", "2"))
assert NI0 >= NI1
J_ATT = 64 * NI1 + 32 * (NI0 - NI1)
assert J_END - J_ATT <= 256
SWAP = bool(os.environ.get('SWAP'))
A0 = 184
LB = 53248

def trbase(k, d, t):
    k(f"v_lshrrev_b32 v{d}, 5, v254")
    k(f"v_lshlrev_b32 v{d}, 4, v{d}")
    k(f"v_bfe_u32 v{t}, v254, 4, 1")
    k(f"v_lshl_add_u32 v{d}, v{t}, 2, v{d}")
    k(f"v_bfe_u32 v{t}, v254, 2, 2")
    k(f"v_add_u32 v{d}, v{d}, v{t}")
    k(f"v_and_b32 v{d+1}, 3, v254")

def perm(k, dst, src, tmp):
    k(f"v_and_b32 v{dst}, 0xfffffff3, v{src}")
    k(f"v_bfe_u32 v{tmp}, v{src}, 2, 1")
    k(f"v_lshl_add_u32 v{dst}, v{tmp}, 3, v{dst}")
    k(f"v_bfe_u32 v{tmp}, v{src}, 3, 1")
    k(f"v_lshl_add_u32 v{dst}, v{tmp}, 2, v{dst}")

def frags(k, items, stride, tagp):
    seen = set()
    def fin(j):
        vb, imm, so, dimm, cs = items[j]; r = 4 * j
        k(f"WAITLG {tagp}{j}")
        k(f"buffer_store_dwordx4 a[{r}:{r+3}], v1, s[40:43], s{so} offen offset:{dimm} {SC}")
        if cs is not None:
            k(f"v_mfma_f32_16x16x32_bf16 v[{cs}:{cs+3}], a[{r}:{r+3}], a[72:75], {f'v[{cs}:{cs+3}]' if cs in seen else '0'}")
            seen.add(cs)
    for i, (vb, imm, so, dimm, cs) in enumerate(items):
        r = 4 * i
        k(f"ds_read_b64_tr_b16 a[{r}:{r+1}], v{vb} offset:{imm}", f"{tagp}{i}")
        k(f"ds_read_b64_tr_b16 a[{r+2}:{r+3}], v{vb} offset:{imm + 8*stride}", f"{tagp}{i}")
        if i >= 3: fin(i - 3)
    for j in range(len(items) - 3, len(items)): fin(j)

for _i in range(144): assert (_i * 1821) >> 16 == _i // 36
def setup(k, L):
    k("s_load_dwordx4 s[60:63], s[0:1], 32")
    k("s_load_dwordx2 s[48:49], s[0:1], 16")
    k("s_load_dwordx2 s[52:53], s[0:1], 48")
    k(f"s_sub_u32 s47, s50, {J_GU}")
    k(f"s_cmp_lt_u32 s47, {J_WD - J_GU}")
    k(f"s_cbranch_scc0 {L}_rp")
    k("s_cmp_ge_u32 s47, 108")
    k("s_cselect_b32 s44, 1, 0")
    k("s_mul_i32 s45, s44, 108")
    k("s_sub_u32 s47, s47, s45")
    k("s_mul_i32 s45, s47, 43691")
    k("s_lshr_b32 s45, s45, 17")
    k("s_mul_i32 s46, s45, 3")
    k("s_sub_u32 s46, s47, s46")
    k("v_lshrrev_b32 v248, 4, v0")
    k("v_and_b32 v247, 15, v0")
    k("v_mul_u32_u24 v248, 9216, v248")
    k("v_lshl_add_u32 v248, v247, 4, v248")
    k(f"s_mul_i32 s47, s46, {192*9216}")
    k("s_lshl_b32 s51, s45, 8")
    k("s_add_u32 s47, s47, s51")
    k("s_cmp_eq_u32 s44, 0")
    k("s_waitcnt lgkmcnt(0)")
    k("s_cselect_b32 s60, s60, s62")
    k("s_cselect_b32 s61, s61, s63")
    k(f"s_mov_b32 s62, {576*4608*2}")
    k(f"s_branch {L}_sd")
    k(f"{L}_rp:")
    k("s_mov_b32 s44, 2")
    k(f"s_sub_u32 s45, s50, {J_WD}")
    k(f"s_cmp_lt_u32 s50, {J_GU}")
    k("s_cselect_b32 s45, s50, s45")
    k("s_cselect_b32 s46, 9, 72")
    k("s_cselect_b32 s3, 6, 5")
    k("s_lshl_b32 s47, s45, s3")
    k("s_mul_i32 s51, s45, 1821")
    k("s_lshr_b32 s51, s51, 16")
    k("s_mul_i32 s3, s51, 36")
    k("s_sub_u32 s3, s45, s3")
    k("s_lshr_b32 s3, s3, 2")
    k("s_lshl_b32 s3, s3, 4")
    k("s_mul_i32 s51, s51, 1152")
    k("s_add_u32 s51, s51, s3")
    k(f"s_cmp_lt_u32 s50, {J_GU}")
    for jj in range(2):
        d = 247 + jj
        k("v_lshrrev_b32 v240, 3, v0")
        k(f"v_add_u32 v240, s47, v240")
        if jj: k("v_add_u32 v240, 32, v240")
        k("v_lshrrev_b32 v241, 4, v240")
        k("v_mul_u32_u24 v242, 18, v241")
        k("v_and_b32 v243, 15, v240")
        k("v_add_u32 v242, v242, v243")
        k("v_and_b32 v243, 1, v241")
        k("v_lshl_add_u32 v242, v243, 1, v242")
        k("v_bfe_u32 v241, v240, 1, 5")
        k("v_mul_u32_u24 v243, 18, v241")
        k("v_and_b32 v244, 1, v240")
        k("v_add_u32 v243, v243, v244")
        k("v_and_b32 v244, 1, v241")
        k("v_xor_b32 v244, 1, v244")
        k("v_lshl_add_u32 v243, v244, 4, v243")
        k("v_cmp_gt_u32 vcc, 512, v240")
        k("v_cndmask_b32 v242, v243, v242, vcc")
        k("v_bfe_u32 v241, v240, 4, 3")
        k("v_mul_u32_u24 v241, 144, v241")
        k("v_and_b32 v243, 15, v240")
        k("v_add3_u32 v240, v241, v243, s51")
        k("s_cselect_b64 vcc, -1, 0")
        k("v_cndmask_b32 v240, v240, v242, vcc")
        k("v_mul_u32_u24 v240, 1152, v240")
        k("v_and_b32 v241, 7, v0")
        k(f"v_lshl_add_u32 v{d}, v241, 4, v240")
    k("s_waitcnt lgkmcnt(0)")
    k("s_cselect_b32 s60, s48, s52")
    k("s_cselect_b32 s61, s49, s53")
    k(f"s_mov_b32 s62, {WD_SZ}")
    k(f"s_cselect_b32 s62, {WO_SZ}, s62")
    k(f"{L}_sd:")
    k("s_and_b32 s61, s61, 0xffff")
    k("s_mov_b32 s63, 0x20000")

def loads(k, L, part):
    k("s_cmp_eq_u32 s44, 2")
    k(f"s_cbranch_scc1 {L}_lr{part}")
    for j in (range(9) if part == 0 else range(9, 12)):
        k(f"buffer_load_dwordx4 a[{A0+4*j}:{A0+4*j+3}], v248, s[60:63], s47 offen nt")
        if j < 11: k(f"s_add_u32 s47, s47, {16*9216}")
    k(f"s_branch {L}_ld{part}")
    k(f"{L}_lr{part}:")
    if part:
        k("s_cmp_eq_u32 s46, 72")
        k(f"s_cbranch_scc1 {L}_ld{part}")
    for jc in range(9):
        r = A0 + 4 * (part * 9 + jc)
        k(f"buffer_load_dwordx4 a[{r}:{r+3}], v{247+part}, s[60:63], 0 offen offset:{jc*128} nt")
    k(f"{L}_ld{part}:")

SO = (30, 31, 32, 33, 36, 37)
def finish(k, L, mid=None):
    srd(k, 40, 4, 0, WS_END)
    trbase(k, 234, 232)
    k("s_cmp_eq_u32 s46, 72")
    k("s_cselect_b32 s39, 1, 0")
    k("s_and_b32 s3, s44, 2")
    k("s_mul_i32 s39, s39, s3")
    k("s_add_u32 s39, s39, s44")
    k("s_cmp_eq_u32 s44, 2")
    k(f"s_cbranch_scc1 {L}_fr")
    k("v_lshrrev_b32 v232, 4, v0")
    perm(k, 233, 232, 236)
    k("v_and_b32 v232, 15, v0")
    k("v_mul_u32_u24 v233, 288, v233")
    k("v_lshl_add_u32 v233, v232, 4, v233")
    k(f"v_add_u32 v233, {LB}, v233")
    for j in range(12): k(f"ds_write_b128 v233, a[{A0+4*j}:{A0+4*j+3}] offset:{j*16*288}")
    k("v_mul_u32_u24 v234, 288, v234")
    k("s_lshl_b32 s3, s18, 6")
    k(f"s_add_u32 s3, s3, {LB}")
    k("v_add_u32 v234, s3, v234")
    k("v_lshl_add_u32 v234, v235, 3, v234")
    k("s_lshl_b32 s30, s45, 3")
    k("s_lshl_b32 s3, s18, 1")
    k("s_add_u32 s31, s30, s3")
    k("s_mul_i32 s38, s46, 36864")
    k("s_lshl_b32 s3, s31, 7")
    k("s_add_u32 s38, s38, s3")
    k("s_lshl_b32 s3, s44, 6")
    k("s_add_u32 s38, s38, s3")
    k(f"s_add_u32 s38, s38, {SGU}")
    k("s_mul_i32 s30, s31, 18")
    k("s_mul_i32 s3, s46, 6")
    k("s_add_u32 s30, s30, s3")
    k("s_lshl_b32 s30, s30, 11")
    k("s_lshl_b32 s3, s44, 10")
    k("s_add_u32 s30, s30, s3")
    k(f"s_add_u32 s30, s30, {WGU}")
    k(f"s_add_u32 s33, s30, {18*2048}")
    k("v_mov_b32 v232, 0x3f803f80")
    for i in range(4): k(f"v_accvgpr_write_b32 a{72+i}, v232")
    k(f"s_branch {L}_fm")
    k(f"{L}_fr:")
    k("v_lshrrev_b32 v232, 3, v0")
    perm(k, 233, 232, 236)
    k("v_and_b32 v232, 7, v0")
    k("v_mul_u32_u24 v233, 1184, v233")
    k("v_lshl_add_u32 v233, v232, 4, v233")
    k(f"v_add_u32 v233, {LB}, v233")
    for jj in range(2):
        for jc in range(9):
            r = A0 + 4 * (jj * 9 + jc)
            k(f"ds_write_b128 v233, a[{r}:{r+3}] offset:{jj*32*1184 + jc*128}")
        if jj == 0:
            k("s_cmp_eq_u32 s46, 72")
            k(f"s_cbranch_scc1 {L}_fw")
            k("s_waitcnt lgkmcnt(4)")
    k(f"{L}_fw:")
    k("v_mul_u32_u24 v234, 1184, v234")
    k("s_mul_i32 s3, s18, 288")
    k(f"s_add_u32 s3, s3, {LB}")
    k("v_add_u32 v234, s3, v234")
    k("v_and_b32 v232, 1, v235")
    k("v_lshl_add_u32 v236, v232, 3, v234")
    k("v_lshrrev_b32 v232, 1, v235")
    k(f"v_mul_u32_u24 v232, {32*1184}, v232")
    k("v_add_u32 v236, v236, v232")
    k("v_lshl_add_u32 v234, v235, 3, v234")
    k("s_mul_i32 s33, s46, 9216")
    k("s_mul_i32 s30, s45, 9216")
    k("s_lshl_b32 s3, s18, 1")
    k("s_mul_i32 s3, s3, s33")
    k("s_add_u32 s30, s30, s3")
    k(f"s_add_u32 s30, s30, {WO}")
    k("s_add_u32 s33, s33, s30")
    k("s_cmp_eq_u32 s46, 9")
    k(f"s_cbranch_scc1 {L}_fm")
    k("s_mul_i32 s30, s18, 144")
    k("s_add_u32 s30, s30, s45")
    k("s_mul_i32 s30, s30, 9216")
    k(f"s_add_u32 s30, s30, {WD}")
    k("s_add_u32 s33, s30, 9216")
    k(f"{L}_fm:")
    k("s_add_u32 s31, s30, 4096")
    k("s_add_u32 s32, s30, 8192")
    k("s_add_u32 s36, s33, 4096")
    k("s_add_u32 s37, s33, 8192")
    k("s_waitcnt lgkmcnt(0)")
    k("s_barrier")
    if mid: mid(k)
    k("s_cmp_eq_u32 s39, 2")
    k(f"s_cbranch_scc1 {L}_fr2")
    k("s_cmp_eq_u32 s39, 4")
    k(f"s_cbranch_scc1 {L}_fr3")
    k.path = L + "g"
    items = [(234, 32*bb + ks*32*288, SO[3*bb + ks//2], (ks % 2)*2048, 224 + 4*bb) for bb in range(2) for ks in range(6)]
    frags(k, items, 288, L + "g")
    k("v_lshrrev_b32 v232, 4, v254")
    k("v_lshlrev_b32 v232, 4, v232")
    k("s_mov_b32 exec_lo, 0x00010001"); k("s_mov_b32 exec_hi, 0x00010001")
    k(f"buffer_store_dwordx4 v[224:227], v232, s[40:43], s38 offen {SC}")
    k(f"buffer_store_dwordx4 v[228:231], v232, s[40:43], s38 offen offset:128 {SC}")
    k("s_mov_b64 exec, -1")
    k(f"s_branch {L}_fd")
    k(f"{L}_fr2:")
    k.path = L + "r"
    items = []
    for nn in range(2):
        for ks in range(2):
            for b in range(4): items.append((234, 144*nn + 32*b + ks*32*1184, SO[3*nn + ks], b*1024, None))
        items.append((236, 144*nn + 128, SO[3*nn + 2], 0, None))
    frags(k, items, 1184, L + "r")
    k(f"s_branch {L}_fd")
    k(f"{L}_fr3:")
    k.path = L + "d"
    items = [(234, 32*b + ks*32*1184, SO[3*ks + b//4], (b % 4)*1024, None) for ks in range(1) for b in range(9)]
    frags(k, items, 1184, L + "d")
    k.path = None
    k(f"{L}_fd:")

def idle_jobs(k):
    k("s_sub_u32 s50, s2, 256")
    k("s_mov_b32 s35, 0")
    k("s_cmp_ge_u32 s2, 224")
    k(f"s_cselect_b32 s34, {NI0}, {NI1}")
    srd(k, 40, 4, 0, WS_END)
    k("s_branch pi_next")
    k("pi_top:")
    k("s_waitcnt vmcnt(9)")
    k("s_cmp_gt_u32 s35, 2")
    k("s_cbranch_scc1 pi_t1")
    k("s_cmp_eq_u32 s35, 1")
    k("s_cbranch_scc1 pi_t0")
    k(f"s_cmp_ge_u32 s2, {192 + J_GU}")
    k("s_cbranch_scc1 pi_t1")
    k("s_waitcnt vmcnt(0)")
    k("s_barrier")
    k("s_cmp_lg_u32 s18, 0")
    k("s_cbranch_scc1 pi_t1")
    k("s_lshl_b32 s3, s2, 7")
    k(f"s_add_u32 s3, s3, {F_WOPK*FLG_SET - 192*128}")
    k("s_mov_b64 exec, 1")
    k(f"buffer_store_dword v253, v252, s[96:99], s3 offen {SC}")
    k("s_mov_b64 exec, -1")
    k("s_branch pi_t1")
    k("pi_t0:")
    k("s_waitcnt vmcnt(0)")
    k("pi_t1:")
    k("s_barrier")
    def mid(k):
        k("pi_next:")
        k(f"s_cmp_gt_u32 s35, {NI1}")
        k("s_cselect_b32 s3, 32, 64")
        k(f"s_cmp_eq_u32 s35, {NI1}")
        k("s_cselect_b32 s3, 32, s3")
        k("s_add_u32 s50, s50, s3")
        k("s_add_u32 s35, s35, 1")
        k("s_cmp_gt_u32 s35, s34")
        k("s_cbranch_scc1 pi_last")
        if SWAP:
            k("s_mov_b32 s21, s50")
            k(f"s_cmp_ge_u32 s50, {J_GU}")
            k(f"s_cselect_b32 s3, {J_WD - J_GU}, 0")
            k("s_add_u32 s50, s50, s3")
        setup(k, "pi")
        if SWAP: k("s_mov_b32 s50, s21")
        loads(k, "pi", 0); loads(k, "pi", 1)
        k("s_cmp_eq_u32 s35, 1")
        k("s_cbranch_scc1 pi_top")
        k("pi_last:")
    finish(k, "pi", mid)
    k("s_cmp_le_u32 s35, s34")
    k("s_cbranch_scc1 pi_top")
    k("s_barrier")
```

```python
from asmgen import *
from layout import *
from k_prep import srd, xreduce
from k_qkv import f2u, QSCALE
from m_pack import trbase
SC = "sc1"
import os
DOT = bool(os.environ.get("DOT"))
SLOT = 34816; NS = 3; LDS_ST = NS * SLOT
def v4(r): return f"v[{r}:{r+3}]"
for _e in range(1152): assert (_e * 3641) >> 16 == _e // 18

def emit(k, late_setup):
    N = "q0"
    W = (32, 68); XF = 104; ACC = 120; AS = 192; AM = 228; AG = 236; ONE = 244
    k(f"{N}_tile:")
    k("s_and_b32 s9, s9, 0xffff"); k(f"s_mov_b32 s10, {XSZ}"); k("s_mov_b32 s11, 0x20000")
    k("s_and_b32 s13, s13, 0xffff"); k(f"s_mov_b32 s14, {WQKV_SZ}"); k("s_mov_b32 s15, 0x20000")
    import os
    if "x" in os.environ.get("Q0Z", ""): k("s_mov_b32 s10, 0")
    if "w" in os.environ.get("Q0Z", ""): k("s_mov_b32 s14, 0")
    k("s_lshl_b32 s19, s16, 3")
    k("s_lshl_b32 s6, s18, 1")
    k("s_add_u32 s19, s19, s6")
    k("s_mul_i32 s34, s19, 18432")
    k("s_mul_i32 s35, s17, 288")
    k("s_lshl_b32 s38, s18, 12")
    k("s_lshl_b32 s39, s18, 9")
    k("s_add_u32 s39, s39, 32768")
    k("v_lshrrev_b32 v6, 3, v254")
    k("v_and_b32 v7, 7, v254")
    k("v_xor_b32 v7, v7, v6")
    k("v_mul_u32_u24 v2, 1152, v6")
    k("v_lshl_add_u32 v2, v7, 4, v2")
    for i in range(1, 4): k(f"v_add_u32 v{2+i}, {8192*i}, v2")
    k("s_mov_b32 s36, 0")
    for g in range(2):
        k(f"s_add_u32 m0, s38, {g*SLOT}")
        for i in range(4):
            k(f"buffer_load_dwordx4 v{2+i}, s[8:11], s34 offen offset:{1024*i} lds")
        k("s_add_u32 s34, s34, 128")
    for j in range(5):
        d = 9 + j
        if j < 4:
            k(f"s_lshl_b32 s6, s18, 8"); k(f"s_add_u32 s6, s6, {64*j}"); k("v_add_u32 v6, s6, v254")
        else:
            k(f"s_lshl_b32 s6, s18, 5"); k("s_add_u32 s6, s6, 1024"); k("v_and_b32 v6, 31, v254"); k("v_add_u32 v6, s6, v6")
        k("v_mul_u32_u24 v7, 3641, v6")
        k("v_lshrrev_b32 v7, 16, v7")
        k("v_mul_u32_u24 v8, 18, v7")
        k("v_sub_u32 v6, v6, v8")
        k("v_and_b32 v8, 0xfffffff3, v7")
        k(f"v_bfe_u32 v{d}, v7, 2, 1")
        k(f"v_lshl_add_u32 v8, v{d}, 3, v8")
        k(f"v_bfe_u32 v{d}, v7, 3, 1")
        k(f"v_lshl_add_u32 v8, v{d}, 2, v8")
        k("v_mul_u32_u24 v8, 3456, v8")
        k(f"v_lshl_add_u32 v{d}, v6, 4, v8")
        if 0 < j < 4: k(f"v_subrev_u32 v{d}, {1024*j}, v{d}")
    def group():
        L = [["s_add_u32 m0, s36, s38", "s_nop 0", "buffer_load_dwordx4 v2, s[8:11], s34 offen lds"]]
        for i in range(1, 4): L.append([f"buffer_load_dwordx4 v{2+i}, s[8:11], s34 offen offset:{1024*i} lds"])
        L.append(["s_add_u32 m0, m0, 16384", "s_add_u32 s34, s34, 128", "buffer_load_dwordx4 v9, s[12:15], s35 offen lds"])
        for j in range(1, 4): L.append([f"buffer_load_dwordx4 v{9+j}, s[12:15], s35 offen offset:{1024*j} lds"])
        L.append(["s_add_u32 m0, s36, s39", "s_mov_b32 exec_hi, 0", "buffer_load_dwordx4 v13, s[12:15], s35 offen lds", "s_mov_b32 exec_hi, -1",
                  f"s_add_u32 s35, s35, {64*3456}", f"s_add_u32 s36, s36, {SLOT}", f"s_cmp_eq_u32 s36, {NS*SLOT}", "s_cselect_b32 s36, 0, s36"])
        return L
    for g in range(2):
        k("s_add_u32 m0, s36, s38")
        k("s_sub_u32 s34, s34, 128")
        for b in group()[4:]: k.add(b)
    late_setup(k)
    k("v_and_b32 v7, 15, v254")
    k("v_lshrrev_b32 v8, 4, v254")
    k("v_and_b32 v6, 7, v7")
    k("v_xor_b32 v6, v6, v8")
    k("v_lshlrev_b32 v14, 7, v7")
    k("v_lshl_add_u32 v14, v6, 4, v14")
    k("v_add_u32 v14, s38, v14")
    k("v_xor_b32 v15, 64, v14")
    trbase(k, 18, 6)
    k("v_mul_u32_u24 v17, 288, v18")
    k("v_add_u32 v17, 16384, v17")
    k("v_lshl_add_u32 v16, v19, 3, v17")
    k("v_mul_u32_u24 v6, 72, v19")
    k("v_add_u32 v208, v17, v6")
    k("s_lshl_b32 s40, s16, 2")
    k("s_add_u32 s40, s40, s18")
    k("s_mul_i32 s6, s17, 18")
    k("s_add_u32 s6, s6, s40")
    k("s_mul_i32 s6, s6, 9216")
    k("s_mul_i32 s7, s17, 589824")
    for p in range(4):
        k(f"s_add_u32 s3, s18, {p}")
        k("s_and_b32 s3, s3, 3")
        k(f"s_lshl_b32 s{20+p}, s3, 7")
        k(f"s_lshl_b32 s{41+p}, s3, 11")
        k(f"s_add_u32 s{41+p}, s{41+p}, s6")
        k(f"s_lshl_b32 s{49+p}, s3, 17")
        k(f"s_add_u32 s{49+p}, s{49+p}, s7")
        k(f"s_add_u32 s{60+p}, s{49+p}, 65536")
        k("s_mul_i32 s3, s3, 72")
        k(f"v_add_u32 v{204+p}, s3, v16")
    k("s_add_u32 s45, s6, 8192")
    k("s_add_u32 s53, s7, 524288")
    for r in list(range(ACC, AS + 12)) + list(range(AM, ONE)): k(f"v_mov_b32 v{r}, 0")
    for i in range(4): k(f"v_mov_b32 v{ONE+i}, 0x3f803f80")
    srd(k, 24, 100, QKV, 3 * XSZ)
    srd(k, 28, 4, WQKV, WQKV_SZ + 0)
    k("s_cmp_lt_u32 s17, 4")
    k(f"s_cselect_b32 s46, {f2u(QSCALE)}, 1.0")
    k("s_lshl_b32 s47, s18, 8")
    k(f"s_add_u32 s47, s47, {LDS_ST}")
    k("s_lshl_b32 s48, s19, 9")
    k("s_lshl_b32 s58, s17, 4")
    k("s_add_u32 s58, s58, s16")
    k("s_lshl_b32 s58, s58, 7")
    k("s_mov_b32 s37, 0")
    k("s_mov_b32 s33, 0")
    import os
    if os.environ.get("FQ"): k.add(k.stamp(8))
    k("s_waitcnt vmcnt(5) lgkmcnt(0)")
    if os.environ.get("FQ"): k.add(k.stamp(9))
    TAB = LDS_ST + 1024
    def v2(r): return f"v[{r}:{r+1}]"
    k("s_cmp_ge_u32 s17, 8")
    k(f"s_cbranch_scc1 {N}_v")
    for path in ("qk", "v"):
        k.path = N + path; L = f"{N}_{path}"
        if path == "v": k(f"{N}_v:")
        AD = (209, 215)
        def addrs(s, first=False):
            src = [14 + s, 204, 205, 206, 207, 208]
            return [f"v_mov_b32 v{AD[s]+i}, v{r}" if first else f"v_add_u32 v{AD[s]+i}, s37, v{r}" for i, r in enumerate(src)]
        def reads(s):
            R = [(f"ds_read_b128 {v4(XF+8*s+4*j)}, v{AD[s]} offset:{2048*j}", f"{L}x{s}") for j in range(2)]
            for b in range(9):
                r = W[s] + 4 * b
                va, off = (AD[s] + 1 + b // 2, 40 * (b & 1)) if b < 8 else (AD[s] + 5, 32)
                R.append((f"ds_read_b64_tr_b16 v[{r}:{r+1}], v{va} offset:{off + s*32*288}", f"{L}w{s}_{b}"))
                R.append((f"ds_read_b64_tr_b16 v[{r+2}:{r+3}], v{va} offset:{off + s*32*288 + 8*288}", f"{L}w{s}_{b}"))
            return R
        NP = 10
        k("s_barrier")
        k.add(addrs(0, True))
        k.add(reads(0)[:NP])
        k(f"{L}_loop:")
        k("s_cmp_ge_u32 s33, 14")
        k("s_cselect_b32 s10, 0, s10")
        k("s_cselect_b32 s14, 0, s14")
        dm = group()
        DG = [2, 7, 13, 18, 24, 29, 35, 40, 46] if not DOT else [2, 6, 10, 15, 20, 24, 28, 34, 38]
        for s in range(2):
            mine = reads(s)[NP:]; nxt = reads(1 - s)[:NP]; ad = addrs(1 - s)
            x = [v4(XF + 8 * s + 4 * j) for j in range(2)]
            mf = []
            dots = []
            for j in range(2):
                if DOT:
                    for q in range(4):
                        r = XF + 8 * s + 4 * j + q
                        dots += [f"v_dot2c_f32_bf16 v{AM+4*j}, v{r}, v{ONE}", f"v_dot2c_f32_bf16 v{AG+4*j}, v{r}, v{r}"]
                    continue
                mf.append((None if j else f"{L}x{s}", f"v_mfma_f32_16x16x32_bf16 {v4(AM+4*j)}, {v4(ONE)}, {x[j]}, {v4(AM+4*j)}"))
                mf.append((None, f"v_mfma_f32_16x16x32_bf16 {v4(AG+4*j)}, {x[j]}, {x[j]}, {v4(AG+4*j)}"))
            for b in range(9):
                w = v4(W[s] + 4 * b)
                ops = [(x[0], ACC + 4 * b), (x[1], ACC + 36 + 4 * b)]
                if b in (0, 1, 8): ops.append((v4(ONE), AS + 4 * min(b, 2)))
                for n, (o, a) in enumerate(ops):
                    ins = f"v_mfma_f32_16x16x32_bf16 {v4(a)}, {w}, {o}, {v4(a)}" if path == "qk" else f"v_mfma_f32_16x16x32_bf16 {v4(a)}, {o}, {w}, {v4(a)}"
                    mf.append((None if n else f"{L}w{s}_{b}", ins))
            nm = len(mf); o = nm - 25
            for i, (tag, ins) in enumerate(mf):
                if tag: k(f"WAITLG {tag}")
                k(ins)
                nd = 0
                if (nm * s + i) in DG: k.add(dm.pop(0)); nd = 2
                elif mine:
                    nd = 1 if i < 4 + o else min(2, len(mine)); k.add([mine.pop(0) for _ in range(nd)])
                elif ad and i < 13 + o // 2:
                    if s == 1 and len(ad) == 6:
                        k(f"s_add_u32 s37, s37, {SLOT}"); k(f"s_cmp_eq_u32 s37, {NS*SLOT}"); k("s_cselect_b32 s37, 0, s37")
                    k.add([ad.pop(0) for _ in range(2)]); nd = 1
                elif s == 1 and i == 13 + o // 2:
                    k(f"s_waitcnt vmcnt({9 - len(dm)}) lgkmcnt(0)")
                    k("s_barrier")
                elif i >= 14 + o // 2 and nxt:
                    nd = min(len(nxt), 1 + (i % 2 == 0 or DOT and i % 3 == 0)); k.add([nxt.pop(0) for _ in range(nd)])
                for _ in range(2 - nd):
                    if dots and (s == 0 or i < 14 + o // 2 or True): k(dots.pop(0))
            k.add(dots)
            assert not nxt and not mine and not ad and (s == 0 or not dm), (len(nxt), len(mine), len(ad), len(dm))
            k("s_cmp_lg_u32 s33, s40")
            k(f"s_cbranch_scc1 {L}_ns{s}")
            for b in range(9):
                k(f"buffer_store_dwordx4 {v4(W[s]+4*b)}, v1, s[28:31], s{41 + b//2} offen offset:{(b & 1)*1024} {SC}")
            k(f"{L}_ns{s}:")
            k("s_add_u32 s33, s33, 1")
        k("s_cmp_lt_u32 s33, 18")
        k(f"s_cbranch_scc1 {L}_loop")
        k.add(k.stamp(1))
        SV = 68
        if path == "qk": k("v_lshlrev_b32 v10, 4, v8")
        else: k("v_lshlrev_b32 v10, 2, v7")
        k(f"v_add_u32 v10, {TAB}, v10")
        for p in range(4): k(f"v_add_u32 v{204+p}, s{20+p}, v10")
        k("v_and_b32 v6, 3, v7")
        k("v_lshrrev_b32 v9, 2, v7")
        k("s_waitcnt lgkmcnt(0)")
        for i, (va, off) in enumerate(((204, 0), (204, 64), (10, 512))):
            if path == "qk": k(f"ds_write_b128 v{va}, {v4(AS+4*i)} offset:{off}")
            else: k(f"ds_write_b32 v{va}, v{AS+4*i} offset:{off}")
        for i in range(1, 4):
            if DOT: break
            k(f"v_cmp_eq_u32 vcc, {i}, v6")
            for j in range(2): k(f"v_cndmask_b32 v{AG+4*j}, v{AG+4*j}, v{AG+4*j+i}, vcc")
        if not DOT:
            k("v_cmp_eq_u32 vcc, v9, v8")
            for j in range(2): k(f"v_cndmask_b32 v{AG+4*j}, 0, v{AG+4*j}, vcc")
        k("s_waitcnt lgkmcnt(0)")
        k("s_barrier")
        for b in range(9):
            va, off = (204 + b // 2, 64 * (b & 1)) if b < 8 else (10, 512)
            if path == "qk": k(f"ds_read_b128 {v4(SV+4*b)}, v{va} offset:{off}")
            else: k(f"ds_read_b32 v{SV+2*b}, v{va} offset:{off}")
        xreduce(k, [AG, AG + 4] + ([AM, AM + 4] if DOT else []), [AG + 1, AG + 5] + ([AM + 1, AM + 5] if DOT else []))
        for op in range(7):
            for j in range(2):
                m, g = AM + 4 * j, AG + 4 * j
                k([f"v_mul_f32 v{m}, {f2u(1/576)}, v{m}", f"v_mul_f32 v{g}, {f2u(1/576)}, v{g}", f"v_fma_f32 v{g}, -v{m}, v{m}, v{g}",
                   f"v_max_f32 v{g}, 0, v{g}", f"v_add_f32 v{g}, {f2u(1e-5)}, v{g}", f"v_rsq_f32 v{13+2*j}, v{g}", f"v_sub_f32 v{12+2*j}, 0, v{m}"][op])
        R0 = 104; PR = 32
        if path == "qk":
            k("v_mul_f32 v13, s46, v13")
            k("v_mul_f32 v15, s46, v15")
            k("v_and_b32 v18, 1, v8")
            k("v_lshlrev_b32 v18, 9, v18")
            k("v_lshrrev_b32 v19, 1, v8")
            k("v_lshl_add_u32 v18, v19, 8, v18")
            k("v_lshl_add_u32 v18, v7, 4, v18")
            k("v_add_u32 v18, s48, v18")
        else:
            k("v_lshl_add_u32 v11, v7, 2, s47")
            k("s_waitcnt lgkmcnt(0)")
            for q in range(4): k(f"ds_write_b32 v11, v{12+q} offset:{64*q}")
            k("v_lshl_add_u32 v11, v8, 4, s47")
            for q in range(4): k(f"ds_read_b128 {v4(R0+4*q)}, v11 offset:{64*q}")
            k("v_add_u32 v18, s48, v1")
        k("s_waitcnt lgkmcnt(0)")
        for b in range(9):
            P = PR + 4 * b
            for j in range(2):
                a = ACC + 36 * j + 4 * b
                for i in (0, 2):
                    if path == "qk": k(f"v_pk_fma_f32 {v2(a+i)}, {v2(12+2*j)}, {v2(SV+4*b+i)}, {v2(a+i)} op_sel_hi:[0,1,1]")
                    else: k(f"v_pk_fma_f32 {v2(a+i)}, {v2(R0+8*j+i)}, {v2(SV+2*b)}, {v2(a+i)} op_sel_hi:[1,0,1]")
                for i in (0, 2):
                    if path == "qk": k(f"v_pk_mul_f32 {v2(a+i)}, {v2(a+i)}, {v2(12+2*j)} op_sel:[0,1] op_sel_hi:[1,1]")
                    else: k(f"v_pk_mul_f32 {v2(a+i)}, {v2(a+i)}, {v2(R0+8*j+4+i)}")
                k(f"v_cvt_pk_bf16_f32 v{P+2*j}, v{a}, v{a+1}")
                k(f"v_cvt_pk_bf16_f32 v{P+2*j+1}, v{a+2}, v{a+3}")
            def fin(b):
                P = PR + 4 * b
                if path == "qk":
                    k(f"v_permlane16_swap_b32 v{P}, v{P+2}")
                    k(f"v_permlane16_swap_b32 v{P+1}, v{P+3}")
                k(f"buffer_store_dwordx4 {v4(P)}, v18, s[24:27], s{53 if b == 8 else (60 if b & 1 else 49) + b // 2} offen {SC}")
            if b: fin(b - 1)
        fin(8)
        if path == "qk": k(f"s_branch {N}_cs")
    k.path = None
    k(f"{N}_cs:")
    k("s_cmp_lg_u32 s40, 63")
    k("s_cbranch_scc1 at_main")
    srd(k, 28, 4, SQKV, SQKV_SZ)
    k("s_mul_i32 s41, s17, 576")
    k("v_min_u32 v6, 35, v254")
    k("v_lshlrev_b32 v6, 4, v6")
    k(f"v_add_u32 v9, {TAB}, v6")
    k(f"ds_read_b128 {v4(96)}, v9")
    k("s_waitcnt lgkmcnt(0)")
    k(f"buffer_store_dwordx4 {v4(96)}, v6, s[28:31], s41 offen {SC}")
    k("s_branch at_main")
```

```python
import sys
from asmgen import *
from layout import *
import k_prep

def finalize(k, entries, verbose=True):
    k.resolve_waits()
    added = k.fix_hazards()
    errs = []
    for e in entries:
        if getattr(k, "script", False):
            for wg in (0, 1, 77, 200, 255):
                for w in range(getattr(k, "nwaves", 4)): errs += k.check(e, f"{e}[wg{wg},w{w}]", sim=(wg, w))
            continue
        fw = list(dict.fromkeys(k.fwd_targets()))
        runs = [set()] + [{t} for t in fw if not t.endswith("_end")]
        extra = getattr(k, "extra_paths", [])
        for tk in getattr(k, 'only_paths', None) or (runs + extra):
            if tk in getattr(k, 'skip_paths', []): continue
            errs += k.check(e, e + str(sorted(tk)), taken=tk)
    errs = list(dict.fromkeys(errs))
    for x in errs[:40]: print("ERR", x)
    if verbose: print(entries, "instrs:", sum(1 for x in k.ins if x.kind not in ("label", "dir")), "nops added:", added, "errors:", len(errs))
    assert not errs

HEADER = open("interleave_layers__sliding_block__swiglu_ffn__prompt.s.ref").read().split("; Override launch")[0]

def build(part, path):
    k, launches, desc, entries = part
    finalize(k, entries)
    _, g, b, lds = launches[0]
    out = HEADER + f"; @launch grid=({g},1,1) block=({b},1,1) lds={lds}\n"
    out += '.amdgcn_target "amdgcn-amd-amdhsa--gfx950"\n.text\n'
    t = k.text().replace(entries[0] + ":\n", entries[0] + ":\ncode_mega:\n")
    import os, re
    if not os.environ.get("NOSC1W"):
        lines = t.split("\n"); inq0 = False
        for i, l in enumerate(lines):
            if l.startswith("q0_tile"): inq0 = True
            if l.startswith("q2_l1"): inq0 = False
            if inq0 or not l.startswith("  buffer_load") or "sc1" in l or " nt" in l: continue
            lines[i] = l[:-4] + " sc1 lds" if l.endswith(" lds") else l.rstrip() + " sc1"
        t = "\n".join(lines)
    PM = os.environ.get("POLLMOD"); SM = os.environ.get("FLAGMOD")
    if PM: t = re.sub(r"(buffer_load_dword v2\d\d, v2\d\d, s\[96:99\], s\d+ offen) sc1", lambda m: m.group(1) + " " + PM, t)
    if SM: t = re.sub(r"(buffer_store_dword v253, v252, s\[96:99\], s\d+ offen) sc1", lambda m: m.group(1) + " " + SM, t)
    out += t + "code_end:\n  s_endpgm\n" + desc
    open(path, "w").write(out)

if __name__ == "__main__":
    import k_mega
    build(k_mega.gen(), sys.argv[1] if len(sys.argv) > 1 else "main.s")
```

```python
from asmgen import *
from layout import *
from k_prep import srd, entry, xreduce
from k_qkv import load_stats, finish_stats, f2u, QSCALE
import k_gemmk as G
import k_ffn1 as F1
import m_attn as AT
import m_pack as PK
import m_qkv0 as Q0
import m_ffn as FF
from k_prep import code_prefetch
import math, os

GRID = 256
INPACK = True
KNAME = 'interleave_layers__sliding_block__swiglu_ffn__prompt_kernel'
SC = "sc1"
LDS = 39 * 4096 + 1024 + 576
SPIN = 150000
SLEEP = int(os.environ.get('SLEEP', '0'))
def v4(r): return f"v[{r}:{r+3}]"
def a4(r): return f"a[{r}:{r+3}]"

def make_tag(k):
    k("s_waitcnt lgkmcnt(0)")
    k("s_mul_i32 s3, s93, 0x9E3779B1")
    k("s_add_u32 s3, s3, 0x7F4A7C15")
    k("v_mov_b32 v253, s3")

def signal(k, so, nvm, lab):
    k(f"s_waitcnt vmcnt({nvm})")
    k("s_barrier")
    k("s_cmp_lg_u32 s18, 0")
    k(f"s_cbranch_scc1 {lab}_sg")
    k("s_mov_b64 exec, 1")
    k(f"buffer_store_dword v253, v252, s[96:99], s{so} offen {SC}")
    k("s_mov_b64 exec, -1")
    k(f"{lab}_sg:")

PREPOLL = bool(os.environ.get("PRE")); _pp = [0]; PMODE = int(os.environ.get("PMODE", "1")); PSL = int(os.environ.get("PSL", "0"))
def pre_poll(k, so, n):
    if not PREPOLL: return
    _pp[0] += 1
    k("s_cmp_lg_u32 s18, 0")
    k(f"s_cbranch_scc1 pp{_pp[0]}")
    k(f"v_min_u32 v255, {n-1}, v254")
    k(f"v_lshlrev_b32 v255, {FS}, v255")
    k(f"buffer_load_dword v251, v255, s[96:99], s{so} offen {SC}")
    k(f"pp{_pp[0]}:")

def wait_flags(k, so, n, lab, skip_if=None, keep=0, pre=False):
    k("s_cmp_lg_u32 s18, 0")
    k(f"s_cbranch_scc1 {lab}_wn")
    if skip_if:
        k(f"s_cmp_eq_u32 {skip_if}, 0")
        k(f"s_cbranch_scc1 {lab}_wn")
    if n:
        k(f"v_min_u32 v255, {n-1}, v254")
        k(f"v_lshlrev_b32 v255, {FS}, v255")
    k(f"s_mov_b32 s3, {SPIN}")
    ld = lambda r: k(f"buffer_load_dword v{r}, v255, s[96:99], s{so} offen {SC}")
    def prechk():
        if not (pre and PREPOLL): return k("s_sleep 2")
        k("s_waitcnt vmcnt(1)")
        k("v_cmp_ne_u32 vcc, v253, v251")
        k("s_nop 1")
        k("s_cmp_eq_u64 vcc, 0")
        k(f"s_cbranch_scc1 {lab}_wd")
    if PMODE == 3: ld(249); prechk(); ld(250); k("s_sleep 2")
    if PMODE == 2: ld(249); prechk(); k("s_sleep 2")
    k(f"{lab}_wl:")
    for r, nx in {3: ((249, 251), (250, 249), (251, 250)), 2: ((249, 250), (250, 249)), 1: ((249, 249),)}[PMODE]:
        ld(nx)
        k(f"s_waitcnt vmcnt({PMODE-1})")
        k(f"v_cmp_ne_u32 vcc, v253, v{r}")
        k("s_nop 1")
        k("s_cmp_eq_u64 vcc, 0")
        k(f"s_cbranch_scc1 {lab}_wd")
        if PSL: k(f"s_sleep {PSL}")
    k("s_sub_u32 s3, s3, 1")
    k("s_cmp_lg_u32 s3, 0")
    k(f"s_cbranch_scc1 {lab}_wl")
    k(f"{lab}_wn:")
    k(f"s_waitcnt vmcnt({keep})")
    k(f"{lab}_wd:")
    k("s_barrier")

def emit_gk(k):
    N = "gk"; WL = 77824; WB = 32; ACC = 104; RES = 128; U = 140; PK_ = 148
    def v2(r): return f"v[{r}:{r+1}]"
    k(f"{N}_main:")
    k("s_and_b32 s20, s2, 7")
    k("s_lshr_b32 s21, s2, 3")
    k("s_lshr_b32 s16, s20, 1")
    k("s_lshl_b32 s16, s16, 3")
    k("s_lshr_b32 s22, s21, 2")
    k("s_add_u32 s16, s16, s22")
    k("s_and_b32 s17, s20, 1")
    k("s_lshl_b32 s17, s17, 2")
    k("s_and_b32 s22, s21, 3")
    k("s_add_u32 s17, s17, s22")
    k(f"s_mul_i32 s22, s17, {9*9216}")
    k(f"s_add_u32 s22, s22, {WO - WL}")
    k("s_add_u32 s12, s4, s22"); k("s_addc_u32 s13, s5, 0"); k("s_and_b32 s13, s13, 0xffff"); k(f"s_mov_b32 s14, {WL + 9*9216}"); k("s_mov_b32 s15, 0x20000")
    k("s_lshl_b32 s23, s18, 10")
    def wp(i):
        k(f"s_add_u32 m0, s23, {WL + i*4096}")
        k("buffer_load_dwordx4 v1, s[12:15], m0 offen lds")
    def resid():
        k(f"buffer_load_dwordx4 {v4(RES)}, v16, s[24:27], s33 offen {SC}")
        k(f"buffer_load_dwordx4 {v4(RES+4)}, v16, s[24:27], s48 offen {SC}")
        k(f"buffer_load_dwordx4 {v4(RES+8)}, v17, s[24:27], s49 offen {SC}")
    for i in range(11, 20): wp(i)
    assert WL + 11 * 4096 >= PK.LB + 192 * 288
    if os.environ.get("FP"): k.add(k.stamp(4))
    signal(k, 58, 9, "gk")
    if os.environ.get("FP"): k.add(k.stamp(8))
    k("s_lshr_b32 s45, s16, 2")
    k(f"s_lshl_b32 s45, s45, {5+FS}")
    k("s_add_u32 s45, s45, s59")
    k(f"s_add_u32 s45, s45, {F_ATT*FLG_SET}")
    pre_poll(k, 45, 32)
    for i in range(11): wp(i)
    k("s_cmp_lg_u32 s18, 0")
    k(f"s_cbranch_scc1 {N}_w20")
    wp(20)
    k(f"{N}_w20:")
    k("s_cmp_eq_u32 s54, 0")
    k("s_cselect_b32 s24, s94, s100"); k("s_cselect_b32 s25, s95, s101")
    assert XIN == 0
    k("s_cselect_b32 s46, 16, 256")
    k("s_cselect_b32 s47, 1152, 16")
    k("s_and_b32 s25, s25, 0xffff"); k(f"s_mov_b32 s26, {XSZ}"); k("s_mov_b32 s27, 0x20000")
    k("v_and_b32 v10, 15, v254")
    k("v_bfe_u32 v12, v254, 4, 1")
    k("v_lshrrev_b32 v13, 5, v254")
    k("v_lshl_add_u32 v12, v12, 1, v13")
    k("v_mul_lo_u32 v17, v10, s47")
    k("v_mul_lo_u32 v16, v12, s46")
    k("v_add_u32 v16, v16, v17")
    k("s_lshl_b32 s30, s16, 2")
    k("s_add_u32 s30, s30, s18")
    k("s_mul_i32 s31, s30, 18432")
    k("s_mul_i32 s32, s17, 9")
    k("s_mul_i32 s33, s32, s46")
    k("s_add_u32 s33, s33, s31")
    k("s_lshl_b32 s3, s46, 2")
    k("s_add_u32 s48, s33, s3")
    k("s_add_u32 s49, s48, s3")
    k("s_cmp_lg_u32 s54, 0")
    k(f"s_cbranch_scc1 {N}_r0")
    resid()
    k(f"{N}_r0:")
    srd(k, 8, 100, OO, XSZ)
    srd(k, 36, 100, X1, XSZ)
    srd(k, 40, 100, ST1, STSZ)
    k("v_add_u32 v2, s31, v1")
    k(f"v_add_u32 v3, {WL}, v1")
    k(f"v_add_u32 v4, {WL + 65536}, v1")
    for i in range(1, 5): k(f"s_mov_b32 s{59+i}, {4096*i}")
    k("v_lshlrev_b32 v18, 4, v10")
    k("v_lshl_add_u32 v9, v12, 8, v18")
    k("s_lshl_b32 s44, s32, 8")
    k("s_add_u32 s44, s44, s31")
    k("s_lshl_b32 s51, s30, 10")
    k("s_lshr_b32 s20, s17, 1")
    k("s_lshl_b32 s20, s20, 8")
    k("s_add_u32 s51, s51, s20")
    k("s_and_b32 s20, s17, 1")
    k("s_lshl_b32 s20, s20, 3")
    k("s_add_u32 s51, s51, s20")
    k("v_mov_b32 v20, 0")
    k("v_mov_b32 v21, 0")
    k("v_mov_b32 v22, 0xffff0000")
    k("v_mov_b32 v23, 0x3f803f80")
    k("s_lshl_b32 s58, s16, 3")
    k("s_add_u32 s58, s58, s17")
    k(f"s_lshl_b32 s58, s58, {FS}")
    k("s_add_u32 s58, s58, s59")
    k(f"s_add_u32 s58, s58, {F_WO*FLG_SET}")
    if not os.environ.get("NOCPF2"):
        k("s_lshr_b32 s20, s2, 3")
        k("s_lshl_b32 s20, s20, 2")
        k("s_add_u32 s20, s20, s18")
        k("s_mov_b64 exec, 7")
        code_prefetch(k, "f1_main", "code_end", 128, 20, 254, 248, 28, ahead=True)
        k("s_mov_b64 exec, -1")
    wait_flags(k, 45, 32, "gk", pre=True)
    k.add(k.stamp(7))
    k("s_cmp_eq_u32 s54, 0")
    k(f"s_cbranch_scc1 {N}_r1")
    resid()
    k(f"{N}_r1:")
    def ol(ks): return (f"buffer_load_dwordx4 {a4(4*ks)}, v2, s[8:11], {'0' if ks < 4 else f's{59 + ks//4}'} offen offset:{(ks % 4)*1024} {SC}", f"o{ks}")
    NO = 11
    k.add([ol(ks) for ks in range(NO)])
    def rd(p, f):
        off = p * 9216 + f * 1024
        return (f"ds_read_b128 {v4(WB + 36*(p % 2) + 4*f)}, v{3 if off < 65536 else 4} offset:{off % 65536}", f"gw{p}_{f}")
    order = [0, 1, 2, 3, 8, 4, 5, 6, 7]
    k.add([rd(0, f) for f in order])
    k("s_cmp_lg_u32 s54, 0")
    k(f"s_cbranch_scc1 {N}_nopk2")
    k.path = "pkflag"
    k(f"s_lshl_b32 s3, s2, {FS}")
    k(f"s_add_u32 s3, s3, {F_PK*FLG_SET}")
    k("s_mov_b64 exec, 1")
    k(f"buffer_store_dword v253, v252, s[96:99], s3 offen {SC}")
    k("s_mov_b64 exec, -1")
    k.path = None
    k(f"{N}_nopk2:")
    k("WAITLG gw0_8")
    k("WAITVM o0")
    if os.environ.get("FW"): k.add(k.stamp(10))
    mf = []; fixed = {}
    def fx(i, x): fixed.setdefault(i, []).extend(x if isinstance(x, list) else [x])
    for p in range(9):
        for ks in range(2):
            K = 2 * p + ks; i0 = len(mf)
            if K: fx(i0 - 1, [f"WAITVM o{K}", f"WAITLG gw{p}_{7 if ks else 8}"])
            if K + NO < 18: fx(i0 + 4, ol(K + NO))
            for b in range(5):
                f = 4 * ks + b if b < 4 else 8; a = ACC + 4 * (b if b < 4 else 4 + ks)
                mf.append(f"v_mfma_f32_16x16x32_bf16 {v4(a)}, {v4(WB + 36*(p % 2) + 4*f)}, {a4(4*K)}, {'0' if p == 0 and (ks == 0 or b == 4) else v4(a)}")
        if p < 8:
            g = [len(mf) - 10 + x for x in (0, 1, 2, 3, 5, 6, 7, 8, 9)]
            for gg, f in zip(g, order): fx(gg, rd(p + 1, f))
    pack(k, mf, fixed, [])
    if os.environ.get("FW"): k.add(k.stamp(11))
    def finish(x, y, res, pk, va, so):
        for q in range(4):
            r = (x, x + 2, y, y + 2)[q]
            k(f"v_pk_add_f32 {v2(r)}, {v2(r)}, {v2(U + 8*res + 2*q)}")
        for q in range(4):
            r = (x, x + 2, y, y + 2)[q]
            k(f"v_cvt_pk_bf16_f32 v{pk+q}, v{r}, v{r+1}")
        k(f"buffer_store_dwordx4 {v4(pk)}, v{va}, s[36:39], s44 offen offset:{so} {SC}")
    U = 140; PKR = 164
    for q in range(12):
        k(f"v_lshlrev_b32 v{U+2*q}, 16, v{RES+q}")
        k(f"v_and_b32 v{U+2*q+1}, v22, v{RES+q}")
    for pr in range(2):
        x, y = ACC + 8 * pr, ACC + 8 * pr + 4
        for i in range(4): k(f"v_permlane16_swap_b32 v{x+i}, v{y+i}")
        finish(x, y, pr, PKR + 4 * pr, 9, 1024 * pr)
    Z = ACC + 16; T = WB
    for i in range(4): k(f"v_mov_b32 v{T+i}, v{Z+i}")
    for i in range(4): k(f"v_permlane32_swap_b32 v{Z+4+i}, v{T+i}")
    for i in (0, 2): k(f"v_pk_add_f32 {v2(Z+i)}, {v2(Z+i)}, {v2(T+i)}")
    for i in range(4): k(f"v_mov_b32 v{Z+4+i}, v{Z+i}")
    for i in range(4): k(f"v_permlane16_swap_b32 v{Z+i}, v{Z+4+i}")
    k("s_mov_b64 exec, 0xffff")
    finish(Z, Z + 4, 2, PKR + 8, 18, 2048)
    for q in range(8, 12):
        k(f"v_dot2c_f32_bf16 v20, v{PKR+q}, v23")
        k(f"v_dot2c_f32_bf16 v21, v{PKR+q}, v{PKR+q}")
    k("s_mov_b64 exec, -1")
    for q in range(8):
        k(f"v_dot2c_f32_bf16 v20, v{PKR+q}, v23")
        k(f"v_dot2c_f32_bf16 v21, v{PKR+q}, v{PKR+q}")
    xreduce(k, [20, 21], [24, 25])
    k("s_mov_b64 exec, 0xffff")
    k(f"buffer_store_dwordx2 v[20:21], v18, s[40:43], s51 offen {SC}")
    k("s_mov_b64 exec, -1")
    if os.environ.get("FW"): k.add(k.stamp(12))

def emit_qkv(k, late_setup):
    N = "q2"; LDS_ST = 39 * 4096; LDS_S = LDS_ST + 1024
    k(f"{N}_main:")
    k("s_and_b32 s6, s2, 7")
    k("s_lshr_b32 s7, s2, 3")
    k("s_mul_i32 s16, s7, 43")
    k("s_lshr_b32 s16, s16, 8")
    k("s_mul_i32 s17, s16, 6")
    k("s_sub_u32 s17, s7, s17")
    k("s_lshr_b32 s7, s6, 1")
    k("s_lshl_b32 s7, s7, 2")
    k("s_add_u32 s16, s16, s7")
    k("s_and_b32 s6, s6, 1")
    k("s_mul_i32 s6, s6, 6")
    k("s_add_u32 s17, s17, s6")
    k("s_cmp_eq_u32 s54, 0")
    k("s_waitcnt lgkmcnt(0)")
    k(f"s_cbranch_scc0 {N}_l1")
    k("s_mov_b64 s[94:95], s[8:9]")
    k("s_mov_b64 s[12:13], s[10:11]")
    k("s_cmp_ge_u32 s2, 192")
    k("s_cbranch_scc1 q0_idle")
    Q0.emit(k, late_setup)
    k("q0_idle:")
    k("s_sub_u32 s6, s2, 192")
    k("s_lshr_b32 s6, s6, 3")
    k("s_lshl_b32 s6, s6, 2")
    k("s_add_u32 s6, s6, s18")
    if not os.environ.get("NORA"):
        k("s_sub_u32 s7, s2, 192")
        k("s_lshl_b32 s7, s7, 2")
        k("s_add_u32 s7, s7, s18")
        k("s_and_b32 s9, s9, 0xffff"); k(f"s_mov_b32 s10, {XSZ}"); k("s_mov_b32 s11, 0x20000")
        k("s_and_b32 s13, s13, 0xffff"); k(f"s_mov_b32 s14, {WQKV_SZ}"); k("s_mov_b32 s15, 0x20000")
        k("v_lshlrev_b32 v2, 15, v254")
        k("s_lshl_b32 s3, s7, 7")
        k(f"s_add_u32 s3, s3, {128*3456}")
        k("buffer_load_dword v245, v2, s[12:15], s3 offen")
        k("v_and_b32 v2, 7, v254")
        k("v_mul_u32_u24 v2, 1152, v2")
        k("v_lshrrev_b32 v3, 3, v254")
        k("v_min_u32 v3, 6, v3")
        k("v_lshl_add_u32 v2, v3, 7, v2")
        k("s_mul_i32 s3, s7, 9216")
        k("buffer_load_dword v239, v2, s[8:11], s3 offen offset:256")
    code_prefetch(k, "code_mega", "code_end", 32, 6, 254, 246, 20)
    late_setup(k)
    make_tag(k)
    assert PK.NI1 >= 2
    PK.idle_jobs(k)
    late_setup.early(k, "pe1")
    k("s_branch at_main")
    k(f"{N}_l1:")
    k("s_mul_i32 s6, s17, 165888")
    k(f"s_add_u32 s6, s6, {WQKV}")
    k("s_add_u32 s12, s4, s6"); k("s_addc_u32 s13, s5, 0"); k("s_and_b32 s13, s13, 0xffff"); k("s_mov_b32 s14, 165888"); k("s_mov_b32 s15, 0x20000")
    signal(k, 58, 0, "dn")
    if not os.environ.get("DBGOUT"): k.add(k.stamp(0))
    k("s_cmp_ge_u32 s2, 192")
    k("s_cbranch_scc1 at_main")
    k(f"s_lshl_b32 s49, s16, {4+FS}")
    k(f"s_add_u32 s49, s49, {F_DN*FLG_SET}")
    pre_poll(k, 49, 16)
    QPRE = int(os.environ.get("QPRE", "27")); GLKS = int(os.environ.get("GLKS", "14"))
    k("s_lshl_b32 s38, s18, 10")
    def wpiece(i): return [f"s_add_u32 m0, s38, {i*4096}", "s_nop 0", ("buffer_load_dwordx4 v1, s[12:15], m0 offen lds", "qwl")]
    for i in range(FF.QE, QPRE): k.add(wpiece(i))
    k("s_lshl_b32 s19, s16, 3")
    k("s_lshl_b32 s6, s18, 1")
    k("s_add_u32 s19, s19, s6")
    k("s_mul_i32 s6, s19, 18432")
    k("v_add_u32 v2, s6, v1")
    k("v_add_u32 v3, 18432, v2")
    for i in range(1, 5): k(f"s_mov_b32 s{32+i}, {4096*i}")
    k(f"v_add_u32 v6, {17*9216}, v1")
    k("v_and_b32 v7, 15, v254")
    k("v_lshrrev_b32 v8, 4, v254")
    k("s_lshl_b32 s6, s19, 11")
    k("v_add_u32 v9, s6, v1")
    k("v_min_u32 v10, 35, v254")
    k("v_lshlrev_b32 v10, 4, v10")
    k("s_mul_i32 s42, s17, 576")
    srd(k, 8, 100, XIN, XSZ)
    srd(k, 20, 100, STIN, ST2SZ)
    srd(k, 28, 4, SQKV, SQKV_SZ)
    srd(k, 24, 100, QKVB, 3 * XSZ)
    k("v_add_u32 v16, 65536, v1")
    k("v_add_u32 v17, 131072, v1")
    k("s_cmp_lt_u32 s17, 4")
    k(f"s_cselect_b32 s46, {f2u(QSCALE)}, 1.0")
    k("s_lshl_b32 s47, s18, 8")
    k(f"s_add_u32 s47, s47, {LDS_ST}")
    k("s_mul_i32 s45, s17, 589824")
    k("s_lshl_b32 s48, s19, 9")
    k("s_lshl_b32 s58, s17, 4")
    k("s_add_u32 s58, s58, s16")
    k(f"s_lshl_b32 s58, s58, {FS}")
    k("s_add_u32 s58, s58, s59")
    R0 = 176; CS = 184; W = (32, 68); ACC = 104; SV = 196; PR = 232; WL = 144
    def wlast(b):
        so = "0" if b < 4 else f"s{32 + b // 4}"
        return (f"buffer_load_dwordx4 {a4(WL+4*b)}, v6, s[12:15], {so} offen offset:{(b % 4) * 1024}", "qwlast")
    k(f"buffer_load_dwordx4 v[{CS}:{CS+3}], v10, s[28:31], s42 offen")
    wait_flags(k, 49, 16, N, pre=True)
    k.add(k.stamp(1))
    def xfrag(ks, j): return 4 * (ks * 2 + j)
    def xl(ks):
        so = "0" if ks < 4 else f"s{32 + ks // 4}"
        return [(f"buffer_load_dwordx4 {a4(xfrag(ks, j))}, v{2+j}, s[8:11], {so} offen offset:{(ks % 4) * 1024} {SC}", f"qx{ks}") for j in range(2)]
    D = 5
    for ks in range(D): k.add(xl(ks))
    for j in range(2):
        for h in range(2):
            k(f"buffer_load_dwordx4 {v4(R0 + 4*j + 240*0 + (0 if h == 0 else 64))}, v9, s[20:23], 0 offen offset:{j*2048 + h*1024} {SC}", "qst")
    k("s_cmp_ge_u32 s17, 8")
    k(f"s_cbranch_scc1 {N}_v")
    for path in ("qk", "v"):
        k.path = path
        if path == "v": k(f"{N}_v:")
        kf = Kern()
        kf(f"v_add_u32 v10, {LDS_S}, v10")
        kf(f"ds_write_b128 v10, v[{CS}:{CS+3}]")
        kf("WAITVM qst")
        for r in range(R0, R0 + 8): kf(f"v_add_f32 v{r}, v{r}, v{r+64}")
        finish_stats(kf, 2, R0)
        kf(f"v_rsq_f32 v13, v{R0+1}")
        kf(f"v_rsq_f32 v15, v{R0+5}")
        kf(f"v_sub_f32 v12, 0, v{R0}")
        kf(f"v_sub_f32 v14, 0, v{R0+4}")
        if path == "qk":
            kf("v_mul_f32 v13, s46, v13")
            kf("v_mul_f32 v15, s46, v15")
            kf(f"v_lshlrev_b32 v10, 4, v8")
            kf("v_and_b32 v18, 1, v8")
            kf("v_lshlrev_b32 v18, 9, v18")
            kf("v_lshrrev_b32 v19, 1, v8")
            kf("v_lshl_add_u32 v18, v19, 8, v18")
            kf("v_lshl_add_u32 v18, v7, 4, v18")
            kf("v_add_u32 v18, s48, v18")
        else:
            kf("v_lshl_add_u32 v11, v7, 3, s47")
            kf("ds_write_b64 v11, v[12:13]")
            kf("ds_write_b64 v11, v[14:15] offset:128")
            kf("v_lshl_add_u32 v11, v8, 5, s47")
            for j in range(2):
                for h in range(2):
                    kf(f"ds_read_b128 v[{R0+8*j+4*h}:{R0+8*j+4*h+3}], v11 offset:{j*128+h*16}", "qvs")
            kf(f"v_lshlrev_b32 v10, 2, v7")
            kf("v_add_u32 v18, s48, v1")
        kf(f"v_add_u32 v10, {LDS_S}, v10")
        def rd(ks, b):
            r = W[ks % 2] + 4 * b
            off = ks * 9216 + b * 1024
            va = 1 if off < 65536 else (16 if off < 131072 else 17)
            return (f"ds_read_b128 v[{r}:{r+3}], v{va} offset:{off % 65536}", f"qw{ks}_{b}")
        def mfma(ks, b, j):
            w = v4(W[ks % 2] + 4 * b) if ks < 17 else a4(WL + 4 * b)
            a = ACC + 4 * (j * 9 + b); x = xfrag(ks, j)
            c = "0" if ks == 0 else v4(a)
            if path == "qk": return f"v_mfma_f32_16x16x32_bf16 {v4(a)}, {w}, {a4(x)}, {c}"
            return f"v_mfma_f32_16x16x32_bf16 {v4(a)}, {a4(x)}, {w}, {c}"
        def epi(b):
            L = []; P = PR + 4 * (b % 2)
            for j in range(2):
                a = ACC + 4 * (j * 9 + b)
                if path == "qk":
                    for i in range(4): L.append(f"v_fmac_f32 v{a+i}, v{12+2*j}, v{SV+4*b+i}")
                    for i in range(4): L.append(f"v_mul_f32 v{a+i}, v{a+i}, v{13+2*j}")
                else:
                    for i in range(4): L.append(f"v_fmac_f32 v{a+i}, v{R0+8*j+2*i}, v{SV+b}")
                    for i in range(4): L.append(f"v_mul_f32 v{a+i}, v{a+i}, v{R0+8*j+2*i+1}")
                L.append(f"v_cvt_pk_bf16_f32 v{P+2*j}, v{a}, v{a+1}")
                L.append(f"v_cvt_pk_bf16_f32 v{P+2*j+1}, v{a+2}, v{a+3}")
            if path == "qk":
                L.append(f"v_permlane16_swap_b32 v{P}, v{P+2}")
                L.append(f"v_permlane16_swap_b32 v{P+1}, v{P+3}")
            L.append(f"buffer_store_dwordx4 v[{P}:{P+3}], v18, s[24:27], s45 offen {SC}")
            if b < 8: L.append("s_add_u32 s45, s45, 65536")
            return L
        for b in range(9): k.add([rd(0, b)])
        k("WAITLG qw0_2")
        k("WAITVM qx0")
        if os.environ.get("FW"): k.add(k.stamp(4))
        mf = []; fixed = {}
        def fx(i, x): fixed.setdefault(i, []).extend(x if isinstance(x, list) else [x])
        flow = [(x, 4 * 18) for x in kf.ins]
        for b in range(9):
            ins = (f"ds_read_b128 v[{SV+4*b}:{SV+4*b+3}], v10 offset:{b*64}", "sv") if path == "qk" else (f"ds_read_b32 v{SV+b}, v10 offset:{b*64}", "sv")
            flow.append((ins, 9 * 18 + 8 * b))
        for ks in range(16):
            i0 = len(mf)
            if ks > 0: fx(i0 - 2, f"WAITVM qx{ks}")
            ext = [[x] for x in xl(ks + D)] if ks + D < 18 else []
            rest = list(range(QPRE, 39)); per = -(-len(rest) // 5)
            if ks < 5: ext += [wpiece(i) for i in rest[ks * per:(ks + 1) * per]]
            if 7 <= ks < 10: ext += [[wlast(b)] for b in range(3 * (ks - 7), 3 * (ks - 6))]
            for n, x in enumerate(ext): fixed.setdefault(i0 + 1 + 2 * (n * 8 // len(ext)), []).append(Bundle(x))
            if ks == QPRE * 4 // 9 - 1:
                fx(i0 - 4, "WAITVM qwl"); fx(i0 - 3, "s_barrier")
            for b in range(9):
                i = len(mf)
                if b % 3 == 0 and i > 0: fx(i - 1, f"WAITLG qw{ks}_{b+2}")
                mf += [mfma(ks, b, 0), mfma(ks, b, 1)]
                fx(i, rd(ks + 1, b))
        fx(len(mf) - 2, "WAITVM qx17, qwlast")
        for b in range(9):
            i = len(mf)
            if b % 3 == 0: fx(i - 1, f"WAITLG qw16_{b+2}")
            mf += [mfma(16, b, 0), mfma(16, b, 1), mfma(17, b, 0), mfma(17, b, 1)]
            flow += [(x, i + 5) for x in epi(b)]
        left, over = pack(k, mf, fixed, flow)
        if os.environ.get("FW"): k.add(k.stamp(5))
        k.add(left)
        if os.environ.get("FW"): k.add(k.stamp(6))
        if path == "qk": k("s_branch at_main")
    k.path = None

def gen():
    k = Kern(); k.name = "mega"
    entry(k, KNAME)
    k("s_load_dwordx2 s[4:5], s[0:1], 72")
    k("s_load_dwordx4 s[8:11], s[0:1], 0")
    k("s_load_dwordx2 s[56:57], s[0:1], 56")
    k(f"s_cmp_ge_u32 s2, {GRID}")
    k("s_cbranch_scc1 mega_exit")
    k.add(k.stamp(0))
    k("v_lshrrev_b32 v8, 6, v0")
    k("v_and_b32 v254, 63, v0")
    k("v_readfirstlane_b32 s18, v8")
    k("v_lshlrev_b32 v1, 4, v254")
    k("s_mov_b32 s54, 0")
    def late_setup(k):
        k(f"s_add_u32 s6, s4, {EPOCH}")
        k("s_addc_u32 s7, s5, 0")
        k("s_load_dword s93, s[6:7], 0")
        k("s_mov_b64 s[100:101], s[4:5]")
        srd(k, 96, 4, FLG, EPOCH + 4 - FLG)
        k("v_mov_b32 v252, 0")
        k("s_mov_b32 s59, 0")
    EARLY = os.environ.get("EARLY")
    def job_id(k):
        k(f"s_add_u32 s50, s2, {PK.J_ATT}")
        if PK.SWAP:
            k(f"s_add_u32 s3, s2, {PK.J_GU}")
            k(f"s_cmp_lt_u32 s2, {PK.J_WD - PK.J_GU}")
            k("s_cselect_b32 s50, s3, s50")
    def early_job(k, L):
        if not EARLY: return
        job_id(k)
        if L != "pe0":
            k(f"s_cmp_ge_u32 s50, {PK.J_END}")
            k(f"s_cbranch_scc1 {L}_no")
        PK.setup(k, L)
        if L == "pe0" and os.environ.get("MID"):
            k("s_mov_b64 s[84:85], s[60:61]"); k("s_mov_b32 s86, s62"); k("s_mov_b32 s87, 0x20000")
            k("s_mov_b32 s88, s47"); k("s_mov_b32 s89, s44"); k("s_mov_b32 s90, s46"); k("v_mov_b32 v250, v247"); k("v_mov_b32 v251, v248")
        else:
            PK.loads(k, L, 0); PK.loads(k, L, 1)
        k(f"{L}_no:")
    late_setup.early = early_job
    emit_qkv(k, late_setup)
    def after_stage(k, part):
        if part == "tag": return make_tag(k)
        if part == "setup":
            job_id(k)
            if os.environ.get("XJ"):
                k(f"s_cmp_ge_u32 s50, {os.environ['XJ']}")
                k(f"s_cselect_b32 s50, {PK.J_END}, s50")
            k("s_cmp_lg_u32 s54, 0")
            k(f"s_cselect_b32 s50, {PK.J_END}, s50")
            k("s_waitcnt lgkmcnt(0)")
            PK.setup(k, "pa")
            return
        if part == 0:
            k("v_min_u32 v255, 8, v254")
            k(f"v_lshlrev_b32 v255, {FS}, v255")
            k(f"s_mov_b32 s35, {F_WOPK*FLG_SET}")
            k(f"buffer_load_dword v246, v255, s[96:99], s35 offen {SC}")
            if EARLY: return k("s_waitcnt vmcnt(6)")
            k(f"s_cmp_ge_u32 s50, {PK.J_END}")
            k("s_cbranch_scc1 at_nojob")
            k.path = "job"
            PK.loads(k, "pa", 0)
            k("s_waitcnt vmcnt(15)")
            k("s_branch at_job")
            k.path = None
            k("at_nojob:")
            k("s_waitcnt vmcnt(6)")
            k("at_job:")
            return
        if isinstance(part, tuple):
            L = f"at_h{part[1]}"
            k(f"s_mov_b32 s3, {SPIN}")
            if not EARLY:
                k("s_waitcnt vmcnt(9)")
                k(f"s_cmp_lt_u32 s50, {PK.J_END}")
                k(f"s_cbranch_scc1 {L}_chk")
            k(f"{L}_wl:")
            k("s_waitcnt vmcnt(0)")
            k(f"{L}_chk:")
            k("v_cmp_ne_u32 vcc, v253, v246")
            k("s_nop 1")
            k("s_cmp_eq_u64 vcc, 0")
            k(f"s_cbranch_scc1 {L}_wd")
            k(f"buffer_load_dword v246, v255, s[96:99], s35 offen {SC}")
            k("s_sub_u32 s3, s3, 1")
            k("s_cmp_lg_u32 s3, 0")
            k(f"s_cbranch_scc1 {L}_wl")
            k("s_waitcnt vmcnt(0)")
            k(f"{L}_wd:")
            k(f"s_cmp_ge_u32 s50, {PK.J_END}")
            k(f"s_cbranch_scc1 {L}_nj")
            if not EARLY: PK.loads(k, L, 1)
            elif EARLY == "v":
                k(f"s_mov_b32 s50, {PK.J_END}")
                k("s_waitcnt lgkmcnt(0)")
                PK.finish(k, L)
            k(f"{L}_nj:")
            return
        k(f"s_cmp_ge_u32 s50, {PK.J_END}")
        k("s_cbranch_scc1 at_nojob4")
        k(f"s_mov_b32 s50, {PK.J_END}")
        FP = os.environ.get("FP")
        if FP: k.add(k.stamp(9))
        k("s_waitcnt vmcnt(0) lgkmcnt(0)")
        if FP: k.add(k.stamp(10))
        PK.finish(k, "pa", (lambda k: k.add(k.stamp(11))) if FP else None)
        if FP: k.add(k.stamp(12))
        k("at_nojob4:")
    if os.environ.get("STOP") == "q0":
        k("at_main:"); k("s_branch mega_end"); AT.PFX = "xx"
    redo = AT.emit(k, signal, wait_flags, SC, after_stage)
    emit_gk(k)
    if os.environ.get("STOP") == "wo": k("s_branch mega_fin")
    slow = FF.emit(k, signal, wait_flags, pre_poll)
    k("s_cmp_eq_u32 s54, 0")
    k("s_cbranch_scc0 mega_fin")
    if os.environ.get("STOP") == "l1": k("s_branch mega_fin")
    k("s_mov_b32 s54, 1")
    if LSTRIDE:
        k(f"s_add_u32 s100, s100, {LSTRIDE}")
        k("s_addc_u32 s101, s101, 0")
    k(f"s_mov_b32 s59, {F_LAYER*FLG_SET}")
    k("s_branch q2_main")
    k.add(slow)
    redo(k)
    k("mega_fin:")
    k("s_or_b32 s3, s2, s18")
    k("s_cmp_lg_u32 s3, 0")
    k("s_cbranch_scc1 mega_end")
    k("s_add_u32 s3, s93, 1")
    k("v_mov_b32 v251, s3")
    k(f"s_mov_b32 s3, {EPOCH - FLG}")
    k("s_mov_b64 exec, 1")
    k(f"buffer_store_dword v251, v252, s[96:99], s3 offen {SC}")
    k("mega_end:")
    k.stamp_out()
    k("mega_exit:")
    k("s_endpgm")
    k.script = True
    return k, [(KNAME, GRID, 256, LDS)], descriptor(KNAME, 256, 256, 102), [KNAME]
```

```python
from asmgen import *
from layout import *
from k_prep import srd, xreduce

PFX = 'at'
REC = 3072
VR0 = 16 * REC
ONES = VR0 + 2048
LDS_END = ONES + 16
import os
LO, HI = ("0x2b800000", "0x53800000") if not os.environ.get("FORCE_REDO") else ("0x7f000000", "0x53800000")
NEG = "0xf149f2ca"
def v4(r): return f"v[{r}:{r+3}]"
def qi(p, q): return 2 * p + (q == "B")
def Q(p, q): return 16 + 4 * qi(p, q)
KF = (32, 36); VM = 40; VRF = 44
ORDER = [(p, q, tl) for tl in range(2) for p in range(2) for q in "AB"]
def S(t): return 48 + 4 * ORDER.index(t)
def E(t): return 80 + 4 * ORDER.index(t)
def P(p, q): return 112 + 4 * qi(p, q)
def OM(p, q): return 128 + 4 * qi(p, q)
def OR(p, q): return 144 + 4 * qi(p, q)
MO = 160; MD = 164
def NM(p, q): return 168 + 4 * qi(p, q)
def CF(p, q): return 184 + 4 * qi(p, q)
def CL(p, q): return 200 + 4 * qi(p, q)
def MX(p, q): return 216 + qi(p, q)

def present(kinds, t):
    kind = kinds[t[0]]
    return kind is not None and not ((kind == "first" and t[1:] == ("B", 0)) or (kind == "last" and t[1:] == ("A", 1)))

def smfma(k, kinds, t, ps):
    if not present(kinds, t): return
    p, q, tl = t; kind = kinds[p]
    masked = kind in ("first", "last") and (q, tl) in (("A", 0), ("B", 1))
    if ps == 1: c = v4(MO if kind == "first" else MD) if masked else "0"
    else: c = v4((CF if kind == "first" else CL)(p, q)) if masked else v4(NM(p, q))
    k(f"v_mfma_f32_16x16x32_bf16 {v4(S(t))}, {v4(KF[tl])}, {v4(Q(p, q))}, {c}")

def pv(k, n, prev):
    p, q = n >> 2, "AB"[(n >> 1) & 1]
    if prev[p] is None: return
    o, v = (OM(p, q), VM) if n % 2 == 0 else (OR(p, q), VRF)
    k(f"v_mfma_f32_16x16x32_bf16 {v4(o)}, {v4(v)}, {v4(P(p, q))}, {v4(o)}")

def prologue(k, kinds, ps, vhook=None):
    k(f"ds_read_b128 {v4(KF[0])}, v2")
    k(f"ds_read_b128 {v4(KF[1])}, v2 offset:1024")
    k("s_waitcnt lgkmcnt(0)")
    for t in ORDER: smfma(k, kinds, t, ps)
    k(f"ds_read_b128 {v4(KF[0])}, v2 offset:{REC}")
    k(f"ds_read_b128 {v4(KF[1])}, v2 offset:{REC+1024}")
    if ps == 2:
        if vhook: vhook()
        k(f"ds_read_b128 {v4(VM)}, v2 offset:2048")
        k(f"ds_read_b128 {v4(VRF)}, v3")
    k("s_nop 5")

def iteration(k, prev, cur, nxt, ps, vhook=None):
    for n, t in enumerate(ORDER):
        on = present(cur, t); s = S(t); e = E(t)
        if ps == 1:
            if on:
                m = MX(*t[:2])
                k(f"v_max3_f32 v{m}, v{m}, v{s}, v{s+1}")
                k(f"v_max3_f32 v{m}, v{m}, v{s+2}, v{s+3}")
            if nxt and n in (0, 4): k("s_waitcnt lgkmcnt(1)")
        else:
            if on:
                for i in range(2): k(f"v_exp_f32 v{e+i}, v{s+i}")
            if n == 1: k("s_waitcnt lgkmcnt(0)")
            if n >= 1: pv(k, n - 1, prev)
            if on:
                for i in range(2, 4): k(f"v_exp_f32 v{e+i}, v{s+i}")
            if nxt and n == 0: k("s_waitcnt lgkmcnt(3)")
        if nxt:
            smfma(k, nxt, t, ps)
            if n in (3, 7): k(f"ds_read_b128 {v4(KF[t[2]])}, v2 offset:{2*REC + 1024*t[2]}")
    if ps == 2:
        for p in range(2):
            cnt = 0
            for q in "AB":
                for tl in range(2):
                    r = P(p, q) + 2 * tl; e = E((p, q, tl))
                    if cur[p] is None: pass
                    elif present(cur, (p, q, tl)):
                        k(f"v_cvt_pk_bf16_f32 v{r}, v{e}, v{e+1}")
                        k(f"v_cvt_pk_bf16_f32 v{r+1}, v{e+2}, v{e+3}")
                    else:
                        k(f"v_mov_b32 v{r}, 0"); k(f"v_mov_b32 v{r+1}, 0")
                    cnt += 1
                    if p == 0 and cnt == 1:
                        pv(k, 7, prev)
                        if vhook: vhook()
                        k(f"ds_read_b128 {v4(VM)}, v2 offset:2048")
                        k(f"ds_read_b128 {v4(VRF)}, v3")
        k("v_add_u32 v3, v3, v4")
    if nxt: k(f"v_add_u32 v2, {REC}, v2")

def emit(k, signal, wait_flags, SC, after_stage=None):
    N = "at"
    k(f"{PFX}_main:")
    k("v_and_b32 v7, 15, v254")
    k("v_lshrrev_b32 v8, 4, v254")
    k("s_and_b32 s6, s2, 7")
    k("s_lshr_b32 s7, s2, 3")
    k("s_lshr_b32 s17, s7, 2")
    k("s_sub_u32 s17, 7, s17")
    k("s_and_b32 s7, s7, 3")
    k("s_lshl_b32 s16, s6, 2")
    k("s_add_u32 s16, s16, s7")
    k("s_lshr_b32 s33, s16, 3")
    k("s_mul_i32 s19, s33, 9")
    k("s_and_b32 s20, s16, 7")
    k("s_add_u32 s21, s19, s20")
    k("s_lshl_b32 s21, s21, 16")
    k("s_add_u32 s22, s19, 8")
    k("s_lshl_b32 s22, s22, 16")
    k("s_and_b32 s23, s6, 1")
    k("s_lshl_b32 s23, s23, 8")
    k("s_add_u32 s23, s23, s22")
    after_stage(k, "tag")
    k("s_cmp_ge_u32 s2, 192")
    k(f"s_cbranch_scc1 {N}_nosig")
    signal(k, 58, 0, "qk")
    k(f"{N}_nosig:")
    k.add(k.stamp(2))
    k("v_min_u32 v255, 11, v254")
    k("v_lshrrev_b32 v9, 2, v255")
    k("v_lshl_add_u32 v9, v9, 2, s33")
    k("v_and_b32 v255, 3, v255")
    k("s_lshl_b32 s24, s17, 1")
    k("s_sub_u32 s24, s24, 2")
    k("v_add_u32 v255, s24, v255")
    k("v_max_i32 v255, 0, v255")
    k("v_lshl_add_u32 v255, v9, 4, v255")
    k(f"v_lshlrev_b32 v255, {FS}, v255")
    k("v_add_u32 v9, s21, v1")
    k("v_lshl_add_u32 v10, v7, 4, s23")
    k("v_cmp_gt_u32 vcc, 32, v254")
    k("v_cndmask_b32 v9, v10, v9, vcc")
    k("v_bfe_u32 v10, v254, 1, 2")
    k("v_lshlrev_b32 v10, 8, v10")
    k("v_and_b32 v11, 1, v254")
    k("v_lshl_add_u32 v10, v11, 4, v10")
    k("v_bfe_u32 v11, v254, 3, 2")
    k("v_lshl_add_u32 v10, v11, 10, v10")
    k("s_lshl_b32 s24, s20, 5")
    k("s_add_u32 s24, s24, s22")
    k("v_add_u32 v10, s24, v10")
    k("s_lshl_b32 s24, s17, 4")
    k("s_lshl_b32 s25, s18, 2")
    k("s_add_u32 s26, s24, s25")
    k("s_lshl_b32 s27, s26, 9")
    k("s_add_u32 s24, s26, s25")
    k("s_lshl_b32 s24, s24, 9")
    k(f"s_add_u32 s28, s24, {XSZ - 16*512}")
    k(f"s_add_u32 s29, s24, {2*XSZ - 8*1024}")
    k("s_add_u32 s30, s29, s21")
    k(f"s_mul_i32 s31, s18, {4*REC}")
    k(f"s_mul_i32 s24, s54, {QKVB - QKV}")
    k(f"s_add_u32 s24, s24, {QKV}")
    k("s_add_u32 s8, s100, s24"); k("s_addc_u32 s9, s101, 0"); k("s_and_b32 s9, s9, 0xffff"); k(f"s_mov_b32 s10, {3*XSZ}"); k("s_mov_b32 s11, 0x20000")
    srd(k, 12, 100, OO, XSZ)
    for i in range(4): k(f"v_mov_b32 v{80+i}, 0x3f803f80")
    k(f"v_mov_b32 v11, {ONES}")
    k(f"ds_write_b128 v11, {v4(80)}")
    k("v_lshlrev_b32 v11, 2, v8")
    k(f"v_mov_b32 v12, {NEG}")
    for i in range(4):
        k(f"v_add_u32 v13, {i}, v11")
        k("v_cmp_gt_u32 vcc, v13, v7")
        k(f"v_cndmask_b32_e64 v{MO+i}, v12, 0, vcc")
        k(f"v_cndmask_b32 v{MD+i}, 0, v12, vcc")
    for r in range(112, 160): k(f"v_mov_b32 v{r}, 0")
    def cregs(zero):
        for p in range(2):
            for q in "AB":
                for i in range(4):
                    if zero:
                        k(f"v_mov_b32 v{NM(p,q)+i}, 0"); k(f"v_mov_b32 v{CF(p,q)+i}, v{MO+i}"); k(f"v_mov_b32 v{CL(p,q)+i}, v{MD+i}")
                    else:
                        k(f"v_sub_f32 v{NM(p,q)+i}, 0, v{MX(p,q)}")
                        k(f"v_sub_f32 v{CF(p,q)+i}, v{MO+i}, v{MX(p,q)}")
                        k(f"v_sub_f32 v{CL(p,q)+i}, v{MD+i}, v{MX(p,q)}")
    cregs(True)
    k("s_lshl_b32 s32, s18, 1")
    k("s_cmp_gt_u32 s17, 0")
    k("s_cselect_b32 s32, s32, 8")
    k(f"s_mul_i32 s33, s32, {REC}")
    k("v_add_u32 v6, s33, v1")
    k("s_lshl_b32 s33, s32, 7")
    k(f"s_add_u32 s33, s33, {VR0}")
    k("v_lshl_add_u32 v3, v8, 1, v7")
    k("v_lshl_add_u32 v3, v3, 4, s33")
    k(f"v_mov_b32 v11, {ONES}")
    k("v_mov_b32 v4, 128")
    k("v_cmp_gt_u32 vcc, 2, v7")
    k("v_cndmask_b32 v5, v11, v3, vcc")
    k("v_cndmask_b32 v4, 0, v4, vcc")
    k("s_lshl_b32 s58, s17, 5")
    k("s_add_u32 s58, s58, s16")
    k(f"s_lshl_b32 s58, s58, {FS}")
    k("s_add_u32 s58, s58, s59")
    k(f"s_add_u32 s58, s58, {FLG_SET}")
    after_stage(k, "setup")
    wait_flags(k, 59, None, N)
    k.add(k.stamp(3))
    for bl in range(4):
        for tl in range(2):
            k(f"s_add_u32 m0, s31, {bl*REC + tl*1024}")
            k(f"s_add_u32 s24, s28, {(2*bl + tl)*512}")
            k(f"buffer_load_dwordx4 v9, s[8:11], s24 offen {SC} lds", "ak")
    for j in range(4):
        k(f"buffer_load_dwordx4 {v4(16+4*j)}, v9, s[8:11], s27 offen offset:{512*j} {SC}", "aq")
    for bl in range(4):
        k(f"s_add_u32 m0, s31, {bl*REC + 2048}")
        k(f"s_add_u32 s24, s30, {bl*1024}")
        k(f"buffer_load_dwordx4 v1, s[8:11], s24 offen {SC} lds", "av")
    k("s_lshl_b32 s24, s18, 9")
    k(f"s_add_u32 m0, s24, {VR0}")
    k("s_mov_b32 exec_hi, 0")
    k(f"buffer_load_dwordx4 v10, s[8:11], s29 offen {SC} lds", "av")
    k("s_mov_b32 exec_hi, -1")
    after_stage(k, 0)
    for i in range(4):
        k(f"s_cmp_eq_u32 s7, {i}")
        k("s_cselect_b32 s24, 48, 32")
        k("v_cmp_gt_u32 vcc, s24, v254")
        for j in range(4): k(f"v_cndmask_b32 v{16+4*j+i}, 0, v{16+4*j+i}, vcc")
    k("s_mov_b32 s29, 0")
    k("s_waitcnt lgkmcnt(0)")
    k("s_barrier")
    nv = [0]
    def vhook():
        nv[0] += 1
        k("s_cmp_lg_u32 s29, 0")
        k(f"s_cbranch_scc1 {N}_v{nv[0]}")
        if os.environ.get("FV") and nv[0] == 1: k.add(k.stamp(1))
        after_stage(k, ("v", nv[0]))
        if os.environ.get("FV") and nv[0] == 1: k.add(k.stamp(2))
        k("s_barrier")
        if os.environ.get("FV") and nv[0] == 1: k.add(k.stamp(3))
        k(f"{N}_v{nv[0]}:")
    M = ("mid", "mid")
    def one_pass(ps):
        L = f"{N}_p{ps}"
        k(f"{L}:")
        k("v_mov_b32 v2, v6")
        k("v_mov_b32 v3, v5")
        k("s_cmp_eq_u32 s17, 0")
        k(f"s_cbranch_scc1 {L}_q0")
        prologue(k, ("first", None), ps)
        iteration(k, (None, None), ("first", None), ("mid", "first"), ps, vhook)
        iteration(k, ("first", None), ("mid", "first"), M, ps)
        k("s_mov_b32 s34, 5")
        k(f"s_branch {L}_loop")
        k(f"{L}_q0:")
        k("s_cmp_eq_u32 s18, 0")
        k(f"s_cbranch_scc0 {L}_q0b")
        prologue(k, ("last", "mid"), ps, vhook)
        k(f"s_branch {L}_8")
        k(f"{L}_q0b:")
        prologue(k, M, ps, vhook)
        k("s_lshl_b32 s34, s18, 1")
        k("s_sub_u32 s34, s34, 1")
        k(f"{L}_loop:")
        iteration(k, M, M, M, ps)
        k("s_sub_u32 s34, s34, 1")
        k("s_cmp_lg_u32 s34, 0")
        k(f"s_cbranch_scc1 {L}_loop")
        iteration(k, M, M, ("last", "mid"), ps)
        k(f"{L}_8:")
        if ps == 2: after_stage(k, 4)
        iteration(k, M, ("last", "mid"), (None, "last"), ps)
        iteration(k, ("last", "mid"), (None, "last"), None, ps)
    if not os.environ.get('FW'): k.add(k.stamp(5))
    one_pass(2)
    k("s_waitcnt lgkmcnt(0)")
    for n in range(4, 8): pv(k, n, (None, "last"))
    k("s_cmp_lg_u32 s29, 0")
    k(f"s_cbranch_scc1 {N}_fine")
    k(f"s_mov_b32 s24, {LO}")
    k(f"s_mov_b32 s25, {HI}")
    d = [OR(p, q) + 2 for p in range(2) for q in "AB"]
    k(f"v_min3_f32 v80, v{d[0]}, v{d[1]}, v{d[2]}")
    k(f"v_min_f32 v80, v80, v{d[3]}")
    k(f"v_add_f32 v81, v{d[0]}, v{d[1]}")
    k(f"v_add_f32 v82, v{d[2]}, v{d[3]}")
    k("v_add_f32 v81, v81, v82")
    k("v_cmp_lt_f32 vcc, s24, v80")
    k("v_cmp_gt_f32 s[24:25], s25, v81")
    k("s_nop 1")
    k("s_and_b64 vcc, vcc, s[24:25]")
    k("s_cmp_eq_u64 vcc, -1")
    k(f"s_cbranch_scc0 {N}_redo")
    k(f"{N}_fine:")
    if not os.environ.get('FW'): k.add(k.stamp(6))
    def redo(k):
        k(f"{N}_redo:")
        k("s_mov_b32 s29, 1")
        for r in range(112, 160): k(f"v_mov_b32 v{r}, 0")
        for r in range(216, 220): k(f"v_mov_b32 v{r}, {NEG}")
        one_pass(1)
        k("s_waitcnt lgkmcnt(0)")
        xreduce(k, [216, 217, 218, 219], [220, 221, 222, 223], op="v_max_f32")
        cregs(False)
        k(f"s_branch {N}_p2")
    k("v_and_b32 v11, 1, v8")
    k("v_mul_u32_u24 v11, 18432, v11")
    k("v_lshl_add_u32 v11, v7, 4, v11")
    k("v_lshrrev_b32 v12, 1, v8")
    k("v_lshl_add_u32 v12, v12, 8, v11")
    k("s_mul_i32 s24, s26, 18432")
    k("s_lshl_b32 s25, s16, 9")
    k("s_add_u32 s25, s25, s24")
    k("s_lshr_b32 s27, s16, 2")
    k("s_lshl_b32 s27, s27, 8")
    k("s_lshl_b32 s28, s7, 2")
    k("s_add_u32 s27, s27, s28")
    k("s_add_u32 s27, s27, s24")
    k("s_add_u32 s27, s27, 16384")
    for p in range(2):
        for q in "AB": k(f"v_rcp_f32 v{80+qi(p,q)}, v{OR(p,q)+2}")
        for q in "AB":
            for i in range(4): k(f"v_mul_f32 v{OM(p,q)+i}, v{OM(p,q)+i}, v{80+qi(p,q)}")
            for i in range(2): k(f"v_mul_f32 v{OR(p,q)+i}, v{OR(p,q)+i}, v{80+qi(p,q)}")
        r = 88 + 8 * p
        for j, q in enumerate("AB"):
            k(f"v_cvt_pk_bf16_f32 v{r+2*j}, v{OM(p,q)}, v{OM(p,q)+1}")
            k(f"v_cvt_pk_bf16_f32 v{r+2*j+1}, v{OM(p,q)+2}, v{OM(p,q)+3}")
            k(f"v_cvt_pk_bf16_f32 v{r+4+j}, v{OR(p,q)}, v{OR(p,q)+1}")
        k(f"v_permlane16_swap_b32 v{r}, v{r+2}")
        k(f"v_permlane16_swap_b32 v{r+1}, v{r+3}")
        k(f"v_permlane16_swap_b32 v{r+4}, v{r+5}")
        k(f"buffer_store_dwordx4 {v4(r)}, v12, s[12:15], s25 offen {SC}")
        k("s_mov_b32 exec_hi, 0")
        k(f"buffer_store_dword v{r+4}, v11, s[12:15], s27 offen {SC}")
        k("s_mov_b32 exec_hi, -1")
        if p == 0:
            k("s_add_u32 s25, s25, 36864")
            k("s_add_u32 s27, s27, 36864")
    return redo
```

```python
from asmgen import *
from layout import *
from k_prep import srd, xreduce, code_prefetch
from k_qkv import load_stats, finish_stats, f2u
import k_ffn1 as F1
import math, os
SC = "sc1"; SPIN = 150000
def v4(r): return f"v[{r}:{r+3}]"
def v2(r): return f"v[{r}:{r+1}]"
def a4(r): return f"a[{r}:{r+3}]"
GRP = 36864
def dacc(j, b):
    t = j * 9 + b
    return 16 + 4 * t if t < 14 else 104 + 4 * (t - 14)
def dw(buf, b):
    return 40 + 4 * (buf * 9 + b)
def lds(off): return (1, 6, 7)[off // 65536], off % 65536
def slot(g): return ((g + 1) % 4) * GRP

def emit(k, signal, wait_flags, pre_poll):
    CH = F1.CH; LDS_S = F1.LDS_S; XV, WB, ACC, NMEAN, CC, QQ, SG, TT, PP = F1.XV, F1.WB, F1.ACC, F1.NMEAN, F1.CC, F1.QQ, F1.SG, F1.TT, F1.PP
    xop, accr, rd = F1.xop, F1.accr, F1.rd
    F1.STORE_MOD = SC
    k("f1_main:")
    k("s_and_b32 s6, s2, 7")
    k("s_lshr_b32 s7, s2, 3")
    k("s_and_b32 s16, s6, 1")
    k("s_lshl_b32 s16, s16, 2")
    k("s_lshr_b32 s17, s7, 3")
    k("s_add_u32 s16, s16, s17")
    k("s_lshr_b32 s17, s6, 1")
    k("s_lshl_b32 s17, s17, 3")
    k("s_and_b32 s7, s7, 7")
    k("s_add_u32 s17, s17, s7")
    k("s_mul_i32 s39, s18, 9216")
    k(f"s_mul_i32 s6, s17, {9*CH}")
    k(f"s_add_u32 s6, s6, {WGU}")
    k("s_add_u32 s12, s4, s6"); k("s_addc_u32 s13, s5, 0"); k("s_and_b32 s13, s13, 0xffff"); k(f"s_mov_b32 s14, {9*CH}")
    if True:
        k("s_or_b32 s3, s54, s18")
        k("s_cmp_lg_u32 s3, 0")
        k("s_cbranch_scc1 f1_pkok")
        k(f"v_lshlrev_b32 v255, {FS}, v254")
        k(f"s_mov_b32 s3, {SPIN}")
        for j in range(4): k(f"s_mov_b32 s{40+j}, {F_PK*FLG_SET + (j*64 << FS)}")
        k("f1_pk_wl:")
        for j in range(4): k(f"buffer_load_dword v{244+j}, v255, s[96:99], s{40+j} offen {SC}")
        k("s_waitcnt vmcnt(0)")
        for j in range(4): k(f"v_xor_b32 v{244+j}, v{244+j}, v253")
        k("v_or3_b32 v244, v244, v245, v246")
        k("v_or_b32 v244, v244, v247")
        k("v_cmp_ne_u32 vcc, 0, v244")
        k("s_nop 1")
        k("s_cmp_eq_u64 vcc, 0")
        k("s_cbranch_scc1 f1_pkok")
        k("s_sub_u32 s3, s3, 1")
        k("s_cmp_lg_u32 s3, 0")
        k("s_cbranch_scc1 f1_pk_wl")
        k("f1_pkok:")
    signal(k, 58, 0, "wo")
    k.add(k.stamp(8))
    k(f"s_lshl_b32 s46, s16, {5+FS}")
    k("s_add_u32 s46, s46, s59")
    k(f"s_add_u32 s46, s46, {F_WO*FLG_SET}")
    pre_poll(k, 46, 32)
    PRE = int(os.environ.get("F1PRE", "5"))
    k("s_lshl_b32 s38, s18, 10")
    def wgrp(g): return [x if isinstance(x, str) else (x[0], "wl") for c in range(3) for x in F1.dma(c, g)]
    for g in range(PRE): k.add(wgrp(g))
    k("s_lshl_b32 s19, s16, 4")
    k("s_lshl_b32 s6, s18, 2")
    k("s_add_u32 s19, s19, s6")
    for i in range(1, 5): k(f"s_mov_b32 s{32+i}, {4096*i}")
    k("s_mul_i32 s6, s19, 18432")
    k("v_add_u32 v2, s6, v1")
    for tb in range(1, 4): k(f"v_add_u32 v{2+tb}, 18432, v{1+tb}")
    k("v_and_b32 v13, 15, v254")
    k("v_lshrrev_b32 v15, 4, v254")
    k("s_lshl_b32 s6, s19, 10")
    k("v_add_u32 v9, s6, v1")
    k("v_min_u32 v10, 35, v254")
    k("v_lshlrev_b32 v10, 3, v10")
    k("s_mul_i32 s6, s18, 288")
    k("v_add_u32 v10, s6, v10")
    k("s_mul_i32 s42, s17, 1152")
    k("s_add_u32 s43, s42, 36864")
    k("s_add_u32 s44, s42, 73728")
    srd(k, 8, 100, X1, XSZ)
    srd(k, 20, 100, ST1, STSZ)
    srd(k, 28, 4, SGU, SGU_SZ)
    srd(k, 24, 100, HH, H_SZ)
    k("v_add_u32 v6, 65536, v1")
    k("v_add_u32 v7, 131072, v1")
    k(f"v_add_u32 v8, {4*CH}, v1")
    k("v_and_b32 v11, 1, v15")
    k("v_mul_u32_u24 v11, 147456, v11")
    k("v_lshrrev_b32 v12, 1, v15")
    k("v_lshl_add_u32 v11, v12, 8, v11")
    k("v_lshl_add_u32 v11, v13, 4, v11")
    k("s_mul_i32 s6, s19, 147456")
    k("v_add_u32 v11, s6, v11")
    k(f"v_add_u32 v12, {2*147456}, v11")
    k("s_lshr_b32 s47, s17, 3")
    k(f"s_mul_i32 s45, s47, {GRP}")
    k("s_and_b32 s6, s17, 7")
    k("s_lshl_b32 s6, s6, 9")
    k("s_add_u32 s45, s45, s6")
    k(f"s_lshl_b32 s46, s16, {5+FS}")
    k("s_add_u32 s46, s46, s59")
    k(f"s_lshl_b32 s58, s17, {FS}")
    k("s_add_u32 s58, s58, s46")
    k(f"s_add_u32 s55, s58, {F_FA*FLG_SET}")
    k(f"s_add_u32 s40, s58, {F_FM*FLG_SET}")
    k(f"s_add_u32 s58, s58, {F_F1*FLG_SET}")
    k(f"s_add_u32 s46, s46, {F_WO*FLG_SET}")
    k("s_lshr_b32 s7, s2, 3")
    k("s_and_b32 s48, s2, 1")
    k("s_lshl_b32 s48, s48, 3")
    k("s_lshr_b32 s6, s7, 2")
    k("s_add_u32 s48, s48, s6")
    k("s_and_b32 s49, s7, 3")
    k("s_lshl_b32 s6, s49, 2")
    k("s_add_u32 s6, s6, s47")
    k(f"s_mul_i32 s6, s6, {9*GRP}")
    k(f"s_add_u32 s6, s6, {WD}")
    k("s_add_u32 s60, s4, s6"); k("s_addc_u32 s61, s5, 0"); k("s_and_b32 s61, s61, 0xffff"); k(f"s_mov_b32 s62, {9*GRP}"); k("s_mov_b32 s63, 0x20000")
    k("s_lshl_b32 s6, s48, 3")
    k("s_lshl_b32 s7, s18, 1")
    k("s_add_u32 s6, s6, s7")
    k("s_mul_i32 s6, s6, 147456")
    k(f"s_mul_i32 s7, s47, {GRP}")
    k("s_add_u32 s6, s6, s7")
    k("v_add_u32 v244, s6, v1")
    k("v_add_u32 v245, 147456, v244")
    k("s_lshr_b32 s50, s48, 1")
    k("s_lshl_b32 s50, s50, 5")
    k("s_lshl_b32 s6, s47, 3")
    k("s_add_u32 s50, s50, s6")
    k(f"s_lshl_b32 s50, s50, {FS}")
    k("s_add_u32 s50, s50, s59")
    k(f"s_add_u32 s51, s50, {F_F1*FLG_SET}")
    k(f"s_add_u32 s41, s50, {F_FM*FLG_SET}")
    k(f"s_add_u32 s50, s50, {F_FA*FLG_SET}")
    k("v_min_u32 v246, 7, v254")
    k(f"v_lshlrev_b32 v246, {FS}, v246")
    k("s_mov_b32 s52, s39")
    k("s_mov_b32 s53, 0")
    wait_flags(k, 46, 32, "f1", pre=True)
    k.add(k.stamp(9))
    def xl(ks):
        so = "0" if ks < 4 else f"s{32 + ks // 4}"
        return [(f"buffer_load_dwordx4 {xop(ks, tb)}, v{2+tb}, s[8:11], {so} offen offset:{(ks % 4) * 1024} {SC}", f"x{ks}") for tb in range(4)]
    D = int(os.environ.get("XDIST", "3"))
    for ks in range(D): k.add(xl(ks))
    R0 = TT; CS = ACC + 120
    ks_ = Kern(); load_stats(ks_, 20, 9, 4, R0, "st", SC)
    for i, sr in enumerate((42, 43, 44)):
        ks_(f"buffer_load_dwordx2 v[{CS+2*i}:{CS+2*i+1}], v10, s[28:31], s{sr} offen", "st")
    st_loads = list(ks_.ins)
    kf = Kern()
    kf("WAITVM st")
    for q in range(2):
        kf(f"v_add_f32 v{CS+q}, v{CS+q}, v{CS+2+q}")
        kf(f"v_add_f32 v{CS+q}, v{CS+q}, v{CS+4+q}")
    kf(f"v_add_u32 v10, {LDS_S}, v10")
    kf(f"ds_write_b64 v10, v[{CS}:{CS+1}]", "sw")
    finish_stats(kf, 4, R0)
    for tb in range(4):
        kf(f"v_rsq_f32 v{CC+tb}, v{R0+4*tb+1}")
        kf(f"v_sub_f32 v{NMEAN+tb}, 0, v{R0+4*tb}")
        kf(f"v_mov_b32 v{QQ+tb}, v{R0+4*tb+1}")
        kf(f"v_mul_f32 v{CC+tb}, {f2u(-math.log2(math.e))}, v{CC+tb}")
    kf("v_lshlrev_b32 v10, 4, v15")
    kf(f"v_add_u32 v10, {LDS_S}, v10")
    kf(f"v_add_u32 v9, {8*CH}, v1")
    st_fin = list(kf.ins)
    mf = []; fixed = {}; flow = []
    def fx(i, x): fixed.setdefault(i, []).extend(x if isinstance(x, list) else [x])
    def spread(items, g0, g1):
        vm = [x for x in items if not (isinstance(x, str) and x.startswith("s_add_u32 m0"))]
        step = (g1 - g0) / len(vm); n = 0; pend = None; last = -1
        for x in items:
            if isinstance(x, str) and x.startswith("s_add_u32 m0"): pend = x; continue
            g = max(int(g0 + (n + 0.5) * step), last + 1); n += 1
            while g % 4 in (0, 1) or any(unit_cost(as_ins(y)) for y in fixed.get(g, [])) or (pend and any(as_ins(y).kind == "dma" for y in fixed.get(g - 1, []))): g += 1
            last = g
            if pend: fx(g - 1, pend); pend = None
            fx(g, x)
    PB = (ACC + 96, WB)
    for c in range(3):
        for gu in range(2): k.add([rd(PB[0] + 8 * c + 4 * gu, c, 0, gu)])
    k("WAITLG w0_0")
    k("WAITVM x0")
    d3 = F1.dma_chunk(3); d3s = [d3[0:4], d3[4:8], d3[8:12]]
    for ks in range(18):
        i0 = len(mf)
        if ks > 0: fx(i0 - 2, f"WAITVM x{ks}")
        ext = xl(ks + D) if ks + D < 18 else []
        STK = int(os.environ.get("STK", "5")); D3K = int(os.environ.get("D3K", "10"))
        if STK <= ks < STK + 4: ext = ext + st_loads[2 * (ks - STK):2 * (ks - STK) + 2]
        if ks == STK + 6: flow += [(x, i0) for x in st_fin]
        if D3K <= ks < D3K + 3: ext = ext + d3s[ks - D3K]
        if PRE + ks < 9: ext = wgrp(PRE + ks) + ext
        if ext: spread(ext, i0, i0 + 20)
        if ks == 2 * PRE - 1 and PRE < 9:
            fx(i0 - 5, "WAITVM wl"); fx(i0 - 4, "s_barrier")
        if ks == 17:
            fx(i0 - 5, "WAITVM d3"); fx(i0 - 4, "WAITLG sw"); fx(i0 - 3, "s_barrier")
        for c in range(3):
            for gu in range(2):
                for tb in range(4):
                    a = accr(c, gu, tb); w = PB[ks % 2] + 8 * c + 4 * gu
                    i = len(mf)
                    if gu == 0 and tb == 0 and i > 0: fx(i - 1, f"WAITLG w{c}_{ks}")
                    mf.append(f"v_mfma_f32_16x16x32_bf16 {v4(a)}, {v4(w)}, {xop(ks, tb)}, {'0' if ks == 0 else v4(a)}")
                    if tb == 0 and ks < 17: fx(i, rd(PB[(ks + 1) % 2] + 8 * c + 4 * gu, c, ks + 1, gu))
                    if ks == 17 and c >= 1 and tb == 0: fx(i, rd(WB + 8 * (c - 1) + 4 * gu, 3, c - 1, gu))
                    if ks == 17 and c == 0 and tb == 1:
                        flow.append(((f"ds_read_b128 {v4(SG + 4*gu)}, v10 offset:{64*gu}", "s0"), i))
    flow.append(("WAITLG s0", len(mf) + 1))
    for e in range(3): flow += [(x, len(mf) + 1) for x in F1.epilogue(e)]
    for c in range(3, 9):
        i0 = len(mf)
        if c == 3: fx(i0 - 2, "s_barrier")
        for ks in range(18):
            for gu in range(2):
                for tb in range(4):
                    a = accr(c, gu, tb); w = WB + 8 * (ks % 3) + 4 * gu
                    i = len(mf)
                    if gu == 0 and tb == 0:
                        fx(i - 1, f"WAITLG w{c}_{ks}")
                        if ks == 16 and c < 8:
                            fx(i - 3, f"WAITVM d{c+1}"); fx(i - 2, "s_barrier")
                    mf.append(f"v_mfma_f32_16x16x32_bf16 {v4(a)}, {v4(w)}, {xop(ks, tb)}, {'0' if ks == 0 else v4(a)}")
                    if tb == 0:
                        c2, k2 = (c, ks + 2) if ks < 16 else (c + 1, ks - 16)
                        if c2 < 9: fx(i, rd(WB + 8 * (k2 % 3) + 4 * gu, c2, k2, gu))
        for dc, k0, k1 in {3: [(4, 0, 64), (5, 72, 140)], 4: [(6, 0, 120)], 5: [(7, 0, 120)], 6: [(8, 0, 120)]}.get(c, []):
            spread(F1.dma_chunk(dc), i0 + k0, i0 + k1)
        flow += [(x, len(mf) + 2) for x in F1.epilogue(c)]
    def ddma(g):
        L = []
        for j in range(9):
            pre = []
            if j % 4 == 0:
                pre = [f"s_add_u32 m0, s39, {slot(g) + j*1024}", "s_nop 0" if j == 0 and g == 0 else f"s_add_u32 s52, s52, {4096 if j else GRP - 8192}"]
            L.append(pre + [(f"buffer_load_dwordx4 v1, s[60:63], s52 offen offset:{(j % 4)*1024} lds", f"e{g}")])
        return L
    KB = 36 - 4 * NBG
    HSL = [0, 8, 16, 24, 32] + list(range(112, 256, 8))
    def hreg(K): return HSL[K % 23]
    def hl(K):
        L = [[(f"buffer_load_dwordx4 {a4(hreg(K) + 4*j)}, v{244+j}, s[24:27], s53 offen offset:{(K % 4)*1024} {SC}", f"h{K}")] for j in range(2)]
        if K % 4 == 3: L[1].append("s_add_u32 s53, s53, 4096")
        return L
    def drd(K, b, r=None):
        va, off = lds(slot(K // 4) + (K % 4) * 9216 + b * 1024)
        return (f"ds_read_b128 {a4(dw(K % 2, b) if r is None else r)}, v{va} offset:{off}", f"u{K}_{b}")
    def bun(g, x): fixed.setdefault(g, []).append(Bundle(x))
    def freegap(g):
        while any(isinstance(y, Bundle) or unit_cost(as_ins(y)) for y in fixed.get(g, [])): g += 1
        return g
    def raise_flag(so): return ["s_mov_b64 exec, 1", f"buffer_store_dword v253, v252, s[96:99], s{so} offen {SC}", "s_mov_b64 exec, -1"]
    slow = []
    def poll(so, name, g_load, g_check):
        bun(freegap(g_load), [(f"buffer_load_dword v247, v246, s[96:99], s{so} offen {SC}", name)])
        bun(freegap(g_check), [f"WAITVM {name}", "v_cmp_ne_u32 vcc, v253, v247", "s_nop 1", "s_cmp_lg_u64 vcc, 0", f"s_cbranch_scc1 {name}_slow", f"{name}_ok:"])
        slow.extend([f"{name}_slow:", f"s_mov_b32 s3, {SPIN}", f"{name}_wl:", f"buffer_load_dword v247, v246, s[96:99], s{so} offen {SC}", "s_waitcnt vmcnt(0)",
                     "v_cmp_ne_u32 vcc, v253, v247", "s_nop 1", "s_cmp_eq_u64 vcc, 0", f"s_cbranch_scc1 {name}_ok", "s_sub_u32 s3, s3, 1", "s_cmp_lg_u32 s3, 0",
                     f"s_cbranch_scc1 {name}_wl", f"s_branch {name}_ok"])
    if not os.environ.get("NOCPF3"):
        t = Kern()
        t("s_lshr_b32 s6, s2, 3"); t("s_lshl_b32 s6, s6, 2"); t("s_add_u32 s6, s6, s18"); t("s_mov_b64 exec, 7")
        code_prefetch(t, "q2_l1", "at_main", 128, 6, 254, 248, 20)
        code_prefetch(t, "fa_ok", "code_end", 128, 6, 254, 249, 20, ahead=True)
        t("s_mov_b64 exec, -1")
        t.fix_hazards()
        bun(freegap(len(mf) - 144 * 3 + 130), t.ins)
    EA = int(os.environ.get("EA", "4"))
    c8 = len(mf) - 144; c7 = c8 - 144
    fx(c7 + 128 - 4, f"WAITVM hs{EA}")
    bun(freegap(c7 + 130), raise_flag(55))
    for c0, gg in ((c7, 0), (c8, 1)):
        g = c0 + 2
        for x in ddma(gg):
            g = freegap(g); bun(g, x); g += 9
    poll(50, "fa", c8 + 40, c8 + 86)
    H0 = int(os.environ.get("H0", "8"))
    g = c8 + 90
    for K in range(H0):
        for x in hl(K):
            g = freegap(g); bun(g, x); g += (2 if H0 > 4 else 4)
    assert g < c8 + 146
    fx(c8 + 128 - 3, "WAITVM e0"); fx(c8 + 128 - 2, "s_barrier")
    for b in range(9): fx(freegap(c8 + 129 + b), drd(0, b))
    fx(c8 + 142, "WAITVM h0")
    if k.stamp(10) and not os.environ.get('FW'): bun(freegap(c8 + 140), k.stamp(10))
    nh = H0; NT = 4 * NBG; RING = 18; HA = max(17, KB - 11)
    def treg(b, t): return dw(0, 0) + 4 * ((b * NT + t) % RING)
    tail = [(b, t) for b in range(9) for t in range(NT)]
    for K in range(KB):
        i0 = len(mf); gi, ks = divmod(K, 4)
        ext = []
        if EM:
            cap = 4 * EA + 4 if K <= KM else (4 * EM + 4 if K <= 4 * EM else 36)
            want = min(K + H0 + 1 if K <= 4 * EM else K + 4 + (K - 4 * EM + 1) // 3, cap) if K < KB - 1 else 36
        else:
            want = (min(K + H0 + 1, 4 * EA + 4) if K <= 4 * EA else K + 4) if K < HA else (3 + HA + -(-(33 - HA) * (K + 1 - HA) // (KB - 1 - HA)) if K < KB - 1 else 36)
        while nh < want: ext += hl(nh); nh += 1
        if NBG == 2 and 23 <= K < 28:
            if K < 26: ext = ext + ddma(8)[3 * (K - 23):3 * (K - 22)]
        elif ks < 3 and gi + 2 < 9: ext = ext + ddma(gi + 2)[3 * ks:3 * ks + 3]
        for n, x in enumerate(ext): bun(i0 + 1 + 2 * (n * 8 // len(ext)), x)
        if K > 0: fx(i0 - 2, f"WAITVM h{K}")
        if ks == 3:
            if gi == BG: fx(i0 - 8, "WAITVM hs8")
            if EM and gi == MG: fx(i0 - 8, f"WAITVM hs{EM}"); bun(i0 + 13, raise_flag(40))
            fx(i0 - 6, f"WAITVM e{gi+1}" if K < KB - 1 else "WAITVM e8"); fx(i0 - 4, "s_barrier")
            if gi == BG: bun(i0 + 13, raise_flag(58))
        for b in range(9):
            i = len(mf)
            if b % 3 == 0: fx(i - 1, f"WAITLG u{K}_{b+2}")
            for j in range(2):
                a = dacc(j, b)
                mf.append(f"v_mfma_f32_16x16x32_bf16 {v4(a)}, {a4(dw(K % 2, b))}, {a4(hreg(K) + 4*j)}, {'0' if K == 0 else v4(a)}")
            if K < KB - 1: fx(i, drd(K + 1, b))
            else:
                bb, t = tail[b]; fx(i, drd(KB + t, bb, treg(bb, t)))
        if K == 4 * (EM or EA) - 2: poll(51, "fb", i0 + 15, i0 + 18 * 2 + 15)
        if EM and K == KM - 2: poll(41, "fm", i0 + 15, i0 + 18 * 2 + 15)
    assert 4 * (EM or EA) - 2 >= 4 * BG + 6 and (not EM or (KM - 2 >= 4 * MG + 6 and KM <= 4 * EA))
    if os.environ.get("FF"):
        pts = [24 * 6, 24 * 12, 24 * 18, 432 + 144 * 2, 432 + 144 * 4, c8 + 144 + 72 * 2, c8 + 144 + 72 * 4, c8 + 144 + 72 * 6]
        for n, g in enumerate(pts): bun(freegap(g), k.stamp(1 + n))
    n0 = len(k.ins)
    left, over = pack(k, mf, fixed, flow, units=lambda i: UD if i >= c8 + 144 else 2)
    for e in (EA, 8) + ((EM,) if EM else ()):
        iw = [i for i, x in enumerate(k.ins) if x.op == "WAITVM" and x.ops == [f"hs{e}"]][0]
        il = max(i for i, x in enumerate(k.ins) if x.tag == f"hs{e}")
        print("  h stores", e, "complete", sum(1 for x in k.ins[il:iw] if x.kind == "mfma"), "MFMAs before their wait")
        assert il < iw
    for i, x in enumerate(k.ins):
        if x.op == "WAITVM" and i >= n0:
            assert all(y.tag not in x.ops for y in k.ins[i:]), f"ops tagged {x.ops} follow their wait"
    print("ffn leftover instrs:", len(left), "overfull units:", over)
    assert not left
    check_live(k.ins[n0:])
    sub = Kern(); sub.ins = k.ins[n0:]
    iw = [i for i, x in enumerate(sub.ins) if x.tag == "sw"][0]; ir = [i for i, x in enumerate(sub.ins) if x.tag == "s0"][0]
    assert any(x.op == "s_barrier" for x in sub.ins[iw + 3:ir])
    if not os.environ.get("FW"): k.add(k.stamp(12))
    srd(k, 8, 100, PART, PART_SZ)
    k("s_lshl_b32 s21, s48, 2")
    k("s_add_u32 s21, s21, s49")
    k("s_lshl_b32 s6, s21, 2")
    k("s_add_u32 s6, s6, s18")
    k("s_mul_i32 s40, s6, 27648")
    k("s_sub_u32 s6, s47, s18")
    k("s_sub_u32 s6, s6, 1")
    k("s_and_b32 s6, s6, 3")
    k("s_mul_i32 s6, s6, 9216")
    k("s_add_u32 s40, s40, s6")
    k("s_add_u32 s41, s40, 4096")
    k("s_add_u32 s42, s40, 8192")
    k("WAITVM h35")
    k("s_cmp_eq_u32 s18, s47")
    k("s_cbranch_scc1 dn_own")
    OWN = slot(7 - NBG)
    for role in ("pub", "own"):
        k.path = "dn" + role
        if role == "own": k("dn_own:")
        mf = []; fixed = {}; flow = []
        k(f"WAITLG u{KB+1}_0")
        for b in range(9):
            for t in range(NT):
                i = len(mf); n = b * NT + t
                if n and n % 2 == 0:
                    bb, tt = tail[n + 1]; fx(i - 1, f"WAITLG u{KB+tt}_{bb}")
                for j in range(2):
                    a = dacc(j, b)
                    mf.append(f"v_mfma_f32_16x16x32_bf16 {v4(a)}, {a4(treg(b, t))}, {a4(hreg(KB + t) + 4*j)}, {v4(a)}")
                if n + 9 < len(tail):
                    bb, tt = tail[n + 9]; fx(i, drd(KB + tt, bb, treg(bb, tt)))
            i = len(mf) - 8
            if role == "pub":
                P = 200 + 4 * b
                for j in range(2):
                    a = dacc(j, b)
                    flow += [(f"v_cvt_pk_bf16_f32 v{P+2*j}, v{a}, v{a+1}", i + 9), (f"v_cvt_pk_bf16_f32 v{P+2*j+1}, v{a+2}, v{a+3}", i + 9)]
                flow.append((f"buffer_store_dwordx4 {v4(P)}, v1, s[8:11], s{40 + b//4} offen offset:{(b % 4)*1024} {SC}", i + 9))
            else:
                for j in range(2):
                    va, off = lds(OWN + (2 * b + j) * 1024)
                    flow.append((f"ds_write_b128 v{va}, {v4(dacc(j, b))} offset:{off}", i + 11))
        left, over = pack(k, mf, fixed, flow)
        k.add(left)
        if role == "pub": k("s_branch dn_pub")
    k.path = None
    k("dn_pub:")
    finish_down(k, signal, wait_flags, OWN)
    return slow

EM = int(os.environ.get("EM", "0")); MG = int(os.environ.get("MG", "0")); KM = int(os.environ.get("KM", "11")); UD = int(os.environ.get("UD", "3"))
QE = int(os.environ.get("QE", "14")); BG = int(os.environ.get("BG", "2")); NBG = int(os.environ.get("NBG", "1"))

def check_live(ins):
    ACC = F1.ACC; busy = set()
    for x in ins:
        if x.kind == "mfma":
            r = int(x.dst[0][1:]); ffn1 = x.ops[1].startswith("v[")
            if x.ops[3] == "0":
                assert not (set(x.dst) & busy), f"restart of busy accumulator: {x.text}"
            if ffn1: busy |= set(x.dst)
        elif x.kind in ("dsread", "vload"):
            assert not (set(x.dst) & busy), f"load into busy accumulator: {x.text}"
        elif x.op == "v_cvt_pk_bf16_f32":
            g = int(x.src[1][1:])
            if ACC <= g < ACC + 128 and (g - ACC) % 4 == 3:
                for i in range(4): busy.discard(f"v{g-i}"); busy.discard(f"v{g+16-i}")
    assert not busy

def finish_down(k, signal, wait_flags, OWN):
    N = 'dn'
    k(f"s_lshl_b32 s46, s21, {2+FS}")
    k("s_add_u32 s46, s46, s59")
    k(f"s_add_u32 s46, s46, {F_DX*FLG_SET}")
    k(f"s_lshl_b32 s58, s47, {FS}")
    k("s_add_u32 s58, s58, s46")
    k("s_waitcnt lgkmcnt(0)")
    signal(k, 58, 0, "dx")
    if not os.environ.get("FW"): k.add(k.stamp(11))
    if QE:
        k("s_cmp_lg_u32 s54, 0")
        k(f"s_cbranch_scc1 {N}_noq")
        k("s_lshr_b32 s7, s2, 3")
        k("s_mul_i32 s6, s7, 43")
        k("s_lshr_b32 s6, s6, 8")
        k("s_mul_i32 s6, s6, 6")
        k("s_sub_u32 s7, s7, s6")
        k("s_and_b32 s6, s2, 1")
        k("s_mul_i32 s6, s6, 6")
        k("s_add_u32 s6, s6, s7")
        k("s_mul_i32 s6, s6, 165888")
        k(f"s_add_u32 s6, s6, {WQKV}")
        k("s_add_u32 s12, s4, s6"); k("s_addc_u32 s13, s5, 0"); k("s_and_b32 s13, s13, 0xffff"); k("s_mov_b32 s15, 0x20000")
        k("s_cmp_lt_u32 s2, 192")
        k("s_cselect_b32 s14, 165888, 0")
        k("s_lshl_b32 s6, s18, 10")
        for i in range(QE):
            k(f"s_add_u32 m0, s6, {i*4096}")
            k("buffer_load_dwordx4 v1, s[12:15], m0 offen lds")
        k(f"{N}_noq:")
    srd(k, 24, 100, X1, XSZ)
    k("v_and_b32 v10, 15, v254")
    k("v_bfe_u32 v12, v254, 4, 1")
    k("v_lshrrev_b32 v13, 5, v254")
    k("v_mul_u32_u24 v14, 18432, v12")
    k("v_lshl_add_u32 v16, v13, 8, v14")
    k("v_lshl_add_u32 v16, v10, 4, v16")
    k("s_lshl_b32 s30, s48, 3")
    k("s_lshl_b32 s6, s47, 1")
    k("s_add_u32 s30, s30, s6")
    k("s_mul_i32 s31, s30, 18432")
    k("s_mul_i32 s32, s49, 9")
    k("s_add_u32 s32, s32, s18")
    k("s_lshl_b32 s33, s32, 9")
    k("s_add_u32 s33, s33, s31")
    RES = 176; PT = 188; OW = 32
    k("s_add_u32 s34, s33, 4096")
    k(f"buffer_load_dwordx4 {v4(RES)}, v16, s[24:27], s33 offen {SC}")
    k(f"buffer_load_dwordx4 {v4(RES+4)}, v16, s[24:27], s33 offen offset:2048 {SC}")
    k(f"buffer_load_dwordx4 {v4(RES+8)}, v16, s[24:27], s34 offen {SC}")
    k("s_lshl_b32 s6, s18, 11")
    k(f"s_add_u32 s6, s6, {OWN}")
    k("v_add_u32 v6, s6, v1")
    for bi in range(3):
        for j in range(2): k(f"ds_read_b128 {v4(OW + 8*bi + 4*j)}, v6 offset:{bi*8192 + j*1024}")
    k("s_cmp_eq_u32 s54, 1")
    k("s_cselect_b32 s44, 16, 256")
    k("s_cselect_b32 s45, 1152, 16")
    k("s_cselect_b32 s36, s56, s100")
    k("s_cselect_b32 s37, s57, s101")
    k(f"s_cselect_b32 s6, 0, {X2}")
    k(f"s_cselect_b32 s42, 0, {ST2SZ}")
    k("s_add_u32 s36, s36, s6"); k("s_addc_u32 s37, s37, 0"); k("s_and_b32 s37, s37, 0xffff"); k(f"s_mov_b32 s38, {XSZ}"); k("s_mov_b32 s39, 0x20000")
    k(f"s_add_u32 s40, s100, {ST2}"); k("s_addc_u32 s41, s101, 0"); k("s_and_b32 s41, s41, 0xffff"); k("s_mov_b32 s43, 0x20000")
    k("v_mul_lo_u32 v17, v10, s45")
    k("v_mul_lo_u32 v15, v13, s44")
    k("v_add3_u32 v17, v17, v15, v14")
    k("s_lshl_b32 s6, s44, 1")
    k("s_mul_i32 s16, s32, s6")
    k("s_add_u32 s16, s16, s31")
    k("s_lshl_b32 s6, s44, 3")
    k("s_add_u32 s17, s16, s6")
    k("s_add_u32 s19, s17, s6")
    k("v_lshlrev_b32 v18, 4, v10")
    k("v_lshl_add_u32 v18, v12, 11, v18")
    k("s_lshl_b32 s51, s30, 11")
    k("s_lshl_b32 s6, s49, 9")
    k("s_add_u32 s51, s51, s6")
    k("s_lshr_b32 s6, s18, 1")
    k("s_lshl_b32 s6, s6, 8")
    k("s_add_u32 s51, s51, s6")
    k("s_and_b32 s6, s18, 1")
    k("s_lshl_b32 s6, s6, 3")
    k("s_add_u32 s51, s51, s6")
    k("s_lshl_b32 s6, s21, 2")
    k("s_add_u32 s6, s6, s47")
    k("s_mul_i32 s33, s6, 27648")
    k("s_lshl_b32 s7, s18, 10")
    k("s_add_u32 s33, s33, s7")
    k("s_add_u32 s34, s33, 9216")
    k("s_add_u32 s35, s33, 18432")
    k("s_lshl_b32 s58, s48, 4")
    k("s_lshl_b32 s7, s49, 2")
    k("s_add_u32 s58, s58, s7")
    k("s_add_u32 s58, s58, s47")
    k(f"s_lshl_b32 s58, s58, {FS}")
    k("s_add_u32 s58, s58, s59")
    k(f"s_add_u32 s58, s58, {F_DN*FLG_SET}")
    k("v_add_u32 v7, 4096, v1")
    k("v_add_u32 v8, 8192, v1")
    k("v_mov_b32 v20, 0")
    k("v_mov_b32 v21, 0")
    k("v_mov_b32 v22, 0xffff0000")
    k("v_mov_b32 v23, 0x3f803f80")
    k("s_waitcnt lgkmcnt(0)")
    k("v_min_u32 v255, 2, v254")
    k("s_add_u32 s6, s47, 1")
    k("v_add_u32 v255, s6, v255")
    k("v_and_b32 v255, 3, v255")
    k(f"v_lshlrev_b32 v255, {FS}, v255")
    wait_flags(k, 46, None, "dx")
    k.add(k.stamp(1)) if os.environ.get("FH") else None
    def ld(bi):
        for p in range(3): k(f"buffer_load_dwordx4 {v4(PT + 12*bi + 4*p)}, v{(1, 7, 8)[bi]}, s[8:11], s{33+p} offen {SC}")
    U = 64
    def fin(bi):
        X = OW + 8 * bi; Y = X + 4
        for p in range(3):
            r = PT + 12 * bi + 4 * p
            for q in range(4):
                k(f"v_lshlrev_b32 v{U+2*q}, 16, v{r+q}")
                k(f"v_and_b32 v{U+2*q+1}, v22, v{r+q}")
            for q in range(4): k(f"v_pk_add_f32 {v2(X+2*q)}, {v2(X+2*q)}, {v2(U+2*q)}")
        for q in range(4):
            k(f"v_lshlrev_b32 v{U+2*q}, 16, v{RES+4*bi+q}")
            k(f"v_and_b32 v{U+2*q+1}, v22, v{RES+4*bi+q}")
        for i in range(4): k(f"v_permlane16_swap_b32 v{X+i}, v{Y+i}")
        for q in range(4): k(f"v_pk_add_f32 {v2(X+2*q)}, {v2(X+2*q)}, {v2(U+2*q)}")
        pk = 72 + 4 * bi
        for q in range(4): k(f"v_cvt_pk_bf16_f32 v{pk+q}, v{X+2*q}, v{X+2*q+1}")
        k("s_cmp_eq_u32 s54, 0")
        k(f"s_cbranch_scc1 {N}_s{bi}")
        k(f"buffer_store_dwordx4 {v4(pk)}, v17, s[36:39], s{(16, 17, 19)[bi]} offen")
        k(f"s_branch {N}_t{bi}")
        k(f"{N}_s{bi}:")
        k(f"buffer_store_dwordx4 {v4(pk)}, v17, s[36:39], s{(16, 17, 19)[bi]} offen {SC}")
        k(f"{N}_t{bi}:")
        for q in range(4):
            k(f"v_dot2c_f32_bf16 v20, v{pk+q}, v23")
            k(f"v_dot2c_f32_bf16 v21, v{pk+q}, v{pk+q}")
    k("s_cmp_lg_u32 s18, 0")
    k(f"s_cbranch_scc1 {N}_l2")
    ld(2)
    k(f"{N}_l2:")
    ld(0); ld(1)
    k("s_cmp_lg_u32 s18, 0")
    k(f"s_cbranch_scc1 {N}_f2")
    k("s_waitcnt vmcnt(6)")
    fin(2)
    k(f"{N}_f2:")
    k("s_waitcnt vmcnt(3)")
    fin(0)
    k("s_waitcnt vmcnt(1)")
    fin(1)
    k("v_mov_b32 v24, v20")
    k("v_mov_b32 v25, v21")
    k("v_permlane32_swap_b32 v20, v24")
    k("v_permlane32_swap_b32 v21, v25")
    k("v_add_f32 v20, v20, v24")
    k("v_add_f32 v21, v21, v25")
    k("s_mov_b32 exec_hi, 0")
    k(f"buffer_store_dwordx2 v[20:21], v18, s[40:43], s51 offen {SC}")
    k("s_mov_b32 exec_hi, -1")
```

```python
from asmgen import *
from layout import *
from k_prep import srd, xreduce
import os
SC = "sc1"
J_GU, J_WD, J_END = 9, 225, 369
NI1 = int(os.environ.get("NI1", "2")); NI0 = int(os.environ.get("NI0", "2"))
assert NI0 >= NI1
J_ATT = 64 * NI1 + 32 * (NI0 - NI1)
assert J_END - J_ATT <= 256
SWAP = bool(os.environ.get('SWAP'))
A0 = 184
LB = 53248

def trbase(k, d, t):
    k(f"v_lshrrev_b32 v{d}, 5, v254")
    k(f"v_lshlrev_b32 v{d}, 4, v{d}")
    k(f"v_bfe_u32 v{t}, v254, 4, 1")
    k(f"v_lshl_add_u32 v{d}, v{t}, 2, v{d}")
    k(f"v_bfe_u32 v{t}, v254, 2, 2")
    k(f"v_add_u32 v{d}, v{d}, v{t}")
    k(f"v_and_b32 v{d+1}, 3, v254")

def perm(k, dst, src, tmp):
    k(f"v_and_b32 v{dst}, 0xfffffff3, v{src}")
    k(f"v_bfe_u32 v{tmp}, v{src}, 2, 1")
    k(f"v_lshl_add_u32 v{dst}, v{tmp}, 3, v{dst}")
    k(f"v_bfe_u32 v{tmp}, v{src}, 3, 1")
    k(f"v_lshl_add_u32 v{dst}, v{tmp}, 2, v{dst}")

def frags(k, items, stride, tagp):
    seen = set()
    def fin(j):
        vb, imm, so, dimm, cs = items[j]; r = 4 * j
        k(f"WAITLG {tagp}{j}")
        k(f"buffer_store_dwordx4 a[{r}:{r+3}], v1, s[40:43], s{so} offen offset:{dimm} {SC}")
        if cs is not None:
            k(f"v_mfma_f32_16x16x32_bf16 v[{cs}:{cs+3}], a[{r}:{r+3}], a[72:75], {f'v[{cs}:{cs+3}]' if cs in seen else '0'}")
            seen.add(cs)
    for i, (vb, imm, so, dimm, cs) in enumerate(items):
        r = 4 * i
        k(f"ds_read_b64_tr_b16 a[{r}:{r+1}], v{vb} offset:{imm}", f"{tagp}{i}")
        k(f"ds_read_b64_tr_b16 a[{r+2}:{r+3}], v{vb} offset:{imm + 8*stride}", f"{tagp}{i}")
        if i >= 3: fin(i - 3)
    for j in range(len(items) - 3, len(items)): fin(j)

for _i in range(144): assert (_i * 1821) >> 16 == _i // 36
def setup(k, L):
    k("s_load_dwordx4 s[60:63], s[0:1], 32")
    k("s_load_dwordx2 s[48:49], s[0:1], 16")
    k("s_load_dwordx2 s[52:53], s[0:1], 48")
    k(f"s_sub_u32 s47, s50, {J_GU}")
    k(f"s_cmp_lt_u32 s47, {J_WD - J_GU}")
    k(f"s_cbranch_scc0 {L}_rp")
    k("s_cmp_ge_u32 s47, 108")
    k("s_cselect_b32 s44, 1, 0")
    k("s_mul_i32 s45, s44, 108")
    k("s_sub_u32 s47, s47, s45")
    k("s_mul_i32 s45, s47, 43691")
    k("s_lshr_b32 s45, s45, 17")
    k("s_mul_i32 s46, s45, 3")
    k("s_sub_u32 s46, s47, s46")
    k("v_lshrrev_b32 v248, 4, v0")
    k("v_and_b32 v247, 15, v0")
    k("v_mul_u32_u24 v248, 9216, v248")
    k("v_lshl_add_u32 v248, v247, 4, v248")
    k(f"s_mul_i32 s47, s46, {192*9216}")
    k("s_lshl_b32 s51, s45, 8")
    k("s_add_u32 s47, s47, s51")
    k("s_cmp_eq_u32 s44, 0")
    k("s_waitcnt lgkmcnt(0)")
    k("s_cselect_b32 s60, s60, s62")
    k("s_cselect_b32 s61, s61, s63")
    k(f"s_mov_b32 s62, {576*4608*2}")
    k(f"s_branch {L}_sd")
    k(f"{L}_rp:")
    k("s_mov_b32 s44, 2")
    k(f"s_sub_u32 s45, s50, {J_WD}")
    k(f"s_cmp_lt_u32 s50, {J_GU}")
    k("s_cselect_b32 s45, s50, s45")
    k("s_cselect_b32 s46, 9, 72")
    k("s_cselect_b32 s3, 6, 5")
    k("s_lshl_b32 s47, s45, s3")
    k("s_mul_i32 s51, s45, 1821")
    k("s_lshr_b32 s51, s51, 16")
    k("s_mul_i32 s3, s51, 36")
    k("s_sub_u32 s3, s45, s3")
    k("s_lshr_b32 s3, s3, 2")
    k("s_lshl_b32 s3, s3, 4")
    k("s_mul_i32 s51, s51, 1152")
    k("s_add_u32 s51, s51, s3")
    k(f"s_cmp_lt_u32 s50, {J_GU}")
    for jj in range(2):
        d = 247 + jj
        k("v_lshrrev_b32 v240, 3, v0")
        k(f"v_add_u32 v240, s47, v240")
        if jj: k("v_add_u32 v240, 32, v240")
        k("v_lshrrev_b32 v241, 4, v240")
        k("v_mul_u32_u24 v242, 18, v241")
        k("v_and_b32 v243, 15, v240")
        k("v_add_u32 v242, v242, v243")
        k("v_and_b32 v243, 1, v241")
        k("v_lshl_add_u32 v242, v243, 1, v242")
        k("v_bfe_u32 v241, v240, 1, 5")
        k("v_mul_u32_u24 v243, 18, v241")
        k("v_and_b32 v244, 1, v240")
        k("v_add_u32 v243, v243, v244")
        k("v_and_b32 v244, 1, v241")
        k("v_xor_b32 v244, 1, v244")
        k("v_lshl_add_u32 v243, v244, 4, v243")
        k("v_cmp_gt_u32 vcc, 512, v240")
        k("v_cndmask_b32 v242, v243, v242, vcc")
        k("v_bfe_u32 v241, v240, 4, 3")
        k("v_mul_u32_u24 v241, 144, v241")
        k("v_and_b32 v243, 15, v240")
        k("v_add3_u32 v240, v241, v243, s51")
        k("s_cselect_b64 vcc, -1, 0")
        k("v_cndmask_b32 v240, v240, v242, vcc")
        k("v_mul_u32_u24 v240, 1152, v240")
        k("v_and_b32 v241, 7, v0")
        k(f"v_lshl_add_u32 v{d}, v241, 4, v240")
    k("s_waitcnt lgkmcnt(0)")
    k("s_cselect_b32 s60, s48, s52")
    k("s_cselect_b32 s61, s49, s53")
    k(f"s_mov_b32 s62, {WD_SZ}")
    k(f"s_cselect_b32 s62, {WO_SZ}, s62")
    k(f"{L}_sd:")
    k("s_and_b32 s61, s61, 0xffff")
    k("s_mov_b32 s63, 0x20000")

def loads(k, L, part, alt=False):
    if alt:
        t = Kern(); loads(t, L, part)
        for x in t.ins:
            y = x.text.replace("s[60:63]", "s[84:87]").replace("s47", "s88").replace("s44", "s89").replace("s46", "s90").replace("v247", "v250").replace("v248", "v251")
            k(y)
        return
    k("s_cmp_eq_u32 s44, 2")
    k(f"s_cbranch_scc1 {L}_lr{part}")
    for j in (range(9) if part == 0 else range(9, 12)):
        k(f"buffer_load_dwordx4 a[{A0+4*j}:{A0+4*j+3}], v248, s[60:63], s47 offen nt")
        if j < 11: k(f"s_add_u32 s47, s47, {16*9216}")
    k(f"s_branch {L}_ld{part}")
    k(f"{L}_lr{part}:")
    if part:
        k("s_cmp_eq_u32 s46, 72")
        k(f"s_cbranch_scc1 {L}_ld{part}")
    for jc in range(9):
        r = A0 + 4 * (part * 9 + jc)
        k(f"buffer_load_dwordx4 a[{r}:{r+3}], v{247+part}, s[60:63], 0 offen offset:{jc*128} nt")
    k(f"{L}_ld{part}:")

SO = (30, 31, 32, 33, 36, 37)
def finish(k, L, mid=None):
    srd(k, 40, 4, 0, WS_END)
    trbase(k, 234, 232)
    k("s_cmp_eq_u32 s46, 72")
    k("s_cselect_b32 s39, 1, 0")
    k("s_and_b32 s3, s44, 2")
    k("s_mul_i32 s39, s39, s3")
    k("s_add_u32 s39, s39, s44")
    k("s_cmp_eq_u32 s44, 2")
    k(f"s_cbranch_scc1 {L}_fr")
    k("v_lshrrev_b32 v232, 4, v0")
    perm(k, 233, 232, 236)
    k("v_and_b32 v232, 15, v0")
    k("v_mul_u32_u24 v233, 288, v233")
    k("v_lshl_add_u32 v233, v232, 4, v233")
    k(f"v_add_u32 v233, {LB}, v233")
    for j in range(12): k(f"ds_write_b128 v233, a[{A0+4*j}:{A0+4*j+3}] offset:{j*16*288}")
    k("v_mul_u32_u24 v234, 288, v234")
    k("s_lshl_b32 s3, s18, 6")
    k(f"s_add_u32 s3, s3, {LB}")
    k("v_add_u32 v234, s3, v234")
    k("v_lshl_add_u32 v234, v235, 3, v234")
    k("s_lshl_b32 s30, s45, 3")
    k("s_lshl_b32 s3, s18, 1")
    k("s_add_u32 s31, s30, s3")
    k("s_mul_i32 s38, s46, 36864")
    k("s_lshl_b32 s3, s31, 7")
    k("s_add_u32 s38, s38, s3")
    k("s_lshl_b32 s3, s44, 6")
    k("s_add_u32 s38, s38, s3")
    k(f"s_add_u32 s38, s38, {SGU}")
    k("s_mul_i32 s30, s31, 18")
    k("s_mul_i32 s3, s46, 6")
    k("s_add_u32 s30, s30, s3")
    k("s_lshl_b32 s30, s30, 11")
    k("s_lshl_b32 s3, s44, 10")
    k("s_add_u32 s30, s30, s3")
    k(f"s_add_u32 s30, s30, {WGU}")
    k(f"s_add_u32 s33, s30, {18*2048}")
    k("v_mov_b32 v232, 0x3f803f80")
    for i in range(4): k(f"v_accvgpr_write_b32 a{72+i}, v232")
    k(f"s_branch {L}_fm")
    k(f"{L}_fr:")
    k("v_lshrrev_b32 v232, 3, v0")
    perm(k, 233, 232, 236)
    k("v_and_b32 v232, 7, v0")
    k("v_mul_u32_u24 v233, 1184, v233")
    k("v_lshl_add_u32 v233, v232, 4, v233")
    k(f"v_add_u32 v233, {LB}, v233")
    for jj in range(2):
        for jc in range(9):
            r = A0 + 4 * (jj * 9 + jc)
            k(f"ds_write_b128 v233, a[{r}:{r+3}] offset:{jj*32*1184 + jc*128}")
        if jj == 0:
            k("s_cmp_eq_u32 s46, 72")
            k(f"s_cbranch_scc1 {L}_fw")
            k("s_waitcnt lgkmcnt(4)")
    k(f"{L}_fw:")
    k("v_mul_u32_u24 v234, 1184, v234")
    k("s_mul_i32 s3, s18, 288")
    k(f"s_add_u32 s3, s3, {LB}")
    k("v_add_u32 v234, s3, v234")
    k("v_and_b32 v232, 1, v235")
    k("v_lshl_add_u32 v236, v232, 3, v234")
    k("v_lshrrev_b32 v232, 1, v235")
    k(f"v_mul_u32_u24 v232, {32*1184}, v232")
    k("v_add_u32 v236, v236, v232")
    k("v_lshl_add_u32 v234, v235, 3, v234")
    k("s_mul_i32 s33, s46, 9216")
    k("s_mul_i32 s30, s45, 9216")
    k("s_lshl_b32 s3, s18, 1")
    k("s_mul_i32 s3, s3, s33")
    k("s_add_u32 s30, s30, s3")
    k(f"s_add_u32 s30, s30, {WO}")
    k("s_add_u32 s33, s33, s30")
    k("s_cmp_eq_u32 s46, 9")
    k(f"s_cbranch_scc1 {L}_fm")
    k("s_mul_i32 s30, s18, 144")
    k("s_add_u32 s30, s30, s45")
    k("s_mul_i32 s30, s30, 9216")
    k(f"s_add_u32 s30, s30, {WD}")
    k("s_add_u32 s33, s30, 9216")
    k(f"{L}_fm:")
    k("s_add_u32 s31, s30, 4096")
    k("s_add_u32 s32, s30, 8192")
    k("s_add_u32 s36, s33, 4096")
    k("s_add_u32 s37, s33, 8192")
    k("s_waitcnt lgkmcnt(0)")
    k("s_barrier")
    if mid: mid(k)
    k("s_cmp_eq_u32 s39, 2")
    k(f"s_cbranch_scc1 {L}_fr2")
    k("s_cmp_eq_u32 s39, 4")
    k(f"s_cbranch_scc1 {L}_fr3")
    k.path = L + "g"
    items = [(234, 32*bb + ks*32*288, SO[3*bb + ks//2], (ks % 2)*2048, 224 + 4*bb) for bb in range(2) for ks in range(6)]
    frags(k, items, 288, L + "g")
    k("v_lshrrev_b32 v232, 4, v254")
    k("v_lshlrev_b32 v232, 4, v232")
    k("s_mov_b32 exec_lo, 0x00010001"); k("s_mov_b32 exec_hi, 0x00010001")
    k(f"buffer_store_dwordx4 v[224:227], v232, s[40:43], s38 offen {SC}")
    k(f"buffer_store_dwordx4 v[228:231], v232, s[40:43], s38 offen offset:128 {SC}")
    k("s_mov_b64 exec, -1")
    k(f"s_branch {L}_fd")
    k(f"{L}_fr2:")
    k.path = L + "r"
    items = []
    for nn in range(2):
        for ks in range(2):
            for b in range(4): items.append((234, 144*nn + 32*b + ks*32*1184, SO[3*nn + ks], b*1024, None))
        items.append((236, 144*nn + 128, SO[3*nn + 2], 0, None))
    frags(k, items, 1184, L + "r")
    k(f"s_branch {L}_fd")
    k(f"{L}_fr3:")
    k.path = L + "d"
    items = [(234, 32*b + ks*32*1184, SO[3*ks + b//4], (b % 4)*1024, None) for ks in range(1) for b in range(9)]
    frags(k, items, 1184, L + "d")
    k.path = None
    k(f"{L}_fd:")

def idle_jobs(k):
    k("s_sub_u32 s50, s2, 256")
    k("s_mov_b32 s35, 0")
    k("s_cmp_ge_u32 s2, 224")
    k(f"s_cselect_b32 s34, {NI0}, {NI1}")
    srd(k, 40, 4, 0, WS_END)
    k("s_branch pi_next")
    k("pi_top:")
    k("s_waitcnt vmcnt(9)")
    k("s_cmp_gt_u32 s35, 2")
    k("s_cbranch_scc1 pi_t1")
    k("s_cmp_eq_u32 s35, 1")
    k("s_cbranch_scc1 pi_t0")
    k(f"s_cmp_ge_u32 s2, {192 + J_GU}")
    k("s_cbranch_scc1 pi_t1")
    k("s_waitcnt vmcnt(0)")
    k("s_barrier")
    k("s_cmp_lg_u32 s18, 0")
    k("s_cbranch_scc1 pi_t1")
    k(f"s_lshl_b32 s3, s2, {FS}")
    k(f"s_add_u32 s3, s3, {F_WOPK*FLG_SET - (192 << FS)}")
    k("s_mov_b64 exec, 1")
    k(f"buffer_store_dword v253, v252, s[96:99], s3 offen {SC}")
    k("s_mov_b64 exec, -1")
    k("s_branch pi_t1")
    k("pi_t0:")
    k("s_waitcnt vmcnt(0)")
    k("pi_t1:")
    k("s_barrier")
    def mid(k):
        k("pi_next:")
        k(f"s_cmp_gt_u32 s35, {NI1}")
        k("s_cselect_b32 s3, 32, 64")
        k(f"s_cmp_eq_u32 s35, {NI1}")
        k("s_cselect_b32 s3, 32, s3")
        k("s_add_u32 s50, s50, s3")
        k("s_add_u32 s35, s35, 1")
        k("s_cmp_gt_u32 s35, s34")
        k("s_cbranch_scc1 pi_last")
        if SWAP:
            k("s_mov_b32 s21, s50")
            k(f"s_cmp_ge_u32 s50, {J_GU}")
            k(f"s_cselect_b32 s3, {J_WD - J_GU}, 0")
            k("s_add_u32 s50, s50, s3")
        setup(k, "pi")
        if SWAP: k("s_mov_b32 s50, s21")
        loads(k, "pi", 0); loads(k, "pi", 1)
        k("s_cmp_eq_u32 s35, 1")
        k("s_cbranch_scc1 pi_top")
        k("pi_last:")
    finish(k, "pi", mid)
    k("s_cmp_le_u32 s35, s34")
    k("s_cbranch_scc1 pi_top")
    k("s_barrier")
```

```python
from asmgen import *
from layout import *
from k_prep import srd, xreduce
from k_qkv import f2u, QSCALE
from m_pack import trbase
SC = "sc1"
import os
DOT = bool(os.environ.get("DOT"))
SLOT = 36864; NS = 3; LDS_ST = NS * SLOT
def v4(r): return f"v[{r}:{r+3}]"
for _e in range(1280): assert (_e * 3641) >> 16 == _e // 18

def emit(k, late_setup):
    N = "q0"
    W = (32, 68); XF = 104; ACC = 120; AS = 192; AM = 228; AG = 236; ONE = 244
    k(f"{N}_tile:")
    k("s_and_b32 s9, s9, 0xffff"); k(f"s_mov_b32 s10, {XSZ}"); k("s_mov_b32 s11, 0x20000")
    k("s_and_b32 s13, s13, 0xffff"); k(f"s_mov_b32 s14, {WQKV_SZ}"); k("s_mov_b32 s15, 0x20000")
    import os
    if "x" in os.environ.get("Q0Z", ""): k("s_mov_b32 s10, 0")
    if "w" in os.environ.get("Q0Z", ""): k("s_mov_b32 s14, 0")
    k("s_lshl_b32 s19, s16, 3")
    k("s_lshl_b32 s6, s18, 1")
    k("s_add_u32 s19, s19, s6")
    k("s_mul_i32 s34, s19, 18432")
    k("s_mul_i32 s35, s17, 288")
    k("s_lshl_b32 s38, s18, 12")
    k("s_lshl_b32 s39, s18, 10")
    k("s_add_u32 s39, s39, 32768")
    k("v_lshrrev_b32 v6, 3, v254")
    k("v_and_b32 v7, 7, v254")
    k("v_xor_b32 v7, v7, v6")
    k("v_mul_u32_u24 v2, 1152, v6")
    k("v_lshl_add_u32 v2, v7, 4, v2")
    for i in range(1, 4): k(f"v_add_u32 v{2+i}, {8192*i}, v2")
    k("s_mov_b32 s36, 0")
    for g in range(2):
        k(f"s_add_u32 m0, s38, {g*SLOT}")
        for i in range(4):
            k(f"buffer_load_dwordx4 v{2+i}, s[8:11], s34 offen offset:{1024*i} lds")
        k("s_add_u32 s34, s34, 128")
    for j in range(5):
        d = 9 + j
        if j < 4:
            k(f"s_lshl_b32 s6, s18, 8"); k(f"s_add_u32 s6, s6, {64*j}"); k("v_add_u32 v6, s6, v254")
        else:
            k(f"s_lshl_b32 s6, s18, 6"); k("s_add_u32 s6, s6, 1024"); k("v_add_u32 v6, s6, v254")
        k("v_mul_u32_u24 v7, 3641, v6")
        k("v_lshrrev_b32 v7, 16, v7")
        k("v_mul_u32_u24 v8, 18, v7")
        k("v_sub_u32 v6, v6, v8")
        k("v_and_b32 v8, 0xfffffff3, v7")
        k(f"v_bfe_u32 v{d}, v7, 2, 1")
        k(f"v_lshl_add_u32 v8, v{d}, 3, v8")
        k(f"v_bfe_u32 v{d}, v7, 3, 1")
        k(f"v_lshl_add_u32 v8, v{d}, 2, v8")
        k("v_mul_u32_u24 v8, 3456, v8")
        k(f"v_lshl_add_u32 v{d}, v6, 4, v8")
        if 0 < j < 4: k(f"v_subrev_u32 v{d}, {1024*j}, v{d}")
    k("s_cmp_lt_u32 s18, 2")
    k("s_cselect_b32 s6, 0, 0x7ff00000")
    k("v_or_b32 v13, s6, v13")
    def xdma(i): return f"buffer_load_dwordx4 v{2+i}, s[8:11], s34 offen offset:{1024*i} lds"
    def wdma(j): return f"buffer_load_dwordx4 v{9+j}, s[12:15], s35 offen offset:{1024*(j % 4)} lds"
    for g in range(2):
        k(f"s_add_u32 m0, s38, {g*SLOT + 16384}")
        for j in range(4): k(wdma(j))
        k(f"s_add_u32 m0, s39, {g*SLOT}")
        k(wdma(4))
        k(f"s_add_u32 s35, s35, {64*3456}")
    k(f"s_mov_b32 s36, {2*SLOT}")
    late_setup.early(k, "pe0")
    late_setup(k)
    k("v_and_b32 v7, 15, v254")
    k("v_lshrrev_b32 v8, 4, v254")
    k("v_and_b32 v6, 7, v7")
    k("v_xor_b32 v6, v6, v8")
    k("v_lshlrev_b32 v14, 7, v7")
    k("v_lshl_add_u32 v14, v6, 4, v14")
    k("v_add_u32 v14, s38, v14")
    k("v_xor_b32 v15, 64, v14")
    trbase(k, 18, 6)
    k("v_mul_u32_u24 v17, 288, v18")
    k("v_add_u32 v17, 16384, v17")
    k("v_lshl_add_u32 v16, v19, 3, v17")
    k("v_mul_u32_u24 v6, 72, v19")
    k("v_add_u32 v208, v17, v6")
    k("s_lshl_b32 s40, s16, 2")
    k("s_add_u32 s40, s40, s18")
    k("s_mul_i32 s6, s17, 18")
    k("s_add_u32 s6, s6, s40")
    k("s_mul_i32 s6, s6, 9216")
    k("s_mul_i32 s7, s17, 589824")
    for p in range(4):
        k(f"s_add_u32 s3, s18, {p}")
        k("s_and_b32 s3, s3, 3")
        k(f"s_lshl_b32 s{20+p}, s3, 7")
        k(f"s_lshl_b32 s{41+p}, s3, 11")
        k(f"s_add_u32 s{41+p}, s{41+p}, s6")
        k(f"s_lshl_b32 s{49+p}, s3, 17")
        k(f"s_add_u32 s{49+p}, s{49+p}, s7")
        k(f"s_add_u32 s{60+p}, s{49+p}, 65536")
        k("s_mul_i32 s3, s3, 72")
        k(f"v_add_u32 v{204+p}, s3, v16")
    k("s_add_u32 s45, s6, 8192")
    k("s_add_u32 s53, s7, 524288")
    for r in list(range(ACC, AS + 12)) + list(range(AM, ONE)): k(f"v_mov_b32 v{r}, 0")
    for i in range(4): k(f"v_mov_b32 v{ONE+i}, 0x3f803f80")
    srd(k, 24, 100, QKV, 3 * XSZ)
    srd(k, 28, 4, WQKV, WQKV_SZ + 0)
    k("s_cmp_lt_u32 s17, 4")
    k(f"s_cselect_b32 s46, {f2u(QSCALE)}, 1.0")
    k("s_lshl_b32 s47, s18, 8")
    k(f"s_add_u32 s47, s47, {LDS_ST}")
    k("s_lshl_b32 s48, s19, 9")
    k("s_lshl_b32 s58, s17, 4")
    k("s_add_u32 s58, s58, s16")
    k(f"s_lshl_b32 s58, s58, {FS}")
    k("s_mov_b32 s37, 0")
    k("s_mov_b32 s33, 0")
    import os
    if os.environ.get("FQ"): k.add(k.stamp(8))
    k(f"s_waitcnt vmcnt({14 if os.environ.get('EARLY') and not os.environ.get('MID') else 5}) lgkmcnt(0)")
    if os.environ.get("FQ"): k.add(k.stamp(9))
    TAB = LDS_ST + 1024
    def v2(r): return f"v[{r}:{r+1}]"
    k("s_cmp_ge_u32 s17, 8")
    k(f"s_cbranch_scc1 {N}_v")
    for path in ("qk", "v"):
        k.path = N + path; L = f"{N}_{path}"
        if path == "v": k(f"{N}_v:")
        AD = (209, 215)
        def addrs(s, first=False):
            src = [14 + s, 204, 205, 206, 207, 208]
            return [f"v_mov_b32 v{AD[s]+i}, v{r}" if first else f"v_add_u32 v{AD[s]+i}, s37, v{r}" for i, r in enumerate(src)]
        def reads(s):
            R = [(f"ds_read_b128 {v4(XF+8*s+4*j)}, v{AD[s]} offset:{2048*j}", f"{L}x{s}") for j in range(2)]
            for b in range(9):
                r = W[s] + 4 * b
                va, off = (AD[s] + 1 + b // 2, 40 * (b & 1)) if b < 8 else (AD[s] + 5, 32)
                R.append((f"ds_read_b64_tr_b16 v[{r}:{r+1}], v{va} offset:{off + s*32*288}", f"{L}w{s}_{b}"))
                R.append((f"ds_read_b64_tr_b16 v[{r+2}:{r+3}], v{va} offset:{off + s*32*288 + 8*288}", f"{L}w{s}_{b}"))
            return R
        NP = 10
        k("s_barrier")
        k.add(addrs(0, True))
        k.add(reads(0)[:NP])
        k(f"WAITLG {L}x0")
        k(f"{L}_loop:")
        for s in range(2):
            mine = reads(s)[NP:]; nxt = reads(1 - s)[:NP]; ad = addrs(1 - s)
            x = [v4(XF + 8 * s + 4 * j) for j in range(2)]
            mf = []; fixed = {}
            def fx(i, y): fixed.setdefault(i, []).extend(y if isinstance(y, list) else [y])
            for j in range(2):
                mf.append(f"v_mfma_f32_16x16x32_bf16 {v4(AM+4*j)}, {v4(ONE)}, {x[j]}, {v4(AM+4*j)}")
                mf.append(f"v_mfma_f32_16x16x32_bf16 {v4(AG+4*j)}, {x[j]}, {x[j]}, {v4(AG+4*j)}")
            for b in range(9):
                w = v4(W[s] + 4 * b)
                if b % 2 == 0 and not (s == 1 and b >= 4): fx(len(mf) - 1, f"WAITLG {L}w{s}_{min(b + 1, 8)}")
                ops = [(x[0], ACC + 4 * b), (x[1], ACC + 36 + 4 * b)]
                if b in (0, 1, 8): ops.append((v4(ONE), AS + 4 * min(b, 2)))
                for o, a in ops:
                    mf.append(f"v_mfma_f32_16x16x32_bf16 {v4(a)}, {w}, {o}, {v4(a)}" if path == "qk" else f"v_mfma_f32_16x16x32_bf16 {v4(a)}, {o}, {w}, {v4(a)}")
            if s == 0:
                dg = {2: xdma(0), 7: xdma(1), 13: xdma(2), 18: xdma(3), 23: wdma(0)}
                for g_, y in ((0, "s_add_u32 m0, s36, s38"), (1, "s_cmp_ge_u32 s33, 14"), (2, "s_cselect_b32 s10, 0, s10"), (4, "s_cselect_b32 s14, 0, s14"),
                              (20, "s_add_u32 m0, m0, 16384"), (22, "s_add_u32 s34, s34, 128")): fx(g_, y)
            else:
                dg = {4: wdma(1), 10: wdma(2), 16: wdma(3), 22: wdma(4)}
                for g_, y in ((0, f"s_add_u32 s37, s37, {SLOT}"), (1, f"s_cmp_eq_u32 s37, {NS*SLOT}"), (2, "s_cselect_b32 s37, 0, s37"),
                              (12, "s_waitcnt vmcnt(7) lgkmcnt(0)"), (13, "s_barrier"), (18, "s_add_u32 m0, s36, s39"),
                              (19, f"s_add_u32 s36, s36, {SLOT}"), (20, f"s_cmp_eq_u32 s36, {NS*SLOT}"), (21, "s_cselect_b32 s36, 0, s36"),
                              (23, f"s_add_u32 s35, s35, {64*3456}")): fx(g_, y)
            for i in range(25):
                if i in dg: fx(i, dg[i])
                elif mine: fx(i, [mine.pop(0) for _ in range(1 if i < 4 else min(2, len(mine)))])
                elif ad and i < 13: fx(i, [ad.pop(0) for _ in range(2)])
                elif i >= 14 and nxt: fx(i, [nxt.pop(0) for _ in range(min(len(nxt), 1 + (i % 2 == 1)))])
            assert not nxt and not mine and not ad, (len(nxt), len(mine), len(ad))
            fx(24, f"WAITLG {L}x{1-s}")
            pack(k, mf, fixed, [])
            k("s_cmp_lg_u32 s33, s40")
            k(f"s_cbranch_scc1 {L}_ns{s}")
            for b in range(9):
                k(f"buffer_store_dwordx4 {v4(W[s]+4*b)}, v1, s[28:31], s{41 + b//2} offen offset:{(b & 1)*1024} {SC}")
            k(f"{L}_ns{s}:")
            k("s_add_u32 s33, s33, 1")
        k("s_cmp_lt_u32 s33, 18")
        k(f"s_cbranch_scc1 {L}_loop")
        k.add(k.stamp(1))
        if os.environ.get("MID"):
            import m_pack
            m_pack.loads(k, L + "m", 0, True); m_pack.loads(k, L + "m", 1, True)
        SV = 68
        if path == "qk": k("v_lshlrev_b32 v10, 4, v8")
        else: k("v_lshlrev_b32 v10, 2, v7")
        k(f"v_add_u32 v10, {TAB}, v10")
        for p in range(4): k(f"v_add_u32 v{204+p}, s{20+p}, v10")
        k("v_and_b32 v6, 3, v7")
        k("v_lshrrev_b32 v9, 2, v7")
        k("s_waitcnt lgkmcnt(0)")
        for i, (va, off) in enumerate(((204, 0), (204, 64), (10, 512))):
            if path == "qk": k(f"ds_write_b128 v{va}, {v4(AS+4*i)} offset:{off}")
            else: k(f"ds_write_b32 v{va}, v{AS+4*i} offset:{off}")
        for i in range(1, 4):
            if DOT: break
            k(f"v_cmp_eq_u32 vcc, {i}, v6")
            for j in range(2): k(f"v_cndmask_b32 v{AG+4*j}, v{AG+4*j}, v{AG+4*j+i}, vcc")
        if not DOT:
            k("v_cmp_eq_u32 vcc, v9, v8")
            for j in range(2): k(f"v_cndmask_b32 v{AG+4*j}, 0, v{AG+4*j}, vcc")
        k("s_waitcnt lgkmcnt(0)")
        k("s_barrier")
        for b in range(9):
            va, off = (204 + b // 2, 64 * (b & 1)) if b < 8 else (10, 512)
            if path == "qk": k(f"ds_read_b128 {v4(SV+4*b)}, v{va} offset:{off}")
            else: k(f"ds_read_b32 v{SV+2*b}, v{va} offset:{off}")
        xreduce(k, [AG, AG + 4] + ([AM, AM + 4] if DOT else []), [AG + 1, AG + 5] + ([AM + 1, AM + 5] if DOT else []))
        for op in range(7):
            for j in range(2):
                m, g = AM + 4 * j, AG + 4 * j
                k([f"v_mul_f32 v{m}, {f2u(1/576)}, v{m}", f"v_mul_f32 v{g}, {f2u(1/576)}, v{g}", f"v_fma_f32 v{g}, -v{m}, v{m}, v{g}",
                   f"v_max_f32 v{g}, 0, v{g}", f"v_add_f32 v{g}, {f2u(1e-5)}, v{g}", f"v_rsq_f32 v{13+2*j}, v{g}", f"v_sub_f32 v{12+2*j}, 0, v{m}"][op])
        R0 = 104; PR = 32
        if path == "qk":
            k("v_mul_f32 v13, s46, v13")
            k("v_mul_f32 v15, s46, v15")
            k("v_and_b32 v18, 1, v8")
            k("v_lshlrev_b32 v18, 9, v18")
            k("v_lshrrev_b32 v19, 1, v8")
            k("v_lshl_add_u32 v18, v19, 8, v18")
            k("v_lshl_add_u32 v18, v7, 4, v18")
            k("v_add_u32 v18, s48, v18")
        else:
            k("v_lshl_add_u32 v11, v7, 2, s47")
            k("s_waitcnt lgkmcnt(0)")
            for q in range(4): k(f"ds_write_b32 v11, v{12+q} offset:{64*q}")
            k("v_lshl_add_u32 v11, v8, 4, s47")
            for q in range(4): k(f"ds_read_b128 {v4(R0+4*q)}, v11 offset:{64*q}")
            k("v_add_u32 v18, s48, v1")
        k("s_waitcnt lgkmcnt(0)")
        for b in range(9):
            P = PR + 4 * b
            for j in range(2):
                a = ACC + 36 * j + 4 * b
                for i in (0, 2):
                    if path == "qk": k(f"v_pk_fma_f32 {v2(a+i)}, {v2(12+2*j)}, {v2(SV+4*b+i)}, {v2(a+i)} op_sel_hi:[0,1,1]")
                    else: k(f"v_pk_fma_f32 {v2(a+i)}, {v2(R0+8*j+i)}, {v2(SV+2*b)}, {v2(a+i)} op_sel_hi:[1,0,1]")
                for i in (0, 2):
                    if path == "qk": k(f"v_pk_mul_f32 {v2(a+i)}, {v2(a+i)}, {v2(12+2*j)} op_sel:[0,1] op_sel_hi:[1,1]")
                    else: k(f"v_pk_mul_f32 {v2(a+i)}, {v2(a+i)}, {v2(R0+8*j+4+i)}")
                k(f"v_cvt_pk_bf16_f32 v{P+2*j}, v{a}, v{a+1}")
                k(f"v_cvt_pk_bf16_f32 v{P+2*j+1}, v{a+2}, v{a+3}")
            def fin(b):
                P = PR + 4 * b
                if path == "qk":
                    k(f"v_permlane16_swap_b32 v{P}, v{P+2}")
                    k(f"v_permlane16_swap_b32 v{P+1}, v{P+3}")
                k(f"buffer_store_dwordx4 {v4(P)}, v18, s[24:27], s{53 if b == 8 else (60 if b & 1 else 49) + b // 2} offen {SC}")
            if b: fin(b - 1)
        fin(8)
        if path == "qk": k(f"s_branch {N}_cs")
    k.path = None
    k(f"{N}_cs:")
    k("s_cmp_lg_u32 s40, 63")
    k("s_cbranch_scc1 at_main")
    srd(k, 28, 4, SQKV, SQKV_SZ)
    k("s_mul_i32 s41, s17, 576")
    k("v_min_u32 v6, 35, v254")
    k("v_lshlrev_b32 v6, 4, v6")
    k(f"v_add_u32 v9, {TAB}, v6")
    k(f"ds_read_b128 {v4(96)}, v9")
    k("s_waitcnt lgkmcnt(0)")
    k(f"buffer_store_dwordx4 {v4(96)}, v6, s[28:31], s41 offen {SC}")
    k("s_branch at_main")
```

```python
from asmgen import *
from layout import *
from k_prep import srd, entry, xreduce
from k_qkv import load_stats, finish_stats, f2u, QSCALE
import k_gemmk as G
import k_ffn1 as F1
import m_attn as AT
import m_pack as PK
import m_qkv0 as Q0
import m_ffn as FF
from k_prep import code_prefetch
import math, os

GRID = 256
INPACK = True
KNAME = 'interleave_layers__sliding_block__swiglu_ffn__prompt_kernel'
SC = "sc1"
LDS = 39 * 4096 + 1024 + 576
SPIN = 150000
SLEEP = int(os.environ.get('SLEEP', '0'))
def v4(r): return f"v[{r}:{r+3}]"
def a4(r): return f"a[{r}:{r+3}]"

def make_tag(k):
    k("s_waitcnt lgkmcnt(0)")
    k("s_mul_i32 s3, s93, 0x9E3779B1")
    k("s_add_u32 s3, s3, 0x7F4A7C15")
    k("v_mov_b32 v253, s3")

def signal(k, so, nvm, lab):
    k(f"s_waitcnt vmcnt({nvm})")
    k("s_barrier")
    k("s_cmp_lg_u32 s18, 0")
    k(f"s_cbranch_scc1 {lab}_sg")
    k("s_mov_b64 exec, 1")
    k(f"buffer_store_dword v253, v252, s[96:99], s{so} offen {SC}")
    k("s_mov_b64 exec, -1")
    k(f"{lab}_sg:")

PREPOLL = bool(os.environ.get("PRE")); _pp = [0]; PMODE = int(os.environ.get("PMODE", "1")); PSL = int(os.environ.get("PSL", "0"))
def pre_poll(k, so, n):
    if not PREPOLL: return
    _pp[0] += 1
    k("s_cmp_lg_u32 s18, 0")
    k(f"s_cbranch_scc1 pp{_pp[0]}")
    k(f"v_min_u32 v255, {n-1}, v254")
    k(f"v_lshlrev_b32 v255, {FS}, v255")
    k(f"buffer_load_dword v251, v255, s[96:99], s{so} offen {SC}")
    k(f"pp{_pp[0]}:")

def wait_flags(k, so, n, lab, skip_if=None, keep=0, pre=False):
    k("s_cmp_lg_u32 s18, 0")
    k(f"s_cbranch_scc1 {lab}_wn")
    if skip_if:
        k(f"s_cmp_eq_u32 {skip_if}, 0")
        k(f"s_cbranch_scc1 {lab}_wn")
    if n:
        k(f"v_min_u32 v255, {n-1}, v254")
        k(f"v_lshlrev_b32 v255, {FS}, v255")
    k(f"s_mov_b32 s3, {SPIN}")
    ld = lambda r: k(f"buffer_load_dword v{r}, v255, s[96:99], s{so} offen {SC}")
    if os.environ.get("PD") and lab in os.environ.get("PDL", "at,dx,gk,f1,q2").split(","): k(f"s_sleep {os.environ['PD']}")
    def prechk():
        if not (pre and PREPOLL): return k("s_sleep 2")
        k("s_waitcnt vmcnt(1)")
        k("v_cmp_ne_u32 vcc, v253, v251")
        k("s_nop 1")
        k("s_cmp_eq_u64 vcc, 0")
        k(f"s_cbranch_scc1 {lab}_wd")
    if PMODE == 3: ld(249); prechk(); ld(250); k("s_sleep 2")
    if PMODE == 2: ld(249); prechk(); k("s_sleep 2")
    k(f"{lab}_wl:")
    for r, nx in {3: ((249, 251), (250, 249), (251, 250)), 2: ((249, 250), (250, 249)), 1: ((249, 249),)}[PMODE]:
        ld(nx)
        k(f"s_waitcnt vmcnt({PMODE-1})")
        k(f"v_cmp_ne_u32 vcc, v253, v{r}")
        k("s_nop 1")
        k("s_cmp_eq_u64 vcc, 0")
        k(f"s_cbranch_scc1 {lab}_wd")
        if PSL: k(f"s_sleep {PSL}")
    k("s_sub_u32 s3, s3, 1")
    k("s_cmp_lg_u32 s3, 0")
    k(f"s_cbranch_scc1 {lab}_wl")
    k(f"{lab}_wn:")
    k(f"s_waitcnt vmcnt({keep})")
    k(f"{lab}_wd:")
    k("s_barrier")

def emit_gk(k):
    N = "gk"; WL = 77824; WB = 32; ACC = 104; RES = 128; U = 140; PK_ = 148
    def v2(r): return f"v[{r}:{r+1}]"
    k(f"{N}_main:")
    k("s_and_b32 s20, s2, 7")
    k("s_lshr_b32 s21, s2, 3")
    k("s_lshr_b32 s16, s20, 1")
    k("s_lshl_b32 s16, s16, 3")
    k("s_lshr_b32 s22, s21, 2")
    k("s_add_u32 s16, s16, s22")
    k("s_and_b32 s17, s20, 1")
    k("s_lshl_b32 s17, s17, 2")
    k("s_and_b32 s22, s21, 3")
    k("s_add_u32 s17, s17, s22")
    k(f"s_mul_i32 s22, s17, {9*9216}")
    k(f"s_add_u32 s22, s22, {WO - WL}")
    k("s_add_u32 s12, s4, s22"); k("s_addc_u32 s13, s5, 0"); k("s_and_b32 s13, s13, 0xffff"); k(f"s_mov_b32 s14, {WL + 9*9216}"); k("s_mov_b32 s15, 0x20000")
    k("s_lshl_b32 s23, s18, 10")
    def wp(i):
        k(f"s_add_u32 m0, s23, {WL + i*4096}")
        k("buffer_load_dwordx4 v1, s[12:15], m0 offen lds")
    def resid():
        k(f"buffer_load_dwordx4 {v4(RES)}, v16, s[24:27], s33 offen {SC}")
        k(f"buffer_load_dwordx4 {v4(RES+4)}, v16, s[24:27], s48 offen {SC}")
        k(f"buffer_load_dwordx4 {v4(RES+8)}, v17, s[24:27], s49 offen {SC}")
    for i in range(11, 20): wp(i)
    assert WL + 11 * 4096 >= PK.LB + 192 * 288
    if os.environ.get("FP"): k.add(k.stamp(4))
    signal(k, 58, 9, "gk")
    if os.environ.get("FP"): k.add(k.stamp(8))
    k("s_lshr_b32 s45, s16, 2")
    k(f"s_lshl_b32 s45, s45, {5+FS}")
    k("s_add_u32 s45, s45, s59")
    k(f"s_add_u32 s45, s45, {F_ATT*FLG_SET}")
    pre_poll(k, 45, 32)
    for i in range(11): wp(i)
    k("s_cmp_lg_u32 s18, 0")
    k(f"s_cbranch_scc1 {N}_w20")
    wp(20)
    k(f"{N}_w20:")
    k("s_cmp_eq_u32 s54, 0")
    k("s_cselect_b32 s24, s94, s100"); k("s_cselect_b32 s25, s95, s101")
    assert XIN == 0
    k("s_cselect_b32 s46, 16, 256")
    k("s_cselect_b32 s47, 1152, 16")
    k("s_and_b32 s25, s25, 0xffff"); k(f"s_mov_b32 s26, {XSZ}"); k("s_mov_b32 s27, 0x20000")
    k("v_and_b32 v10, 15, v254")
    k("v_bfe_u32 v12, v254, 4, 1")
    k("v_lshrrev_b32 v13, 5, v254")
    k("v_lshl_add_u32 v12, v12, 1, v13")
    k("v_mul_lo_u32 v17, v10, s47")
    k("v_mul_lo_u32 v16, v12, s46")
    k("v_add_u32 v16, v16, v17")
    k("s_lshl_b32 s30, s16, 2")
    k("s_add_u32 s30, s30, s18")
    k("s_mul_i32 s31, s30, 18432")
    k("s_mul_i32 s32, s17, 9")
    k("s_mul_i32 s33, s32, s46")
    k("s_add_u32 s33, s33, s31")
    k("s_lshl_b32 s3, s46, 2")
    k("s_add_u32 s48, s33, s3")
    k("s_add_u32 s49, s48, s3")
    k("s_cmp_lg_u32 s54, 0")
    k(f"s_cbranch_scc1 {N}_r0")
    resid()
    k(f"{N}_r0:")
    srd(k, 8, 100, OO, XSZ)
    srd(k, 36, 100, X1, XSZ)
    srd(k, 40, 100, ST1, STSZ)
    k("v_add_u32 v2, s31, v1")
    k(f"v_add_u32 v3, {WL}, v1")
    k(f"v_add_u32 v4, {WL + 65536}, v1")
    for i in range(1, 5): k(f"s_mov_b32 s{59+i}, {4096*i}")
    k("v_lshlrev_b32 v18, 4, v10")
    k("v_lshl_add_u32 v9, v12, 8, v18")
    k("s_lshl_b32 s44, s32, 8")
    k("s_add_u32 s44, s44, s31")
    k("s_lshl_b32 s51, s30, 10")
    k("s_lshr_b32 s20, s17, 1")
    k("s_lshl_b32 s20, s20, 8")
    k("s_add_u32 s51, s51, s20")
    k("s_and_b32 s20, s17, 1")
    k("s_lshl_b32 s20, s20, 3")
    k("s_add_u32 s51, s51, s20")
    k("v_mov_b32 v20, 0")
    k("v_mov_b32 v21, 0")
    k("v_mov_b32 v22, 0xffff0000")
    k("v_mov_b32 v23, 0x3f803f80")
    k("s_lshl_b32 s58, s16, 3")
    k("s_add_u32 s58, s58, s17")
    k(f"s_lshl_b32 s58, s58, {FS}")
    k("s_add_u32 s58, s58, s59")
    k(f"s_add_u32 s58, s58, {F_WO*FLG_SET}")
    if not os.environ.get("NOCPF2"):
        k("s_lshr_b32 s20, s2, 3")
        k("s_lshl_b32 s20, s20, 2")
        k("s_add_u32 s20, s20, s18")
        k("s_mov_b64 exec, 7")
        code_prefetch(k, "f1_main", "code_end", 128, 20, 254, 248, 28, ahead=True)
        k("s_mov_b64 exec, -1")
    wait_flags(k, 45, 32, "gk", pre=True)
    k.add(k.stamp(7))
    k("s_cmp_eq_u32 s54, 0")
    k(f"s_cbranch_scc1 {N}_r1")
    resid()
    k(f"{N}_r1:")
    def ol(ks): return (f"buffer_load_dwordx4 {a4(4*ks)}, v2, s[8:11], {'0' if ks < 4 else f's{59 + ks//4}'} offen offset:{(ks % 4)*1024} {SC}", f"o{ks}")
    NO = 11
    k.add([ol(ks) for ks in range(NO)])
    def rd(p, f):
        off = p * 9216 + f * 1024
        return (f"ds_read_b128 {v4(WB + 36*(p % 2) + 4*f)}, v{3 if off < 65536 else 4} offset:{off % 65536}", f"gw{p}_{f}")
    order = [0, 1, 2, 3, 8, 4, 5, 6, 7]
    k.add([rd(0, f) for f in order])
    k("s_cmp_lg_u32 s54, 0")
    k(f"s_cbranch_scc1 {N}_nopk2")
    k.path = "pkflag"
    k(f"s_lshl_b32 s3, s2, {FS}")
    k(f"s_add_u32 s3, s3, {F_PK*FLG_SET}")
    k("s_mov_b64 exec, 1")
    k(f"buffer_store_dword v253, v252, s[96:99], s3 offen {SC}")
    k("s_mov_b64 exec, -1")
    k.path = None
    k(f"{N}_nopk2:")
    k("WAITLG gw0_8")
    k("WAITVM o0")
    if os.environ.get("FW"): k.add(k.stamp(10))
    mf = []; fixed = {}
    def fx(i, x): fixed.setdefault(i, []).extend(x if isinstance(x, list) else [x])
    for p in range(9):
        for ks in range(2):
            K = 2 * p + ks; i0 = len(mf)
            if K: fx(i0 - 1, [f"WAITVM o{K}", f"WAITLG gw{p}_{7 if ks else 8}"])
            if K + NO < 18: fx(i0 + 4, ol(K + NO))
            for b in range(5):
                f = 4 * ks + b if b < 4 else 8; a = ACC + 4 * (b if b < 4 else 4 + ks)
                mf.append(f"v_mfma_f32_16x16x32_bf16 {v4(a)}, {v4(WB + 36*(p % 2) + 4*f)}, {a4(4*K)}, {'0' if p == 0 and (ks == 0 or b == 4) else v4(a)}")
        if p < 8:
            g = [len(mf) - 10 + x for x in (0, 1, 2, 3, 5, 6, 7, 8, 9)]
            for gg, f in zip(g, order): fx(gg, rd(p + 1, f))
    pack(k, mf, fixed, [])
    if os.environ.get("FW"): k.add(k.stamp(11))
    def finish(x, y, res, pk, va, so):
        for q in range(4):
            r = (x, x + 2, y, y + 2)[q]
            k(f"v_pk_add_f32 {v2(r)}, {v2(r)}, {v2(U + 8*res + 2*q)}")
        for q in range(4):
            r = (x, x + 2, y, y + 2)[q]
            k(f"v_cvt_pk_bf16_f32 v{pk+q}, v{r}, v{r+1}")
        k(f"buffer_store_dwordx4 {v4(pk)}, v{va}, s[36:39], s44 offen offset:{so} {SC}")
    U = 140; PKR = 164
    for q in range(12):
        k(f"v_lshlrev_b32 v{U+2*q}, 16, v{RES+q}")
        k(f"v_and_b32 v{U+2*q+1}, v22, v{RES+q}")
    for pr in range(2):
        x, y = ACC + 8 * pr, ACC + 8 * pr + 4
        for i in range(4): k(f"v_permlane16_swap_b32 v{x+i}, v{y+i}")
        finish(x, y, pr, PKR + 4 * pr, 9, 1024 * pr)
    Z = ACC + 16; T = WB
    for i in range(4): k(f"v_mov_b32 v{T+i}, v{Z+i}")
    for i in range(4): k(f"v_permlane32_swap_b32 v{Z+4+i}, v{T+i}")
    for i in (0, 2): k(f"v_pk_add_f32 {v2(Z+i)}, {v2(Z+i)}, {v2(T+i)}")
    for i in range(4): k(f"v_mov_b32 v{Z+4+i}, v{Z+i}")
    for i in range(4): k(f"v_permlane16_swap_b32 v{Z+i}, v{Z+4+i}")
    k("s_mov_b64 exec, 0xffff")
    finish(Z, Z + 4, 2, PKR + 8, 18, 2048)
    for q in range(8, 12):
        k(f"v_dot2c_f32_bf16 v20, v{PKR+q}, v23")
        k(f"v_dot2c_f32_bf16 v21, v{PKR+q}, v{PKR+q}")
    k("s_mov_b64 exec, -1")
    for q in range(8):
        k(f"v_dot2c_f32_bf16 v20, v{PKR+q}, v23")
        k(f"v_dot2c_f32_bf16 v21, v{PKR+q}, v{PKR+q}")
    xreduce(k, [20, 21], [24, 25])
    k("s_mov_b64 exec, 0xffff")
    k(f"buffer_store_dwordx2 v[20:21], v18, s[40:43], s51 offen {SC}")
    k("s_mov_b64 exec, -1")
    if os.environ.get("FW"): k.add(k.stamp(12))

def emit_qkv(k, late_setup):
    N = "q2"; LDS_ST = 39 * 4096; LDS_S = LDS_ST + 1024
    k(f"{N}_main:")
    k("s_and_b32 s6, s2, 7")
    k("s_lshr_b32 s7, s2, 3")
    k("s_mul_i32 s16, s7, 43")
    k("s_lshr_b32 s16, s16, 8")
    k("s_mul_i32 s17, s16, 6")
    k("s_sub_u32 s17, s7, s17")
    k("s_lshr_b32 s7, s6, 1")
    k("s_lshl_b32 s7, s7, 2")
    k("s_add_u32 s16, s16, s7")
    k("s_and_b32 s6, s6, 1")
    k("s_mul_i32 s6, s6, 6")
    k("s_add_u32 s17, s17, s6")
    k("s_cmp_eq_u32 s54, 0")
    k("s_waitcnt lgkmcnt(0)")
    k(f"s_cbranch_scc0 {N}_l1")
    k("s_mov_b64 s[94:95], s[8:9]")
    k("s_mov_b64 s[12:13], s[10:11]")
    k("s_cmp_ge_u32 s2, 192")
    k("s_cbranch_scc1 q0_idle")
    Q0.emit(k, late_setup)
    k("q0_idle:")
    k("s_sub_u32 s6, s2, 192")
    k("s_lshr_b32 s6, s6, 3")
    k("s_lshl_b32 s6, s6, 2")
    k("s_add_u32 s6, s6, s18")
    if not os.environ.get("NORA"):
        k("s_sub_u32 s7, s2, 192")
        k("s_lshl_b32 s7, s7, 2")
        k("s_add_u32 s7, s7, s18")
        k("s_and_b32 s9, s9, 0xffff"); k(f"s_mov_b32 s10, {XSZ}"); k("s_mov_b32 s11, 0x20000")
        k("s_and_b32 s13, s13, 0xffff"); k(f"s_mov_b32 s14, {WQKV_SZ}"); k("s_mov_b32 s15, 0x20000")
        k("v_lshlrev_b32 v2, 15, v254")
        k("s_lshl_b32 s3, s7, 7")
        k(f"s_add_u32 s3, s3, {128*3456}")
        k("buffer_load_dword v245, v2, s[12:15], s3 offen")
        k("v_and_b32 v2, 7, v254")
        k("v_mul_u32_u24 v2, 1152, v2")
        k("v_lshrrev_b32 v3, 3, v254")
        k("v_min_u32 v3, 6, v3")
        k("v_lshl_add_u32 v2, v3, 7, v2")
        k("s_mul_i32 s3, s7, 9216")
        k("buffer_load_dword v239, v2, s[8:11], s3 offen offset:256")
    code_prefetch(k, "code_mega", "code_end", 32, 6, 254, 246, 20)
    late_setup(k)
    make_tag(k)
    assert PK.NI1 >= 2
    PK.idle_jobs(k)
    late_setup.early(k, "pe1")
    k("s_branch at_main")
    k(f"{N}_l1:")
    k("s_mul_i32 s6, s17, 165888")
    k(f"s_add_u32 s6, s6, {WQKV}")
    k("s_add_u32 s12, s4, s6"); k("s_addc_u32 s13, s5, 0"); k("s_and_b32 s13, s13, 0xffff"); k("s_mov_b32 s14, 165888"); k("s_mov_b32 s15, 0x20000")
    signal(k, 58, 0, "dn")
    if not os.environ.get("DBGOUT"): k.add(k.stamp(0))
    k("s_cmp_ge_u32 s2, 192")
    k("s_cbranch_scc1 at_main")
    k(f"s_lshl_b32 s49, s16, {4+FS}")
    k(f"s_add_u32 s49, s49, {F_DN*FLG_SET}")
    pre_poll(k, 49, 16)
    QPRE = int(os.environ.get("QPRE", "27")); GLKS = int(os.environ.get("GLKS", "14"))
    k("s_lshl_b32 s38, s18, 10")
    def wpiece(i): return [f"s_add_u32 m0, s38, {i*4096}", "s_nop 0", ("buffer_load_dwordx4 v1, s[12:15], m0 offen lds", "qwl")]
    for i in range(FF.QE, QPRE): k.add(wpiece(i))
    k("s_lshl_b32 s19, s16, 3")
    k("s_lshl_b32 s6, s18, 1")
    k("s_add_u32 s19, s19, s6")
    k("s_mul_i32 s6, s19, 18432")
    k("v_add_u32 v2, s6, v1")
    k("v_add_u32 v3, 18432, v2")
    for i in range(1, 5): k(f"s_mov_b32 s{32+i}, {4096*i}")
    k(f"v_add_u32 v6, {17*9216}, v1")
    k("v_and_b32 v7, 15, v254")
    k("v_lshrrev_b32 v8, 4, v254")
    k("s_lshl_b32 s6, s19, 11")
    k("v_add_u32 v9, s6, v1")
    k("v_min_u32 v10, 35, v254")
    k("v_lshlrev_b32 v10, 4, v10")
    k("s_mul_i32 s42, s17, 576")
    srd(k, 8, 100, XIN, XSZ)
    srd(k, 20, 100, STIN, ST2SZ)
    srd(k, 28, 4, SQKV, SQKV_SZ)
    srd(k, 24, 100, QKVB, 3 * XSZ)
    k("v_add_u32 v16, 65536, v1")
    k("v_add_u32 v17, 131072, v1")
    k("s_cmp_lt_u32 s17, 4")
    k(f"s_cselect_b32 s46, {f2u(QSCALE)}, 1.0")
    k("s_lshl_b32 s47, s18, 8")
    k(f"s_add_u32 s47, s47, {LDS_ST}")
    k("s_mul_i32 s45, s17, 589824")
    k("s_lshl_b32 s48, s19, 9")
    k("s_lshl_b32 s58, s17, 4")
    k("s_add_u32 s58, s58, s16")
    k(f"s_lshl_b32 s58, s58, {FS}")
    k("s_add_u32 s58, s58, s59")
    R0 = 176; CS = 184; W = (32, 68); ACC = 104; SV = 196; PR = 232; WL = 144
    def wlast(b):
        so = "0" if b < 4 else f"s{32 + b // 4}"
        return (f"buffer_load_dwordx4 {a4(WL+4*b)}, v6, s[12:15], {so} offen offset:{(b % 4) * 1024}", "qwlast")
    k(f"buffer_load_dwordx4 v[{CS}:{CS+3}], v10, s[28:31], s42 offen")
    wait_flags(k, 49, 16, N, pre=True)
    k.add(k.stamp(1))
    def xfrag(ks, j): return 4 * (ks * 2 + j)
    def xl(ks):
        so = "0" if ks < 4 else f"s{32 + ks // 4}"
        return [(f"buffer_load_dwordx4 {a4(xfrag(ks, j))}, v{2+j}, s[8:11], {so} offen offset:{(ks % 4) * 1024} {SC}", f"qx{ks}") for j in range(2)]
    D = 5
    for ks in range(D): k.add(xl(ks))
    for j in range(2):
        for h in range(2):
            k(f"buffer_load_dwordx4 {v4(R0 + 4*j + 240*0 + (0 if h == 0 else 64))}, v9, s[20:23], 0 offen offset:{j*2048 + h*1024} {SC}", "qst")
    k("s_cmp_ge_u32 s17, 8")
    k(f"s_cbranch_scc1 {N}_v")
    for path in ("qk", "v"):
        k.path = path
        if path == "v": k(f"{N}_v:")
        kf = Kern()
        kf(f"v_add_u32 v10, {LDS_S}, v10")
        kf(f"ds_write_b128 v10, v[{CS}:{CS+3}]")
        kf("WAITVM qst")
        for r in range(R0, R0 + 8): kf(f"v_add_f32 v{r}, v{r}, v{r+64}")
        finish_stats(kf, 2, R0)
        kf(f"v_rsq_f32 v13, v{R0+1}")
        kf(f"v_rsq_f32 v15, v{R0+5}")
        kf(f"v_sub_f32 v12, 0, v{R0}")
        kf(f"v_sub_f32 v14, 0, v{R0+4}")
        if path == "qk":
            kf("v_mul_f32 v13, s46, v13")
            kf("v_mul_f32 v15, s46, v15")
            kf(f"v_lshlrev_b32 v10, 4, v8")
            kf("v_and_b32 v18, 1, v8")
            kf("v_lshlrev_b32 v18, 9, v18")
            kf("v_lshrrev_b32 v19, 1, v8")
            kf("v_lshl_add_u32 v18, v19, 8, v18")
            kf("v_lshl_add_u32 v18, v7, 4, v18")
            kf("v_add_u32 v18, s48, v18")
        else:
            kf("v_lshl_add_u32 v11, v7, 3, s47")
            kf("ds_write_b64 v11, v[12:13]")
            kf("ds_write_b64 v11, v[14:15] offset:128")
            kf("v_lshl_add_u32 v11, v8, 5, s47")
            for j in range(2):
                for h in range(2):
                    kf(f"ds_read_b128 v[{R0+8*j+4*h}:{R0+8*j+4*h+3}], v11 offset:{j*128+h*16}", "qvs")
            kf(f"v_lshlrev_b32 v10, 2, v7")
            kf("v_add_u32 v18, s48, v1")
        kf(f"v_add_u32 v10, {LDS_S}, v10")
        def rd(ks, b):
            r = W[ks % 2] + 4 * b
            off = ks * 9216 + b * 1024
            va = 1 if off < 65536 else (16 if off < 131072 else 17)
            return (f"ds_read_b128 v[{r}:{r+3}], v{va} offset:{off % 65536}", f"qw{ks}_{b}")
        def mfma(ks, b, j):
            w = v4(W[ks % 2] + 4 * b) if ks < 17 else a4(WL + 4 * b)
            a = ACC + 4 * (j * 9 + b); x = xfrag(ks, j)
            c = "0" if ks == 0 else v4(a)
            if path == "qk": return f"v_mfma_f32_16x16x32_bf16 {v4(a)}, {w}, {a4(x)}, {c}"
            return f"v_mfma_f32_16x16x32_bf16 {v4(a)}, {a4(x)}, {w}, {c}"
        def epi(b):
            L = []; P = PR + 4 * (b % 2)
            for j in range(2):
                a = ACC + 4 * (j * 9 + b)
                if path == "qk":
                    for i in range(4): L.append(f"v_fmac_f32 v{a+i}, v{12+2*j}, v{SV+4*b+i}")
                    for i in range(4): L.append(f"v_mul_f32 v{a+i}, v{a+i}, v{13+2*j}")
                else:
                    for i in range(4): L.append(f"v_fmac_f32 v{a+i}, v{R0+8*j+2*i}, v{SV+b}")
                    for i in range(4): L.append(f"v_mul_f32 v{a+i}, v{a+i}, v{R0+8*j+2*i+1}")
                L.append(f"v_cvt_pk_bf16_f32 v{P+2*j}, v{a}, v{a+1}")
                L.append(f"v_cvt_pk_bf16_f32 v{P+2*j+1}, v{a+2}, v{a+3}")
            if path == "qk":
                L.append(f"v_permlane16_swap_b32 v{P}, v{P+2}")
                L.append(f"v_permlane16_swap_b32 v{P+1}, v{P+3}")
            L.append(f"buffer_store_dwordx4 v[{P}:{P+3}], v18, s[24:27], s45 offen {SC}")
            if b < 8: L.append("s_add_u32 s45, s45, 65536")
            return L
        for b in range(9): k.add([rd(0, b)])
        k("WAITLG qw0_2")
        k("WAITVM qx0")
        if os.environ.get("FW"): k.add(k.stamp(4))
        mf = []; fixed = {}
        def fx(i, x): fixed.setdefault(i, []).extend(x if isinstance(x, list) else [x])
        flow = [(x, 4 * 18) for x in kf.ins]
        for b in range(9):
            ins = (f"ds_read_b128 v[{SV+4*b}:{SV+4*b+3}], v10 offset:{b*64}", "sv") if path == "qk" else (f"ds_read_b32 v{SV+b}, v10 offset:{b*64}", "sv")
            flow.append((ins, 9 * 18 + 8 * b))
        for ks in range(16):
            i0 = len(mf)
            if ks > 0: fx(i0 - 2, f"WAITVM qx{ks}")
            ext = [[x] for x in xl(ks + D)] if ks + D < 18 else []
            rest = list(range(QPRE, 39)); per = -(-len(rest) // 5)
            if ks < 5: ext += [wpiece(i) for i in rest[ks * per:(ks + 1) * per]]
            if 7 <= ks < 10: ext += [[wlast(b)] for b in range(3 * (ks - 7), 3 * (ks - 6))]
            for n, x in enumerate(ext): fixed.setdefault(i0 + 1 + 2 * (n * 8 // len(ext)), []).append(Bundle(x))
            if ks == QPRE * 4 // 9 - 1:
                fx(i0 - 4, "WAITVM qwl"); fx(i0 - 3, "s_barrier")
            seq = [(0, b) for b in range(9)] + [(1, b) for b in range(8, -1, -1)] if FF.ORD else [(j, b) for b in range(9) for j in range(2)]
            for n, (j, b) in enumerate(seq):
                if j == 0 and b % 3 == 0 and i0 + n > 0: fx(i0 + n - 1, f"WAITLG qw{ks}_{b+2}")
                mf.append(mfma(ks, b, j))
            for b in range(9): fx(i0 + 2 * b, rd(ks + 1, b))
        fx(len(mf) - 2, "WAITVM qx17, qwlast")
        for b in range(9):
            i = len(mf)
            if b % 3 == 0: fx(i - 1, f"WAITLG qw16_{b+2}")
            mf += [mfma(16, b, 0), mfma(16, b, 1), mfma(17, b, 0), mfma(17, b, 1)]
            flow += [(x, i + 5) for x in epi(b)]
        left, over = pack(k, mf, fixed, flow)
        if os.environ.get("FW"): k.add(k.stamp(5))
        k.add(left)
        if os.environ.get("FW"): k.add(k.stamp(6))
        if path == "qk": k("s_branch at_main")
    k.path = None

def gen():
    k = Kern(); k.name = "mega"
    entry(k, KNAME)
    k("s_load_dwordx2 s[4:5], s[0:1], 72")
    k("s_load_dwordx4 s[8:11], s[0:1], 0")
    k("s_load_dwordx2 s[56:57], s[0:1], 56")
    k(f"s_cmp_ge_u32 s2, {GRID}")
    k("s_cbranch_scc1 mega_exit")
    k.add(k.stamp(0))
    k("v_lshrrev_b32 v8, 6, v0")
    k("v_and_b32 v254, 63, v0")
    k("v_readfirstlane_b32 s18, v8")
    k("v_lshlrev_b32 v1, 4, v254")
    k("s_mov_b32 s54, 0")
    def late_setup(k):
        k(f"s_add_u32 s6, s4, {EPOCH}")
        k("s_addc_u32 s7, s5, 0")
        k("s_load_dword s93, s[6:7], 0")
        k("s_mov_b64 s[100:101], s[4:5]")
        srd(k, 96, 4, FLG, EPOCH + 4 - FLG)
        k(f"v_mul_u32_u24 v252, {FLG_SZ}, v254" if NREP > 1 else "v_mov_b32 v252, 0")
        if NREP > 1:
            k(f"s_and_b32 s6, s2, {NREP-1}")
            k(f"s_mul_i32 s6, s6, {FLG_SZ}")
            k("s_add_u32 s84, s96, s6"); k("s_addc_u32 s85, s97, 0"); k(f"s_mov_b32 s86, {FLG_SZ}"); k("s_mov_b32 s87, 0x20000")
        k("s_mov_b32 s59, 0")
    EARLY = os.environ.get("EARLY")
    def job_id(k):
        k(f"s_add_u32 s50, s2, {PK.J_ATT}")
        if PK.SWAP:
            k(f"s_add_u32 s3, s2, {PK.J_GU}")
            k(f"s_cmp_lt_u32 s2, {PK.J_WD - PK.J_GU}")
            k("s_cselect_b32 s50, s3, s50")
    def early_job(k, L):
        if not EARLY: return
        job_id(k)
        if L != "pe0":
            k(f"s_cmp_ge_u32 s50, {PK.J_END}")
            k(f"s_cbranch_scc1 {L}_no")
        PK.setup(k, L)
        if L == "pe0" and os.environ.get("MID"):
            k("s_mov_b64 s[84:85], s[60:61]"); k("s_mov_b32 s86, s62"); k("s_mov_b32 s87, 0x20000")
            k("s_mov_b32 s88, s47"); k("s_mov_b32 s89, s44"); k("s_mov_b32 s90, s46"); k("v_mov_b32 v250, v247"); k("v_mov_b32 v251, v248")
        else:
            PK.loads(k, L, 0); PK.loads(k, L, 1)
        k(f"{L}_no:")
    late_setup.early = early_job
    emit_qkv(k, late_setup)
    def after_stage(k, part):
        if part == "tag": return make_tag(k)
        if part == "setup":
            job_id(k)
            if os.environ.get("XJ"):
                k(f"s_cmp_ge_u32 s50, {os.environ['XJ']}")
                k(f"s_cselect_b32 s50, {PK.J_END}, s50")
            k("s_cmp_lg_u32 s54, 0")
            k(f"s_cselect_b32 s50, {PK.J_END}, s50")
            k("s_waitcnt lgkmcnt(0)")
            PK.setup(k, "pa")
            return
        if part == 0:
            k("v_min_u32 v255, 8, v254")
            k(f"v_lshlrev_b32 v255, {FS}, v255")
            k(f"s_mov_b32 s35, {F_WOPK*FLG_SET}")
            k(f"buffer_load_dword v246, v255, s[96:99], s35 offen {SC}")
            if EARLY: return k("s_waitcnt vmcnt(6)")
            k(f"s_cmp_ge_u32 s50, {PK.J_END}")
            k("s_cbranch_scc1 at_nojob")
            k.path = "job"
            PK.loads(k, "pa", 0)
            k("s_waitcnt vmcnt(15)")
            k("s_branch at_job")
            k.path = None
            k("at_nojob:")
            k("s_waitcnt vmcnt(6)")
            k("at_job:")
            return
        if isinstance(part, tuple):
            L = f"at_h{part[1]}"
            k(f"s_mov_b32 s3, {SPIN}")
            if not EARLY:
                k("s_waitcnt vmcnt(9)")
                k(f"s_cmp_lt_u32 s50, {PK.J_END}")
                k(f"s_cbranch_scc1 {L}_chk")
            k(f"{L}_wl:")
            k("s_waitcnt vmcnt(0)")
            k(f"{L}_chk:")
            k("v_cmp_ne_u32 vcc, v253, v246")
            k("s_nop 1")
            k("s_cmp_eq_u64 vcc, 0")
            k(f"s_cbranch_scc1 {L}_wd")
            k(f"buffer_load_dword v246, v255, s[96:99], s35 offen {SC}")
            k("s_sub_u32 s3, s3, 1")
            k("s_cmp_lg_u32 s3, 0")
            k(f"s_cbranch_scc1 {L}_wl")
            k("s_waitcnt vmcnt(0)")
            k(f"{L}_wd:")
            k(f"s_cmp_ge_u32 s50, {PK.J_END}")
            k(f"s_cbranch_scc1 {L}_nj")
            if not EARLY: PK.loads(k, L, 1)
            elif EARLY == "v":
                k(f"s_mov_b32 s50, {PK.J_END}")
                k("s_waitcnt lgkmcnt(0)")
                PK.finish(k, L)
            k(f"{L}_nj:")
            return
        k(f"s_cmp_ge_u32 s50, {PK.J_END}")
        k("s_cbranch_scc1 at_nojob4")
        k(f"s_mov_b32 s50, {PK.J_END}")
        FP = os.environ.get("FP")
        if FP: k.add(k.stamp(9))
        k("s_waitcnt vmcnt(0) lgkmcnt(0)")
        if FP: k.add(k.stamp(10))
        PK.finish(k, "pa", (lambda k: k.add(k.stamp(11))) if FP else None)
        if FP: k.add(k.stamp(12))
        k("at_nojob4:")
    if os.environ.get("STOP") == "q0":
        k("at_main:"); k("s_branch mega_end"); AT.PFX = "xx"
    redo = AT.emit(k, signal, wait_flags, SC, after_stage)
    emit_gk(k)
    if os.environ.get("STOP") == "wo": k("s_branch mega_fin")
    slow = FF.emit(k, signal, wait_flags, pre_poll)
    k("s_cmp_eq_u32 s54, 0")
    k("s_cbranch_scc0 mega_fin")
    if os.environ.get("STOP") == "l1": k("s_branch mega_fin")
    k("s_mov_b32 s54, 1")
    if LSTRIDE:
        k(f"s_add_u32 s100, s100, {LSTRIDE}")
        k("s_addc_u32 s101, s101, 0")
    k(f"s_mov_b32 s59, {F_LAYER*FLG_SET}")
    k("s_branch q2_main")
    k.add(slow)
    redo(k)
    k("mega_fin:")
    k("s_or_b32 s3, s2, s18")
    k("s_cmp_lg_u32 s3, 0")
    k("s_cbranch_scc1 mega_end")
    k("s_add_u32 s3, s93, 1")
    k("v_mov_b32 v251, s3")
    k(f"s_mov_b32 s3, {EPOCH - FLG}")
    k("s_mov_b64 exec, 1")
    k(f"buffer_store_dword v251, v252, s[96:99], s3 offen {SC}")
    k("mega_end:")
    k.stamp_out()
    k("mega_exit:")
    k("s_endpgm")
    k.script = True
    return k, [(KNAME, GRID, 256, LDS)], descriptor(KNAME, 256, 256, 102), [KNAME]
```

```python
from asmgen import *
from layout import *
from k_prep import srd, xreduce, code_prefetch
from k_qkv import load_stats, finish_stats, f2u
import k_ffn1 as F1
import math, os
SC = "sc1"; SPIN = 150000
def v4(r): return f"v[{r}:{r+3}]"
def v2(r): return f"v[{r}:{r+1}]"
def a4(r): return f"a[{r}:{r+3}]"
GRP = 36864
def dacc(j, b):
    t = j * 9 + b
    return 16 + 4 * t if t < 14 else 104 + 4 * (t - 14)
def dw(buf, b):
    return 40 + 4 * (buf * 9 + b)
def lds(off): return (1, 6, 7)[off // 65536], off % 65536
def slot(g): return ((g + 1) % 4) * GRP

def emit(k, signal, wait_flags, pre_poll):
    CH = F1.CH; LDS_S = F1.LDS_S; XV, WB, ACC, NMEAN, CC, QQ, SG, TT, PP = F1.XV, F1.WB, F1.ACC, F1.NMEAN, F1.CC, F1.QQ, F1.SG, F1.TT, F1.PP
    xop, accr, rd = F1.xop, F1.accr, F1.rd
    F1.STORE_MOD = SC
    k("f1_main:")
    k("s_and_b32 s6, s2, 7")
    k("s_lshr_b32 s7, s2, 3")
    k("s_and_b32 s16, s6, 1")
    k("s_lshl_b32 s16, s16, 2")
    k("s_lshr_b32 s17, s7, 3")
    k("s_add_u32 s16, s16, s17")
    k("s_lshr_b32 s17, s6, 1")
    k("s_lshl_b32 s17, s17, 3")
    k("s_and_b32 s7, s7, 7")
    k("s_add_u32 s17, s17, s7")
    k("s_mul_i32 s39, s18, 9216")
    k(f"s_mul_i32 s6, s17, {9*CH}")
    k(f"s_add_u32 s6, s6, {WGU}")
    k("s_add_u32 s12, s4, s6"); k("s_addc_u32 s13, s5, 0"); k("s_and_b32 s13, s13, 0xffff"); k(f"s_mov_b32 s14, {9*CH}")
    if True:
        k("s_or_b32 s3, s54, s18")
        k("s_cmp_lg_u32 s3, 0")
        k("s_cbranch_scc1 f1_pkok")
        k(f"v_lshlrev_b32 v255, {FS}, v254")
        k(f"s_mov_b32 s3, {SPIN}")
        for j in range(4): k(f"s_mov_b32 s{40+j}, {F_PK*FLG_SET + (j*64 << FS)}")
        k("f1_pk_wl:")
        for j in range(4): k(f"buffer_load_dword v{244+j}, v255, s[96:99], s{40+j} offen {SC}")
        k("s_waitcnt vmcnt(0)")
        for j in range(4): k(f"v_xor_b32 v{244+j}, v{244+j}, v253")
        k("v_or3_b32 v244, v244, v245, v246")
        k("v_or_b32 v244, v244, v247")
        k("v_cmp_ne_u32 vcc, 0, v244")
        k("s_nop 1")
        k("s_cmp_eq_u64 vcc, 0")
        k("s_cbranch_scc1 f1_pkok")
        k("s_sub_u32 s3, s3, 1")
        k("s_cmp_lg_u32 s3, 0")
        k("s_cbranch_scc1 f1_pk_wl")
        k("f1_pkok:")
    signal(k, 58, 0, "wo")
    k.add(k.stamp(8))
    k(f"s_lshl_b32 s46, s16, {5+FS}")
    k("s_add_u32 s46, s46, s59")
    k(f"s_add_u32 s46, s46, {F_WO*FLG_SET}")
    pre_poll(k, 46, 32)
    PRE = int(os.environ.get("F1PRE", "5"))
    k("s_lshl_b32 s38, s18, 10")
    def wgrp(g): return [x if isinstance(x, str) else (x[0], "wl") for c in range(3) for x in F1.dma(c, g)]
    for g in range(PRE): k.add(wgrp(g))
    k("s_lshl_b32 s19, s16, 4")
    k("s_lshl_b32 s6, s18, 2")
    k("s_add_u32 s19, s19, s6")
    for i in range(1, 5): k(f"s_mov_b32 s{32+i}, {4096*i}")
    k("s_mul_i32 s6, s19, 18432")
    k("v_add_u32 v2, s6, v1")
    for tb in range(1, 4): k(f"v_add_u32 v{2+tb}, 18432, v{1+tb}")
    k("v_and_b32 v13, 15, v254")
    k("v_lshrrev_b32 v15, 4, v254")
    k("s_lshl_b32 s6, s19, 10")
    k("v_add_u32 v9, s6, v1")
    k("v_min_u32 v10, 35, v254")
    k("v_lshlrev_b32 v10, 3, v10")
    k("s_mul_i32 s6, s18, 288")
    k("v_add_u32 v10, s6, v10")
    k("s_mul_i32 s42, s17, 1152")
    k("s_add_u32 s43, s42, 36864")
    k("s_add_u32 s44, s42, 73728")
    srd(k, 8, 100, X1, XSZ)
    srd(k, 20, 100, ST1, STSZ)
    srd(k, 28, 4, SGU, SGU_SZ)
    srd(k, 24, 100, HH, H_SZ)
    k("v_add_u32 v6, 65536, v1")
    k("v_add_u32 v7, 131072, v1")
    k(f"v_add_u32 v8, {4*CH}, v1")
    k("v_and_b32 v11, 1, v15")
    k("v_mul_u32_u24 v11, 147456, v11")
    k("v_lshrrev_b32 v12, 1, v15")
    k("v_lshl_add_u32 v11, v12, 8, v11")
    k("v_lshl_add_u32 v11, v13, 4, v11")
    k("s_mul_i32 s6, s19, 147456")
    k("v_add_u32 v11, s6, v11")
    k(f"v_add_u32 v12, {2*147456}, v11")
    k("s_lshr_b32 s47, s17, 3")
    k(f"s_mul_i32 s45, s47, {GRP}")
    k("s_and_b32 s6, s17, 7")
    k("s_lshl_b32 s6, s6, 9")
    k("s_add_u32 s45, s45, s6")
    k(f"s_lshl_b32 s46, s16, {5+FS}")
    k("s_add_u32 s46, s46, s59")
    k(f"s_lshl_b32 s58, s17, {FS}")
    k("s_add_u32 s58, s58, s46")
    k(f"s_add_u32 s55, s58, {F_FA*FLG_SET}")
    k(f"s_add_u32 s40, s58, {F_FM*FLG_SET}")
    k(f"s_add_u32 s58, s58, {F_F1*FLG_SET}")
    k(f"s_add_u32 s46, s46, {F_WO*FLG_SET}")
    k("s_lshr_b32 s7, s2, 3")
    k("s_and_b32 s48, s2, 1")
    k("s_lshl_b32 s48, s48, 3")
    k("s_lshr_b32 s6, s7, 2")
    k("s_add_u32 s48, s48, s6")
    k("s_and_b32 s49, s7, 3")
    k("s_lshl_b32 s6, s49, 2")
    k("s_add_u32 s6, s6, s47")
    k(f"s_mul_i32 s6, s6, {9*GRP}")
    k(f"s_add_u32 s6, s6, {WD}")
    k("s_add_u32 s60, s4, s6"); k("s_addc_u32 s61, s5, 0"); k("s_and_b32 s61, s61, 0xffff"); k(f"s_mov_b32 s62, {9*GRP}"); k("s_mov_b32 s63, 0x20000")
    k("s_lshl_b32 s6, s48, 3")
    k("s_lshl_b32 s7, s18, 1")
    k("s_add_u32 s6, s6, s7")
    k("s_mul_i32 s6, s6, 147456")
    k(f"s_mul_i32 s7, s47, {GRP}")
    k("s_add_u32 s6, s6, s7")
    k("v_add_u32 v244, s6, v1")
    k("v_add_u32 v245, 147456, v244")
    k("s_lshr_b32 s50, s48, 1")
    k("s_lshl_b32 s50, s50, 5")
    k("s_lshl_b32 s6, s47, 3")
    k("s_add_u32 s50, s50, s6")
    k(f"s_lshl_b32 s50, s50, {FS}")
    k("s_add_u32 s50, s50, s59")
    k(f"s_add_u32 s51, s50, {F_F1*FLG_SET}")
    k(f"s_add_u32 s41, s50, {F_FM*FLG_SET}")
    k(f"s_add_u32 s50, s50, {F_FA*FLG_SET}")
    k("v_min_u32 v246, 7, v254")
    k(f"v_lshlrev_b32 v246, {FS}, v246")
    k("s_mov_b32 s52, s39")
    k("s_mov_b32 s53, 0")
    wait_flags(k, 46, 32, "f1", pre=True)
    k.add(k.stamp(9))
    def xl(ks):
        so = "0" if ks < 4 else f"s{32 + ks // 4}"
        return [(f"buffer_load_dwordx4 {xop(ks, tb)}, v{2+tb}, s[8:11], {so} offen offset:{(ks % 4) * 1024} {SC}", f"x{ks}") for tb in range(4)]
    D = int(os.environ.get("XDIST", "3"))
    for ks in range(D): k.add(xl(ks))
    R0 = TT; CS = ACC + 120
    ks_ = Kern(); load_stats(ks_, 20, 9, 4, R0, "st", SC)
    for i, sr in enumerate((42, 43, 44)):
        ks_(f"buffer_load_dwordx2 v[{CS+2*i}:{CS+2*i+1}], v10, s[28:31], s{sr} offen", "st")
    st_loads = list(ks_.ins)
    kf = Kern()
    kf("WAITVM st")
    for q in range(2):
        kf(f"v_add_f32 v{CS+q}, v{CS+q}, v{CS+2+q}")
        kf(f"v_add_f32 v{CS+q}, v{CS+q}, v{CS+4+q}")
    kf(f"v_add_u32 v10, {LDS_S}, v10")
    kf(f"ds_write_b64 v10, v[{CS}:{CS+1}]", "sw")
    finish_stats(kf, 4, R0)
    for tb in range(4):
        kf(f"v_rsq_f32 v{CC+tb}, v{R0+4*tb+1}")
        kf(f"v_sub_f32 v{NMEAN+tb}, 0, v{R0+4*tb}")
        kf(f"v_mov_b32 v{QQ+tb}, v{R0+4*tb+1}")
        kf(f"v_mul_f32 v{CC+tb}, {f2u(-math.log2(math.e))}, v{CC+tb}")
    kf("v_lshlrev_b32 v10, 4, v15")
    kf(f"v_add_u32 v10, {LDS_S}, v10")
    kf(f"v_add_u32 v9, {8*CH}, v1")
    st_fin = list(kf.ins)
    mf = []; fixed = {}; flow = []
    def fx(i, x): fixed.setdefault(i, []).extend(x if isinstance(x, list) else [x])
    def spread(items, g0, g1):
        vm = [x for x in items if not (isinstance(x, str) and x.startswith("s_add_u32 m0"))]
        step = (g1 - g0) / len(vm); n = 0; pend = None; last = -1
        for x in items:
            if isinstance(x, str) and x.startswith("s_add_u32 m0"): pend = x; continue
            g = max(int(g0 + (n + 0.5) * step), last + 1); n += 1
            while g % 4 in (0, 1) or any(unit_cost(as_ins(y)) for y in fixed.get(g, [])) or (pend and any(as_ins(y).kind == "dma" for y in fixed.get(g - 1, []))): g += 1
            last = g
            if pend: fx(g - 1, pend); pend = None
            fx(g, x)
    PB = (ACC + 96, WB)
    for c in range(3):
        for gu in range(2): k.add([rd(PB[0] + 8 * c + 4 * gu, c, 0, gu)])
    k("WAITLG w0_0")
    k("WAITVM x0")
    d3 = F1.dma_chunk(3); d3s = [d3[0:4], d3[4:8], d3[8:12]]
    for ks in range(18):
        i0 = len(mf)
        if ks > 0: fx(i0 - 2, f"WAITVM x{ks}")
        ext = xl(ks + D) if ks + D < 18 else []
        STK = int(os.environ.get("STK", "5")); D3K = int(os.environ.get("D3K", "10"))
        if STK <= ks < STK + 4: ext = ext + st_loads[2 * (ks - STK):2 * (ks - STK) + 2]
        if ks == STK + 6: flow += [(x, i0) for x in st_fin]
        if D3K <= ks < D3K + 3: ext = ext + d3s[ks - D3K]
        if PRE + ks < 9: ext = wgrp(PRE + ks) + ext
        if ext: spread(ext, i0, i0 + 20)
        if ks == 2 * PRE - 1 and PRE < 9:
            fx(i0 - 5, "WAITVM wl"); fx(i0 - 4, "s_barrier")
        if ks == 17:
            fx(i0 - 5, "WAITVM d3"); fx(i0 - 4, "WAITLG sw"); fx(i0 - 3, "s_barrier")
        if ORD and ks < 17:
            fr = [(c, gu) for c in range(3) for gu in range(2)]
            for tb in range(4):
                for n, (c, gu) in enumerate(fr if tb % 2 == 0 else fr[::-1]):
                    a = accr(c, gu, tb); w = PB[ks % 2] + 8 * c + 4 * gu
                    i = len(mf)
                    if tb == 0 and n == 0 and i > 0: fx(i - 1, f"WAITLG w2_{ks}")
                    if tb == 0 and n == 2 and i < 8: fx(i - 1, "WAITLG w2_0")
                    mf.append(f"v_mfma_f32_16x16x32_bf16 {v4(a)}, {v4(w)}, {xop(ks, tb)}, {'0' if ks == 0 else v4(a)}")
            for n, (c, gu) in enumerate(fr): fx(i0 + (0, 1, 4, 5, 8, 9)[n], rd(PB[(ks + 1) % 2] + 8 * c + 4 * gu, c, ks + 1, gu))
            continue
        for c in range(3):
            for gu in range(2):
                for tb in range(4):
                    a = accr(c, gu, tb); w = PB[ks % 2] + 8 * c + 4 * gu
                    i = len(mf)
                    if gu == 0 and tb == 0 and i > 0: fx(i - 1, f"WAITLG w{c}_{ks}")
                    mf.append(f"v_mfma_f32_16x16x32_bf16 {v4(a)}, {v4(w)}, {xop(ks, tb)}, {'0' if ks == 0 else v4(a)}")
                    if tb == 0 and ks < 17: fx(i, rd(PB[(ks + 1) % 2] + 8 * c + 4 * gu, c, ks + 1, gu))
                    if ks == 17 and c >= 1 and tb == 0: fx(i, rd(WB + 8 * (c - 1) + 4 * gu, 3, c - 1, gu))
                    if ks == 17 and c == 0 and tb == 1:
                        flow.append(((f"ds_read_b128 {v4(SG + 4*gu)}, v10 offset:{64*gu}", "s0"), i))
    flow.append(("WAITLG s0", len(mf) + 1))
    for e in range(3): flow += [(x, len(mf) + 1) for x in F1.epilogue(e)]
    for c in range(3, 9):
        i0 = len(mf)
        if c == 3: fx(i0 - 2, "s_barrier")
        for ks in range(18):
            for n_ in range(8):
                if True:
                    gu, tb = ((n_ & 1) ^ ((n_ >> 1) & 1), n_ >> 1) if ORD else (n_ >> 2, n_ & 3)
                    a = accr(c, gu, tb); w = WB + 8 * (ks % 3) + 4 * gu
                    i = len(mf)
                    if n_ == 0:
                        fx(i - 1, f"WAITLG w{c}_{ks}")
                        if ks == 16 and c < 8:
                            fx(i - 3, f"WAITVM d{c+1}"); fx(i - 2, "s_barrier")
                    mf.append(f"v_mfma_f32_16x16x32_bf16 {v4(a)}, {v4(w)}, {xop(ks, tb)}, {'0' if ks == 0 else v4(a)}")
                    if n_ % 4 == 0:
                        c2, k2 = (c, ks + 2) if ks < 16 else (c + 1, ks - 16)
                        if c2 < 9: fx(i, rd(WB + 8 * (k2 % 3) + 4 * (n_ >> 2), c2, k2, n_ >> 2))
        for dc, k0, k1 in {3: [(4, 0, 64), (5, 72, 140)], 4: [(6, 0, 120)], 5: [(7, 0, 120)], 6: [(8, 0, 120)]}.get(c, []):
            spread(F1.dma_chunk(dc), i0 + k0, i0 + k1)
        flow += [(x, len(mf) + 2) for x in F1.epilogue(c)]
    def ddma(g):
        L = []
        for j in range(9):
            pre = []
            if j % 4 == 0:
                pre = [f"s_add_u32 m0, s39, {slot(g) + j*1024}", "s_nop 0" if j == 0 and g == 0 else f"s_add_u32 s52, s52, {4096 if j else GRP - 8192}"]
            L.append(pre + [(f"buffer_load_dwordx4 v1, s[60:63], s52 offen offset:{(j % 4)*1024} lds", f"e{g}")])
        return L
    KB = 36 - 4 * NBG
    HSL = [0, 8, 16, 24, 32] + list(range(112, 256, 8))
    def hreg(K): return HSL[K % 23]
    def hl(K):
        L = [[(f"buffer_load_dwordx4 {a4(hreg(K) + 4*j)}, v{244+j}, s[24:27], s53 offen offset:{(K % 4)*1024} {SC}", f"h{K}")] for j in range(2)]
        if K % 4 == 3: L[1].append("s_add_u32 s53, s53, 4096")
        return L
    def drd(K, b, r=None):
        va, off = lds(slot(K // 4) + (K % 4) * 9216 + b * 1024)
        return (f"ds_read_b128 {a4(dw(K % 2, b) if r is None else r)}, v{va} offset:{off}", f"u{K}_{b}")
    def bun(g, x): fixed.setdefault(g, []).append(Bundle(x))
    def freegap(g):
        while any(isinstance(y, Bundle) or unit_cost(as_ins(y)) for y in fixed.get(g, [])): g += 1
        return g
    def raise_flag(so): return ["s_mov_b64 exec, 1", f"buffer_store_dword v253, v252, s[96:99], s{so} offen {SC}", "s_mov_b64 exec, -1"]
    slow = []
    def poll(so, name, g_load, g_check):
        bun(freegap(g_load), [(f"buffer_load_dword v247, v246, s[96:99], s{so} offen {SC}", name)])
        bun(freegap(g_check), [f"WAITVM {name}", "v_cmp_ne_u32 vcc, v253, v247", "s_nop 1", "s_cmp_lg_u64 vcc, 0", f"s_cbranch_scc1 {name}_slow", f"{name}_ok:"])
        slow.extend([f"{name}_slow:", f"s_mov_b32 s3, {SPIN}", f"{name}_wl:", f"buffer_load_dword v247, v246, s[96:99], s{so} offen {SC}", "s_waitcnt vmcnt(0)",
                     "v_cmp_ne_u32 vcc, v253, v247", "s_nop 1", "s_cmp_eq_u64 vcc, 0", f"s_cbranch_scc1 {name}_ok", "s_sub_u32 s3, s3, 1", "s_cmp_lg_u32 s3, 0",
                     f"s_cbranch_scc1 {name}_wl", f"s_branch {name}_ok"])
    if not os.environ.get("NOCPF3"):
        t = Kern()
        t("s_lshr_b32 s6, s2, 3"); t("s_lshl_b32 s6, s6, 2"); t("s_add_u32 s6, s6, s18"); t("s_mov_b64 exec, 7")
        code_prefetch(t, "q2_l1", "at_main", 128, 6, 254, 248, 20)
        code_prefetch(t, "fa_ok", "code_end", 128, 6, 254, 249, 20, ahead=True)
        t("s_mov_b64 exec, -1")
        t.fix_hazards()
        bun(freegap(len(mf) - 144 * 3 + 130), t.ins)
    EA = int(os.environ.get("EA", "4"))
    c8 = len(mf) - 144; c7 = c8 - 144
    fx(c7 + 128 - 4, f"WAITVM hs{EA}")
    bun(freegap(c7 + 130), raise_flag(55))
    for c0, gg in ((c7, 0), (c8, 1)):
        g = c0 + 2
        for x in ddma(gg):
            g = freegap(g); bun(g, x); g += 9
    poll(50, "fa", c8 + 40, c8 + 86)
    H0 = int(os.environ.get("H0", "8"))
    g = c8 + 90
    for K in range(H0):
        for x in hl(K):
            g = freegap(g); bun(g, x); g += (2 if H0 > 4 else 4)
    assert g < c8 + 146
    fx(c8 + 128 - 3, "WAITVM e0"); fx(c8 + 128 - 2, "s_barrier")
    for b in range(9): fx(freegap(c8 + 129 + b), drd(0, b))
    fx(c8 + 142, "WAITVM h0")
    if k.stamp(10) and not os.environ.get('FW'): bun(freegap(c8 + 140), k.stamp(10))
    nh = H0; NT = 4 * NBG; RING = 18; HA = max(17, KB - 11)
    def treg(b, t): return dw(0, 0) + 4 * ((b * NT + t) % RING)
    tail = [(b, t) for b in range(9) for t in range(NT)]
    for K in range(KB):
        i0 = len(mf); gi, ks = divmod(K, 4)
        ext = []
        if EM:
            cap = 4 * EA + 4 if K <= KM else (4 * EM + 4 if K <= 4 * EM else 36)
            want = min(K + H0 + 1 if K <= 4 * EM else K + 4 + (K - 4 * EM + 1) // 3, cap) if K < KB - 1 else 36
        else:
            want = (min(K + H0 + 1, 4 * EA + 4) if K <= 4 * EA else K + 4) if K < HA else (3 + HA + -(-(33 - HA) * (K + 1 - HA) // (KB - 1 - HA)) if K < KB - 1 else 36)
        while nh < want: ext += hl(nh); nh += 1
        if NBG == 2 and 23 <= K < 28:
            if K < 26: ext = ext + ddma(8)[3 * (K - 23):3 * (K - 22)]
        elif ks < 3 and gi + 2 < 9: ext = ext + ddma(gi + 2)[3 * ks:3 * ks + 3]
        for n, x in enumerate(ext): bun(i0 + 1 + 2 * (n * 8 // len(ext)), x)
        if K > 0: fx(i0 - 2, f"WAITVM h{K}")
        if ks == 3:
            if gi == BG: fx(i0 - 8, "WAITVM hs8")
            if EM and gi == MG: fx(i0 - 8, f"WAITVM hs{EM}"); bun(i0 + 13, raise_flag(40))
            fx(i0 - 6, f"WAITVM e{gi+1}" if K < KB - 1 else "WAITVM e8"); fx(i0 - 4, "s_barrier")
            if gi == BG: bun(i0 + 13, raise_flag(58))
        seq = [(0, b) for b in range(9)] + [(1, b) for b in range(8, -1, -1)] if ORD else [(j, b) for b in range(9) for j in range(2)]
        for n, (j, b) in enumerate(seq):
            if j == 0 and b % 3 == 0: fx(i0 + n - 1, f"WAITLG u{K}_{b+2}")
            a = dacc(j, b)
            mf.append(f"v_mfma_f32_16x16x32_bf16 {v4(a)}, {a4(dw(K % 2, b))}, {a4(hreg(K) + 4*j)}, {'0' if K == 0 else v4(a)}")
        for b in range(9):
            i = i0 + 2 * b
            if K < KB - 1: fx(i, drd(K + 1, b))
            else:
                bb, t = tail[b]; fx(i, drd(KB + t, bb, treg(bb, t)))
        if K == 4 * (EM or EA) - 2: poll(51, "fb", i0 + 15, i0 + 18 * 2 + 15)
        if EM and K == KM - 2: poll(41, "fm", i0 + 15, i0 + 18 * 2 + 15)
    assert 4 * (EM or EA) - 2 >= 4 * BG + 6 and (not EM or (KM - 2 >= 4 * MG + 6 and KM <= 4 * EA))
    if os.environ.get("FF"):
        pts = [24 * 6, 24 * 12, 24 * 18, 432 + 144 * 2, 432 + 144 * 4, c8 + 144 + 72 * 2, c8 + 144 + 72 * 4, c8 + 144 + 72 * 6]
        for n, g in enumerate(pts): bun(freegap(g), k.stamp(1 + n))
    n0 = len(k.ins)
    left, over = pack(k, mf, fixed, flow, units=lambda i: UD if i >= c8 + 144 else 2)
    for e in (EA, 8) + ((EM,) if EM else ()):
        iw = [i for i, x in enumerate(k.ins) if x.op == "WAITVM" and x.ops == [f"hs{e}"]][0]
        il = max(i for i, x in enumerate(k.ins) if x.tag == f"hs{e}")
        print("  h stores", e, "complete", sum(1 for x in k.ins[il:iw] if x.kind == "mfma"), "MFMAs before their wait")
        assert il < iw
    for i, x in enumerate(k.ins):
        if x.op == "WAITVM" and i >= n0:
            assert all(y.tag not in x.ops for y in k.ins[i:]), f"ops tagged {x.ops} follow their wait"
    print("ffn leftover instrs:", len(left), "overfull units:", over)
    assert not left
    check_live(k.ins[n0:])
    sub = Kern(); sub.ins = k.ins[n0:]
    iw = [i for i, x in enumerate(sub.ins) if x.tag == "sw"][0]; ir = [i for i, x in enumerate(sub.ins) if x.tag == "s0"][0]
    assert any(x.op == "s_barrier" for x in sub.ins[iw + 3:ir])
    if not os.environ.get("FW"): k.add(k.stamp(12))
    srd(k, 8, 100, PART, PART_SZ)
    k("s_lshl_b32 s21, s48, 2")
    k("s_add_u32 s21, s21, s49")
    k("s_lshl_b32 s6, s21, 2")
    k("s_add_u32 s6, s6, s18")
    k("s_mul_i32 s40, s6, 27648")
    k("s_sub_u32 s6, s47, s18")
    k("s_sub_u32 s6, s6, 1")
    k("s_and_b32 s6, s6, 3")
    k("s_mul_i32 s6, s6, 9216")
    k("s_add_u32 s40, s40, s6")
    k("s_add_u32 s41, s40, 4096")
    k("s_add_u32 s42, s40, 8192")
    k("WAITVM h35")
    k("s_cmp_eq_u32 s18, s47")
    k("s_cbranch_scc1 dn_own")
    OWN = slot(7 - NBG)
    for role in ("pub", "own"):
        k.path = "dn" + role
        if role == "own": k("dn_own:")
        mf = []; fixed = {}; flow = []
        k(f"WAITLG u{KB+1}_0")
        for b in range(9):
            for t in range(NT):
                i = len(mf); n = b * NT + t
                if n and n % 2 == 0:
                    bb, tt = tail[n + 1]; fx(i - 1, f"WAITLG u{KB+tt}_{bb}")
                for j in range(2):
                    a = dacc(j, b)
                    mf.append(f"v_mfma_f32_16x16x32_bf16 {v4(a)}, {a4(treg(b, t))}, {a4(hreg(KB + t) + 4*j)}, {v4(a)}")
                if n + 9 < len(tail):
                    bb, tt = tail[n + 9]; fx(i, drd(KB + tt, bb, treg(bb, tt)))
            i = len(mf) - 8
            if role == "pub":
                P = 200 + 4 * b
                for j in range(2):
                    a = dacc(j, b)
                    flow += [(f"v_cvt_pk_bf16_f32 v{P+2*j}, v{a}, v{a+1}", i + 9), (f"v_cvt_pk_bf16_f32 v{P+2*j+1}, v{a+2}, v{a+3}", i + 9)]
                flow.append((f"buffer_store_dwordx4 {v4(P)}, v1, s[8:11], s{40 + b//4} offen offset:{(b % 4)*1024} {SC}", i + 9))
            else:
                for j in range(2):
                    va, off = lds(OWN + (2 * b + j) * 1024)
                    flow.append((f"ds_write_b128 v{va}, {v4(dacc(j, b))} offset:{off}", i + 11))
        left, over = pack(k, mf, fixed, flow)
        k.add(left)
        if role == "pub": k("s_branch dn_pub")
    k.path = None
    k("dn_pub:")
    finish_down(k, signal, wait_flags, OWN)
    return slow

ORD = int(os.environ.get("ORD", "1")); EM = int(os.environ.get("EM", "0")); MG = int(os.environ.get("MG", "0")); KM = int(os.environ.get("KM", "11")); UD = int(os.environ.get("UD", "3"))
QE = int(os.environ.get("QE", "14")); BG = int(os.environ.get("BG", "2")); NBG = int(os.environ.get("NBG", "1"))

def check_live(ins):
    ACC = F1.ACC; busy = set()
    for x in ins:
        if x.kind == "mfma":
            r = int(x.dst[0][1:]); ffn1 = x.ops[1].startswith("v[")
            if x.ops[3] == "0":
                assert not (set(x.dst) & busy), f"restart of busy accumulator: {x.text}"
            if ffn1: busy |= set(x.dst)
        elif x.kind in ("dsread", "vload"):
            assert not (set(x.dst) & busy), f"load into busy accumulator: {x.text}"
        elif x.op == "v_cvt_pk_bf16_f32":
            g = int(x.src[1][1:])
            if ACC <= g < ACC + 128 and (g - ACC) % 4 == 3:
                for i in range(4): busy.discard(f"v{g-i}"); busy.discard(f"v{g+16-i}")
    assert not busy

def finish_down(k, signal, wait_flags, OWN):
    N = 'dn'
    k(f"s_lshl_b32 s46, s21, {2+FS}")
    k("s_add_u32 s46, s46, s59")
    k(f"s_add_u32 s46, s46, {F_DX*FLG_SET}")
    k(f"s_lshl_b32 s58, s47, {FS}")
    k("s_add_u32 s58, s58, s46")
    k("s_waitcnt lgkmcnt(0)")
    signal(k, 58, 0, "dx")
    if not os.environ.get("FW"): k.add(k.stamp(11))
    if QE:
        k("s_cmp_lg_u32 s54, 0")
        k(f"s_cbranch_scc1 {N}_noq")
        k("s_lshr_b32 s7, s2, 3")
        k("s_mul_i32 s6, s7, 43")
        k("s_lshr_b32 s6, s6, 8")
        k("s_mul_i32 s6, s6, 6")
        k("s_sub_u32 s7, s7, s6")
        k("s_and_b32 s6, s2, 1")
        k("s_mul_i32 s6, s6, 6")
        k("s_add_u32 s6, s6, s7")
        k("s_mul_i32 s6, s6, 165888")
        k(f"s_add_u32 s6, s6, {WQKV}")
        k("s_add_u32 s12, s4, s6"); k("s_addc_u32 s13, s5, 0"); k("s_and_b32 s13, s13, 0xffff"); k("s_mov_b32 s15, 0x20000")
        k("s_cmp_lt_u32 s2, 192")
        k("s_cselect_b32 s14, 165888, 0")
        k("s_lshl_b32 s6, s18, 10")
        for i in range(QE):
            k(f"s_add_u32 m0, s6, {i*4096}")
            k("buffer_load_dwordx4 v1, s[12:15], m0 offen lds")
        k(f"{N}_noq:")
    srd(k, 24, 100, X1, XSZ)
    k("v_and_b32 v10, 15, v254")
    k("v_bfe_u32 v12, v254, 4, 1")
    k("v_lshrrev_b32 v13, 5, v254")
    k("v_mul_u32_u24 v14, 18432, v12")
    k("v_lshl_add_u32 v16, v13, 8, v14")
    k("v_lshl_add_u32 v16, v10, 4, v16")
    k("s_lshl_b32 s30, s48, 3")
    k("s_lshl_b32 s6, s47, 1")
    k("s_add_u32 s30, s30, s6")
    k("s_mul_i32 s31, s30, 18432")
    k("s_mul_i32 s32, s49, 9")
    k("s_add_u32 s32, s32, s18")
    k("s_lshl_b32 s33, s32, 9")
    k("s_add_u32 s33, s33, s31")
    RES = 176; PT = 188; OW = 32
    k("s_add_u32 s34, s33, 4096")
    k(f"buffer_load_dwordx4 {v4(RES)}, v16, s[24:27], s33 offen {SC}")
    k(f"buffer_load_dwordx4 {v4(RES+4)}, v16, s[24:27], s33 offen offset:2048 {SC}")
    k(f"buffer_load_dwordx4 {v4(RES+8)}, v16, s[24:27], s34 offen {SC}")
    k("s_lshl_b32 s6, s18, 11")
    k(f"s_add_u32 s6, s6, {OWN}")
    k("v_add_u32 v6, s6, v1")
    for bi in range(3):
        for j in range(2): k(f"ds_read_b128 {v4(OW + 8*bi + 4*j)}, v6 offset:{bi*8192 + j*1024}")
    k("s_cmp_eq_u32 s54, 1")
    k("s_cselect_b32 s44, 16, 256")
    k("s_cselect_b32 s45, 1152, 16")
    k("s_cselect_b32 s36, s56, s100")
    k("s_cselect_b32 s37, s57, s101")
    k(f"s_cselect_b32 s6, 0, {X2}")
    k(f"s_cselect_b32 s42, 0, {ST2SZ}")
    k("s_add_u32 s36, s36, s6"); k("s_addc_u32 s37, s37, 0"); k("s_and_b32 s37, s37, 0xffff"); k(f"s_mov_b32 s38, {XSZ}"); k("s_mov_b32 s39, 0x20000")
    k(f"s_add_u32 s40, s100, {ST2}"); k("s_addc_u32 s41, s101, 0"); k("s_and_b32 s41, s41, 0xffff"); k("s_mov_b32 s43, 0x20000")
    k("v_mul_lo_u32 v17, v10, s45")
    k("v_mul_lo_u32 v15, v13, s44")
    k("v_add3_u32 v17, v17, v15, v14")
    k("s_lshl_b32 s6, s44, 1")
    k("s_mul_i32 s16, s32, s6")
    k("s_add_u32 s16, s16, s31")
    k("s_lshl_b32 s6, s44, 3")
    k("s_add_u32 s17, s16, s6")
    k("s_add_u32 s19, s17, s6")
    k("v_lshlrev_b32 v18, 4, v10")
    k("v_lshl_add_u32 v18, v12, 11, v18")
    k("s_lshl_b32 s51, s30, 11")
    k("s_lshl_b32 s6, s49, 9")
    k("s_add_u32 s51, s51, s6")
    k("s_lshr_b32 s6, s18, 1")
    k("s_lshl_b32 s6, s6, 8")
    k("s_add_u32 s51, s51, s6")
    k("s_and_b32 s6, s18, 1")
    k("s_lshl_b32 s6, s6, 3")
    k("s_add_u32 s51, s51, s6")
    k("s_lshl_b32 s6, s21, 2")
    k("s_add_u32 s6, s6, s47")
    k("s_mul_i32 s33, s6, 27648")
    k("s_lshl_b32 s7, s18, 10")
    k("s_add_u32 s33, s33, s7")
    k("s_add_u32 s34, s33, 9216")
    k("s_add_u32 s35, s33, 18432")
    k("s_lshl_b32 s58, s48, 4")
    k("s_lshl_b32 s7, s49, 2")
    k("s_add_u32 s58, s58, s7")
    k("s_add_u32 s58, s58, s47")
    k(f"s_lshl_b32 s58, s58, {FS}")
    k("s_add_u32 s58, s58, s59")
    k(f"s_add_u32 s58, s58, {F_DN*FLG_SET}")
    k("v_add_u32 v7, 4096, v1")
    k("v_add_u32 v8, 8192, v1")
    k("v_mov_b32 v20, 0")
    k("v_mov_b32 v21, 0")
    k("v_mov_b32 v22, 0xffff0000")
    k("v_mov_b32 v23, 0x3f803f80")
    k("s_waitcnt lgkmcnt(0)")
    k("v_min_u32 v255, 2, v254")
    k("s_add_u32 s6, s47, 1")
    k("v_add_u32 v255, s6, v255")
    k("v_and_b32 v255, 3, v255")
    k(f"v_lshlrev_b32 v255, {FS}, v255")
    wait_flags(k, 46, None, "dx")
    k.add(k.stamp(1)) if os.environ.get("FH") else None
    def ld(bi):
        for p in range(3): k(f"buffer_load_dwordx4 {v4(PT + 12*bi + 4*p)}, v{(1, 7, 8)[bi]}, s[8:11], s{33+p} offen {SC}")
    U = 64
    def fin(bi):
        X = OW + 8 * bi; Y = X + 4
        for p in range(3):
            r = PT + 12 * bi + 4 * p
            for q in range(4):
                k(f"v_lshlrev_b32 v{U+2*q}, 16, v{r+q}")
                k(f"v_and_b32 v{U+2*q+1}, v22, v{r+q}")
            for q in range(4): k(f"v_pk_add_f32 {v2(X+2*q)}, {v2(X+2*q)}, {v2(U+2*q)}")
        for q in range(4):
            k(f"v_lshlrev_b32 v{U+2*q}, 16, v{RES+4*bi+q}")
            k(f"v_and_b32 v{U+2*q+1}, v22, v{RES+4*bi+q}")
        for i in range(4): k(f"v_permlane16_swap_b32 v{X+i}, v{Y+i}")
        for q in range(4): k(f"v_pk_add_f32 {v2(X+2*q)}, {v2(X+2*q)}, {v2(U+2*q)}")
        pk = 72 + 4 * bi
        for q in range(4): k(f"v_cvt_pk_bf16_f32 v{pk+q}, v{X+2*q}, v{X+2*q+1}")
        k("s_cmp_eq_u32 s54, 0")
        k(f"s_cbranch_scc1 {N}_s{bi}")
        k(f"buffer_store_dwordx4 {v4(pk)}, v17, s[36:39], s{(16, 17, 19)[bi]} offen")
        k(f"s_branch {N}_t{bi}")
        k(f"{N}_s{bi}:")
        k(f"buffer_store_dwordx4 {v4(pk)}, v17, s[36:39], s{(16, 17, 19)[bi]} offen {SC}")
        k(f"{N}_t{bi}:")
        for q in range(4):
            k(f"v_dot2c_f32_bf16 v20, v{pk+q}, v23")
            k(f"v_dot2c_f32_bf16 v21, v{pk+q}, v{pk+q}")
    k("s_cmp_lg_u32 s18, 0")
    k(f"s_cbranch_scc1 {N}_l2")
    ld(2)
    k(f"{N}_l2:")
    ld(0); ld(1)
    k("s_cmp_lg_u32 s18, 0")
    k(f"s_cbranch_scc1 {N}_f2")
    k("s_waitcnt vmcnt(6)")
    fin(2)
    k(f"{N}_f2:")
    k("s_waitcnt vmcnt(3)")
    fin(0)
    k("s_waitcnt vmcnt(1)")
    fin(1)
    k("v_mov_b32 v24, v20")
    k("v_mov_b32 v25, v21")
    k("v_permlane32_swap_b32 v20, v24")
    k("v_permlane32_swap_b32 v21, v25")
    k("v_add_f32 v20, v20, v24")
    k("v_add_f32 v21, v21, v25")
    k("s_mov_b32 exec_hi, 0")
    k(f"buffer_store_dwordx2 v[20:21], v18, s[40:43], s51 offen {SC}")
    k("s_mov_b32 exec_hi, -1")
```

```python
import sys
from asmgen import *
from layout import *
import k_prep

def finalize(k, entries, verbose=True):
    k.resolve_waits()
    added = k.fix_hazards()
    errs = []
    for e in entries:
        if getattr(k, "script", False):
            for wg in (0, 1, 77, 200, 255):
                for w in range(getattr(k, "nwaves", 4)): errs += k.check(e, f"{e}[wg{wg},w{w}]", sim=(wg, w))
            continue
        fw = list(dict.fromkeys(k.fwd_targets()))
        runs = [set()] + [{t} for t in fw if not t.endswith("_end")]
        extra = getattr(k, "extra_paths", [])
        for tk in getattr(k, 'only_paths', None) or (runs + extra):
            if tk in getattr(k, 'skip_paths', []): continue
            errs += k.check(e, e + str(sorted(tk)), taken=tk)
    errs = list(dict.fromkeys(errs))
    for x in errs[:40]: print("ERR", x)
    if verbose: print(entries, "instrs:", sum(1 for x in k.ins if x.kind not in ("label", "dir")), "nops added:", added, "errors:", len(errs))
    assert not errs

HEADER = open("interleave_layers__sliding_block__swiglu_ffn__prompt.s.ref").read().split("; Override launch")[0]

NOTES = """; One persistent launch, one 256-thread workgroup per CU (256 workgroups, all resident). Generated by hand-written scripts.
; Per layer: LN+QKV projection -> sliding-window attention -> wo + residual -> LN + gate/up + SwiGLU -> down + residual.
;   * LayerNorm is folded into the GEMM epilogues: y = rstd * (x.W - mean * colsum(W)); row statistics come from the producers.
;   * All operands live in d_ws in MFMA fragment order; the weights are re-laid once per launch (transposing LDS reads).
;   * Workgroups hand data over with write-through (sc1) stores, a drained wait, a barrier and a flag word per producer; consumers
;     poll the flags and read with sc1 loads. The flag value is a hash of an epoch word in d_ws that the launch advances at its end,
"""

def build(part, path):
    k, launches, desc, entries = part
    finalize(k, entries)
    _, g, b, lds = launches[0]
    out = HEADER + f"; @launch grid=({g},1,1) block=({b},1,1) lds={lds}\n"
    out += NOTES
    out += '.amdgcn_target "amdgcn-amd-amdhsa--gfx950"\n.text\n'
    t = k.text().replace(entries[0] + ":\n", entries[0] + ":\ncode_mega:\n")
    import os, re
    if not os.environ.get("NOSC1W"):
        lines = t.split("\n"); inq0 = False
        for i, l in enumerate(lines):
            if l.startswith("q0_tile"): inq0 = True
            if l.startswith("q2_l1"): inq0 = False
            if inq0 or not l.startswith("  buffer_load") or "sc1" in l or " nt" in l: continue
            lines[i] = l[:-4] + " sc1 lds" if l.endswith(" lds") else l.rstrip() + " sc1"
        t = "\n".join(lines)
    if NREP > 1:
        t = re.sub(r"s_mov_b64 exec, 1\n(  buffer_store_dword v253, v252, s\[96:99\])", lambda m: f"s_mov_b64 exec, {(1 << NREP) - 1}\n" + m.group(1), t)
        t = re.sub(r"(buffer_load_dword v2\d\d, v2\d\d), s\[96:99\]", lambda m: m.group(1) + ", s[84:87]", t)
    PM = os.environ.get("POLLMOD"); SM = os.environ.get("FLAGMOD")
    if PM: t = re.sub(r"(buffer_load_dword v2\d\d, v2\d\d, s\[96:99\], s\d+ offen) sc1", lambda m: m.group(1) + " " + PM, t)
    if SM: t = re.sub(r"(buffer_store_dword v253, v252, s\[96:99\], s\d+ offen) sc1", lambda m: m.group(1) + " " + SM, t)
    out += t + "code_end:\n  s_endpgm\n" + desc
    open(path, "w").write(out)

if __name__ == "__main__":
    import k_mega
    build(k_mega.gen(), sys.argv[1] if len(sys.argv) > 1 else "main.s")
```
